```python
import torch

def _softmax(x, axis=-1):
    return torch.softmax(x, dim=axis)
def _gelu(x):
    return torch.nn.functional.gelu(x, approximate="tanh")
def _silu(x):
    return torch.nn.functional.silu(x)
def _sigmoid(x):
    return torch.sigmoid(x)
def _layernorm(x, axis=-1, eps=1e-5):
    m = x.mean(dim=axis, keepdim=True)
    v = x.var(dim=axis, keepdim=True, unbiased=False)
    return (x - m) / torch.sqrt(v + eps)
def _scatter_add(tgt, idx, src, axis=0):
    return tgt.clone().index_add_(axis, idx, src)
def _segment_sum(src, seg, n):
    out = torch.zeros((n,) + src.shape[1:], dtype=src.dtype)
    return out.index_add_(0, seg, src)
def _pad(x, pw):
    flat = tuple(v for pair in reversed(pw) for v in pair)
    return torch.nn.functional.pad(x, flat)

kernel_name = 'interleave_layers__sliding_block__glu_gated_reglu__prompt'

def setup_inputs():

    _w = (lambda a: (lambda t: t.to(torch.bfloat16) if t.is_floating_point() else t)(torch.as_tensor(a)))
    def _A_setup():
        B, S, D = 1, 2048, 640
        return {
            "x": _w((lambda *s: torch.randn(*s, dtype=torch.bfloat16) * 0.05)(B, S, D)),
            "wqkv": _w((lambda *s: torch.randn(*s, dtype=torch.bfloat16) * 0.05)(D, 3 * D)),
            "wo": _w((lambda *s: torch.randn(*s, dtype=torch.bfloat16) * 0.05)(D, D)),
        }
    _A_in = _A_setup()

    def _B_setup():
        B, S, D, F = 1, 2048, 640, 1728
        return {
            "x": _w((lambda *s: torch.randn(*s, dtype=torch.bfloat16) * 0.05)(B, S, D)),
            "W_gate": _w((lambda *s: torch.randn(*s, dtype=torch.bfloat16) * 0.8)(D, F) * (2.0 / D) ** 0.5),
            "W_up": _w((lambda *s: torch.randn(*s, dtype=torch.bfloat16) * 0.8)(D, F) * (2.0 / D) ** 0.5),
            "W_down": _w((lambda *s: torch.randn(*s, dtype=torch.bfloat16) * 0.8)(F, D) * (1.0 / F) ** 0.5),
        }
    _B_in = _B_setup()

    return {
        "A_x": _A_in["x"],
        "A_wqkv": _A_in["wqkv"],
        "A_wo": _A_in["wo"],
        "B_x": _B_in["x"],
        "B_W_gate": _B_in["W_gate"],
        "B_W_up": _B_in["W_up"],
        "B_W_down": _B_in["W_down"],
    }

def reference(A_x, A_wqkv, A_wo, B_x, B_W_gate, B_W_up, B_W_down):
    def _A_ref(x, wqkv, wo):
        B, S, D = x.shape
        H = 32; Dh = D // H; W = 256
        qkv = (lambda x, *d: x.permute(*d))((x @ wqkv).reshape(B, S, 3, H, Dh), 2, 0, 3, 1, 4)
        q, k, v = qkv[0], qkv[1], qkv[2]
        scores = torch.einsum("bhqd,bhkd->bhqk", q, k) * (Dh ** -0.5)
        idx = torch.arange(S)
        mask = (idx[:, None] - idx[None, :] >= 0) & (idx[:, None] - idx[None, :] < W)
        scores = torch.where(mask[None, None], scores, -1e9)
        p = _softmax(scores, axis=-1)
        o = torch.einsum("bhqk,bhkd->bhqd", p, v)
        return (lambda x, *d: x.permute(*d))(o, 0, 2, 1, 3).reshape(B, S, D) @ wo

    def _B_ref(x, W_gate, W_up, W_down):
        gate = torch.einsum("bsd,df->bsf", x, W_gate)
        up = torch.einsum("bsd,df->bsf", x, W_up)
        gate = gate * (lambda x, dt: x.to(dt))(gate > 0, gate.dtype)
        h = gate * up
        return torch.einsum("bsf,fd->bsd", h, W_down)

    x = A_x
    x = x + _A_ref(_layernorm(x, axis=-1), A_wqkv, A_wo)
    x = x + _B_ref(_layernorm(x, axis=-1), B_W_gate, B_W_up, B_W_down)
    x = x + _A_ref(_layernorm(x, axis=-1), A_wqkv, A_wo)
    x = x + _B_ref(_layernorm(x, axis=-1), B_W_gate, B_W_up, B_W_down)
    return x
```

```python
import re

def v(i, n=1): return f"v{i}" if n == 1 else f"v[{i}:{i+n-1}]"
def a(i, n=1): return f"a{i}" if n == 1 else f"a[{i}:{i+n-1}]"
def s(i, n=1): return f"s{i}" if n == 1 else f"s[{i}:{i+n-1}]"

TRANS = ("v_exp_f32", "v_log_f32", "v_rcp_f32", "v_rsq_f32", "v_sqrt_f32", "v_sin_f32", "v_cos_f32")
_REG = re.compile(r"^-?\|?(abs\()?([vas])(\d+|\[(\d+):(\d+)\])\)?\|?$")

def regs_of(op):
    op = op.strip()
    if op in ("vcc", "exec", "m0", "scc"): return {(op, 0)}
    if op in ("vcc_lo", "vcc_hi"): return {("vcc", 0)}
    if op in ("exec_lo", "exec_hi"): return {("exec", 0)}
    m = _REG.match(op)
    if not m: return set()
    k = m.group(2)
    if m.group(4) is not None:
        return {(k, i) for i in range(int(m.group(4)), int(m.group(5)) + 1)}
    return {(k, int(m.group(3)))}

class Ins:
    def __init__(self, text):
        self.text = text
        t = text.split(";")[0].strip()
        self.label = t.endswith(":")
        self.directive = t.startswith(".")
        self.mn = "" if (self.label or self.directive or not t) else t.split()[0]
        self.dst = set(); self.src = set(); self.ops = []
        self.cls = None
        if not self.mn: return
        rest = t[len(self.mn):].strip()
        ops = [o.strip() for o in rest.split(",")] if rest else []
        if ops:
            last = ops[-1].split()
            self.mods = last[1:]
            ops[-1] = last[0] if last else ""
        else:
            self.mods = []
        self.ops = ops
        mn = self.mn
        R = [regs_of(o) for o in ops]
        allr = set().union(*R) if R else set()
        if mn.startswith("v_mfma"):
            self.cls = "mfma"; self.dst = R[0]; self.A = R[1]; self.B = R[2]; self.C = R[3]
            self.src = R[1] | R[2] | R[3]
            self.passes = 8 if "32x32" in mn else 4
        elif mn.startswith("v_"):
            self.cls = "valu"
            self.trans = any(mn.startswith(x) for x in TRANS)
            self.dpp = "dpp" in mn or any(m.startswith(("row_", "quad_perm", "wave_")) for m in self.mods)
            if mn.startswith("v_permlane"):
                self.dst = R[0] | R[1]; self.src = R[0] | R[1]
            elif mn.startswith(("v_add_co", "v_sub_co", "v_addc_co", "v_subb_co")):
                self.dst = R[0] | R[1]; self.src = set().union(*R[2:])
            else:
                self.dst = R[0] if R else set(); self.src = set().union(*R[1:]) if len(R) > 1 else set()
                if mn.startswith(("v_fmac", "v_dot2c", "v_writelane")) or self.dpp: self.src |= R[0]
                if mn.startswith("v_cndmask") and len(ops) == 3: self.src |= {("vcc", 0)}
            if mn.startswith("v_cmpx"): self.dst |= {("exec", 0)}
        elif mn.startswith(("buffer_", "global_")):
            self.cls = "vmem"
            self.lds = "lds" in self.mods or "_lds_" in mn
            self.store = "store" in mn or "atomic" in mn
            if self.lds or self.store or mn in ("buffer_inv", "buffer_wbl2"):
                self.src = allr
                if "atomic" in mn and "sc0" in self.mods: self.dst = R[0]
            else:
                self.dst = R[0]; self.src = set().union(*R[1:])
            if self.lds: self.src |= {("m0", 0)}
            self.wide = self.store and ("x3" in mn or "x4" in mn)
            if self.store:
                self.data = R[0] if mn.startswith("buffer_") else R[1]
        elif mn.startswith("ds_"):
            self.cls = "ds"
            if mn.startswith(("ds_read", "ds_bpermute", "ds_permute", "ds_swizzle")):
                self.dst = R[0]; self.src = set().union(*R[1:])
            else:
                self.src = allr
        elif mn.startswith("s_"):
            self.cls = "salu"
            if mn.startswith(("s_cmp", "s_cbranch", "s_branch", "s_waitcnt", "s_nop", "s_barrier", "s_sleep",
                              "s_endpgm", "s_setprio", "s_bitcmp", "s_setpc")):
                self.src = allr
            else:
                self.dst = R[0] if R else set(); self.src = set().union(*R[1:]) if len(R) > 1 else set()
                if "saveexec" in mn: self.dst |= {("exec", 0)}
        else:
            raise ValueError("unknown instruction " + text)
    def states(self):
        if self.mn == "s_nop": return int(self.ops[0]) + 1
        return 1 if self.mn else 0

def isv(r): return r[0] in ("v", "a")

def need(p, c):
    n = 0
    pv = {r for r in p.dst if isv(r)}
    ps = {r for r in p.dst if not isv(r)}
    if p.cls == "valu":
        if c.cls == "mfma":
            if pv & c.src: n = max(n, 2)
            if ("exec", 0) in ps: n = max(n, 4)
        if c.cls == "valu":
            if p.trans and not c.trans and (pv & c.src): n = max(n, 1)
            if c.mn.startswith("v_permlane") and (pv & c.src): n = max(n, 2)
            if c.dpp and (pv & c.src): n = max(n, 2)
            if c.dpp and ("exec", 0) in ps: n = max(n, 5)
            if c.mn.startswith(("v_readlane", "v_readfirstlane")) and (pv & c.src): n = max(n, 1)
            if ps & c.src: n = max(n, 4 if c.mn.startswith(("v_readlane", "v_writelane")) else 2)
            if ("exec", 0) in ps and c.mn.startswith(("v_readlane", "v_readfirstlane", "v_writelane", "v_permlane")): n = max(n, 4)
        if c.cls == "vmem" and (ps & c.src): n = max(n, 5)
        if c.cls == "salu" and (ps & c.src): n = max(n, 1)
    if p.cls == "mfma":
        big = 12 if p.passes == 8 else 8
        if c.cls == "mfma":
            if p.dst & (c.A | c.B): n = max(n, big)
            if p.dst & c.C and not (p.dst == c.C and p.passes == c.passes): n = max(n, big - 2)
            if p.dst & c.dst and not (p.dst == c.C): n = max(n, big - 2)
        elif c.cls in ("valu", "vmem", "ds"):
            if p.dst & (c.src | c.dst): n = max(n, big)
            if c.cls == "valu" and (p.C & c.dst): n = max(n, 7 if p.passes == 8 else 3)
    if p.cls == "salu" and ("m0", 0) in p.dst and c.cls == "vmem" and c.lds: n = max(n, 1)
    if p.cls == "vmem" and p.store and p.wide and c.cls != "salu" and (p.data & c.dst): n = max(n, 2)
    return n

class Asm:
    def __init__(self):
        self.L = []
        self.vm = []
        self.lg = []
        self.uid = 0
    def __call__(self, text):
        for line in text.split("\n"):
            line = line.strip()
            if line: self.L.append(Ins(line))
    def lab(self, name): self.L.append(Ins(name + ":"))
    def newlab(self, p="L"):
        self.uid += 1; return f"{p}_{self.uid}"
    def vmem(self, text, tag=None):
        self(text); self.vm.append(tag)
    def lds(self, text, tag=None):
        self(text); self.lg.append(tag)
    def _wait(self, q, tag, cap):
        idx = [i for i, t in enumerate(q) if t == tag]
        if not idx: return None
        n = len(q) - 1 - idx[-1]
        del q[:idx[-1] + 1]
        return min(n, cap)
    def wait_vm(self, tag):
        n = self._wait(self.vm, tag, 63)
        if n is not None: self(f"s_waitcnt vmcnt({n})")
    def wait_lg(self, tag):
        n = self._wait(self.lg, tag, 15)
        if n is not None: self(f"s_waitcnt lgkmcnt({n})")
    def wait_vm0(self): self.vm = []; self("s_waitcnt vmcnt(0)")
    def wait_lg0(self): self.lg = []; self("s_waitcnt lgkmcnt(0)")
    def wait_all(self): self.vm = []; self.lg = []; self("s_waitcnt vmcnt(0) lgkmcnt(0)")
    def render(self):
        out = []
        for c in self.L:
            if c.mn:
                dist = 0; req = 0
                for p in reversed(out):
                    if dist >= 20: break
                    if p.mn in ("s_branch", "s_endpgm", "s_setpc_b64"): break
                    if p.mn:
                        req = max(req, need(p, c) - dist)
                        dist += p.states()
                while req > 0:
                    k = min(req, 16)
                    out.append(Ins(f"s_nop {k-1}")); req -= k
            out.append(c)
        return "\n".join(("" if (i.label or i.directive) else "  ") + i.text for i in out) + "\n"
```

```python
S, D, F, H, DH, W = 2048, 640, 1728, 32, 20, 256
CNT = 0x0000
KVF = 0x2000
FLAG_BYTES = 0x10000
CSP1 = 0x10000
CSP4 = 0x20000
PROF = 0x40000
WP1 = 0x100000;  WP1_J = 163840
WP3 = WP1 + 16 * WP1_J; WP3_C = 102400
WP4 = WP3 + 8 * WP3_C;  WP4_J = 286720
WP5 = WP4 + 16 * WP4_J; WP5_C = 286720
WEND = WP5 + 8 * WP5_C
LB = 0x1000000
assert WEND + 65536 < LB
XA = 0
X1 = XA + 2621440
OO = X1 + 2621440
HH = OO + 2621440
KV = HH + 128 * 54 * 1024; KV_WG = 23552
ST3 = KV + 256 * KV_WG
STA = ST3 + 131072
LS = 0x1500000
assert STA + 131072 <= LS
WS_USED = LB + 2 * LS

P4_GROUPS = [(0, 7)]

def cg32(u, h, p):
    return 8 * (u >> 1) + 2 * (u & 1) + h + (4 if u < 4 else 2) * p
def k32(s, h, e):
    return 80 * (s // 5) + 4 * cg32(s % 5, h, e >> 2) + (e & 3)
def col1(hp, t, n):
    cg = 8 * t + (n >> 2); i = n & 3
    if cg < 10: return 640 + 40 * hp + 4 * cg + i
    if cg < 20: return 1280 + 40 * hp + 4 * (cg - 10) + i
    if cg < 30: return 40 * hp + 4 * (cg - 20) + i
    return None
def col4(T, n):
    sg = n >> 2; j = sg >> 1; hh = sg & 1
    return (j & 1, 16 * T + 4 * (2 * hh + (j >> 1)) + (n & 3))
def off4(s, t):
    for t0, nt in P4_GROUPS:
        if t0 <= t < t0 + nt: return (40 * t0 + s * nt + (t - t0)) * 1024
VPOS = {('a', 4): 0, ('a', 0): 1, ('a', 2): 2, ('a', 1): 3, ('a', 3): 4,
        ('b', 1): 7, ('b', 3): 8, ('b', 2): 9, ('b', 4): 10, ('b', 0): 12}

def pos3(b):
    kh = b // 10; return 2 * (b - 10 * kh) + kh
def pos5(b):
    kh = b // 27; bl = b - 27 * kh; return 4 * (bl >> 1) + 2 * kh + (bl & 1)
```

```python
from asmlib import *
from layout import *
from pack import srd, sel, OOB
import math

WS = "s[4:7]"; XS = "s[8:11]"; OS = "s[12:15]"; DS_ = "s[16:19]"
MB, J, WV, LAY, RH, CT, RR, KH = 20, 21, 22, 23, 24, 25, 26, 27
SL = 40
TGT = 41
S_A1 = 42
S_ST1 = 43
S_KVO = 44
S_A3 = 45
S_A3B = 46
S_X = 47
S_STX = 48
S_W1, S_W3, S_W4, S_W5 = 49, 50, 51, 52
S_H = 53
S_PB = 54
S_WI = 55
MASK = 64
T = [28, 29, 30, 31, 32, 33, 34, 35, 36, 37]

VL, VL16, VST, RES = 1, 2, 3, 4
VO1, VO2, VO3, VX, VSX, VH, VCNT, VCS, VK, VKS, VV, VW2, VW12, VW1, VXW, VXR, VB1, VB2 = range(14, 32)
PM = 32
VPROF = 40
VFREE = 44

LDS_MISC = 147456
CS1 = LDS_MISC; CS4 = LDS_MISC + 512
KREG = 36864; VREG = KREG + 12 * 2560
XCH3 = 126976; XCH5 = 0
QSCALE = math.log2(math.e) / math.sqrt(20.0)

def lds1(st): return ((st + 5) % 36) * 4096 if st < 36 else (st - 31) * 4096
def lds3(bl): return bl * 10240 if bl < 3 else (107520 if bl == 3 else KREG + (bl - 4) * 10240)
def fhex(x):
    import struct
    return hex(struct.unpack("<I", struct.pack("<f", x))[0])

class Main:
    def __init__(self, A, opts):
        self.A = A; self.o = opts
        self.prof = opts.get("prof", 0); self.nst = 0
        self.stop = opts.get("stop", None)
        self.ld = "sc1"; self.st = "sc1"

    def stamp(self, idx):
        if not self.prof: return
        A = self.A
        A(f"s_memrealtime s[38:39]\ns_waitcnt lgkmcnt(0)\ns_add_u32 m0, s{S_PB}, {idx}\nv_writelane_b32 v{VPROF}, s38, m0")
        A.lg = []

    def ldsaddr(self, off, bases):
        b = off >> 16
        return f"v{bases[b]} offset:{off & 0xffff}"

    def segment(self, sbase, goff, loff, nkb):
        A = self.A; L = A.newlab("seg")
        A(f"s_lshl_b32 s{T[0]}, s{S_WI}, 10\ns_add_u32 s{T[1]}, s{T[0]}, s{sbase}\ns_add_u32 s{T[1]}, s{T[1]}, {goff}\ns_add_u32 s{T[0]}, s{T[0]}, {loff}")
        A.lab(L)
        A(f"s_mov_b32 m0, s{T[0]}\ns_add_u32 s{T[0]}, s{T[0]}, 3072\nbuffer_load_dwordx4 v{VL16}, {WS}, s{T[1]} offen lds")
        A(f"s_add_u32 s{T[1]}, s{T[1]}, 3072\ns_cmp_lt_u32 s{T[0]}, {loff + nkb*1024}\ns_cbranch_scc1 {L}")

    def spin(self, body_load, cond, code):
        A = self.A; L = A.newlab("poll"); D = A.newlab("pdone")
        A(f"s_mov_b32 s{T[2]}, 40000")
        A.lab(L)
        A(body_load + "\ns_waitcnt vmcnt(0)\n" + cond + f" {D}")
        A(f"s_sleep 1\ns_sub_u32 s{T[2]}, s{T[2]}, 1\ns_cmp_lg_u32 s{T[2]}, 0\ns_cbranch_scc1 {L}")
        A(f"v_mov_b32 v{VFREE}, {code}\nv_mov_b32 v{VFREE+1}, 0\nbuffer_store_dword v{VFREE}, v{VFREE+1}, {DS_}, 0 offen")
        A.lab(D)

    def cluster_sync(self, pre, code):
        A = self.A; N = A.newlab("nw0"); E = A.newlab("syn")
        A.wait_all(); A("s_barrier")
        A(f"s_add_u32 s{TGT}, s{TGT}, 16\ns_cmp_lg_u32 s{WV}, 0\ns_cbranch_scc1 {N}")
        A(f"s_mov_b64 exec, 1\nv_mov_b32 v{VFREE}, 1\nbuffer_atomic_add v{VFREE}, v{VCNT}, {WS}, 0 offen sc1")
        self.spin(f"buffer_load_dword v{VFREE}, v{VCNT}, {WS}, 0 offen sc1", f"v_cmp_gt_u32 vcc, s{TGT}, v{VFREE}\ns_cbranch_vccz", code)
        A(f"s_mov_b64 exec, -1\ns_branch {E}")
        A.lab(N); pre(); A.lab(E)
        A("s_barrier")

    def setup(self):
        A = self.A
        A.lab("main_kernel")
        A("s_cmp_ge_u32 s2, 256\ns_cbranch_scc1 main_end")
        A("s_load_dwordx2 s[28:29], s[0:1], 0\ns_load_dwordx4 s[32:35], s[0:1], 56\ns_load_dwordx2 s[30:31], s[0:1], 72")
        A(f"v_and_b32 v{VL}, 63, v0\nv_lshrrev_b32 v2, 6, v0\ns_nop 0\nv_readfirstlane_b32 s{WV}, v2\nv_lshlrev_b32 v{VL16}, 4, v{VL}")
        A(f"s_and_b32 s{MB}, s2, 7\ns_lshl_b32 s{MB}, s{MB}, 1\ns_lshr_b32 s3, s2, 7\ns_add_u32 s{MB}, s{MB}, s3\ns_bfe_u32 s{J}, s2, 0x40003")
        A(f"s_and_b32 s{RH}, s{J}, 1\ns_lshr_b32 s{CT}, s{J}, 1\ns_lshr_b32 s{RR}, s{WV}, 1\ns_and_b32 s{KH}, s{WV}, 1\ns_sub_u32 s{S_WI}, s{WV}, 1")
        A(f"s_mov_b32 s{LAY}, 0\ns_mov_b32 s{SL}, {LB}\ns_mov_b32 s{TGT}, 0\ns_mov_b32 s{S_PB}, 0")
        A(f"s_lshl_b32 s3, s{MB}, 2\ns_add_u32 s3, s3, s{WV}\ns_mul_i32 s{S_A1}, s3, 40960\ns_lshl_b32 s{S_ST1}, s3, 11")
        A(f"s_mul_i32 s{S_H}, s3, {2*54*1024}\ns_mul_i32 s3, s{J}, {7*512}\ns_add_u32 s{S_H}, s{S_H}, s3")
        A(f"s_mul_i32 s{S_W1}, s{J}, {WP1_J}\ns_add_u32 s{S_W1}, s{S_W1}, {WP1}\ns_mul_i32 s{S_W4}, s{J}, {WP4_J}\ns_add_u32 s{S_W4}, s{S_W4}, {WP4}")
        A(f"s_mul_i32 s{S_W3}, s{CT}, {WP3_C}\ns_add_u32 s{S_W3}, s{S_W3}, {WP3}\ns_mul_i32 s{S_W5}, s{CT}, {WP5_C}\ns_add_u32 s{S_W5}, s{S_W5}, {WP5}")
        A("s_waitcnt lgkmcnt(0)")
        srd(A, 4, 30, WS_USED); srd(A, 8, 28, 2048*640*2); srd(A, 12, 32, 2048*640*2); srd(A, 16, 34, 256)

    def setup2(self):
        A = self.A; t = VFREE
        A(f"s_lshl_b32 s3, s{MB}, 4\ns_add_u32 s3, s3, s{J}\ns_mul_i32 s{S_KVO}, s3, {KV_WG}\ns_add_u32 s{S_KVO}, s{S_KVO}, {KV}")
        A(f"s_lshl_b32 s3, s{MB}, 2\ns_lshl_b32 s36, s{RH}, 1\ns_add_u32 s3, s3, s36\ns_add_u32 s3, s3, s{RR}")
        A(f"s_mul_i32 s{S_X}, s3, 40960\ns_mul_i32 s36, s{CT}, 5120\ns_add_u32 s{S_X}, s{S_X}, s36")
        A(f"s_lshl_b32 s{S_STX}, s3, 3\ns_add_u32 s{S_STX}, s{S_STX}, s{CT}\ns_lshl_b32 s{S_STX}, s{S_STX}, 8")
        A(f"s_lshl_b32 s3, s3, 1\ns_add_u32 s{S_A3}, s3, s{KH}\ns_xor_b32 s{S_A3B}, s{S_A3}, 1")
        m5, h, m4, g = t, t+1, t+2, t+3
        A(f"v_and_b32 v{m5}, 31, v{VL}\nv_lshrrev_b32 v{h}, 5, v{VL}\nv_and_b32 v{m4}, 15, v{VL}\nv_lshrrev_b32 v{g}, 4, v{VL}")
        A(f"v_lshlrev_b32 v{VST}, 3, v{m5}\nv_lshl_add_u32 v{VST}, v{h}, 8, v{VST}")
        A(f"v_add_u32 v{VB1}, 0x10000, v{VL16}\nv_add_u32 v{VB2}, 0x20000, v{VL16}\nv_lshlrev_b32 v{VCS}, 6, v{h}\nv_add_u32 v{VCS}, {LDS_MISC}, v{VCS}")
        A(f"s_lshl_b32 s3, s{MB}, 8\nv_mov_b32 v{VCNT}, s3")
        A(f"s_lshl_b32 s3, s{MB}, 3\ns_lshl_b32 s36, s{WV}, 1\ns_add_u32 s3, s3, s36\ns_mul_i32 s3, s3, 20480\ns_mul_i32 s36, s{J}, 1280\ns_add_u32 s3, s3, s36\ns_add_u32 s3, s3, {OO}")
        A(f"v_lshrrev_b32 v{t+4}, 4, v{m5}\nv_mul_u32_u24 v{t+5}, 20480, v{t+4}\nv_lshl_add_u32 v{t+5}, v{m4}, 4, v{t+5}\nv_add_u32 v{VO3}, s3, v{t+5}\nv_lshl_add_u32 v{VO1}, v{h}, 8, v{VO3}")
        A(f"v_mul_u32_u24 v{VH}, {54*1024}, v{t+4}\nv_lshl_add_u32 v{VH}, v{m4}, 4, v{VH}\nv_lshl_add_u32 v{VH}, v{h}, 8, v{VH}")
        A(f"s_lshl_b32 s3, s{KH}, 4\nv_add_u32 v{t+4}, s3, v{m4}\nv_lshlrev_b32 v{VSX}, 3, v{t+4}\nv_and_b32 v{t+5}, 1, v{g}\nv_lshl_add_u32 v{t+4}, v{t+5}, 5, v{t+4}")
        A(f"v_lshlrev_b32 v{VX}, 4, v{t+4}\nv_lshl_add_u32 v{VX}, v{h}, 10, v{VX}")
        A(f"s_mul_i32 s3, s{WV}, 2560\ns_add_u32 s3, s3, {KREG}\nv_add_u32 v{VK}, s3, v{VL16}\ns_add_u32 s3, s3, 2048\nv_lshlrev_b32 v{VKS}, 3, v{VL}\nv_add_u32 v{VKS}, s3, v{VKS}")
        A(f"s_mul_i32 s3, s{WV}, 3328\ns_add_u32 s3, s3, {VREG - 32}")
        A(f"v_mul_u32_u24 v{VV}, 416, v{h}\nv_and_b32 v{t+4}, 1, v{g}\nv_lshl_add_u32 v{VV}, v{t+4}, 7, v{VV}\nv_and_b32 v{t+4}, 3, v{VL}\nv_lshl_add_u32 v{VV}, v{t+4}, 5, v{VV}")
        A(f"v_bfe_u32 v{t+4}, v{VL}, 2, 2\nv_lshl_add_u32 v{VV}, v{t+4}, 3, v{VV}\nv_add_u32 v{VV}, s3, v{VV}")
        A(f"s_add_u32 s3, s3, {8*3328 + 32}\nv_lshrrev_b32 v{t+4}, 2, v{m5}\nv_mul_u32_u24 v{t+4}, 416, v{t+4}\nv_and_b32 v{t+5}, 3, v{VL}\nv_lshl_add_u32 v{t+4}, v{t+5}, 3, v{t+4}\nv_add_u32 v{t+4}, s3, v{t+4}")
        A(f"v_lshl_add_u32 v{VW2}, v{h}, 6, v{t+4}\nv_lshl_add_u32 v{VW1}, v{h}, 5, v{t+4}\nv_mul_u32_u24 v{t+5}, 384, v{h}\nv_add_u32 v{VW12}, v{t+5}, v{t+4}")
        A(f"s_mul_i32 s3, s{WV}, 5120\nv_add_u32 v{VXW}, s3, v{VL16}\ns_xor_b32 s3, s{WV}, 1\ns_mul_i32 s3, s3, 5120\nv_add_u32 v{VXR}, s3, v{VL16}")
        A(f"v_lshlrev_b32 v{t+4}, 2, v{h}\nv_sub_u32 v{t+4}, v{m5}, v{t+4}")
        for r in range(16):
            A(f"v_cmp_le_i32 s[{MASK+2*r}:{MASK+2*r+1}], {8*(r>>2) + (r&3)}, v{t+4}")
        A(f"v_mov_b32 v{t+5}, 0xffff\nv_mov_b32 v{t+6}, 0xffff0000")
        for rr in range(8):
            A(f"v_cndmask_b32 v{PM+rr}, 0, v{t+5}, s[{MASK+4*rr}:{MASK+4*rr+1}]\nv_cndmask_b32 v{t+7}, 0, v{t+6}, s[{MASK+4*rr+2}:{MASK+4*rr+3}]\nv_or_b32 v{PM+rr}, v{PM+rr}, v{t+7}")

    def stats_load(self, off, dst):
        A = self.A
        A(f"s_add_u32 s{T[3]}, s{SL}, s{S_ST1}\ns_add_u32 s{T[3]}, s{T[3]}, {off}")
        for i in range(4):
            A.vmem(f"buffer_load_dwordx2 {v(dst+2*i,2)}, v{VST}, {WS}, s{T[3]} offen offset:{512*i} {self.ld}", 'st')

    def stats_finish(self, d, mu, rs):
        return [f"v_add_f32 v{d}, v{d}, v{d+2}", f"v_add_f32 v{d+1}, v{d+1}, v{d+3}", f"v_add_f32 v{d+4}, v{d+4}, v{d+6}", f"v_add_f32 v{d+5}, v{d+5}, v{d+7}",
                f"v_add_f32 v{d}, v{d}, v{d+4}", f"v_add_f32 v{d+1}, v{d+1}, v{d+5}", f"v_mov_b32 v{d+2}, v{d}", f"v_mov_b32 v{d+3}, v{d+1}",
                f"v_permlane32_swap_b32 v{d}, v{d+2}", f"v_permlane32_swap_b32 v{d+1}, v{d+3}",
                f"v_add_f32 v{d}, v{d}, v{d+2}", f"v_add_f32 v{d+1}, v{d+1}, v{d+3}",
                f"v_mul_f32 v{mu}, {fhex(-1.0/640)}, v{d}", f"v_mul_f32 v{d+1}, {fhex(1.0/640)}, v{d+1}",
                f"v_fma_f32 v{d+1}, -v{mu}, v{mu}, v{d+1}", f"v_max_f32 v{d+1}, 0, v{d+1}", f"v_add_f32 v{d+1}, 0x3727c5ac, v{d+1}",
                f"v_rsq_f32 v{rs}, v{d+1}"]

    def a_load(self, st_, sreg, dst, tag):
        self.A.vmem(f"buffer_load_dwordx4 {a(dst,4)}, v{VL16}, {WS}, s{sreg} offen offset:{(st_ & 3)*1024} {self.ld}", tag)

    def p1(self, first):
        A = self.A
        ACC, WF, STD, MU, RS = 64, 128, 144, 152, 153
        bases = [VL16, VB1, VB2]
        SA, SW = T[4], T[5]
        def wdma(g, fill=None):
            L = [f"s_add_u32 s{T[6]}, s{WV}, {4*g}", f"s_lshl_b32 s{SW}, s{T[6]}, 12", f"s_add_u32 s{SW}, s{SW}, s{S_W1}"]
            if g < 7 or g == 9:
                L += [f"s_lshl_b32 m0, s{WV}, 12", f"s_add_u32 m0, m0, {lds1(4*g)}"]
            else:
                L += [f"s_add_u32 s{T[6]}, s{T[6]}, 5", f"s_cmp_ge_u32 s{T[6]}, 36", f"s_cselect_b32 s{T[7]}, 36, 0", f"s_sub_u32 s{T[6]}, s{T[6]}, s{T[7]}", f"s_lshl_b32 m0, s{T[6]}, 12"]
            L += [('vm', f"buffer_load_dwordx4 v{VL16}, {WS}, s{SW} offen offset:{1024*i} lds", ('w', g)) for i in range(4)]
            return L
        def emit(x):
            if isinstance(x, tuple): A.vmem(x[1], x[2])
            else: A(x)
        A(f"s_add_u32 s{SA}, s{SL}, s{S_A1}")
        if not first: self.stats_load(STA, STD)
        for g in range(10):
            if first and g < 9:
                for x in wdma(g): emit(x)
            for st_ in range(4*g, 4*g+4): self.a_load(st_, SA, 4*st_, ('a', st_))
            if g < 9: A(f"s_add_u32 s{SA}, s{SA}, 4096")
        if first: self.setup2()
        A.wait_vm(('a', 0)); A("s_barrier")
        self.stamp(1)
        for t in range(4): A.lds(f"ds_read_b128 {v(WF+4*t,4)}, {self.ldsaddr(lds1(0) + 1024*t, bases)}", ('f', 0, t))
        fill = []
        for st_ in range(40):
            if st_ % 4 == 3 and st_ < 39:
                g = st_ // 4 + 1
                if first or g == 9 or st_ == 7:
                    A.wait_vm(('w', g)); A("s_barrier")
                if st_ == 7: fill += wdma(9)
            if st_ == 12 and not first:
                A.wait_vm('st'); fill += self.stats_finish(STD, MU, RS)
            A.wait_vm(('a', st_))
            for t in range(4):
                A.wait_lg(('f', st_, t))
                A(f"v_mfma_f32_32x32x16_bf16 {v(ACC+16*t,16)}, {v(WF+4*t,4)}, {a(4*st_,4)}, {'0' if st_ == 0 else v(ACC+16*t,16)}")
                if st_ < 39: A.lds(f"ds_read_b128 {v(WF+4*t,4)}, {self.ldsaddr(lds1(st_+1) + 1024*t, bases)}", ('f', st_+1, t))
                for _ in range(2):
                    if fill: emit(fill.pop(0))
        self.stamp(2)
        CSR, PK, RQ = 160, 176, 154
        self.QA1, self.QB1, self.QA2, self.QB2 = 224, 228, 232, 236
        if first: A(f"v_mov_b32 v{RQ}, {fhex(QSCALE)}")
        else: A(f"v_mul_f32 v{RQ}, {fhex(QSCALE)}, v{RS}")
        def quad(t, j, dst, isq):
            r = ACC + 16*t + 4*j
            if not first:
                A.wait_lg(('cs', t, j))
                for i in range(4): A(f"v_fma_f32 v{r+i}, v{MU}, v{CSR+4*j+i}, v{r+i}")
            if isq or not first:
                for i in range(4): A(f"v_mul_f32 v{r+i}, v{RQ if isq else RS}, v{r+i}")
            A(f"v_cvt_pk_bf16_f32 v{dst}, v{r}, v{r+1}\nv_cvt_pk_bf16_f32 v{dst+1}, v{r+2}, v{r+3}")
        def csload(t):
            if not first:
                for j in range(4): A.lds(f"ds_read_b128 {v(CSR+4*j,4)}, v{VCS} offset:{128*t + 16*j}", ('cs', t, j))
        KA, KB, KS, VT = PK, PK+4, PK+8, PK+12
        A(f"s_add_u32 s{T[4]}, s{SL}, s{S_KVO}\ns_mul_i32 s{T[5]}, s{WV}, 2560\ns_add_u32 s{T[5]}, s{T[5]}, s{T[4]}\ns_mul_i32 s{T[6]}, s{WV}, 3328\ns_add_u32 s{T[6]}, s{T[6]}, s{T[4]}\ns_add_u32 s{T[6]}, s{T[6]}, 10240")
        csload(0)
        quad(0, 0, KA, 0); quad(0, 1, KA+2, 0)
        A.lds(f"ds_write_b128 v{VK}, {v(KA,4)} offset:{8*2560}")
        A.vmem(f"buffer_store_dwordx4 {v(KA,4)}, v{VL16}, {WS}, s{T[5]} offen {self.st}")
        quad(0, 2, KS, 0); quad(0, 3, KB, 0)
        csload(1)
        A.lds(f"ds_write_b64 v{VKS}, {v(KS,2)} offset:{8*2560}")
        A(f"v_lshlrev_b32 v{PK+10}, 3, v{VL}")
        A.vmem(f"buffer_store_dwordx2 {v(KS,2)}, v{PK+10}, {WS}, s{T[5]} offen offset:2048 {self.st}")
        quad(1, 0, KB+2, 0)
        A.lds(f"ds_write_b128 v{VK}, {v(KB,4)} offset:{8*2560+1024}")
        A.vmem(f"buffer_store_dwordx4 {v(KB,4)}, v{VL16}, {WS}, s{T[5]} offen offset:1024 {self.st}")
        A(f"v_mov_b32 v{VT+10}, 0x3f803f80\nv_mov_b32 v{VT+11}, 0x3f803f80")
        A.lds(f"ds_write_b64 v{VW1}, {v(VT+10,2)} offset:{5*32}")
        for n, (t, j, ad, pos) in enumerate(((1, 1, VW2, 1), (1, 2, VW2, 2), (1, 3, VW12, 0), (2, 0, VW2, 7), (2, 1, VW2, 8))):
            if n == 3: csload(2)
            quad(t, j, VT+2*n, 0)
            A.lds(f"ds_write_b64 v{ad}, {v(VT+2*n,2)} offset:{pos*32}", 'vw')
        A(f"s_mul_i32 s{T[7]}, s{WV}, 3328\ns_add_u32 s{T[7]}, s{T[7]}, {VREG + 8*3328}\nv_add_u32 v{PK+10}, s{T[7]}, v{VL16}")
        A.wait_lg('vw')
        VC = 192
        for n in range(4): A.lds(f"ds_read_b128 {v(VC+4*n,4)}, v{PK+10} offset:{1024*n}", ('vc', n))
        quad(2, 2, self.QA1, 1); quad(2, 3, self.QA1+2, 1)
        for n in range(4):
            A.wait_lg(('vc', n))
            if n == 3: A("s_mov_b64 exec, 0xffff")
            A.vmem(f"buffer_store_dwordx4 {v(VC+4*n,4)}, v{VL16}, {WS}, s{T[6]} offen offset:{1024*n} {self.st}")
        A("s_mov_b64 exec, -1")
        csload(3)
        quad(3, 0, self.QA2, 1); quad(3, 1, self.QB1, 1); quad(3, 2, self.QB1+2, 1)
        A(f"v_mov_b32 v{self.QB2}, v{self.QA2}\nv_mov_b32 v{self.QB2+1}, v{self.QA2+1}")
        for q in (self.QA2, self.QB2): A(f"v_mov_b32 v{q+2}, 0\nv_mov_b32 v{q+3}, 0")
        A(f"s_mov_b32 exec_lo, 0\nv_mov_b32 v{self.QA2}, 0\nv_mov_b32 v{self.QA2+1}, 0\ns_mov_b32 exec_lo, -1\ns_mov_b32 exec_hi, 0\nv_mov_b32 v{self.QB2}, 0\nv_mov_b32 v{self.QB2+1}, 0\ns_mov_b32 exec_hi, -1")

    def kv_sync(self):
        A = self.A; N = A.newlab("nw0"); E = A.newlab("syn"); t = VFREE
        A.wait_all(); A("s_barrier")
        self.stamp(3)
        A(f"s_add_u32 s{T[3]}, s{LAY}, 1\ns_cmp_lg_u32 s{WV}, 0\ns_cbranch_scc1 {N}")
        A(f"s_mov_b64 exec, 7\nv_sub_u32 v{t+2}, s{MB}, v{VL}\nv_cmp_gt_i32 vcc, 0, v{t+2}\nv_mov_b32 v{t+3}, s{MB}\nv_cndmask_b32 v{t+2}, v{t+2}, v{t+3}, vcc")
        A(f"v_lshlrev_b32 v{t+2}, 4, v{t+2}\nv_add_u32 v{t+2}, s{J}, v{t+2}\nv_lshlrev_b32 v{t+2}, 7, v{t+2}\nv_add_u32 v{t+2}, {KVF}, v{t+2}\nv_mov_b32 v{t}, s{T[3]}")
        A(f"s_mov_b64 exec, 1\nbuffer_store_dword v{t}, v{t+2}, {WS}, 0 offen sc1\ns_mov_b64 exec, 7")
        self.spin(f"buffer_load_dword v{t}, v{t+2}, {WS}, 0 offen sc1", f"v_cmp_gt_u32 vcc, s{T[3]}, v{t}\ns_cbranch_vccz", 0x100)
        A(f"s_mov_b64 exec, -1\ns_branch {E}")
        A.lab(N)
        self.segment(S_W3, 0, lds3(0), 30); self.segment(S_W3, 30720, lds3(3), 10)
        A.lab(E)
        A("s_barrier")
        for src in range(2):
            back = 2 - src
            A(f"s_add_u32 s{T[4]}, s{SL}, s{S_KVO}\ns_sub_u32 s{T[4]}, s{T[4]}, {back*16*KV_WG}\ns_cmp_lt_u32 s{MB}, {back}\ns_cmov_b32 s{T[4]}, {OOB}")
            for n in range(6):
                A(f"s_add_u32 s{T[5]}, s{WV}, {4*n}")
                if n == 5: A(f"s_min_u32 s{T[5]}, s{T[5]}, 22")
                A(f"s_lshl_b32 s{T[5]}, s{T[5]}, 10\ns_add_u32 s{T[6]}, s{T[5]}, s{T[4]}")
                ko = KREG + src*10240; vo = VREG + src*13312 - 10240
                if n < 2: A(f"s_add_u32 m0, s{T[5]}, {ko}")
                elif n > 2: A(f"s_add_u32 m0, s{T[5]}, {vo}")
                else:
                    A(f"s_cmp_lt_u32 s{WV}, 2"); sel(A, T[7], ko, vo); A(f"s_add_u32 m0, s{T[5]}, s{T[7]}")
                A.vmem(f"buffer_load_dwordx4 v{VL16}, {WS}, s{T[6]} offen {self.ld} lds", 'halo')
        self.layer0_extras()
        A.wait_all(); A("s_barrier")
        self.stamp(4)

    def layer0_extras(self):
        A = self.A; L = A.newlab("x0"); t = VFREE
        A(f"s_cmp_lg_u32 s{LAY}, 0\ns_cbranch_scc1 {L}")
        A(f"s_lshl_b32 s{T[4]}, s{S_A3}, 4\ns_mul_i32 s{T[4]}, s{T[4]}, 1280\ns_mul_i32 s{T[5]}, s{CT}, 160\ns_add_u32 s{T[4]}, s{T[4]}, s{T[5]}")
        A(f"v_and_b32 v{t}, 15, v{VL}\nv_mul_u32_u24 v{t}, 1280, v{t}\nv_lshrrev_b32 v{t+1}, 4, v{VL}\nv_lshl_add_u32 v{t}, v{t+1}, 3, v{t}")
        for k in range(5): A(f"buffer_load_dwordx2 {v(RES+2*k,2)}, v{t}, {XS}, s{T[4]} offen offset:{32*k}")
        A(f"s_lshl_b32 s{T[4]}, s{WV}, 6\nv_add_u32 v{t}, s{T[4]}, v{VL}\nv_lshrrev_b32 v{t+1}, 5, v{t}\nv_and_b32 v{t+2}, 31, v{t}\nv_lshlrev_b32 v{t+2}, 2, v{t+2}\nv_lshl_add_u32 v{t+1}, v{t+1}, 10, v{t+2}")
        A(f"s_lshl_b32 s{T[4]}, s{J}, 12\ns_add_u32 s{T[4]}, s{T[4]}, {CSP1}\ns_mul_i32 s{T[5]}, s{J}, 7168\ns_add_u32 s{T[5]}, s{T[5]}, {CSP4}")
        for k in range(8):
            A(f"buffer_load_dword v{t+4+k}, v{t+1}, {WS}, s{T[4]} offen offset:{128*k}\nbuffer_load_dword v{t+12+k}, v{t+1}, {WS}, s{T[5]} offen offset:{128*k}")
        A(f"v_lshlrev_b32 v{t+2}, 2, v{t}\nv_add_u32 v{t+2}, {LDS_MISC}, v{t+2}\ns_waitcnt vmcnt(0)")
        for k in range(1, 8): A(f"v_add_f32 v{t+4}, v{t+4}, v{t+4+k}\nv_add_f32 v{t+12}, v{t+12}, v{t+12+k}")
        A(f"v_cmp_gt_u32 vcc, 224, v{t}\ns_and_saveexec_b64 s[36:37], vcc\nds_write_b32 v{t+2}, v{t+12} offset:512\ns_mov_b64 exec, s[36:37]")
        A(f"s_cmp_ge_u32 s{WV}, 2\ns_cbranch_scc1 {L}\nds_write_b32 v{t+2}, v{t+4}")
        A.lab(L)

    def p2(self):
        A = self.A
        SB = [48, 64, 80]; PB = [96, 104]; PD = 112; OA = [128, 144]; KF = [162, 174]; VF = [184, 192, 200]; CB = [208, 240]
        Q1 = [self.QA1, self.QB1]; Q2 = [self.QA2, self.QB2]
        cz = self.o.get("czero", True)
        blocks = [(i, hd) for i in range(1, 8) for hd in range(2)] + [('m', 0), ('m', 1)]
        N = len(blocks)
        def kread(i, buf):
            k = KF[buf]
            return [('lg', f"ds_read_b64 {v(k,2)}, v{VKS} offset:{i*2560}", ('k', i)), ('lg', f"ds_read_b128 {v(k+2,4)}, v{VK} offset:{i*2560}", ('k', i)),
                    ('lg', f"ds_read_b128 {v(k+6,4)}, v{VK} offset:{i*2560+1024}", ('k', i))]
        def vread(i, hd, buf):
            return [('lg', f"ds_read_b64_tr_b16 {v(VF[buf]+4*aa+2*p,2)}, v{VV} offset:{i*3328 + (4*aa+2*p)*416 + 192*hd}", ('v', i, hd)) for aa in range(2) for p in range(2)]
        kbuf = {i: i % 2 for i in range(1, 8)}; kbuf[0] = 0; kbuf[8] = 1
        def smf(i, hd, sb):
            k = KF[kbuf[i]]; c = '0' if cz else v(CB[hd], 16)
            return [('mf', f"v_mfma_f32_32x32x16_bf16 {v(sb,16)}, {v(k+2+4*hd,4)}, {v(Q1[hd],4)}, {c}", ('k', i)),
                    ('mf', f"v_mfma_f32_32x32x16_bf16 {v(sb,16)}, {v(k,4)}, {v(Q2[hd],4)}, {v(sb,16)}", None)]
        started = [False, False]
        def pvf(i, hd, pb, vb):
            L = []
            for aa in range(2):
                c = v(OA[hd], 16) if started[hd] else '0'; started[hd] = True
                L.append(('mf', f"v_mfma_f32_32x32x16_bf16 {v(OA[hd],16)}, {v(VF[vb]+4*aa,4)}, {v(pb+4*aa,4)}, {c}", ('v', i, hd) if aa == 0 else None))
            return L
        def emit(x):
            if isinstance(x, str): A(x)
            elif x[0] == 'lg': A.lds(x[1], x[2])
            else:
                if x[2] is not None: A.wait_lg(x[2])
                A(x[1])
        def weave(mfs, fill):
            cost = lambda x: 8 if isinstance(x, str) and x.startswith("v_exp") else 4
            tot = sum(map(cost, fill)); acc = 0; k = 0
            for x in fill:
                while k < len(mfs) and acc >= tot * k / len(mfs): emit(mfs[k]); k += 1
                emit(x); acc += cost(x)
            while k < len(mfs): emit(mfs[k]); k += 1
        sbuf = lambda n: SB[n % 2]
        for x in kread(1, kbuf[1]): emit(x)
        for x in smf(1, 0, sbuf(0)): emit(x)
        for n in range(N + 1):
            mfs = []; fill = []
            if n + 1 < N:
                i, hd = blocks[n+1]
                if i == 'm': mfs += smf(0, hd, sbuf(n+1)) + smf(8, hd, SB[2])
                else: mfs += smf(i, hd, sbuf(n+1))
            pv = []
            if n >= 1:
                i, hd = blocks[n-1]
                if i == 'm': pv = pvf(0, hd, PB[(n-1) % 2], (n-1) % 2) + pvf(8, hd, PD, 2)
                else: pv = pvf(i, hd, PB[(n-1) % 2], (n-1) % 2)
            if n < N:
                i, hd = blocks[n]
                if i != 'm' and hd == 0:
                    if i < 7: fill += kread(i+1, kbuf[i+1])
                    else: fill += kread(0, kbuf[0])
                sb = sbuf(n)
                if i == 'm':
                    pre = [f"v_cndmask_b32 v{sb+r}, v{sb+r}, v{SB[2]+r}, s[{MASK+2*r}:{MASK+2*r+1}]" for r in range(16)]
                    for x in pre: emit(x)
                    for x in pv: emit(x)
                    pv = []
                    fill += vread(0, hd, n % 2) + vread(8, hd, 2)
                else:
                    fill += vread(i, hd, n % 2)
                ex = []
                for r in range(16):
                    ex.append(f"v_exp_f32 v{sb+r}, v{sb+r}")
                    if r >= 3 and r % 2 == 1: ex.append(f"v_cvt_pk_bf16_f32 v{PB[n%2]+(r-3)//2}, v{sb+r-3}, v{sb+r-2}")
                ex.append(f"v_cvt_pk_bf16_f32 v{PB[n%2]+7}, v{sb+14}, v{sb+15}")
                if i == 'm':
                    for rr in range(8):
                        ex.append(f"v_and_b32 v{PD+rr}, v{PM+rr}, v{PB[n%2]+rr}")
                        ex.append(f"v_bfi_b32 v{PB[n%2]+rr}, v{PM+rr}, 0, v{PB[n%2]+rr}")
                fill += ex
                if blocks[n] == (7, 1):
                    for x in mfs[:2]: emit(x)
                    for x in kread(8, kbuf[8]): emit(x)
                    mfs = pv + mfs[2:]; pv = []
            weave(mfs + pv, fill) if fill else [emit(x) for x in mfs + pv]
        self.stamp(5)
        ra, rb = 48, 49
        A(f"v_rcp_f32 v{ra}, v{OA[0]+12}\nv_rcp_f32 v{rb}, v{OA[1]}")
        A(f"s_nop 0")
        def pk(dst, r, rs):
            for i in range(4): A(f"v_mul_f32 v{r+i}, v{rs}, v{r+i}")
            A(f"v_cvt_pk_bf16_f32 v{dst}, v{r}, v{r+1}\nv_cvt_pk_bf16_f32 v{dst+1}, v{r+2}, v{r+3}")
        pk(52, OA[0]+4, ra); pk(54, OA[0]+8, ra)
        A.vmem(f"buffer_store_dwordx4 {v(52,4)}, v{VO1}, {WS}, s{SL} offen {self.st}")
        pk(56, OA[1]+4, rb); pk(58, OA[1]+8, rb)
        A.vmem(f"buffer_store_dwordx4 {v(56,4)}, v{VO1}, {WS}, s{SL} offen offset:768 {self.st}")
        pk(60, OA[0], ra); pk(62, OA[1]+12, rb)
        A("s_mov_b32 exec_lo, 0")
        A.vmem(f"buffer_store_dwordx4 {v(60,4)}, v{VO3}, {WS}, s{SL} offen offset:512 {self.st}")
        A("s_mov_b32 exec_lo, -1")

    def proj(self, which):
        A = self.A
        nb = 10 if which == 3 else 27
        ACC, WF, B0 = 64, 112, 136
        SA0, SA1, SW = T[4], T[5], T[6]
        src = OO if which == 3 else HH
        for sa, m in ((SA0, S_A3), (SA1, S_A3B)):
            A(f"s_mul_i32 s{sa}, s{m}, {2*nb*1024}\ns_add_u32 s{sa}, s{sa}, s{SL}\ns_mul_i32 s{T[7]}, s{KH}, {nb*1024}\ns_add_u32 s{sa}, s{sa}, s{T[7]}\ns_add_u32 s{sa}, s{sa}, {src}")
        def aload(b):
            L = []
            if b and b % 4 == 0: L += [f"s_add_u32 s{SA0}, s{SA0}, 4096", f"s_add_u32 s{SA1}, s{SA1}, 4096"]
            for u, sa in enumerate((SA0, SA1)):
                L.append(('vm', f"buffer_load_dwordx4 {a(8*b+4*u,4)}, v{VL16}, {WS}, s{sa} offen offset:{(b&3)*1024} {self.ld}", ('a', b)))
            return L
        def emit(x):
            if isinstance(x, tuple): A.vmem(x[1], x[2])
            else: A(x)
        LA = nb if which == 3 else self.o.get("la5", 12)
        for b in range(LA):
            for x in aload(b): emit(x)
        khoff = 5120 if which == 3 else 10240
        A(f"s_mul_i32 s{T[7]}, s{KH}, {khoff}")
        for k in range(3): A(f"v_add_u32 v{B0+k}, s{T[7]}, v{[VL16, VB1, VB2][k]}")
        bases = [B0, B0+1, B0+2]
        for k in range(10):
            A(f"v_lshlrev_b32 v{ACC+2*k}, 16, v{RES+k}\nv_and_b32 v{ACC+2*k+1}, 0xffff0000, v{RES+k}")
        wl = (lambda b: lds3(b)) if which == 3 else (lambda b: ((b >> 1) % 7) * 20480 + (b & 1) * 5120)
        def wdma(c):
            L = [f"s_mul_i32 s{T[7]}, s{WV}, 5120"]
            L = [f"s_lshl_b32 s{T[7]}, s{KH}, 1", f"s_add_u32 s{T[7]}, s{T[7]}, s{RR}", f"s_mul_i32 s{T[7]}, s{T[7]}, 5120",
                 f"s_add_u32 s{SW}, s{T[7]}, s{S_W5}", f"s_add_u32 s{SW}, s{SW}, {c*20480}", f"s_add_u32 m0, s{T[7]}, {(c % 7)*20480}"]
            L += [('vm', f"buffer_load_dwordx4 v{VL16}, {WS}, s{SW} offen offset:{1024*i} lds", ('w', c)) for i in range(4)]
            L += [f"s_add_u32 s{SW}, s{SW}, 4096", "s_add_u32 m0, m0, 4096", ('vm', f"buffer_load_dwordx4 v{VL16}, {WS}, s{SW} offen lds", ('w', c))]
            return L
        A.wait_vm(('a', 0)); A("s_barrier")
        self.stamp(7 if which == 3 else 13)
        for t in range(5): A.lds(f"ds_read_b128 {v(WF+4*t,4)}, {self.ldsaddr(wl(0) + 1024*t, bases)}", ('f', 0, t))
        fill = []
        for b in range(nb):
            if which == 5 and b % 2 == 1:
                c = b // 2
                if c + 1 >= 7 or 1 <= c <= 7:
                    while fill: emit(fill.pop(0))
                    A.wait_vm(('w', c + 1)); A("s_barrier")
                if 1 <= c <= 7: fill += wdma(c + 6)
            if b + LA < nb: fill += aload(b + LA)
            A.wait_vm(('a', b))
            for t in range(5):
                A.wait_lg(('f', b, t))
                for u in range(2):
                    d = ACC + 20*u + 4*t
                    A(f"v_mfma_f32_16x16x32_bf16 {v(d,4)}, {v(WF+4*t,4)}, {a(8*b+4*u,4)}, {'0' if (b == 0 and u == 1) else v(d,4)}")
                    if u == 0:
                        for _ in range(2):
                            if fill: emit(fill.pop(0))
                if b < nb - 1: A.lds(f"ds_read_b128 {v(WF+4*t,4)}, {self.ldsaddr(wl(b+1) + 1024*t, bases)}", ('f', b+1, t))
        assert not fill
        self.stamp(8 if which == 3 else 14)
        xo = XCH3 if which == 3 else XCH5
        A(f"v_add_u32 v{B0}, {xo}, v{VXW}\nv_add_u32 v{B0+1}, {xo}, v{VXR}")
        for t in range(5): A.lds(f"ds_write_b128 v{B0}, {v(ACC+20+4*t,4)} offset:{1024*t}")
        A.wait_lg0(); A("s_barrier")
        for t in range(5): A.lds(f"ds_read_b128 {v(ACC+20+4*t,4)}, v{B0+1} offset:{1024*t}", ('x', t))
        for t in range(5):
            A.wait_lg(('x', t))
            for i in range(4): A(f"v_add_f32 v{ACC+4*t+i}, v{ACC+4*t+i}, v{ACC+20+4*t+i}")
            A(f"v_cvt_pk_bf16_f32 v{RES+2*t}, v{ACC+4*t}, v{ACC+4*t+1}\nv_cvt_pk_bf16_f32 v{RES+2*t+1}, v{ACC+4*t+2}, v{ACC+4*t+3}")
        FIN = A.newlab("fin")
        if which == 5:
            A(f"s_cmp_lg_u32 s{LAY}, 0\ns_cbranch_scc1 main_final")
        xoff = X1 if which == 3 else LS + XA
        soff = ST3 if which == 3 else LS + STA
        A(f"s_add_u32 s{T[4]}, s{SL}, s{S_X}\ns_add_u32 s{T[4]}, s{T[4]}, {xoff}\ns_add_u32 s{T[5]}, s{T[4]}, 4096\ns_add_u32 s{T[6]}, s{SL}, s{S_STX}\ns_add_u32 s{T[6]}, s{T[6]}, {soff}")
        A.vmem(f"buffer_store_dwordx4 {v(RES,4)}, v{VX}, {WS}, s{T[4]} offen {self.st}")
        A.vmem(f"buffer_store_dwordx4 {v(RES+4,4)}, v{VX}, {WS}, s{T[4]} offen offset:2048 {self.st}")
        t4 = WF
        A(f"v_mov_b32 v{t4}, v{RES+8}\nv_mov_b32 v{t4+1}, v{RES+9}\nv_mov_b32 v{t4+2}, v{RES+8}\nv_mov_b32 v{t4+3}, v{RES+9}")
        A(f"v_mov_b32 v{t4+4}, v{RES+8}\nv_mov_b32 v{t4+5}, v{RES+9}")
        A(f"v_permlane32_swap_b32 v{t4+4}, v{t4+2}\nv_permlane32_swap_b32 v{t4+5}, v{t4+3}")
        A("s_mov_b32 exec_hi, 0")
        A.vmem(f"buffer_store_dwordx4 {v(t4,4)}, v{VX}, {WS}, s{T[5]} offen {self.st}")
        A("s_mov_b32 exec_hi, -1")
        s0, s1 = WF + 8, WF + 9
        A(f"v_add_f32 v{s0}, v{ACC}, v{ACC+1}\nv_mul_f32 v{s1}, v{ACC}, v{ACC}\nv_fmac_f32 v{s1}, v{ACC+1}, v{ACC+1}")
        for i in range(2, 20): A(f"v_add_f32 v{s0}, v{s0}, v{ACC+i}\nv_fmac_f32 v{s1}, v{ACC+i}, v{ACC+i}")
        for sw in ("v_permlane16_swap_b32", "v_permlane32_swap_b32"):
            A(f"v_mov_b32 v{s0+2}, v{s0}\nv_mov_b32 v{s0+3}, v{s1}\n{sw} v{s0}, v{s0+2}\n{sw} v{s1}, v{s0+3}\nv_add_f32 v{s0}, v{s0}, v{s0+2}\nv_add_f32 v{s1}, v{s1}, v{s0+3}")
        A("s_mov_b64 exec, 0xffff")
        A.vmem(f"buffer_store_dwordx2 {v(s0,2)}, v{VSX}, {WS}, s{T[6]} offen {self.st}")
        A("s_mov_b64 exec, -1")

    def final(self):
        A = self.A; t = VFREE
        A.lab("main_final")
        A(f"s_lshl_b32 s{T[4]}, s{S_A3}, 4\ns_mul_i32 s{T[4]}, s{T[4]}, 1280\ns_mul_i32 s{T[5]}, s{CT}, 160\ns_add_u32 s{T[4]}, s{T[4]}, s{T[5]}")
        A(f"v_and_b32 v{t}, 15, v{VL}\nv_mul_u32_u24 v{t}, 1280, v{t}\nv_lshrrev_b32 v{t+1}, 4, v{VL}\nv_lshl_add_u32 v{t}, v{t+1}, 3, v{t}")
        for k in range(5): A(f"buffer_store_dwordx2 {v(RES+2*k,2)}, v{t}, {OS}, s{T[4]} offen offset:{32*k}")

    def p4(self):
        A = self.A
        ACC, WF, STD, MU, RS = 64, 176, 204, 212, 213
        bases = [VL16, VB1, VB2]
        SA, SW = T[4], T[5]
        A(f"s_add_u32 s{SA}, s{SL}, s{S_A1}\ns_add_u32 s{SA}, s{SA}, {X1}")
        self.stats_load(ST3, STD)
        for st_ in range(40):
            if st_ and st_ % 4 == 0: A(f"s_add_u32 s{SA}, s{SA}, 4096")
            self.a_load(st_, SA, 4*st_, ('a', st_))
        def emit(x):
            if isinstance(x, tuple): A.vmem(x[1], x[2])
            else: A(x)
        def wdma(c):
            L = [f"s_mul_i32 s{T[7]}, s{WV}, 7168", f"s_add_u32 s{SW}, s{T[7]}, s{S_W4}", f"s_add_u32 s{SW}, s{SW}, {c*28672}", f"s_add_u32 m0, s{T[7]}, {(c % 5)*28672}"]
            L += [('vm', f"buffer_load_dwordx4 v{VL16}, {WS}, s{SW} offen offset:{1024*i} lds", ('w', c)) for i in range(4)]
            L += [f"s_add_u32 s{SW}, s{SW}, 4096", "s_add_u32 m0, m0, 4096"]
            L += [('vm', f"buffer_load_dwordx4 v{VL16}, {WS}, s{SW} offen offset:{1024*i} lds", ('w', c)) for i in range(3)]
            return L
        wl = lambda st_: ((st_ >> 2) % 5) * 28672 + (st_ & 3) * 7168
        A.wait_vm(('a', 0)); A("s_barrier")
        self.stamp(10)
        for t in range(7): A.lds(f"ds_read_b128 {v(WF+4*t,4)}, {self.ldsaddr(wl(0) + 1024*t, bases)}", ('f', 0, t))
        fill = []
        for st_ in range(40):
            if st_ % 4 == 3 and st_ < 39:
                c = st_ // 4
                if c + 1 >= 5 or 1 <= c <= 5:
                    assert not fill
                    A.wait_vm(('w', c + 1)); A("s_barrier")
                if 1 <= c <= 5: fill += wdma(c + 4)
            if st_ == 1: fill += self.stats_finish(STD, MU, RS)
            A.wait_vm(('a', st_))
            for t in range(7):
                A.wait_lg(('f', st_, t))
                A(f"v_mfma_f32_32x32x16_bf16 {v(ACC+16*t,16)}, {v(WF+4*t,4)}, {a(4*st_,4)}, {'0' if st_ == 0 else v(ACC+16*t,16)}")
                if st_ < 39: A.lds(f"ds_read_b128 {v(WF+4*t,4)}, {self.ldsaddr(wl(st_+1) + 1024*t, bases)}", ('f', st_+1, t))
                for _ in range(2):
                    if fill: emit(fill.pop(0))
        self.stamp(11)
        CSR, PK = [216, 232], 176
        A(f"v_mul_f32 v{RS}, v{RS}, v{RS}")
        A(f"s_add_u32 s{T[4]}, s{SL}, s{S_H}\ns_add_u32 s{T[4]}, s{T[4]}, {HH}\ns_mov_b32 s{T[5]}, s{T[4]}\ns_cmp_eq_u32 s{J}, 15\ns_cmov_b32 s{T[5]}, {OOB}")
        def csload(t):
            for j in range(4): A.lds(f"ds_read_b128 {v(CSR[t&1]+4*j,4)}, v{VCS} offset:{512 + 128*t + 16*j}", ('cs', t))
        csload(0)
        for t in range(7):
            if t < 6: csload(t + 1)
            A.wait_lg(('cs', t))
            r = ACC + 16*t; c = CSR[t & 1]
            for k in range(16): A(f"v_fma_f32 v{r+k}, v{MU}, v{c+k}, v{r+k}")
            for hf in range(2):
                g = r + 8*hf
                for i in range(4): A(f"v_max_f32 v{g+i}, 0, v{g+i}\nv_mul_f32 v{g+4+i}, v{RS}, v{g+4+i}")
                for i in range(4): A(f"v_mul_f32 v{g+i}, v{g+i}, v{g+4+i}")
                A(f"v_cvt_pk_bf16_f32 v{PK+4*t+2*hf}, v{g}, v{g+1}\nv_cvt_pk_bf16_f32 v{PK+4*t+2*hf+1}, v{g+2}, v{g+3}")
            A.vmem(f"buffer_store_dwordx4 {v(PK+4*t,4)}, v{VH}, {WS}, s{T[4] if t < 3 else T[5]} offen offset:{512*t} {self.st}")

    def gen(self):
        A = self.A
        def stop(name):
            if self.stop == name: A.wait_all(); A("s_branch main_done")
        self.setup()
        self.stamp(0)
        self.p1(True)
        A.lab("main_layer")
        self.kv_sync(); stop("p1")
        self.p2()
        self.cluster_sync(lambda: self.segment(S_W3, 40960, lds3(4), 60), 0x200); self.stamp(6); stop("p2")
        self.proj(3)
        self.cluster_sync(lambda: self.segment(S_W4, 0, 0, 140), 0x300); self.stamp(9); stop("p3")
        self.p4()
        self.cluster_sync(lambda: self.segment(S_W5, 0, 0, 140), 0x400); self.stamp(12); stop("p4")
        self.proj(5)
        def pre1():
            self.segment(S_W1, 0, lds1(0), 124); self.segment(S_W1, 124*1024, 0, 20)
        self.cluster_sync(pre1, 0x500); stop("p5")
        A(f"s_mov_b32 s{LAY}, 1\ns_add_u32 s{SL}, s{SL}, {LS}\ns_mov_b32 s{S_PB}, 16")
        self.stamp(0)
        self.p1(False)
        A("s_branch main_layer")
        self.final()
        A.lab("main_done")
        if self.prof:
            A.wait_all()
            self.stamp(15)
            A(f"s_cmp_lg_u32 s{WV}, 0\ns_cbranch_scc1 main_end\ns_lshl_b32 s3, s2, 8\ns_add_u32 s3, s3, {PROF}\nv_lshlrev_b32 v{VFREE}, 2, v{VL}")
            A(f"buffer_store_dword v{VPROF}, v{VFREE}, {WS}, s3 offen")
        A.lab("main_end")
        A("s_endpgm")

def gen_main(A, opts):
    Main(A, opts).gen()
```

```python
from asmlib import *
from layout import *

OOB = 0x7ff00000

def srd(A, d, lo, nbytes):
    A(f"s_mov_b32 s{d}, s{lo}\ns_mov_b32 s{d+1}, s{lo+1}\ns_mov_b32 s{d+2}, {nbytes}\ns_mov_b32 s{d+3}, 0x20000")

def sel(A, d, x, y):
    A(f"s_mov_b32 s{d}, {y}\ns_cmov_b32 s{d}, {x}")

def lane_fields(A, vl, vr, vc, vG):
    A(f"v_bfe_u32 v{vr}, v{vl}, 2, 2\nv_and_b32 v{vc}, 3, v{vl}\nv_lshrrev_b32 v{vG}, 4, v{vl}")

def frag32_steps(A, vaddr, vl16, sout_list, scs, WS, fr, acc, ones, stflag):
    for u in range(5):
        for p in range(2):
            A.lds(f"ds_read_b64_tr_b16 {v(fr+4*u+2*p,2)}, v{vaddr} offset:{4*cg32(u,0,p)*128}", ('f', u))
    for u in range(5):
        A.wait_lg(('f', u))
        sreg, imm = sout_list(u)
        A.vmem(f"buffer_store_dwordx4 {v(fr+4*u,4)}, v{vl16}, {WS}, {sreg} offen offset:{imm} {stflag}")
        A(f"v_mfma_f32_32x32x16_bf16 {v(acc,16)}, {v(fr+4*u,4)}, {v(ones,4)}, {'0' if u == 0 else v(acc,16)}")
    A(f"v_lshrrev_b32 v{fr+20}, 9, v{vl16}\nv_lshlrev_b32 v{fr+20}, 6, v{fr+20}")
    A("s_nop 7\ns_mov_b32 exec_lo, 1\ns_mov_b32 exec_hi, 1")
    for q in range(4):
        A.vmem(f"buffer_store_dwordx4 {v(acc+4*q,4)}, v{fr+20}, {WS}, {scs} offen offset:{16*q} {stflag}")
    A("s_mov_b64 exec, -1")

def gen_pack(A, stflag=""):
    WS = "s[4:7]"; SRC = "s[8:11]"
    A.lab("pack_kernel")
    A("s_cmp_ge_u32 s2, 876\ns_cbranch_scc1 pack_end")
    A("s_load_dwordx4 s[24:27], s[0:1], 0\ns_load_dwordx2 s[28:29], s[0:1], 16\ns_load_dwordx4 s[32:35], s[0:1], 32\n"
      "s_load_dwordx2 s[36:37], s[0:1], 48\ns_load_dwordx2 s[30:31], s[0:1], 72")
    A("v_and_b32 v1, 63, v0\nv_lshrrev_b32 v2, 6, v0\ns_nop 0\nv_readfirstlane_b32 s22, v2\nv_lshlrev_b32 v2, 4, v1")
    for i in range(4): A(f"v_mov_b32 v{8+i}, 0x3f803f80")
    lane_fields(A, 1, 3, 4, 5)
    A("s_waitcnt lgkmcnt(0)")
    srd(A, 4, 30, WS_USED)
    A("s_cmp_lt_u32 s2, 256\ns_cbranch_scc1 pack_u1\ns_cmp_lt_u32 s2, 512\ns_cbranch_scc1 pack_p0\n"
      "s_cmp_lt_u32 s2, 728\ns_cbranch_scc1 pack_u4\ns_branch pack_u35")

    A.lab("pack_u1")
    srd(A, 8, 26, 640 * 1920 * 2)
    A("s_and_b32 s40, s2, 15\ns_bfe_u32 s41, s2, 0x30004\ns_lshr_b32 s42, s2, 7")
    A("s_cmp_ge_u32 s2, 16\ns_cbranch_scc1 pack_u1_nz")
    A("v_mov_b32 v12, 0\nv_mov_b32 v13, 0\nv_mov_b32 v14, 0\nv_mov_b32 v15, 0\nv_lshlrev_b32 v16, 4, v0\ns_lshl_b32 s43, s2, 12")
    A(f"buffer_store_dwordx4 v[12:15], v16, {WS}, s43 offen {stflag}")
    A.lab("pack_u1_nz")
    A("v_and_b32 v12, 7, v1\nv_lshrrev_b32 v13, 3, v1")
    A("s_cmp_eq_u32 s42, 0\ns_cselect_b32 s43, 5, 2\ns_cselect_b32 s46, 8, 7")
    sel(A, 44, 1280, 2608); sel(A, 45, 2480, -32)
    A("v_mov_b32 v14, s44\nv_mov_b32 v15, s45\nv_cmp_gt_u32 vcc, s43, v12\nv_cndmask_b32 v14, v15, v14, vcc")
    A("v_lshl_add_u32 v14, v12, 4, v14\nv_mul_u32_u24 v15, 3840, v13\nv_add_u32 v14, v14, v15")
    A(f"v_mov_b32 v15, {OOB}\nv_cmp_gt_u32 vcc, s46, v12\nv_cndmask_b32 v14, v15, v14, vcc")
    A("s_mul_i32 s43, s41, 80*3840\ns_mul_i32 s44, s40, 80\ns_add_u32 s43, s43, s44")
    for n in range(3):
        A(f"s_add_u32 s44, s22, {4*n}\ns_min_u32 s44, s44, 9\ns_lshl_b32 m0, s44, 10\ns_mul_i32 s44, s44, 8*3840\ns_add_u32 s44, s44, s43")
        A.vmem(f"buffer_load_dwordx4 v14, {SRC}, s44 offen lds")
    A.wait_vm0(); A("s_barrier")
    A("s_cmp_ge_u32 s22, 2\ns_cbranch_scc1 pack_end")
    A("v_lshrrev_b32 v12, 1, v5\nv_lshl_add_u32 v12, v12, 2, v3\nv_lshlrev_b32 v12, 7, v12\nv_and_b32 v13, 1, v5\n"
      "v_lshl_add_u32 v13, v13, 2, v4\nv_lshl_add_u32 v12, v13, 3, v12\ns_lshl_b32 s44, s22, 6\nv_add_u32 v12, s44, v12")
    A(f"s_lshl_b32 s44, s42, 1\ns_add_u32 s44, s44, s22")
    A(f"s_mul_i32 s45, s40, {WP1_J}\ns_mul_i32 s46, s41, 5*4096\ns_add_u32 s45, s45, s46\ns_lshl_b32 s46, s44, 10\ns_add_u32 s45, s45, s46\ns_add_u32 s45, s45, {WP1}")
    for u in range(5): A(f"s_add_u32 s{50+u}, s45, {u*4096}")
    A(f"s_lshl_b32 s46, s40, 2\ns_add_u32 s46, s46, s44\ns_lshl_b32 s46, s46, 3\ns_add_u32 s46, s46, s41\ns_lshl_b32 s46, s46, 7\ns_add_u32 s46, s46, {CSP1}")
    frag32_steps(A, 12, 2, lambda u: (f"s{50+u}", 0), "s46", WS, 16, 40, 8, stflag)
    A("s_endpgm"); A.vm = []; A.lg = []

    A.lab("pack_u4")
    A("s_cmp_lt_u32 s22, 2\ns_cselect_b32 s8, s32, s34\ns_cselect_b32 s9, s33, s35")
    A(f"s_mov_b32 s10, {640*1728*2}\ns_mov_b32 s11, 0x20000")
    A("s_sub_u32 s40, s2, 512\ns_and_b32 s41, s40, 7\ns_lshr_b32 s40, s40, 3")
    A("v_and_b32 v12, 7, v1\nv_lshrrev_b32 v13, 3, v1\nv_mul_u32_u24 v14, 3456, v13\nv_lshl_add_u32 v14, v12, 4, v14")
    A("s_and_b32 s43, s22, 1\ns_mul_i32 s43, s43, 40\ns_mul_i32 s44, s41, 80\ns_add_u32 s43, s43, s44\ns_mul_i32 s43, s43, 3456\ns_lshl_b32 s44, s40, 7\ns_add_u32 s43, s43, s44")
    A("s_mul_i32 s44, s22, 5120")
    for n in range(5):
        A(f"s_add_u32 m0, s44, {n*1024}\ns_add_u32 s45, s43, {n*8*3456}")
        A.vmem(f"buffer_load_dwordx4 v14, {SRC}, s45 offen lds")
    A.wait_vm0(); A("s_barrier")
    A("v_lshrrev_b32 v12, 1, v5\nv_lshl_add_u32 v12, v12, 2, v3\nv_lshlrev_b32 v12, 7, v12")
    A("v_and_b32 v13, 1, v4\nv_lshl_add_u32 v12, v13, 4, v12\nv_and_b32 v13, 1, v5\nv_lshl_add_u32 v12, v13, 3, v12")
    A("v_lshrrev_b32 v13, 1, v4\nv_mul_u32_u24 v13, 10240, v13\nv_add_u32 v12, v12, v13\ns_lshl_b32 s44, s22, 5\nv_add_u32 v12, s44, v12")
    A("s_lshl_b32 s44, s40, 2\ns_add_u32 s44, s44, s22")
    A("s_mul_i32 s45, s44, 147\ns_lshr_b32 s45, s45, 10\ns_mul_i32 s46, s45, 7\ns_sub_u32 s46, s44, s46")
    A(f"s_mov_b32 s47, {P4_GROUPS[0][0]}\ns_mov_b32 s48, {P4_GROUPS[0][1]}")
    for t0, nt in P4_GROUPS[1:]:
        A(f"s_cmp_ge_u32 s46, {t0}\ns_cselect_b32 s47, {t0}, s47\ns_cselect_b32 s48, {nt}, s48")
    A(f"s_mul_i32 s45, s45, {WP4_J}\ns_mul_i32 s49, s47, 39\ns_add_u32 s49, s49, s46\ns_mul_i32 s47, s41, 5\ns_mul_i32 s47, s47, s48\ns_add_u32 s49, s49, s47\n"
      f"s_lshl_b32 s49, s49, 10\ns_add_u32 s50, s45, s49\ns_add_u32 s50, s50, {WP4}\ns_lshl_b32 s48, s48, 10")
    for u in range(1, 5): A(f"s_add_u32 s{50+u}, s{49+u}, s48")
    A(f"s_lshl_b32 s46, s44, 3\ns_add_u32 s46, s46, s41\ns_lshl_b32 s46, s46, 7\ns_add_u32 s46, s46, {CSP4}")
    frag32_steps(A, 12, 2, lambda u: (f"s{50+u}", 0), "s46", WS, 16, 40, 8, stflag)
    A("s_endpgm"); A.vm = []; A.lg = []

    A.lab("pack_u35")
    A("s_cmp_lt_u32 s2, 768\ns_cselect_b32 s8, s28, s36\ns_cselect_b32 s9, s29, s37")
    A("s_mov_b32 s11, 0x20000")
    sel(A, 10, 640*640*2, 1728*640*2); sel(A, 40, 728, 768); sel(A, 46, WP3, WP5); sel(A, 47, WP3_C, WP5_C)
    A("s_sub_u32 s40, s2, s40\ns_and_b32 s41, s40, 1\ns_lshr_b32 s40, s40, 1")
    for n in range(5):
        A(f"v_add_u32 v12, {64*n}, v1\nv_mul_u32_u24 v13, 1639, v12\nv_lshrrev_b32 v13, 16, v13\nv_mul_u32_u24 v14, 40, v13\nv_sub_u32 v14, v12, v14\n"
          f"v_mul_u32_u24 v13, 1280, v13\nv_lshl_add_u32 v{16+n}, v14, 4, v13")
    A("s_lshl_b32 s43, s40, 2\ns_add_u32 s43, s43, s22\ns_mul_i32 s43, s43, 8*1280\ns_mul_i32 s44, s41, 640\ns_add_u32 s43, s43, s44\ns_mul_i32 s44, s22, 5120")
    for n in range(5):
        A(f"s_add_u32 m0, s44, {n*1024}")
        A.vmem(f"buffer_load_dwordx4 v{16+n}, {SRC}, s43 offen lds")
    A.wait_vm0(); A("s_barrier")
    A("v_lshl_add_u32 v12, v5, 3, v3\nv_mul_u32_u24 v12, 640, v12\nv_lshl_add_u32 v12, v4, 3, v12\ns_mul_i32 s44, s22, 160\nv_add_u32 v12, s44, v12")
    A("s_lshl_b32 s44, s41, 2\ns_add_u32 s44, s44, s22\ns_mul_i32 s44, s44, s47\ns_add_u32 s44, s44, s46")
    A("s_cmp_lt_u32 s2, 768\ns_cselect_b32 s48, 10, 27\ns_cmp_ge_u32 s40, s48\ns_cselect_b32 s49, 1, 0\ns_cselect_b32 s48, s48, 0\ns_sub_u32 s48, s40, s48")
    A("s_lshl_b32 s50, s48, 1\ns_add_u32 s50, s50, s49\ns_lshr_b32 s51, s48, 1\ns_lshl_b32 s51, s51, 1\ns_add_u32 s51, s51, s49\ns_lshl_b32 s51, s51, 1\ns_and_b32 s48, s48, 1\ns_add_u32 s51, s51, s48")
    A("s_cmp_lt_u32 s2, 768\ns_cselect_b32 s45, s50, s51\ns_mul_i32 s45, s45, 5120\ns_add_u32 s44, s44, s45\ns_add_u32 s45, s44, 4096")
    for t in range(5):
        for p in range(2):
            A.lds(f"ds_read_b64_tr_b16 {v(24+4*t+2*p,2)}, v12 offset:{p*2560+t*32}", ('f', t))
    for t in range(5):
        A.wait_lg(('f', t))
        A.vmem(f"buffer_store_dwordx4 {v(24+4*t,4)}, v2, {WS}, {'s44' if t < 4 else 's45'} offen offset:{(t&3)*1024} {stflag}")
    A("s_endpgm"); A.vm = []; A.lg = []

    A.lab("pack_p0")
    srd(A, 8, 24, 2048 * 640 * 2)
    A("s_sub_u32 s40, s2, 256")
    A("v_lshrrev_b32 v12, 5, v1\nv_and_b32 v13, 31, v1\ns_lshl_b32 s41, s22, 1\nv_add_u32 v12, s41, v12")
    A("v_mul_u32_u24 v14, 1280, v12\nv_lshl_add_u32 v14, v13, 3, v14\ns_mul_i32 s42, s40, 8*1280")
    for i in range(5):
        A.vmem(f"buffer_load_dwordx2 {v(16+2*i,2)}, v14, {SRC}, s42 offen offset:{256*i}")
    A("v_mul_u32_u24 v15, 1296, v12\nv_lshl_add_u32 v15, v13, 3, v15")
    A.wait_vm0()
    for i in range(10):
        A(f"v_lshlrev_b32 v{32+2*i}, 16, v{16+i}\nv_and_b32 v{33+2*i}, 0xffff0000, v{16+i}")
    def red32(r, t):
        for sh in (8, 4, 2, 1):
            A(f"v_add_f32_dpp v{r}, v{r}, v{r} row_ror:{sh} row_mask:0xf bank_mask:0xf")
        A(f"v_mov_b32 v{t}, v{r}\nv_permlane16_swap_b32 v{r}, v{t}\nv_add_f32 v{r}, v{r}, v{t}")
    A("v_add_f32 v56, v32, v33")
    for i in range(2, 20): A(f"v_add_f32 v56, v56, v{32+i}")
    red32(56, 57)
    A(f"v_mul_f32 v56, {1.0/640!r}, v56")
    for i in range(20): A(f"v_sub_f32 v{32+i}, v{32+i}, v56")
    A("v_mul_f32 v58, v32, v32")
    for i in range(1, 20): A(f"v_fmac_f32 v58, v{32+i}, v{32+i}")
    red32(58, 57)
    A(f"v_mov_b32 v57, 0x3727c5ac\nv_fmac_f32 v57, {1.0/640!r}, v58\nv_rsq_f32 v57, v57")
    for i in range(20): A(f"v_mul_f32 v{32+i}, v{32+i}, v57")
    for i in range(10): A(f"v_cvt_pk_bf16_f32 v{16+i}, v{32+2*i}, v{33+2*i}")
    for i in range(5): A.lds(f"ds_write_b64 v15, {v(16+2*i,2)} offset:{256*i}")
    A.wait_lg0(); A("s_barrier")
    A(f"s_lshr_b32 s43, s40, 2\ns_mul_i32 s43, s43, 40960\ns_and_b32 s44, s40, 3\ns_lshl_b32 s44, s44, 7\ns_add_u32 s43, s43, s44\ns_add_u32 s43, s43, {LB + XA}")
    for n in range(3):
        if n == 2: A("s_cmp_ge_u32 s22, 2\ns_cbranch_scc1 pack_end")
        A(f"v_add_u32 v12, {256*n}, v0\nv_and_b32 v13, 7, v12\nv_bfe_u32 v14, v12, 3, 1\nv_lshrrev_b32 v12, 4, v12")
        A("v_mul_u32_u24 v15, 205, v12\nv_lshrrev_b32 v15, 10, v15\nv_mul_u32_u24 v16, 5, v15\nv_sub_u32 v16, v12, v16")
        A("v_mul_u32_u24 v15, 20, v15\nv_lshrrev_b32 v17, 1, v16\nv_lshl_add_u32 v15, v17, 3, v15\nv_and_b32 v17, 1, v16\nv_lshl_add_u32 v15, v17, 1, v15\nv_add_u32 v15, v15, v14")
        A("v_mul_u32_u24 v17, 1296, v13\nv_lshl_add_u32 v15, v15, 3, v17\nv_cmp_gt_u32 vcc, 4, v16\nv_mov_b32 v17, 16\nv_cndmask_b32 v17, v17, 32, vcc\nv_add_u32 v17, v15, v17")
        A.lds(f"ds_read_b64 {v(20+4*n,2)}, v15"); A.lds(f"ds_read_b64 {v(22+4*n,2)}, v17")
        A("v_lshlrev_b32 v12, 10, v12\nv_lshl_add_u32 v12, v14, 9, v12\nv_lshl_add_u32 v12, v13, 4, v12")
        A.wait_lg0()
        A.vmem(f"buffer_store_dwordx4 {v(20+4*n,4)}, v12, {WS}, s43 offen {stflag}")
    A.lab("pack_end")
    A("s_endpgm"); A.vm = []; A.lg = []
```

```python
import sys, os
sys.path.insert(0, os.path.dirname(__file__))
from asmlib import *
from layout import *
import pack
NAME = "interleave_layers__sliding_block__glu_gated_reglu__prompt"

def kd(name, vgpr, accum, sgpr):
    return f""".amdhsa_kernel {name}
  .amdhsa_next_free_vgpr {vgpr}
  .amdhsa_next_free_sgpr {sgpr}
  .amdhsa_accum_offset {accum}
  .amdhsa_group_segment_fixed_size 0
  .amdhsa_kernarg_size 80
  .amdhsa_user_sgpr_count 2
  .amdhsa_user_sgpr_kernarg_segment_ptr 1
  .amdhsa_system_sgpr_workgroup_id_x 1
.end_amdhsa_kernel
"""

def build(opts):
    hdr = ""
    ref = open(os.path.join(os.path.dirname(__file__), "..", "cdna_kernels", NAME + ".s.ref")).read().split("\n")
    for l in ref:
        if l.startswith(";") and "@launch" not in l and "Override" not in l and "grid=ceil" not in l: hdr += l + "\n"
        elif not l.startswith(";"): break
    hdr += "; @launch kernel=pack_kernel grid=(876,1,1) block=(256,1,1) lds=20480\n"
    if opts.get("main", True):
        hdr += "; @launch kernel=main_kernel grid=(256,1,1) block=(256,1,1) lds=163840\n"
    out = hdr + '.amdgcn_target "amdgcn-amd-amdhsa--gfx950"\n.text\n'
    A = Asm(); pack.gen_pack(A)
    out += ".globl pack_kernel\n.p2align 8\n.type pack_kernel,@function\n" + A.render()
    if opts.get("main", True):
        import mainphase
        A = Asm(); mainphase.gen_main(A, opts)
        out += ".globl main_kernel\n.p2align 8\n.type main_kernel,@function\n" + A.render()
    out += '.section .rodata,"a"\n.p2align 6\n' + kd("pack_kernel", 64, 64, 64)
    if opts.get("main", True):
        out += ".p2align 6\n" + kd("main_kernel", 512, 256, 102)
    return out

if __name__ == "__main__":
    opts = {}
    path = sys.argv[1]
    for kv in sys.argv[2:]:
        k, x = kv.split("="); opts[k] = eval(x)
    open(path, "w").write(build(opts))
    print(path, os.path.getsize(path), "bytes")
```

```python
from asmlib import *
from layout import *
from pack import srd, sel, OOB
import math

WS = "s[4:7]"; XS = "s[8:11]"; OS = "s[12:15]"; DS_ = "s[16:19]"
MB, J, WV, LAY, RH, CT, RR, KH = 20, 21, 22, 23, 24, 25, 26, 27
SL = 40
TGT = 41
S_A1 = 42
S_ST1 = 43
S_KVO = 44
S_A3 = 45
S_A3B = 46
S_X = 47
S_STX = 48
S_W1, S_W3, S_W4, S_W5 = 49, 50, 51, 52
S_H = 53
S_PB = 54
S_WI = 55
S_SHJ, S_SHC = 56, 57
MASK = 64
T = [28, 29, 30, 31, 32, 33, 34, 35, 36, 37]

VL, VL16, VST, RES = 1, 2, 3, 4
VO1, VO2, VO3, VX, VSX, VH, VCNT, VCS, VK, VKS, VV, VW2, VW12, VW1, VXW, VXR, VB1, VB2 = range(14, 32)
PM = 32
VPROF = 40
VL128, VDUM = 42, 43
VFREE = 44

LDS_MISC = 147456
CS1 = LDS_MISC; CS4 = LDS_MISC + 512
KREG = 36864; VREG = KREG + 12 * 2560
XCH3 = 86016; XCH5 = 0
QSCALE = math.log2(math.e) / math.sqrt(20.0)

def lds1(st): return ((st + 5) % 36) * 4096 if st < 36 else (st - 31) * 4096
def lds3(bl): return bl * 10240 if bl < 3 else (107520 + (bl - 3) * 10240 if bl < 6 else KREG + (bl - 6) * 10240)
def fhex(x):
    import struct
    return hex(struct.unpack("<I", struct.pack("<f", x))[0])

class Main:
    def __init__(self, A, opts):
        self.A = A; self.o = opts
        self.prof = opts.get("prof", 0); self.names = []
        self.stop = opts.get("stop", None)
        self.local = opts.get("local", 0)
        self.ld = "sc1"; self.st = "" if self.local else "sc1"; self.stkv = "sc1"

    def stamp(self, name):
        if not self.prof or name.endswith(tuple(self.o.get("nostamp", ()))) and self.o.get("nostamp"): return
        A = self.A
        if name not in self.names: self.names.append(name)
        idx = self.names.index(name)
        A(f"s_memrealtime s[38:39]\ns_memtime s[96:97]\ns_waitcnt lgkmcnt(0)\ns_add_u32 m0, s{S_PB}, {idx}\nv_writelane_b32 v{VPROF}, s38, m0\nv_writelane_b32 v{VPROF+1}, s96, m0")
        A.lg = []

    def ldsaddr(self, off, bases):
        b = off >> 16
        return f"v{bases[b]} offset:{off & 0xffff}"

    def emit(self, x):
        if isinstance(x, tuple):
            if x[0] == 'vm': self.A.vmem(x[1], x[2])
            elif x[0] == 'lg': self.A.lds(x[1], x[2])
            elif x[0] == 'wv': self.A.wait_vm(x[1])
            elif x[0] == 'wl': self.A.wait_lg(x[1])
        else: self.A(x)

    def drain(self, fill, n):
        vm = 0
        while fill and n > 0:
            isvm = isinstance(fill[0], tuple) and fill[0][0] == 'vm'
            if isvm and vm: break
            vm += isvm
            self.emit(fill.pop(0)); n -= 1

    def need(self, tag, fill):
        while any(isinstance(x, tuple) and x[0] == 'vm' and x[2] == tag for x in fill): self.emit(fill.pop(0))
        self.A.wait_vm(tag)

    def rnd(self, sbase, goff, loff, kb, tag):
        L = [f"s_mul_i32 s{T[8]}, s{WV}, {kb*1024}", f"s_add_u32 s{T[9]}, s{T[8]}, s{sbase}", f"s_add_u32 s{T[9]}, s{T[9]}, {goff}", f"s_add_u32 m0, s{T[8]}, {loff}"]
        for i in range(kb):
            if i and i % 4 == 0: L += [f"s_add_u32 s{T[9]}, s{T[9]}, 4096", "s_add_u32 m0, m0, 4096"]
            L.append(('vm', f"buffer_load_dwordx4 v{VL16}, {WS}, s{T[9]} offen offset:{1024*(i&3)} lds", tag))
        return L

    def warm(self, sbase, g0, g1, byct, lanes=64, sreg=None):
        sreg = sreg or T[2]
        ns = self.o.get("mx", 256) // 128 * 4 * (2 if byct else 1)
        per = -(-(g1 - g0) // ns // 128) * 128
        L = [f"s_mul_i32 s{sreg}, s{S_SHC if byct else S_SHJ}, {per}", f"s_add_u32 s{sreg}, s{sreg}, s{sbase}"]
        if g0: L.append(f"s_add_u32 s{sreg}, s{sreg}, {g0}")
        out = []
        for i in range(-(-per // (128*lanes))):
            n = min(lanes, per // 128 - i*lanes)
            txt = f"buffer_load_dword v{VDUM}, v{VL128}, {WS}, s{sreg} offen"
            if n < 32: txt = f"s_mov_b64 exec, {hex((1 << n) - 1)}\n" + txt + "\ns_mov_b64 exec, -1"
            elif n < 64: txt = f"s_mov_b32 exec_hi, {hex((1 << (n - 32)) - 1)}\n" + txt + "\ns_mov_b32 exec_hi, -1"
            out.append(L + [('vm', txt, 'warm')])
            L = [f"s_add_u32 s{sreg}, s{sreg}, {128*lanes}"]
        return out

    def rnd3(self, sbase, goff, loff, kb):
        A = self.A
        A(f"s_mul_i32 s{T[8]}, s{S_WI}, {kb*1024}\ns_add_u32 s{T[9]}, s{T[8]}, s{sbase}\ns_add_u32 s{T[9]}, s{T[9]}, {goff}\ns_add_u32 m0, s{T[8]}, {loff}")
        for i in range(kb):
            if i and i % 4 == 0: A(f"s_add_u32 s{T[9]}, s{T[9]}, 4096\ns_add_u32 m0, m0, 4096")
            A(f"buffer_load_dwordx4 v{VL16}, {WS}, s{T[9]} offen offset:{1024*(i&3)} lds")

    def edf(self, jobs, nsteps, rate, credit=0.0):
        units = []
        for rel, dl, L in jobs:
            cur = []
            for x in L:
                cur.append(x)
                if isinstance(x, tuple) and x[0] == 'vm': units.append([rel, dl, cur, id(L)]); cur = []
            if cur: units[-1][2] += cur
        sched = {k: [] for k in range(nsteps)}
        busy = None
        for st_ in range(nsteps):
            credit += rate
            while credit >= 1 and units:
                cand = [u for u in units if u[0] <= st_]
                if busy is not None: cand = [u for u in cand if u[3] == busy or 'lds' not in u[2][-1 if isinstance(u[2][-1], tuple) else -2][1]]
                if not cand: credit = min(credit, 1.0); break
                u = min(cand, key=lambda u: u[1])
                units.remove(u); sched[st_] += u[2]; credit -= 1
                isdma = any(isinstance(x, tuple) and x[1].endswith('lds') for x in u[2])
                if isdma: busy = u[3] if any(w[3] == u[3] for w in units) else None
        assert not units, f"{len(units)} loads left"
        return sched

    def drain_post(self, post):
        A = self.A
        if not post:
            A.wait_all(); return
        N = A.newlab("p0"); E = A.newlab("pe")
        kb = -(-post[3] // 3)
        A(f"s_cmp_eq_u32 s{WV}, 0\ns_cbranch_scc1 {N}")
        self.rnd3(post[0], post[1], post[2], kb)
        A(f"s_waitcnt vmcnt({kb}) lgkmcnt(0)\ns_branch {E}")
        A.lab(N); A("s_waitcnt vmcnt(0) lgkmcnt(0)"); A.lab(E)
        A.vm = []; A.lg = []

    def mix(self, body, fill, every):
        for k, x in enumerate(body):
            self.emit(x)
            if (k + 1) % every == 0: self.drain(fill, 5)

    def spin(self, addr, tgt, code):
        A = self.A; L = A.newlab("poll"); D = A.newlab("pdone"); t = VFREE
        ld = lambda r: f"buffer_load_dword v{r}, v{addr}, {WS}, 0 offen sc1"
        A(f"s_mov_b32 s{T[2]}, 20000\n" + ld(t))
        A.lab(L)
        for r in (t + 1, t):
            A(f"s_sleep {self.o.get('psleep', 3)}\n" + ld(r) + f"\ns_waitcnt vmcnt(1)\nv_cmp_gt_u32 vcc, s{tgt}, v{2*t + 1 - r}\ns_cbranch_vccz {D}")
        A(f"s_sub_u32 s{T[2]}, s{T[2]}, 1\ns_cmp_lg_u32 s{T[2]}, 0\ns_cbranch_scc1 {L}")
        A(f"s_waitcnt vmcnt(0)\nv_mov_b32 v{t}, {code}\nv_mov_b32 v{t+1}, 0\nbuffer_store_dword v{t}, v{t+1}, {DS_}, 0 offen")
        A.lab(D)

    def cluster_sync(self, post, pre, code):
        A = self.A; N = A.newlab("nw0"); E = A.newlab("syn")
        self.stamp(f'p{code>>8}.epi')
        self.drain_post(post); A("s_barrier")
        self.stamp(f'p{code>>8}.drain')
        if self.local:
            A(f"s_add_u32 s{TGT}, s{TGT}, 1\ns_cmp_lg_u32 s{WV}, 0\ns_cbranch_scc1 {N}")
            A(f"s_mov_b64 exec, 1\nv_mov_b32 v{VFREE}, s{TGT}\ns_lshl_b32 s{T[3]}, s{J}, 2\nbuffer_store_dword v{VFREE}, v{VCNT}, {WS}, s{T[3]} offen\ns_mov_b64 exec, 0xffff")
        else:
            A(f"s_add_u32 s{TGT}, s{TGT}, 16\ns_cmp_lg_u32 s{WV}, 0\ns_cbranch_scc1 {N}")
            A(f"s_mov_b64 exec, 1\nv_mov_b32 v{VFREE+3}, 1\nbuffer_atomic_add v{VFREE+3}, v{VCNT}, {WS}, 0 offen sc1")
        self.spin(VCNT, TGT, code)
        A(f"s_mov_b64 exec, -1")
        self.stamp(f'p{code>>8}.poll')
        A(f"s_branch {E}")
        A.lab(N)
        if pre: pre()
        A.lab(E)
        A("s_barrier")
        self.stamp(f'p{code>>8}.bar')

    def setup(self):
        A = self.A
        A.lab("main_kernel")
        A("s_cmp_ge_u32 s2, 256\ns_cbranch_scc1 main_end")
        A("s_load_dwordx2 s[28:29], s[0:1], 0\ns_load_dwordx4 s[32:35], s[0:1], 56\ns_load_dwordx2 s[30:31], s[0:1], 72")
        A(f"v_and_b32 v{VL}, 63, v0\nv_lshrrev_b32 v2, 6, v0\ns_nop 0\nv_readfirstlane_b32 s{WV}, v2\nv_lshlrev_b32 v{VL16}, 4, v{VL}")
        mx = self.o.get("mx", 256)
        if mx == 256:
            A(f"s_and_b32 s{MB}, s2, 7\ns_lshl_b32 s{MB}, s{MB}, 1\ns_lshr_b32 s3, s2, 7\ns_add_u32 s{MB}, s{MB}, s3\ns_bfe_u32 s{J}, s2, 0x40003")
        elif mx == 512:
            A(f"s_bfe_u32 s{MB}, s2, 0x20001\ns_lshl_b32 s{MB}, s{MB}, 2\ns_lshr_b32 s3, s2, 6\ns_add_u32 s{MB}, s{MB}, s3")
            A(f"s_and_b32 s{J}, s2, 1\ns_lshl_b32 s{J}, s{J}, 3\ns_bfe_u32 s3, s2, 0x30003\ns_add_u32 s{J}, s{J}, s3")
        elif mx == 1024:
            A(f"s_bfe_u32 s{MB}, s2, 0x10002\ns_lshl_b32 s{MB}, s{MB}, 3\ns_lshr_b32 s3, s2, 5\ns_add_u32 s{MB}, s{MB}, s3")
            A(f"s_and_b32 s{J}, s2, 3\ns_lshl_b32 s{J}, s{J}, 2\ns_bfe_u32 s3, s2, 0x20003\ns_add_u32 s{J}, s{J}, s3")
        A(f"s_and_b32 s{RH}, s{J}, 1\ns_lshr_b32 s{CT}, s{J}, 1\ns_lshr_b32 s{RR}, s{WV}, 1\ns_and_b32 s{KH}, s{WV}, 1\ns_sub_u32 s{S_WI}, s{WV}, 1")
        A(f"s_mov_b32 s{LAY}, 0\ns_mov_b32 s{SL}, {LB}\ns_mov_b32 s{TGT}, 0\ns_mov_b32 s{S_PB}, 0")
        A(f"s_lshl_b32 s3, s{MB}, 2\ns_add_u32 s3, s3, s{WV}\ns_mul_i32 s{S_A1}, s3, 40960\ns_lshl_b32 s{S_ST1}, s3, 11")
        A(f"s_mul_i32 s{S_H}, s3, {2*54*1024}\ns_mul_i32 s3, s{J}, {7*512}\ns_add_u32 s{S_H}, s{S_H}, s3")
        A(f"s_mul_i32 s{S_W1}, s{J}, {WP1_J}\ns_add_u32 s{S_W1}, s{S_W1}, {WP1}\ns_mul_i32 s{S_W4}, s{J}, {WP4_J}\ns_add_u32 s{S_W4}, s{S_W4}, {WP4}")
        A(f"s_mul_i32 s{S_W3}, s{CT}, {WP3_C}\ns_add_u32 s{S_W3}, s{S_W3}, {WP3}\ns_mul_i32 s{S_W5}, s{CT}, {WP5_C}\ns_add_u32 s{S_W5}, s{S_W5}, {WP5}")
        A("s_waitcnt lgkmcnt(0)")
        srd(A, 4, 30, WS_USED); srd(A, 8, 28, 2048*640*2); srd(A, 12, 32, 2048*640*2); srd(A, 16, 34, 256)

    def setup2(self):
        A = self.A; t = VFREE
        A(f"s_lshl_b32 s3, s{MB}, 4\ns_add_u32 s3, s3, s{J}\ns_mul_i32 s{S_KVO}, s3, {KV_WG}\ns_add_u32 s{S_KVO}, s{S_KVO}, {KV}")
        A(f"s_lshl_b32 s3, s{MB}, 2\ns_lshl_b32 s36, s{RH}, 1\ns_add_u32 s3, s3, s36\ns_add_u32 s3, s3, s{RR}")
        A(f"s_mul_i32 s{S_X}, s3, 40960\ns_mul_i32 s36, s{CT}, 5120\ns_add_u32 s{S_X}, s{S_X}, s36")
        A(f"s_lshl_b32 s{S_STX}, s3, 3\ns_add_u32 s{S_STX}, s{S_STX}, s{CT}\ns_lshl_b32 s{S_STX}, s{S_STX}, 8")
        A(f"s_lshl_b32 s3, s3, 1\ns_add_u32 s{S_A3}, s3, s{KH}\ns_xor_b32 s{S_A3B}, s{S_A3}, 1")
        nsh = self.o.get("mx", 256) // 128
        A(f"s_and_b32 s3, s{MB}, {nsh-1}\ns_lshl_b32 s{S_SHJ}, s3, 2\ns_add_u32 s{S_SHJ}, s{S_SHJ}, s{WV}\ns_lshl_b32 s3, s3, 1\ns_add_u32 s3, s3, s{RH}\ns_lshl_b32 s{S_SHC}, s3, 2\ns_add_u32 s{S_SHC}, s{S_SHC}, s{WV}")
        A(f"v_lshlrev_b32 v{VL128}, 7, v{VL}")
        m5, h, m4, g = t, t+1, t+2, t+3
        A(f"v_and_b32 v{m5}, 31, v{VL}\nv_lshrrev_b32 v{h}, 5, v{VL}\nv_and_b32 v{m4}, 15, v{VL}\nv_lshrrev_b32 v{g}, 4, v{VL}")
        A(f"v_lshlrev_b32 v{VST}, 3, v{m5}\nv_lshl_add_u32 v{VST}, v{h}, 8, v{VST}")
        A(f"v_add_u32 v{VB1}, 0x10000, v{VL16}\nv_add_u32 v{VB2}, 0x20000, v{VL16}\nv_lshlrev_b32 v{VCS}, 6, v{h}\nv_add_u32 v{VCS}, {LDS_MISC}, v{VCS}")
        A(f"s_lshl_b32 s3, s{MB}, 8\nv_lshlrev_b32 v{VCNT}, 2, v{VL}\nv_add_u32 v{VCNT}, s3, v{VCNT}")
        A(f"s_lshl_b32 s3, s{MB}, 3\ns_lshl_b32 s36, s{WV}, 1\ns_add_u32 s3, s3, s36\ns_mul_i32 s3, s3, 20480\ns_mul_i32 s36, s{J}, 1280\ns_add_u32 s3, s3, s36\ns_add_u32 s3, s3, {OO}")
        A(f"v_lshrrev_b32 v{t+4}, 4, v{m5}\nv_mul_u32_u24 v{t+5}, 20480, v{t+4}\nv_lshl_add_u32 v{t+5}, v{m4}, 4, v{t+5}\nv_add_u32 v{VO3}, s3, v{t+5}\nv_lshl_add_u32 v{VO1}, v{h}, 8, v{VO3}")
        A(f"v_mul_u32_u24 v{VH}, {54*1024}, v{t+4}\nv_lshl_add_u32 v{VH}, v{m4}, 4, v{VH}\nv_lshl_add_u32 v{VH}, v{h}, 8, v{VH}")
        A(f"s_lshl_b32 s3, s{KH}, 4\nv_add_u32 v{t+4}, s3, v{m4}\nv_lshlrev_b32 v{VSX}, 3, v{t+4}\nv_and_b32 v{t+5}, 1, v{g}\nv_lshl_add_u32 v{t+4}, v{t+5}, 5, v{t+4}")
        A(f"v_lshlrev_b32 v{VX}, 4, v{t+4}\nv_lshl_add_u32 v{VX}, v{h}, 10, v{VX}")
        A(f"s_mul_i32 s3, s{WV}, 2560\ns_add_u32 s3, s3, {KREG}\nv_add_u32 v{VK}, s3, v{VL16}\ns_add_u32 s3, s3, 2048\nv_lshlrev_b32 v{VKS}, 3, v{VL}\nv_add_u32 v{VKS}, s3, v{VKS}")
        A(f"s_mul_i32 s3, s{WV}, 3328\ns_add_u32 s3, s3, {VREG - 32}")
        A(f"v_mul_u32_u24 v{VV}, 416, v{h}\nv_and_b32 v{t+4}, 1, v{g}\nv_lshl_add_u32 v{VV}, v{t+4}, 7, v{VV}\nv_and_b32 v{t+4}, 3, v{VL}\nv_lshl_add_u32 v{VV}, v{t+4}, 5, v{VV}")
        A(f"v_bfe_u32 v{t+4}, v{VL}, 2, 2\nv_lshl_add_u32 v{VV}, v{t+4}, 3, v{VV}\nv_add_u32 v{VV}, s3, v{VV}")
        A(f"s_add_u32 s3, s3, {8*3328 + 32}\nv_lshrrev_b32 v{t+4}, 2, v{m5}\nv_mul_u32_u24 v{t+4}, 416, v{t+4}\nv_and_b32 v{t+5}, 3, v{VL}\nv_lshl_add_u32 v{t+4}, v{t+5}, 3, v{t+4}\nv_add_u32 v{t+4}, s3, v{t+4}")
        A(f"v_lshl_add_u32 v{VW2}, v{h}, 6, v{t+4}\nv_lshl_add_u32 v{VW1}, v{h}, 5, v{t+4}\nv_mul_u32_u24 v{t+5}, 384, v{h}\nv_add_u32 v{VW12}, v{t+5}, v{t+4}")
        A(f"s_mul_i32 s3, s{WV}, 5120\nv_add_u32 v{VXW}, s3, v{VL16}\ns_xor_b32 s3, s{WV}, 1\ns_mul_i32 s3, s3, 5120\nv_add_u32 v{VXR}, s3, v{VL16}")
        A(f"v_lshlrev_b32 v{t+4}, 2, v{h}\nv_sub_u32 v{t+4}, v{m5}, v{t+4}")
        for r in range(16):
            A(f"v_cmp_le_i32 s[{MASK+2*r}:{MASK+2*r+1}], {8*(r>>2) + (r&3)}, v{t+4}")
        A(f"v_mov_b32 v{t+5}, 0xffff\nv_mov_b32 v{t+6}, 0xffff0000")
        for rr in range(8):
            A(f"v_cndmask_b32 v{PM+rr}, 0, v{t+5}, s[{MASK+4*rr}:{MASK+4*rr+1}]\nv_cndmask_b32 v{t+7}, 0, v{t+6}, s[{MASK+4*rr+2}:{MASK+4*rr+3}]\nv_or_b32 v{PM+rr}, v{PM+rr}, v{t+7}")

    def stats_load(self, off, dst):
        A = self.A
        A(f"s_add_u32 s{T[3]}, s{SL}, s{S_ST1}\ns_add_u32 s{T[3]}, s{T[3]}, {off}")
        for i in range(4):
            A.vmem(f"buffer_load_dwordx2 {v(dst+2*i,2)}, v{VST}, {WS}, s{T[3]} offen offset:{512*i} {self.ld}", 'st')

    def stats_finish(self, d, mu, rs):
        return [f"v_add_f32 v{d}, v{d}, v{d+2}", f"v_add_f32 v{d+1}, v{d+1}, v{d+3}", f"v_add_f32 v{d+4}, v{d+4}, v{d+6}", f"v_add_f32 v{d+5}, v{d+5}, v{d+7}",
                f"v_add_f32 v{d}, v{d}, v{d+4}", f"v_add_f32 v{d+1}, v{d+1}, v{d+5}", f"v_mov_b32 v{d+2}, v{d}", f"v_mov_b32 v{d+3}, v{d+1}",
                f"v_permlane32_swap_b32 v{d}, v{d+2}", f"v_permlane32_swap_b32 v{d+1}, v{d+3}",
                f"v_add_f32 v{d}, v{d}, v{d+2}", f"v_add_f32 v{d+1}, v{d+1}, v{d+3}",
                f"v_mul_f32 v{mu}, {fhex(-1.0/640)}, v{d}", f"v_mul_f32 v{d+1}, {fhex(1.0/640)}, v{d+1}",
                f"v_fma_f32 v{d+1}, -v{mu}, v{mu}, v{d+1}", f"v_max_f32 v{d+1}, 0, v{d+1}", f"v_add_f32 v{d+1}, 0x3727c5ac, v{d+1}",
                f"v_rsq_f32 v{rs}, v{d+1}"]

    def a_load(self, st_, sreg, dst, tag):
        self.A.vmem(f"buffer_load_dwordx4 {a(dst,4)}, v{VL16}, {WS}, s{sreg} offen offset:{(st_ & 3)*1024} {self.ld}", tag)

    def p1(self, first):
        A = self.A; o = self.o
        ACC, WF, STD, MU, RS = 64, 128, 144, 152, 153
        bases = [VL16, VB1, VB2]
        SA = T[4]
        def aload(st_):
            L = [f"s_add_u32 s{SA}, s{SA}, 4096"] if st_ and st_ % 4 == 0 else []
            return L + [('vm', f"buffer_load_dwordx4 {a(4*st_,4)}, v{VL16}, {WS}, s{SA} offen offset:{(st_ & 3)*1024} {self.ld}", ('a', st_))]
        A(f"s_add_u32 s{SA}, s{SL}, s{S_A1}")
        def wsteps(a0, a1):
            return (a0, self.rnd(S_W1, a0*4096, lds1(a0), a1 - a0, ('w', a0)))
        n0 = (4 * o.get("up1a", 2)) if first else self.pre1
        cuts = sorted(set([n0] + [c for c in range(n0, 31, 4)] + [31, 36, 40]))
        groups = [wsteps(x, y) for x, y in zip(cuts, cuts[1:])]
        up = n0 if first else o.get("up1", 10)
        if first:
            for g in range(n0 // 4):
                for x in wsteps(4*g, 4*g+4)[1] + sum((aload(k) for k in range(4*g, 4*g+4)), []): self.emit(x)
            self.setup2()
        else:
            self.stats_load(STA, STD)
            for k in range(up): [self.emit(x) for x in aload(k)]
        jobs = [(0, k, aload(k)) for k in range(up, 40)]
        jobs += [(7 if a0 == 36 else 0, a0 - 1.5, L) for a0, L in groups]
        jobs.append((30, 99, self.rnd(S_W3, 30720, lds3(3), 8, 'w3')))
        sched = self.edf(jobs, 40, o.get("r1a", 2.0) if first else o.get("r1", 1.8))
        if o.get("warm3", 0):
            for k, L in enumerate(self.warm(S_W3, 0, WP3_C, True, 32)): sched[o.get("warm3at", 24) + 2*k] += L
        valid = {a0 - 1: ('w', a0) for a0, L in groups}
        if first: valid.update({4*g - 1: ('w', 4*g) for g in range(1, n0 // 4)})
        valid.setdefault(7, None); valid.setdefault(30, None)
        if not first: sched[33] += self.stats_finish(STD, MU, RS)
        A.wait_vm(('a', 0)); A("s_barrier")
        self.stamp('p1.go')
        for t in range(4): A.lds(f"ds_read_b128 {v(WF+4*t,4)}, {self.ldsaddr(lds1(0) + 1024*t, bases)}", ('f', 0, t))
        fill = []
        for st_ in range(40):
            if st_ in valid:
                if valid[st_]: self.need(valid[st_], fill)
                A("s_barrier")
            fill += sched[st_]
            self.need(('a', st_), fill)
            for t in range(4):
                A.wait_lg(('f', st_, t))
                A(f"v_mfma_f32_32x32x16_bf16 {v(ACC+16*t,16)}, {v(WF+4*t,4)}, {a(4*st_,4)}, {'0' if st_ == 0 else v(ACC+16*t,16)}")
                if st_ < 39: A.lds(f"ds_read_b128 {v(WF+4*t,4)}, {self.ldsaddr(lds1(st_+1) + 1024*t, bases)}", ('f', st_+1, t))
                self.drain(fill, 4)
        assert not fill
        A("s_barrier")
        self.stamp('p1.main')
        CSR, PK, RQ = 160, 176, 154
        self.QA1, self.QB1, self.QA2, self.QB2 = 224, 228, 232, 236
        if first: A(f"v_mov_b32 v{RQ}, {fhex(QSCALE)}")
        else: A(f"v_mul_f32 v{RQ}, {fhex(QSCALE)}, v{RS}")
        def quad(t, j, dst, isq):
            r = ACC + 16*t + 4*j
            if not first:
                A.wait_lg(('cs', t, j))
                for i in range(4): A(f"v_fma_f32 v{r+i}, v{MU}, v{CSR+4*j+i}, v{r+i}")
            if isq or not first:
                for i in range(4): A(f"v_mul_f32 v{r+i}, v{RQ if isq else RS}, v{r+i}")
            A(f"v_cvt_pk_bf16_f32 v{dst}, v{r}, v{r+1}\nv_cvt_pk_bf16_f32 v{dst+1}, v{r+2}, v{r+3}")
        def csload(t):
            if not first:
                for j in range(4): A.lds(f"ds_read_b128 {v(CSR+4*j,4)}, v{VCS} offset:{128*t + 16*j}", ('cs', t, j))
        KA, KB, KS, VT = PK, PK+4, PK+8, PK+12
        A(f"s_add_u32 s{T[4]}, s{SL}, s{S_KVO}\ns_mul_i32 s{T[5]}, s{WV}, 2560\ns_add_u32 s{T[5]}, s{T[5]}, s{T[4]}\ns_mul_i32 s{T[6]}, s{WV}, 3328\ns_add_u32 s{T[6]}, s{T[6]}, s{T[4]}\ns_add_u32 s{T[6]}, s{T[6]}, 10240")
        csload(0)
        quad(0, 0, KA, 0); quad(0, 1, KA+2, 0)
        A.lds(f"ds_write_b128 v{VK}, {v(KA,4)} offset:{8*2560}")
        A.vmem(f"buffer_store_dwordx4 {v(KA,4)}, v{VL16}, {WS}, s{T[5]} offen {self.stkv}")
        quad(0, 2, KS, 0); quad(0, 3, KB, 0)
        csload(1)
        A.lds(f"ds_write_b64 v{VKS}, {v(KS,2)} offset:{8*2560}")
        A(f"v_lshlrev_b32 v{PK+10}, 3, v{VL}")
        A.vmem(f"buffer_store_dwordx2 {v(KS,2)}, v{PK+10}, {WS}, s{T[5]} offen offset:2048 {self.stkv}")
        quad(1, 0, KB+2, 0)
        A.lds(f"ds_write_b128 v{VK}, {v(KB,4)} offset:{8*2560+1024}")
        A.vmem(f"buffer_store_dwordx4 {v(KB,4)}, v{VL16}, {WS}, s{T[5]} offen offset:1024 {self.stkv}")
        A(f"v_mov_b32 v{VT+10}, 0x3f803f80\nv_mov_b32 v{VT+11}, 0x3f803f80")
        A.lds(f"ds_write_b64 v{VW1}, {v(VT+10,2)} offset:{5*32}")
        for n, (t, j, ad, pos) in enumerate(((1, 1, VW2, 1), (1, 2, VW2, 2), (1, 3, VW12, 0), (2, 0, VW2, 7), (2, 1, VW2, 8))):
            if n == 3: csload(2)
            quad(t, j, VT+2*n, 0)
            A.lds(f"ds_write_b64 v{ad}, {v(VT+2*n,2)} offset:{pos*32}", 'vw')
        A(f"s_mul_i32 s{T[7]}, s{WV}, 3328\ns_add_u32 s{T[7]}, s{T[7]}, {VREG + 8*3328}\nv_add_u32 v{PK+10}, s{T[7]}, v{VL16}")
        A.wait_lg('vw')
        VC = 192
        for n in range(4): A.lds(f"ds_read_b128 {v(VC+4*n,4)}, v{PK+10} offset:{1024*n}", ('vc', n))
        for n in range(4):
            A.wait_lg(('vc', n))
            if n == 3: A("s_mov_b64 exec, 0xffff")
            A.vmem(f"buffer_store_dwordx4 {v(VC+4*n,4)}, v{VL16}, {WS}, s{T[6]} offen offset:{1024*n} {self.stkv}", 'out')
        A("s_mov_b64 exec, -1")
        self.stamp('p1.epi')
        quad(2, 2, self.QA1, 1); quad(2, 3, self.QA1+2, 1)
        csload(3)
        quad(3, 0, self.QA2, 1); quad(3, 1, self.QB1, 1); quad(3, 2, self.QB1+2, 1)
        A(f"v_mov_b32 v{self.QB2}, v{self.QA2}\nv_mov_b32 v{self.QB2+1}, v{self.QA2+1}")
        for q in (self.QA2, self.QB2): A(f"v_mov_b32 v{q+2}, 0\nv_mov_b32 v{q+3}, 0")
        A(f"s_mov_b32 exec_lo, 0\nv_mov_b32 v{self.QA2}, 0\nv_mov_b32 v{self.QA2+1}, 0\ns_mov_b32 exec_lo, -1\ns_mov_b32 exec_hi, 0\nv_mov_b32 v{self.QB2}, 0\nv_mov_b32 v{self.QB2+1}, 0\ns_mov_b32 exec_hi, -1")

    def kv_sync(self):
        A = self.A; N = A.newlab("nw0"); E = A.newlab("syn"); t = VFREE
        self.drain_post((S_W3, 0, 0, 30)); A("s_barrier")
        self.stamp('p1.drain')
        A(f"s_add_u32 s{T[3]}, s{LAY}, 1\ns_cmp_lg_u32 s{WV}, 0\ns_cbranch_scc1 {N}")
        A(f"s_mov_b64 exec, 7\nv_sub_u32 v{t+2}, s{MB}, v{VL}\nv_cmp_gt_i32 vcc, 0, v{t+2}\nv_mov_b32 v{t+3}, s{MB}\nv_cndmask_b32 v{t+2}, v{t+2}, v{t+3}, vcc")
        A(f"v_lshlrev_b32 v{t+2}, 4, v{t+2}\nv_add_u32 v{t+2}, s{J}, v{t+2}\nv_lshlrev_b32 v{t+2}, 7, v{t+2}\nv_add_u32 v{t+2}, {KVF}, v{t+2}\nv_mov_b32 v{t+3}, s{T[3]}")
        A(f"s_mov_b64 exec, 1\nbuffer_store_dword v{t+3}, v{t+2}, {WS}, 0 offen sc1\ns_mov_b64 exec, 7")
        self.spin(t + 2, T[3], 0x100)
        A(f"s_mov_b64 exec, -1")
        self.stamp('p1.poll')
        A(f"s_branch {E}")
        A.lab(N)
        self.colsums()
        A.lab(E)
        A("s_barrier")
        for src in range(2):
            back = 2 - src
            A(f"s_add_u32 s{T[4]}, s{SL}, s{S_KVO}\ns_sub_u32 s{T[4]}, s{T[4]}, {back*16*KV_WG}\ns_cmp_lt_u32 s{MB}, {back}\ns_cmov_b32 s{T[4]}, {OOB}")
            for n in range(6):
                A(f"s_add_u32 s{T[5]}, s{WV}, {4*n}")
                if n == 5: A(f"s_min_u32 s{T[5]}, s{T[5]}, 22")
                A(f"s_lshl_b32 s{T[5]}, s{T[5]}, 10\ns_add_u32 s{T[6]}, s{T[5]}, s{T[4]}")
                ko = KREG + src*10240; vo = VREG + src*13312 - 10240
                if n < 2: A(f"s_add_u32 m0, s{T[5]}, {ko}")
                elif n > 2: A(f"s_add_u32 m0, s{T[5]}, {vo}")
                else:
                    A(f"s_cmp_lt_u32 s{WV}, 2"); sel(A, T[7], ko, vo); A(f"s_add_u32 m0, s{T[5]}, s{T[7]}")
                A.vmem(f"buffer_load_dwordx4 v{VL16}, {WS}, s{T[6]} offen {self.ld} lds", 'halo')
        if self.o.get("warm4", 0):
            for L in self.warm(S_W4, 0, self.o.get("warm4", 0) * 1024, False): [self.emit(x) for x in L]
        A.wait_vm('halo'); A("s_barrier")
        self.stamp('p2.go')
        self.residual0()

    def residual0(self):
        A = self.A; L = A.newlab("x0"); t = VFREE
        A(f"s_cmp_lg_u32 s{LAY}, 0\ns_cbranch_scc1 {L}")
        A(f"s_lshl_b32 s{T[4]}, s{S_A3}, 4\ns_mul_i32 s{T[4]}, s{T[4]}, 1280\ns_mul_i32 s{T[5]}, s{CT}, 160\ns_add_u32 s{T[4]}, s{T[4]}, s{T[5]}")
        A(f"v_and_b32 v{t}, 15, v{VL}\nv_mul_u32_u24 v{t}, 1280, v{t}\nv_lshrrev_b32 v{t+1}, 4, v{VL}\nv_lshl_add_u32 v{t}, v{t+1}, 3, v{t}")
        for k in range(5): A(f"buffer_load_dwordx2 {v(RES+2*k,2)}, v{t}, {XS}, s{T[4]} offen offset:{32*k}")
        A.lab(L)

    def colsums(self):
        A = self.A; L = A.newlab("x0"); t = VFREE
        A(f"s_cmp_lg_u32 s{LAY}, 0\ns_cbranch_scc1 {L}")
        A(f"s_lshl_b32 s{T[4]}, s{J}, 12\ns_add_u32 s{T[4]}, s{T[4]}, {CSP1}\ns_mul_i32 s{T[5]}, s{J}, 7168\ns_add_u32 s{T[5]}, s{T[5]}, {CSP4 - 4096}")
        A(f"s_lshl_b32 s{T[6]}, s{S_WI}, 7\nv_add_u32 v{t}, s{T[6]}, v{VL}")
        for r in range(2):
            A(f"v_add_u32 v{t+1}, {64*r}, v{t}\nv_lshrrev_b32 v{t+2}, 5, v{t+1}\nv_and_b32 v{t+3}, 31, v{t+1}\nv_lshlrev_b32 v{t+3}, 2, v{t+3}\nv_lshl_add_u32 v{t+2}, v{t+2}, 10, v{t+3}")
            A(f"s_cmp_eq_u32 s{S_WI}, 0\ns_cselect_b32 s{T[6]}, s{T[4]}, s{T[5]}")
            for k in range(8): A(f"buffer_load_dword v{t+4+8*r+k}, v{t+2}, {WS}, s{T[6]} offen offset:{128*k}")
        A(f"v_lshlrev_b32 v{t+2}, 2, v{t}\nv_add_u32 v{t+2}, {LDS_MISC}, v{t+2}\ns_waitcnt vmcnt(0)")
        for k in range(1, 8): A(f"v_add_f32 v{t+4}, v{t+4}, v{t+4+k}\nv_add_f32 v{t+12}, v{t+12}, v{t+12+k}")
        A(f"ds_write_b32 v{t+2}, v{t+4}\nds_write_b32 v{t+2}, v{t+12} offset:256\ns_waitcnt lgkmcnt(0)")
        A.lab(L)

    def p2(self):
        A = self.A
        SB = [48, 64, 80]; PB = [96, 104]; PD = 112; OA = [128, 144]; KF = [162, 174]; VF = [184, 192, 200]; CB = [208, 240]
        Q1 = [self.QA1, self.QB1]; Q2 = [self.QA2, self.QB2]
        cz = self.o.get("czero", True)
        blocks = [(i, hd) for i in range(1, 8) for hd in range(2)] + [('m', 0), ('m', 1)]
        N = len(blocks)
        def kread(i, buf):
            k = KF[buf]
            return [('lg', f"ds_read_b64 {v(k,2)}, v{VKS} offset:{i*2560}", ('k', i)), ('lg', f"ds_read_b128 {v(k+2,4)}, v{VK} offset:{i*2560}", ('k', i)),
                    ('lg', f"ds_read_b128 {v(k+6,4)}, v{VK} offset:{i*2560+1024}", ('k', i))]
        def vread(i, hd, buf):
            return [('lg', f"ds_read_b64_tr_b16 {v(VF[buf]+4*aa+2*p,2)}, v{VV} offset:{i*3328 + (4*aa+2*p)*416 + 192*hd}", ('v', i, hd)) for aa in range(2) for p in range(2)]
        kbuf = {i: i % 2 for i in range(1, 8)}; kbuf[0] = 0; kbuf[8] = 1
        def smf(i, hd, sb):
            k = KF[kbuf[i]]; c = '0' if cz else v(CB[hd], 16)
            return [('mf', f"v_mfma_f32_32x32x16_bf16 {v(sb,16)}, {v(k+2+4*hd,4)}, {v(Q1[hd],4)}, {c}", ('k', i)),
                    ('mf', f"v_mfma_f32_32x32x16_bf16 {v(sb,16)}, {v(k,4)}, {v(Q2[hd],4)}, {v(sb,16)}", None)]
        started = [False, False]
        def pvf(i, hd, pb, vb):
            L = []
            for aa in range(2):
                c = v(OA[hd], 16) if started[hd] else '0'; started[hd] = True
                L.append(('mf', f"v_mfma_f32_32x32x16_bf16 {v(OA[hd],16)}, {v(VF[vb]+4*aa,4)}, {v(pb+4*aa,4)}, {c}", ('v', i, hd) if aa == 0 else None))
            return L
        def emit(x):
            if isinstance(x, str): A(x)
            elif x[0] == 'vm': A.vmem(x[1], x[2])
            elif x[0] == 'lg': A.lds(x[1], x[2])
            else:
                if x[2] is not None: A.wait_lg(x[2])
                A(x[1])
        def weave(mfs, fill):
            cost = lambda x: 8 if isinstance(x, str) and x.startswith("v_exp") else 4
            tot = sum(map(cost, fill)); acc = 0; k = 0
            for x in fill:
                while k < len(mfs) and acc >= tot * k / len(mfs): emit(mfs[k]); k += 1
                emit(x); acc += cost(x)
            while k < len(mfs): emit(mfs[k]); k += 1
        sbuf = lambda n: SB[n % 2]
        for x in kread(1, kbuf[1]): emit(x)
        for x in smf(1, 0, sbuf(0)): emit(x)
        for n in range(N + 1):
            mfs = []; fill = []
            if n + 1 < N:
                i, hd = blocks[n+1]
                if i == 'm': mfs += smf(0, hd, sbuf(n+1)) + smf(8, hd, SB[2])
                else: mfs += smf(i, hd, sbuf(n+1))
            pv = []
            if n >= 1:
                i, hd = blocks[n-1]
                if i == 'm': pv = pvf(0, hd, PB[(n-1) % 2], (n-1) % 2) + pvf(8, hd, PD, 2)
                else: pv = pvf(i, hd, PB[(n-1) % 2], (n-1) % 2)
            if n < N:
                i, hd = blocks[n]
                if i != 'm' and hd == 0:
                    if i < 7: fill += kread(i+1, kbuf[i+1])
                    else: fill += kread(0, kbuf[0])
                sb = sbuf(n)
                if i == 'm':
                    pre = [f"v_cndmask_b32 v{sb+r}, v{sb+r}, v{SB[2]+r}, s[{MASK+2*r}:{MASK+2*r+1}]" for r in range(16)]
                    for x in pre: emit(x)
                    for x in pv: emit(x)
                    pv = []
                    fill += vread(0, hd, n % 2) + vread(8, hd, 2)
                else:
                    fill += vread(i, hd, n % 2)
                ex = []
                for r in range(16):
                    ex.append(f"v_exp_f32 v{sb+r}, v{sb+r}")
                    if r >= 3 and r % 2 == 1: ex.append(f"v_cvt_pk_bf16_f32 v{PB[n%2]+(r-3)//2}, v{sb+r-3}, v{sb+r-2}")
                ex.append(f"v_cvt_pk_bf16_f32 v{PB[n%2]+7}, v{sb+14}, v{sb+15}")
                if i == 'm':
                    for rr in range(8):
                        ex.append(f"v_and_b32 v{PD+rr}, v{PM+rr}, v{PB[n%2]+rr}")
                        ex.append(f"v_bfi_b32 v{PB[n%2]+rr}, v{PM+rr}, 0, v{PB[n%2]+rr}")
                fill += ex
                if blocks[n] == (7, 1):
                    for x in mfs[:2]: emit(x)
                    for x in kread(8, kbuf[8]): emit(x)
                    mfs = pv + mfs[2:]; pv = []
            weave(mfs + pv, fill) if fill else [emit(x) for x in mfs + pv]
        A("s_barrier")
        self.stamp('p2.main')
        ra, rb = 48, 49
        A(f"v_rcp_f32 v{ra}, v{OA[0]+12}\nv_rcp_f32 v{rb}, v{OA[1]}")
        A(f"s_nop 0")
        def pk(dst, r, rs):
            for i in range(4): A(f"v_mul_f32 v{r+i}, v{rs}, v{r+i}")
            A(f"v_cvt_pk_bf16_f32 v{dst}, v{r}, v{r+1}\nv_cvt_pk_bf16_f32 v{dst+1}, v{r+2}, v{r+3}")
        pk(52, OA[0]+4, ra); pk(54, OA[0]+8, ra)
        A.vmem(f"buffer_store_dwordx4 {v(52,4)}, v{VO1}, {WS}, s{SL} offen {self.st}")
        pk(56, OA[1]+4, rb); pk(58, OA[1]+8, rb)
        A.vmem(f"buffer_store_dwordx4 {v(56,4)}, v{VO1}, {WS}, s{SL} offen offset:768 {self.st}")
        pk(60, OA[0], ra); pk(62, OA[1]+12, rb)
        A("s_mov_b32 exec_lo, 0")
        A.vmem(f"buffer_store_dwordx4 {v(60,4)}, v{VO3}, {WS}, s{SL} offen offset:512 {self.st}", 'out')
        A("s_mov_b32 exec_lo, -1")

    def proj(self, which):
        A = self.A
        nb = 10 if which == 3 else 27
        ACC, WF, B0 = 64, 112, 136
        SA0, SA1, SW = T[4], T[5], T[6]
        src = OO if which == 3 else HH
        for sa, m in ((SA0, S_A3), (SA1, S_A3B)):
            A(f"s_mul_i32 s{sa}, s{m}, {2*nb*1024}\ns_add_u32 s{sa}, s{sa}, s{SL}\ns_mul_i32 s{T[7]}, s{KH}, {nb*1024}\ns_add_u32 s{sa}, s{sa}, s{T[7]}\ns_add_u32 s{sa}, s{sa}, {src}")
        def aload(b):
            L = []
            if b and b % 4 == 0: L += [f"s_add_u32 s{SA0}, s{SA0}, 4096", f"s_add_u32 s{SA1}, s{SA1}, 4096"]
            for u, sa in enumerate((SA0, SA1)):
                L.append(('vm', f"buffer_load_dwordx4 {a(8*b+4*u,4)}, v{VL16}, {WS}, s{sa} offen offset:{(b&3)*1024} {self.ld}", ('a', b)))
            return L
        o = self.o
        up = o.get("up3", 6) if which == 3 else o.get("up5", 6)
        for b in range(up):
            for x in aload(b): self.emit(x)
        ntail = o.get("tail1", 0)
        jobs = [(0, b, aload(b)) for b in range(up, nb)]
        if which == 5:
            jobs += [(2*(c-6)+1, 2*c - 1.5, self.rnd(S_W5, c*20480, (c % 7)*20480, 5, ('w', c))) for c in range(7, 14)]
            jobs += [(2*(13-ntail+k)+1, 99+k, self.rnd(S_W1, k*20480, lds1(5*k), 5, 'w1')) for k in range(ntail)]
        sched = self.edf(jobs, nb, o.get("r3", 3.0) if which == 3 else o.get("r5", 3.3))
        khoff = 5120 if which == 3 else 10240
        A(f"s_mul_i32 s{T[7]}, s{KH}, {khoff}")
        for k in range(3): A(f"v_add_u32 v{B0+k}, s{T[7]}, v{[VL16, VB1, VB2][k]}")
        bases = [B0, B0+1, B0+2]
        for k in range(10):
            A(f"v_lshlrev_b32 v{ACC+2*k}, 16, v{RES+k}\nv_and_b32 v{ACC+2*k+1}, 0xffff0000, v{RES+k}")
        wl = (lambda b: lds3(b)) if which == 3 else (lambda b: ((b >> 1) % 7) * 20480 + (b & 1) * 5120)
        A.wait_vm(('a', 0)); A("s_barrier")
        self.stamp(f'p{which}.go')
        WFB = [WF, 140]
        for t in range(5): A.lds(f"ds_read_b128 {v(WF+4*t,4)}, {self.ldsaddr(wl(0) + 1024*t, bases)}", ('f', 0))
        fill = []
        for b in range(nb):
            if which == 5 and b % 2 == 1 and b >= 3:
                if b // 2 + 1 >= 7: self.need(('w', b // 2 + 1), fill)
                A("s_barrier")
            fill += sched[b]
            self.need(('a', b), fill)
            A.wait_lg(('f', b))
            if self.prof and which == 5 and o.get("in5") and b in (4, 9, 14, 19, 24): self.stamp(f'p5.b{b}')
            for t in range(5):
                for u in range(2):
                    d = ACC + 20*u + 4*t
                    A(f"v_mfma_f32_16x16x32_bf16 {v(d,4)}, {v(WFB[b&1]+4*t,4)}, {a(8*b+4*u,4)}, {'0' if (b == 0 and u == 1) else v(d,4)}")
                    k = 2*t + u
                    if k < 5 and b < nb - 1: A.lds(f"ds_read_b128 {v(WFB[(b+1)&1]+4*k,4)}, {self.ldsaddr(wl(b+1) + 1024*k, bases)}", ('f', b+1))
                    if k >= 4: self.drain(fill, 2)
        while fill: self.emit(fill.pop(0))
        self.stamp(f'p{which}.main')
        fill = []
        if which == 3:
            self.post = (S_W4, 0, 0, 39)
            self.pre = lambda: self.rnd3(S_W4, 39936, 39936, 15)
        else:
            k0 = 5*ntail
            self.post = (S_W1, k0*4096, lds1(k0), 36)
            self.pre1 = min(31, k0 + 9 + o.get("s31", 12)*3//4)
            n3 = -(-(self.pre1 - k0 - 9) * 4 // 3)
            assert lds1(k0 + 9) + 3*n3*1024 <= LDS_MISC
            self.pre = lambda: self.rnd3(S_W1, (k0+9)*4096, lds1(k0+9), n3)
        xo = XCH3 if which == 3 else XCH5
        A(f"v_add_u32 v{B0}, {xo}, v{VXW}\nv_add_u32 v{B0+1}, {xo}, v{VXR}")
        for t in range(5): A.lds(f"ds_write_b128 v{B0}, {v(ACC+20+4*t,4)} offset:{1024*t}")
        A.wait_lg0(); A("s_barrier")
        for t in range(5): A.lds(f"ds_read_b128 {v(ACC+20+4*t,4)}, v{B0+1} offset:{1024*t}", ('x', t))
        if which == 5:
            A(f"s_cmp_lg_u32 s{LAY}, 0\ns_cbranch_scc1 main_final")
            self.fin_state = (list(A.lg), ACC)
        body = []
        for t in range(5):
            body.append(('wl', ('x', t)))
            body += [f"v_add_f32 v{ACC+4*t+i}, v{ACC+4*t+i}, v{ACC+20+4*t+i}" for i in range(4)]
            body += [f"v_cvt_pk_bf16_f32 v{RES+2*t}, v{ACC+4*t}, v{ACC+4*t+1}", f"v_cvt_pk_bf16_f32 v{RES+2*t+1}, v{ACC+4*t+2}, v{ACC+4*t+3}"]
        xoff = X1 if which == 3 else LS + XA
        soff = ST3 if which == 3 else LS + STA
        A(f"s_add_u32 s{T[4]}, s{SL}, s{S_X}\ns_add_u32 s{T[4]}, s{T[4]}, {xoff}\ns_add_u32 s{T[5]}, s{T[4]}, 4096\ns_add_u32 s{T[6]}, s{SL}, s{S_STX}\ns_add_u32 s{T[6]}, s{T[6]}, {soff}")
        body.append(('vm', f"buffer_store_dwordx4 {v(RES,4)}, v{VX}, {WS}, s{T[4]} offen {self.st}", 'out'))
        body.append(('vm', f"buffer_store_dwordx4 {v(RES+4,4)}, v{VX}, {WS}, s{T[4]} offen offset:2048 {self.st}", 'out'))
        t4 = WF
        body += [f"v_mov_b32 v{t4+k}, v{RES+8+(k&1)}" for k in range(6)]
        body += [f"v_permlane32_swap_b32 v{t4+4}, v{t4+2}", f"v_permlane32_swap_b32 v{t4+5}, v{t4+3}"]
        body.append(('vm', f"s_mov_b32 exec_hi, 0\nbuffer_store_dwordx4 {v(t4,4)}, v{VX}, {WS}, s{T[5]} offen {self.st}\ns_mov_b32 exec_hi, -1", 'out'))
        s0, s1 = WF + 8, WF + 9
        body += [f"v_add_f32 v{s0}, v{ACC}, v{ACC+1}", f"v_mul_f32 v{s1}, v{ACC}, v{ACC}", f"v_fmac_f32 v{s1}, v{ACC+1}, v{ACC+1}"]
        for i in range(2, 20): body += [f"v_add_f32 v{s0}, v{s0}, v{ACC+i}", f"v_fmac_f32 v{s1}, v{ACC+i}, v{ACC+i}"]
        for sw in ("v_permlane16_swap_b32", "v_permlane32_swap_b32"):
            body += [f"v_mov_b32 v{s0+2}, v{s0}", f"v_mov_b32 v{s0+3}, v{s1}", f"{sw} v{s0}, v{s0+2}", f"{sw} v{s1}, v{s0+3}", f"v_add_f32 v{s0}, v{s0}, v{s0+2}", f"v_add_f32 v{s1}, v{s1}, v{s0+3}"]
        self.mix(body, fill, 7)
        while fill: self.emit(fill.pop(0))
        A("s_mov_b64 exec, 0xffff")
        A.vmem(f"buffer_store_dwordx2 {v(s0,2)}, v{VSX}, {WS}, s{T[6]} offen {self.st}", 'out')
        A("s_mov_b64 exec, -1")

    def final(self):
        A = self.A; t = VFREE
        A.lab("main_final")
        A.lg, ACC = self.fin_state
        for k in range(5):
            A.wait_lg(('x', k))
            for i in range(4): A(f"v_add_f32 v{ACC+4*k+i}, v{ACC+4*k+i}, v{ACC+20+4*k+i}")
            A(f"v_cvt_pk_bf16_f32 v{RES+2*k}, v{ACC+4*k}, v{ACC+4*k+1}\nv_cvt_pk_bf16_f32 v{RES+2*k+1}, v{ACC+4*k+2}, v{ACC+4*k+3}")
        A(f"s_lshl_b32 s{T[4]}, s{S_A3}, 4\ns_mul_i32 s{T[4]}, s{T[4]}, 1280\ns_mul_i32 s{T[5]}, s{CT}, 160\ns_add_u32 s{T[4]}, s{T[4]}, s{T[5]}")
        A(f"v_and_b32 v{t}, 15, v{VL}\nv_mul_u32_u24 v{t}, 1280, v{t}\nv_lshrrev_b32 v{t+1}, 4, v{VL}\nv_lshl_add_u32 v{t}, v{t+1}, 3, v{t}")
        for k in range(5): A(f"buffer_store_dwordx2 {v(RES+2*k,2)}, v{t}, {OS}, s{T[4]} offen offset:{32*k}")

    def p4(self):
        A = self.A
        ACC, WF, STD, MU, RS = 64, 176, 204, 212, 213
        bases = [VL16, VB1, VB2]
        SA, SW = T[4], T[5]
        A(f"s_add_u32 s{SA}, s{SL}, s{S_A1}\ns_add_u32 s{SA}, s{SA}, {X1}")
        self.stats_load(ST3, STD)
        o = self.o
        def aload(st_):
            L = [f"s_add_u32 s{SA}, s{SA}, 4096"] if st_ and st_ % 4 == 0 else []
            return L + [('vm', f"buffer_load_dwordx4 {a(4*st_,4)}, v{VL16}, {WS}, s{SA} offen offset:{(st_ & 3)*1024} {self.ld}", ('a', st_))]
        up = o.get("up4", 8)
        for k in range(up): [self.emit(x) for x in aload(k)]
        wr = lambda c: self.rnd(S_W4, c*28672, (c % 5)*28672, 7, ('w', c))
        w5 = lambda c: self.rnd(S_W5, c*20480, c*20480, 5, 'w5')
        jobs = [(0, k, aload(k)) for k in range(up, 40)]
        jobs += [(0 if c < 5 else 4*(c-4)+3, 4*c - 1.5, wr(c)) for c in range(3, 10)]
        jobs += [(27, 90, w5(0)), (31, 91, w5(1)), (35, 92, w5(2)), (35, 93, w5(3))]
        sched = self.edf(jobs, 40, o.get("r4", 3.0))
        sched[30] += self.stats_finish(STD, MU, RS)
        wj = []
        if o.get("warm5", 0): wj += self.warm(S_W5, 0, WP5_C, True, o.get("wl", 16))
        if o.get("warm1", 0): wj += self.warm(S_W1, 0, o.get("warm1", 0) * 1024, False, o.get("wl", 16))
        w0, w1 = o.get("warmspan", (8, 37))
        for k, L in enumerate(wj): sched[w0 + k * (w1 - w0) // len(wj)] += L
        wl = lambda st_: ((st_ >> 2) % 5) * 28672 + (st_ & 3) * 7168
        A.wait_vm(('a', 0)); A("s_barrier")
        self.stamp('p4.go')
        for t in range(7): A.lds(f"ds_read_b128 {v(WF+4*t,4)}, {self.ldsaddr(wl(0) + 1024*t, bases)}", ('f', 0, t))
        fill = []
        for st_ in range(40):
            if st_ % 4 == 3 and 7 <= st_ < 39:
                self.need(('w', st_ // 4 + 1), fill); A("s_barrier")
            fill += sched[st_]
            self.need(('a', st_), fill)
            for t in range(7):
                A.wait_lg(('f', st_, t))
                A(f"v_mfma_f32_32x32x16_bf16 {v(ACC+16*t,16)}, {v(WF+4*t,4)}, {a(4*st_,4)}, {'0' if st_ == 0 else v(ACC+16*t,16)}")
                if st_ < 39: A.lds(f"ds_read_b128 {v(WF+4*t,4)}, {self.ldsaddr(wl(st_+1) + 1024*t, bases)}", ('f', st_+1, t))
                self.drain(fill, 4 if t % 2 == 0 else 0)
        assert not fill
        A("s_barrier")
        self.stamp('p4.main')
        CSR, PK = [216, 232], 176
        A(f"v_mul_f32 v{RS}, v{RS}, v{RS}")
        A(f"s_add_u32 s{T[4]}, s{SL}, s{S_H}\ns_add_u32 s{T[4]}, s{T[4]}, {HH}\ns_mov_b32 s{T[5]}, s{T[4]}\ns_cmp_eq_u32 s{J}, 15\ns_cmov_b32 s{T[5]}, {OOB}")
        csload = lambda t: [('lg', f"ds_read_b128 {v(CSR[t&1]+4*j,4)}, v{VCS} offset:{512 + 128*t + 16*j}", ('cs', t)) for j in range(4)]
        body = csload(0)
        for t in range(7):
            if t < 6: body += csload(t + 1)
            body.append(('wl', ('cs', t)))
            r = ACC + 16*t; c = CSR[t & 1]
            body += [f"v_fma_f32 v{r+k}, v{MU}, v{c+k}, v{r+k}" for k in range(16)]
            for hf in range(2):
                g = r + 8*hf
                for i in range(4): body += [f"v_max_f32 v{g+i}, 0, v{g+i}", f"v_mul_f32 v{g+4+i}, v{RS}, v{g+4+i}"]
                body += [f"v_mul_f32 v{g+i}, v{g+i}, v{g+4+i}" for i in range(4)]
                body += [f"v_cvt_pk_bf16_f32 v{PK+4*t+2*hf}, v{g}, v{g+1}", f"v_cvt_pk_bf16_f32 v{PK+4*t+2*hf+1}, v{g+2}, v{g+3}"]
            body.append(('vm', f"buffer_store_dwordx4 {v(PK+4*t,4)}, v{VH}, {WS}, s{T[4] if t < 3 else T[5]} offen offset:{512*t} {self.st}", 'out'))
        for x in body: self.emit(x)
        self.post = (S_W5, 81920, 81920, 39)
        self.pre = lambda: self.rnd3(S_W5, 81920 + 39936, 81920 + 39936, 7)

    def gen(self):
        A = self.A
        o_big = False
        def stop(name):
            if self.stop == name: A.wait_all(); A("s_branch main_done")
        self.setup()
        self.stamp('start')
        self.p1(True)
        A.lab("main_layer")
        self.kv_sync(); stop("p1")
        self.p2()
        self.cluster_sync((S_W3, 61440, lds3(6), 40), None, 0x200); stop("p2")
        self.proj(3)
        self.cluster_sync(self.post, self.pre, 0x300); stop("p3")
        self.p4()
        self.cluster_sync(self.post, self.pre, 0x400); stop("p4")
        self.proj(5)
        self.cluster_sync(self.post, self.pre, 0x500); stop("p5")
        A(f"s_mov_b32 s{LAY}, 1\ns_add_u32 s{SL}, s{SL}, {LS}\ns_mov_b32 s{S_PB}, {64 if o_big else 32}")
        self.stamp('start')
        self.p1(False)
        A("s_branch main_layer")
        self.final()
        A.lab("main_done")
        if self.prof:
            A.wait_all()
            self.stamp('end')
            A(f"s_cmp_lg_u32 s{WV}, 0\ns_cbranch_scc1 main_end\ns_lshl_b32 s3, s2, 8\ns_add_u32 s3, s3, {PROF}\nv_lshlrev_b32 v{VFREE}, 2, v{VL}")
            A(f"buffer_store_dword v{VPROF}, v{VFREE}, {WS}, s3 offen\ns_add_u32 s3, s3, 0x10000\nbuffer_store_dword v{VPROF+1}, v{VFREE}, {WS}, s3 offen")
        A.lab("main_end")
        A("s_endpgm")

def gen_main(A, opts):
    m = Main(A, opts); m.gen()
    assert len(m.names) <= 32, len(m.names)
    if m.names: A.L.insert(0, Ins(f"; stamps {opts.get('mx', 256)} " + " ".join(m.names)))
```

```python
S, D, F, H, DH, W = 2048, 640, 1728, 32, 20, 256
CNT = 0x0000
KVF = 0x2000
CG = 0x1000
PK3 = 0x1800
PK5 = 0x1C00
PK4 = 0xA000
FLAG_BYTES = 0x10000
CSP1 = 0x10000
CSP4 = 0x20000
PROF = 0x40000
WP1 = 0x100000;  WP1_J = 163840
WP3 = WP1 + 16 * WP1_J; WP3_C = 102400
WP4 = WP3 + 8 * WP3_C;  WP4_J = 286720
WP5 = WP4 + 16 * WP4_J; WP5_C = 286720
WEND = WP5 + 8 * WP5_C
LB = 0x1000000
assert WEND + 65536 < LB
XA = 0
X1 = XA + 2621440
OO = X1 + 2621440
HH = OO + 2621440
KV = HH + 128 * 54 * 1024; KV_WG = 23552
ST3 = KV + 256 * KV_WG
STA = ST3 + 131072
LS = 0x1500000
assert STA + 131072 <= LS
WS_USED = LB + 2 * LS

P4_GROUPS = [(0, 7)]

def cg32(u, h, p):
    return 8 * (u >> 1) + 2 * (u & 1) + h + (4 if u < 4 else 2) * p
def k32(s, h, e):
    return 80 * (s // 5) + 4 * cg32(s % 5, h, e >> 2) + (e & 3)
def col1(hp, t, n):
    cg = 8 * t + (n >> 2); i = n & 3
    if cg < 10: return 640 + 40 * hp + 4 * cg + i
    if cg < 20: return 1280 + 40 * hp + 4 * (cg - 10) + i
    if cg < 30: return 40 * hp + 4 * (cg - 20) + i
    return None
def col4(T, n):
    sg = n >> 2; j = sg >> 1; hh = sg & 1
    return (j & 1, 16 * T + 4 * (2 * hh + (j >> 1)) + (n & 3))
def off4(s, t):
    for t0, nt in P4_GROUPS:
        if t0 <= t < t0 + nt: return (40 * t0 + s * nt + (t - t0)) * 1024
VPOS = {('a', 4): 0, ('a', 0): 1, ('a', 2): 2, ('a', 1): 3, ('a', 3): 4,
        ('b', 1): 7, ('b', 3): 8, ('b', 2): 9, ('b', 4): 10, ('b', 0): 12}

def pos3(b):
    kh = b // 10; return 2 * (b - 10 * kh) + kh
def pos5(b):
    kh = b // 27; bl = b - 27 * kh; return 4 * (bl >> 1) + 2 * kh + (bl & 1)
```

```python
from asmlib import *
from layout import *
from pack import srd, sel, OOB, frag32_steps
import math

WS = "s[4:7]"; XS = "s[8:11]"; OS = "s[12:15]"; DS_ = "s[16:19]"
MB, J, WV, LAY, RH, CT, RR, KH = 20, 21, 22, 23, 24, 25, 26, 27
SL = 40
TGT = 41
S_A1 = 42
S_ST1 = 43
S_KVO = 44
S_A3 = 45
S_A3B = 46
S_X = 47
S_STX = 48
S_W1, S_W3, S_W4, S_W5 = 49, 50, 51, 52
S_H = 53
S_PB = 54
S_WI = 55
S_U = 98
GUS = "s[56:59]"; WDS = "s[60:63]"
MASK = 64
T = [28, 29, 30, 31, 32, 33, 34, 35, 36, 37]

VL, VL16, VST, RES = 1, 2, 3, 4
VO1, VO2, VO3, VX, VSX, VH, VCNT, VCS, VK, VKS, VV, VW2, VW12, VW1, VXW, VXR, VB1, VB2 = range(14, 32)
PM = 32
VPROF = 40
VTG, VDUM = 42, 43
VFREE = 44

LDS_MISC = 147456
CS1 = LDS_MISC; CS4 = LDS_MISC + 512
KREG = 36864; VREG = KREG + 12 * 2560
XCH3 = 86016; XCH5 = 0
STG4 = 107520; STG5 = 128000; STG3 = LDS_MISC + 2048
QSCALE = math.log2(math.e) / math.sqrt(20.0)

def lds1(st): return ((st + 5) % 36) * 4096 if st < 36 else (st - 31) * 4096
def lds3(bl): return bl * 10240 if bl < 3 else (107520 + (bl - 3) * 10240 if bl < 6 else KREG + (bl - 6) * 10240)
def fhex(x):
    import struct
    return hex(struct.unpack("<I", struct.pack("<f", x))[0])

def qmap_step(x):
    import re
    m = re.match(r"ds_read_b64 a\[(\d+):", x[1])
    return int(m.group(1)) // 4 if m else 999

class Main:
    def __init__(self, A, opts):
        self.A = A; self.o = opts
        self.prof = opts.get("prof", 0); self.names = []; self.rare = []
        self.stop = opts.get("stop", None)
        self.fused = opts.get("fused", 1)
        self.kname = opts.get("kname", "main_kernel")
        self.ld = "sc1"; self.st = "sc1"; self.stkv = "sc1"

    def stamp(self, name):
        if not self.prof or name.endswith(tuple(self.o.get("nostamp", ()))) and self.o.get("nostamp"): return
        A = self.A
        if name not in self.names: self.names.append(name)
        idx = self.names.index(name)
        A(f"s_memrealtime s[38:39]\ns_memtime s[96:97]\ns_waitcnt lgkmcnt(0)\ns_add_u32 m0, s{S_PB}, {idx}\nv_writelane_b32 v{VPROF}, s38, m0\nv_writelane_b32 v{VPROF+1}, s96, m0")
        A.lg = []

    def ldsaddr(self, off, bases):
        b = off >> 16
        return f"v{bases[b]} offset:{off & 0xffff}"

    def emit(self, x):
        if isinstance(x, tuple):
            if x[0] == 'vm': self.A.vmem(x[1], x[2])
            elif x[0] == 'lg': self.A.lds(x[1], x[2])
            elif x[0] == 'wv': self.A.wait_vm(x[1])
            elif x[0] == 'wl': self.A.wait_lg(x[1])
        else: self.A(x)

    def drain(self, fill, n):
        vm = 0
        while fill and n > 0:
            isvm = isinstance(fill[0], tuple) and fill[0][0] == 'vm'
            if isvm and vm: break
            vm += isvm
            self.emit(fill.pop(0)); n -= 1

    def need(self, tag, fill):
        while any(isinstance(x, tuple) and x[0] == 'vm' and x[2] == tag for x in fill): self.emit(fill.pop(0))
        self.A.wait_vm(tag)

    def rnd(self, sbase, goff, loff, kb, tag):
        L = [f"s_mul_i32 s{T[8]}, s{WV}, {kb*1024}", f"s_add_u32 s{T[9]}, s{T[8]}, s{sbase}", f"s_add_u32 s{T[9]}, s{T[9]}, {goff}", f"s_add_u32 m0, s{T[8]}, {loff}"]
        for i in range(kb):
            if i and i % 4 == 0: L += [f"s_add_u32 s{T[9]}, s{T[9]}, 4096", "s_add_u32 m0, m0, 4096"]
            L.append(('vm', f"buffer_load_dwordx4 v{VL16}, {WS}, s{T[9]} offen offset:{1024*(i&3)} lds", tag))
        return L

    def rnd3(self, sbase, goff, loff, kb):
        A = self.A
        A(f"s_mul_i32 s{T[8]}, s{S_WI}, {kb*1024}\ns_add_u32 s{T[9]}, s{T[8]}, s{sbase}\ns_add_u32 s{T[9]}, s{T[9]}, {goff}\ns_add_u32 m0, s{T[8]}, {loff}")
        for i in range(kb):
            if i and i % 4 == 0: A(f"s_add_u32 s{T[9]}, s{T[9]}, 4096\ns_add_u32 m0, m0, 4096")
            A(f"buffer_load_dwordx4 v{VL16}, {WS}, s{T[9]} offen offset:{1024*(i&3)} lds")

    def edf(self, jobs, nsteps, rate, credit=0.0):
        units = []
        for rel, dl, L in jobs:
            cur = []
            for x in L:
                cur.append(x)
                if isinstance(x, tuple) and x[0] == 'vm': units.append([rel, dl, cur, id(L)]); cur = []
            if cur: units[-1][2] += cur
        sched = {k: [] for k in range(nsteps)}
        busy = None
        for st_ in range(nsteps):
            credit += rate
            while credit >= 1 and units:
                cand = [u for u in units if u[0] <= st_]
                if busy is not None: cand = [u for u in cand if u[3] == busy or 'lds' not in u[2][-1 if isinstance(u[2][-1], tuple) else -2][1]]
                if not cand: credit = min(credit, 1.0); break
                u = min(cand, key=lambda u: u[1])
                units.remove(u); sched[st_] += u[2]; credit -= 1
                isdma = any(isinstance(x, tuple) and x[1].endswith('lds') for x in u[2])
                if isdma: busy = u[3] if any(w[3] == u[3] for w in units) else None
        assert not units, f"{len(units)} loads left"
        return sched

    def drain_post(self, post, extra=0):
        A = self.A
        if not post:
            A.wait_all(); return
        N = A.newlab("p0"); E = A.newlab("pe")
        kb = -(-post[3] // 3)
        A(f"s_cmp_eq_u32 s{WV}, 0\ns_cbranch_scc1 {N}")
        self.rnd3(post[0], post[1], post[2], kb)
        A(f"s_waitcnt vmcnt({kb + extra}) lgkmcnt(0)\ns_branch {E}")
        A.lab(N); A(f"s_waitcnt vmcnt({extra}) lgkmcnt(0)"); A.lab(E)
        A.vm = []; A.lg = []

    def mix(self, body, fill, every):
        for k, x in enumerate(body):
            self.emit(x)
            if (k + 1) % every == 0: self.drain(fill, 5)

    def spin(self, addr, tgt, code, srd_=WS):
        A = self.A; L = A.newlab("poll"); D = A.newlab("pdone"); t = 254
        ld = lambda r: f"buffer_load_dword v{r}, v{addr}, {srd_}, 0 offen sc1"
        A(f"s_mov_b32 s{T[2]}, 20000\n" + ld(t))
        A.lab(L)
        for r in (t + 1, t):
            A(f"s_sleep {self.o.get('psleep', 3)}\n" + ld(r) + f"\ns_waitcnt vmcnt(1)\nv_cmp_gt_u32 vcc, {tgt}, v{2*t + 1 - r}\ns_cbranch_vccz {D}")
        A(f"s_sub_u32 s{T[2]}, s{T[2]}, 1\ns_cmp_lg_u32 s{T[2]}, 0\ns_cbranch_scc1 {L}")
        A(f"s_waitcnt vmcnt(0)\nv_mov_b32 v{t}, {code}\nv_mov_b32 v{t+1}, 128\nbuffer_store_dword v{t}, v{t+1}, {DS_}, 0 offen")
        A.lab(D)

    def cluster_sync(self, post, pre, code):
        A = self.A; N = A.newlab("nw0"); E = A.newlab("syn")
        self.stamp(f'p{code>>8}.epi')
        self.drain_post(post); A("s_barrier")
        self.stamp(f'p{code>>8}.drain')
        A(f"s_add_u32 s{TGT}, s{TGT}, 16\ns_cmp_lg_u32 s{WV}, 0\ns_cbranch_scc1 {N}")
        A(f"s_mov_b64 exec, 1\nv_mov_b32 v{VFREE+3}, 1\nbuffer_atomic_add v{VFREE+3}, v{VCNT}, {WS}, 0 offen sc1\nv_mov_b32 v{VTG}, s{TGT}")
        if code == 0x200: A("s_mov_b64 exec, 31")
        self.spin(VCNT, f'v{VTG}', code)
        A(f"s_mov_b64 exec, -1")
        self.stamp(f'p{code>>8}.poll')
        A(f"s_branch {E}")
        A.lab(N)
        if pre: pre()
        A.lab(E)
        A("s_barrier")
        self.stamp(f'p{code>>8}.bar')

    def setup(self):
        A = self.A
        A.lab(self.kname)
        A("s_cmp_ge_u32 s2, 256\ns_cbranch_scc1 main_end")
        A("s_load_dwordx2 s[28:29], s[0:1], 0\ns_load_dwordx4 s[32:35], s[0:1], 56\ns_load_dwordx2 s[30:31], s[0:1], 72")
        if self.fused: A("s_load_dwordx4 s[80:83], s[0:1], 8\ns_load_dwordx4 s[84:87], s[0:1], 32\ns_load_dwordx2 s[88:89], s[0:1], 48")
        A(f"v_and_b32 v{VL}, 63, v0\nv_lshrrev_b32 v2, 6, v0\ns_nop 0\nv_readfirstlane_b32 s{WV}, v2\nv_lshlrev_b32 v{VL16}, 4, v{VL}")
        mx = self.o.get("mx", 256)
        if mx == 256:
            A(f"s_and_b32 s{MB}, s2, 7\ns_lshl_b32 s{MB}, s{MB}, 1\ns_lshr_b32 s3, s2, 7\ns_add_u32 s{MB}, s{MB}, s3\ns_bfe_u32 s{J}, s2, 0x40003")
        elif mx == 512:
            A(f"s_bfe_u32 s{MB}, s2, 0x20001\ns_lshl_b32 s{MB}, s{MB}, 2\ns_lshr_b32 s3, s2, 6\ns_add_u32 s{MB}, s{MB}, s3")
            A(f"s_and_b32 s{J}, s2, 1\ns_lshl_b32 s{J}, s{J}, 3\ns_bfe_u32 s3, s2, 0x30003\ns_add_u32 s{J}, s{J}, s3")
        elif mx == 1024:
            A(f"s_bfe_u32 s{MB}, s2, 0x10002\ns_lshl_b32 s{MB}, s{MB}, 3\ns_lshr_b32 s3, s2, 5\ns_add_u32 s{MB}, s{MB}, s3")
            A(f"s_and_b32 s{J}, s2, 3\ns_lshl_b32 s{J}, s{J}, 2\ns_bfe_u32 s3, s2, 0x20003\ns_add_u32 s{J}, s{J}, s3")
        A(f"s_and_b32 s{RH}, s{J}, 1\ns_lshr_b32 s{CT}, s{J}, 1\ns_lshr_b32 s{RR}, s{WV}, 1\ns_and_b32 s{KH}, s{WV}, 1\ns_sub_u32 s{S_WI}, s{WV}, 1")
        A(f"s_mov_b32 s{LAY}, 0\ns_mov_b32 s{SL}, {LB}\ns_mov_b32 s{TGT}, 0\ns_mov_b32 s{S_PB}, 0")
        A(f"s_lshl_b32 s3, s{MB}, 2\ns_add_u32 s3, s3, s{WV}\ns_mul_i32 s{S_A1}, s3, 40960\ns_lshl_b32 s{S_ST1}, s3, 11")
        A(f"s_mul_i32 s{S_H}, s3, {2*54*1024}\ns_mul_i32 s3, s{J}, {7*512}\ns_add_u32 s{S_H}, s{S_H}, s3")
        A(f"s_mul_i32 s{S_W1}, s{J}, {WP1_J}\ns_add_u32 s{S_W1}, s{S_W1}, {WP1}\ns_mul_i32 s{S_W4}, s{J}, {WP4_J}\ns_add_u32 s{S_W4}, s{S_W4}, {WP4}")
        A(f"s_mul_i32 s{S_W3}, s{CT}, {WP3_C}\ns_add_u32 s{S_W3}, s{S_W3}, {WP3}\ns_mul_i32 s{S_W5}, s{CT}, {WP5_C}\ns_add_u32 s{S_W5}, s{S_W5}, {WP5}")
        A("s_waitcnt lgkmcnt(0)")
        srd(A, 4, 30, WS_USED); srd(A, 8, 28, 2048*640*2); srd(A, 16, 34, 256)

    def p1_first(self):
        A = self.A; o = self.o; st = "sc1"
        QS = "s[68:71]"; WOS = "s[64:67]"
        ACC, WF, GR, ONE, MU, RS = 64, 128, 176, 148, 152, 153
        VXS, VAX, TMP, VU1, VU3, VZ = 209, 213, 246, 214, 215, 216
        r, c, G = 44, 45, 46
        AB = 81920
        srd(A, 68, 80, 640*1920*2); srd(A, 64, 82, 640*640*2); srd(A, 60, 88, 1728*640*2); srd(A, 12, 32, 2048*640*2)
        A(f"s_cmp_lt_u32 s{WV}, 2\ns_cselect_b32 s56, s84, s86\ns_cselect_b32 s57, s85, s87\ns_mov_b32 s58, {640*1728*2}\ns_mov_b32 s59, 0x20000")
        A(f"s_lshl_b32 s{S_U}, s{MB}, 4\ns_add_u32 s{S_U}, s{S_U}, s{J}")
        NZ = A.newlab("nz"); NZ2 = A.newlab("nz")
        A(f"s_cmp_lg_u32 s2, 0\ns_cbranch_scc1 {NZ}\ns_cmp_lg_u32 s{WV}, 3\ns_cbranch_scc1 {NZ}")
        A(f"v_lshlrev_b32 v56, 7, v{VL}\nv_mov_b32 v57, 0")
        for k in range(6): A(f"s_mov_b32 s3, {8192*k}\nbuffer_store_dword v57, v56, {WS}, s3 offen sc1")
        A.lab(NZ)
        A(f"v_and_b32 v51, 7, v{VL}\nv_lshrrev_b32 v52, 3, v{VL}\ns_and_b32 s34, s{MB}, 1\ns_lshr_b32 s35, s{MB}, 1")
        A("s_cmp_eq_u32 s34, 0\ns_cselect_b32 s31, 5, 2"); sel(A, 32, 1280, 2608); sel(A, 33, 2480, -32); sel(A, 36, -1, 0x7f7f7f7f)
        A("v_mov_b32 v53, s32\nv_mov_b32 v54, s33\nv_cmp_gt_u32 vcc, s31, v51\nv_cndmask_b32 v53, v54, v53, vcc\nv_lshl_add_u32 v53, v51, 4, v53\nv_mul_u32_u24 v54, 3840, v52\nv_add_u32 v53, v53, v54")
        A(f"s_mul_i32 s31, s35, 80*3840\ns_mul_i32 s32, s{J}, 80\ns_add_u32 s31, s31, s32\ns_mov_b32 exec_lo, s36\ns_mov_b32 exec_hi, s36")
        for n in range(3):
            A(f"s_add_u32 s32, s{WV}, {4*n}\ns_min_u32 s32, s32, 9\ns_lshl_b32 m0, s32, 10\ns_mul_i32 s32, s32, 8*3840\ns_add_u32 s32, s32, s31")
            A.vmem(f"buffer_load_dwordx4 v53, {QS}, s32 offen lds", 'u')
        A("s_mov_b64 exec, -1")
        A(f"s_lshr_b32 s99, s{S_U}, 3\ns_and_b32 s100, s{S_U}, 7\ns_mul_i32 s30, s99, 32*1280\ns_mul_i32 s31, s100, 160\ns_add_u32 s30, s30, s31\ns_cmp_ge_u32 s{S_U}, 160\ns_cmov_b32 s30, {OOB}")
        for n in range(2):
            A(f"s_add_u32 s31, s{WV}, {4*n}\ns_min_u32 s31, s31, 4\ns_lshl_b32 s3, s31, 6\nv_add_u32 v54, s3, v{VL}\nv_mul_u32_u24 v55, 6554, v54\nv_lshrrev_b32 v55, 16, v55\nv_mul_u32_u24 v56, 10, v55\nv_sub_u32 v56, v54, v56")
            A(f"v_mul_u32_u24 v55, 1280, v55\nv_lshl_add_u32 v55, v56, 4, v55\ns_lshl_b32 s31, s31, 10\ns_add_u32 m0, s31, {STG3}")
            A.vmem(f"buffer_load_dwordx4 v55, {WOS}, s30 offen lds", 'u')
        A(f"v_lshrrev_b32 v{G}, 4, v{VL}\nv_and_b32 v48, 15, v{VL}")
        for n in range(4):
            A(f"v_add_u32 v49, {4*n}, v{G}\nv_xor_b32 v50, v48, v49\nv_mul_u32_u24 v49, 1280, v49\nv_lshl_add_u32 v{VXS+n}, v50, 4, v49")
        SX, SXL = T[0], T[1]
        A(f"s_lshl_b32 s3, s{MB}, 2\ns_add_u32 s3, s3, s{WV}\ns_mul_i32 s{SX}, s3, 32*1280\ns_lshl_b32 s{SXL}, s{WV}, 14\ns_add_u32 s{SXL}, s{SXL}, {AB}")
        def xjob(ch):
            for n in range(8):
                if n % 4 == 0: A(f"s_add_u32 s{T[9]}, s{SX}, {ch*256 + (n >> 2)*16*1280}")
                A(f"s_add_u32 m0, s{SXL}, {(ch & 1)*8192 + n*1024}")
                A.vmem(f"buffer_load_dwordx4 v{VXS + (n & 3)}, {XS}, s{T[9]} offen lds", ('x', ch))
        xjob(0)
        if o.get("x1early", 1): xjob(1)
        A(f"s_cmp_lg_u32 s2, 0\ns_cbranch_scc1 {NZ2}\ns_cmp_lg_u32 s{WV}, 3\ns_cbranch_scc1 {NZ2}")
        A(f"s_waitcnt vmcnt({len(A.vm)})\ns_mov_b64 exec, 1\nv_mov_b32 v56, 0\nv_mov_b32 v55, 1\nbuffer_store_dword v55, v56, {DS_}, 0 offen sc1\ns_mov_b64 exec, -1")
        A.lab(NZ2)
        for i in range(4): A(f"v_mov_b32 v{ONE+i}, 0x3f803f80")
        NP = A.newlab("np")
        A(f"s_cmp_eq_u32 s34, 0\ns_cbranch_scc1 {NP}\nv_lshlrev_b32 v48, 7, v0\nv_cmp_gt_u32 vcc, 80, v0\ns_and_saveexec_b64 s[36:37], vcc\ns_cbranch_execz {NP}a\nds_write_b128 v48, {v(ONE,4)} offset:112")
        A.lab(NP + "a"); A("s_mov_b64 exec, s[36:37]"); A.lab(NP)
        A(f"v_bfe_u32 v{r}, v{VL}, 2, 2\nv_and_b32 v{c}, 3, v{VL}\nv_lshrrev_b32 v48, 1, v{G}\nv_lshl_add_u32 v48, v48, 2, v{r}\nv_lshlrev_b32 v48, 7, v48\nv_and_b32 v49, 1, v{G}\nv_lshl_add_u32 v49, v49, 2, v{c}\nv_lshl_add_u32 v48, v49, 3, v48\ns_lshl_b32 s3, s{WV}, 6\nv_add_u32 v{VU1}, s3, v48")
        A(f"v_and_b32 v48, 31, v{VL}\nv_and_b32 v49, 15, v{VL}\nv_lshlrev_b32 v{VAX}, 8, v48\nv_lshl_add_u32 v{VAX}, v49, 4, v{VAX}\nv_lshrrev_b32 v49, 5, v{VL}\nv_lshl_add_u32 v{VAX}, v49, 3, v{VAX}\nv_add_u32 v{VAX}, s{SXL}, v{VAX}")
        A(f"v_lshl_add_u32 v{VU3}, v{G}, 3, v{r}\nv_mul_u32_u24 v{VU3}, 160, v{VU3}\nv_lshl_add_u32 v{VU3}, v{c}, 3, v{VU3}\nv_add_u32 v{VU3}, {STG3}, v{VU3}\nv_mov_b32 v{VZ}, 0\nv_lshlrev_b32 v{VZ+1}, 7, v0")
        A.wait_vm('u'); A.wait_lg0(); A("s_barrier")
        self.stamp('s.u')
        if not o.get("x1early", 1): xjob(1)
        HI = A.newlab("hi"); DN = A.newlab("dn"); keep = list(A.vm)
        A(f"s_cmp_ge_u32 s{WV}, 2\ns_cbranch_scc1 {HI}")
        A(f"s_lshl_b32 s32, s34, 1\ns_add_u32 s32, s32, s{WV}\ns_mul_i32 s33, s35, 5*4096\ns_add_u32 s33, s33, s{S_W1}\ns_lshl_b32 s3, s32, 10\ns_add_u32 s80, s33, s3")
        for u in range(1, 5): A(f"s_add_u32 s{80+u}, s80, {u*4096}")
        A(f"s_lshl_b32 s33, s{J}, 2\ns_add_u32 s33, s33, s32\ns_lshl_b32 s33, s33, 3\ns_add_u32 s33, s33, s35\ns_lshl_b32 s33, s33, 7\ns_add_u32 s33, s33, {CSP1}")
        frag32_steps(A, VU1, VL16, lambda u: (f"s{80+u}", 0), "s33", WS, 64, 88, ONE, st)
        A(f"s_branch {DN}")
        A.lab(HI)
        A(f"s_cmp_lg_u32 s{WV}, 2\ns_cbranch_scc1 {DN}")
        A(f"s_cmp_ge_u32 s99, 10\ns_cselect_b32 s30, 1, 0\ns_cselect_b32 s31, 10, 0\ns_sub_u32 s31, s99, s31\ns_lshl_b32 s31, s31, 1\ns_add_u32 s31, s31, s30\ns_mul_i32 s31, s31, 5120")
        A(f"s_mul_i32 s30, s100, {WP3_C}\ns_add_u32 s30, s30, s31\ns_add_u32 s30, s30, {WP3}\ns_cmp_ge_u32 s{S_U}, 160\ns_cmov_b32 s30, {OOB}\ns_add_u32 s31, s30, 4096")
        for t in range(5):
            for p in range(2): A(f"ds_read_b64_tr_b16 {v(64+4*t+2*p,2)}, v{VU3} offset:{p*640 + t*32}")
        A("s_waitcnt lgkmcnt(0)")
        for t in range(5): A(f"buffer_store_dwordx4 {v(64+4*t,4)}, v{VL16}, {WS}, {'s30' if t < 4 else 's31'} offen offset:{(t&3)*1024} {st}")
        A.lab(DN)
        A.vm = keep; A.lg = []
        A.vmem(f"s_lshl_b32 s3, s{WV}, 8\ns_mov_b64 exec, 1\nbuffer_load_dword v47, v{VZ}, {DS_}, s3 offen sc1\ns_mov_b64 exec, -1", 'dbg')
        self.stamp('s.st')
        qmap = {}
        for st_ in range(40):
            for p in range(2): qmap[10*(st_//5) + cg32(st_ % 5, 0, p)//2] = (st_, p)
        done = set(); gram = [0]
        def xreads(ch):
            A.wait_vm(('x', ch))
            for k, q in enumerate(range(16*ch, 16*ch + 16)):
                st_, p = qmap[q]; done.add((st_, p))
                A(f"v_xor_b32 v{TMP+(k&1)}, {k*16}, v{VAX}")
                A.lds(f"ds_read_b64 {a(4*st_+2*p,2)}, v{TMP+(k&1)} offset:{(ch & 1)*8192}")
            A.wait_lg0()
        def grams():
            while gram[0] < 40 and (gram[0], 0) in done and (gram[0], 1) in done:
                k = gram[0]; gram[0] += 1
                A(f"v_mfma_f32_32x32x16_bf16 {v(GR,16)}, {a(4*k,4)}, {a(4*k,4)}, {'0' if k == 0 else v(GR,16)}")
        xreads(0); xjob(2); xreads(1); xjob(3)
        A.wait_vm('dbg'); A("s_barrier")
        self.stamp('s.drain')
        W1_ = A.newlab("w"); OKI = A.newlab("oki")
        A(f"s_cmp_lg_u32 s{WV}, 0\ns_cbranch_scc1 {W1_}\ns_mov_b64 exec, 1\nv_cmp_gt_u32 vcc, 1, v47\ns_cbranch_vccz {OKI}")
        self.spin(VZ, "1", 0x10, DS_)
        A.lab(OKI)
        A(f"s_lshl_b32 s32, s{J}, 7\ns_add_u32 s32, s32, {CG}\nv_mov_b32 v48, s32\ns_and_b32 s32, s{S_U}, 7\ns_lshl_b32 s32, s32, 7\ns_add_u32 s32, s32, {PK3}\nv_writelane_b32 v48, s32, 1")
        A(f"s_cmp_lt_u32 s{S_U}, 160\ns_cselect_b32 exec_lo, 3, 1\nv_mov_b32 v51, 1\nbuffer_atomic_add v51, v48, {WS}, 0 offen sc1\ns_mov_b64 exec, -1")
        A.lab(W1_)
        grams(); self.setup2()
        xreads(2); xjob(4); grams(); xreads(3); grams(); xreads(4); grams()
        self.stamp('s.x')
        W2_ = A.newlab("w")
        A(f"s_cmp_lg_u32 s{WV}, 0\ns_cbranch_scc1 {W2_}")
        A(f"s_lshl_b32 s32, s{J}, 7\ns_add_u32 s32, s32, {CG}\nv_mov_b32 v48, s32\ns_lshl_b32 s32, s{CT}, 7\ns_add_u32 s32, s32, {PK3}\nv_writelane_b32 v48, s32, 1\nv_mov_b32 v50, 16\nv_writelane_b32 v50, 20, 1\ns_mov_b64 exec, 3")
        self.spin(48, "v50", 0x20)
        A("s_mov_b64 exec, -1")
        A.lab(W2_)
        A("s_barrier")
        self.stamp('s.poll')
        bases = [VL16, VB1, VB2]
        slot = lambda k: (k % 24) * 4096
        wgrp = lambda g: self.rnd(S_W1, g*16384, slot(4*g), 4, ('w', g))
        up = o.get("up1a", 3)
        for g in range(up): [self.emit(x) for x in wgrp(g)]
        for k in range(1, 16): A(f"v_cndmask_b32 v{GR}, v{GR}, v{GR+k}, s[{MASK+2*k}:{MASK+2*k+1}]")
        A(f"v_mov_b32 v{GR+1}, v{GR}\nv_mov_b32 v{GR+2}, v{GR}\nv_permlane32_swap_b32 v{GR+1}, v{GR+2}\nv_bfe_u32 v48, v{VL}, 2, 1\nv_cmp_eq_u32 vcc, 0, v48\nv_cndmask_b32 v{GR}, v{GR+2}, v{GR+1}, vcc\nv_mul_f32 v{GR}, {fhex(1.0/640)}, v{GR}")
        spre, j4, j5 = self.stage_jobs()
        for x in spre: self.emit(x)
        CP = 192
        A(f"v_and_b32 v48, 127, v0\nv_lshrrev_b32 v49, 5, v48\nv_and_b32 v50, 31, v48\nv_lshlrev_b32 v50, 2, v50\nv_lshl_add_u32 v{CP+8}, v49, 10, v50\nv_lshlrev_b32 v{CP+9}, 2, v48\nv_add_u32 v{CP+9}, {CS1}, v{CP+9}\ns_lshl_b32 s{T[4]}, s{J}, 12\ns_add_u32 s{T[4]}, s{T[4]}, {CSP1}")
        jobs = [(0 if g < 6 else 4*(g-6)+7, 4*g - 1.5, wgrp(g)) for g in range(up, 10)]
        jobs += [(o.get("stgat", 2), 45, j4), (o.get("stgat", 2), 46, j5)]
        jobs += [(4, 47 + k, [('vm', f"buffer_load_dword v{CP+k}, v{CP+8}, {WS}, s{T[4]} offen offset:{128*k} sc1", 'cp')]) for k in range(8)]
        if o.get("codepf", 1):
            A(f"s_getpc_b64 s[32:33]\nmain_pc:\ns_sub_u32 s28, s32, main_pc - {self.kname}\ns_subb_u32 s29, s33, 0\ns_mov_b32 s30, main_last - {self.kname}\ns_mov_b32 s31, 0x20000\ns_lshl_b32 s{T[4]}, s{J}, 12\ns_add_u32 s{T[4]}, s{T[4]}, {CSP1}")
            jobs += [(1, 44, [('vm', f"buffer_load_dword v{VDUM}, v{VZ+1}, s[28:31], 0 offen", 'c')]), (3, 44.5, [('vm', f"s_mov_b32 s3, 32768\nbuffer_load_dword v{VDUM}, v{VZ+1}, s[28:31], s3 offen", 'c')])]
        sched = self.edf(jobs, 40, o.get("r1a", 1.8))
        sched[34] += [('wv', 'cp')] + [f"v_add_f32 v{CP}, v{CP}, v{CP+k}" for k in range(1, 8)] + [('lg', f"ds_write_b32 v{CP+9}, v{CP}", 'csw')]
        A.wait_vm(('w', 0)); A("s_barrier")
        self.stamp('p1.go')
        for t in range(4): A.lds(f"ds_read_b128 {v(WF+4*t,4)}, {self.ldsaddr(slot(0) + 1024*t, bases)}", ('f', 0, t))
        fill = []
        for st_ in range(40):
            if st_ % 4 == 3 and st_ < 39:
                self.need(('w', st_ // 4 + 1), fill); A("s_barrier")
            fill += sched[st_]
            for t in range(4):
                A.wait_lg(('f', st_, t))
                A(f"v_mfma_f32_32x32x16_bf16 {v(ACC+16*t,16)}, {v(WF+4*t,4)}, {a(4*st_,4)}, {'0' if st_ == 0 else v(ACC+16*t,16)}")
                if st_ < 39: A.lds(f"ds_read_b128 {v(WF+4*t,4)}, {self.ldsaddr(slot(st_+1) + 1024*t, bases)}", ('f', st_+1, t))
                self.drain(fill, 4)
        assert not fill
        A.wait_lg0(); A("s_barrier")
        A(f"v_mul_f32 v{MU}, {fhex(-1.0/640)}, v{ACC+60}\nv_fma_f32 v{GR}, -v{MU}, v{MU}, v{GR}\nv_max_f32 v{GR}, 0, v{GR}\nv_add_f32 v{GR}, 0x3727c5ac, v{GR}\nv_rsq_f32 v{RS}, v{GR}")
        self.stamp('p1.main')
        self.p1_epilogue(ACC, MU, RS)

    def stage_jobs(self):
        t = 156
        pre = [f"v_and_b32 v{t+4}, 7, v{VL}", f"v_lshrrev_b32 v{t+5}, 3, v{VL}", f"v_mul_u32_u24 v{t}, 3456, v{t+5}", f"v_lshl_add_u32 v{t}, v{t+4}, 4, v{t}",
               f"s_and_b32 s99, s{S_U}, 7", "s_mul_i32 s99, s99, 80", f"s_mul_i32 s100, s{KH}, 40", "s_add_u32 s99, s99, s100", "s_mul_i32 s99, s99, 3456",
               f"s_lshr_b32 s100, s{S_U}, 3", "s_lshl_b32 s100, s100, 7", "s_add_u32 s99, s99, s100",
               f"s_lshr_b32 s100, s{S_U}, 2", "s_mul_i32 s100, s100, 32*1280", f"s_and_b32 s101, s{S_U}, 3", "s_mul_i32 s101, s101, 320", "s_add_u32 s100, s100, s101",
               f"s_cmp_ge_u32 s{S_U}, 216\ns_cmov_b32 s99, {OOB}\ns_cmov_b32 s100, {OOB}"]
        for n in range(3):
            pre += [f"s_add_u32 s101, s{WV}, {4*n}", "s_min_u32 s101, s101, 9", "s_lshl_b32 s101, s101, 6", f"v_add_u32 v{t+4}, s101, v{VL}", f"v_mul_u32_u24 v{t+5}, 3277, v{t+4}", f"v_lshrrev_b32 v{t+5}, 16, v{t+5}",
                    f"v_mul_u32_u24 v{t+6}, 20, v{t+5}", f"v_sub_u32 v{t+6}, v{t+4}, v{t+6}", f"v_mul_u32_u24 v{t+5}, 1280, v{t+5}", f"v_lshl_add_u32 v{t+1+n}, v{t+6}, 4, v{t+5}"]
        j4 = [f"s_mul_i32 s{T[8]}, s{WV}, 5120"]
        for n in range(5):
            j4 += [f"s_add_u32 m0, s{T[8]}, {STG4 + n*1024}", ('vm', f"buffer_load_dwordx4 v{t}, {GUS}, s99 offen lds", 'stg'), f"s_add_u32 s99, s99, {8*3456}"]
        j5 = []
        for n in range(3):
            j5 += [f"s_add_u32 s{T[8]}, s{WV}, {4*n}", f"s_min_u32 s{T[8]}, s{T[8]}, 9", f"s_lshl_b32 s{T[8]}, s{T[8]}, 10", f"s_add_u32 m0, s{T[8]}, {STG5}",
                   ('vm', f"buffer_load_dwordx4 v{t+1+n}, {WDS}, s100 offen lds", 'stg')]
        return pre, j4[:-1], j5

    def pack_late(self):
        A = self.A; st = "sc1"; n0 = len(A.vm)
        r, c, G, ad = 44, 45, 46, 47
        A(f"v_bfe_u32 v{r}, v{VL}, 2, 2\nv_and_b32 v{c}, 3, v{VL}\nv_lshrrev_b32 v{G}, 4, v{VL}")
        for i in range(4): A(f"v_mov_b32 v{60+i}, 0x3f803f80")
        A(f"v_lshrrev_b32 v{ad}, 1, v{G}\nv_lshl_add_u32 v{ad}, v{ad}, 2, v{r}\nv_lshlrev_b32 v{ad}, 7, v{ad}\nv_and_b32 v48, 1, v{c}\nv_lshl_add_u32 v{ad}, v48, 4, v{ad}\nv_and_b32 v48, 1, v{G}\nv_lshl_add_u32 v{ad}, v48, 3, v{ad}")
        A(f"v_lshrrev_b32 v48, 1, v{c}\nv_mul_u32_u24 v48, 10240, v48\nv_add_u32 v{ad}, v{ad}, v48\ns_lshl_b32 s28, s{WV}, 5\ns_add_u32 s28, s28, {STG4}\nv_add_u32 v{ad}, s28, v{ad}")
        A(f"s_and_b32 s29, s{S_U}, 7\ns_lshr_b32 s28, s{S_U}, 3\ns_lshl_b32 s28, s28, 2\ns_add_u32 s28, s28, s{WV}")
        A("s_mul_i32 s30, s28, 147\ns_lshr_b32 s30, s30, 10\ns_mul_i32 s31, s30, 7\ns_sub_u32 s31, s28, s31")
        A(f"s_mov_b32 s32, {P4_GROUPS[0][0]}\ns_mov_b32 s33, {P4_GROUPS[0][1]}")
        for t0, nt in P4_GROUPS[1:]: A(f"s_cmp_ge_u32 s31, {t0}\ns_cselect_b32 s32, {t0}, s32\ns_cselect_b32 s33, {nt}, s33")
        A(f"s_mul_i32 s30, s30, {WP4_J}\ns_mul_i32 s34, s32, 39\ns_add_u32 s34, s34, s31\ns_mul_i32 s32, s29, 5\ns_mul_i32 s32, s32, s33\ns_add_u32 s34, s34, s32\ns_lshl_b32 s34, s34, 10\ns_add_u32 s30, s30, s34\ns_add_u32 s30, s30, {WP4}\ns_lshl_b32 s33, s33, 10")
        A(f"s_lshl_b32 s28, s28, 3\ns_add_u32 s28, s28, s29\ns_lshl_b32 s28, s28, 7\ns_add_u32 s28, s28, {CSP4}\ns_cmp_ge_u32 s{S_U}, 216\ns_cmov_b32 s30, {OOB}\ns_cmov_b32 s28, {OOB}")
        regs = [30, 31, 32, 34, 35]
        for u in range(1, 5): A(f"s_add_u32 s{regs[u]}, s{regs[u-1]}, s33")
        A(f"v_lshl_add_u32 v49, v{G}, 3, v{r}\nv_mul_u32_u24 v49, 320, v49\nv_lshl_add_u32 v49, v{c}, 3, v49\ns_mul_i32 s29, s{KH}, 160\ns_mul_i32 s36, s{RR}, 96\ns_add_u32 s29, s29, s36\ns_add_u32 s29, s29, {STG5}\nv_add_u32 v49, s29, v49\ns_lshl_b32 s36, s{RR}, 5\nv_subrev_u32 v50, s36, v49")
        for k in range(3):
            for p in range(2): A.lds(f"ds_read_b64_tr_b16 {v(128+4*k+2*p,2)}, v{49 if k < 2 else 50} offset:{p*1280 + k*32}", 'd')
        frag32_steps(A, ad, VL16, lambda u: (f"s{regs[u]}", 0), "s28", WS, 64, 88, 60, st)
        A(f"s_lshr_b32 s28, s{S_U}, 2\ns_cmp_ge_u32 s28, 27\ns_cselect_b32 s29, 1, 0\ns_cselect_b32 s30, 27, 0\ns_sub_u32 s30, s28, s30\ns_lshr_b32 s31, s30, 1\ns_lshl_b32 s31, s31, 1\ns_add_u32 s31, s31, s29\ns_lshl_b32 s31, s31, 1\ns_and_b32 s30, s30, 1\ns_add_u32 s31, s31, s30\ns_mul_i32 s31, s31, 5120")
        A(f"s_and_b32 s28, s{S_U}, 3\ns_lshl_b32 s28, s28, 1\ns_add_u32 s28, s28, s{KH}\ns_mul_i32 s28, s28, {WP5_C}\ns_add_u32 s28, s28, s31\ns_mul_i32 s29, s{RR}, 3072\ns_add_u32 s28, s28, s29\ns_add_u32 s28, s28, {WP5}")
        A(f"s_cmp_ge_u32 s{S_U}, 216\ns_cmov_b32 s28, {OOB}\ns_lshl_b32 s29, s{RR}, 10\ns_sub_u32 s29, s28, s29")
        for k in range(3): A.vmem(f"buffer_store_dwordx4 {v(128+4*k,4)}, v{VL16}, {WS}, s{28 if k < 2 else 29} offen offset:{k*1024} {st}")
        return len(A.vm) - n0

    def setup2(self):
        A = self.A; t = VFREE
        A(f"s_lshl_b32 s3, s{MB}, 4\ns_add_u32 s3, s3, s{J}\ns_mul_i32 s{S_KVO}, s3, {KV_WG}\ns_add_u32 s{S_KVO}, s{S_KVO}, {KV}")
        A(f"s_lshl_b32 s3, s{MB}, 2\ns_lshl_b32 s36, s{RH}, 1\ns_add_u32 s3, s3, s36\ns_add_u32 s3, s3, s{RR}")
        A(f"s_mul_i32 s{S_X}, s3, 40960\ns_mul_i32 s36, s{CT}, 5120\ns_add_u32 s{S_X}, s{S_X}, s36")
        A(f"s_lshl_b32 s{S_STX}, s3, 3\ns_add_u32 s{S_STX}, s{S_STX}, s{CT}\ns_lshl_b32 s{S_STX}, s{S_STX}, 8")
        A(f"s_lshl_b32 s3, s3, 1\ns_add_u32 s{S_A3}, s3, s{KH}\ns_xor_b32 s{S_A3B}, s{S_A3}, 1")
        m5, h, m4, g = t, t+1, t+2, t+3
        A(f"v_and_b32 v{m5}, 31, v{VL}\nv_lshrrev_b32 v{h}, 5, v{VL}\nv_and_b32 v{m4}, 15, v{VL}\nv_lshrrev_b32 v{g}, 4, v{VL}")
        A(f"v_lshlrev_b32 v{VST}, 3, v{m5}\nv_lshl_add_u32 v{VST}, v{h}, 8, v{VST}")
        A(f"v_add_u32 v{VB1}, 0x10000, v{VL16}\nv_add_u32 v{VB2}, 0x20000, v{VL16}\nv_lshlrev_b32 v{VCS}, 6, v{h}\nv_add_u32 v{VCS}, {LDS_MISC}, v{VCS}")
        A(f"s_mul_i32 s3, s{J}, 7\ns_lshr_b32 s3, s3, 2\ns_sub_u32 s3, s3, 1\nv_add_u32 v{VCNT}, s3, v{VL}\nv_min_u32 v{VCNT}, 26, v{VCNT}\nv_lshlrev_b32 v{VCNT}, 7, v{VCNT}\nv_add_u32 v{VCNT}, {PK4}, v{VCNT}\nv_mov_b32 v{VTG}, 8")
        A(f"s_lshl_b32 s3, s{MB}, 8\nv_writelane_b32 v{VCNT}, s3, 0\ns_lshr_b32 s3, s{CT}, 1\ns_lshl_b32 s3, s3, 7\ns_add_u32 s3, s3, {PK5}\nv_writelane_b32 v{VCNT}, s3, 4\nv_writelane_b32 v{VTG}, 54, 4")

        A(f"s_lshl_b32 s3, s{MB}, 3\ns_lshl_b32 s36, s{WV}, 1\ns_add_u32 s3, s3, s36\ns_mul_i32 s3, s3, 20480\ns_mul_i32 s36, s{J}, 1280\ns_add_u32 s3, s3, s36\ns_add_u32 s3, s3, {OO}")
        A(f"v_lshrrev_b32 v{t+4}, 4, v{m5}\nv_mul_u32_u24 v{t+5}, 20480, v{t+4}\nv_lshl_add_u32 v{t+5}, v{m4}, 4, v{t+5}\nv_add_u32 v{VO3}, s3, v{t+5}\nv_lshl_add_u32 v{VO1}, v{h}, 8, v{VO3}")
        A(f"v_mul_u32_u24 v{VH}, {54*1024}, v{t+4}\nv_lshl_add_u32 v{VH}, v{m4}, 4, v{VH}\nv_lshl_add_u32 v{VH}, v{h}, 8, v{VH}")
        A(f"s_lshl_b32 s3, s{KH}, 4\nv_add_u32 v{t+4}, s3, v{m4}\nv_lshlrev_b32 v{VSX}, 3, v{t+4}\nv_and_b32 v{t+5}, 1, v{g}\nv_lshl_add_u32 v{t+4}, v{t+5}, 5, v{t+4}")
        A(f"v_lshlrev_b32 v{VX}, 4, v{t+4}\nv_lshl_add_u32 v{VX}, v{h}, 10, v{VX}")
        A(f"s_mul_i32 s3, s{WV}, 2560\ns_add_u32 s3, s3, {KREG}\nv_add_u32 v{VK}, s3, v{VL16}\ns_add_u32 s3, s3, 2048\nv_lshlrev_b32 v{VKS}, 3, v{VL}\nv_add_u32 v{VKS}, s3, v{VKS}")
        A(f"s_mul_i32 s3, s{WV}, 3328\ns_add_u32 s3, s3, {VREG - 32}")
        A(f"v_mul_u32_u24 v{VV}, 416, v{h}\nv_and_b32 v{t+4}, 1, v{g}\nv_lshl_add_u32 v{VV}, v{t+4}, 7, v{VV}\nv_and_b32 v{t+4}, 3, v{VL}\nv_lshl_add_u32 v{VV}, v{t+4}, 5, v{VV}")
        A(f"v_bfe_u32 v{t+4}, v{VL}, 2, 2\nv_lshl_add_u32 v{VV}, v{t+4}, 3, v{VV}\nv_add_u32 v{VV}, s3, v{VV}")
        A(f"s_add_u32 s3, s3, {8*3328 + 32}\nv_lshrrev_b32 v{t+4}, 2, v{m5}\nv_mul_u32_u24 v{t+4}, 416, v{t+4}\nv_and_b32 v{t+5}, 3, v{VL}\nv_lshl_add_u32 v{t+4}, v{t+5}, 3, v{t+4}\nv_add_u32 v{t+4}, s3, v{t+4}")
        A(f"v_lshl_add_u32 v{VW2}, v{h}, 6, v{t+4}\nv_lshl_add_u32 v{VW1}, v{h}, 5, v{t+4}\nv_mul_u32_u24 v{t+5}, 384, v{h}\nv_add_u32 v{VW12}, v{t+5}, v{t+4}")
        A(f"s_mul_i32 s3, s{WV}, 5120\nv_add_u32 v{VXW}, s3, v{VL16}\ns_xor_b32 s3, s{WV}, 1\ns_mul_i32 s3, s3, 5120\nv_add_u32 v{VXR}, s3, v{VL16}")
        A(f"v_lshlrev_b32 v{t+4}, 2, v{h}\nv_sub_u32 v{t+4}, v{m5}, v{t+4}")
        for r in range(16):
            A(f"v_cmp_le_i32 s[{MASK+2*r}:{MASK+2*r+1}], {8*(r>>2) + (r&3)}, v{t+4}")
        A(f"v_mov_b32 v{t+5}, 0xffff\nv_mov_b32 v{t+6}, 0xffff0000")
        for rr in range(8):
            A(f"v_cndmask_b32 v{PM+rr}, 0, v{t+5}, s[{MASK+4*rr}:{MASK+4*rr+1}]\nv_cndmask_b32 v{t+7}, 0, v{t+6}, s[{MASK+4*rr+2}:{MASK+4*rr+3}]\nv_or_b32 v{PM+rr}, v{PM+rr}, v{t+7}")

    def stats_load(self, off, dst):
        A = self.A
        A(f"s_add_u32 s{T[3]}, s{SL}, s{S_ST1}\ns_add_u32 s{T[3]}, s{T[3]}, {off}")
        for i in range(4):
            A.vmem(f"buffer_load_dwordx2 {v(dst+2*i,2)}, v{VST}, {WS}, s{T[3]} offen offset:{512*i} {self.ld}", 'st')

    def stats_finish(self, d, mu, rs):
        return [f"v_add_f32 v{d}, v{d}, v{d+2}", f"v_add_f32 v{d+1}, v{d+1}, v{d+3}", f"v_add_f32 v{d+4}, v{d+4}, v{d+6}", f"v_add_f32 v{d+5}, v{d+5}, v{d+7}",
                f"v_add_f32 v{d}, v{d}, v{d+4}", f"v_add_f32 v{d+1}, v{d+1}, v{d+5}", f"v_mov_b32 v{d+2}, v{d}", f"v_mov_b32 v{d+3}, v{d+1}",
                f"v_permlane32_swap_b32 v{d}, v{d+2}", f"v_permlane32_swap_b32 v{d+1}, v{d+3}",
                f"v_add_f32 v{d}, v{d}, v{d+2}", f"v_add_f32 v{d+1}, v{d+1}, v{d+3}",
                f"v_mul_f32 v{mu}, {fhex(-1.0/640)}, v{d}", f"v_mul_f32 v{d+1}, {fhex(1.0/640)}, v{d+1}",
                f"v_fma_f32 v{d+1}, -v{mu}, v{mu}, v{d+1}", f"v_max_f32 v{d+1}, 0, v{d+1}", f"v_add_f32 v{d+1}, 0x3727c5ac, v{d+1}",
                f"v_rsq_f32 v{rs}, v{d+1}"]

    def a_load(self, st_, sreg, dst, tag):
        self.A.vmem(f"buffer_load_dwordx4 {a(dst,4)}, v{VL16}, {WS}, s{sreg} offen offset:{(st_ & 3)*1024} {self.ld}", tag)

    def p1(self):
        A = self.A; o = self.o
        ACC, WF, STD, MU, RS = 64, 128, 144, 152, 153
        bases = [VL16, VB1, VB2]
        SA = T[4]
        def aload(st_):
            L = [f"s_add_u32 s{SA}, s{SA}, 4096"] if st_ and st_ % 4 == 0 else []
            return L + [('vm', f"buffer_load_dwordx4 {a(4*st_,4)}, v{VL16}, {WS}, s{SA} offen offset:{(st_ & 3)*1024} {self.ld}", ('a', st_))]
        A(f"s_add_u32 s{SA}, s{SL}, s{S_A1}")
        def wsteps(a0, a1):
            return (a0, self.rnd(S_W1, a0*4096, lds1(a0), a1 - a0, ('w', a0)))
        n0 = self.pre1
        cuts = sorted(set([n0] + [c for c in range(n0, 31, 4)] + [31, 36, 40]))
        groups = [wsteps(x, y) for x, y in zip(cuts, cuts[1:])]
        up = o.get("up1", 10)
        self.stats_load(STA, STD)
        for k in range(up): [self.emit(x) for x in aload(k)]
        jobs = [(0, k, aload(k)) for k in range(up, 40)]
        jobs += [(7 if a0 == 36 else 0, a0 - 1.5, L) for a0, L in groups]
        jobs.append((30, 99, self.rnd(S_W3, 30720, lds3(3), 8, 'w3')))
        sched = self.edf(jobs, 40, o.get("r1", 1.8))
        valid = {a0 - 1: ('w', a0) for a0, L in groups}
        valid.setdefault(7, None); valid.setdefault(30, None)
        sched[33] += self.stats_finish(STD, MU, RS)
        A.wait_vm(('a', 0)); A("s_barrier")
        self.stamp('p1.go')
        for t in range(4): A.lds(f"ds_read_b128 {v(WF+4*t,4)}, {self.ldsaddr(lds1(0) + 1024*t, bases)}", ('f', 0, t))
        fill = []
        for st_ in range(40):
            if st_ in valid:
                if valid[st_]: self.need(valid[st_], fill)
                A("s_barrier")
            fill += sched[st_]
            self.need(('a', st_), fill)
            for t in range(4):
                A.wait_lg(('f', st_, t))
                A(f"v_mfma_f32_32x32x16_bf16 {v(ACC+16*t,16)}, {v(WF+4*t,4)}, {a(4*st_,4)}, {'0' if st_ == 0 else v(ACC+16*t,16)}")
                if st_ < 39: A.lds(f"ds_read_b128 {v(WF+4*t,4)}, {self.ldsaddr(lds1(st_+1) + 1024*t, bases)}", ('f', st_+1, t))
                self.drain(fill, 4)
        assert not fill
        A("s_barrier")
        self.stamp('p1.main')

    def p1_epilogue(self, ACC, MU, RS):
        A = self.A; first = False
        CSR, PK, RQ = 160, 176, 154
        self.QA1, self.QB1, self.QA2, self.QB2 = 224, 228, 232, 236
        if first: A(f"v_mov_b32 v{RQ}, {fhex(QSCALE)}")
        else: A(f"v_mul_f32 v{RQ}, {fhex(QSCALE)}, v{RS}")
        def quad(t, j, dst, isq):
            r = ACC + 16*t + 4*j
            if not first:
                A.wait_lg(('cs', t, j))
                for i in range(4): A(f"v_fma_f32 v{r+i}, v{MU}, v{CSR+4*j+i}, v{r+i}")
            if isq or not first:
                for i in range(4): A(f"v_mul_f32 v{r+i}, v{RQ if isq else RS}, v{r+i}")
            A(f"v_cvt_pk_bf16_f32 v{dst}, v{r}, v{r+1}\nv_cvt_pk_bf16_f32 v{dst+1}, v{r+2}, v{r+3}")
        def csload(t):
            if not first:
                for j in range(4): A.lds(f"ds_read_b128 {v(CSR+4*j,4)}, v{VCS} offset:{128*t + 16*j}", ('cs', t, j))
        KA, KB, KS, VT = PK, PK+4, PK+8, PK+12
        A(f"s_add_u32 s{T[4]}, s{SL}, s{S_KVO}\ns_mul_i32 s{T[5]}, s{WV}, 2560\ns_add_u32 s{T[5]}, s{T[5]}, s{T[4]}\ns_mul_i32 s{T[6]}, s{WV}, 3328\ns_add_u32 s{T[6]}, s{T[6]}, s{T[4]}\ns_add_u32 s{T[6]}, s{T[6]}, 10240")
        csload(0)
        quad(0, 0, KA, 0); quad(0, 1, KA+2, 0)
        A.lds(f"ds_write_b128 v{VK}, {v(KA,4)} offset:{8*2560}")
        A.vmem(f"buffer_store_dwordx4 {v(KA,4)}, v{VL16}, {WS}, s{T[5]} offen {self.stkv}")
        quad(0, 2, KS, 0); quad(0, 3, KB, 0)
        csload(1)
        A.lds(f"ds_write_b64 v{VKS}, {v(KS,2)} offset:{8*2560}")
        A(f"v_lshlrev_b32 v{PK+10}, 3, v{VL}")
        A.vmem(f"buffer_store_dwordx2 {v(KS,2)}, v{PK+10}, {WS}, s{T[5]} offen offset:2048 {self.stkv}")
        quad(1, 0, KB+2, 0)
        A.lds(f"ds_write_b128 v{VK}, {v(KB,4)} offset:{8*2560+1024}")
        A.vmem(f"buffer_store_dwordx4 {v(KB,4)}, v{VL16}, {WS}, s{T[5]} offen offset:1024 {self.stkv}")
        A(f"v_mov_b32 v{VT+10}, 0x3f803f80\nv_mov_b32 v{VT+11}, 0x3f803f80")
        A.lds(f"ds_write_b64 v{VW1}, {v(VT+10,2)} offset:{5*32}")
        for n, (t, j, ad, pos) in enumerate(((1, 1, VW2, 1), (1, 2, VW2, 2), (1, 3, VW12, 0), (2, 0, VW2, 7), (2, 1, VW2, 8))):
            if n == 3: csload(2)
            quad(t, j, VT+2*n, 0)
            A.lds(f"ds_write_b64 v{ad}, {v(VT+2*n,2)} offset:{pos*32}", 'vw')
        A(f"s_mul_i32 s{T[7]}, s{WV}, 3328\ns_add_u32 s{T[7]}, s{T[7]}, {VREG + 8*3328}\nv_add_u32 v{PK+10}, s{T[7]}, v{VL16}")
        A.wait_lg('vw')
        VC = 192
        for n in range(4): A.lds(f"ds_read_b128 {v(VC+4*n,4)}, v{PK+10} offset:{1024*n}", ('vc', n))
        for n in range(4):
            A.wait_lg(('vc', n))
            if n == 3: A("s_mov_b64 exec, 0xffff")
            A.vmem(f"buffer_store_dwordx4 {v(VC+4*n,4)}, v{VL16}, {WS}, s{T[6]} offen offset:{1024*n} {self.stkv}", 'out')
        A("s_mov_b64 exec, -1")
        self.stamp('p1.epi')
        quad(2, 2, self.QA1, 1); quad(2, 3, self.QA1+2, 1)
        csload(3)
        quad(3, 0, self.QA2, 1); quad(3, 1, self.QB1, 1); quad(3, 2, self.QB1+2, 1)
        A(f"v_mov_b32 v{self.QB2}, v{self.QA2}\nv_mov_b32 v{self.QB2+1}, v{self.QA2+1}")
        for q in (self.QA2, self.QB2): A(f"v_mov_b32 v{q+2}, 0\nv_mov_b32 v{q+3}, 0")
        A(f"s_mov_b32 exec_lo, 0\nv_mov_b32 v{self.QA2}, 0\nv_mov_b32 v{self.QA2+1}, 0\ns_mov_b32 exec_lo, -1\ns_mov_b32 exec_hi, 0\nv_mov_b32 v{self.QB2}, 0\nv_mov_b32 v{self.QB2+1}, 0\ns_mov_b32 exec_hi, -1")

    def kv_sync(self):
        A = self.A; N = A.newlab("nw0"); E = A.newlab("syn"); t = VFREE
        A("s_barrier")
        self.stamp('p1.drain')
        A(f"s_add_u32 s{T[3]}, s{LAY}, 1\ns_cmp_lg_u32 s{WV}, 0\ns_cbranch_scc1 {N}")
        A(f"s_mov_b64 exec, 7\nv_sub_u32 v{t+2}, s{MB}, v{VL}\nv_cmp_gt_i32 vcc, 0, v{t+2}\nv_mov_b32 v{t+3}, s{MB}\nv_cndmask_b32 v{t+2}, v{t+2}, v{t+3}, vcc")
        A(f"v_lshlrev_b32 v{t+2}, 4, v{t+2}\nv_add_u32 v{t+2}, s{J}, v{t+2}\nv_lshlrev_b32 v{t+2}, 7, v{t+2}\nv_add_u32 v{t+2}, {KVF}, v{t+2}\nv_mov_b32 v{t+3}, s{T[3]}")
        A(f"s_mov_b64 exec, 1\nbuffer_store_dword v{t+3}, v{t+2}, {WS}, 0 offen sc1\ns_mov_b64 exec, 7")
        self.spin(t + 2, f's{T[3]}', 0x100)
        A(f"s_mov_b64 exec, -1")
        self.stamp('p1.poll')
        A(f"s_branch {E}")
        A.lab(N)
        A.lab(E)
        A("s_barrier")
        for src in range(2):
            back = 2 - src
            A(f"s_add_u32 s{T[4]}, s{SL}, s{S_KVO}\ns_sub_u32 s{T[4]}, s{T[4]}, {back*16*KV_WG}\ns_cmp_lt_u32 s{MB}, {back}\ns_cmov_b32 s{T[4]}, {OOB}")
            for n in range(6):
                A(f"s_add_u32 s{T[5]}, s{WV}, {4*n}")
                if n == 5: A(f"s_min_u32 s{T[5]}, s{T[5]}, 22")
                A(f"s_lshl_b32 s{T[5]}, s{T[5]}, 10\ns_add_u32 s{T[6]}, s{T[5]}, s{T[4]}")
                ko = KREG + src*10240; vo = VREG + src*13312 - 10240
                if n < 2: A(f"s_add_u32 m0, s{T[5]}, {ko}")
                elif n > 2: A(f"s_add_u32 m0, s{T[5]}, {vo}")
                else:
                    A(f"s_cmp_lt_u32 s{WV}, 2"); sel(A, T[7], ko, vo); A(f"s_add_u32 m0, s{T[5]}, s{T[7]}")
                A.vmem(f"buffer_load_dwordx4 v{VL16}, {WS}, s{T[6]} offen {self.ld} lds", 'halo')
        NL = A.newlab("nl"); NE = A.newlab("ne")
        A(f"s_cmp_lg_u32 s{LAY}, 0\ns_cbranch_scc1 {NL}")
        n = self.pack_late()
        A(f"s_waitcnt vmcnt({n}) lgkmcnt(0)\ns_branch {NE}")
        A.lab(NL); A("s_waitcnt vmcnt(0)"); A.lab(NE)
        A.vm = []; A.lg = []
        A("s_barrier")
        self.stamp('p2.go')
        self.residual0()

    def residual0(self):
        A = self.A; L = A.newlab("x0"); t = VFREE
        A(f"s_cmp_lg_u32 s{LAY}, 0\ns_cbranch_scc1 {L}")
        A(f"s_lshl_b32 s{T[4]}, s{S_A3}, 4\ns_mul_i32 s{T[4]}, s{T[4]}, 1280\ns_mul_i32 s{T[5]}, s{CT}, 160\ns_add_u32 s{T[4]}, s{T[4]}, s{T[5]}")
        A(f"v_and_b32 v{t}, 15, v{VL}\nv_mul_u32_u24 v{t}, 1280, v{t}\nv_lshrrev_b32 v{t+1}, 4, v{VL}\nv_lshl_add_u32 v{t}, v{t+1}, 3, v{t}")
        for k in range(5): A(f"buffer_load_dwordx2 {v(RES+2*k,2)}, v{t}, {XS}, s{T[4]} offen offset:{32*k}")
        for x in self.rnd(S_W3, 30720, lds3(3), 8, 'w3'): A(x[1] if isinstance(x, tuple) else x)
        A.lab(L)

    def packed_signal(self):
        A = self.A; L = A.newlab("ps"); t = VFREE
        A(f"s_waitcnt vmcnt(0)\ns_barrier\ns_or_b32 s{T[4]}, s{WV}, s{LAY}\ns_cbranch_scc1 {L}\ns_cmp_ge_u32 s{S_U}, 216\ns_cbranch_scc1 {L}")
        A(f"s_lshr_b32 s{T[4]}, s{S_U}, 3\ns_lshl_b32 s{T[4]}, s{T[4]}, 7\ns_add_u32 s{T[4]}, s{T[4]}, {PK4}\nv_mov_b32 v{t+2}, s{T[4]}\ns_and_b32 s{T[4]}, s{S_U}, 3\ns_lshl_b32 s{T[4]}, s{T[4]}, 7\ns_add_u32 s{T[4]}, s{T[4]}, {PK5}\nv_writelane_b32 v{t+2}, s{T[4]}, 1")
        A(f"v_mov_b32 v{t+3}, 1\ns_mov_b64 exec, 3\nbuffer_atomic_add v{t+3}, v{t+2}, {WS}, 0 offen sc1\ns_mov_b64 exec, -1")
        A.lab(L)

    def colsums(self, between, nb):
        A = self.A; L = A.newlab("x0"); L1 = A.newlab("x1"); t = VFREE
        A(f"s_lshl_b32 s{T[7]}, s{LAY}, 2\ns_sub_u32 s{T[7]}, s{RR}, s{T[7]}\ns_cmp_lg_u32 s{T[7]}, 1\ns_cbranch_scc1 {L1}")
        A(f"s_mul_i32 s{T[5]}, s{J}, 7168\ns_add_u32 s{T[5]}, s{T[5]}, {CSP4 - 4096}")
        A(f"s_lshl_b32 s{T[6]}, s{S_WI}, 7\nv_add_u32 v{t}, s{T[6]}, v{VL}")
        for r in range(2):
            A(f"v_add_u32 v{t+1}, {64*r}, v{t}\nv_lshrrev_b32 v{t+2}, 5, v{t+1}\nv_and_b32 v{t+3}, 31, v{t+1}\nv_lshlrev_b32 v{t+3}, 2, v{t+3}\nv_lshl_add_u32 v{t+2}, v{t+2}, 10, v{t+3}")
            for k in range(8): A(f"buffer_load_dword v{t+4+8*r+k}, v{t+2}, {WS}, s{T[5]} offen offset:{128*k} sc1")
        A.lab(L1)
        between()
        A(f"s_cmp_lg_u32 s{T[7]}, 1\ns_cbranch_scc1 {L}")
        A(f"v_lshlrev_b32 v{t+2}, 2, v{t}\nv_add_u32 v{t+2}, {LDS_MISC}, v{t+2}\ns_waitcnt vmcnt({nb})")
        for k in range(1, 8): A(f"v_add_f32 v{t+4}, v{t+4}, v{t+4+k}\nv_add_f32 v{t+12}, v{t+12}, v{t+12+k}")
        A(f"ds_write_b32 v{t+2}, v{t+4}\nds_write_b32 v{t+2}, v{t+12} offset:256\ns_waitcnt lgkmcnt(0)")
        A.lab(L)

    def p2(self):
        A = self.A
        SB = [48, 64, 80]; PB = [96, 104]; PD = 112; OA = [128, 144]; KF = [162, 174]; VF = [184, 192, 200]; CB = [208, 240]
        Q1 = [self.QA1, self.QB1]; Q2 = [self.QA2, self.QB2]
        cz = self.o.get("czero", True)
        blocks = [(i, hd) for i in range(1, 8) for hd in range(2)] + [('m', 0), ('m', 1)]
        N = len(blocks)
        def kread(i, buf):
            k = KF[buf]
            return [('lg', f"ds_read_b64 {v(k,2)}, v{VKS} offset:{i*2560}", ('k', i)), ('lg', f"ds_read_b128 {v(k+2,4)}, v{VK} offset:{i*2560}", ('k', i)),
                    ('lg', f"ds_read_b128 {v(k+6,4)}, v{VK} offset:{i*2560+1024}", ('k', i))]
        def vread(i, hd, buf):
            return [('lg', f"ds_read_b64_tr_b16 {v(VF[buf]+4*aa+2*p,2)}, v{VV} offset:{i*3328 + (4*aa+2*p)*416 + 192*hd}", ('v', i, hd)) for aa in range(2) for p in range(2)]
        kbuf = {i: i % 2 for i in range(1, 8)}; kbuf[0] = 0; kbuf[8] = 1
        def smf(i, hd, sb):
            k = KF[kbuf[i]]; c = '0' if cz else v(CB[hd], 16)
            return [('mf', f"v_mfma_f32_32x32x16_bf16 {v(sb,16)}, {v(k+2+4*hd,4)}, {v(Q1[hd],4)}, {c}", ('k', i)),
                    ('mf', f"v_mfma_f32_32x32x16_bf16 {v(sb,16)}, {v(k,4)}, {v(Q2[hd],4)}, {v(sb,16)}", None)]
        started = [False, False]
        def pvf(i, hd, pb, vb):
            L = []
            for aa in range(2):
                c = v(OA[hd], 16) if started[hd] else '0'; started[hd] = True
                L.append(('mf', f"v_mfma_f32_32x32x16_bf16 {v(OA[hd],16)}, {v(VF[vb]+4*aa,4)}, {v(pb+4*aa,4)}, {c}", ('v', i, hd) if aa == 0 else None))
            return L
        def emit(x):
            if isinstance(x, str): A(x)
            elif x[0] == 'vm': A.vmem(x[1], x[2])
            elif x[0] == 'lg': A.lds(x[1], x[2])
            else:
                if x[2] is not None: A.wait_lg(x[2])
                A(x[1])
        def weave(mfs, fill):
            cost = lambda x: 8 if isinstance(x, str) and x.startswith("v_exp") else 4
            tot = sum(map(cost, fill)); acc = 0; k = 0
            for x in fill:
                while k < len(mfs) and acc >= tot * k / len(mfs): emit(mfs[k]); k += 1
                emit(x); acc += cost(x)
            while k < len(mfs): emit(mfs[k]); k += 1
        sbuf = lambda n: SB[n % 2]
        for x in kread(1, kbuf[1]): emit(x)
        for x in smf(1, 0, sbuf(0)): emit(x)
        for n in range(N + 1):
            mfs = []; fill = []
            if n == self.o.get("pksig", 7): self.packed_signal()
            if n + 1 < N:
                i, hd = blocks[n+1]
                if i == 'm': mfs += smf(0, hd, sbuf(n+1)) + smf(8, hd, SB[2])
                else: mfs += smf(i, hd, sbuf(n+1))
            pv = []
            if n >= 1:
                i, hd = blocks[n-1]
                if i == 'm': pv = pvf(0, hd, PB[(n-1) % 2], (n-1) % 2) + pvf(8, hd, PD, 2)
                else: pv = pvf(i, hd, PB[(n-1) % 2], (n-1) % 2)
            if n < N:
                i, hd = blocks[n]
                if i != 'm' and hd == 0:
                    if i < 7: fill += kread(i+1, kbuf[i+1])
                    else: fill += kread(0, kbuf[0])
                sb = sbuf(n)
                if i == 'm':
                    pre = [f"v_cndmask_b32 v{sb+r}, v{sb+r}, v{SB[2]+r}, s[{MASK+2*r}:{MASK+2*r+1}]" for r in range(16)]
                    for x in pre: emit(x)
                    for x in pv: emit(x)
                    pv = []
                    fill += vread(0, hd, n % 2) + vread(8, hd, 2)
                else:
                    fill += vread(i, hd, n % 2)
                ex = []
                for r in range(16):
                    ex.append(f"v_exp_f32 v{sb+r}, v{sb+r}")
                    if r >= 3 and r % 2 == 1: ex.append(f"v_cvt_pk_bf16_f32 v{PB[n%2]+(r-3)//2}, v{sb+r-3}, v{sb+r-2}")
                ex.append(f"v_cvt_pk_bf16_f32 v{PB[n%2]+7}, v{sb+14}, v{sb+15}")
                if i == 'm':
                    for rr in range(8):
                        ex.append(f"v_and_b32 v{PD+rr}, v{PM+rr}, v{PB[n%2]+rr}")
                        ex.append(f"v_bfi_b32 v{PB[n%2]+rr}, v{PM+rr}, 0, v{PB[n%2]+rr}")
                fill += ex
                if blocks[n] == (7, 1):
                    for x in mfs[:2]: emit(x)
                    for x in kread(8, kbuf[8]): emit(x)
                    mfs = pv + mfs[2:]; pv = []
            weave(mfs + pv, fill) if fill else [emit(x) for x in mfs + pv]
        A("s_barrier")
        self.stamp('p2.main')
        ra, rb = 48, 49
        A(f"v_rcp_f32 v{ra}, v{OA[0]+12}\nv_rcp_f32 v{rb}, v{OA[1]}")
        A(f"s_nop 0")
        def pk(dst, r, rs):
            for i in range(4): A(f"v_mul_f32 v{r+i}, v{rs}, v{r+i}")
            A(f"v_cvt_pk_bf16_f32 v{dst}, v{r}, v{r+1}\nv_cvt_pk_bf16_f32 v{dst+1}, v{r+2}, v{r+3}")
        pk(52, OA[0]+4, ra); pk(54, OA[0]+8, ra)
        A.vmem(f"buffer_store_dwordx4 {v(52,4)}, v{VO1}, {WS}, s{SL} offen {self.st}")
        pk(56, OA[1]+4, rb); pk(58, OA[1]+8, rb)
        A.vmem(f"buffer_store_dwordx4 {v(56,4)}, v{VO1}, {WS}, s{SL} offen offset:768 {self.st}")
        pk(60, OA[0], ra); pk(62, OA[1]+12, rb)
        A("s_mov_b32 exec_lo, 0")
        A.vmem(f"buffer_store_dwordx4 {v(60,4)}, v{VO3}, {WS}, s{SL} offen offset:512 {self.st}", 'out')
        A("s_mov_b32 exec_lo, -1")

    def proj(self, which):
        A = self.A
        nb = 10 if which == 3 else 27
        ACC, WF, B0 = 64, 112, 136
        SA0, SA1, SW = T[4], T[5], T[6]
        src = OO if which == 3 else HH
        for sa, m in ((SA0, S_A3), (SA1, S_A3B)):
            A(f"s_mul_i32 s{sa}, s{m}, {2*nb*1024}\ns_add_u32 s{sa}, s{sa}, s{SL}\ns_mul_i32 s{T[7]}, s{KH}, {nb*1024}\ns_add_u32 s{sa}, s{sa}, s{T[7]}\ns_add_u32 s{sa}, s{sa}, {src}")
        def aload(b):
            L = []
            if b and b % 4 == 0: L += [f"s_add_u32 s{SA0}, s{SA0}, 4096", f"s_add_u32 s{SA1}, s{SA1}, 4096"]
            for u, sa in enumerate((SA0, SA1)):
                L.append(('vm', f"buffer_load_dwordx4 {a(8*b+4*u,4)}, v{VL16}, {WS}, s{sa} offen offset:{(b&3)*1024} {self.ld}", ('a', b)))
            return L
        o = self.o
        up = o.get("up3", 6) if which == 3 else o.get("up5", 6)
        for b in range(up):
            for x in aload(b): self.emit(x)
        ntail = o.get("tail1", 0)
        jobs = [(0, b, aload(b)) for b in range(up, nb)]
        if which == 5:
            jobs += [(2*(c-6)+1, 2*c - 1.5, self.rnd(S_W5, c*20480, (c % 7)*20480, 5, ('w', c))) for c in range(7, 14)]
            jobs += [(2*(13-ntail+k)+1, 99+k, self.rnd(S_W1, k*20480, lds1(5*k), 5, 'w1')) for k in range(ntail)]
        sched = self.edf(jobs, nb, o.get("r3", 3.0) if which == 3 else o.get("r5", 3.3))
        khoff = 5120 if which == 3 else 10240
        A(f"s_mul_i32 s{T[7]}, s{KH}, {khoff}")
        for k in range(3): A(f"v_add_u32 v{B0+k}, s{T[7]}, v{[VL16, VB1, VB2][k]}")
        bases = [B0, B0+1, B0+2]
        for k in range(10):
            A(f"v_lshlrev_b32 v{ACC+2*k}, 16, v{RES+k}\nv_and_b32 v{ACC+2*k+1}, 0xffff0000, v{RES+k}")
        wl = (lambda b: lds3(b)) if which == 3 else (lambda b: ((b >> 1) % 7) * 20480 + (b & 1) * 5120)
        A.wait_vm(('a', 0)); A("s_barrier")
        self.stamp(f'p{which}.go')
        WFB = [WF, 140]
        for t in range(5): A.lds(f"ds_read_b128 {v(WF+4*t,4)}, {self.ldsaddr(wl(0) + 1024*t, bases)}", ('f', 0))
        fill = []
        for b in range(nb):
            if which == 5 and b % 2 == 1 and b >= 3:
                if b // 2 + 1 >= 7: self.need(('w', b // 2 + 1), fill)
                A("s_barrier")
            fill += sched[b]
            self.need(('a', b), fill)
            A.wait_lg(('f', b))
            if self.prof and which == 5 and o.get("in5") and b in (4, 9, 14, 19, 24): self.stamp(f'p5.b{b}')
            for t in range(5):
                for u in range(2):
                    d = ACC + 20*u + 4*t
                    A(f"v_mfma_f32_16x16x32_bf16 {v(d,4)}, {v(WFB[b&1]+4*t,4)}, {a(8*b+4*u,4)}, {'0' if (b == 0 and u == 1) else v(d,4)}")
                    k = 2*t + u
                    if k < 5 and b < nb - 1: A.lds(f"ds_read_b128 {v(WFB[(b+1)&1]+4*k,4)}, {self.ldsaddr(wl(b+1) + 1024*k, bases)}", ('f', b+1))
                    if k >= 4: self.drain(fill, 2)
        while fill: self.emit(fill.pop(0))
        self.stamp(f'p{which}.main')
        fill = []
        if which == 3:
            self.post = (S_W4, 0, 0, 39)
            self.pre = lambda: self.colsums(lambda: self.rnd3(S_W4, 39936, 39936, 15), 15)
        else:
            k0 = 5*ntail
            self.post = (S_W1, k0*4096, lds1(k0), 36)
            self.pre1 = min(31, k0 + 9 + o.get("s31", 12)*3//4)
            n3 = -(-(self.pre1 - k0 - 9) * 4 // 3)
            assert lds1(k0 + 9) + 3*n3*1024 <= LDS_MISC
            self.pre = lambda: self.rnd3(S_W1, (k0+9)*4096, lds1(k0+9), n3)
        xo = XCH3 if which == 3 else XCH5
        A(f"v_add_u32 v{B0}, {xo}, v{VXW}\nv_add_u32 v{B0+1}, {xo}, v{VXR}")
        for t in range(5): A.lds(f"ds_write_b128 v{B0}, {v(ACC+20+4*t,4)} offset:{1024*t}")
        A.wait_lg0(); A("s_barrier")
        for t in range(5): A.lds(f"ds_read_b128 {v(ACC+20+4*t,4)}, v{B0+1} offset:{1024*t}", ('x', t))
        if which == 5:
            A(f"s_cmp_lg_u32 s{LAY}, 0\ns_cbranch_scc1 main_final")
            self.fin_state = (list(A.lg), ACC)
        body = []
        for t in range(5):
            body.append(('wl', ('x', t)))
            body += [f"v_add_f32 v{ACC+4*t+i}, v{ACC+4*t+i}, v{ACC+20+4*t+i}" for i in range(4)]
            body += [f"v_cvt_pk_bf16_f32 v{RES+2*t}, v{ACC+4*t}, v{ACC+4*t+1}", f"v_cvt_pk_bf16_f32 v{RES+2*t+1}, v{ACC+4*t+2}, v{ACC+4*t+3}"]
        xoff = X1 if which == 3 else LS + XA
        soff = ST3 if which == 3 else LS + STA
        A(f"s_add_u32 s{T[4]}, s{SL}, s{S_X}\ns_add_u32 s{T[4]}, s{T[4]}, {xoff}\ns_add_u32 s{T[5]}, s{T[4]}, 4096\ns_add_u32 s{T[6]}, s{SL}, s{S_STX}\ns_add_u32 s{T[6]}, s{T[6]}, {soff}")
        body.append(('vm', f"buffer_store_dwordx4 {v(RES,4)}, v{VX}, {WS}, s{T[4]} offen {self.st}", 'out'))
        body.append(('vm', f"buffer_store_dwordx4 {v(RES+4,4)}, v{VX}, {WS}, s{T[4]} offen offset:2048 {self.st}", 'out'))
        t4 = WF
        body += [f"v_mov_b32 v{t4+k}, v{RES+8+(k&1)}" for k in range(6)]
        body += [f"v_permlane32_swap_b32 v{t4+4}, v{t4+2}", f"v_permlane32_swap_b32 v{t4+5}, v{t4+3}"]
        body.append(('vm', f"s_mov_b32 exec_hi, 0\nbuffer_store_dwordx4 {v(t4,4)}, v{VX}, {WS}, s{T[5]} offen {self.st}\ns_mov_b32 exec_hi, -1", 'out'))
        s0, s1 = WF + 8, WF + 9
        body += [f"v_add_f32 v{s0}, v{ACC}, v{ACC+1}", f"v_mul_f32 v{s1}, v{ACC}, v{ACC}", f"v_fmac_f32 v{s1}, v{ACC+1}, v{ACC+1}"]
        for i in range(2, 20): body += [f"v_add_f32 v{s0}, v{s0}, v{ACC+i}", f"v_fmac_f32 v{s1}, v{ACC+i}, v{ACC+i}"]
        for sw in ("v_permlane16_swap_b32", "v_permlane32_swap_b32"):
            body += [f"v_mov_b32 v{s0+2}, v{s0}", f"v_mov_b32 v{s0+3}, v{s1}", f"{sw} v{s0}, v{s0+2}", f"{sw} v{s1}, v{s0+3}", f"v_add_f32 v{s0}, v{s0}, v{s0+2}", f"v_add_f32 v{s1}, v{s1}, v{s0+3}"]
        self.mix(body, fill, 7)
        while fill: self.emit(fill.pop(0))
        A("s_mov_b64 exec, 0xffff")
        A.vmem(f"buffer_store_dwordx2 {v(s0,2)}, v{VSX}, {WS}, s{T[6]} offen {self.st}", 'out')
        A("s_mov_b64 exec, -1")

    def final(self):
        A = self.A; t = VFREE
        A.lab("main_final")
        A.lg, ACC = self.fin_state
        for k in range(5):
            A.wait_lg(('x', k))
            for i in range(4): A(f"v_add_f32 v{ACC+4*k+i}, v{ACC+4*k+i}, v{ACC+20+4*k+i}")
            A(f"v_cvt_pk_bf16_f32 v{RES+2*k}, v{ACC+4*k}, v{ACC+4*k+1}\nv_cvt_pk_bf16_f32 v{RES+2*k+1}, v{ACC+4*k+2}, v{ACC+4*k+3}")
        A(f"s_lshl_b32 s{T[4]}, s{S_A3}, 4\ns_mul_i32 s{T[4]}, s{T[4]}, 1280\ns_mul_i32 s{T[5]}, s{CT}, 160\ns_add_u32 s{T[4]}, s{T[4]}, s{T[5]}")
        A(f"v_and_b32 v{t}, 15, v{VL}\nv_mul_u32_u24 v{t}, 1280, v{t}\nv_lshrrev_b32 v{t+1}, 4, v{VL}\nv_lshl_add_u32 v{t}, v{t+1}, 3, v{t}")
        for k in range(5): A(f"buffer_store_dwordx2 {v(RES+2*k,2)}, v{t}, {OS}, s{T[4]} offen offset:{32*k}")

    def p4(self):
        A = self.A
        ACC, WF, STD, MU, RS = 64, 176, 204, 212, 213
        bases = [VL16, VB1, VB2]
        SA, SW = T[4], T[5]
        A(f"s_add_u32 s{SA}, s{SL}, s{S_A1}\ns_add_u32 s{SA}, s{SA}, {X1}")
        self.stats_load(ST3, STD)
        o = self.o
        def aload(st_):
            L = [f"s_add_u32 s{SA}, s{SA}, 4096"] if st_ and st_ % 4 == 0 else []
            return L + [('vm', f"buffer_load_dwordx4 {a(4*st_,4)}, v{VL16}, {WS}, s{SA} offen offset:{(st_ & 3)*1024} {self.ld}", ('a', st_))]
        up = o.get("up4", 8)
        for k in range(up): [self.emit(x) for x in aload(k)]
        wr = lambda c: self.rnd(S_W4, c*28672, (c % 5)*28672, 7, ('w', c))
        w5 = lambda c: self.rnd(S_W5, c*20480, c*20480, 5, 'w5')
        jobs = [(0, k, aload(k)) for k in range(up, 40)]
        jobs += [(0 if c < 5 else 4*(c-4)+3, 4*c - 1.5, wr(c)) for c in range(3, 10)]
        jobs += [(27, 90, w5(0)), (31, 91, w5(1)), (35, 92, w5(2)), (35, 93, w5(3))]
        sched = self.edf(jobs, 40, o.get("r4", 3.0))
        sched[30] += self.stats_finish(STD, MU, RS)
        wl = lambda st_: ((st_ >> 2) % 5) * 28672 + (st_ & 3) * 7168
        A.wait_vm(('a', 0)); A("s_barrier")
        self.stamp('p4.go')
        for t in range(7): A.lds(f"ds_read_b128 {v(WF+4*t,4)}, {self.ldsaddr(wl(0) + 1024*t, bases)}", ('f', 0, t))
        fill = []
        for st_ in range(40):
            if st_ % 4 == 3 and 7 <= st_ < 39:
                self.need(('w', st_ // 4 + 1), fill); A("s_barrier")
            fill += sched[st_]
            self.need(('a', st_), fill)
            for t in range(7):
                A.wait_lg(('f', st_, t))
                A(f"v_mfma_f32_32x32x16_bf16 {v(ACC+16*t,16)}, {v(WF+4*t,4)}, {a(4*st_,4)}, {'0' if st_ == 0 else v(ACC+16*t,16)}")
                if st_ < 39: A.lds(f"ds_read_b128 {v(WF+4*t,4)}, {self.ldsaddr(wl(st_+1) + 1024*t, bases)}", ('f', st_+1, t))
                self.drain(fill, 4 if t % 2 == 0 else 0)
        assert not fill
        A("s_barrier")
        self.stamp('p4.main')
        CSR, PK = [216, 232], 176
        A(f"v_mul_f32 v{RS}, v{RS}, v{RS}")
        A(f"s_add_u32 s{T[4]}, s{SL}, s{S_H}\ns_add_u32 s{T[4]}, s{T[4]}, {HH}\ns_mov_b32 s{T[5]}, s{T[4]}\ns_cmp_eq_u32 s{J}, 15\ns_cmov_b32 s{T[5]}, {OOB}")
        csload = lambda t: [('lg', f"ds_read_b128 {v(CSR[t&1]+4*j,4)}, v{VCS} offset:{512 + 128*t + 16*j}", ('cs', t)) for j in range(4)]
        body = csload(0)
        for t in range(7):
            if t < 6: body += csload(t + 1)
            body.append(('wl', ('cs', t)))
            r = ACC + 16*t; c = CSR[t & 1]
            body += [f"v_fma_f32 v{r+k}, v{MU}, v{c+k}, v{r+k}" for k in range(16)]
            for hf in range(2):
                g = r + 8*hf
                for i in range(4): body += [f"v_max_f32 v{g+i}, 0, v{g+i}", f"v_mul_f32 v{g+4+i}, v{RS}, v{g+4+i}"]
                body += [f"v_mul_f32 v{g+i}, v{g+i}, v{g+4+i}" for i in range(4)]
                body += [f"v_cvt_pk_bf16_f32 v{PK+4*t+2*hf}, v{g}, v{g+1}", f"v_cvt_pk_bf16_f32 v{PK+4*t+2*hf+1}, v{g+2}, v{g+3}"]
            body.append(('vm', f"buffer_store_dwordx4 {v(PK+4*t,4)}, v{VH}, {WS}, s{T[4] if t < 3 else T[5]} offen offset:{512*t} {self.st}", 'out'))
        for x in body: self.emit(x)
        self.post = (S_W5, 81920, 81920, 39)
        self.pre = lambda: self.rnd3(S_W5, 81920 + 39936, 81920 + 39936, 7)

    def gen(self):
        A = self.A
        o_big = False
        def stop(name):
            if self.stop == name: A.wait_all(); A("s_branch main_done")
        self.setup()
        self.stamp('start')
        self.p1_first()
        self.drain_post((S_W3, 0, 0, 30))
        A.lab("main_layer")
        self.kv_sync(); stop("p1")
        self.p2()
        self.cluster_sync((S_W3, 61440, lds3(6), 40), None, 0x200); stop("p2")
        self.proj(3)
        self.cluster_sync(self.post, self.pre, 0x300); stop("p3")
        self.p4()
        self.cluster_sync(self.post, self.pre, 0x400); stop("p4")
        self.proj(5)
        self.cluster_sync(self.post, self.pre, 0x500); stop("p5")
        A(f"s_mov_b32 s{LAY}, 1\ns_add_u32 s{SL}, s{SL}, {LS}\ns_mov_b32 s{S_PB}, {64 if o_big else 32}")
        self.stamp('start')
        self.p1()
        self.p1_epilogue(64, 152, 153)
        self.drain_post((S_W3, 0, 0, 30))
        A("s_branch main_layer")
        self.final()
        A.lab("main_done")
        if self.prof:
            A.wait_all()
            if self.stop: A(f"s_mov_b32 s{S_PB}, 32")
            self.stamp('end')
            A(f"s_cmp_lg_u32 s{WV}, 0\ns_cbranch_scc1 main_end\ns_lshl_b32 s3, s2, 8\ns_add_u32 s3, s3, {PROF}\nv_lshlrev_b32 v{VFREE}, 2, v{VL}")
            A(f"buffer_store_dword v{VPROF}, v{VFREE}, {WS}, s3 offen\ns_add_u32 s3, s3, 0x10000\nbuffer_store_dword v{VPROF+1}, v{VFREE}, {WS}, s3 offen")
        A.lab("main_end")
        A("s_endpgm")
        for blk in self.rare: A(blk)
        A.lab("main_last")

def gen_main(A, opts):
    m = Main(A, opts); m.gen()
    assert len(m.names) <= 32, len(m.names)
    if m.names: A.L.insert(0, Ins(f"; stamps {opts.get('mx', 256)} " + " ".join(m.names)))
```

```python
import sys, os
sys.path.insert(0, os.path.dirname(__file__))
from asmlib import *
from layout import *
import pack
NAME = "interleave_layers__sliding_block__glu_gated_reglu__prompt"

def kd(name, vgpr, accum, sgpr):
    return f""".amdhsa_kernel {name}
  .amdhsa_next_free_vgpr {vgpr}
  .amdhsa_next_free_sgpr {sgpr}
  .amdhsa_accum_offset {accum}
  .amdhsa_group_segment_fixed_size 0
  .amdhsa_kernarg_size 80
  .amdhsa_user_sgpr_count 2
  .amdhsa_user_sgpr_kernarg_segment_ptr 1
  .amdhsa_system_sgpr_workgroup_id_x 1
.end_amdhsa_kernel
"""

def build(opts):
    hdr = ""
    ref = open(os.path.join(os.path.dirname(__file__), "..", "cdna_kernels", NAME + ".s.ref")).read().split("\n")
    for l in ref:
        if l.startswith(";") and "@launch" not in l and "Override" not in l and "grid=ceil" not in l: hdr += l + "\n"
        elif not l.startswith(";"): break
    fused = opts.get("fused", 1)
    import mainphase
    if fused:
        kn = NAME + "_kernel"
        hdr += "; @launch grid=(256,1,1) block=(256,1,1) lds=163840\n"
        A = Asm(); mainphase.gen_main(A, dict(opts, kname=kn))
        return (hdr + '.amdgcn_target "amdgcn-amd-amdhsa--gfx950"\n.text\n' + f".globl {kn}\n.p2align 8\n.type {kn},@function\n" + A.render()
                + '.section .rodata,"a"\n.p2align 6\n' + kd(kn, 512, 256, 102))
    hdr += "; @launch kernel=pack_kernel grid=(876,1,1) block=(256,1,1) lds=20480\n"
    hdr += "; @launch kernel=main_kernel grid=(256,1,1) block=(256,1,1) lds=163840\n"
    out = hdr + '.amdgcn_target "amdgcn-amd-amdhsa--gfx950"\n.text\n'
    A = Asm(); pack.gen_pack(A)
    out += ".globl pack_kernel\n.p2align 8\n.type pack_kernel,@function\n" + A.render()
    A = Asm(); mainphase.gen_main(A, opts)
    out += ".globl main_kernel\n.p2align 8\n.type main_kernel,@function\n" + A.render()
    out += '.section .rodata,"a"\n.p2align 6\n' + kd("pack_kernel", 64, 64, 64) + ".p2align 6\n" + kd("main_kernel", 512, 256, 102)
    return out

if __name__ == "__main__":
    opts = {}
    path = sys.argv[1]
    for kv in sys.argv[2:]:
        k, x = kv.split("="); opts[k] = eval(x)
    open(path, "w").write(build(opts))
    print(path, os.path.getsize(path), "bytes")
```

```python
import re

def v(i, n=1): return f"v{i}" if n == 1 else f"v[{i}:{i+n-1}]"
def a(i, n=1): return f"a{i}" if n == 1 else f"a[{i}:{i+n-1}]"
def s(i, n=1): return f"s{i}" if n == 1 else f"s[{i}:{i+n-1}]"

TRANS = ("v_exp_f32", "v_log_f32", "v_rcp_f32", "v_rsq_f32", "v_sqrt_f32", "v_sin_f32", "v_cos_f32")
_REG = re.compile(r"^-?\|?(abs\()?([vas])(\d+|\[(\d+):(\d+)\])\)?\|?$")

def regs_of(op):
    op = op.strip()
    if op in ("vcc", "exec", "m0", "scc"): return {(op, 0)}
    if op in ("vcc_lo", "vcc_hi"): return {("vcc", 0)}
    if op in ("exec_lo", "exec_hi"): return {("exec", 0)}
    m = _REG.match(op)
    if not m: return set()
    k = m.group(2)
    if m.group(4) is not None:
        return {(k, i) for i in range(int(m.group(4)), int(m.group(5)) + 1)}
    return {(k, int(m.group(3)))}

class Ins:
    def __init__(self, text):
        self.text = text
        t = text.split(";")[0].strip()
        self.label = t.endswith(":")
        self.directive = t.startswith(".")
        self.mn = "" if (self.label or self.directive or not t) else t.split()[0]
        self.dst = set(); self.src = set(); self.ops = []
        self.cls = None
        if not self.mn: return
        rest = t[len(self.mn):].strip()
        ops = [o.strip() for o in rest.split(",")] if rest else []
        if ops:
            last = ops[-1].split()
            self.mods = last[1:]
            ops[-1] = last[0] if last else ""
        else:
            self.mods = []
        self.ops = ops
        mn = self.mn
        R = [regs_of(o) for o in ops]
        allr = set().union(*R) if R else set()
        if mn.startswith("v_mfma"):
            self.cls = "mfma"; self.dst = R[0]; self.A = R[1]; self.B = R[2]; self.C = R[3]
            self.src = R[1] | R[2] | R[3]
            self.passes = 8 if "32x32" in mn else 4
        elif mn.startswith("v_"):
            self.cls = "valu"
            self.trans = any(mn.startswith(x) for x in TRANS)
            self.dpp = "dpp" in mn or any(m.startswith(("row_", "quad_perm", "wave_")) for m in self.mods)
            if mn.startswith("v_permlane"):
                self.dst = R[0] | R[1]; self.src = R[0] | R[1]
            elif mn.startswith(("v_add_co", "v_sub_co", "v_addc_co", "v_subb_co")):
                self.dst = R[0] | R[1]; self.src = set().union(*R[2:])
            else:
                self.dst = R[0] if R else set(); self.src = set().union(*R[1:]) if len(R) > 1 else set()
                if mn.startswith(("v_fmac", "v_dot2c", "v_writelane")) or self.dpp: self.src |= R[0]
                if mn.startswith("v_cndmask") and len(ops) == 3: self.src |= {("vcc", 0)}
            if mn.startswith("v_cmpx"): self.dst |= {("exec", 0)}
        elif mn.startswith(("buffer_", "global_")):
            self.cls = "vmem"
            self.lds = "lds" in self.mods or "_lds_" in mn
            self.store = "store" in mn or "atomic" in mn
            if self.lds or self.store or mn in ("buffer_inv", "buffer_wbl2"):
                self.src = allr
                if "atomic" in mn and "sc0" in self.mods: self.dst = R[0]
            else:
                self.dst = R[0]; self.src = set().union(*R[1:])
            if self.lds: self.src |= {("m0", 0)}
            self.wide = self.store and ("x3" in mn or "x4" in mn)
            if self.store:
                self.data = R[0] if mn.startswith("buffer_") else R[1]
        elif mn.startswith("ds_"):
            self.cls = "ds"
            if mn.startswith(("ds_read", "ds_bpermute", "ds_permute", "ds_swizzle")):
                self.dst = R[0]; self.src = set().union(*R[1:])
            else:
                self.src = allr
        elif mn.startswith("s_"):
            self.cls = "salu"
            if mn.startswith(("s_cmp", "s_cbranch", "s_branch", "s_waitcnt", "s_nop", "s_barrier", "s_sleep",
                              "s_endpgm", "s_setprio", "s_bitcmp", "s_setpc", "s_call")):
                self.src = allr
            else:
                self.dst = R[0] if R else set(); self.src = set().union(*R[1:]) if len(R) > 1 else set()
                if "saveexec" in mn: self.dst |= {("exec", 0)}
        else:
            raise ValueError("unknown instruction " + text)
    def states(self):
        if self.mn == "s_nop": return int(self.ops[0]) + 1
        return 1 if self.mn else 0

def isv(r): return r[0] in ("v", "a")

def need(p, c):
    n = 0
    pv = {r for r in p.dst if isv(r)}
    ps = {r for r in p.dst if not isv(r)}
    if p.cls == "valu":
        if c.cls == "mfma":
            if pv & c.src: n = max(n, 2)
            if ("exec", 0) in ps: n = max(n, 4)
        if c.cls == "valu":
            if p.trans and not c.trans and (pv & c.src): n = max(n, 1)
            if c.mn.startswith("v_permlane") and (pv & c.src): n = max(n, 2)
            if c.dpp and (pv & c.src): n = max(n, 2)
            if c.dpp and ("exec", 0) in ps: n = max(n, 5)
            if c.mn.startswith(("v_readlane", "v_readfirstlane")) and (pv & c.src): n = max(n, 1)
            if ps & c.src: n = max(n, 4 if c.mn.startswith(("v_readlane", "v_writelane")) else 2)
            if ("exec", 0) in ps and c.mn.startswith(("v_readlane", "v_readfirstlane", "v_writelane", "v_permlane")): n = max(n, 4)
        if c.cls == "vmem" and (ps & c.src): n = max(n, 5)
        if c.cls == "salu" and (ps & c.src): n = max(n, 1)
    if p.cls == "mfma":
        big = 12 if p.passes == 8 else 8
        if c.cls == "mfma":
            if p.dst & (c.A | c.B): n = max(n, big)
            if p.dst & c.C and not (p.dst == c.C and p.passes == c.passes): n = max(n, big - 2)
            if p.dst & c.dst and not (p.dst == c.C): n = max(n, big - 2)
        elif c.cls in ("valu", "vmem", "ds"):
            if p.dst & (c.src | c.dst): n = max(n, big)
            if c.cls == "valu" and (p.C & c.dst): n = max(n, 7 if p.passes == 8 else 3)
    if p.cls == "salu" and ("m0", 0) in p.dst and c.cls == "vmem" and c.lds: n = max(n, 1)
    if p.cls == "vmem" and p.store and p.wide and c.cls != "salu" and (p.data & c.dst): n = max(n, 2)
    return n

class Asm:
    def __init__(self):
        self.L = []
        self.vm = []
        self.lg = []
        self.uid = 0
        self.seen = set()
    def __call__(self, text):
        for line in text.split("\n"):
            line = line.strip()
            if line: self.L.append(Ins(line))
    def lab(self, name): self.L.append(Ins(name + ":"))
    def newlab(self, p="L"):
        self.uid += 1; return f"{p}_{self.uid}"
    def vmem(self, text, tag=None):
        self(text); self.vm.append(tag); self.seen.add(tag)
    def lds(self, text, tag=None):
        self(text); self.lg.append(tag); self.seen.add(tag)
    def _wait(self, q, tag, cap):
        idx = [i for i, t in enumerate(q) if t == tag]
        if not idx: return None
        n = len(q) - 1 - idx[-1]
        del q[:idx[-1] + 1]
        return min(n, cap)
    def wait_vm(self, tag):
        n = self._wait(self.vm, tag, 63)
        if n is not None: self(f"s_waitcnt vmcnt({n})")
    def wait_lg(self, tag):
        n = self._wait(self.lg, tag, 15)
        if n is not None: self(f"s_waitcnt lgkmcnt({n})")
    def wait_vm0(self): self.vm = []; self("s_waitcnt vmcnt(0)")
    def wait_lg0(self): self.lg = []; self("s_waitcnt lgkmcnt(0)")
    def wait_all(self): self.vm = []; self.lg = []; self("s_waitcnt vmcnt(0) lgkmcnt(0)")
    def render(self):
        out = []
        for c in self.L:
            if c.mn:
                dist = 0; req = 0
                for p in reversed(out):
                    if dist >= 20: break
                    if p.mn in ("s_branch", "s_endpgm", "s_setpc_b64"): break
                    if p.mn:
                        req = max(req, need(p, c) - dist)
                        dist += p.states()
                while req > 0:
                    k = min(req, 16)
                    out.append(Ins(f"s_nop {k-1}")); req -= k
            out.append(c)
        return "\n".join(("" if (i.label or i.directive) else "  ") + i.text for i in out) + "\n"
```

```python
from asmlib import *
from layout import *
from pack import srd, sel, OOB, frag32_steps
import math

WS = "s[4:7]"; XS = "s[8:11]"; OS = "s[12:15]"; DS_ = "s[16:19]"
MB, J, WV, LAY, RH, CT, RR, KH = 20, 21, 22, 23, 24, 25, 26, 27
SL = 40
TGT = 41
S_A1 = 42
S_ST1 = 43
S_KVO = 44
S_A3 = 45
S_A3B = 46
S_X = 47
S_STX = 48
S_W1, S_W3, S_W4, S_W5 = 49, 50, 51, 52
S_H = 53
S_PB = 54
S_WI = 55
S_U = 98
GUS = "s[56:59]"; WDS = "s[60:63]"
MASK = 64
T = [28, 29, 30, 31, 32, 33, 34, 35, 36, 37]

VL, VL16, VST, RES = 1, 2, 3, 4
VO1, VO2, VO3, VX, VSX, VH, VCNT, VCS, VK, VKS, VV, VW2, VW12, VW1, VXW, VXR, VB1, VB2 = range(14, 32)
PM = 32
VPROF = 40
VTG, VDUM = 42, 43
VFREE = 44

LDS_MISC = 147456
CS1 = LDS_MISC; CS4 = LDS_MISC + 512
KREG = 36864; VREG = KREG + 12 * 2560
XCH3 = 86016; XCH5 = 0
STG4 = 16384; STG5 = STG4 + 20480; STG3 = LDS_MISC + 2048
QSCALE = math.log2(math.e) / math.sqrt(20.0)

def lds1(st): return ((st + 5) % 36) * 4096 if st < 36 else (st - 31) * 4096
def lds3(bl): return bl * 10240 if bl < 3 else (107520 + (bl - 3) * 10240 if bl < 6 else KREG + (bl - 6) * 10240)
def fhex(x):
    import struct
    return hex(struct.unpack("<I", struct.pack("<f", x))[0])

def qmap_step(x):
    import re
    m = re.match(r"ds_read_b64 a\[(\d+):", x[1])
    return int(m.group(1)) // 4 if m else 999

class Main:
    def __init__(self, A, opts):
        self.A = A; self.o = opts
        self.prof = opts.get("prof", 0); self.names = []; self.rare = []; self.pending = set()
        self.stop = opts.get("stop", None)
        self.fused = opts.get("fused", 1)
        self.kname = opts.get("kname", "main_kernel")
        self.ld = "sc1"; self.st = "sc1"; self.stkv = "sc1"
        self.ntu, self.ntx, self.nts = opts.get("ntu", "nt"), opts.get("ntx", "nt"), opts.get("nts", "nt")

    def stamp(self, name):
        if not self.prof or name.endswith(tuple(self.o.get("nostamp", ()))) and self.o.get("nostamp"): return
        A = self.A
        if name not in self.names: self.names.append(name)
        idx = self.names.index(name)
        A(f"s_memrealtime s[38:39]\ns_memtime s[96:97]\ns_waitcnt lgkmcnt(0)\ns_add_u32 m0, s{S_PB}, {idx}\nv_writelane_b32 v{VPROF}, s38, m0\nv_writelane_b32 v{VPROF+1}, s96, m0")
        A.lg = []

    def ldsaddr(self, off, bases):
        b = off >> 16
        return f"v{bases[b]} offset:{off & 0xffff}"

    def emit(self, x):
        if isinstance(x, tuple):
            if x[0] == 'vm': self.A.vmem(x[1], x[2])
            elif x[0] == 'lg': self.A.lds(x[1], x[2])
            else:
                assert x[1] in self.A.seen and x[1] not in self.pending, x
                (self.A.wait_vm if x[0] == 'wv' else self.A.wait_lg)(x[1])
        else: self.A(x)

    def drain(self, fill, n):
        vm = 0
        while fill and n > 0:
            isvm = isinstance(fill[0], tuple) and fill[0][0] == 'vm'
            if isvm and vm: break
            vm += isvm
            self.pending = {y[2] for y in fill if isinstance(y, tuple) and len(y) == 3}
            self.emit(fill.pop(0)); n -= 1
            self.pending = set()

    def need(self, tag, fill):
        while any(isinstance(x, tuple) and x[0] == 'vm' and x[2] == tag for x in fill): self.emit(fill.pop(0))
        self.A.wait_vm(tag)

    def rnd(self, sbase, goff, loff, kb, tag):
        L = [f"s_mul_i32 s{T[8]}, s{WV}, {kb*1024}", f"s_add_u32 s{T[9]}, s{T[8]}, s{sbase}", f"s_add_u32 s{T[9]}, s{T[9]}, {goff}", f"s_add_u32 m0, s{T[8]}, {loff}"]
        for i in range(kb):
            if i and i % 4 == 0: L += [f"s_add_u32 s{T[9]}, s{T[9]}, 4096", "s_add_u32 m0, m0, 4096"]
            L.append(('vm', f"buffer_load_dwordx4 v{VL16}, {WS}, s{T[9]} offen offset:{1024*(i&3)} lds", tag))
        return L

    def rnd3(self, sbase, goff, loff, kb):
        A = self.A
        A(f"s_mul_i32 s{T[8]}, s{S_WI}, {kb*1024}\ns_add_u32 s{T[9]}, s{T[8]}, s{sbase}\ns_add_u32 s{T[9]}, s{T[9]}, {goff}\ns_add_u32 m0, s{T[8]}, {loff}")
        for i in range(kb):
            if i and i % 4 == 0: A(f"s_add_u32 s{T[9]}, s{T[9]}, 4096\ns_add_u32 m0, m0, 4096")
            A(f"buffer_load_dwordx4 v{VL16}, {WS}, s{T[9]} offen offset:{1024*(i&3)} lds")

    def edf(self, jobs, nsteps, rate, credit=0.0):
        units = []
        for rel, dl, L in jobs:
            cur = []
            for x in L:
                cur.append(x)
                if isinstance(x, tuple) and x[0] == 'vm': units.append([rel, dl, cur, id(L)]); cur = []
            if cur: units[-1][2] += cur
        sched = {k: [] for k in range(nsteps)}
        busy = None
        for st_ in range(nsteps):
            credit += rate
            while credit >= 1 and units:
                cand = [u for u in units if u[0] <= st_]
                if busy is not None: cand = [u for u in cand if u[3] == busy or 'lds' not in u[2][-1 if isinstance(u[2][-1], tuple) else -2][1]]
                if not cand: credit = min(credit, 1.0); break
                u = min(cand, key=lambda u: u[1])
                units.remove(u); sched[st_] += u[2]; credit -= 1
                isdma = any(isinstance(x, tuple) and x[1].endswith('lds') for x in u[2])
                if isdma: busy = u[3] if any(w[3] == u[3] for w in units) else None
        assert not units, f"{len(units)} loads left"
        return sched

    def drain_post(self, post, extra=0):
        A = self.A
        if not post:
            A.wait_all(); return
        N = A.newlab("p0"); E = A.newlab("pe")
        kb = -(-post[3] // 3)
        A(f"s_cmp_eq_u32 s{WV}, 0\ns_cbranch_scc1 {N}")
        self.rnd3(post[0], post[1], post[2], kb)
        A(f"s_waitcnt vmcnt({kb + extra}) lgkmcnt(0)\ns_branch {E}")
        A.lab(N); A(f"s_waitcnt vmcnt({extra}) lgkmcnt(0)"); A.lab(E)
        A.vm = []; A.lg = []

    def mix(self, body, fill, every):
        for k, x in enumerate(body):
            self.emit(x)
            if (k + 1) % every == 0: self.drain(fill, 5)

    def spin(self, addr, tgt, code, srd_=WS):
        A = self.A; L = A.newlab("poll"); D = A.newlab("pdone"); t = 254
        ld = lambda r: f"buffer_load_dword v{r}, v{addr}, {srd_}, 0 offen sc1"
        A(f"s_mov_b32 s{T[2]}, 20000\n" + ld(t))
        A.lab(L)
        for r in (t + 1, t):
            A(f"s_sleep {self.o.get('psleep', 3)}\n" + ld(r) + f"\ns_waitcnt vmcnt(1)\nv_cmp_gt_u32 vcc, {tgt}, v{2*t + 1 - r}\ns_cbranch_vccz {D}")
        A(f"s_sub_u32 s{T[2]}, s{T[2]}, 1\ns_cmp_lg_u32 s{T[2]}, 0\ns_cbranch_scc1 {L}")
        A(f"s_waitcnt vmcnt(0)\nv_mov_b32 v{t}, {code}\nv_mov_b32 v{t+1}, 128\nbuffer_store_dword v{t}, v{t+1}, {DS_}, 0 offen")
        A.lab(D)

    def cluster_sync(self, post, pre, code):
        A = self.A; N = A.newlab("nw0"); E = A.newlab("syn")
        self.stamp(f'p{code>>8}.epi')
        self.drain_post(post); A("s_barrier")
        self.stamp(f'p{code>>8}.drain')
        A(f"s_add_u32 s{TGT}, s{TGT}, 16\ns_cmp_lg_u32 s{WV}, 0\ns_cbranch_scc1 {N}")
        A(f"s_mov_b64 exec, 1\nv_mov_b32 v{VFREE+3}, 1\nbuffer_atomic_add v{VFREE+3}, v{VCNT}, {WS}, 0 offen sc1\nv_mov_b32 v{VTG}, s{TGT}")
        if code == 0x200: A("s_mov_b64 exec, 31")
        self.spin(VCNT, f'v{VTG}', code)
        A(f"s_mov_b64 exec, -1")
        self.stamp(f'p{code>>8}.poll')
        A(f"s_branch {E}")
        A.lab(N)
        if pre: pre()
        A.lab(E)
        A("s_barrier")
        self.stamp(f'p{code>>8}.bar')

    def setup(self):
        A = self.A
        A.lab(self.kname)
        A("s_cmp_ge_u32 s2, 256\ns_cbranch_scc1 main_end")
        A("s_load_dwordx2 s[28:29], s[0:1], 0\ns_load_dwordx4 s[32:35], s[0:1], 56\ns_load_dwordx2 s[30:31], s[0:1], 72")
        if self.fused: A("s_load_dwordx4 s[80:83], s[0:1], 8\ns_load_dwordx4 s[84:87], s[0:1], 32\ns_load_dwordx2 s[88:89], s[0:1], 48")
        A(f"v_and_b32 v{VL}, 63, v0\nv_lshrrev_b32 v2, 6, v0\ns_nop 0\nv_readfirstlane_b32 s{WV}, v2\nv_lshlrev_b32 v{VL16}, 4, v{VL}")
        mx = self.o.get("mx", 256)
        if mx == 256:
            A(f"s_and_b32 s{MB}, s2, 7\ns_lshl_b32 s{MB}, s{MB}, 1\ns_lshr_b32 s3, s2, 7\ns_add_u32 s{MB}, s{MB}, s3\ns_bfe_u32 s{J}, s2, 0x40003")
        elif mx == 512:
            A(f"s_bfe_u32 s{MB}, s2, 0x20001\ns_lshl_b32 s{MB}, s{MB}, 2\ns_lshr_b32 s3, s2, 6\ns_add_u32 s{MB}, s{MB}, s3")
            A(f"s_and_b32 s{J}, s2, 1\ns_lshl_b32 s{J}, s{J}, 3\ns_bfe_u32 s3, s2, 0x30003\ns_add_u32 s{J}, s{J}, s3")
        elif mx == 1024:
            A(f"s_bfe_u32 s{MB}, s2, 0x10002\ns_lshl_b32 s{MB}, s{MB}, 3\ns_lshr_b32 s3, s2, 5\ns_add_u32 s{MB}, s{MB}, s3")
            A(f"s_and_b32 s{J}, s2, 3\ns_lshl_b32 s{J}, s{J}, 2\ns_bfe_u32 s3, s2, 0x20003\ns_add_u32 s{J}, s{J}, s3")
        A(f"s_and_b32 s{RH}, s{J}, 1\ns_lshr_b32 s{CT}, s{J}, 1\ns_lshr_b32 s{RR}, s{WV}, 1\ns_and_b32 s{KH}, s{WV}, 1\ns_sub_u32 s{S_WI}, s{WV}, 1")
        A(f"s_mov_b32 s{LAY}, 0\ns_mov_b32 s{SL}, {LB}\ns_mov_b32 s{TGT}, 0\ns_mov_b32 s{S_PB}, 0")
        A(f"s_lshl_b32 s3, s{MB}, 2\ns_add_u32 s3, s3, s{WV}\ns_mul_i32 s{S_A1}, s3, 40960\ns_lshl_b32 s{S_ST1}, s3, 11")
        A(f"s_mul_i32 s{S_H}, s3, {2*54*1024}\ns_mul_i32 s3, s{J}, {7*512}\ns_add_u32 s{S_H}, s{S_H}, s3")
        A(f"s_mul_i32 s{S_W1}, s{J}, {WP1_J}\ns_add_u32 s{S_W1}, s{S_W1}, {WP1}\ns_mul_i32 s{S_W4}, s{J}, {WP4_J}\ns_add_u32 s{S_W4}, s{S_W4}, {WP4}")
        A(f"s_mul_i32 s{S_W3}, s{CT}, {WP3_C}\ns_add_u32 s{S_W3}, s{S_W3}, {WP3}\ns_mul_i32 s{S_W5}, s{CT}, {WP5_C}\ns_add_u32 s{S_W5}, s{S_W5}, {WP5}")
        A("s_waitcnt lgkmcnt(0)")
        srd(A, 4, 30, WS_USED); srd(A, 8, 28, 2048*640*2); srd(A, 16, 34, 256)

    def p1_first(self):
        A = self.A; o = self.o; st = "sc1"
        QS = "s[68:71]"; WOS = "s[64:67]"
        ACC, WF, GR, ONE, MU, RS = 64, 128, 176, 148, 152, 153
        VXS, VAX, TMP, VU1, VU3, VZ = 209, 213, 246, 214, 215, 216
        r, c, G = 44, 45, 46
        AB = 49152; NB = 3
        srd(A, 68, 80, 640*1920*2); srd(A, 64, 82, 640*640*2); srd(A, 60, 88, 1728*640*2); srd(A, 12, 32, 2048*640*2)
        A(f"s_cmp_lt_u32 s{WV}, 2\ns_cselect_b32 s56, s84, s86\ns_cselect_b32 s57, s85, s87\ns_mov_b32 s58, {640*1728*2}\ns_mov_b32 s59, 0x20000")
        A(f"s_lshl_b32 s{S_U}, s{MB}, 4\ns_add_u32 s{S_U}, s{S_U}, s{J}")
        NZ = A.newlab("nz"); NZ2 = A.newlab("nz")
        A(f"s_cmp_lg_u32 s2, 0\ns_cbranch_scc1 {NZ}\ns_cmp_lg_u32 s{WV}, 3\ns_cbranch_scc1 {NZ}")
        A(f"v_lshlrev_b32 v56, 7, v{VL}\nv_mov_b32 v57, 0")
        for k in range(6): A(f"s_mov_b32 s3, {8192*k}\nbuffer_store_dword v57, v56, {WS}, s3 offen sc1")
        A.lab(NZ)
        A(f"v_and_b32 v51, 7, v{VL}\nv_lshrrev_b32 v52, 3, v{VL}\ns_and_b32 s34, s{MB}, 1\ns_lshr_b32 s35, s{MB}, 1")
        A("s_cmp_eq_u32 s34, 0\ns_cselect_b32 s31, 5, 2"); sel(A, 32, 1280, 2608); sel(A, 33, 2480, -32); sel(A, 36, -1, 0x7f7f7f7f)
        A("v_mov_b32 v53, s32\nv_mov_b32 v54, s33\nv_cmp_gt_u32 vcc, s31, v51\nv_cndmask_b32 v53, v54, v53, vcc\nv_lshl_add_u32 v53, v51, 4, v53\nv_mul_u32_u24 v54, 3840, v52\nv_add_u32 v53, v53, v54")
        A(f"s_mul_i32 s31, s35, 80*3840\ns_mul_i32 s32, s{J}, 80\ns_add_u32 s31, s31, s32\ns_mov_b32 exec_lo, s36\ns_mov_b32 exec_hi, s36")
        for n in range(3):
            A(f"s_add_u32 s32, s{WV}, {4*n}\ns_min_u32 s32, s32, 9\ns_lshl_b32 m0, s32, 10\ns_mul_i32 s32, s32, 8*3840\ns_add_u32 s32, s32, s31")
            A.vmem(f"buffer_load_dwordx4 v53, {QS}, s32 offen {self.ntu} lds", 'u')
        A("s_mov_b64 exec, -1")
        A(f"s_lshr_b32 s99, s{S_U}, 3\ns_and_b32 s100, s{S_U}, 7\ns_mul_i32 s30, s99, 32*1280\ns_mul_i32 s31, s100, 160\ns_add_u32 s30, s30, s31\ns_cmp_ge_u32 s{S_U}, 160\ns_cmov_b32 s30, {OOB}")
        for n in range(2):
            A(f"s_add_u32 s31, s{WV}, {4*n}\ns_min_u32 s31, s31, 4\ns_lshl_b32 s3, s31, 6\nv_add_u32 v54, s3, v{VL}\nv_mul_u32_u24 v55, 6554, v54\nv_lshrrev_b32 v55, 16, v55\nv_mul_u32_u24 v56, 10, v55\nv_sub_u32 v56, v54, v56")
            A(f"v_mul_u32_u24 v55, 1280, v55\nv_lshl_add_u32 v55, v56, 4, v55\ns_lshl_b32 s31, s31, 10\ns_add_u32 m0, s31, {STG3}")
            A.vmem(f"buffer_load_dwordx4 v55, {WOS}, s30 offen {self.ntu} lds", 'u')
        A(f"v_lshrrev_b32 v{G}, 4, v{VL}\nv_and_b32 v48, 15, v{VL}")
        for n in range(4):
            A(f"v_add_u32 v49, {4*n}, v{G}\nv_xor_b32 v50, v48, v49\nv_mul_u32_u24 v49, 1280, v49\nv_lshl_add_u32 v{VXS+n}, v50, 4, v49")
        SX, SXL = T[0], T[1]
        A(f"s_lshl_b32 s3, s{MB}, 2\ns_add_u32 s3, s3, s{WV}\ns_mul_i32 s{SX}, s3, 32*1280\ns_mul_i32 s{SXL}, s{WV}, {NB*8192}\ns_add_u32 s{SXL}, s{SXL}, {AB}")
        def xlist(ch):
            L = []
            for n in range(8):
                if n % 4 == 0: L.append(f"s_add_u32 s{T[9]}, s{SX}, {ch*256 + (n >> 2)*16*1280}")
                L += [f"s_add_u32 m0, s{SXL}, {(ch % NB)*8192 + n*1024}", ('vm', f"buffer_load_dwordx4 v{VXS + (n & 3)}, {XS}, s{T[9]} offen {self.ntx} lds", ('x', ch))]
            return L
        def xjob(ch):
            for x in xlist(ch): self.emit(x)
        if o.get("touchx", 1):
            A(f"s_lshl_b32 s30, s{MB}, 3\ns_and_b32 s31, s{J}, 7\ns_add_u32 s30, s30, s31\ns_lshl_b32 s3, s30, 2\ns_add_u32 s3, s3, s{WV}\ns_mul_i32 s3, s3, 5120\nv_lshlrev_b32 v54, 7, v{VL}\ns_mov_b32 exec_hi, 0xff")
            A.vmem(f"buffer_load_dword v{VDUM}, v54, {XS}, s3 offen {self.ntx}\ns_mov_b32 exec_hi, -1", 't')
        if o.get("codepf", 1):
            A(f"s_getpc_b64 s[64:65]\nmain_pc:\ns_sub_u32 s64, s64, main_pc - {self.kname}\ns_subb_u32 s65, s65, 0\ns_mov_b32 s66, main_last - {self.kname}\ns_mov_b32 s67, 0x20000")
            A(f"s_and_b32 s3, s{J}, 7\ns_lshl_b32 s3, s3, 13\ns_cmp_lg_u32 s{WV}, 3\ns_cmov_b32 s3, {OOB}\nv_lshlrev_b32 v54, 7, v{VL}")
            A.vmem(f"buffer_load_dword v{VDUM}, v54, s[64:67], s3 offen", 'c')
        xjob(0)
        if o.get("x1early", 0): xjob(1)
        A(f"s_cmp_lg_u32 s2, 0\ns_cbranch_scc1 {NZ2}\ns_cmp_lg_u32 s{WV}, 3\ns_cbranch_scc1 {NZ2}")
        A(f"s_waitcnt vmcnt({len(A.vm)})\ns_mov_b64 exec, 1\nv_mov_b32 v56, 0\nv_mov_b32 v55, 1\nbuffer_store_dword v55, v56, {DS_}, 0 offen sc1\ns_mov_b64 exec, -1")
        A.lab(NZ2)
        for i in range(4): A(f"v_mov_b32 v{ONE+i}, 0x3f803f80")
        NP = A.newlab("np")
        A(f"s_cmp_eq_u32 s34, 0\ns_cbranch_scc1 {NP}\nv_lshlrev_b32 v48, 7, v0\nv_cmp_gt_u32 vcc, 80, v0\ns_and_saveexec_b64 s[36:37], vcc\ns_cbranch_execz {NP}a\nds_write_b128 v48, {v(ONE,4)} offset:112")
        A.lab(NP + "a"); A("s_mov_b64 exec, s[36:37]"); A.lab(NP)
        A(f"v_bfe_u32 v{r}, v{VL}, 2, 2\nv_and_b32 v{c}, 3, v{VL}\nv_lshrrev_b32 v48, 1, v{G}\nv_lshl_add_u32 v48, v48, 2, v{r}\nv_lshlrev_b32 v48, 7, v48\nv_and_b32 v49, 1, v{G}\nv_lshl_add_u32 v49, v49, 2, v{c}\nv_lshl_add_u32 v48, v49, 3, v48\ns_lshl_b32 s3, s{WV}, 6\nv_add_u32 v{VU1}, s3, v48")
        A(f"v_and_b32 v48, 31, v{VL}\nv_and_b32 v49, 15, v{VL}\nv_lshlrev_b32 v{VAX}, 8, v48\nv_lshl_add_u32 v{VAX}, v49, 4, v{VAX}\nv_lshrrev_b32 v49, 5, v{VL}\nv_lshl_add_u32 v{VAX}, v49, 3, v{VAX}\nv_add_u32 v{VAX}, s{SXL}, v{VAX}")
        A(f"v_lshl_add_u32 v{VU3}, v{G}, 3, v{r}\nv_mul_u32_u24 v{VU3}, 160, v{VU3}\nv_lshl_add_u32 v{VU3}, v{c}, 3, v{VU3}\nv_add_u32 v{VU3}, {STG3}, v{VU3}\nv_mov_b32 v{VZ}, 0\nv_lshlrev_b32 v{VZ+1}, 7, v0")
        A(f"s_cmp_ge_u32 s99, 10\ns_cselect_b32 s30, 1, 0\ns_cselect_b32 s31, 10, 0\ns_sub_u32 s31, s99, s31\ns_lshl_b32 s31, s31, 1\ns_add_u32 s31, s31, s30\ns_mul_i32 s31, s31, 5120")
        A(f"s_mul_i32 s30, s100, {WP3_C}\ns_add_u32 s30, s30, s31\ns_add_u32 s30, s30, {WP3}\ns_cmp_ge_u32 s{S_U}, 160\ns_cmov_b32 s30, {OOB}")
        self.setup2()
        spre, j4, j5 = self.stage_jobs()
        for x in spre: self.emit(x)
        CP = 164
        A(f"v_and_b32 v48, 127, v0\nv_lshrrev_b32 v49, 5, v48\nv_and_b32 v50, 31, v48\nv_lshlrev_b32 v50, 2, v50\nv_lshl_add_u32 v{CP+8}, v49, 10, v50\nv_lshlrev_b32 v{CP+9}, 2, v48\nv_add_u32 v{CP+9}, {CS1}, v{CP+9}")
        A.wait_vm('u'); A.wait_lg0(); A("s_barrier")
        self.stamp('s.u')
        HI = A.newlab("hi"); DN = A.newlab("dn"); keep = list(A.vm)
        A(f"s_cmp_ge_u32 s{WV}, 2\ns_cbranch_scc1 {HI}")
        A(f"s_lshl_b32 s32, s34, 1\ns_add_u32 s32, s32, s{WV}\ns_mul_i32 s33, s35, 5*4096\ns_add_u32 s33, s33, s{S_W1}\ns_lshl_b32 s3, s32, 10\ns_add_u32 s30, s33, s3")
        A(f"s_lshl_b32 s33, s{J}, 2\ns_add_u32 s33, s33, s32\ns_lshl_b32 s33, s33, 3\ns_add_u32 s33, s33, s35\ns_lshl_b32 s33, s33, 7\ns_add_u32 s33, s33, {CSP1}")
        ur = [30, 31, 32, 34, 35]
        for u in range(1, 5): A(f"s_add_u32 s{ur[u]}, s30, {u*4096}")
        frag32_steps(A, VU1, VL16, lambda u: (f"s{ur[u]}", 0), "s33", WS, 64, 88, ONE, st)
        A(f"s_branch {DN}")
        A.lab(HI)
        A(f"s_cmp_lg_u32 s{WV}, 2\ns_cmov_b32 s30, {OOB}\ns_add_u32 s31, s30, 4096\ns_mov_b32 s32, {OOB}")
        for t in range(5):
            for p in range(2): A(f"ds_read_b64_tr_b16 {v(64+4*t+2*p,2)}, v{VU3} offset:{p*640 + t*32}")
        A("s_waitcnt lgkmcnt(0)")
        for t in range(5): A(f"buffer_store_dwordx4 {v(64+4*t,4)}, v{VL16}, {WS}, {'s30' if t < 4 else 's31'} offen offset:{(t&3)*1024} {st}")
        A("s_mov_b64 exec, 1")
        for t in range(4): A(f"buffer_store_dword v64, v{VL16}, {WS}, s32 offen")
        A("s_mov_b64 exec, -1")
        A.lab(DN)
        A.vm = keep + ['us'] * 9; A.lg = []
        A.vmem(f"s_lshl_b32 s3, s{WV}, 8\ns_mov_b64 exec, 1\nbuffer_load_dword v47, v{VZ}, {DS_}, s3 offen sc1\ns_mov_b64 exec, -1", 'dbg')
        self.stamp('s.st')
        qmap = {}
        for st_ in range(40):
            for p in range(2): qmap[10*(st_//5) + cg32(st_ % 5, 0, p)//2] = (st_, p)
        done = set(); gram = [0]
        def gram1():
            if gram[0] < 40 and (gram[0], 0) in done and (gram[0], 1) in done:
                k = gram[0]; gram[0] += 1
                A(f"v_mfma_f32_32x32x16_bf16 {v(GR,16)}, {a(4*k,4)}, {a(4*k,4)}, {'0' if k == 0 else v(GR,16)}")
        def xreads(ch, also=()):
            also = list(also)
            A.wait_vm(('x', ch))
            for k, q in enumerate(range(16*ch, 16*ch + 16)):
                st_, p = qmap[q]
                A(f"v_xor_b32 v{TMP+(k&1)}, {k*16}, v{VAX}")
                A.lds(f"ds_read_b64 {a(4*st_+2*p,2)}, v{TMP+(k&1)} offset:{(ch % NB)*8192}")
                if k % 2:
                    gram1(); self.drain(also, 3)
            assert not also
            A.wait_lg0()
            for q in range(16*ch, 16*ch + 16): done.add(qmap[q])
        if not o.get("x1early", 0): xjob(1)
        xjob(2)
        xreads(0)
        A.wait_vm('dbg'); A("s_barrier")
        self.stamp('s.drain')
        W1_ = A.newlab("w"); OKI = A.newlab("oki")
        A(f"s_cmp_lg_u32 s{WV}, 0\ns_cbranch_scc1 {W1_}\ns_mov_b64 exec, 1\nv_cmp_gt_u32 vcc, 1, v47\ns_cbranch_vccz {OKI}")
        self.spin(VZ, "1", 0x10, DS_)
        A.lab(OKI)
        A(f"s_lshl_b32 s32, s{J}, 7\ns_add_u32 s32, s32, {CG}\nv_mov_b32 v48, s32\ns_and_b32 s32, s{S_U}, 7\ns_lshl_b32 s32, s32, 7\ns_add_u32 s32, s32, {PK3}\nv_writelane_b32 v48, s32, 1")
        A(f"s_cmp_lt_u32 s{S_U}, 160\ns_cselect_b32 exec_lo, 3, 1\nv_mov_b32 v51, 1\nbuffer_atomic_add v51, v48, {WS}, 0 offen sc1\ns_mov_b64 exec, -1")
        A.lab(W1_)
        for x in j4 + j5: self.emit(x)
        xreads(1, xlist(3)); xreads(2, xlist(4)); xreads(3); xreads(4)
        self.stamp('s.x')
        W2_ = A.newlab("w")
        A(f"s_cmp_lg_u32 s{WV}, 0\ns_cbranch_scc1 {W2_}")
        A(f"s_lshl_b32 s32, s{J}, 7\ns_add_u32 s32, s32, {CG}\nv_mov_b32 v48, s32\ns_lshl_b32 s32, s{CT}, 7\ns_add_u32 s32, s32, {PK3}\nv_writelane_b32 v48, s32, 1\nv_mov_b32 v50, 16\nv_writelane_b32 v50, 20, 1\ns_mov_b64 exec, 3")
        self.spin(48, "v50", 0x20)
        A("s_mov_b64 exec, -1")
        A.lab(W2_)
        A("s_barrier")
        self.stamp('s.poll')
        bases = [VL16, VB1, VB2]
        slot = lambda k: [98304, 114688, 131072, 49152, 65536, 81920, 0, 16384, 32768, 49152][k >> 2] + (k & 3) * 4096
        wgrp = lambda g: self.rnd(S_W1, g*16384, slot(4*g), 4, ('w', g))
        up = 3
        for g in range(up): [self.emit(x) for x in wgrp(g)]
        while gram[0] < 40: gram1()
        A(f"s_lshl_b32 s99, s{J}, 12\ns_add_u32 s99, s99, {CSP1}")
        A(f"s_lshl_b32 s{T[5]}, s{S_A3}, 4\ns_mul_i32 s{T[5]}, s{T[5]}, 1280\ns_mul_i32 s3, s{CT}, 160\ns_add_u32 s{T[5]}, s{T[5]}, s3")
        A(f"v_and_b32 v{CP+10}, 15, v{VL}\nv_mul_u32_u24 v{CP+10}, 1280, v{CP+10}\nv_lshrrev_b32 v48, 4, v{VL}\nv_lshl_add_u32 v{CP+10}, v48, 3, v{CP+10}")
        for k in range(1, 16): A(f"v_cndmask_b32 v{GR}, v{GR}, v{GR+k}, s[{MASK+2*k}:{MASK+2*k+1}]")
        A(f"v_mov_b32 v{GR+1}, v{GR}\nv_mov_b32 v{GR+2}, v{GR}\nv_permlane32_swap_b32 v{GR+1}, v{GR+2}\nv_bfe_u32 v48, v{VL}, 2, 1\nv_cmp_eq_u32 vcc, 0, v48\nv_cndmask_b32 v{GR}, v{GR+2}, v{GR+1}, vcc\nv_mul_f32 v{GR}, {fhex(1.0/640)}, v{GR}")
        jobs = [({7: 11, 8: 11, 9: 19}.get(g, 0), 4*g - 1.5, wgrp(g)) for g in range(up, 10)]
        jobs += [(4, 30 + k, [('vm', f"buffer_load_dword v{CP+k}, v{CP+8}, {WS}, s99 offen offset:{128*k} sc1", 'cp')]) for k in range(8)]
        jobs += [(24 + 2*k, 70 + k, [('vm', f"buffer_load_dwordx2 {v(RES+2*k,2)}, v{CP+10}, {XS}, s{T[5]} offen offset:{32*k}", 'res')]) for k in range(5)]
        jobs.append((31, 99, self.rnd(S_W3, 30720, lds3(3), 8, 'w3')))
        sched = self.edf(jobs, 40, o.get("r1a", 1.8))
        assert not any(isinstance(x, tuple) and x[2] == 'cp' for k in range(26, 40) for x in sched[k])
        sched[26] += [('wv', 'cp')] + [f"v_add_f32 v{CP}, v{CP}, v{CP+k}" for k in range(1, 8)] + [('lg', f"ds_write_b32 v{CP+9}, v{CP}", 'csw')]
        late = self.pack_late()
        l0 = 0; nl = o.get("latelen", 24)
        for k in range(nl): sched[l0 + k] += late[k*len(late)//nl:(k+1)*len(late)//nl]
        assert not any(isinstance(x, tuple) and x[0] == 'lg' and 'tr_b16' in x[1] for k in range(9, 40) for x in sched[k])
        A.wait_vm(('w', 0)); A.wait_lg0(); A("s_barrier")
        self.stamp('p1.go')
        for t in range(4): A.lds(f"ds_read_b128 {v(WF+4*t,4)}, {self.ldsaddr(slot(0) + 1024*t, bases)}", ('f', 0, t))
        fill = []
        for st_ in range(40):
            if st_ % 4 == 3 and st_ < 39:
                self.need(('w', st_ // 4 + 1), fill)
                A("s_barrier")
                if o.get("in1"):
                    A("s_mov_b32 s101, m0"); self.stamp(f'd.{st_}'); A("s_mov_b32 m0, s101")
            fill += sched[st_]
            for t in range(4):
                A.wait_lg(('f', st_, t))
                A(f"v_mfma_f32_32x32x16_bf16 {v(ACC+16*t,16)}, {v(WF+4*t,4)}, {a(4*st_,4)}, {'0' if st_ == 0 else v(ACC+16*t,16)}")
                if st_ < 39: A.lds(f"ds_read_b128 {v(WF+4*t,4)}, {self.ldsaddr(slot(st_+1) + 1024*t, bases)}", ('f', st_+1, t))
                self.drain(fill, 4)
        assert not fill
        A.wait_lg0(); A("s_barrier")
        A(f"v_mul_f32 v{MU}, {fhex(-1.0/640)}, v{ACC+60}\nv_fma_f32 v{GR}, -v{MU}, v{MU}, v{GR}\nv_max_f32 v{GR}, 0, v{GR}\nv_add_f32 v{GR}, 0x3727c5ac, v{GR}\nv_rsq_f32 v{RS}, v{GR}")
        self.stamp('p1.main')
        self.p1_epilogue(ACC, MU, RS)

    def stage_jobs(self):
        t = 156
        pre = [f"v_and_b32 v{t+4}, 7, v{VL}", f"v_lshrrev_b32 v{t+5}, 3, v{VL}", f"v_mul_u32_u24 v{t}, 3456, v{t+5}", f"v_lshl_add_u32 v{t}, v{t+4}, 4, v{t}",
               f"s_and_b32 s99, s{S_U}, 7", "s_mul_i32 s99, s99, 80", f"s_mul_i32 s100, s{KH}, 40", "s_add_u32 s99, s99, s100", "s_mul_i32 s99, s99, 3456",
               f"s_lshr_b32 s100, s{S_U}, 3", "s_lshl_b32 s100, s100, 7", "s_add_u32 s99, s99, s100",
               f"s_lshr_b32 s100, s{S_U}, 2", "s_mul_i32 s100, s100, 32*1280", f"s_and_b32 s101, s{S_U}, 3", "s_mul_i32 s101, s101, 320", "s_add_u32 s100, s100, s101",
               f"s_cmp_ge_u32 s{S_U}, 216\ns_cmov_b32 s99, {OOB}\ns_cmov_b32 s100, {OOB}"]
        for n in range(3):
            pre += [f"s_add_u32 s101, s{WV}, {4*n}", "s_min_u32 s101, s101, 9", "s_lshl_b32 s101, s101, 6", f"v_add_u32 v{t+4}, s101, v{VL}", f"v_mul_u32_u24 v{t+5}, 3277, v{t+4}", f"v_lshrrev_b32 v{t+5}, 16, v{t+5}",
                    f"v_mul_u32_u24 v{t+6}, 20, v{t+5}", f"v_sub_u32 v{t+6}, v{t+4}, v{t+6}", f"v_mul_u32_u24 v{t+5}, 1280, v{t+5}", f"v_lshl_add_u32 v{t+1+n}, v{t+6}, 4, v{t+5}"]
        j4 = [f"s_mul_i32 s{T[8]}, s{WV}, 5120"]
        for n in range(5):
            j4 += [f"s_add_u32 m0, s{T[8]}, {STG4 + n*1024}", ('vm', f"buffer_load_dwordx4 v{t}, {GUS}, s99 offen {self.nts} lds", 'stg'), f"s_add_u32 s99, s99, {8*3456}"]
        j5 = []
        for n in range(3):
            j5 += [f"s_add_u32 s{T[8]}, s{WV}, {4*n}", f"s_min_u32 s{T[8]}, s{T[8]}, 9", f"s_lshl_b32 s{T[8]}, s{T[8]}, 10", f"s_add_u32 m0, s{T[8]}, {STG5}",
                   ('vm', f"buffer_load_dwordx4 v{t+1+n}, {WDS}, s100 offen {self.nts} lds", 'stg')]
        return pre, j4[:-1], j5

    def pack_late(self):
        st = "sc1"; L = []
        r, c, G, ad, FR, FD, CA, ONE = 44, 45, 46, 47, 192, 212, 224, 148
        add = lambda txt: L.extend(txt.split("\n"))
        add(f"v_bfe_u32 v{r}, v{VL}, 2, 2\nv_and_b32 v{c}, 3, v{VL}\nv_lshrrev_b32 v{G}, 4, v{VL}")
        add(f"v_lshrrev_b32 v{ad}, 1, v{G}\nv_lshl_add_u32 v{ad}, v{ad}, 2, v{r}\nv_lshlrev_b32 v{ad}, 7, v{ad}\nv_and_b32 v48, 1, v{c}\nv_lshl_add_u32 v{ad}, v48, 4, v{ad}\nv_and_b32 v48, 1, v{G}\nv_lshl_add_u32 v{ad}, v48, 3, v{ad}")
        add(f"v_lshrrev_b32 v48, 1, v{c}\nv_mul_u32_u24 v48, 10240, v48\nv_add_u32 v{ad}, v{ad}, v48\ns_lshl_b32 s28, s{WV}, 5\ns_add_u32 s28, s28, {STG4}\nv_add_u32 v{ad}, s28, v{ad}")
        for u in range(5):
            for p in range(2): L.append(('lg', f"ds_read_b64_tr_b16 {v(FR+4*u+2*p,2)}, v{ad} offset:{4*cg32(u,0,p)*128}", ('pl', u)))
        add(f"v_lshl_add_u32 v49, v{G}, 3, v{r}\nv_mul_u32_u24 v49, 320, v49\nv_lshl_add_u32 v49, v{c}, 3, v49\ns_mul_i32 s29, s{KH}, 160\ns_mul_i32 s28, s{RR}, 96\ns_add_u32 s29, s29, s28\ns_add_u32 s29, s29, {STG5}\nv_add_u32 v49, s29, v49\ns_lshl_b32 s28, s{RR}, 5\nv_subrev_u32 v50, s28, v49")
        for k in range(3):
            for p in range(2): L.append(('lg', f"ds_read_b64_tr_b16 {v(FD+4*k+2*p,2)}, v{49 if k < 2 else 50} offset:{p*1280 + k*32}", 'pd'))
        add(f"s_and_b32 s29, s{S_U}, 7\ns_lshr_b32 s28, s{S_U}, 3\ns_lshl_b32 s28, s28, 2\ns_add_u32 s28, s28, s{WV}")
        add("s_mul_i32 s30, s28, 147\ns_lshr_b32 s30, s30, 10\ns_mul_i32 s31, s30, 7\ns_sub_u32 s31, s28, s31")
        add(f"s_mov_b32 s32, {P4_GROUPS[0][0]}\ns_mov_b32 s35, {P4_GROUPS[0][1]}")
        for t0, nt in P4_GROUPS[1:]: L.append(f"s_cmp_ge_u32 s31, {t0}\ns_cselect_b32 s32, {t0}, s32\ns_cselect_b32 s35, {nt}, s35")
        add(f"s_mul_i32 s30, s30, {WP4_J}\ns_mul_i32 s34, s32, 39\ns_add_u32 s34, s34, s31\ns_mul_i32 s32, s29, 5\ns_mul_i32 s32, s32, s35\ns_add_u32 s34, s34, s32\ns_lshl_b32 s34, s34, 10\ns_add_u32 s30, s30, s34\ns_add_u32 s30, s30, {WP4}\ns_lshl_b32 s35, s35, 10")
        add(f"s_lshl_b32 s28, s28, 3\ns_add_u32 s28, s28, s29\ns_lshl_b32 s28, s28, 7\ns_add_u32 s28, s28, {CSP4}")
        L.append(f"s_cmp_ge_u32 s{S_U}, 216\ns_cmov_b32 s30, {OOB}\ns_cmov_b32 s28, {OOB}")
        add(f"v_lshrrev_b32 v48, 5, v{VL}\nv_lshlrev_b32 v48, 6, v48")
        for u in range(5):
            L += [('wl', ('pl', u)), ('vm', f"buffer_store_dwordx4 {v(FR+4*u,4)}, v{VL16}, {WS}, s30 offen {st}", 'pst'),
                  f"v_mfma_f32_32x32x16_bf16 {v(CA,16)}, {v(FR+4*u,4)}, {v(ONE,4)}, {'0' if u == 0 else v(CA,16)}"]
            if u < 4: L.append("s_add_u32 s30, s30, s35")
        add(f"s_lshr_b32 s31, s{S_U}, 2")
        L.append("s_cmp_ge_u32 s31, 27\ns_cselect_b32 s29, 1, 0\ns_cselect_b32 s30, 27, 0")
        add("s_sub_u32 s30, s31, s30\ns_lshr_b32 s31, s30, 1\ns_lshl_b32 s31, s31, 1\ns_add_u32 s31, s31, s29\ns_lshl_b32 s31, s31, 1\ns_and_b32 s30, s30, 1\ns_add_u32 s31, s31, s30\ns_mul_i32 s31, s31, 5120")
        add(f"s_and_b32 s30, s{S_U}, 3\ns_lshl_b32 s30, s30, 1\ns_add_u32 s30, s30, s{KH}\ns_mul_i32 s30, s30, {WP5_C}\ns_add_u32 s30, s30, s31\ns_mul_i32 s29, s{RR}, 3072\ns_add_u32 s30, s30, s29\ns_add_u32 s30, s30, {WP5}")
        L.append(f"s_cmp_ge_u32 s{S_U}, 216\ns_cmov_b32 s30, {OOB}")
        add(f"s_lshl_b32 s29, s{RR}, 10\ns_sub_u32 s29, s30, s29")
        L.append(('wl', 'pd'))
        for k in range(3): L.append(('vm', f"buffer_store_dwordx4 {v(FD+4*k,4)}, v{VL16}, {WS}, s{30 if k < 2 else 29} offen offset:{k*1024} {st}", 'pst'))
        for q in range(4): L.append(('vm', f"s_mov_b32 exec_lo, 1\ns_mov_b32 exec_hi, 1\nbuffer_store_dwordx4 {v(CA+4*q,4)}, v48, {WS}, s28 offen offset:{16*q} {st}\ns_mov_b64 exec, -1", 'pst'))
        return L

    def setup2(self):
        A = self.A; t = VFREE
        A(f"s_lshl_b32 s3, s{MB}, 4\ns_add_u32 s3, s3, s{J}\ns_mul_i32 s{S_KVO}, s3, {KV_WG}\ns_add_u32 s{S_KVO}, s{S_KVO}, {KV}")
        A(f"s_lshl_b32 s3, s{MB}, 2\ns_lshl_b32 s36, s{RH}, 1\ns_add_u32 s3, s3, s36\ns_add_u32 s3, s3, s{RR}")
        A(f"s_mul_i32 s{S_X}, s3, 40960\ns_mul_i32 s36, s{CT}, 5120\ns_add_u32 s{S_X}, s{S_X}, s36")
        A(f"s_lshl_b32 s{S_STX}, s3, 3\ns_add_u32 s{S_STX}, s{S_STX}, s{CT}\ns_lshl_b32 s{S_STX}, s{S_STX}, 8")
        A(f"s_lshl_b32 s3, s3, 1\ns_add_u32 s{S_A3}, s3, s{KH}\ns_xor_b32 s{S_A3B}, s{S_A3}, 1")
        m5, h, m4, g = t, t+1, t+2, t+3
        A(f"v_and_b32 v{m5}, 31, v{VL}\nv_lshrrev_b32 v{h}, 5, v{VL}\nv_and_b32 v{m4}, 15, v{VL}\nv_lshrrev_b32 v{g}, 4, v{VL}")
        A(f"v_lshlrev_b32 v{VST}, 3, v{m5}\nv_lshl_add_u32 v{VST}, v{h}, 8, v{VST}")
        A(f"v_add_u32 v{VB1}, 0x10000, v{VL16}\nv_add_u32 v{VB2}, 0x20000, v{VL16}\nv_lshlrev_b32 v{VCS}, 6, v{h}\nv_add_u32 v{VCS}, {LDS_MISC}, v{VCS}")
        A(f"s_mul_i32 s3, s{J}, 7\ns_lshr_b32 s3, s3, 2\ns_sub_u32 s3, s3, 1\nv_add_u32 v{VCNT}, s3, v{VL}\nv_min_u32 v{VCNT}, 26, v{VCNT}\nv_lshlrev_b32 v{VCNT}, 7, v{VCNT}\nv_add_u32 v{VCNT}, {PK4}, v{VCNT}\nv_mov_b32 v{VTG}, 8")
        A(f"s_lshl_b32 s3, s{MB}, 8\nv_writelane_b32 v{VCNT}, s3, 0\ns_lshr_b32 s3, s{CT}, 1\ns_lshl_b32 s3, s3, 7\ns_add_u32 s3, s3, {PK5}\nv_writelane_b32 v{VCNT}, s3, 4\nv_writelane_b32 v{VTG}, 54, 4")

        A(f"s_lshl_b32 s3, s{MB}, 3\ns_lshl_b32 s36, s{WV}, 1\ns_add_u32 s3, s3, s36\ns_mul_i32 s3, s3, 20480\ns_mul_i32 s36, s{J}, 1280\ns_add_u32 s3, s3, s36\ns_add_u32 s3, s3, {OO}")
        A(f"v_lshrrev_b32 v{t+4}, 4, v{m5}\nv_mul_u32_u24 v{t+5}, 20480, v{t+4}\nv_lshl_add_u32 v{t+5}, v{m4}, 4, v{t+5}\nv_add_u32 v{VO3}, s3, v{t+5}\nv_lshl_add_u32 v{VO1}, v{h}, 8, v{VO3}")
        A(f"v_mul_u32_u24 v{VH}, {54*1024}, v{t+4}\nv_lshl_add_u32 v{VH}, v{m4}, 4, v{VH}\nv_lshl_add_u32 v{VH}, v{h}, 8, v{VH}")
        A(f"s_lshl_b32 s3, s{KH}, 4\nv_add_u32 v{t+4}, s3, v{m4}\nv_lshlrev_b32 v{VSX}, 3, v{t+4}\nv_and_b32 v{t+5}, 1, v{g}\nv_lshl_add_u32 v{t+4}, v{t+5}, 5, v{t+4}")
        A(f"v_lshlrev_b32 v{VX}, 4, v{t+4}\nv_lshl_add_u32 v{VX}, v{h}, 10, v{VX}")
        A(f"s_mul_i32 s3, s{WV}, 2560\ns_add_u32 s3, s3, {KREG}\nv_add_u32 v{VK}, s3, v{VL16}\ns_add_u32 s3, s3, 2048\nv_lshlrev_b32 v{VKS}, 3, v{VL}\nv_add_u32 v{VKS}, s3, v{VKS}")
        A(f"s_mul_i32 s3, s{WV}, 3328\ns_add_u32 s3, s3, {VREG - 32}")
        A(f"v_mul_u32_u24 v{VV}, 416, v{h}\nv_and_b32 v{t+4}, 1, v{g}\nv_lshl_add_u32 v{VV}, v{t+4}, 7, v{VV}\nv_and_b32 v{t+4}, 3, v{VL}\nv_lshl_add_u32 v{VV}, v{t+4}, 5, v{VV}")
        A(f"v_bfe_u32 v{t+4}, v{VL}, 2, 2\nv_lshl_add_u32 v{VV}, v{t+4}, 3, v{VV}\nv_add_u32 v{VV}, s3, v{VV}")
        A(f"s_add_u32 s3, s3, {8*3328 + 32}\nv_lshrrev_b32 v{t+4}, 2, v{m5}\nv_mul_u32_u24 v{t+4}, 416, v{t+4}\nv_and_b32 v{t+5}, 3, v{VL}\nv_lshl_add_u32 v{t+4}, v{t+5}, 3, v{t+4}\nv_add_u32 v{t+4}, s3, v{t+4}")
        A(f"v_lshl_add_u32 v{VW2}, v{h}, 6, v{t+4}\nv_lshl_add_u32 v{VW1}, v{h}, 5, v{t+4}\nv_mul_u32_u24 v{t+5}, 384, v{h}\nv_add_u32 v{VW12}, v{t+5}, v{t+4}")
        A(f"s_mul_i32 s3, s{WV}, 5120\nv_add_u32 v{VXW}, s3, v{VL16}\ns_xor_b32 s3, s{WV}, 1\ns_mul_i32 s3, s3, 5120\nv_add_u32 v{VXR}, s3, v{VL16}")
        A(f"v_lshlrev_b32 v{t+4}, 2, v{h}\nv_sub_u32 v{t+4}, v{m5}, v{t+4}")
        for r in range(16):
            A(f"v_cmp_le_i32 s[{MASK+2*r}:{MASK+2*r+1}], {8*(r>>2) + (r&3)}, v{t+4}")
        A(f"v_mov_b32 v{t+5}, 0xffff\nv_mov_b32 v{t+6}, 0xffff0000")
        for rr in range(8):
            A(f"v_cndmask_b32 v{PM+rr}, 0, v{t+5}, s[{MASK+4*rr}:{MASK+4*rr+1}]\nv_cndmask_b32 v{t+7}, 0, v{t+6}, s[{MASK+4*rr+2}:{MASK+4*rr+3}]\nv_or_b32 v{PM+rr}, v{PM+rr}, v{t+7}")

    def stats_load(self, off, dst):
        A = self.A
        A(f"s_add_u32 s{T[3]}, s{SL}, s{S_ST1}\ns_add_u32 s{T[3]}, s{T[3]}, {off}")
        for i in range(4):
            A.vmem(f"buffer_load_dwordx2 {v(dst+2*i,2)}, v{VST}, {WS}, s{T[3]} offen offset:{512*i} {self.ld}", 'st')

    def stats_finish(self, d, mu, rs):
        return [f"v_add_f32 v{d}, v{d}, v{d+2}", f"v_add_f32 v{d+1}, v{d+1}, v{d+3}", f"v_add_f32 v{d+4}, v{d+4}, v{d+6}", f"v_add_f32 v{d+5}, v{d+5}, v{d+7}",
                f"v_add_f32 v{d}, v{d}, v{d+4}", f"v_add_f32 v{d+1}, v{d+1}, v{d+5}", f"v_mov_b32 v{d+2}, v{d}", f"v_mov_b32 v{d+3}, v{d+1}",
                f"v_permlane32_swap_b32 v{d}, v{d+2}", f"v_permlane32_swap_b32 v{d+1}, v{d+3}",
                f"v_add_f32 v{d}, v{d}, v{d+2}", f"v_add_f32 v{d+1}, v{d+1}, v{d+3}",
                f"v_mul_f32 v{mu}, {fhex(-1.0/640)}, v{d}", f"v_mul_f32 v{d+1}, {fhex(1.0/640)}, v{d+1}",
                f"v_fma_f32 v{d+1}, -v{mu}, v{mu}, v{d+1}", f"v_max_f32 v{d+1}, 0, v{d+1}", f"v_add_f32 v{d+1}, 0x3727c5ac, v{d+1}",
                f"v_rsq_f32 v{rs}, v{d+1}"]

    def a_load(self, st_, sreg, dst, tag):
        self.A.vmem(f"buffer_load_dwordx4 {a(dst,4)}, v{VL16}, {WS}, s{sreg} offen offset:{(st_ & 3)*1024} {self.ld}", tag)

    def p1(self):
        A = self.A; o = self.o
        ACC, WF, STD, MU, RS = 64, 128, 144, 152, 153
        bases = [VL16, VB1, VB2]
        SA = T[4]
        def aload(st_):
            L = [f"s_add_u32 s{SA}, s{SA}, 4096"] if st_ and st_ % 4 == 0 else []
            return L + [('vm', f"buffer_load_dwordx4 {a(4*st_,4)}, v{VL16}, {WS}, s{SA} offen offset:{(st_ & 3)*1024} {self.ld}", ('a', st_))]
        A(f"s_add_u32 s{SA}, s{SL}, s{S_A1}")
        def wsteps(a0, a1):
            return (a0, self.rnd(S_W1, a0*4096, lds1(a0), a1 - a0, ('w', a0)))
        n0 = self.pre1
        cuts = sorted(set([n0] + [c for c in range(n0, 31, 4)] + [31, 36, 40]))
        groups = [wsteps(x, y) for x, y in zip(cuts, cuts[1:])]
        up = o.get("up1", 10)
        self.stats_load(STA, STD)
        for k in range(up): [self.emit(x) for x in aload(k)]
        jobs = [(0, k, aload(k)) for k in range(up, 40)]
        jobs += [(7 if a0 == 36 else 0, a0 - 1.5, L) for a0, L in groups]
        jobs.append((30, 99, self.rnd(S_W3, 30720, lds3(3), 8, 'w3')))
        sched = self.edf(jobs, 40, o.get("r1", 1.8))
        valid = {a0 - 1: ('w', a0) for a0, L in groups}
        valid.setdefault(7, None); valid.setdefault(30, None)
        sched[33] += self.stats_finish(STD, MU, RS)
        A.wait_vm(('a', 0)); A("s_barrier")
        self.stamp('p1.go')
        for t in range(4): A.lds(f"ds_read_b128 {v(WF+4*t,4)}, {self.ldsaddr(lds1(0) + 1024*t, bases)}", ('f', 0, t))
        fill = []
        for st_ in range(40):
            if st_ in valid:
                if valid[st_]: self.need(valid[st_], fill)
                A("s_barrier")
            fill += sched[st_]
            self.need(('a', st_), fill)
            for t in range(4):
                A.wait_lg(('f', st_, t))
                A(f"v_mfma_f32_32x32x16_bf16 {v(ACC+16*t,16)}, {v(WF+4*t,4)}, {a(4*st_,4)}, {'0' if st_ == 0 else v(ACC+16*t,16)}")
                if st_ < 39: A.lds(f"ds_read_b128 {v(WF+4*t,4)}, {self.ldsaddr(lds1(st_+1) + 1024*t, bases)}", ('f', st_+1, t))
                self.drain(fill, 4)
        assert not fill
        A("s_barrier")
        self.stamp('p1.main')

    def p1_epilogue(self, ACC, MU, RS):
        A = self.A; first = False
        CSR, PK, RQ = 160, 176, 154
        self.QA1, self.QB1, self.QA2, self.QB2 = 224, 228, 232, 236
        if first: A(f"v_mov_b32 v{RQ}, {fhex(QSCALE)}")
        else: A(f"v_mul_f32 v{RQ}, {fhex(QSCALE)}, v{RS}")
        def quad(t, j, dst, isq):
            r = ACC + 16*t + 4*j
            if not first:
                A.wait_lg(('cs', t, j))
                for i in range(4): A(f"v_fma_f32 v{r+i}, v{MU}, v{CSR+4*j+i}, v{r+i}")
            if isq or not first:
                for i in range(4): A(f"v_mul_f32 v{r+i}, v{RQ if isq else RS}, v{r+i}")
            A(f"v_cvt_pk_bf16_f32 v{dst}, v{r}, v{r+1}\nv_cvt_pk_bf16_f32 v{dst+1}, v{r+2}, v{r+3}")
        def csload(t):
            if not first:
                for j in range(4): A.lds(f"ds_read_b128 {v(CSR+4*j,4)}, v{VCS} offset:{128*t + 16*j}", ('cs', t, j))
        KA, KB, KS, VT = PK, PK+4, PK+8, PK+12
        A(f"s_add_u32 s{T[4]}, s{SL}, s{S_KVO}\ns_mul_i32 s{T[5]}, s{WV}, 2560\ns_add_u32 s{T[5]}, s{T[5]}, s{T[4]}\ns_mul_i32 s{T[6]}, s{WV}, 3328\ns_add_u32 s{T[6]}, s{T[6]}, s{T[4]}\ns_add_u32 s{T[6]}, s{T[6]}, 10240")
        csload(0)
        quad(0, 0, KA, 0); quad(0, 1, KA+2, 0)
        A.lds(f"ds_write_b128 v{VK}, {v(KA,4)} offset:{8*2560}")
        A.vmem(f"buffer_store_dwordx4 {v(KA,4)}, v{VL16}, {WS}, s{T[5]} offen {self.stkv}")
        quad(0, 2, KS, 0); quad(0, 3, KB, 0)
        csload(1)
        A.lds(f"ds_write_b64 v{VKS}, {v(KS,2)} offset:{8*2560}")
        A(f"v_lshlrev_b32 v{PK+10}, 3, v{VL}")
        A.vmem(f"buffer_store_dwordx2 {v(KS,2)}, v{PK+10}, {WS}, s{T[5]} offen offset:2048 {self.stkv}")
        quad(1, 0, KB+2, 0)
        A.lds(f"ds_write_b128 v{VK}, {v(KB,4)} offset:{8*2560+1024}")
        A.vmem(f"buffer_store_dwordx4 {v(KB,4)}, v{VL16}, {WS}, s{T[5]} offen offset:1024 {self.stkv}")
        A(f"v_mov_b32 v{VT+10}, 0x3f803f80\nv_mov_b32 v{VT+11}, 0x3f803f80")
        A.lds(f"ds_write_b64 v{VW1}, {v(VT+10,2)} offset:{5*32}")
        for n, (t, j, ad, pos) in enumerate(((1, 1, VW2, 1), (1, 2, VW2, 2), (1, 3, VW12, 0), (2, 0, VW2, 7), (2, 1, VW2, 8))):
            if n == 3: csload(2)
            quad(t, j, VT+2*n, 0)
            A.lds(f"ds_write_b64 v{ad}, {v(VT+2*n,2)} offset:{pos*32}", 'vw')
        A(f"s_mul_i32 s{T[7]}, s{WV}, 3328\ns_add_u32 s{T[7]}, s{T[7]}, {VREG + 8*3328}\nv_add_u32 v{PK+10}, s{T[7]}, v{VL16}")
        A.wait_lg('vw')
        VC = 192
        for n in range(4): A.lds(f"ds_read_b128 {v(VC+4*n,4)}, v{PK+10} offset:{1024*n}", ('vc', n))
        for n in range(4):
            A.wait_lg(('vc', n))
            if n == 3: A("s_mov_b64 exec, 0xffff")
            A.vmem(f"buffer_store_dwordx4 {v(VC+4*n,4)}, v{VL16}, {WS}, s{T[6]} offen offset:{1024*n} {self.stkv}", 'out')
        A("s_mov_b64 exec, -1")
        self.stamp('p1.epi')
        quad(2, 2, self.QA1, 1); quad(2, 3, self.QA1+2, 1)
        csload(3)
        quad(3, 0, self.QA2, 1); quad(3, 1, self.QB1, 1); quad(3, 2, self.QB1+2, 1)
        A(f"v_mov_b32 v{self.QB2}, v{self.QA2}\nv_mov_b32 v{self.QB2+1}, v{self.QA2+1}")
        for q in (self.QA2, self.QB2): A(f"v_mov_b32 v{q+2}, 0\nv_mov_b32 v{q+3}, 0")
        A(f"s_mov_b32 exec_lo, 0\nv_mov_b32 v{self.QA2}, 0\nv_mov_b32 v{self.QA2+1}, 0\ns_mov_b32 exec_lo, -1\ns_mov_b32 exec_hi, 0\nv_mov_b32 v{self.QB2}, 0\nv_mov_b32 v{self.QB2+1}, 0\ns_mov_b32 exec_hi, -1")

    def kv_sync(self):
        A = self.A; N = A.newlab("nw0"); E = A.newlab("syn"); t = VFREE
        A("s_barrier")
        self.stamp('p1.drain')
        A(f"s_add_u32 s{T[3]}, s{LAY}, 1\ns_cmp_lg_u32 s{WV}, 0\ns_cbranch_scc1 {N}")
        A(f"s_mov_b64 exec, 7\nv_sub_u32 v{t+2}, s{MB}, v{VL}\nv_cmp_gt_i32 vcc, 0, v{t+2}\nv_mov_b32 v{t+3}, s{MB}\nv_cndmask_b32 v{t+2}, v{t+2}, v{t+3}, vcc")
        A(f"v_lshlrev_b32 v{t+2}, 4, v{t+2}\nv_add_u32 v{t+2}, s{J}, v{t+2}\nv_lshlrev_b32 v{t+2}, 7, v{t+2}\nv_add_u32 v{t+2}, {KVF}, v{t+2}\nv_mov_b32 v{t+3}, s{T[3]}")
        A(f"s_mov_b64 exec, 1\nbuffer_store_dword v{t+3}, v{t+2}, {WS}, 0 offen sc1")
        self.packed_signal()
        A("s_mov_b64 exec, 7")
        self.spin(t + 2, f's{T[3]}', 0x100)
        A(f"s_mov_b64 exec, -1")
        self.stamp('p1.poll')
        A(f"s_branch {E}")
        A.lab(N)
        A.lab(E)
        A("s_barrier")
        for src in range(2):
            back = 2 - src
            A(f"s_add_u32 s{T[4]}, s{SL}, s{S_KVO}\ns_sub_u32 s{T[4]}, s{T[4]}, {back*16*KV_WG}\ns_cmp_lt_u32 s{MB}, {back}\ns_cmov_b32 s{T[4]}, {OOB}")
            for n in range(6):
                A(f"s_add_u32 s{T[5]}, s{WV}, {4*n}")
                if n == 5: A(f"s_min_u32 s{T[5]}, s{T[5]}, 22")
                A(f"s_lshl_b32 s{T[5]}, s{T[5]}, 10\ns_add_u32 s{T[6]}, s{T[5]}, s{T[4]}")
                ko = KREG + src*10240; vo = VREG + src*13312 - 10240
                if n < 2: A(f"s_add_u32 m0, s{T[5]}, {ko}")
                elif n > 2: A(f"s_add_u32 m0, s{T[5]}, {vo}")
                else:
                    A(f"s_cmp_lt_u32 s{WV}, 2"); sel(A, T[7], ko, vo); A(f"s_add_u32 m0, s{T[5]}, s{T[7]}")
                A.vmem(f"buffer_load_dwordx4 v{VL16}, {WS}, s{T[6]} offen {self.ld} lds", 'halo')
        A.wait_vm('halo'); A("s_barrier")
        self.stamp('p2.go')

    def packed_signal(self):
        A = self.A; L = A.newlab("ps"); t = VFREE
        A(f"s_cmp_lg_u32 s{LAY}, 0\ns_cbranch_scc1 {L}\ns_cmp_ge_u32 s{S_U}, 216\ns_cbranch_scc1 {L}")
        A(f"s_lshr_b32 s3, s{S_U}, 3\ns_lshl_b32 s3, s3, 7\ns_add_u32 s3, s3, {PK4}\nv_mov_b32 v{t}, s3\ns_and_b32 s3, s{S_U}, 3\ns_lshl_b32 s3, s3, 7\ns_add_u32 s3, s3, {PK5}\nv_writelane_b32 v{t}, s3, 1")
        A(f"s_mov_b64 exec, 3\nv_mov_b32 v{t+1}, 1\nbuffer_atomic_add v{t+1}, v{t}, {WS}, 0 offen sc1")
        A.lab(L)

    def colsums(self, between, nb):
        A = self.A; L = A.newlab("x0"); L1 = A.newlab("x1"); t = VFREE
        A(f"s_lshl_b32 s{T[7]}, s{LAY}, 2\ns_sub_u32 s{T[7]}, s{RR}, s{T[7]}\ns_cmp_lg_u32 s{T[7]}, 1\ns_cbranch_scc1 {L1}")
        A(f"s_mul_i32 s{T[5]}, s{J}, 7168\ns_add_u32 s{T[5]}, s{T[5]}, {CSP4 - 4096}")
        A(f"s_lshl_b32 s{T[6]}, s{S_WI}, 7\nv_add_u32 v{t}, s{T[6]}, v{VL}")
        for r in range(2):
            A(f"v_add_u32 v{t+1}, {64*r}, v{t}\nv_lshrrev_b32 v{t+2}, 5, v{t+1}\nv_and_b32 v{t+3}, 31, v{t+1}\nv_lshlrev_b32 v{t+3}, 2, v{t+3}\nv_lshl_add_u32 v{t+2}, v{t+2}, 10, v{t+3}")
            for k in range(8): A(f"buffer_load_dword v{t+4+8*r+k}, v{t+2}, {WS}, s{T[5]} offen offset:{128*k} sc1")
        A.lab(L1)
        between()
        A(f"s_cmp_lg_u32 s{T[7]}, 1\ns_cbranch_scc1 {L}")
        A(f"v_lshlrev_b32 v{t+2}, 2, v{t}\nv_add_u32 v{t+2}, {LDS_MISC}, v{t+2}\ns_waitcnt vmcnt({nb})")
        for k in range(1, 8): A(f"v_add_f32 v{t+4}, v{t+4}, v{t+4+k}\nv_add_f32 v{t+12}, v{t+12}, v{t+12+k}")
        A(f"ds_write_b32 v{t+2}, v{t+4}\nds_write_b32 v{t+2}, v{t+12} offset:256\ns_waitcnt lgkmcnt(0)")
        A.lab(L)

    def p2(self):
        A = self.A
        SB = [48, 64, 80]; PB = [96, 104]; PD = 112; OA = [128, 144]; KF = [162, 174]; VF = [184, 192, 200]; CB = [208, 240]
        Q1 = [self.QA1, self.QB1]; Q2 = [self.QA2, self.QB2]
        cz = self.o.get("czero", True)
        blocks = [(i, hd) for i in range(1, 8) for hd in range(2)] + [('m', 0), ('m', 1)]
        N = len(blocks)
        def kread(i, buf):
            k = KF[buf]
            return [('lg', f"ds_read_b64 {v(k,2)}, v{VKS} offset:{i*2560}", ('k', i)), ('lg', f"ds_read_b128 {v(k+2,4)}, v{VK} offset:{i*2560}", ('k', i)),
                    ('lg', f"ds_read_b128 {v(k+6,4)}, v{VK} offset:{i*2560+1024}", ('k', i))]
        def vread(i, hd, buf):
            return [('lg', f"ds_read_b64_tr_b16 {v(VF[buf]+4*aa+2*p,2)}, v{VV} offset:{i*3328 + (4*aa+2*p)*416 + 192*hd}", ('v', i, hd)) for aa in range(2) for p in range(2)]
        kbuf = {i: i % 2 for i in range(1, 8)}; kbuf[0] = 0; kbuf[8] = 1
        def smf(i, hd, sb):
            k = KF[kbuf[i]]; c = '0' if cz else v(CB[hd], 16)
            return [('mf', f"v_mfma_f32_32x32x16_bf16 {v(sb,16)}, {v(k+2+4*hd,4)}, {v(Q1[hd],4)}, {c}", ('k', i)),
                    ('mf', f"v_mfma_f32_32x32x16_bf16 {v(sb,16)}, {v(k,4)}, {v(Q2[hd],4)}, {v(sb,16)}", None)]
        started = [False, False]
        def pvf(i, hd, pb, vb):
            L = []
            for aa in range(2):
                c = v(OA[hd], 16) if started[hd] else '0'; started[hd] = True
                L.append(('mf', f"v_mfma_f32_32x32x16_bf16 {v(OA[hd],16)}, {v(VF[vb]+4*aa,4)}, {v(pb+4*aa,4)}, {c}", ('v', i, hd) if aa == 0 else None))
            return L
        def emit(x):
            if isinstance(x, str): A(x)
            elif x[0] == 'vm': A.vmem(x[1], x[2])
            elif x[0] == 'lg': A.lds(x[1], x[2])
            else:
                if x[2] is not None: A.wait_lg(x[2])
                A(x[1])
        def weave(mfs, fill):
            cost = lambda x: 8 if isinstance(x, str) and x.startswith("v_exp") else 4
            tot = sum(map(cost, fill)); acc = 0; k = 0
            for x in fill:
                while k < len(mfs) and acc >= tot * k / len(mfs): emit(mfs[k]); k += 1
                emit(x); acc += cost(x)
            while k < len(mfs): emit(mfs[k]); k += 1
        sbuf = lambda n: SB[n % 2]
        for x in kread(1, kbuf[1]): emit(x)
        for x in smf(1, 0, sbuf(0)): emit(x)
        for n in range(N + 1):
            mfs = []; fill = []
            if n + 1 < N:
                i, hd = blocks[n+1]
                if i == 'm': mfs += smf(0, hd, sbuf(n+1)) + smf(8, hd, SB[2])
                else: mfs += smf(i, hd, sbuf(n+1))
            pv = []
            if n >= 1:
                i, hd = blocks[n-1]
                if i == 'm': pv = pvf(0, hd, PB[(n-1) % 2], (n-1) % 2) + pvf(8, hd, PD, 2)
                else: pv = pvf(i, hd, PB[(n-1) % 2], (n-1) % 2)
            if n < N:
                i, hd = blocks[n]
                if i != 'm' and hd == 0:
                    if i < 7: fill += kread(i+1, kbuf[i+1])
                    else: fill += kread(0, kbuf[0])
                sb = sbuf(n)
                if i == 'm':
                    pre = [f"v_cndmask_b32 v{sb+r}, v{sb+r}, v{SB[2]+r}, s[{MASK+2*r}:{MASK+2*r+1}]" for r in range(16)]
                    for x in pre: emit(x)
                    for x in pv: emit(x)
                    pv = []
                    fill += vread(0, hd, n % 2) + vread(8, hd, 2)
                else:
                    fill += vread(i, hd, n % 2)
                ex = []
                for r in range(16):
                    ex.append(f"v_exp_f32 v{sb+r}, v{sb+r}")
                    if r >= 3 and r % 2 == 1: ex.append(f"v_cvt_pk_bf16_f32 v{PB[n%2]+(r-3)//2}, v{sb+r-3}, v{sb+r-2}")
                ex.append(f"v_cvt_pk_bf16_f32 v{PB[n%2]+7}, v{sb+14}, v{sb+15}")
                if i == 'm':
                    for rr in range(8):
                        ex.append(f"v_and_b32 v{PD+rr}, v{PM+rr}, v{PB[n%2]+rr}")
                        ex.append(f"v_bfi_b32 v{PB[n%2]+rr}, v{PM+rr}, 0, v{PB[n%2]+rr}")
                fill += ex
                if blocks[n] == (7, 1):
                    for x in mfs[:2]: emit(x)
                    for x in kread(8, kbuf[8]): emit(x)
                    mfs = pv + mfs[2:]; pv = []
            weave(mfs + pv, fill) if fill else [emit(x) for x in mfs + pv]
        A("s_barrier")
        self.stamp('p2.main')
        ra, rb = 48, 49
        A(f"v_rcp_f32 v{ra}, v{OA[0]+12}\nv_rcp_f32 v{rb}, v{OA[1]}")
        A(f"s_nop 0")
        def pk(dst, r, rs):
            for i in range(4): A(f"v_mul_f32 v{r+i}, v{rs}, v{r+i}")
            A(f"v_cvt_pk_bf16_f32 v{dst}, v{r}, v{r+1}\nv_cvt_pk_bf16_f32 v{dst+1}, v{r+2}, v{r+3}")
        pk(52, OA[0]+4, ra); pk(54, OA[0]+8, ra)
        A.vmem(f"buffer_store_dwordx4 {v(52,4)}, v{VO1}, {WS}, s{SL} offen {self.st}")
        pk(56, OA[1]+4, rb); pk(58, OA[1]+8, rb)
        A.vmem(f"buffer_store_dwordx4 {v(56,4)}, v{VO1}, {WS}, s{SL} offen offset:768 {self.st}")
        pk(60, OA[0], ra); pk(62, OA[1]+12, rb)
        A("s_mov_b32 exec_lo, 0")
        A.vmem(f"buffer_store_dwordx4 {v(60,4)}, v{VO3}, {WS}, s{SL} offen offset:512 {self.st}", 'out')
        A("s_mov_b32 exec_lo, -1")

    def proj(self, which):
        A = self.A
        nb = 10 if which == 3 else 27
        ACC, WF, B0 = 64, 112, 136
        SA0, SA1, SW = T[4], T[5], T[6]
        src = OO if which == 3 else HH
        for sa, m in ((SA0, S_A3), (SA1, S_A3B)):
            A(f"s_mul_i32 s{sa}, s{m}, {2*nb*1024}\ns_add_u32 s{sa}, s{sa}, s{SL}\ns_mul_i32 s{T[7]}, s{KH}, {nb*1024}\ns_add_u32 s{sa}, s{sa}, s{T[7]}\ns_add_u32 s{sa}, s{sa}, {src}")
        def aload(b):
            L = []
            if b and b % 4 == 0: L += [f"s_add_u32 s{SA0}, s{SA0}, 4096", f"s_add_u32 s{SA1}, s{SA1}, 4096"]
            for u, sa in enumerate((SA0, SA1)):
                L.append(('vm', f"buffer_load_dwordx4 {a(8*b+4*u,4)}, v{VL16}, {WS}, s{sa} offen offset:{(b&3)*1024} {self.ld}", ('a', b)))
            return L
        o = self.o
        up = o.get("up3", 6) if which == 3 else o.get("up5", 6)
        for b in range(up):
            for x in aload(b): self.emit(x)
        ntail = o.get("tail1", 0)
        jobs = [(0, b, aload(b)) for b in range(up, nb)]
        if which == 5:
            jobs += [(2*(c-6)+1, 2*c - 1.5, self.rnd(S_W5, c*20480, (c % 7)*20480, 5, ('w', c))) for c in range(7, 14)]
            jobs += [(2*(13-ntail+k)+1, 99+k, self.rnd(S_W1, k*20480, lds1(5*k), 5, 'w1')) for k in range(ntail)]
        sched = self.edf(jobs, nb, o.get("r3", 3.0) if which == 3 else o.get("r5", 3.3))
        khoff = 5120 if which == 3 else 10240
        A(f"s_mul_i32 s{T[7]}, s{KH}, {khoff}")
        for k in range(3): A(f"v_add_u32 v{B0+k}, s{T[7]}, v{[VL16, VB1, VB2][k]}")
        bases = [B0, B0+1, B0+2]
        for k in range(10):
            A(f"v_lshlrev_b32 v{ACC+2*k}, 16, v{RES+k}\nv_and_b32 v{ACC+2*k+1}, 0xffff0000, v{RES+k}")
        wl = (lambda b: lds3(b)) if which == 3 else (lambda b: ((b >> 1) % 7) * 20480 + (b & 1) * 5120)
        A.wait_vm(('a', 0)); A("s_barrier")
        self.stamp(f'p{which}.go')
        WFB = [WF, 140]
        for t in range(5): A.lds(f"ds_read_b128 {v(WF+4*t,4)}, {self.ldsaddr(wl(0) + 1024*t, bases)}", ('f', 0))
        fill = []
        for b in range(nb):
            if which == 5 and b % 2 == 1 and b >= 3:
                if b // 2 + 1 >= 7: self.need(('w', b // 2 + 1), fill)
                A("s_barrier")
            fill += sched[b]
            self.need(('a', b), fill)
            A.wait_lg(('f', b))
            if self.prof and which == 5 and o.get("in5") and b in (4, 9, 14, 19, 24): self.stamp(f'p5.b{b}')
            for t in range(5):
                for u in range(2):
                    d = ACC + 20*u + 4*t
                    A(f"v_mfma_f32_16x16x32_bf16 {v(d,4)}, {v(WFB[b&1]+4*t,4)}, {a(8*b+4*u,4)}, {'0' if (b == 0 and u == 1) else v(d,4)}")
                    k = 2*t + u
                    if k < 5 and b < nb - 1: A.lds(f"ds_read_b128 {v(WFB[(b+1)&1]+4*k,4)}, {self.ldsaddr(wl(b+1) + 1024*k, bases)}", ('f', b+1))
                    if k >= 4: self.drain(fill, 2)
        while fill: self.emit(fill.pop(0))
        self.stamp(f'p{which}.main')
        fill = []
        if which == 3:
            self.post = (S_W4, 0, 0, 39)
            self.pre = lambda: self.colsums(lambda: self.rnd3(S_W4, 39936, 39936, 15), 15)
        else:
            k0 = 5*ntail
            self.post = (S_W1, k0*4096, lds1(k0), 36)
            self.pre1 = min(31, k0 + 9 + o.get("s31", 12)*3//4)
            n3 = -(-(self.pre1 - k0 - 9) * 4 // 3)
            assert lds1(k0 + 9) + 3*n3*1024 <= LDS_MISC
            self.pre = lambda: self.rnd3(S_W1, (k0+9)*4096, lds1(k0+9), n3)
        xo = XCH3 if which == 3 else XCH5
        A(f"v_add_u32 v{B0}, {xo}, v{VXW}\nv_add_u32 v{B0+1}, {xo}, v{VXR}")
        for t in range(5): A.lds(f"ds_write_b128 v{B0}, {v(ACC+20+4*t,4)} offset:{1024*t}")
        A.wait_lg0(); A("s_barrier")
        for t in range(5): A.lds(f"ds_read_b128 {v(ACC+20+4*t,4)}, v{B0+1} offset:{1024*t}", ('x', t))
        if which == 5:
            A(f"s_cmp_lg_u32 s{LAY}, 0\ns_cbranch_scc1 main_final")
            self.fin_state = (list(A.lg), ACC)
        body = []
        for t in range(5):
            body.append(('wl', ('x', t)))
            body += [f"v_add_f32 v{ACC+4*t+i}, v{ACC+4*t+i}, v{ACC+20+4*t+i}" for i in range(4)]
            body += [f"v_cvt_pk_bf16_f32 v{RES+2*t}, v{ACC+4*t}, v{ACC+4*t+1}", f"v_cvt_pk_bf16_f32 v{RES+2*t+1}, v{ACC+4*t+2}, v{ACC+4*t+3}"]
        xoff = X1 if which == 3 else LS + XA
        soff = ST3 if which == 3 else LS + STA
        A(f"s_add_u32 s{T[4]}, s{SL}, s{S_X}\ns_add_u32 s{T[4]}, s{T[4]}, {xoff}\ns_add_u32 s{T[5]}, s{T[4]}, 4096\ns_add_u32 s{T[6]}, s{SL}, s{S_STX}\ns_add_u32 s{T[6]}, s{T[6]}, {soff}")
        body.append(('vm', f"buffer_store_dwordx4 {v(RES,4)}, v{VX}, {WS}, s{T[4]} offen {self.st}", 'out'))
        body.append(('vm', f"buffer_store_dwordx4 {v(RES+4,4)}, v{VX}, {WS}, s{T[4]} offen offset:2048 {self.st}", 'out'))
        t4 = WF
        body += [f"v_mov_b32 v{t4+k}, v{RES+8+(k&1)}" for k in range(6)]
        body += [f"v_permlane32_swap_b32 v{t4+4}, v{t4+2}", f"v_permlane32_swap_b32 v{t4+5}, v{t4+3}"]
        body.append(('vm', f"s_mov_b32 exec_hi, 0\nbuffer_store_dwordx4 {v(t4,4)}, v{VX}, {WS}, s{T[5]} offen {self.st}\ns_mov_b32 exec_hi, -1", 'out'))
        s0, s1 = WF + 8, WF + 9
        body += [f"v_add_f32 v{s0}, v{ACC}, v{ACC+1}", f"v_mul_f32 v{s1}, v{ACC}, v{ACC}", f"v_fmac_f32 v{s1}, v{ACC+1}, v{ACC+1}"]
        for i in range(2, 20): body += [f"v_add_f32 v{s0}, v{s0}, v{ACC+i}", f"v_fmac_f32 v{s1}, v{ACC+i}, v{ACC+i}"]
        for sw in ("v_permlane16_swap_b32", "v_permlane32_swap_b32"):
            body += [f"v_mov_b32 v{s0+2}, v{s0}", f"v_mov_b32 v{s0+3}, v{s1}", f"{sw} v{s0}, v{s0+2}", f"{sw} v{s1}, v{s0+3}", f"v_add_f32 v{s0}, v{s0}, v{s0+2}", f"v_add_f32 v{s1}, v{s1}, v{s0+3}"]
        self.mix(body, fill, 7)
        while fill: self.emit(fill.pop(0))
        A("s_mov_b64 exec, 0xffff")
        A.vmem(f"buffer_store_dwordx2 {v(s0,2)}, v{VSX}, {WS}, s{T[6]} offen {self.st}", 'out')
        A("s_mov_b64 exec, -1")

    def final(self):
        A = self.A; t = VFREE
        A.lab("main_final")
        A.lg, ACC = self.fin_state
        for k in range(5):
            A.wait_lg(('x', k))
            for i in range(4): A(f"v_add_f32 v{ACC+4*k+i}, v{ACC+4*k+i}, v{ACC+20+4*k+i}")
            A(f"v_cvt_pk_bf16_f32 v{RES+2*k}, v{ACC+4*k}, v{ACC+4*k+1}\nv_cvt_pk_bf16_f32 v{RES+2*k+1}, v{ACC+4*k+2}, v{ACC+4*k+3}")
        A(f"s_lshl_b32 s{T[4]}, s{S_A3}, 4\ns_mul_i32 s{T[4]}, s{T[4]}, 1280\ns_mul_i32 s{T[5]}, s{CT}, 160\ns_add_u32 s{T[4]}, s{T[4]}, s{T[5]}")
        A(f"v_and_b32 v{t}, 15, v{VL}\nv_mul_u32_u24 v{t}, 1280, v{t}\nv_lshrrev_b32 v{t+1}, 4, v{VL}\nv_lshl_add_u32 v{t}, v{t+1}, 3, v{t}")
        for k in range(5): A(f"buffer_store_dwordx2 {v(RES+2*k,2)}, v{t}, {OS}, s{T[4]} offen offset:{32*k}")

    def p4(self):
        A = self.A
        ACC, WF, STD, MU, RS = 64, 176, 204, 212, 213
        bases = [VL16, VB1, VB2]
        SA, SW = T[4], T[5]
        A(f"s_add_u32 s{SA}, s{SL}, s{S_A1}\ns_add_u32 s{SA}, s{SA}, {X1}")
        self.stats_load(ST3, STD)
        o = self.o
        def aload(st_):
            L = [f"s_add_u32 s{SA}, s{SA}, 4096"] if st_ and st_ % 4 == 0 else []
            return L + [('vm', f"buffer_load_dwordx4 {a(4*st_,4)}, v{VL16}, {WS}, s{SA} offen offset:{(st_ & 3)*1024} {self.ld}", ('a', st_))]
        up = o.get("up4", 8)
        for k in range(up): [self.emit(x) for x in aload(k)]
        wr = lambda c: self.rnd(S_W4, c*28672, (c % 5)*28672, 7, ('w', c))
        w5 = lambda c: self.rnd(S_W5, c*20480, c*20480, 5, 'w5')
        jobs = [(0, k, aload(k)) for k in range(up, 40)]
        jobs += [(0 if c < 5 else 4*(c-4)+3, 4*c - 1.5, wr(c)) for c in range(3, 10)]
        jobs += [(27, 90, w5(0)), (31, 91, w5(1)), (35, 92, w5(2)), (35, 93, w5(3))]
        sched = self.edf(jobs, 40, o.get("r4", 3.0))
        sched[30] += self.stats_finish(STD, MU, RS)
        wl = lambda st_: ((st_ >> 2) % 5) * 28672 + (st_ & 3) * 7168
        A.wait_vm(('a', 0)); A("s_barrier")
        self.stamp('p4.go')
        for t in range(7): A.lds(f"ds_read_b128 {v(WF+4*t,4)}, {self.ldsaddr(wl(0) + 1024*t, bases)}", ('f', 0, t))
        fill = []
        for st_ in range(40):
            if st_ % 4 == 3 and 7 <= st_ < 39:
                self.need(('w', st_ // 4 + 1), fill); A("s_barrier")
            fill += sched[st_]
            self.need(('a', st_), fill)
            for t in range(7):
                A.wait_lg(('f', st_, t))
                A(f"v_mfma_f32_32x32x16_bf16 {v(ACC+16*t,16)}, {v(WF+4*t,4)}, {a(4*st_,4)}, {'0' if st_ == 0 else v(ACC+16*t,16)}")
                if st_ < 39: A.lds(f"ds_read_b128 {v(WF+4*t,4)}, {self.ldsaddr(wl(st_+1) + 1024*t, bases)}", ('f', st_+1, t))
                self.drain(fill, 4 if t % 2 == 0 else 0)
        assert not fill
        A("s_barrier")
        self.stamp('p4.main')
        CSR, PK = [216, 232], 176
        A(f"v_mul_f32 v{RS}, v{RS}, v{RS}")
        A(f"s_add_u32 s{T[4]}, s{SL}, s{S_H}\ns_add_u32 s{T[4]}, s{T[4]}, {HH}\ns_mov_b32 s{T[5]}, s{T[4]}\ns_cmp_eq_u32 s{J}, 15\ns_cmov_b32 s{T[5]}, {OOB}")
        csload = lambda t: [('lg', f"ds_read_b128 {v(CSR[t&1]+4*j,4)}, v{VCS} offset:{512 + 128*t + 16*j}", ('cs', t)) for j in range(4)]
        body = csload(0)
        for t in range(7):
            if t < 6: body += csload(t + 1)
            body.append(('wl', ('cs', t)))
            r = ACC + 16*t; c = CSR[t & 1]
            body += [f"v_fma_f32 v{r+k}, v{MU}, v{c+k}, v{r+k}" for k in range(16)]
            for hf in range(2):
                g = r + 8*hf
                for i in range(4): body += [f"v_max_f32 v{g+i}, 0, v{g+i}", f"v_mul_f32 v{g+4+i}, v{RS}, v{g+4+i}"]
                body += [f"v_mul_f32 v{g+i}, v{g+i}, v{g+4+i}" for i in range(4)]
                body += [f"v_cvt_pk_bf16_f32 v{PK+4*t+2*hf}, v{g}, v{g+1}", f"v_cvt_pk_bf16_f32 v{PK+4*t+2*hf+1}, v{g+2}, v{g+3}"]
            body.append(('vm', f"buffer_store_dwordx4 {v(PK+4*t,4)}, v{VH}, {WS}, s{T[4] if t < 3 else T[5]} offen offset:{512*t} {self.st}", 'out'))
        for x in body: self.emit(x)
        self.post = (S_W5, 81920, 81920, 39)
        self.pre = lambda: self.rnd3(S_W5, 81920 + 39936, 81920 + 39936, 7)

    def gen(self):
        A = self.A
        o_big = False
        def stop(name):
            if self.stop == name: A.wait_all(); A("s_branch main_done")
        self.setup()
        self.stamp('start')
        self.p1_first()
        self.drain_post((S_W3, 0, 0, 30))
        A.lab("main_layer")
        self.kv_sync(); stop("p1")
        self.p2()
        self.cluster_sync((S_W3, 61440, lds3(6), 40), None, 0x200); stop("p2")
        self.proj(3)
        self.cluster_sync(self.post, self.pre, 0x300); stop("p3")
        self.p4()
        self.cluster_sync(self.post, self.pre, 0x400); stop("p4")
        self.proj(5)
        self.cluster_sync(self.post, self.pre, 0x500); stop("p5")
        A(f"s_mov_b32 s{LAY}, 1\ns_add_u32 s{SL}, s{SL}, {LS}\ns_mov_b32 s{S_PB}, {64 if o_big else 32}")
        self.stamp('start')
        self.p1()
        self.p1_epilogue(64, 152, 153)
        self.drain_post((S_W3, 0, 0, 30))
        A("s_branch main_layer")
        self.final()
        A.lab("main_done")
        if self.prof:
            A.wait_all()
            if self.stop: A(f"s_mov_b32 s{S_PB}, 32")
            self.stamp('end')
            A(f"s_cmp_lg_u32 s{WV}, 0\ns_cbranch_scc1 main_end\ns_lshl_b32 s3, s2, 8\ns_add_u32 s3, s3, {PROF}\nv_lshlrev_b32 v{VFREE}, 2, v{VL}")
            A(f"buffer_store_dword v{VPROF}, v{VFREE}, {WS}, s3 offen\ns_add_u32 s3, s3, 0x10000\nbuffer_store_dword v{VPROF+1}, v{VFREE}, {WS}, s3 offen")
        A.lab("main_end")
        A("s_endpgm")
        for blk in self.rare: A(blk)
        A.lab("main_last")

def gen_main(A, opts):
    m = Main(A, opts); m.gen()
    assert len(m.names) <= 32, len(m.names)
    if m.names: A.L.insert(0, Ins(f"; stamps {opts.get('mx', 256)} " + " ".join(m.names)))
```

```python
from asmlib import *
from layout import *
from pack import srd, sel, OOB, frag32_steps
import math

WS = "s[4:7]"; XS = "s[8:11]"; OS = "s[12:15]"; DS_ = "s[16:19]"
MB, J, WV, LAY, RH, CT, RR, KH = 20, 21, 22, 23, 24, 25, 26, 27
SL = 40
TGT = 41
S_A1 = 42
S_ST1 = 43
S_KVO = 44
S_A3 = 45
S_A3B = 46
S_X = 47
S_STX = 48
S_W1, S_W3, S_W4, S_W5 = 49, 50, 51, 52
S_H = 53
S_PB = 54
S_WI = 55
S_U = 98
GUS = "s[56:59]"; WDS = "s[60:63]"
MASK = 64
T = [28, 29, 30, 31, 32, 33, 34, 35, 36, 37]

VL, VL16, VST, RES = 1, 2, 3, 4
VO1, VO2, VO3, VX, VSX, VH, VCNT, VCS, VK, VKS, VV, VW2, VW12, VW1, VXW, VXR, VB1, VB2 = range(14, 32)
PM = 32
VPROF = 40
VTG, VDUM = 42, 43
VFREE = 44

LDS_MISC = 147456
CS1 = LDS_MISC; CS4 = LDS_MISC + 512
KREG = 36864; VREG = KREG + 12 * 2560
XCH3 = 86016; XCH5 = 0
STG4 = 16384; STG5 = STG4 + 20480; STG3 = LDS_MISC + 2048
QSCALE = math.log2(math.e) / math.sqrt(20.0)

def lds1(st): return ((st + 5) % 36) * 4096 if st < 36 else (st - 31) * 4096
def lds3(bl): return bl * 10240 if bl < 3 else (107520 + (bl - 3) * 10240 if bl < 6 else KREG + (bl - 6) * 10240)
def fhex(x):
    import struct
    return hex(struct.unpack("<I", struct.pack("<f", x))[0])

def qmap_step(x):
    import re
    m = re.match(r"ds_read_b64 a\[(\d+):", x[1])
    return int(m.group(1)) // 4 if m else 999

class Main:
    def __init__(self, A, opts):
        self.A = A; self.o = opts
        self.prof = opts.get("prof", 0); self.names = []; self.rare = []; self.pending = set()
        self.stop = opts.get("stop", None)
        self.fused = opts.get("fused", 1)
        self.kname = opts.get("kname", "main_kernel")
        self.ld = "sc1"; self.st = "sc1"; self.stkv = "sc1"
        self.ntu, self.ntx, self.nts = opts.get("ntu", "nt"), opts.get("ntx", "nt"), opts.get("nts", "nt")

    def stamp(self, name):
        if self.o.get("only") and name not in self.o["only"]: return
        if not self.prof or name.endswith(tuple(self.o.get("nostamp", ()))) and self.o.get("nostamp"): return
        A = self.A
        if name not in self.names: self.names.append(name)
        idx = self.names.index(name)
        A(f"s_memrealtime s[38:39]\ns_memtime s[96:97]\ns_waitcnt lgkmcnt(0)\ns_add_u32 m0, s{S_PB}, {idx}\nv_writelane_b32 v{VPROF}, s38, m0\nv_writelane_b32 v{VPROF+1}, s96, m0")
        A.lg = []

    def ldsaddr(self, off, bases):
        b = off >> 16
        return f"v{bases[b]} offset:{off & 0xffff}"

    def emit(self, x):
        if isinstance(x, tuple):
            if x[0] == 'vm': self.A.vmem(x[1], x[2])
            elif x[0] == 'lg': self.A.lds(x[1], x[2])
            else:
                assert x[1] in self.A.seen and x[1] not in self.pending, x
                (self.A.wait_vm if x[0] == 'wv' else self.A.wait_lg)(x[1])
        else: self.A(x)

    def drain(self, fill, n):
        vm = 0
        while fill and n > 0:
            isvm = isinstance(fill[0], tuple) and fill[0][0] == 'vm'
            if isvm and vm: break
            vm += isvm
            self.pending = {y[2] for y in fill if isinstance(y, tuple) and len(y) == 3}
            self.emit(fill.pop(0)); n -= 1
            self.pending = set()

    def need(self, tag, fill):
        while any(isinstance(x, tuple) and x[0] == 'vm' and x[2] == tag for x in fill): self.emit(fill.pop(0))
        self.A.wait_vm(tag)

    def rnd(self, sbase, goff, loff, kb, tag):
        L = [f"s_mul_i32 s{T[8]}, s{WV}, {kb*1024}", f"s_add_u32 s{T[9]}, s{T[8]}, s{sbase}", f"s_add_u32 s{T[9]}, s{T[9]}, {goff}", f"s_add_u32 m0, s{T[8]}, {loff}"]
        for i in range(kb):
            if i and i % 4 == 0: L += [f"s_add_u32 s{T[9]}, s{T[9]}, 4096", "s_add_u32 m0, m0, 4096"]
            L.append(('vm', f"buffer_load_dwordx4 v{VL16}, {WS}, s{T[9]} offen offset:{1024*(i&3)} lds", tag))
        return L

    def rnd3(self, sbase, goff, loff, kb):
        A = self.A
        A(f"s_mul_i32 s{T[8]}, s{S_WI}, {kb*1024}\ns_add_u32 s{T[9]}, s{T[8]}, s{sbase}\ns_add_u32 s{T[9]}, s{T[9]}, {goff}\ns_add_u32 m0, s{T[8]}, {loff}")
        for i in range(kb):
            if i and i % 4 == 0: A(f"s_add_u32 s{T[9]}, s{T[9]}, 4096\ns_add_u32 m0, m0, 4096")
            A(f"buffer_load_dwordx4 v{VL16}, {WS}, s{T[9]} offen offset:{1024*(i&3)} lds")

    def edf(self, jobs, nsteps, rate, credit=0.0):
        units = []
        for rel, dl, L in jobs:
            cur = []
            for x in L:
                cur.append(x)
                if isinstance(x, tuple) and x[0] == 'vm': units.append([rel, dl, cur, id(L)]); cur = []
            if cur: units[-1][2] += cur
        sched = {k: [] for k in range(nsteps)}
        busy = None
        for st_ in range(nsteps):
            credit += rate
            while credit >= 1 and units:
                cand = [u for u in units if u[0] <= st_]
                if busy is not None: cand = [u for u in cand if u[3] == busy or 'lds' not in u[2][-1 if isinstance(u[2][-1], tuple) else -2][1]]
                if not cand: credit = min(credit, 1.0); break
                u = min(cand, key=lambda u: u[1])
                units.remove(u); sched[st_] += u[2]; credit -= 1
                isdma = any(isinstance(x, tuple) and x[1].endswith('lds') for x in u[2])
                if isdma: busy = u[3] if any(w[3] == u[3] for w in units) else None
        assert not units, f"{len(units)} loads left"
        return sched

    def drain_post(self, post, extra=0):
        A = self.A
        if not post:
            A.wait_all(); return
        N = A.newlab("p0"); E = A.newlab("pe")
        kb = -(-post[3] // 3)
        A(f"s_cmp_eq_u32 s{WV}, 0\ns_cbranch_scc1 {N}")
        self.rnd3(post[0], post[1], post[2], kb)
        A(f"s_waitcnt vmcnt({kb + extra}) lgkmcnt(0)\ns_branch {E}")
        A.lab(N); A(f"s_waitcnt vmcnt({extra}) lgkmcnt(0)"); A.lab(E)
        A.vm = []; A.lg = []

    def mix(self, body, fill, every):
        for k, x in enumerate(body):
            self.emit(x)
            if (k + 1) % every == 0: self.drain(fill, 5)

    def spin(self, addr, tgt, code, srd_=WS):
        A = self.A; L = A.newlab("poll"); D = A.newlab("pdone"); t = 254
        ld = lambda r: f"buffer_load_dword v{r}, v{addr}, {srd_}, 0 offen sc1"
        A(f"s_mov_b32 s{T[2]}, 20000\n" + ld(t))
        A.lab(L)
        for r in (t + 1, t):
            A(f"s_sleep {self.o.get('psleep', 3)}\n" + ld(r) + f"\ns_waitcnt vmcnt(1)\nv_cmp_gt_u32 vcc, {tgt}, v{2*t + 1 - r}\ns_cbranch_vccz {D}")
        A(f"s_sub_u32 s{T[2]}, s{T[2]}, 1\ns_cmp_lg_u32 s{T[2]}, 0\ns_cbranch_scc1 {L}")
        A(f"s_waitcnt vmcnt(0)\nv_mov_b32 v{t}, {code}\nv_mov_b32 v{t+1}, 128\nbuffer_store_dword v{t}, v{t+1}, {DS_}, 0 offen")
        A.lab(D)

    def cluster_sync(self, post, pre, code):
        A = self.A; N = A.newlab("nw0"); E = A.newlab("syn")
        self.stamp(f'p{code>>8}.epi')
        self.drain_post(post); A("s_barrier")
        self.stamp(f'p{code>>8}.drain')
        A(f"s_add_u32 s{TGT}, s{TGT}, 16\ns_cmp_lg_u32 s{WV}, 0\ns_cbranch_scc1 {N}")
        A(f"s_mov_b64 exec, 1\nv_mov_b32 v{VFREE+3}, 1\nbuffer_atomic_add v{VFREE+3}, v{VCNT}, {WS}, 0 offen sc1\nv_mov_b32 v{VTG}, s{TGT}")
        if code == 0x200: A("s_mov_b64 exec, 31")
        self.spin(VCNT, f'v{VTG}', code)
        A(f"s_mov_b64 exec, -1")
        self.stamp(f'p{code>>8}.poll')
        A(f"s_branch {E}")
        A.lab(N)
        if pre: pre()
        A.lab(E)
        A("s_barrier")
        self.stamp(f'p{code>>8}.bar')

    def setup(self):
        A = self.A
        A.lab(self.kname)
        A("s_cmp_ge_u32 s2, 256\ns_cbranch_scc1 main_end")
        A("s_load_dwordx2 s[28:29], s[0:1], 0\ns_load_dwordx4 s[32:35], s[0:1], 56\ns_load_dwordx2 s[30:31], s[0:1], 72")
        if self.fused: A("s_load_dwordx4 s[80:83], s[0:1], 8\ns_load_dwordx4 s[84:87], s[0:1], 32\ns_load_dwordx2 s[88:89], s[0:1], 48")
        A(f"v_and_b32 v{VL}, 63, v0\nv_lshrrev_b32 v2, 6, v0\ns_nop 0\nv_readfirstlane_b32 s{WV}, v2\nv_lshlrev_b32 v{VL16}, 4, v{VL}")
        mx = self.o.get("mx", 256)
        if mx == 256:
            A(f"s_and_b32 s{MB}, s2, 7\ns_lshl_b32 s{MB}, s{MB}, 1\ns_lshr_b32 s3, s2, 7\ns_add_u32 s{MB}, s{MB}, s3\ns_bfe_u32 s{J}, s2, 0x40003")
        elif mx == 512:
            A(f"s_bfe_u32 s{MB}, s2, 0x20001\ns_lshl_b32 s{MB}, s{MB}, 2\ns_lshr_b32 s3, s2, 6\ns_add_u32 s{MB}, s{MB}, s3")
            A(f"s_and_b32 s{J}, s2, 1\ns_lshl_b32 s{J}, s{J}, 3\ns_bfe_u32 s3, s2, 0x30003\ns_add_u32 s{J}, s{J}, s3")
        elif mx == 1024:
            A(f"s_bfe_u32 s{MB}, s2, 0x10002\ns_lshl_b32 s{MB}, s{MB}, 3\ns_lshr_b32 s3, s2, 5\ns_add_u32 s{MB}, s{MB}, s3")
            A(f"s_and_b32 s{J}, s2, 3\ns_lshl_b32 s{J}, s{J}, 2\ns_bfe_u32 s3, s2, 0x20003\ns_add_u32 s{J}, s{J}, s3")
        A(f"s_and_b32 s{RH}, s{J}, 1\ns_lshr_b32 s{CT}, s{J}, 1\ns_lshr_b32 s{RR}, s{WV}, 1\ns_and_b32 s{KH}, s{WV}, 1\ns_sub_u32 s{S_WI}, s{WV}, 1")
        A(f"s_mov_b32 s{LAY}, 0\ns_mov_b32 s{SL}, {LB}\ns_mov_b32 s{TGT}, 0\ns_mov_b32 s{S_PB}, 0")
        A(f"s_lshl_b32 s3, s{MB}, 2\ns_add_u32 s3, s3, s{WV}\ns_mul_i32 s{S_A1}, s3, 40960\ns_lshl_b32 s{S_ST1}, s3, 11")
        A(f"s_mul_i32 s{S_H}, s3, {2*54*1024}\ns_mul_i32 s3, s{J}, {7*512}\ns_add_u32 s{S_H}, s{S_H}, s3")
        A(f"s_mul_i32 s{S_W1}, s{J}, {WP1_J}\ns_add_u32 s{S_W1}, s{S_W1}, {WP1}\ns_mul_i32 s{S_W4}, s{J}, {WP4_J}\ns_add_u32 s{S_W4}, s{S_W4}, {WP4}")
        A(f"s_mul_i32 s{S_W3}, s{CT}, {WP3_C}\ns_add_u32 s{S_W3}, s{S_W3}, {WP3}\ns_mul_i32 s{S_W5}, s{CT}, {WP5_C}\ns_add_u32 s{S_W5}, s{S_W5}, {WP5}")
        A("s_waitcnt lgkmcnt(0)")
        srd(A, 4, 30, WS_USED); srd(A, 8, 28, 2048*640*2); srd(A, 16, 34, 256)

    def p1_first(self):
        A = self.A; o = self.o; st = "sc1"
        QS = "s[68:71]"; WOS = "s[64:67]"
        ACC, WF, GR, ONE, MU, RS = 64, 128, 176, 148, 152, 153
        VXS, VAX, TMP, VU1, VU3, VZ = 209, 213, 246, 214, 215, 216
        r, c, G = 44, 45, 46
        AB = 49152; NB = 3
        srd(A, 68, 80, 640*1920*2); srd(A, 64, 82, 640*640*2); srd(A, 60, 88, 1728*640*2); srd(A, 12, 32, 2048*640*2)
        A(f"s_cmp_lt_u32 s{WV}, 2\ns_cselect_b32 s56, s84, s86\ns_cselect_b32 s57, s85, s87\ns_mov_b32 s58, {640*1728*2}\ns_mov_b32 s59, 0x20000")
        A(f"s_lshl_b32 s{S_U}, s{MB}, 4\ns_add_u32 s{S_U}, s{S_U}, s{J}")
        NZ = A.newlab("nz"); NZ2 = A.newlab("nz")
        A(f"s_cmp_lg_u32 s2, 0\ns_cbranch_scc1 {NZ}\ns_cmp_lg_u32 s{WV}, 3\ns_cbranch_scc1 {NZ}")
        A(f"v_lshlrev_b32 v56, 7, v{VL}\nv_mov_b32 v57, 0")
        for k in range(6): A(f"s_mov_b32 s3, {8192*k}\nbuffer_store_dword v57, v56, {WS}, s3 offen sc1")
        A.lab(NZ)
        A(f"v_and_b32 v51, 7, v{VL}\nv_lshrrev_b32 v52, 3, v{VL}\ns_and_b32 s34, s{MB}, 1\ns_lshr_b32 s35, s{MB}, 1")
        A("s_cmp_eq_u32 s34, 0\ns_cselect_b32 s31, 5, 2"); sel(A, 32, 1280, 2608); sel(A, 33, 2480, -32); sel(A, 36, -1, 0x7f7f7f7f)
        A("v_mov_b32 v53, s32\nv_mov_b32 v54, s33\nv_cmp_gt_u32 vcc, s31, v51\nv_cndmask_b32 v53, v54, v53, vcc\nv_lshl_add_u32 v53, v51, 4, v53\nv_mul_u32_u24 v54, 3840, v52\nv_add_u32 v53, v53, v54")
        A(f"s_mul_i32 s31, s35, 80*3840\ns_mul_i32 s32, s{J}, 80\ns_add_u32 s31, s31, s32\ns_mov_b32 exec_lo, s36\ns_mov_b32 exec_hi, s36")
        for n in range(3):
            A(f"s_add_u32 s32, s{WV}, {4*n}\ns_min_u32 s32, s32, 9\ns_lshl_b32 m0, s32, 10\ns_mul_i32 s32, s32, 8*3840\ns_add_u32 s32, s32, s31")
            A.vmem(f"buffer_load_dwordx4 v53, {QS}, s32 offen {self.ntu} lds", 'u')
        A("s_mov_b64 exec, -1")
        A(f"s_lshr_b32 s99, s{S_U}, 3\ns_and_b32 s100, s{S_U}, 7\ns_mul_i32 s30, s99, 32*1280\ns_mul_i32 s31, s100, 160\ns_add_u32 s30, s30, s31\ns_cmp_ge_u32 s{S_U}, 160\ns_cmov_b32 s30, {OOB}")
        for n in range(2):
            A(f"s_add_u32 s31, s{WV}, {4*n}\ns_min_u32 s31, s31, 4\ns_lshl_b32 s3, s31, 6\nv_add_u32 v54, s3, v{VL}\nv_mul_u32_u24 v55, 6554, v54\nv_lshrrev_b32 v55, 16, v55\nv_mul_u32_u24 v56, 10, v55\nv_sub_u32 v56, v54, v56")
            A(f"v_mul_u32_u24 v55, 1280, v55\nv_lshl_add_u32 v55, v56, 4, v55\ns_lshl_b32 s31, s31, 10\ns_add_u32 m0, s31, {STG3}")
            A.vmem(f"buffer_load_dwordx4 v55, {WOS}, s30 offen {self.ntu} lds", 'u')
        A(f"v_lshrrev_b32 v{G}, 4, v{VL}\nv_and_b32 v48, 15, v{VL}")
        for n in range(4):
            A(f"v_add_u32 v49, {4*n}, v{G}\nv_xor_b32 v50, v48, v49\nv_mul_u32_u24 v49, 1280, v49\nv_lshl_add_u32 v{VXS+n}, v50, 4, v49")
        SX, SXL = T[0], T[1]
        A(f"s_lshl_b32 s3, s{MB}, 2\ns_add_u32 s3, s3, s{WV}\ns_mul_i32 s{SX}, s3, 32*1280\ns_mul_i32 s{SXL}, s{WV}, {NB*8192}\ns_add_u32 s{SXL}, s{SXL}, {AB}")
        def xlist(ch):
            L = []
            for n in range(8):
                if n % 4 == 0: L.append(f"s_add_u32 s{T[9]}, s{SX}, {ch*256 + (n >> 2)*16*1280}")
                L += [f"s_add_u32 m0, s{SXL}, {(ch % NB)*8192 + n*1024}", ('vm', f"buffer_load_dwordx4 v{VXS + (n & 3)}, {XS}, s{T[9]} offen {self.ntx} lds", ('x', ch))]
            return L
        def xjob(ch):
            for x in xlist(ch): self.emit(x)
        if o.get("touchx", 1):
            A(f"s_lshl_b32 s30, s{MB}, 3\ns_and_b32 s31, s{J}, 7\ns_add_u32 s30, s30, s31\ns_lshl_b32 s3, s30, 2\ns_add_u32 s3, s3, s{WV}\ns_mul_i32 s3, s3, 5120\nv_lshlrev_b32 v54, 7, v{VL}\ns_mov_b32 exec_hi, 0xff")
            A.vmem(f"buffer_load_dword v{VDUM}, v54, {XS}, s3 offen {self.ntx}\ns_mov_b32 exec_hi, -1", 't')
        if o.get("codepf", 1):
            A(f"s_getpc_b64 s[64:65]\nmain_pc:\ns_sub_u32 s64, s64, main_pc - {self.kname}\ns_subb_u32 s65, s65, 0\ns_mov_b32 s66, main_last - {self.kname}\ns_mov_b32 s67, 0x20000")
            A(f"s_and_b32 s3, s{J}, 7\ns_lshl_b32 s3, s3, 13\ns_cmp_lg_u32 s{WV}, 3\ns_cmov_b32 s3, {OOB}\nv_lshlrev_b32 v54, 7, v{VL}")
            A.vmem(f"buffer_load_dword v{VDUM}, v54, s[64:67], s3 offen", 'c')
        xjob(0)
        if o.get("x1early", 0): xjob(1)
        A(f"s_cmp_lg_u32 s2, 0\ns_cbranch_scc1 {NZ2}\ns_cmp_lg_u32 s{WV}, 3\ns_cbranch_scc1 {NZ2}")
        A(f"s_waitcnt vmcnt({len(A.vm)})\ns_mov_b64 exec, 1\nv_mov_b32 v56, 0\nv_mov_b32 v55, 1\nbuffer_store_dword v55, v56, {DS_}, 0 offen sc1\ns_mov_b64 exec, -1")
        A.lab(NZ2)
        for i in range(4): A(f"v_mov_b32 v{ONE+i}, 0x3f803f80")
        NP = A.newlab("np")
        A(f"s_cmp_eq_u32 s34, 0\ns_cbranch_scc1 {NP}\nv_lshlrev_b32 v48, 7, v0\nv_cmp_gt_u32 vcc, 80, v0\ns_and_saveexec_b64 s[36:37], vcc\ns_cbranch_execz {NP}a\nds_write_b128 v48, {v(ONE,4)} offset:112")
        A.lab(NP + "a"); A("s_mov_b64 exec, s[36:37]"); A.lab(NP)
        A(f"v_bfe_u32 v{r}, v{VL}, 2, 2\nv_and_b32 v{c}, 3, v{VL}\nv_lshrrev_b32 v48, 1, v{G}\nv_lshl_add_u32 v48, v48, 2, v{r}\nv_lshlrev_b32 v48, 7, v48\nv_and_b32 v49, 1, v{G}\nv_lshl_add_u32 v49, v49, 2, v{c}\nv_lshl_add_u32 v48, v49, 3, v48\ns_lshl_b32 s3, s{WV}, 6\nv_add_u32 v{VU1}, s3, v48")
        A(f"v_and_b32 v48, 31, v{VL}\nv_and_b32 v49, 15, v{VL}\nv_lshlrev_b32 v{VAX}, 8, v48\nv_lshl_add_u32 v{VAX}, v49, 4, v{VAX}\nv_lshrrev_b32 v49, 5, v{VL}\nv_lshl_add_u32 v{VAX}, v49, 3, v{VAX}\nv_add_u32 v{VAX}, s{SXL}, v{VAX}")
        A(f"v_lshl_add_u32 v{VU3}, v{G}, 3, v{r}\nv_mul_u32_u24 v{VU3}, 160, v{VU3}\nv_lshl_add_u32 v{VU3}, v{c}, 3, v{VU3}\nv_add_u32 v{VU3}, {STG3}, v{VU3}\nv_mov_b32 v{VZ}, 0\nv_lshlrev_b32 v{VZ+1}, 7, v0")
        A(f"s_cmp_ge_u32 s99, 10\ns_cselect_b32 s30, 1, 0\ns_cselect_b32 s31, 10, 0\ns_sub_u32 s31, s99, s31\ns_lshl_b32 s31, s31, 1\ns_add_u32 s31, s31, s30\ns_mul_i32 s31, s31, 5120")
        A(f"s_mul_i32 s30, s100, {WP3_C}\ns_add_u32 s30, s30, s31\ns_add_u32 s30, s30, {WP3}\ns_cmp_ge_u32 s{S_U}, 160\ns_cmov_b32 s30, {OOB}")
        self.setup2()
        spre, j4, j5 = self.stage_jobs()
        for x in spre: self.emit(x)
        CP = 164
        A(f"v_and_b32 v48, 127, v0\nv_lshrrev_b32 v49, 5, v48\nv_and_b32 v50, 31, v48\nv_lshlrev_b32 v50, 2, v50\nv_lshl_add_u32 v{CP+8}, v49, 10, v50\nv_lshlrev_b32 v{CP+9}, 2, v48\nv_add_u32 v{CP+9}, {CS1}, v{CP+9}")
        A.wait_vm('u'); A.wait_lg0(); A("s_barrier")
        self.stamp('s.u')
        HI = A.newlab("hi"); DN = A.newlab("dn"); keep = list(A.vm)
        A(f"s_cmp_ge_u32 s{WV}, 2\ns_cbranch_scc1 {HI}")
        A(f"s_lshl_b32 s32, s34, 1\ns_add_u32 s32, s32, s{WV}\ns_mul_i32 s33, s35, 5*4096\ns_add_u32 s33, s33, s{S_W1}\ns_lshl_b32 s3, s32, 10\ns_add_u32 s30, s33, s3")
        A(f"s_lshl_b32 s33, s{J}, 2\ns_add_u32 s33, s33, s32\ns_lshl_b32 s33, s33, 3\ns_add_u32 s33, s33, s35\ns_lshl_b32 s33, s33, 7\ns_add_u32 s33, s33, {CSP1}")
        ur = [30, 31, 32, 34, 35]
        for u in range(1, 5): A(f"s_add_u32 s{ur[u]}, s30, {u*4096}")
        frag32_steps(A, VU1, VL16, lambda u: (f"s{ur[u]}", 0), "s33", WS, 64, 88, ONE, st)
        A(f"s_branch {DN}")
        A.lab(HI)
        A(f"s_cmp_lg_u32 s{WV}, 2\ns_cmov_b32 s30, {OOB}\ns_add_u32 s31, s30, 4096\ns_mov_b32 s32, {OOB}")
        for t in range(5):
            for p in range(2): A(f"ds_read_b64_tr_b16 {v(64+4*t+2*p,2)}, v{VU3} offset:{p*640 + t*32}")
        A("s_waitcnt lgkmcnt(0)")
        for t in range(5): A(f"buffer_store_dwordx4 {v(64+4*t,4)}, v{VL16}, {WS}, {'s30' if t < 4 else 's31'} offen offset:{(t&3)*1024} {st}")
        A("s_mov_b64 exec, 1")
        for t in range(4): A(f"buffer_store_dword v64, v{VL16}, {WS}, s32 offen")
        A("s_mov_b64 exec, -1")
        A.lab(DN)
        A.vm = keep + ['us'] * 9; A.lg = []
        A.vmem(f"s_lshl_b32 s3, s{WV}, 8\ns_mov_b64 exec, 1\nbuffer_load_dword v47, v{VZ}, {DS_}, s3 offen sc1\ns_mov_b64 exec, -1", 'dbg')
        self.stamp('s.st')
        qmap = {}
        for st_ in range(40):
            for p in range(2): qmap[10*(st_//5) + cg32(st_ % 5, 0, p)//2] = (st_, p)
        done = set(); gram = [0]
        def gram1():
            if gram[0] < 40 and (gram[0], 0) in done and (gram[0], 1) in done:
                k = gram[0]; gram[0] += 1
                A(f"v_mfma_f32_32x32x16_bf16 {v(GR,16)}, {a(4*k,4)}, {a(4*k,4)}, {'0' if k == 0 else v(GR,16)}")
        def xreads(ch, also=()):
            also = list(also)
            A.wait_vm(('x', ch))
            for k, q in enumerate(range(16*ch, 16*ch + 16)):
                st_, p = qmap[q]
                A(f"v_xor_b32 v{TMP+(k&1)}, {k*16}, v{VAX}")
                A.lds(f"ds_read_b64 {a(4*st_+2*p,2)}, v{TMP+(k&1)} offset:{(ch % NB)*8192}")
                if k % 2:
                    gram1(); self.drain(also, 3)
            assert not also
            A.wait_lg0()
            for q in range(16*ch, 16*ch + 16): done.add(qmap[q])
        if not o.get("x1early", 0): xjob(1)
        xjob(2)
        xreads(0)
        A.wait_vm('dbg'); A("s_barrier")
        self.stamp('s.drain')
        W1_ = A.newlab("w"); OKI = A.newlab("oki")
        A(f"s_cmp_lg_u32 s{WV}, 0\ns_cbranch_scc1 {W1_}\ns_mov_b64 exec, 1\nv_cmp_gt_u32 vcc, 1, v47\ns_cbranch_vccz {OKI}")
        self.spin(VZ, "1", 0x10, DS_)
        A.lab(OKI)
        A(f"s_lshl_b32 s32, s{J}, 7\ns_add_u32 s32, s32, {CG}\nv_mov_b32 v48, s32\ns_and_b32 s32, s{S_U}, 7\ns_lshl_b32 s32, s32, 7\ns_add_u32 s32, s32, {PK3}\nv_writelane_b32 v48, s32, 1")
        A(f"s_cmp_lt_u32 s{S_U}, 160\ns_cselect_b32 exec_lo, 3, 1\nv_mov_b32 v51, 1\nbuffer_atomic_add v51, v48, {WS}, 0 offen sc1\ns_mov_b64 exec, -1")
        A.lab(W1_)
        for x in j4 + j5: self.emit(x)
        xreads(1, xlist(3)); xreads(2, xlist(4)); xreads(3); xreads(4)
        self.stamp('s.x')
        W2_ = A.newlab("w")
        A(f"s_cmp_lg_u32 s{WV}, 0\ns_cbranch_scc1 {W2_}")
        A(f"s_lshl_b32 s32, s{J}, 7\ns_add_u32 s32, s32, {CG}\nv_mov_b32 v48, s32\ns_lshl_b32 s32, s{CT}, 7\ns_add_u32 s32, s32, {PK3}\nv_writelane_b32 v48, s32, 1\nv_mov_b32 v50, 16\nv_writelane_b32 v50, 20, 1\ns_mov_b64 exec, 3")
        self.spin(48, "v50", 0x20)
        A("s_mov_b64 exec, -1")
        A.lab(W2_)
        A("s_barrier")
        self.stamp('s.poll')
        bases = [VL16, VB1, VB2]
        slot = lambda k: [98304, 114688, 131072, 49152, 65536, 81920, 0, 16384, 32768, 49152][k >> 2] + (k & 3) * 4096
        wgrp = lambda g: self.rnd(S_W1, g*16384, slot(4*g), 4, ('w', g))
        up = 3
        for g in range(up): [self.emit(x) for x in wgrp(g)]
        while gram[0] < 40: gram1()
        A(f"s_lshl_b32 s99, s{J}, 12\ns_add_u32 s99, s99, {CSP1}")
        A(f"s_lshl_b32 s{T[5]}, s{S_A3}, 4\ns_mul_i32 s{T[5]}, s{T[5]}, 1280\ns_mul_i32 s3, s{CT}, 160\ns_add_u32 s{T[5]}, s{T[5]}, s3")
        A(f"v_and_b32 v{CP+10}, 15, v{VL}\nv_mul_u32_u24 v{CP+10}, 1280, v{CP+10}\nv_lshrrev_b32 v48, 4, v{VL}\nv_lshl_add_u32 v{CP+10}, v48, 3, v{CP+10}")
        for k in range(1, 16): A(f"v_cndmask_b32 v{GR}, v{GR}, v{GR+k}, s[{MASK+2*k}:{MASK+2*k+1}]")
        A(f"v_mov_b32 v{GR+1}, v{GR}\nv_mov_b32 v{GR+2}, v{GR}\nv_permlane32_swap_b32 v{GR+1}, v{GR+2}\nv_bfe_u32 v48, v{VL}, 2, 1\nv_cmp_eq_u32 vcc, 0, v48\nv_cndmask_b32 v{GR}, v{GR+2}, v{GR+1}, vcc\nv_mul_f32 v{GR}, {fhex(1.0/640)}, v{GR}")
        jobs = [({7: 11, 8: 11, 9: 19}.get(g, 0), 4*g - 1.5, wgrp(g)) for g in range(up, 10)]
        jobs += [(4, 30 + k, [('vm', f"buffer_load_dword v{CP+k}, v{CP+8}, {WS}, s99 offen offset:{128*k} sc1", 'cp')]) for k in range(8)]
        jobs += [(24 + 2*k, 70 + k, [('vm', f"buffer_load_dwordx2 {v(RES+2*k,2)}, v{CP+10}, {XS}, s{T[5]} offen offset:{32*k}", 'res')]) for k in range(5)]
        jobs.append((31, 99, self.rnd(S_W3, 30720, lds3(3), 8, 'w3')))
        sched = self.edf(jobs, 40, o.get("r1a", 1.8))
        assert not any(isinstance(x, tuple) and x[2] == 'cp' for k in range(26, 40) for x in sched[k])
        sched[26] += [('wv', 'cp')] + [f"v_add_f32 v{CP}, v{CP}, v{CP+k}" for k in range(1, 8)] + [('lg', f"ds_write_b32 v{CP+9}, v{CP}", 'csw')]
        late = self.pack_late()
        l0 = 0; nl = o.get("latelen", 24)
        for k in range(nl): sched[l0 + k] += late[k*len(late)//nl:(k+1)*len(late)//nl]
        assert not any(isinstance(x, tuple) and x[0] == 'lg' and 'tr_b16' in x[1] for k in range(9, 40) for x in sched[k])
        A.wait_vm(('w', 0)); A.wait_lg0(); A("s_barrier")
        self.stamp('p1.go')
        for t in range(4): A.lds(f"ds_read_b128 {v(WF+4*t,4)}, {self.ldsaddr(slot(0) + 1024*t, bases)}", ('f', 0, t))
        fill = []
        for st_ in range(40):
            if st_ % 4 == 3 and st_ < 39:
                self.need(('w', st_ // 4 + 1), fill)
                A("s_barrier")
                if o.get("in1"):
                    A("s_mov_b32 s101, m0"); self.stamp(f'd.{st_}'); A("s_mov_b32 m0, s101")
            fill += sched[st_]
            for t in range(4):
                A.wait_lg(('f', st_, t))
                A(f"v_mfma_f32_32x32x16_bf16 {v(ACC+16*t,16)}, {v(WF+4*t,4)}, {a(4*st_,4)}, {'0' if st_ == 0 else v(ACC+16*t,16)}")
                if st_ < 39: A.lds(f"ds_read_b128 {v(WF+4*t,4)}, {self.ldsaddr(slot(st_+1) + 1024*t, bases)}", ('f', st_+1, t))
                self.drain(fill, 4)
        assert not fill
        A.wait_lg0(); A("s_barrier")
        A(f"v_mul_f32 v{MU}, {fhex(-1.0/640)}, v{ACC+60}\nv_fma_f32 v{GR}, -v{MU}, v{MU}, v{GR}\nv_max_f32 v{GR}, 0, v{GR}\nv_add_f32 v{GR}, 0x3727c5ac, v{GR}\nv_rsq_f32 v{RS}, v{GR}")
        self.stamp('p1.main')
        self.p1_epilogue(ACC, MU, RS)

    def stage_jobs(self):
        t = 156
        pre = [f"v_and_b32 v{t+4}, 7, v{VL}", f"v_lshrrev_b32 v{t+5}, 3, v{VL}", f"v_mul_u32_u24 v{t}, 3456, v{t+5}", f"v_lshl_add_u32 v{t}, v{t+4}, 4, v{t}",
               f"s_and_b32 s99, s{S_U}, 7", "s_mul_i32 s99, s99, 80", f"s_mul_i32 s100, s{KH}, 40", "s_add_u32 s99, s99, s100", "s_mul_i32 s99, s99, 3456",
               f"s_lshr_b32 s100, s{S_U}, 3", "s_lshl_b32 s100, s100, 7", "s_add_u32 s99, s99, s100",
               f"s_lshr_b32 s100, s{S_U}, 2", "s_mul_i32 s100, s100, 32*1280", f"s_and_b32 s101, s{S_U}, 3", "s_mul_i32 s101, s101, 320", "s_add_u32 s100, s100, s101",
               f"s_cmp_ge_u32 s{S_U}, 216\ns_cmov_b32 s99, {OOB}\ns_cmov_b32 s100, {OOB}"]
        for n in range(3):
            pre += [f"s_add_u32 s101, s{WV}, {4*n}", "s_min_u32 s101, s101, 9", "s_lshl_b32 s101, s101, 6", f"v_add_u32 v{t+4}, s101, v{VL}", f"v_mul_u32_u24 v{t+5}, 3277, v{t+4}", f"v_lshrrev_b32 v{t+5}, 16, v{t+5}",
                    f"v_mul_u32_u24 v{t+6}, 20, v{t+5}", f"v_sub_u32 v{t+6}, v{t+4}, v{t+6}", f"v_mul_u32_u24 v{t+5}, 1280, v{t+5}", f"v_lshl_add_u32 v{t+1+n}, v{t+6}, 4, v{t+5}"]
        j4 = [f"s_mul_i32 s{T[8]}, s{WV}, 5120"]
        for n in range(5):
            j4 += [f"s_add_u32 m0, s{T[8]}, {STG4 + n*1024}", ('vm', f"buffer_load_dwordx4 v{t}, {GUS}, s99 offen {self.nts} lds", 'stg'), f"s_add_u32 s99, s99, {8*3456}"]
        j5 = []
        for n in range(3):
            j5 += [f"s_add_u32 s{T[8]}, s{WV}, {4*n}", f"s_min_u32 s{T[8]}, s{T[8]}, 9", f"s_lshl_b32 s{T[8]}, s{T[8]}, 10", f"s_add_u32 m0, s{T[8]}, {STG5}",
                   ('vm', f"buffer_load_dwordx4 v{t+1+n}, {WDS}, s100 offen {self.nts} lds", 'stg')]
        return pre, j4[:-1], j5

    def pack_late(self):
        st = "sc1"; L = []
        r, c, G, ad, FR, FD, CA, ONE = 44, 45, 46, 47, 192, 212, 224, 148
        add = lambda txt: L.extend(txt.split("\n"))
        add(f"v_bfe_u32 v{r}, v{VL}, 2, 2\nv_and_b32 v{c}, 3, v{VL}\nv_lshrrev_b32 v{G}, 4, v{VL}")
        add(f"v_lshrrev_b32 v{ad}, 1, v{G}\nv_lshl_add_u32 v{ad}, v{ad}, 2, v{r}\nv_lshlrev_b32 v{ad}, 7, v{ad}\nv_and_b32 v48, 1, v{c}\nv_lshl_add_u32 v{ad}, v48, 4, v{ad}\nv_and_b32 v48, 1, v{G}\nv_lshl_add_u32 v{ad}, v48, 3, v{ad}")
        add(f"v_lshrrev_b32 v48, 1, v{c}\nv_mul_u32_u24 v48, 10240, v48\nv_add_u32 v{ad}, v{ad}, v48\ns_lshl_b32 s28, s{WV}, 5\ns_add_u32 s28, s28, {STG4}\nv_add_u32 v{ad}, s28, v{ad}")
        for u in range(5):
            for p in range(2): L.append(('lg', f"ds_read_b64_tr_b16 {v(FR+4*u+2*p,2)}, v{ad} offset:{4*cg32(u,0,p)*128}", ('pl', u)))
        add(f"v_lshl_add_u32 v49, v{G}, 3, v{r}\nv_mul_u32_u24 v49, 320, v49\nv_lshl_add_u32 v49, v{c}, 3, v49\ns_mul_i32 s29, s{KH}, 160\ns_mul_i32 s28, s{RR}, 96\ns_add_u32 s29, s29, s28\ns_add_u32 s29, s29, {STG5}\nv_add_u32 v49, s29, v49\ns_lshl_b32 s28, s{RR}, 5\nv_subrev_u32 v50, s28, v49")
        for k in range(3):
            for p in range(2): L.append(('lg', f"ds_read_b64_tr_b16 {v(FD+4*k+2*p,2)}, v{49 if k < 2 else 50} offset:{p*1280 + k*32}", 'pd'))
        add(f"s_and_b32 s29, s{S_U}, 7\ns_lshr_b32 s28, s{S_U}, 3\ns_lshl_b32 s28, s28, 2\ns_add_u32 s28, s28, s{WV}")
        add("s_mul_i32 s30, s28, 147\ns_lshr_b32 s30, s30, 10\ns_mul_i32 s31, s30, 7\ns_sub_u32 s31, s28, s31")
        add(f"s_mov_b32 s32, {P4_GROUPS[0][0]}\ns_mov_b32 s35, {P4_GROUPS[0][1]}")
        for t0, nt in P4_GROUPS[1:]: L.append(f"s_cmp_ge_u32 s31, {t0}\ns_cselect_b32 s32, {t0}, s32\ns_cselect_b32 s35, {nt}, s35")
        add(f"s_mul_i32 s30, s30, {WP4_J}\ns_mul_i32 s34, s32, 39\ns_add_u32 s34, s34, s31\ns_mul_i32 s32, s29, 5\ns_mul_i32 s32, s32, s35\ns_add_u32 s34, s34, s32\ns_lshl_b32 s34, s34, 10\ns_add_u32 s30, s30, s34\ns_add_u32 s30, s30, {WP4}\ns_lshl_b32 s35, s35, 10")
        add(f"s_lshl_b32 s28, s28, 3\ns_add_u32 s28, s28, s29\ns_lshl_b32 s28, s28, 7\ns_add_u32 s28, s28, {CSP4}")
        L.append(f"s_cmp_ge_u32 s{S_U}, 216\ns_cmov_b32 s30, {OOB}\ns_cmov_b32 s28, {OOB}")
        add(f"v_lshrrev_b32 v48, 5, v{VL}\nv_lshlrev_b32 v48, 6, v48")
        for u in range(5):
            L += [('wl', ('pl', u)), ('vm', f"buffer_store_dwordx4 {v(FR+4*u,4)}, v{VL16}, {WS}, s30 offen {st}", 'pst'),
                  f"v_mfma_f32_32x32x16_bf16 {v(CA,16)}, {v(FR+4*u,4)}, {v(ONE,4)}, {'0' if u == 0 else v(CA,16)}"]
            if u < 4: L.append("s_add_u32 s30, s30, s35")
        add(f"s_lshr_b32 s31, s{S_U}, 2")
        L.append("s_cmp_ge_u32 s31, 27\ns_cselect_b32 s29, 1, 0\ns_cselect_b32 s30, 27, 0")
        add("s_sub_u32 s30, s31, s30\ns_lshr_b32 s31, s30, 1\ns_lshl_b32 s31, s31, 1\ns_add_u32 s31, s31, s29\ns_lshl_b32 s31, s31, 1\ns_and_b32 s30, s30, 1\ns_add_u32 s31, s31, s30\ns_mul_i32 s31, s31, 5120")
        add(f"s_and_b32 s30, s{S_U}, 3\ns_lshl_b32 s30, s30, 1\ns_add_u32 s30, s30, s{KH}\ns_mul_i32 s30, s30, {WP5_C}\ns_add_u32 s30, s30, s31\ns_mul_i32 s29, s{RR}, 3072\ns_add_u32 s30, s30, s29\ns_add_u32 s30, s30, {WP5}")
        L.append(f"s_cmp_ge_u32 s{S_U}, 216\ns_cmov_b32 s30, {OOB}")
        add(f"s_lshl_b32 s29, s{RR}, 10\ns_sub_u32 s29, s30, s29")
        L.append(('wl', 'pd'))
        for k in range(3): L.append(('vm', f"buffer_store_dwordx4 {v(FD+4*k,4)}, v{VL16}, {WS}, s{30 if k < 2 else 29} offen offset:{k*1024} {st}", 'pst'))
        for q in range(4): L.append(('vm', f"s_mov_b32 exec_lo, 1\ns_mov_b32 exec_hi, 1\nbuffer_store_dwordx4 {v(CA+4*q,4)}, v48, {WS}, s28 offen offset:{16*q} {st}\ns_mov_b64 exec, -1", 'pst'))
        return L

    def setup2(self):
        A = self.A; t = VFREE
        A(f"s_lshl_b32 s3, s{MB}, 4\ns_add_u32 s3, s3, s{J}\ns_mul_i32 s{S_KVO}, s3, {KV_WG}\ns_add_u32 s{S_KVO}, s{S_KVO}, {KV}")
        A(f"s_lshl_b32 s3, s{MB}, 2\ns_lshl_b32 s36, s{RH}, 1\ns_add_u32 s3, s3, s36\ns_add_u32 s3, s3, s{RR}")
        A(f"s_mul_i32 s{S_X}, s3, 40960\ns_mul_i32 s36, s{CT}, 5120\ns_add_u32 s{S_X}, s{S_X}, s36")
        A(f"s_lshl_b32 s{S_STX}, s3, 3\ns_add_u32 s{S_STX}, s{S_STX}, s{CT}\ns_lshl_b32 s{S_STX}, s{S_STX}, 8")
        A(f"s_lshl_b32 s3, s3, 1\ns_add_u32 s{S_A3}, s3, s{KH}\ns_xor_b32 s{S_A3B}, s{S_A3}, 1")
        m5, h, m4, g = t, t+1, t+2, t+3
        A(f"v_and_b32 v{m5}, 31, v{VL}\nv_lshrrev_b32 v{h}, 5, v{VL}\nv_and_b32 v{m4}, 15, v{VL}\nv_lshrrev_b32 v{g}, 4, v{VL}")
        A(f"v_lshlrev_b32 v{VST}, 3, v{m5}\nv_lshl_add_u32 v{VST}, v{h}, 8, v{VST}")
        A(f"v_add_u32 v{VB1}, 0x10000, v{VL16}\nv_add_u32 v{VB2}, 0x20000, v{VL16}\nv_lshlrev_b32 v{VCS}, 6, v{h}\nv_add_u32 v{VCS}, {LDS_MISC}, v{VCS}")
        A(f"s_mul_i32 s3, s{J}, 7\ns_lshr_b32 s3, s3, 2\ns_sub_u32 s3, s3, 1\nv_add_u32 v{VCNT}, s3, v{VL}\nv_min_u32 v{VCNT}, 26, v{VCNT}\nv_lshlrev_b32 v{VCNT}, 7, v{VCNT}\nv_add_u32 v{VCNT}, {PK4}, v{VCNT}\nv_mov_b32 v{VTG}, 8")
        A(f"s_lshl_b32 s3, s{MB}, 8\nv_writelane_b32 v{VCNT}, s3, 0\ns_lshr_b32 s3, s{CT}, 1\ns_lshl_b32 s3, s3, 7\ns_add_u32 s3, s3, {PK5}\nv_writelane_b32 v{VCNT}, s3, 4\nv_writelane_b32 v{VTG}, 54, 4")

        A(f"s_lshl_b32 s3, s{MB}, 3\ns_lshl_b32 s36, s{WV}, 1\ns_add_u32 s3, s3, s36\ns_mul_i32 s3, s3, 20480\ns_mul_i32 s36, s{J}, 1280\ns_add_u32 s3, s3, s36\ns_add_u32 s3, s3, {OO}")
        A(f"v_lshrrev_b32 v{t+4}, 4, v{m5}\nv_mul_u32_u24 v{t+5}, 20480, v{t+4}\nv_lshl_add_u32 v{t+5}, v{m4}, 4, v{t+5}\nv_add_u32 v{VO3}, s3, v{t+5}\nv_lshl_add_u32 v{VO1}, v{h}, 8, v{VO3}")
        A(f"v_mul_u32_u24 v{VH}, {54*1024}, v{t+4}\nv_lshl_add_u32 v{VH}, v{m4}, 4, v{VH}\nv_lshl_add_u32 v{VH}, v{h}, 8, v{VH}")
        A(f"s_lshl_b32 s3, s{KH}, 4\nv_add_u32 v{t+4}, s3, v{m4}\nv_lshlrev_b32 v{VSX}, 3, v{t+4}\nv_and_b32 v{t+5}, 1, v{g}\nv_lshl_add_u32 v{t+4}, v{t+5}, 5, v{t+4}")
        A(f"v_lshlrev_b32 v{VX}, 4, v{t+4}\nv_lshl_add_u32 v{VX}, v{h}, 10, v{VX}")
        A(f"s_mul_i32 s3, s{WV}, 2560\ns_add_u32 s3, s3, {KREG}\nv_add_u32 v{VK}, s3, v{VL16}\ns_add_u32 s3, s3, 2048\nv_lshlrev_b32 v{VKS}, 3, v{VL}\nv_add_u32 v{VKS}, s3, v{VKS}")
        A(f"s_mul_i32 s3, s{WV}, 3328\ns_add_u32 s3, s3, {VREG - 32}")
        A(f"v_mul_u32_u24 v{VV}, 416, v{h}\nv_and_b32 v{t+4}, 1, v{g}\nv_lshl_add_u32 v{VV}, v{t+4}, 7, v{VV}\nv_and_b32 v{t+4}, 3, v{VL}\nv_lshl_add_u32 v{VV}, v{t+4}, 5, v{VV}")
        A(f"v_bfe_u32 v{t+4}, v{VL}, 2, 2\nv_lshl_add_u32 v{VV}, v{t+4}, 3, v{VV}\nv_add_u32 v{VV}, s3, v{VV}")
        A(f"s_add_u32 s3, s3, {8*3328 + 32}\nv_lshrrev_b32 v{t+4}, 2, v{m5}\nv_mul_u32_u24 v{t+4}, 416, v{t+4}\nv_and_b32 v{t+5}, 3, v{VL}\nv_lshl_add_u32 v{t+4}, v{t+5}, 3, v{t+4}\nv_add_u32 v{t+4}, s3, v{t+4}")
        A(f"v_lshl_add_u32 v{VW2}, v{h}, 6, v{t+4}\nv_lshl_add_u32 v{VW1}, v{h}, 5, v{t+4}\nv_mul_u32_u24 v{t+5}, 384, v{h}\nv_add_u32 v{VW12}, v{t+5}, v{t+4}")
        A(f"s_mul_i32 s3, s{WV}, 5120\nv_add_u32 v{VXW}, s3, v{VL16}\ns_xor_b32 s3, s{WV}, 1\ns_mul_i32 s3, s3, 5120\nv_add_u32 v{VXR}, s3, v{VL16}")
        A(f"v_lshlrev_b32 v{t+4}, 2, v{h}\nv_sub_u32 v{t+4}, v{m5}, v{t+4}")
        for r in range(16):
            A(f"v_cmp_le_i32 s[{MASK+2*r}:{MASK+2*r+1}], {8*(r>>2) + (r&3)}, v{t+4}")
        A(f"v_mov_b32 v{t+5}, 0xffff\nv_mov_b32 v{t+6}, 0xffff0000")
        for rr in range(8):
            A(f"v_cndmask_b32 v{PM+rr}, 0, v{t+5}, s[{MASK+4*rr}:{MASK+4*rr+1}]\nv_cndmask_b32 v{t+7}, 0, v{t+6}, s[{MASK+4*rr+2}:{MASK+4*rr+3}]\nv_or_b32 v{PM+rr}, v{PM+rr}, v{t+7}")

    def stats_load(self, off, dst):
        A = self.A
        A(f"s_add_u32 s{T[3]}, s{SL}, s{S_ST1}\ns_add_u32 s{T[3]}, s{T[3]}, {off}")
        for i in range(4):
            A.vmem(f"buffer_load_dwordx2 {v(dst+2*i,2)}, v{VST}, {WS}, s{T[3]} offen offset:{512*i} {self.ld}", 'st')

    def stats_finish(self, d, mu, rs):
        return [f"v_add_f32 v{d}, v{d}, v{d+2}", f"v_add_f32 v{d+1}, v{d+1}, v{d+3}", f"v_add_f32 v{d+4}, v{d+4}, v{d+6}", f"v_add_f32 v{d+5}, v{d+5}, v{d+7}",
                f"v_add_f32 v{d}, v{d}, v{d+4}", f"v_add_f32 v{d+1}, v{d+1}, v{d+5}", f"v_mov_b32 v{d+2}, v{d}", f"v_mov_b32 v{d+3}, v{d+1}",
                f"v_permlane32_swap_b32 v{d}, v{d+2}", f"v_permlane32_swap_b32 v{d+1}, v{d+3}",
                f"v_add_f32 v{d}, v{d}, v{d+2}", f"v_add_f32 v{d+1}, v{d+1}, v{d+3}",
                f"v_mul_f32 v{mu}, {fhex(-1.0/640)}, v{d}", f"v_mul_f32 v{d+1}, {fhex(1.0/640)}, v{d+1}",
                f"v_fma_f32 v{d+1}, -v{mu}, v{mu}, v{d+1}", f"v_max_f32 v{d+1}, 0, v{d+1}", f"v_add_f32 v{d+1}, 0x3727c5ac, v{d+1}",
                f"v_rsq_f32 v{rs}, v{d+1}"]

    def a_load(self, st_, sreg, dst, tag):
        self.A.vmem(f"buffer_load_dwordx4 {a(dst,4)}, v{VL16}, {WS}, s{sreg} offen offset:{(st_ & 3)*1024} {self.ld}", tag)

    def p1(self):
        A = self.A; o = self.o
        ACC, WF, STD, MU, RS = 64, 128, 144, 152, 153
        bases = [VL16, VB1, VB2]
        SA = T[4]
        def aload(st_):
            L = [f"s_add_u32 s{SA}, s{SA}, 4096"] if st_ and st_ % 4 == 0 else []
            return L + [('vm', f"buffer_load_dwordx4 {a(4*st_,4)}, v{VL16}, {WS}, s{SA} offen offset:{(st_ & 3)*1024} {self.ld}", ('a', st_))]
        A(f"s_add_u32 s{SA}, s{SL}, s{S_A1}")
        def wsteps(a0, a1):
            return (a0, self.rnd(S_W1, a0*4096, lds1(a0), a1 - a0, ('w', a0)))
        n0 = self.pre1
        cuts = sorted(set([n0] + [c for c in range(n0, 31, 4)] + [31, 36, 40]))
        groups = [wsteps(x, y) for x, y in zip(cuts, cuts[1:])]
        up = o.get("up1", 10)
        self.stats_load(STA, STD)
        for k in range(up): [self.emit(x) for x in aload(k)]
        jobs = [(0, k, aload(k)) for k in range(up, 40)]
        jobs += [(7 if a0 == 36 else 0, a0 - 1.5, L) for a0, L in groups]
        jobs.append((30, 99, self.rnd(S_W3, 30720, lds3(3), 8, 'w3')))
        sched = self.edf(jobs, 40, o.get("r1", 1.8))
        valid = {a0 - 1: ('w', a0) for a0, L in groups}
        valid.setdefault(7, None); valid.setdefault(30, None)
        sched[33] += self.stats_finish(STD, MU, RS)
        A.wait_vm(('a', 0)); A("s_barrier")
        self.stamp('p1.go')
        for t in range(4): A.lds(f"ds_read_b128 {v(WF+4*t,4)}, {self.ldsaddr(lds1(0) + 1024*t, bases)}", ('f', 0, t))
        fill = []
        for st_ in range(40):
            if st_ in valid:
                if valid[st_]: self.need(valid[st_], fill)
                A("s_barrier")
            fill += sched[st_]
            self.need(('a', st_), fill)
            for t in range(4):
                A.wait_lg(('f', st_, t))
                A(f"v_mfma_f32_32x32x16_bf16 {v(ACC+16*t,16)}, {v(WF+4*t,4)}, {a(4*st_,4)}, {'0' if st_ == 0 else v(ACC+16*t,16)}")
                if st_ < 39: A.lds(f"ds_read_b128 {v(WF+4*t,4)}, {self.ldsaddr(lds1(st_+1) + 1024*t, bases)}", ('f', st_+1, t))
                self.drain(fill, 4)
        assert not fill
        A("s_barrier")
        self.stamp('p1.main')

    def p1_epilogue(self, ACC, MU, RS):
        A = self.A; first = False
        CSR, PK, RQ = 160, 176, 154
        self.QA1, self.QB1, self.QA2, self.QB2 = 224, 228, 232, 236
        if first: A(f"v_mov_b32 v{RQ}, {fhex(QSCALE)}")
        else: A(f"v_mul_f32 v{RQ}, {fhex(QSCALE)}, v{RS}")
        def quad(t, j, dst, isq):
            r = ACC + 16*t + 4*j
            if not first:
                A.wait_lg(('cs', t, j))
                for i in range(4): A(f"v_fma_f32 v{r+i}, v{MU}, v{CSR+4*j+i}, v{r+i}")
            if isq or not first:
                for i in range(4): A(f"v_mul_f32 v{r+i}, v{RQ if isq else RS}, v{r+i}")
            A(f"v_cvt_pk_bf16_f32 v{dst}, v{r}, v{r+1}\nv_cvt_pk_bf16_f32 v{dst+1}, v{r+2}, v{r+3}")
        def csload(t):
            if not first:
                for j in range(4): A.lds(f"ds_read_b128 {v(CSR+4*j,4)}, v{VCS} offset:{128*t + 16*j}", ('cs', t, j))
        KA, KB, KS, VT = PK, PK+4, PK+8, PK+12
        A(f"s_add_u32 s{T[4]}, s{SL}, s{S_KVO}\ns_mul_i32 s{T[5]}, s{WV}, 2560\ns_add_u32 s{T[5]}, s{T[5]}, s{T[4]}\ns_mul_i32 s{T[6]}, s{WV}, 3328\ns_add_u32 s{T[6]}, s{T[6]}, s{T[4]}\ns_add_u32 s{T[6]}, s{T[6]}, 10240")
        csload(0)
        quad(0, 0, KA, 0); quad(0, 1, KA+2, 0)
        A.lds(f"ds_write_b128 v{VK}, {v(KA,4)} offset:{8*2560}")
        A.vmem(f"buffer_store_dwordx4 {v(KA,4)}, v{VL16}, {WS}, s{T[5]} offen {self.stkv}")
        quad(0, 2, KS, 0); quad(0, 3, KB, 0)
        csload(1)
        A.lds(f"ds_write_b64 v{VKS}, {v(KS,2)} offset:{8*2560}")
        A(f"v_lshlrev_b32 v{PK+10}, 3, v{VL}")
        A.vmem(f"buffer_store_dwordx2 {v(KS,2)}, v{PK+10}, {WS}, s{T[5]} offen offset:2048 {self.stkv}")
        quad(1, 0, KB+2, 0)
        A.lds(f"ds_write_b128 v{VK}, {v(KB,4)} offset:{8*2560+1024}")
        A.vmem(f"buffer_store_dwordx4 {v(KB,4)}, v{VL16}, {WS}, s{T[5]} offen offset:1024 {self.stkv}")
        A(f"v_mov_b32 v{VT+10}, 0x3f803f80\nv_mov_b32 v{VT+11}, 0x3f803f80")
        A.lds(f"ds_write_b64 v{VW1}, {v(VT+10,2)} offset:{5*32}")
        for n, (t, j, ad, pos) in enumerate(((1, 1, VW2, 1), (1, 2, VW2, 2), (1, 3, VW12, 0), (2, 0, VW2, 7), (2, 1, VW2, 8))):
            if n == 3: csload(2)
            quad(t, j, VT+2*n, 0)
            A.lds(f"ds_write_b64 v{ad}, {v(VT+2*n,2)} offset:{pos*32}", 'vw')
        A(f"s_mul_i32 s{T[7]}, s{WV}, 3328\ns_add_u32 s{T[7]}, s{T[7]}, {VREG + 8*3328}\nv_add_u32 v{PK+10}, s{T[7]}, v{VL16}")
        A.wait_lg('vw')
        VC = 192
        for n in range(4): A.lds(f"ds_read_b128 {v(VC+4*n,4)}, v{PK+10} offset:{1024*n}", ('vc', n))
        for n in range(4):
            A.wait_lg(('vc', n))
            if n == 3: A("s_mov_b64 exec, 0xffff")
            A.vmem(f"buffer_store_dwordx4 {v(VC+4*n,4)}, v{VL16}, {WS}, s{T[6]} offen offset:{1024*n} {self.stkv}", 'out')
        A("s_mov_b64 exec, -1")
        self.stamp('p1.epi')
        quad(2, 2, self.QA1, 1); quad(2, 3, self.QA1+2, 1)
        csload(3)
        quad(3, 0, self.QA2, 1); quad(3, 1, self.QB1, 1); quad(3, 2, self.QB1+2, 1)
        A(f"v_mov_b32 v{self.QB2}, v{self.QA2}\nv_mov_b32 v{self.QB2+1}, v{self.QA2+1}")
        for q in (self.QA2, self.QB2): A(f"v_mov_b32 v{q+2}, 0\nv_mov_b32 v{q+3}, 0")
        A(f"s_mov_b32 exec_lo, 0\nv_mov_b32 v{self.QA2}, 0\nv_mov_b32 v{self.QA2+1}, 0\ns_mov_b32 exec_lo, -1\ns_mov_b32 exec_hi, 0\nv_mov_b32 v{self.QB2}, 0\nv_mov_b32 v{self.QB2+1}, 0\ns_mov_b32 exec_hi, -1")

    def kv_sync(self):
        A = self.A; N = A.newlab("nw0"); E = A.newlab("syn"); t = VFREE
        A("s_barrier")
        self.stamp('p1.drain')
        A(f"s_add_u32 s{T[3]}, s{LAY}, 1\ns_cmp_lg_u32 s{WV}, 0\ns_cbranch_scc1 {N}")
        A(f"s_mov_b64 exec, 7\nv_sub_u32 v{t+2}, s{MB}, v{VL}\nv_cmp_gt_i32 vcc, 0, v{t+2}\nv_mov_b32 v{t+3}, s{MB}\nv_cndmask_b32 v{t+2}, v{t+2}, v{t+3}, vcc")
        A(f"v_lshlrev_b32 v{t+2}, 4, v{t+2}\nv_add_u32 v{t+2}, s{J}, v{t+2}\nv_lshlrev_b32 v{t+2}, 7, v{t+2}\nv_add_u32 v{t+2}, {KVF}, v{t+2}\nv_mov_b32 v{t+3}, s{T[3]}")
        A(f"s_mov_b64 exec, 1\nbuffer_store_dword v{t+3}, v{t+2}, {WS}, 0 offen sc1")
        self.packed_signal()
        A("s_mov_b64 exec, 7")
        self.spin(t + 2, f's{T[3]}', 0x100)
        A(f"s_mov_b64 exec, -1")
        self.stamp('p1.poll')
        A(f"s_branch {E}")
        A.lab(N)
        A.lab(E)
        A("s_barrier")
        for src in range(2):
            back = 2 - src
            A(f"s_add_u32 s{T[4]}, s{SL}, s{S_KVO}\ns_sub_u32 s{T[4]}, s{T[4]}, {back*16*KV_WG}\ns_cmp_lt_u32 s{MB}, {back}\ns_cmov_b32 s{T[4]}, {OOB}")
            for n in range(6):
                A(f"s_add_u32 s{T[5]}, s{WV}, {4*n}")
                if n == 5: A(f"s_min_u32 s{T[5]}, s{T[5]}, 22")
                A(f"s_lshl_b32 s{T[5]}, s{T[5]}, 10\ns_add_u32 s{T[6]}, s{T[5]}, s{T[4]}")
                ko = KREG + src*10240; vo = VREG + src*13312 - 10240
                if n < 2: A(f"s_add_u32 m0, s{T[5]}, {ko}")
                elif n > 2: A(f"s_add_u32 m0, s{T[5]}, {vo}")
                else:
                    A(f"s_cmp_lt_u32 s{WV}, 2"); sel(A, T[7], ko, vo); A(f"s_add_u32 m0, s{T[5]}, s{T[7]}")
                A.vmem(f"buffer_load_dwordx4 v{VL16}, {WS}, s{T[6]} offen {self.ld} lds", 'halo')
        A.wait_vm('halo'); A("s_barrier")
        self.stamp('p2.go')

    def packed_signal(self):
        A = self.A; L = A.newlab("ps"); t = VFREE
        A(f"s_cmp_lg_u32 s{LAY}, 0\ns_cbranch_scc1 {L}\ns_cmp_ge_u32 s{S_U}, 216\ns_cbranch_scc1 {L}")
        A(f"s_lshr_b32 s3, s{S_U}, 3\ns_lshl_b32 s3, s3, 7\ns_add_u32 s3, s3, {PK4}\nv_mov_b32 v{t}, s3\ns_and_b32 s3, s{S_U}, 3\ns_lshl_b32 s3, s3, 7\ns_add_u32 s3, s3, {PK5}\nv_writelane_b32 v{t}, s3, 1")
        A(f"s_mov_b64 exec, 3\nv_mov_b32 v{t+1}, 1\nbuffer_atomic_add v{t+1}, v{t}, {WS}, 0 offen sc1")
        A.lab(L)

    def colsums(self, between, nb):
        A = self.A; L = A.newlab("x0"); L1 = A.newlab("x1"); t = VFREE
        A(f"s_lshl_b32 s{T[7]}, s{LAY}, 2\ns_sub_u32 s{T[7]}, s{RR}, s{T[7]}\ns_cmp_lg_u32 s{T[7]}, 1\ns_cbranch_scc1 {L1}")
        A(f"s_mul_i32 s{T[5]}, s{J}, 7168\ns_add_u32 s{T[5]}, s{T[5]}, {CSP4 - 4096}")
        A(f"s_lshl_b32 s{T[6]}, s{S_WI}, 7\nv_add_u32 v{t}, s{T[6]}, v{VL}")
        for r in range(2):
            A(f"v_add_u32 v{t+1}, {64*r}, v{t}\nv_lshrrev_b32 v{t+2}, 5, v{t+1}\nv_and_b32 v{t+3}, 31, v{t+1}\nv_lshlrev_b32 v{t+3}, 2, v{t+3}\nv_lshl_add_u32 v{t+2}, v{t+2}, 10, v{t+3}")
            for k in range(8): A(f"buffer_load_dword v{t+4+8*r+k}, v{t+2}, {WS}, s{T[5]} offen offset:{128*k} sc1")
        A.lab(L1)
        between()
        A(f"s_cmp_lg_u32 s{T[7]}, 1\ns_cbranch_scc1 {L}")
        A(f"v_lshlrev_b32 v{t+2}, 2, v{t}\nv_add_u32 v{t+2}, {LDS_MISC}, v{t+2}\ns_waitcnt vmcnt({nb})")
        for k in range(1, 8): A(f"v_add_f32 v{t+4}, v{t+4}, v{t+4+k}\nv_add_f32 v{t+12}, v{t+12}, v{t+12+k}")
        A(f"ds_write_b32 v{t+2}, v{t+4}\nds_write_b32 v{t+2}, v{t+12} offset:256\ns_waitcnt lgkmcnt(0)")
        A.lab(L)

    def p2(self):
        A = self.A
        SB = [48, 64, 80]; PB = [96, 104]; PD = 112; OA = [128, 144]; KF = [162, 174]; VF = [184, 192, 200]; CB = [208, 240]
        Q1 = [self.QA1, self.QB1]; Q2 = [self.QA2, self.QB2]
        cz = self.o.get("czero", True)
        blocks = [(i, hd) for i in range(1, 8) for hd in range(2)] + [('m', 0), ('m', 1)]
        N = len(blocks)
        def kread(i, buf):
            k = KF[buf]
            return [('lg', f"ds_read_b64 {v(k,2)}, v{VKS} offset:{i*2560}", ('k', i)), ('lg', f"ds_read_b128 {v(k+2,4)}, v{VK} offset:{i*2560}", ('k', i)),
                    ('lg', f"ds_read_b128 {v(k+6,4)}, v{VK} offset:{i*2560+1024}", ('k', i))]
        def vread(i, hd, buf):
            return [('lg', f"ds_read_b64_tr_b16 {v(VF[buf]+4*aa+2*p,2)}, v{VV} offset:{i*3328 + (4*aa+2*p)*416 + 192*hd}", ('v', i, hd)) for aa in range(2) for p in range(2)]
        kbuf = {i: i % 2 for i in range(1, 8)}; kbuf[0] = 0; kbuf[8] = 1
        def smf(i, hd, sb):
            k = KF[kbuf[i]]; c = '0' if cz else v(CB[hd], 16)
            return [('mf', f"v_mfma_f32_32x32x16_bf16 {v(sb,16)}, {v(k+2+4*hd,4)}, {v(Q1[hd],4)}, {c}", ('k', i)),
                    ('mf', f"v_mfma_f32_32x32x16_bf16 {v(sb,16)}, {v(k,4)}, {v(Q2[hd],4)}, {v(sb,16)}", None)]
        started = [False, False]
        def pvf(i, hd, pb, vb):
            L = []
            for aa in range(2):
                c = v(OA[hd], 16) if started[hd] else '0'; started[hd] = True
                L.append(('mf', f"v_mfma_f32_32x32x16_bf16 {v(OA[hd],16)}, {v(VF[vb]+4*aa,4)}, {v(pb+4*aa,4)}, {c}", ('v', i, hd) if aa == 0 else None))
            return L
        def emit(x):
            if isinstance(x, str): A(x)
            elif x[0] == 'vm': A.vmem(x[1], x[2])
            elif x[0] == 'lg': A.lds(x[1], x[2])
            else:
                if x[2] is not None: A.wait_lg(x[2])
                A(x[1])
        def weave(mfs, fill):
            cost = lambda x: 8 if isinstance(x, str) and x.startswith("v_exp") else 4
            tot = sum(map(cost, fill)); acc = 0; k = 0
            for x in fill:
                while k < len(mfs) and acc >= tot * k / len(mfs): emit(mfs[k]); k += 1
                emit(x); acc += cost(x)
            while k < len(mfs): emit(mfs[k]); k += 1
        sbuf = lambda n: SB[n % 2]
        for x in kread(1, kbuf[1]): emit(x)
        for x in smf(1, 0, sbuf(0)): emit(x)
        for n in range(N + 1):
            mfs = []; fill = []
            if n + 1 < N:
                i, hd = blocks[n+1]
                if i == 'm': mfs += smf(0, hd, sbuf(n+1)) + smf(8, hd, SB[2])
                else: mfs += smf(i, hd, sbuf(n+1))
            pv = []
            if n >= 1:
                i, hd = blocks[n-1]
                if i == 'm': pv = pvf(0, hd, PB[(n-1) % 2], (n-1) % 2) + pvf(8, hd, PD, 2)
                else: pv = pvf(i, hd, PB[(n-1) % 2], (n-1) % 2)
            if n < N:
                i, hd = blocks[n]
                if i != 'm' and hd == 0:
                    if i < 7: fill += kread(i+1, kbuf[i+1])
                    else: fill += kread(0, kbuf[0])
                sb = sbuf(n)
                if i == 'm':
                    pre = [f"v_cndmask_b32 v{sb+r}, v{sb+r}, v{SB[2]+r}, s[{MASK+2*r}:{MASK+2*r+1}]" for r in range(16)]
                    for x in pre: emit(x)
                    for x in pv: emit(x)
                    pv = []
                    fill += vread(0, hd, n % 2) + vread(8, hd, 2)
                else:
                    fill += vread(i, hd, n % 2)
                ex = []
                for r in range(16):
                    ex.append(f"v_exp_f32 v{sb+r}, v{sb+r}")
                    if r >= 3 and r % 2 == 1: ex.append(f"v_cvt_pk_bf16_f32 v{PB[n%2]+(r-3)//2}, v{sb+r-3}, v{sb+r-2}")
                ex.append(f"v_cvt_pk_bf16_f32 v{PB[n%2]+7}, v{sb+14}, v{sb+15}")
                if i == 'm':
                    for rr in range(8):
                        ex.append(f"v_and_b32 v{PD+rr}, v{PM+rr}, v{PB[n%2]+rr}")
                        ex.append(f"v_bfi_b32 v{PB[n%2]+rr}, v{PM+rr}, 0, v{PB[n%2]+rr}")
                fill += ex
                if blocks[n] == (7, 1):
                    for x in mfs[:2]: emit(x)
                    for x in kread(8, kbuf[8]): emit(x)
                    mfs = pv + mfs[2:]; pv = []
            weave(mfs + pv, fill) if fill else [emit(x) for x in mfs + pv]
        A("s_barrier")
        self.stamp('p2.main')
        ra, rb = 48, 49
        A(f"v_rcp_f32 v{ra}, v{OA[0]+12}\nv_rcp_f32 v{rb}, v{OA[1]}")
        A(f"s_nop 0")
        def pk(dst, r, rs):
            for i in range(4): A(f"v_mul_f32 v{r+i}, v{rs}, v{r+i}")
            A(f"v_cvt_pk_bf16_f32 v{dst}, v{r}, v{r+1}\nv_cvt_pk_bf16_f32 v{dst+1}, v{r+2}, v{r+3}")
        pk(52, OA[0]+4, ra); pk(54, OA[0]+8, ra)
        A.vmem(f"buffer_store_dwordx4 {v(52,4)}, v{VO1}, {WS}, s{SL} offen {self.st}")
        pk(56, OA[1]+4, rb); pk(58, OA[1]+8, rb)
        A.vmem(f"buffer_store_dwordx4 {v(56,4)}, v{VO1}, {WS}, s{SL} offen offset:768 {self.st}")
        pk(60, OA[0], ra); pk(62, OA[1]+12, rb)
        A("s_mov_b32 exec_lo, 0")
        A.vmem(f"buffer_store_dwordx4 {v(60,4)}, v{VO3}, {WS}, s{SL} offen offset:512 {self.st}", 'out')
        A("s_mov_b32 exec_lo, -1")

    def proj(self, which):
        A = self.A
        nb = 10 if which == 3 else 27
        ACC, WF, B0 = 64, 112, 136
        SA0, SA1, SW = T[4], T[5], T[6]
        src = OO if which == 3 else HH
        for sa, m in ((SA0, S_A3), (SA1, S_A3B)):
            A(f"s_mul_i32 s{sa}, s{m}, {2*nb*1024}\ns_add_u32 s{sa}, s{sa}, s{SL}\ns_mul_i32 s{T[7]}, s{KH}, {nb*1024}\ns_add_u32 s{sa}, s{sa}, s{T[7]}\ns_add_u32 s{sa}, s{sa}, {src}")
        def aload(b):
            L = []
            if b and b % 4 == 0: L += [f"s_add_u32 s{SA0}, s{SA0}, 4096", f"s_add_u32 s{SA1}, s{SA1}, 4096"]
            for u, sa in enumerate((SA0, SA1)):
                L.append(('vm', f"buffer_load_dwordx4 {a(8*b+4*u,4)}, v{VL16}, {WS}, s{sa} offen offset:{(b&3)*1024} {self.ld}", ('a', b)))
            return L
        o = self.o
        up = o.get("up3", 6) if which == 3 else o.get("up5", 6)
        for b in range(up):
            for x in aload(b): self.emit(x)
        ntail = o.get("tail1", 0)
        jobs = [(0, b, aload(b)) for b in range(up, nb)]
        if which == 5:
            jobs += [(2*(c-6)+1, 2*c - 1.5, self.rnd(S_W5, c*20480, (c % 7)*20480, 5, ('w', c))) for c in range(7, 14)]
            jobs += [(2*(13-ntail+k)+1, 99+k, self.rnd(S_W1, k*20480, lds1(5*k), 5, 'w1')) for k in range(ntail)]
        sched = self.edf(jobs, nb, o.get("r3", 3.0) if which == 3 else o.get("r5", 3.3))
        khoff = 5120 if which == 3 else 10240
        A(f"s_mul_i32 s{T[7]}, s{KH}, {khoff}")
        for k in range(3): A(f"v_add_u32 v{B0+k}, s{T[7]}, v{[VL16, VB1, VB2][k]}")
        bases = [B0, B0+1, B0+2]
        for k in range(10):
            A(f"v_lshlrev_b32 v{ACC+2*k}, 16, v{RES+k}\nv_and_b32 v{ACC+2*k+1}, 0xffff0000, v{RES+k}")
        wl = (lambda b: lds3(b)) if which == 3 else (lambda b: ((b >> 1) % 7) * 20480 + (b & 1) * 5120)
        A.wait_vm(('a', 0)); A("s_barrier")
        self.stamp(f'p{which}.go')
        WFB = [WF, 140]
        for t in range(5): A.lds(f"ds_read_b128 {v(WF+4*t,4)}, {self.ldsaddr(wl(0) + 1024*t, bases)}", ('f', 0))
        fill = []
        for b in range(nb):
            if which == 5 and b % 2 == 1 and b >= 3:
                if b // 2 + 1 >= 7: self.need(('w', b // 2 + 1), fill)
                A("s_barrier")
            fill += sched[b]
            self.need(('a', b), fill)
            A.wait_lg(('f', b))
            if self.prof and which == 5 and o.get("in5") and b in (4, 9, 14, 19, 24): self.stamp(f'p5.b{b}')
            for t in range(5):
                for u in range(2):
                    d = ACC + 20*u + 4*t
                    A(f"v_mfma_f32_16x16x32_bf16 {v(d,4)}, {v(WFB[b&1]+4*t,4)}, {a(8*b+4*u,4)}, {'0' if (b == 0 and u == 1) else v(d,4)}")
                    k = 2*t + u
                    if k < 5 and b < nb - 1: A.lds(f"ds_read_b128 {v(WFB[(b+1)&1]+4*k,4)}, {self.ldsaddr(wl(b+1) + 1024*k, bases)}", ('f', b+1))
                    if k >= 4: self.drain(fill, 2)
        while fill: self.emit(fill.pop(0))
        self.stamp(f'p{which}.main')
        fill = []
        if which == 3:
            self.post = (S_W4, 0, 0, 39)
            self.pre = lambda: self.colsums(lambda: self.rnd3(S_W4, 39936, 39936, 15), 15)
        else:
            k0 = 5*ntail
            self.post = (S_W1, k0*4096, lds1(k0), 36)
            self.pre1 = min(31, k0 + 9 + o.get("s31", 12)*3//4)
            n3 = -(-(self.pre1 - k0 - 9) * 4 // 3)
            assert lds1(k0 + 9) + 3*n3*1024 <= LDS_MISC
            self.pre = lambda: self.rnd3(S_W1, (k0+9)*4096, lds1(k0+9), n3)
        xo = XCH3 if which == 3 else XCH5
        A(f"v_add_u32 v{B0}, {xo}, v{VXW}\nv_add_u32 v{B0+1}, {xo}, v{VXR}")
        for t in range(5): A.lds(f"ds_write_b128 v{B0}, {v(ACC+20+4*t,4)} offset:{1024*t}")
        A.wait_lg0(); A("s_barrier")
        for t in range(5): A.lds(f"ds_read_b128 {v(ACC+20+4*t,4)}, v{B0+1} offset:{1024*t}", ('x', t))
        if which == 5:
            A(f"s_cmp_lg_u32 s{LAY}, 0\ns_cbranch_scc1 main_final")
            self.fin_state = (list(A.lg), ACC)
        body = []
        for t in range(5):
            body.append(('wl', ('x', t)))
            body += [f"v_add_f32 v{ACC+4*t+i}, v{ACC+4*t+i}, v{ACC+20+4*t+i}" for i in range(4)]
            body += [f"v_cvt_pk_bf16_f32 v{RES+2*t}, v{ACC+4*t}, v{ACC+4*t+1}", f"v_cvt_pk_bf16_f32 v{RES+2*t+1}, v{ACC+4*t+2}, v{ACC+4*t+3}"]
        xoff = X1 if which == 3 else LS + XA
        soff = ST3 if which == 3 else LS + STA
        A(f"s_add_u32 s{T[4]}, s{SL}, s{S_X}\ns_add_u32 s{T[4]}, s{T[4]}, {xoff}\ns_add_u32 s{T[5]}, s{T[4]}, 4096\ns_add_u32 s{T[6]}, s{SL}, s{S_STX}\ns_add_u32 s{T[6]}, s{T[6]}, {soff}")
        body.append(('vm', f"buffer_store_dwordx4 {v(RES,4)}, v{VX}, {WS}, s{T[4]} offen {self.st}", 'out'))
        body.append(('vm', f"buffer_store_dwordx4 {v(RES+4,4)}, v{VX}, {WS}, s{T[4]} offen offset:2048 {self.st}", 'out'))
        t4 = WF
        body += [f"v_mov_b32 v{t4+k}, v{RES+8+(k&1)}" for k in range(6)]
        body += [f"v_permlane32_swap_b32 v{t4+4}, v{t4+2}", f"v_permlane32_swap_b32 v{t4+5}, v{t4+3}"]
        body.append(('vm', f"s_mov_b32 exec_hi, 0\nbuffer_store_dwordx4 {v(t4,4)}, v{VX}, {WS}, s{T[5]} offen {self.st}\ns_mov_b32 exec_hi, -1", 'out'))
        s0, s1 = WF + 8, WF + 9
        body += [f"v_add_f32 v{s0}, v{ACC}, v{ACC+1}", f"v_mul_f32 v{s1}, v{ACC}, v{ACC}", f"v_fmac_f32 v{s1}, v{ACC+1}, v{ACC+1}"]
        for i in range(2, 20): body += [f"v_add_f32 v{s0}, v{s0}, v{ACC+i}", f"v_fmac_f32 v{s1}, v{ACC+i}, v{ACC+i}"]
        for sw in ("v_permlane16_swap_b32", "v_permlane32_swap_b32"):
            body += [f"v_mov_b32 v{s0+2}, v{s0}", f"v_mov_b32 v{s0+3}, v{s1}", f"{sw} v{s0}, v{s0+2}", f"{sw} v{s1}, v{s0+3}", f"v_add_f32 v{s0}, v{s0}, v{s0+2}", f"v_add_f32 v{s1}, v{s1}, v{s0+3}"]
        self.mix(body, fill, 7)
        while fill: self.emit(fill.pop(0))
        A("s_mov_b64 exec, 0xffff")
        A.vmem(f"buffer_store_dwordx2 {v(s0,2)}, v{VSX}, {WS}, s{T[6]} offen {self.st}", 'out')
        A("s_mov_b64 exec, -1")

    def final(self):
        A = self.A; t = VFREE
        A.lab("main_final")
        A.lg, ACC = self.fin_state
        for k in range(5):
            A.wait_lg(('x', k))
            for i in range(4): A(f"v_add_f32 v{ACC+4*k+i}, v{ACC+4*k+i}, v{ACC+20+4*k+i}")
            A(f"v_cvt_pk_bf16_f32 v{RES+2*k}, v{ACC+4*k}, v{ACC+4*k+1}\nv_cvt_pk_bf16_f32 v{RES+2*k+1}, v{ACC+4*k+2}, v{ACC+4*k+3}")
        A(f"s_lshl_b32 s{T[4]}, s{S_A3}, 4\ns_mul_i32 s{T[4]}, s{T[4]}, 1280\ns_mul_i32 s{T[5]}, s{CT}, 160\ns_add_u32 s{T[4]}, s{T[4]}, s{T[5]}")
        A(f"v_and_b32 v{t}, 15, v{VL}\nv_mul_u32_u24 v{t}, 1280, v{t}\nv_lshrrev_b32 v{t+1}, 4, v{VL}\nv_lshl_add_u32 v{t}, v{t+1}, 3, v{t}")
        for k in range(5): A(f"buffer_store_dwordx2 {v(RES+2*k,2)}, v{t}, {OS}, s{T[4]} offen offset:{32*k}")

    def p4(self):
        A = self.A
        ACC, WF, STD, MU, RS = 64, 176, 204, 212, 213
        bases = [VL16, VB1, VB2]
        SA, SW = T[4], T[5]
        A(f"s_add_u32 s{SA}, s{SL}, s{S_A1}\ns_add_u32 s{SA}, s{SA}, {X1}")
        self.stats_load(ST3, STD)
        o = self.o
        def aload(st_):
            L = [f"s_add_u32 s{SA}, s{SA}, 4096"] if st_ and st_ % 4 == 0 else []
            return L + [('vm', f"buffer_load_dwordx4 {a(4*st_,4)}, v{VL16}, {WS}, s{SA} offen offset:{(st_ & 3)*1024} {self.ld}", ('a', st_))]
        up = o.get("up4", 8)
        for k in range(up): [self.emit(x) for x in aload(k)]
        wr = lambda c: self.rnd(S_W4, c*28672, (c % 5)*28672, 7, ('w', c))
        w5 = lambda c: self.rnd(S_W5, c*20480, c*20480, 5, 'w5')
        jobs = [(0, k, aload(k)) for k in range(up, 40)]
        jobs += [(0 if c < 5 else 4*(c-4)+3, 4*c - 1.5, wr(c)) for c in range(3, 10)]
        jobs += [(27, 90, w5(0)), (31, 91, w5(1)), (35, 92, w5(2)), (35, 93, w5(3))]
        sched = self.edf(jobs, 40, o.get("r4", 3.0))
        sched[30] += self.stats_finish(STD, MU, RS)
        wl = lambda st_: ((st_ >> 2) % 5) * 28672 + (st_ & 3) * 7168
        A.wait_vm(('a', 0)); A("s_barrier")
        self.stamp('p4.go')
        for t in range(7): A.lds(f"ds_read_b128 {v(WF+4*t,4)}, {self.ldsaddr(wl(0) + 1024*t, bases)}", ('f', 0, t))
        fill = []
        for st_ in range(40):
            if st_ % 4 == 3 and 7 <= st_ < 39:
                self.need(('w', st_ // 4 + 1), fill); A("s_barrier")
            fill += sched[st_]
            self.need(('a', st_), fill)
            for t in range(7):
                A.wait_lg(('f', st_, t))
                A(f"v_mfma_f32_32x32x16_bf16 {v(ACC+16*t,16)}, {v(WF+4*t,4)}, {a(4*st_,4)}, {'0' if st_ == 0 else v(ACC+16*t,16)}")
                if st_ < 39: A.lds(f"ds_read_b128 {v(WF+4*t,4)}, {self.ldsaddr(wl(st_+1) + 1024*t, bases)}", ('f', st_+1, t))
                self.drain(fill, 4 if t % 2 == 0 else 0)
        assert not fill
        A("s_barrier")
        self.stamp('p4.main')
        CSR, PK = [216, 232], 176
        A(f"v_mul_f32 v{RS}, v{RS}, v{RS}")
        A(f"s_add_u32 s{T[4]}, s{SL}, s{S_H}\ns_add_u32 s{T[4]}, s{T[4]}, {HH}\ns_mov_b32 s{T[5]}, s{T[4]}\ns_cmp_eq_u32 s{J}, 15\ns_cmov_b32 s{T[5]}, {OOB}")
        csload = lambda t: [('lg', f"ds_read_b128 {v(CSR[t&1]+4*j,4)}, v{VCS} offset:{512 + 128*t + 16*j}", ('cs', t)) for j in range(4)]
        body = csload(0)
        for t in range(7):
            if t < 6: body += csload(t + 1)
            body.append(('wl', ('cs', t)))
            r = ACC + 16*t; c = CSR[t & 1]
            body += [f"v_fma_f32 v{r+k}, v{MU}, v{c+k}, v{r+k}" for k in range(16)]
            for hf in range(2):
                g = r + 8*hf
                for i in range(4): body += [f"v_max_f32 v{g+i}, 0, v{g+i}", f"v_mul_f32 v{g+4+i}, v{RS}, v{g+4+i}"]
                body += [f"v_mul_f32 v{g+i}, v{g+i}, v{g+4+i}" for i in range(4)]
                body += [f"v_cvt_pk_bf16_f32 v{PK+4*t+2*hf}, v{g}, v{g+1}", f"v_cvt_pk_bf16_f32 v{PK+4*t+2*hf+1}, v{g+2}, v{g+3}"]
            body.append(('vm', f"buffer_store_dwordx4 {v(PK+4*t,4)}, v{VH}, {WS}, s{T[4] if t < 3 else T[5]} offen offset:{512*t} {self.st}", 'out'))
        for x in body: self.emit(x)
        self.post = (S_W5, 81920, 81920, 39)
        self.pre = lambda: self.rnd3(S_W5, 81920 + 39936, 81920 + 39936, 7)

    def gen(self):
        A = self.A
        o_big = False
        def stop(name):
            if self.stop == name: A.wait_all(); A("s_branch main_done")
        self.setup()
        self.stamp('start')
        self.p1_first()
        self.drain_post((S_W3, 0, 0, 30))
        A.lab("main_layer")
        self.kv_sync(); stop("p1")
        self.p2()
        self.cluster_sync((S_W3, 61440, lds3(6), 40), None, 0x200); stop("p2")
        self.proj(3)
        self.cluster_sync(self.post, self.pre, 0x300); stop("p3")
        self.p4()
        self.cluster_sync(self.post, self.pre, 0x400); stop("p4")
        self.proj(5)
        self.cluster_sync(self.post, self.pre, 0x500); stop("p5")
        A(f"s_mov_b32 s{LAY}, 1\ns_add_u32 s{SL}, s{SL}, {LS}\ns_mov_b32 s{S_PB}, {64 if o_big else 32}")
        self.stamp('start')
        self.p1()
        self.p1_epilogue(64, 152, 153)
        self.drain_post((S_W3, 0, 0, 30))
        A("s_branch main_layer")
        self.final()
        A.lab("main_done")
        if self.prof:
            A.wait_all()
            if self.stop: A(f"s_mov_b32 s{S_PB}, 32")
            self.stamp('end')
            A(f"s_cmp_lg_u32 s{WV}, 0\ns_cbranch_scc1 main_end\ns_lshl_b32 s3, s2, 8\ns_add_u32 s3, s3, {PROF}\nv_lshlrev_b32 v{VFREE}, 2, v{VL}")
            A(f"buffer_store_dword v{VPROF}, v{VFREE}, {WS}, s3 offen\ns_add_u32 s3, s3, 0x10000\nbuffer_store_dword v{VPROF+1}, v{VFREE}, {WS}, s3 offen")
        if self.o.get("dbgprof"):
            t = VFREE; src = VPROF + (self.o["dbgprof"] - 1)
            A(f"s_cmp_lg_u32 s2, {self.o.get('dbgwg', 100)}\ns_cbranch_scc1 main_end\nv_readlane_b32 s3, v{src}, 0\nv_subrev_u32 v{t}, s3, v{src}")
            A(f"v_lshrrev_b32 v{t+1}, 2, v{VL}\nv_and_b32 v{t+1}, 8, v{t+1}\nv_and_b32 v{t+2}, 7, v{VL}\nv_add_u32 v{t+1}, v{t+1}, v{t+2}\nv_lshlrev_b32 v{t+1}, 2, v{t+1}")
            A(f"s_mov_b32 exec_lo, 0xfe\ns_mov_b32 exec_hi, 0xff\nbuffer_store_dword v{t}, v{t+1}, {DS_}, 0 offen")
        A.lab("main_end")
        A("s_endpgm")
        for blk in self.rare: A(blk)
        A.lab("main_last")

def gen_main(A, opts):
    m = Main(A, opts); m.gen()
    assert len(m.names) <= 32, len(m.names)
    if m.names: A.L.insert(0, Ins(f"; stamps {opts.get('mx', 256)} " + " ".join(m.names)))
```

```python
from asmlib import *
from layout import *
from pack import srd, sel, OOB, frag32_steps
import math

WS = "s[4:7]"; XS = "s[8:11]"; OS = "s[12:15]"; DS_ = "s[16:19]"
MB, J, WV, LAY, RH, CT, RR, KH = 20, 21, 22, 23, 24, 25, 26, 27
SL = 40
TGT = 41
S_A1 = 42
S_ST1 = 43
S_KVO = 44
S_A3 = 45
S_A3B = 46
S_X = 47
S_STX = 48
S_W1, S_W3, S_W4, S_W5 = 49, 50, 51, 52
S_H = 53
S_PB = 54
S_WI = 55
S_U = 98
GUS = "s[56:59]"; WDS = "s[60:63]"
MASK = 64
T = [28, 29, 30, 31, 32, 33, 34, 35, 36, 37]

VL, VL16, VST, RES = 1, 2, 3, 4
VO1, VO2, VO3, VX, VSX, VH, VCNT, VCS, VK, VKS, VV, VW2, VW12, VW1, VXW, VXR, VB1, VB2 = range(14, 32)
PM = 32
VPROF = 40
VTG, VDUM = 42, 43
VFREE = 44

LDS_MISC = 147456
CS1 = LDS_MISC; CS4 = LDS_MISC + 512
KREG = 36864; VREG = KREG + 12 * 2560
XCH3 = 86016; XCH5 = 0
STG4 = 16384; STG5 = STG4 + 20480; STG3 = LDS_MISC + 2048
QSCALE = math.log2(math.e) / math.sqrt(20.0)

def lds1(st): return ((st + 5) % 36) * 4096 if st < 36 else (st - 31) * 4096
def lds3(bl): return bl * 10240 if bl < 3 else (107520 + (bl - 3) * 10240 if bl < 6 else KREG + (bl - 6) * 10240)
def fhex(x):
    import struct
    return hex(struct.unpack("<I", struct.pack("<f", x))[0])

def qmap_step(x):
    import re
    m = re.match(r"ds_read_b64 a\[(\d+):", x[1])
    return int(m.group(1)) // 4 if m else 999

class Main:
    def __init__(self, A, opts):
        self.A = A; self.o = opts
        self.prof = opts.get("prof", 0); self.names = []; self.rare = []; self.pending = set()
        self.stop = opts.get("stop", None)
        self.fused = opts.get("fused", 1)
        self.kname = opts.get("kname", "main_kernel")
        self.ld = "sc1"; self.st = "sc1"; self.stkv = "sc1"
        self.ntu, self.ntx, self.nts = opts.get("ntu", "nt"), opts.get("ntx", "nt"), opts.get("nts", "nt")

    def stamp(self, name):
        if self.o.get("only") and name not in self.o["only"]: return
        if not self.prof or name.endswith(tuple(self.o.get("nostamp", ()))) and self.o.get("nostamp"): return
        A = self.A
        if name not in self.names: self.names.append(name)
        idx = self.names.index(name)
        A(f"s_memrealtime s[38:39]\ns_memtime s[96:97]\ns_waitcnt lgkmcnt(0)\ns_add_u32 m0, s{S_PB}, {idx}\nv_writelane_b32 v{VPROF}, s38, m0\nv_writelane_b32 v{VPROF+1}, s96, m0")
        A.lg = []

    def ldsaddr(self, off, bases):
        b = off >> 16
        return f"v{bases[b]} offset:{off & 0xffff}"

    def emit(self, x):
        if isinstance(x, tuple):
            if x[0] == 'vm': self.A.vmem(x[1], x[2])
            elif x[0] == 'lg': self.A.lds(x[1], x[2])
            else:
                assert x[1] in self.A.seen and x[1] not in self.pending, x
                (self.A.wait_vm if x[0] == 'wv' else self.A.wait_lg)(x[1])
        else: self.A(x)

    def drain(self, fill, n):
        vm = 0
        while fill and n > 0:
            isvm = isinstance(fill[0], tuple) and fill[0][0] == 'vm'
            if isvm and vm: break
            vm += isvm
            self.pending = {y[2] for y in fill if isinstance(y, tuple) and len(y) == 3}
            self.emit(fill.pop(0)); n -= 1
            self.pending = set()

    def need(self, tag, fill):
        while any(isinstance(x, tuple) and x[0] == 'vm' and x[2] == tag for x in fill): self.emit(fill.pop(0))
        self.A.wait_vm(tag)

    def rnd(self, sbase, goff, loff, kb, tag):
        L = [f"s_mul_i32 s{T[8]}, s{WV}, {kb*1024}", f"s_add_u32 s{T[9]}, s{T[8]}, s{sbase}", f"s_add_u32 s{T[9]}, s{T[9]}, {goff}", f"s_add_u32 m0, s{T[8]}, {loff}"]
        for i in range(kb):
            if i and i % 4 == 0: L += [f"s_add_u32 s{T[9]}, s{T[9]}, 4096", "s_add_u32 m0, m0, 4096"]
            L.append(('vm', f"buffer_load_dwordx4 v{VL16}, {WS}, s{T[9]} offen offset:{1024*(i&3)} lds", tag))
        return L

    def rnd3(self, sbase, goff, loff, kb):
        A = self.A
        A(f"s_mul_i32 s{T[8]}, s{S_WI}, {kb*1024}\ns_add_u32 s{T[9]}, s{T[8]}, s{sbase}\ns_add_u32 s{T[9]}, s{T[9]}, {goff}\ns_add_u32 m0, s{T[8]}, {loff}")
        for i in range(kb):
            if i and i % 4 == 0: A(f"s_add_u32 s{T[9]}, s{T[9]}, 4096\ns_add_u32 m0, m0, 4096")
            A(f"buffer_load_dwordx4 v{VL16}, {WS}, s{T[9]} offen offset:{1024*(i&3)} lds")

    def edf(self, jobs, nsteps, rate, credit=0.0):
        units = []
        for rel, dl, L in jobs:
            cur = []
            for x in L:
                cur.append(x)
                if isinstance(x, tuple) and x[0] == 'vm': units.append([rel, dl, cur, id(L)]); cur = []
            if cur: units[-1][2] += cur
        sched = {k: [] for k in range(nsteps)}
        busy = None
        for st_ in range(nsteps):
            credit += rate
            while credit >= 1 and units:
                cand = [u for u in units if u[0] <= st_]
                if busy is not None: cand = [u for u in cand if u[3] == busy or 'lds' not in u[2][-1 if isinstance(u[2][-1], tuple) else -2][1]]
                if not cand: credit = min(credit, 1.0); break
                u = min(cand, key=lambda u: u[1])
                units.remove(u); sched[st_] += u[2]; credit -= 1
                isdma = any(isinstance(x, tuple) and x[1].endswith('lds') for x in u[2])
                if isdma: busy = u[3] if any(w[3] == u[3] for w in units) else None
        assert not units, f"{len(units)} loads left"
        return sched

    def drain_post(self, post, extra=0):
        A = self.A
        if not post:
            A.wait_all(); return
        N = A.newlab("p0"); E = A.newlab("pe")
        kb = -(-post[3] // 3)
        A(f"s_cmp_eq_u32 s{WV}, 0\ns_cbranch_scc1 {N}")
        self.rnd3(post[0], post[1], post[2], kb)
        A(f"s_waitcnt vmcnt({kb + extra}) lgkmcnt(0)\ns_branch {E}")
        A.lab(N); A(f"s_waitcnt vmcnt({extra}) lgkmcnt(0)"); A.lab(E)
        A.vm = []; A.lg = []

    def mix(self, body, fill, every):
        for k, x in enumerate(body):
            self.emit(x)
            if (k + 1) % every == 0: self.drain(fill, 5)

    def spin(self, addr, tgt, code, srd_=WS):
        A = self.A; L = A.newlab("poll"); D = A.newlab("pdone"); t = 254
        ld = lambda r: f"buffer_load_dword v{r}, v{addr}, {srd_}, 0 offen sc1"
        A(f"s_mov_b32 s{T[2]}, 20000\n" + ld(t))
        A.lab(L)
        for r in (t + 1, t):
            A(f"s_sleep {self.o.get('psleep', 3)}\n" + ld(r) + f"\ns_waitcnt vmcnt(1)\nv_cmp_gt_u32 vcc, {tgt}, v{2*t + 1 - r}\ns_cbranch_vccz {D}")
        A(f"s_sub_u32 s{T[2]}, s{T[2]}, 1\ns_cmp_lg_u32 s{T[2]}, 0\ns_cbranch_scc1 {L}")
        A(f"s_waitcnt vmcnt(0)\nv_mov_b32 v{t}, {code}\nv_mov_b32 v{t+1}, 128\nbuffer_store_dword v{t}, v{t+1}, {DS_}, 0 offen")
        A.lab(D)

    def cluster_sync(self, post, pre, code):
        A = self.A; N = A.newlab("nw0"); E = A.newlab("syn")
        self.stamp(f'p{code>>8}.epi')
        self.drain_post(post); A("s_barrier")
        self.stamp(f'p{code>>8}.drain')
        A(f"s_add_u32 s{TGT}, s{TGT}, 16\ns_cmp_lg_u32 s{WV}, 0\ns_cbranch_scc1 {N}")
        A(f"s_mov_b64 exec, 1\nv_mov_b32 v{VFREE+3}, 1\nbuffer_atomic_add v{VFREE+3}, v{VCNT}, {WS}, 0 offen sc1\nv_mov_b32 v{VTG}, s{TGT}")
        if code == 0x200: A("s_mov_b64 exec, 31")
        self.spin(VCNT, f'v{VTG}', code)
        A(f"s_mov_b64 exec, -1")
        self.stamp(f'p{code>>8}.poll')
        A(f"s_branch {E}")
        A.lab(N)
        if pre: pre()
        A.lab(E)
        A("s_barrier")
        self.stamp(f'p{code>>8}.bar')

    def setup(self):
        A = self.A
        A.lab(self.kname)
        A("s_cmp_ge_u32 s2, 256\ns_cbranch_scc1 main_end")
        A("s_load_dwordx2 s[28:29], s[0:1], 0\ns_load_dwordx4 s[32:35], s[0:1], 56\ns_load_dwordx2 s[30:31], s[0:1], 72")
        if self.fused: A("s_load_dwordx4 s[80:83], s[0:1], 8\ns_load_dwordx4 s[84:87], s[0:1], 32\ns_load_dwordx2 s[88:89], s[0:1], 48")
        A(f"v_and_b32 v{VL}, 63, v0\nv_lshrrev_b32 v2, 6, v0\ns_nop 0\nv_readfirstlane_b32 s{WV}, v2\nv_lshlrev_b32 v{VL16}, 4, v{VL}")
        mx = self.o.get("mx", 256)
        if mx == 256:
            A(f"s_and_b32 s{MB}, s2, 7\ns_lshl_b32 s{MB}, s{MB}, 1\ns_lshr_b32 s3, s2, 7\ns_add_u32 s{MB}, s{MB}, s3\ns_bfe_u32 s{J}, s2, 0x40003")
        elif mx == 512:
            A(f"s_bfe_u32 s{MB}, s2, 0x20001\ns_lshl_b32 s{MB}, s{MB}, 2\ns_lshr_b32 s3, s2, 6\ns_add_u32 s{MB}, s{MB}, s3")
            A(f"s_and_b32 s{J}, s2, 1\ns_lshl_b32 s{J}, s{J}, 3\ns_bfe_u32 s3, s2, 0x30003\ns_add_u32 s{J}, s{J}, s3")
        elif mx == 1024:
            A(f"s_bfe_u32 s{MB}, s2, 0x10002\ns_lshl_b32 s{MB}, s{MB}, 3\ns_lshr_b32 s3, s2, 5\ns_add_u32 s{MB}, s{MB}, s3")
            A(f"s_and_b32 s{J}, s2, 3\ns_lshl_b32 s{J}, s{J}, 2\ns_bfe_u32 s3, s2, 0x20003\ns_add_u32 s{J}, s{J}, s3")
        A(f"s_and_b32 s{RH}, s{J}, 1\ns_lshr_b32 s{CT}, s{J}, 1\ns_lshr_b32 s{RR}, s{WV}, 1\ns_and_b32 s{KH}, s{WV}, 1\ns_sub_u32 s{S_WI}, s{WV}, 1")
        A(f"s_mov_b32 s{LAY}, 0\ns_mov_b32 s{SL}, {LB}\ns_mov_b32 s{TGT}, 0\ns_mov_b32 s{S_PB}, 0")
        A(f"s_lshl_b32 s3, s{MB}, 2\ns_add_u32 s3, s3, s{WV}\ns_mul_i32 s{S_A1}, s3, 40960\ns_lshl_b32 s{S_ST1}, s3, 11")
        A(f"s_mul_i32 s{S_H}, s3, {2*54*1024}\ns_mul_i32 s3, s{J}, {7*512}\ns_add_u32 s{S_H}, s{S_H}, s3")
        A(f"s_mul_i32 s{S_W1}, s{J}, {WP1_J}\ns_add_u32 s{S_W1}, s{S_W1}, {WP1}\ns_mul_i32 s{S_W4}, s{J}, {WP4_J}\ns_add_u32 s{S_W4}, s{S_W4}, {WP4}")
        A(f"s_mul_i32 s{S_W3}, s{CT}, {WP3_C}\ns_add_u32 s{S_W3}, s{S_W3}, {WP3}\ns_mul_i32 s{S_W5}, s{CT}, {WP5_C}\ns_add_u32 s{S_W5}, s{S_W5}, {WP5}")
        A("s_waitcnt lgkmcnt(0)")
        srd(A, 4, 30, WS_USED); srd(A, 8, 28, 2048*640*2); srd(A, 16, 34, 256)

    def p1_first(self):
        A = self.A; o = self.o; st = "sc1"
        QS = "s[68:71]"; WOS = "s[64:67]"
        ACC, WF, GR, ONE, MU, RS = 64, 128, 176, 148, 152, 153
        VXS, VAX, TMP, VU1, VU3, VZ = 209, 213, 246, 214, 215, 216
        r, c, G = 44, 45, 46
        AB = 49152; NB = 3
        srd(A, 68, 80, 640*1920*2); srd(A, 64, 82, 640*640*2); srd(A, 60, 88, 1728*640*2); srd(A, 12, 32, 2048*640*2)
        A(f"s_cmp_lt_u32 s{WV}, 2\ns_cselect_b32 s56, s84, s86\ns_cselect_b32 s57, s85, s87\ns_mov_b32 s58, {640*1728*2}\ns_mov_b32 s59, 0x20000")
        A(f"s_lshl_b32 s{S_U}, s{MB}, 4\ns_add_u32 s{S_U}, s{S_U}, s{J}")
        NZ = A.newlab("nz"); NZ2 = A.newlab("nz")
        A(f"s_cmp_lg_u32 s2, 0\ns_cbranch_scc1 {NZ}\ns_cmp_lg_u32 s{WV}, 3\ns_cbranch_scc1 {NZ}")
        A(f"v_lshlrev_b32 v56, 7, v{VL}\nv_mov_b32 v57, 0")
        for k in range(6): A(f"s_mov_b32 s3, {8192*k}\nbuffer_store_dword v57, v56, {WS}, s3 offen sc1")
        A.lab(NZ)
        A(f"v_and_b32 v51, 7, v{VL}\nv_lshrrev_b32 v52, 3, v{VL}\ns_and_b32 s34, s{MB}, 1\ns_lshr_b32 s35, s{MB}, 1")
        A("s_cmp_eq_u32 s34, 0\ns_cselect_b32 s31, 5, 2"); sel(A, 32, 1280, 2608); sel(A, 33, 2480, -32); sel(A, 36, -1, 0x7f7f7f7f)
        A("v_mov_b32 v53, s32\nv_mov_b32 v54, s33\nv_cmp_gt_u32 vcc, s31, v51\nv_cndmask_b32 v53, v54, v53, vcc\nv_lshl_add_u32 v53, v51, 4, v53\nv_mul_u32_u24 v54, 3840, v52\nv_add_u32 v53, v53, v54")
        A(f"s_mul_i32 s31, s35, 80*3840\ns_mul_i32 s32, s{J}, 80\ns_add_u32 s31, s31, s32\ns_mov_b32 exec_lo, s36\ns_mov_b32 exec_hi, s36")
        for n in range(3):
            A(f"s_add_u32 s32, s{WV}, {4*n}\ns_min_u32 s32, s32, 9\ns_lshl_b32 m0, s32, 10\ns_mul_i32 s32, s32, 8*3840\ns_add_u32 s32, s32, s31")
            A.vmem(f"buffer_load_dwordx4 v53, {QS}, s32 offen {self.ntu} lds", 'u')
        A("s_mov_b64 exec, -1")
        A(f"s_lshr_b32 s99, s{S_U}, 3\ns_and_b32 s100, s{S_U}, 7\ns_mul_i32 s30, s99, 32*1280\ns_mul_i32 s31, s100, 160\ns_add_u32 s30, s30, s31\ns_cmp_ge_u32 s{S_U}, 160\ns_cmov_b32 s30, {OOB}")
        for n in range(2):
            A(f"s_add_u32 s31, s{WV}, {4*n}\ns_min_u32 s31, s31, 4\ns_lshl_b32 s3, s31, 6\nv_add_u32 v54, s3, v{VL}\nv_mul_u32_u24 v55, 6554, v54\nv_lshrrev_b32 v55, 16, v55\nv_mul_u32_u24 v56, 10, v55\nv_sub_u32 v56, v54, v56")
            A(f"v_mul_u32_u24 v55, 1280, v55\nv_lshl_add_u32 v55, v56, 4, v55\ns_lshl_b32 s31, s31, 10\ns_add_u32 m0, s31, {STG3}")
            A.vmem(f"buffer_load_dwordx4 v55, {WOS}, s30 offen {self.ntu} lds", 'u')
        A(f"v_lshrrev_b32 v{G}, 4, v{VL}\nv_and_b32 v48, 15, v{VL}")
        for n in range(4):
            A(f"v_add_u32 v49, {4*n}, v{G}\nv_xor_b32 v50, v48, v49\nv_mul_u32_u24 v49, 1280, v49\nv_lshl_add_u32 v{VXS+n}, v50, 4, v49")
        SX, SXL = T[0], T[1]
        A(f"s_lshl_b32 s3, s{MB}, 2\ns_add_u32 s3, s3, s{WV}\ns_mul_i32 s{SX}, s3, 32*1280\ns_mul_i32 s{SXL}, s{WV}, {NB*8192}\ns_add_u32 s{SXL}, s{SXL}, {AB}")
        def xlist(ch):
            L = []
            for n in range(8):
                if n % 4 == 0: L.append(f"s_add_u32 s{T[9]}, s{SX}, {ch*256 + (n >> 2)*16*1280}")
                L += [f"s_add_u32 m0, s{SXL}, {(ch % NB)*8192 + n*1024}", ('vm', f"buffer_load_dwordx4 v{VXS + (n & 3)}, {XS}, s{T[9]} offen {self.ntx} lds", ('x', ch))]
            return L
        def xjob(ch):
            for x in xlist(ch): self.emit(x)
        if o.get("touchx", 1):
            A(f"s_lshl_b32 s30, s{MB}, 3\ns_and_b32 s31, s{J}, 7\ns_add_u32 s30, s30, s31\ns_lshl_b32 s3, s30, 2\ns_add_u32 s3, s3, s{WV}\ns_mul_i32 s3, s3, 5120\nv_lshlrev_b32 v54, 7, v{VL}\ns_mov_b32 exec_hi, 0xff")
            A.vmem(f"buffer_load_dword v{VDUM}, v54, {XS}, s3 offen {self.ntx}\ns_mov_b32 exec_hi, -1", 't')
        if o.get("codepf", 1):
            A(f"s_getpc_b64 s[64:65]\nmain_pc:\ns_sub_u32 s64, s64, main_pc - {self.kname}\ns_subb_u32 s65, s65, 0\ns_mov_b32 s66, main_last - {self.kname}\ns_mov_b32 s67, 0x20000")
            A(f"s_and_b32 s3, s{J}, 7\ns_lshl_b32 s3, s3, 13\ns_cmp_lg_u32 s{WV}, 3\ns_cmov_b32 s3, {OOB}\nv_lshlrev_b32 v54, 7, v{VL}")
            A.vmem(f"buffer_load_dword v{VDUM}, v54, s[64:67], s3 offen", 'c')
        xjob(0)
        if o.get("x1early", 0): xjob(1)
        A(f"s_cmp_lg_u32 s2, 0\ns_cbranch_scc1 {NZ2}\ns_cmp_lg_u32 s{WV}, 3\ns_cbranch_scc1 {NZ2}")
        A(f"s_waitcnt vmcnt({len(A.vm)})\ns_mov_b64 exec, 1\nv_mov_b32 v56, 0\nv_mov_b32 v55, 1\nbuffer_store_dword v55, v56, {DS_}, 0 offen sc1\ns_mov_b64 exec, -1")
        A.lab(NZ2)
        for i in range(4): A(f"v_mov_b32 v{ONE+i}, 0x3f803f80")
        NP = A.newlab("np")
        A(f"s_cmp_eq_u32 s34, 0\ns_cbranch_scc1 {NP}\nv_lshlrev_b32 v48, 7, v0\nv_cmp_gt_u32 vcc, 80, v0\ns_and_saveexec_b64 s[36:37], vcc\ns_cbranch_execz {NP}a\nds_write_b128 v48, {v(ONE,4)} offset:112")
        A.lab(NP + "a"); A("s_mov_b64 exec, s[36:37]"); A.lab(NP)
        A(f"v_bfe_u32 v{r}, v{VL}, 2, 2\nv_and_b32 v{c}, 3, v{VL}\nv_lshrrev_b32 v48, 1, v{G}\nv_lshl_add_u32 v48, v48, 2, v{r}\nv_lshlrev_b32 v48, 7, v48\nv_and_b32 v49, 1, v{G}\nv_lshl_add_u32 v49, v49, 2, v{c}\nv_lshl_add_u32 v48, v49, 3, v48\ns_lshl_b32 s3, s{WV}, 6\nv_add_u32 v{VU1}, s3, v48")
        A(f"v_and_b32 v48, 31, v{VL}\nv_and_b32 v49, 15, v{VL}\nv_lshlrev_b32 v{VAX}, 8, v48\nv_lshl_add_u32 v{VAX}, v49, 4, v{VAX}\nv_lshrrev_b32 v49, 5, v{VL}\nv_lshl_add_u32 v{VAX}, v49, 3, v{VAX}\nv_add_u32 v{VAX}, s{SXL}, v{VAX}")
        A(f"v_lshl_add_u32 v{VU3}, v{G}, 3, v{r}\nv_mul_u32_u24 v{VU3}, 160, v{VU3}\nv_lshl_add_u32 v{VU3}, v{c}, 3, v{VU3}\nv_add_u32 v{VU3}, {STG3}, v{VU3}\nv_mov_b32 v{VZ}, 0\nv_lshlrev_b32 v{VZ+1}, 7, v0")
        A(f"s_cmp_ge_u32 s99, 10\ns_cselect_b32 s30, 1, 0\ns_cselect_b32 s31, 10, 0\ns_sub_u32 s31, s99, s31\ns_lshl_b32 s31, s31, 1\ns_add_u32 s31, s31, s30\ns_mul_i32 s31, s31, 5120")
        A(f"s_mul_i32 s30, s100, {WP3_C}\ns_add_u32 s30, s30, s31\ns_add_u32 s30, s30, {WP3}\ns_cmp_ge_u32 s{S_U}, 160\ns_cmov_b32 s30, {OOB}")
        self.setup2()
        spre, j4, j5 = self.stage_jobs()
        for x in spre: self.emit(x)
        CP = 164
        A(f"v_and_b32 v48, 127, v0\nv_lshrrev_b32 v49, 5, v48\nv_and_b32 v50, 31, v48\nv_lshlrev_b32 v50, 2, v50\nv_lshl_add_u32 v{CP+8}, v49, 10, v50\nv_lshlrev_b32 v{CP+9}, 2, v48\nv_add_u32 v{CP+9}, {CS1}, v{CP+9}")
        A.wait_vm('u'); A.wait_lg0(); A("s_barrier")
        self.stamp('s.u')
        HI = A.newlab("hi"); DN = A.newlab("dn"); keep = list(A.vm)
        A(f"s_cmp_ge_u32 s{WV}, 2\ns_cbranch_scc1 {HI}")
        A(f"s_lshl_b32 s32, s34, 1\ns_add_u32 s32, s32, s{WV}\ns_mul_i32 s33, s35, 5*4096\ns_add_u32 s33, s33, s{S_W1}\ns_lshl_b32 s3, s32, 10\ns_add_u32 s30, s33, s3")
        A(f"s_lshl_b32 s33, s{J}, 2\ns_add_u32 s33, s33, s32\ns_lshl_b32 s33, s33, 3\ns_add_u32 s33, s33, s35\ns_lshl_b32 s33, s33, 7\ns_add_u32 s33, s33, {CSP1}")
        ur = [30, 31, 32, 34, 35]
        for u in range(1, 5): A(f"s_add_u32 s{ur[u]}, s30, {u*4096}")
        frag32_steps(A, VU1, VL16, lambda u: (f"s{ur[u]}", 0), "s33", WS, 64, 88, ONE, st)
        A(f"s_branch {DN}")
        A.lab(HI)
        A(f"s_cmp_lg_u32 s{WV}, 2\ns_cmov_b32 s30, {OOB}\ns_add_u32 s31, s30, 4096\ns_mov_b32 s32, {OOB}")
        for t in range(5):
            for p in range(2): A(f"ds_read_b64_tr_b16 {v(64+4*t+2*p,2)}, v{VU3} offset:{p*640 + t*32}")
        A("s_waitcnt lgkmcnt(0)")
        for t in range(5): A(f"buffer_store_dwordx4 {v(64+4*t,4)}, v{VL16}, {WS}, {'s30' if t < 4 else 's31'} offen offset:{(t&3)*1024} {st}")
        A("s_mov_b64 exec, 1")
        for t in range(4): A(f"buffer_store_dword v64, v{VL16}, {WS}, s32 offen")
        A("s_mov_b64 exec, -1")
        A.lab(DN)
        A.vm = keep + ['us'] * 9; A.lg = []
        A.vmem(f"s_lshl_b32 s3, s{WV}, 8\ns_mov_b64 exec, 1\nbuffer_load_dword v47, v{VZ}, {DS_}, s3 offen sc1\ns_mov_b64 exec, -1", 'dbg')
        self.stamp('s.st')
        qmap = {}
        for st_ in range(40):
            for p in range(2): qmap[10*(st_//5) + cg32(st_ % 5, 0, p)//2] = (st_, p)
        done = set(); gram = [0]
        def gram1():
            if gram[0] < 40 and (gram[0], 0) in done and (gram[0], 1) in done:
                k = gram[0]; gram[0] += 1
                A(f"v_mfma_f32_32x32x16_bf16 {v(GR,16)}, {a(4*k,4)}, {a(4*k,4)}, {'0' if k == 0 else v(GR,16)}")
        def xreads(ch, also=()):
            also = list(also)
            A.wait_vm(('x', ch))
            for k, q in enumerate(range(16*ch, 16*ch + 16)):
                st_, p = qmap[q]
                A(f"v_xor_b32 v{TMP+(k&1)}, {k*16}, v{VAX}")
                A.lds(f"ds_read_b64 {a(4*st_+2*p,2)}, v{TMP+(k&1)} offset:{(ch % NB)*8192}")
                if k % 2:
                    gram1(); self.drain(also, 3)
            assert not also
            A.wait_lg0()
            for q in range(16*ch, 16*ch + 16): done.add(qmap[q])
        if not o.get("x1early", 0): xjob(1)
        xjob(2)
        xreads(0)
        A.wait_vm('dbg'); A("s_barrier")
        self.stamp('s.drain')
        W1_ = A.newlab("w"); OKI = A.newlab("oki")
        A(f"s_cmp_lg_u32 s{WV}, 0\ns_cbranch_scc1 {W1_}\ns_mov_b64 exec, 1\nv_cmp_gt_u32 vcc, 1, v47\ns_cbranch_vccz {OKI}")
        self.spin(VZ, "1", 0x10, DS_)
        A.lab(OKI)
        A(f"s_lshl_b32 s32, s{J}, 7\ns_add_u32 s32, s32, {CG}\nv_mov_b32 v48, s32\ns_and_b32 s32, s{S_U}, 7\ns_lshl_b32 s32, s32, 7\ns_add_u32 s32, s32, {PK3}\nv_writelane_b32 v48, s32, 1")
        A(f"s_cmp_lt_u32 s{S_U}, 160\ns_cselect_b32 exec_lo, 3, 1\nv_mov_b32 v51, 1\nbuffer_atomic_add v51, v48, {WS}, 0 offen sc1\ns_mov_b64 exec, -1")
        A.lab(W1_)
        for x in j4 + j5: self.emit(x)
        xreads(1, xlist(3)); xreads(2, xlist(4)); xreads(3); xreads(4)
        self.stamp('s.x')
        W2_ = A.newlab("w")
        A(f"s_cmp_lg_u32 s{WV}, 0\ns_cbranch_scc1 {W2_}")
        A(f"s_lshl_b32 s32, s{J}, 7\ns_add_u32 s32, s32, {CG}\nv_mov_b32 v48, s32\ns_lshl_b32 s32, s{CT}, 7\ns_add_u32 s32, s32, {PK3}\nv_writelane_b32 v48, s32, 1\nv_mov_b32 v50, 16\nv_writelane_b32 v50, 20, 1\ns_mov_b64 exec, 3")
        self.spin(48, "v50", 0x20)
        A("s_mov_b64 exec, -1")
        A.lab(W2_)
        A("s_barrier")
        self.stamp('s.poll')
        bases = [VL16, VB1, VB2]
        slot = lambda k: [98304, 114688, 131072, 49152, 65536, 81920, 0, 16384, 32768, 49152][k >> 2] + (k & 3) * 4096
        wgrp = lambda g: self.rnd(S_W1, g*16384, slot(4*g), 4, ('w', g))
        up = 3
        for g in range(up): [self.emit(x) for x in wgrp(g)]
        while gram[0] < 40: gram1()
        A(f"s_lshl_b32 s99, s{J}, 12\ns_add_u32 s99, s99, {CSP1}")
        A(f"s_lshl_b32 s{T[5]}, s{S_A3}, 4\ns_mul_i32 s{T[5]}, s{T[5]}, 1280\ns_mul_i32 s3, s{CT}, 160\ns_add_u32 s{T[5]}, s{T[5]}, s3")
        A(f"v_and_b32 v{CP+10}, 15, v{VL}\nv_mul_u32_u24 v{CP+10}, 1280, v{CP+10}\nv_lshrrev_b32 v48, 4, v{VL}\nv_lshl_add_u32 v{CP+10}, v48, 3, v{CP+10}")
        for k in range(1, 16): A(f"v_cndmask_b32 v{GR}, v{GR}, v{GR+k}, s[{MASK+2*k}:{MASK+2*k+1}]")
        A(f"v_mov_b32 v{GR+1}, v{GR}\nv_mov_b32 v{GR+2}, v{GR}\nv_permlane32_swap_b32 v{GR+1}, v{GR+2}\nv_bfe_u32 v48, v{VL}, 2, 1\nv_cmp_eq_u32 vcc, 0, v48\nv_cndmask_b32 v{GR}, v{GR+2}, v{GR+1}, vcc\nv_mul_f32 v{GR}, {fhex(1.0/640)}, v{GR}")
        jobs = [({7: 11, 8: 11, 9: 19}.get(g, 0), 4*g - 1.5, wgrp(g)) for g in range(up, 10)]
        jobs += [(4, 30 + k, [('vm', f"buffer_load_dword v{CP+k}, v{CP+8}, {WS}, s99 offen offset:{128*k} sc1", 'cp')]) for k in range(8)]
        jobs += [(24 + 2*k, 70 + k, [('vm', f"buffer_load_dwordx2 {v(RES+2*k,2)}, v{CP+10}, {XS}, s{T[5]} offen offset:{32*k}", 'res')]) for k in range(5)]
        jobs.append((31, 99, self.rnd(S_W3, 30720, lds3(3), 8, 'w3')))
        sched = self.edf(jobs, 40, o.get("r1a", 1.8))
        assert not any(isinstance(x, tuple) and x[2] == 'cp' for k in range(26, 40) for x in sched[k])
        sched[26] += [('wv', 'cp')] + [f"v_add_f32 v{CP}, v{CP}, v{CP+k}" for k in range(1, 8)] + [('lg', f"ds_write_b32 v{CP+9}, v{CP}", 'csw')]
        late = self.pack_late()
        l0 = 0; nl = o.get("latelen", 24)
        for k in range(nl): sched[l0 + k] += late[k*len(late)//nl:(k+1)*len(late)//nl]
        assert not any(isinstance(x, tuple) and x[0] == 'lg' and 'tr_b16' in x[1] for k in range(9, 40) for x in sched[k])
        A.wait_vm(('w', 0)); A.wait_lg0(); A("s_barrier")
        self.stamp('p1.go')
        for t in range(4): A.lds(f"ds_read_b128 {v(WF+4*t,4)}, {self.ldsaddr(slot(0) + 1024*t, bases)}", ('f', 0, t))
        fill = []
        for st_ in range(40):
            if st_ % 4 == 3 and st_ < 39:
                self.need(('w', st_ // 4 + 1), fill)
                A("s_barrier")
                if o.get("in1"):
                    A("s_mov_b32 s101, m0"); self.stamp(f'd.{st_}'); A("s_mov_b32 m0, s101")
            fill += sched[st_]
            for t in range(4):
                A.wait_lg(('f', st_, t))
                A(f"v_mfma_f32_32x32x16_bf16 {v(ACC+16*t,16)}, {v(WF+4*t,4)}, {a(4*st_,4)}, {'0' if st_ == 0 else v(ACC+16*t,16)}")
                if st_ < 39: A.lds(f"ds_read_b128 {v(WF+4*t,4)}, {self.ldsaddr(slot(st_+1) + 1024*t, bases)}", ('f', st_+1, t))
                self.drain(fill, 4)
        assert not fill
        A.wait_lg0(); A("s_barrier")
        A(f"v_mul_f32 v{MU}, {fhex(-1.0/640)}, v{ACC+60}\nv_fma_f32 v{GR}, -v{MU}, v{MU}, v{GR}\nv_max_f32 v{GR}, 0, v{GR}\nv_add_f32 v{GR}, 0x3727c5ac, v{GR}\nv_rsq_f32 v{RS}, v{GR}")
        self.stamp('p1.main')
        self.p1_epilogue(ACC, MU, RS)

    def stage_jobs(self):
        t = 156
        pre = [f"v_and_b32 v{t+4}, 7, v{VL}", f"v_lshrrev_b32 v{t+5}, 3, v{VL}", f"v_mul_u32_u24 v{t}, 3456, v{t+5}", f"v_lshl_add_u32 v{t}, v{t+4}, 4, v{t}",
               f"s_and_b32 s99, s{S_U}, 7", "s_mul_i32 s99, s99, 80", f"s_mul_i32 s100, s{KH}, 40", "s_add_u32 s99, s99, s100", "s_mul_i32 s99, s99, 3456",
               f"s_lshr_b32 s100, s{S_U}, 3", "s_lshl_b32 s100, s100, 7", "s_add_u32 s99, s99, s100",
               f"s_lshr_b32 s100, s{S_U}, 2", "s_mul_i32 s100, s100, 32*1280", f"s_and_b32 s101, s{S_U}, 3", "s_mul_i32 s101, s101, 320", "s_add_u32 s100, s100, s101",
               f"s_cmp_ge_u32 s{S_U}, 216\ns_cmov_b32 s99, {OOB}\ns_cmov_b32 s100, {OOB}"]
        for n in range(3):
            pre += [f"s_add_u32 s101, s{WV}, {4*n}", "s_min_u32 s101, s101, 9", "s_lshl_b32 s101, s101, 6", f"v_add_u32 v{t+4}, s101, v{VL}", f"v_mul_u32_u24 v{t+5}, 3277, v{t+4}", f"v_lshrrev_b32 v{t+5}, 16, v{t+5}",
                    f"v_mul_u32_u24 v{t+6}, 20, v{t+5}", f"v_sub_u32 v{t+6}, v{t+4}, v{t+6}", f"v_mul_u32_u24 v{t+5}, 1280, v{t+5}", f"v_lshl_add_u32 v{t+1+n}, v{t+6}, 4, v{t+5}"]
        j4 = [f"s_mul_i32 s{T[8]}, s{WV}, 5120"]
        for n in range(5):
            j4 += [f"s_add_u32 m0, s{T[8]}, {STG4 + n*1024}", ('vm', f"buffer_load_dwordx4 v{t}, {GUS}, s99 offen {self.nts} lds", 'stg'), f"s_add_u32 s99, s99, {8*3456}"]
        j5 = []
        for n in range(3):
            j5 += [f"s_add_u32 s{T[8]}, s{WV}, {4*n}", f"s_min_u32 s{T[8]}, s{T[8]}, 9", f"s_lshl_b32 s{T[8]}, s{T[8]}, 10", f"s_add_u32 m0, s{T[8]}, {STG5}",
                   ('vm', f"buffer_load_dwordx4 v{t+1+n}, {WDS}, s100 offen {self.nts} lds", 'stg')]
        return pre, j4[:-1], j5

    def pack_late(self):
        st = "sc1"; L = []
        r, c, G, ad, FR, FD, CA, ONE = 44, 45, 46, 47, 192, 212, 224, 148
        add = lambda txt: L.extend(txt.split("\n"))
        add(f"v_bfe_u32 v{r}, v{VL}, 2, 2\nv_and_b32 v{c}, 3, v{VL}\nv_lshrrev_b32 v{G}, 4, v{VL}")
        add(f"v_lshrrev_b32 v{ad}, 1, v{G}\nv_lshl_add_u32 v{ad}, v{ad}, 2, v{r}\nv_lshlrev_b32 v{ad}, 7, v{ad}\nv_and_b32 v48, 1, v{c}\nv_lshl_add_u32 v{ad}, v48, 4, v{ad}\nv_and_b32 v48, 1, v{G}\nv_lshl_add_u32 v{ad}, v48, 3, v{ad}")
        add(f"v_lshrrev_b32 v48, 1, v{c}\nv_mul_u32_u24 v48, 10240, v48\nv_add_u32 v{ad}, v{ad}, v48\ns_lshl_b32 s28, s{WV}, 5\ns_add_u32 s28, s28, {STG4}\nv_add_u32 v{ad}, s28, v{ad}")
        for u in range(5):
            for p in range(2): L.append(('lg', f"ds_read_b64_tr_b16 {v(FR+4*u+2*p,2)}, v{ad} offset:{4*cg32(u,0,p)*128}", ('pl', u)))
        add(f"v_lshl_add_u32 v49, v{G}, 3, v{r}\nv_mul_u32_u24 v49, 320, v49\nv_lshl_add_u32 v49, v{c}, 3, v49\ns_mul_i32 s29, s{KH}, 160\ns_mul_i32 s28, s{RR}, 96\ns_add_u32 s29, s29, s28\ns_add_u32 s29, s29, {STG5}\nv_add_u32 v49, s29, v49\ns_lshl_b32 s28, s{RR}, 5\nv_subrev_u32 v50, s28, v49")
        for k in range(3):
            for p in range(2): L.append(('lg', f"ds_read_b64_tr_b16 {v(FD+4*k+2*p,2)}, v{49 if k < 2 else 50} offset:{p*1280 + k*32}", 'pd'))
        add(f"s_and_b32 s29, s{S_U}, 7\ns_lshr_b32 s28, s{S_U}, 3\ns_lshl_b32 s28, s28, 2\ns_add_u32 s28, s28, s{WV}")
        add("s_mul_i32 s30, s28, 147\ns_lshr_b32 s30, s30, 10\ns_mul_i32 s31, s30, 7\ns_sub_u32 s31, s28, s31")
        add(f"s_mov_b32 s32, {P4_GROUPS[0][0]}\ns_mov_b32 s35, {P4_GROUPS[0][1]}")
        for t0, nt in P4_GROUPS[1:]: L.append(f"s_cmp_ge_u32 s31, {t0}\ns_cselect_b32 s32, {t0}, s32\ns_cselect_b32 s35, {nt}, s35")
        add(f"s_mul_i32 s30, s30, {WP4_J}\ns_mul_i32 s34, s32, 39\ns_add_u32 s34, s34, s31\ns_mul_i32 s32, s29, 5\ns_mul_i32 s32, s32, s35\ns_add_u32 s34, s34, s32\ns_lshl_b32 s34, s34, 10\ns_add_u32 s30, s30, s34\ns_add_u32 s30, s30, {WP4}\ns_lshl_b32 s35, s35, 10")
        add(f"s_lshl_b32 s28, s28, 3\ns_add_u32 s28, s28, s29\ns_lshl_b32 s28, s28, 7\ns_add_u32 s28, s28, {CSP4}")
        L.append(f"s_cmp_ge_u32 s{S_U}, 216\ns_cmov_b32 s30, {OOB}\ns_cmov_b32 s28, {OOB}")
        add(f"v_lshrrev_b32 v48, 5, v{VL}\nv_lshlrev_b32 v48, 6, v48")
        for u in range(5):
            L += [('wl', ('pl', u)), ('vm', f"buffer_store_dwordx4 {v(FR+4*u,4)}, v{VL16}, {WS}, s30 offen {st}", 'pst'),
                  f"v_mfma_f32_32x32x16_bf16 {v(CA,16)}, {v(FR+4*u,4)}, {v(ONE,4)}, {'0' if u == 0 else v(CA,16)}"]
            if u < 4: L.append("s_add_u32 s30, s30, s35")
        add(f"s_lshr_b32 s31, s{S_U}, 2")
        L.append("s_cmp_ge_u32 s31, 27\ns_cselect_b32 s29, 1, 0\ns_cselect_b32 s30, 27, 0")
        add("s_sub_u32 s30, s31, s30\ns_lshr_b32 s31, s30, 1\ns_lshl_b32 s31, s31, 1\ns_add_u32 s31, s31, s29\ns_lshl_b32 s31, s31, 1\ns_and_b32 s30, s30, 1\ns_add_u32 s31, s31, s30\ns_mul_i32 s31, s31, 5120")
        add(f"s_and_b32 s30, s{S_U}, 3\ns_lshl_b32 s30, s30, 1\ns_add_u32 s30, s30, s{KH}\ns_mul_i32 s30, s30, {WP5_C}\ns_add_u32 s30, s30, s31\ns_mul_i32 s29, s{RR}, 3072\ns_add_u32 s30, s30, s29\ns_add_u32 s30, s30, {WP5}")
        L.append(f"s_cmp_ge_u32 s{S_U}, 216\ns_cmov_b32 s30, {OOB}")
        add(f"s_lshl_b32 s29, s{RR}, 10\ns_sub_u32 s29, s30, s29")
        L.append(('wl', 'pd'))
        for k in range(3): L.append(('vm', f"buffer_store_dwordx4 {v(FD+4*k,4)}, v{VL16}, {WS}, s{30 if k < 2 else 29} offen offset:{k*1024} {st}", 'pst'))
        for q in range(4): L.append(('vm', f"s_mov_b32 exec_lo, 1\ns_mov_b32 exec_hi, 1\nbuffer_store_dwordx4 {v(CA+4*q,4)}, v48, {WS}, s28 offen offset:{16*q} {st}\ns_mov_b64 exec, -1", 'pst'))
        return L

    def setup2(self):
        A = self.A; t = VFREE
        A(f"s_lshl_b32 s3, s{MB}, 4\ns_add_u32 s3, s3, s{J}\ns_mul_i32 s{S_KVO}, s3, {KV_WG}\ns_add_u32 s{S_KVO}, s{S_KVO}, {KV}")
        A(f"s_lshl_b32 s3, s{MB}, 2\ns_lshl_b32 s36, s{RH}, 1\ns_add_u32 s3, s3, s36\ns_add_u32 s3, s3, s{RR}")
        A(f"s_mul_i32 s{S_X}, s3, 40960\ns_mul_i32 s36, s{CT}, 5120\ns_add_u32 s{S_X}, s{S_X}, s36")
        A(f"s_lshl_b32 s{S_STX}, s3, 3\ns_add_u32 s{S_STX}, s{S_STX}, s{CT}\ns_lshl_b32 s{S_STX}, s{S_STX}, 8")
        A(f"s_lshl_b32 s3, s3, 1\ns_add_u32 s{S_A3}, s3, s{KH}\ns_xor_b32 s{S_A3B}, s{S_A3}, 1")
        m5, h, m4, g = t, t+1, t+2, t+3
        A(f"v_and_b32 v{m5}, 31, v{VL}\nv_lshrrev_b32 v{h}, 5, v{VL}\nv_and_b32 v{m4}, 15, v{VL}\nv_lshrrev_b32 v{g}, 4, v{VL}")
        A(f"v_lshlrev_b32 v{VST}, 3, v{m5}\nv_lshl_add_u32 v{VST}, v{h}, 8, v{VST}")
        A(f"v_add_u32 v{VB1}, 0x10000, v{VL16}\nv_add_u32 v{VB2}, 0x20000, v{VL16}\nv_lshlrev_b32 v{VCS}, 6, v{h}\nv_add_u32 v{VCS}, {LDS_MISC}, v{VCS}")
        A(f"s_mul_i32 s3, s{J}, 7\ns_lshr_b32 s3, s3, 2\ns_sub_u32 s3, s3, 1\nv_add_u32 v{VCNT}, s3, v{VL}\nv_min_u32 v{VCNT}, 26, v{VCNT}\nv_lshlrev_b32 v{VCNT}, 7, v{VCNT}\nv_add_u32 v{VCNT}, {PK4}, v{VCNT}\nv_mov_b32 v{VTG}, 8")
        A(f"s_lshl_b32 s3, s{MB}, 8\nv_writelane_b32 v{VCNT}, s3, 0\ns_lshr_b32 s3, s{CT}, 1\ns_lshl_b32 s3, s3, 7\ns_add_u32 s3, s3, {PK5}\nv_writelane_b32 v{VCNT}, s3, 4\nv_writelane_b32 v{VTG}, 54, 4")

        A(f"s_lshl_b32 s3, s{MB}, 3\ns_lshl_b32 s36, s{WV}, 1\ns_add_u32 s3, s3, s36\ns_mul_i32 s3, s3, 20480\ns_mul_i32 s36, s{J}, 1280\ns_add_u32 s3, s3, s36\ns_add_u32 s3, s3, {OO}")
        A(f"v_lshrrev_b32 v{t+4}, 4, v{m5}\nv_mul_u32_u24 v{t+5}, 20480, v{t+4}\nv_lshl_add_u32 v{t+5}, v{m4}, 4, v{t+5}\nv_add_u32 v{VO3}, s3, v{t+5}\nv_lshl_add_u32 v{VO1}, v{h}, 8, v{VO3}")
        A(f"v_mul_u32_u24 v{VH}, {54*1024}, v{t+4}\nv_lshl_add_u32 v{VH}, v{m4}, 4, v{VH}\nv_lshl_add_u32 v{VH}, v{h}, 8, v{VH}")
        A(f"s_lshl_b32 s3, s{KH}, 4\nv_add_u32 v{t+4}, s3, v{m4}\nv_lshlrev_b32 v{VSX}, 3, v{t+4}\nv_and_b32 v{t+5}, 1, v{g}\nv_lshl_add_u32 v{t+4}, v{t+5}, 5, v{t+4}")
        A(f"v_lshlrev_b32 v{VX}, 4, v{t+4}\nv_lshl_add_u32 v{VX}, v{h}, 10, v{VX}")
        A(f"s_mul_i32 s3, s{WV}, 2560\ns_add_u32 s3, s3, {KREG}\nv_add_u32 v{VK}, s3, v{VL16}\ns_add_u32 s3, s3, 2048\nv_lshlrev_b32 v{VKS}, 3, v{VL}\nv_add_u32 v{VKS}, s3, v{VKS}")
        A(f"s_mul_i32 s3, s{WV}, 3328\ns_add_u32 s3, s3, {VREG - 32}")
        A(f"v_mul_u32_u24 v{VV}, 416, v{h}\nv_and_b32 v{t+4}, 1, v{g}\nv_lshl_add_u32 v{VV}, v{t+4}, 7, v{VV}\nv_and_b32 v{t+4}, 3, v{VL}\nv_lshl_add_u32 v{VV}, v{t+4}, 5, v{VV}")
        A(f"v_bfe_u32 v{t+4}, v{VL}, 2, 2\nv_lshl_add_u32 v{VV}, v{t+4}, 3, v{VV}\nv_add_u32 v{VV}, s3, v{VV}")
        A(f"s_add_u32 s3, s3, {8*3328 + 32}\nv_lshrrev_b32 v{t+4}, 2, v{m5}\nv_mul_u32_u24 v{t+4}, 416, v{t+4}\nv_and_b32 v{t+5}, 3, v{VL}\nv_lshl_add_u32 v{t+4}, v{t+5}, 3, v{t+4}\nv_add_u32 v{t+4}, s3, v{t+4}")
        A(f"v_lshl_add_u32 v{VW2}, v{h}, 6, v{t+4}\nv_lshl_add_u32 v{VW1}, v{h}, 5, v{t+4}\nv_mul_u32_u24 v{t+5}, 384, v{h}\nv_add_u32 v{VW12}, v{t+5}, v{t+4}")
        A(f"s_mul_i32 s3, s{WV}, 5120\nv_add_u32 v{VXW}, s3, v{VL16}\ns_xor_b32 s3, s{WV}, 1\ns_mul_i32 s3, s3, 5120\nv_add_u32 v{VXR}, s3, v{VL16}")
        A(f"v_lshlrev_b32 v{t+4}, 2, v{h}\nv_sub_u32 v{t+4}, v{m5}, v{t+4}")
        for r in range(16):
            A(f"v_cmp_le_i32 s[{MASK+2*r}:{MASK+2*r+1}], {8*(r>>2) + (r&3)}, v{t+4}")
        A(f"v_mov_b32 v{t+5}, 0xffff\nv_mov_b32 v{t+6}, 0xffff0000")
        for rr in range(8):
            A(f"v_cndmask_b32 v{PM+rr}, 0, v{t+5}, s[{MASK+4*rr}:{MASK+4*rr+1}]\nv_cndmask_b32 v{t+7}, 0, v{t+6}, s[{MASK+4*rr+2}:{MASK+4*rr+3}]\nv_or_b32 v{PM+rr}, v{PM+rr}, v{t+7}")

    def stats_load(self, off, dst):
        A = self.A
        A(f"s_add_u32 s{T[3]}, s{SL}, s{S_ST1}\ns_add_u32 s{T[3]}, s{T[3]}, {off}")
        for i in range(4):
            A.vmem(f"buffer_load_dwordx2 {v(dst+2*i,2)}, v{VST}, {WS}, s{T[3]} offen offset:{512*i} {self.ld}", 'st')

    def stats_finish(self, d, mu, rs):
        return [f"v_add_f32 v{d}, v{d}, v{d+2}", f"v_add_f32 v{d+1}, v{d+1}, v{d+3}", f"v_add_f32 v{d+4}, v{d+4}, v{d+6}", f"v_add_f32 v{d+5}, v{d+5}, v{d+7}",
                f"v_add_f32 v{d}, v{d}, v{d+4}", f"v_add_f32 v{d+1}, v{d+1}, v{d+5}", f"v_mov_b32 v{d+2}, v{d}", f"v_mov_b32 v{d+3}, v{d+1}",
                f"v_permlane32_swap_b32 v{d}, v{d+2}", f"v_permlane32_swap_b32 v{d+1}, v{d+3}",
                f"v_add_f32 v{d}, v{d}, v{d+2}", f"v_add_f32 v{d+1}, v{d+1}, v{d+3}",
                f"v_mul_f32 v{mu}, {fhex(-1.0/640)}, v{d}", f"v_mul_f32 v{d+1}, {fhex(1.0/640)}, v{d+1}",
                f"v_fma_f32 v{d+1}, -v{mu}, v{mu}, v{d+1}", f"v_max_f32 v{d+1}, 0, v{d+1}", f"v_add_f32 v{d+1}, 0x3727c5ac, v{d+1}",
                f"v_rsq_f32 v{rs}, v{d+1}"]

    def a_load(self, st_, sreg, dst, tag):
        self.A.vmem(f"buffer_load_dwordx4 {a(dst,4)}, v{VL16}, {WS}, s{sreg} offen offset:{(st_ & 3)*1024} {self.ld}", tag)

    def p1(self):
        A = self.A; o = self.o
        ACC, WF, STD, MU, RS = 64, 128, 144, 152, 153
        bases = [VL16, VB1, VB2]
        SA = T[4]
        def aload(st_):
            L = [f"s_add_u32 s{SA}, s{SA}, 4096"] if st_ and st_ % 4 == 0 else []
            return L + [('vm', f"buffer_load_dwordx4 {a(4*st_,4)}, v{VL16}, {WS}, s{SA} offen offset:{(st_ & 3)*1024} {self.ld}", ('a', st_))]
        A(f"s_add_u32 s{SA}, s{SL}, s{S_A1}")
        def wsteps(a0, a1):
            return (a0, self.rnd(S_W1, a0*4096, lds1(a0), a1 - a0, ('w', a0)))
        n0 = self.pre1
        cuts = sorted(set([n0] + [c for c in range(n0, 31, 4)] + [31, 36, 40]))
        groups = [wsteps(x, y) for x, y in zip(cuts, cuts[1:])]
        up = o.get("up1", 10)
        self.stats_load(STA, STD)
        for k in range(up): [self.emit(x) for x in aload(k)]
        jobs = [(0, k, aload(k)) for k in range(up, 40)]
        jobs += [(7 if a0 == 36 else 0, a0 - 1.5, L) for a0, L in groups]
        jobs.append((30, 99, self.rnd(S_W3, 30720, lds3(3), 8, 'w3')))
        sched = self.edf(jobs, 40, o.get("r1", 1.8))
        valid = {a0 - 1: ('w', a0) for a0, L in groups}
        valid.setdefault(7, None); valid.setdefault(30, None)
        sched[33] += self.stats_finish(STD, MU, RS)
        A.wait_vm(('a', 0)); A("s_barrier")
        self.stamp('p1.go')
        for t in range(4): A.lds(f"ds_read_b128 {v(WF+4*t,4)}, {self.ldsaddr(lds1(0) + 1024*t, bases)}", ('f', 0, t))
        fill = []
        for st_ in range(40):
            if st_ in valid:
                if valid[st_]: self.need(valid[st_], fill)
                A("s_barrier")
            fill += sched[st_]
            self.need(('a', st_), fill)
            for t in range(4):
                A.wait_lg(('f', st_, t))
                A(f"v_mfma_f32_32x32x16_bf16 {v(ACC+16*t,16)}, {v(WF+4*t,4)}, {a(4*st_,4)}, {'0' if st_ == 0 else v(ACC+16*t,16)}")
                if st_ < 39: A.lds(f"ds_read_b128 {v(WF+4*t,4)}, {self.ldsaddr(lds1(st_+1) + 1024*t, bases)}", ('f', st_+1, t))
                self.drain(fill, 4)
        assert not fill
        A("s_barrier")
        self.stamp('p1.main')

    def p1_epilogue(self, ACC, MU, RS):
        A = self.A; first = False
        CSR, PK, RQ = 160, 176, 154
        self.QA1, self.QB1, self.QA2, self.QB2 = 224, 228, 232, 236
        if first: A(f"v_mov_b32 v{RQ}, {fhex(QSCALE)}")
        else: A(f"v_mul_f32 v{RQ}, {fhex(QSCALE)}, v{RS}")
        def quad(t, j, dst, isq):
            r = ACC + 16*t + 4*j
            if not first:
                A.wait_lg(('cs', t, j))
                for i in range(4): A(f"v_fma_f32 v{r+i}, v{MU}, v{CSR+4*j+i}, v{r+i}")
            if isq or not first:
                for i in range(4): A(f"v_mul_f32 v{r+i}, v{RQ if isq else RS}, v{r+i}")
            A(f"v_cvt_pk_bf16_f32 v{dst}, v{r}, v{r+1}\nv_cvt_pk_bf16_f32 v{dst+1}, v{r+2}, v{r+3}")
        def csload(t):
            if not first:
                for j in range(4): A.lds(f"ds_read_b128 {v(CSR+4*j,4)}, v{VCS} offset:{128*t + 16*j}", ('cs', t, j))
        KA, KB, KS, VT = PK, PK+4, PK+8, PK+12
        A(f"s_add_u32 s{T[4]}, s{SL}, s{S_KVO}\ns_mul_i32 s{T[5]}, s{WV}, 2560\ns_add_u32 s{T[5]}, s{T[5]}, s{T[4]}\ns_mul_i32 s{T[6]}, s{WV}, 3328\ns_add_u32 s{T[6]}, s{T[6]}, s{T[4]}\ns_add_u32 s{T[6]}, s{T[6]}, 10240")
        csload(0)
        quad(0, 0, KA, 0); quad(0, 1, KA+2, 0)
        A.lds(f"ds_write_b128 v{VK}, {v(KA,4)} offset:{8*2560}")
        A.vmem(f"buffer_store_dwordx4 {v(KA,4)}, v{VL16}, {WS}, s{T[5]} offen {self.stkv}")
        quad(0, 2, KS, 0); quad(0, 3, KB, 0)
        csload(1)
        A.lds(f"ds_write_b64 v{VKS}, {v(KS,2)} offset:{8*2560}")
        A(f"v_lshlrev_b32 v{PK+10}, 3, v{VL}")
        A.vmem(f"buffer_store_dwordx2 {v(KS,2)}, v{PK+10}, {WS}, s{T[5]} offen offset:2048 {self.stkv}")
        quad(1, 0, KB+2, 0)
        A.lds(f"ds_write_b128 v{VK}, {v(KB,4)} offset:{8*2560+1024}")
        A.vmem(f"buffer_store_dwordx4 {v(KB,4)}, v{VL16}, {WS}, s{T[5]} offen offset:1024 {self.stkv}")
        A(f"v_mov_b32 v{VT+10}, 0x3f803f80\nv_mov_b32 v{VT+11}, 0x3f803f80")
        A.lds(f"ds_write_b64 v{VW1}, {v(VT+10,2)} offset:{5*32}")
        for n, (t, j, ad, pos) in enumerate(((1, 1, VW2, 1), (1, 2, VW2, 2), (1, 3, VW12, 0), (2, 0, VW2, 7), (2, 1, VW2, 8))):
            if n == 3: csload(2)
            quad(t, j, VT+2*n, 0)
            A.lds(f"ds_write_b64 v{ad}, {v(VT+2*n,2)} offset:{pos*32}", 'vw')
        A(f"s_mul_i32 s{T[7]}, s{WV}, 3328\ns_add_u32 s{T[7]}, s{T[7]}, {VREG + 8*3328}\nv_add_u32 v{PK+10}, s{T[7]}, v{VL16}")
        A.wait_lg('vw')
        VC = 192
        for n in range(4): A.lds(f"ds_read_b128 {v(VC+4*n,4)}, v{PK+10} offset:{1024*n}", ('vc', n))
        for n in range(4):
            A.wait_lg(('vc', n))
            if n == 3: A("s_mov_b64 exec, 0xffff")
            A.vmem(f"buffer_store_dwordx4 {v(VC+4*n,4)}, v{VL16}, {WS}, s{T[6]} offen offset:{1024*n} {self.stkv}", 'out')
        A("s_mov_b64 exec, -1")
        self.stamp('p1.epi')
        quad(2, 2, self.QA1, 1); quad(2, 3, self.QA1+2, 1)
        csload(3)
        quad(3, 0, self.QA2, 1); quad(3, 1, self.QB1, 1); quad(3, 2, self.QB1+2, 1)
        A(f"v_mov_b32 v{self.QB2}, v{self.QA2}\nv_mov_b32 v{self.QB2+1}, v{self.QA2+1}")
        for q in (self.QA2, self.QB2): A(f"v_mov_b32 v{q+2}, 0\nv_mov_b32 v{q+3}, 0")
        A(f"s_mov_b32 exec_lo, 0\nv_mov_b32 v{self.QA2}, 0\nv_mov_b32 v{self.QA2+1}, 0\ns_mov_b32 exec_lo, -1\ns_mov_b32 exec_hi, 0\nv_mov_b32 v{self.QB2}, 0\nv_mov_b32 v{self.QB2+1}, 0\ns_mov_b32 exec_hi, -1")

    def kv_sync(self):
        A = self.A; N = A.newlab("nw0"); E = A.newlab("syn"); t = VFREE
        A("s_barrier")
        self.stamp('p1.drain')
        A(f"s_add_u32 s{T[3]}, s{LAY}, 1\ns_cmp_lg_u32 s{WV}, 0\ns_cbranch_scc1 {N}")
        A(f"s_mov_b64 exec, 7\nv_sub_u32 v{t+2}, s{MB}, v{VL}\nv_cmp_gt_i32 vcc, 0, v{t+2}\nv_mov_b32 v{t+3}, s{MB}\nv_cndmask_b32 v{t+2}, v{t+2}, v{t+3}, vcc")
        A(f"v_lshlrev_b32 v{t+2}, 4, v{t+2}\nv_add_u32 v{t+2}, s{J}, v{t+2}\nv_lshlrev_b32 v{t+2}, 7, v{t+2}\nv_add_u32 v{t+2}, {KVF}, v{t+2}\nv_mov_b32 v{t+3}, s{T[3]}")
        A(f"s_mov_b64 exec, 1\nbuffer_store_dword v{t+3}, v{t+2}, {WS}, 0 offen sc1")
        self.packed_signal()
        A("s_mov_b64 exec, 7")
        self.spin(t + 2, f's{T[3]}', 0x100)
        A(f"s_mov_b64 exec, -1")
        self.stamp('p1.poll')
        A(f"s_branch {E}")
        A.lab(N)
        A.lab(E)
        A("s_barrier")
        for src in range(2):
            back = 2 - src
            A(f"s_add_u32 s{T[4]}, s{SL}, s{S_KVO}\ns_sub_u32 s{T[4]}, s{T[4]}, {back*16*KV_WG}\ns_cmp_lt_u32 s{MB}, {back}\ns_cmov_b32 s{T[4]}, {OOB}")
            for n in range(6):
                A(f"s_add_u32 s{T[5]}, s{WV}, {4*n}")
                if n == 5: A(f"s_min_u32 s{T[5]}, s{T[5]}, 22")
                A(f"s_lshl_b32 s{T[5]}, s{T[5]}, 10\ns_add_u32 s{T[6]}, s{T[5]}, s{T[4]}")
                ko = KREG + src*10240; vo = VREG + src*13312 - 10240
                if n < 2: A(f"s_add_u32 m0, s{T[5]}, {ko}")
                elif n > 2: A(f"s_add_u32 m0, s{T[5]}, {vo}")
                else:
                    A(f"s_cmp_lt_u32 s{WV}, 2"); sel(A, T[7], ko, vo); A(f"s_add_u32 m0, s{T[5]}, s{T[7]}")
                A.vmem(f"buffer_load_dwordx4 v{VL16}, {WS}, s{T[6]} offen {self.ld} lds", 'halo')
        A.wait_vm('halo'); A("s_barrier")
        self.stamp('p2.go')

    def packed_signal(self):
        A = self.A; L = A.newlab("ps"); t = VFREE
        A(f"s_cmp_lg_u32 s{LAY}, 0\ns_cbranch_scc1 {L}\ns_cmp_ge_u32 s{S_U}, 216\ns_cbranch_scc1 {L}")
        A(f"s_lshr_b32 s3, s{S_U}, 3\ns_lshl_b32 s3, s3, 7\ns_add_u32 s3, s3, {PK4}\nv_mov_b32 v{t}, s3\ns_and_b32 s3, s{S_U}, 3\ns_lshl_b32 s3, s3, 7\ns_add_u32 s3, s3, {PK5}\nv_writelane_b32 v{t}, s3, 1")
        A(f"s_mov_b64 exec, 3\nv_mov_b32 v{t+1}, 1\nbuffer_atomic_add v{t+1}, v{t}, {WS}, 0 offen sc1")
        A.lab(L)

    def colsums(self, between, nb):
        A = self.A; L = A.newlab("x0"); L1 = A.newlab("x1"); t = VFREE
        A(f"s_lshl_b32 s{T[7]}, s{LAY}, 2\ns_sub_u32 s{T[7]}, s{RR}, s{T[7]}\ns_cmp_lg_u32 s{T[7]}, 1\ns_cbranch_scc1 {L1}")
        A(f"s_mul_i32 s{T[5]}, s{J}, 7168\ns_add_u32 s{T[5]}, s{T[5]}, {CSP4 - 4096}")
        A(f"s_lshl_b32 s{T[6]}, s{S_WI}, 7\nv_add_u32 v{t}, s{T[6]}, v{VL}")
        for r in range(2):
            A(f"v_add_u32 v{t+1}, {64*r}, v{t}\nv_lshrrev_b32 v{t+2}, 5, v{t+1}\nv_and_b32 v{t+3}, 31, v{t+1}\nv_lshlrev_b32 v{t+3}, 2, v{t+3}\nv_lshl_add_u32 v{t+2}, v{t+2}, 10, v{t+3}")
            for k in range(8): A(f"buffer_load_dword v{t+4+8*r+k}, v{t+2}, {WS}, s{T[5]} offen offset:{128*k} sc1")
        A.lab(L1)
        between()
        A(f"s_cmp_lg_u32 s{T[7]}, 1\ns_cbranch_scc1 {L}")
        A(f"v_lshlrev_b32 v{t+2}, 2, v{t}\nv_add_u32 v{t+2}, {LDS_MISC}, v{t+2}\ns_waitcnt vmcnt({nb})")
        for k in range(1, 8): A(f"v_add_f32 v{t+4}, v{t+4}, v{t+4+k}\nv_add_f32 v{t+12}, v{t+12}, v{t+12+k}")
        A(f"ds_write_b32 v{t+2}, v{t+4}\nds_write_b32 v{t+2}, v{t+12} offset:256\ns_waitcnt lgkmcnt(0)")
        A.lab(L)

    def p2(self):
        A = self.A
        SB = [48, 64, 80]; PB = [96, 104]; PD = 112; OA = [128, 144]; KF = [162, 174]; VF = [184, 192, 200]; CB = [208, 240]
        Q1 = [self.QA1, self.QB1]; Q2 = [self.QA2, self.QB2]
        cz = self.o.get("czero", True)
        blocks = [(i, hd) for i in range(1, 8) for hd in range(2)] + [('m', 0), ('m', 1)]
        N = len(blocks)
        def kread(i, buf):
            k = KF[buf]
            return [('lg', f"ds_read_b64 {v(k,2)}, v{VKS} offset:{i*2560}", ('k', i)), ('lg', f"ds_read_b128 {v(k+2,4)}, v{VK} offset:{i*2560}", ('k', i)),
                    ('lg', f"ds_read_b128 {v(k+6,4)}, v{VK} offset:{i*2560+1024}", ('k', i))]
        def vread(i, hd, buf):
            return [('lg', f"ds_read_b64_tr_b16 {v(VF[buf]+4*aa+2*p,2)}, v{VV} offset:{i*3328 + (4*aa+2*p)*416 + 192*hd}", ('v', i, hd)) for aa in range(2) for p in range(2)]
        kbuf = {i: i % 2 for i in range(1, 8)}; kbuf[0] = 0; kbuf[8] = 1
        def smf(i, hd, sb):
            k = KF[kbuf[i]]; c = '0' if cz else v(CB[hd], 16)
            return [('mf', f"v_mfma_f32_32x32x16_bf16 {v(sb,16)}, {v(k+2+4*hd,4)}, {v(Q1[hd],4)}, {c}", ('k', i)),
                    ('mf', f"v_mfma_f32_32x32x16_bf16 {v(sb,16)}, {v(k,4)}, {v(Q2[hd],4)}, {v(sb,16)}", None)]
        started = [False, False]
        def pvf(i, hd, pb, vb):
            L = []
            for aa in range(2):
                c = v(OA[hd], 16) if started[hd] else '0'; started[hd] = True
                L.append(('mf', f"v_mfma_f32_32x32x16_bf16 {v(OA[hd],16)}, {v(VF[vb]+4*aa,4)}, {v(pb+4*aa,4)}, {c}", ('v', i, hd) if aa == 0 else None))
            return L
        def emit(x):
            if isinstance(x, str): A(x)
            elif x[0] == 'vm': A.vmem(x[1], x[2])
            elif x[0] == 'lg': A.lds(x[1], x[2])
            else:
                if x[2] is not None: A.wait_lg(x[2])
                A(x[1])
        def weave(mfs, fill):
            cost = lambda x: 8 if isinstance(x, str) and x.startswith("v_exp") else 4
            tot = sum(map(cost, fill)); acc = 0; k = 0
            for x in fill:
                while k < len(mfs) and acc >= tot * k / len(mfs): emit(mfs[k]); k += 1
                emit(x); acc += cost(x)
            while k < len(mfs): emit(mfs[k]); k += 1
        sbuf = lambda n: SB[n % 2]
        for x in kread(1, kbuf[1]): emit(x)
        for x in smf(1, 0, sbuf(0)): emit(x)
        for n in range(N + 1):
            mfs = []; fill = []
            if n + 1 < N:
                i, hd = blocks[n+1]
                if i == 'm': mfs += smf(0, hd, sbuf(n+1)) + smf(8, hd, SB[2])
                else: mfs += smf(i, hd, sbuf(n+1))
            pv = []
            if n >= 1:
                i, hd = blocks[n-1]
                if i == 'm': pv = pvf(0, hd, PB[(n-1) % 2], (n-1) % 2) + pvf(8, hd, PD, 2)
                else: pv = pvf(i, hd, PB[(n-1) % 2], (n-1) % 2)
            if n < N:
                i, hd = blocks[n]
                if i != 'm' and hd == 0:
                    if i < 7: fill += kread(i+1, kbuf[i+1])
                    else: fill += kread(0, kbuf[0])
                sb = sbuf(n)
                if i == 'm':
                    pre = [f"v_cndmask_b32 v{sb+r}, v{sb+r}, v{SB[2]+r}, s[{MASK+2*r}:{MASK+2*r+1}]" for r in range(16)]
                    for x in pre: emit(x)
                    for x in pv: emit(x)
                    pv = []
                    fill += vread(0, hd, n % 2) + vread(8, hd, 2)
                else:
                    fill += vread(i, hd, n % 2)
                ex = []
                for r in range(16):
                    ex.append(f"v_exp_f32 v{sb+r}, v{sb+r}")
                    if r >= 3 and r % 2 == 1: ex.append(f"v_cvt_pk_bf16_f32 v{PB[n%2]+(r-3)//2}, v{sb+r-3}, v{sb+r-2}")
                ex.append(f"v_cvt_pk_bf16_f32 v{PB[n%2]+7}, v{sb+14}, v{sb+15}")
                if i == 'm':
                    for rr in range(8):
                        ex.append(f"v_and_b32 v{PD+rr}, v{PM+rr}, v{PB[n%2]+rr}")
                        ex.append(f"v_bfi_b32 v{PB[n%2]+rr}, v{PM+rr}, 0, v{PB[n%2]+rr}")
                fill += ex
                if blocks[n] == (7, 1):
                    for x in mfs[:2]: emit(x)
                    for x in kread(8, kbuf[8]): emit(x)
                    mfs = pv + mfs[2:]; pv = []
            weave(mfs + pv, fill) if fill else [emit(x) for x in mfs + pv]
        A("s_barrier")
        self.stamp('p2.main')
        ra, rb = 48, 49
        A(f"v_rcp_f32 v{ra}, v{OA[0]+12}\nv_rcp_f32 v{rb}, v{OA[1]}")
        A(f"s_nop 0")
        def pk(dst, r, rs):
            for i in range(4): A(f"v_mul_f32 v{r+i}, v{rs}, v{r+i}")
            A(f"v_cvt_pk_bf16_f32 v{dst}, v{r}, v{r+1}\nv_cvt_pk_bf16_f32 v{dst+1}, v{r+2}, v{r+3}")
        pk(52, OA[0]+4, ra); pk(54, OA[0]+8, ra)
        A.vmem(f"buffer_store_dwordx4 {v(52,4)}, v{VO1}, {WS}, s{SL} offen {self.st}")
        pk(56, OA[1]+4, rb); pk(58, OA[1]+8, rb)
        A.vmem(f"buffer_store_dwordx4 {v(56,4)}, v{VO1}, {WS}, s{SL} offen offset:768 {self.st}")
        pk(60, OA[0], ra); pk(62, OA[1]+12, rb)
        A("s_mov_b32 exec_lo, 0")
        A.vmem(f"buffer_store_dwordx4 {v(60,4)}, v{VO3}, {WS}, s{SL} offen offset:512 {self.st}", 'out')
        A("s_mov_b32 exec_lo, -1")

    def proj(self, which):
        A = self.A
        nb = 10 if which == 3 else 27
        ACC, WF, B0 = 64, 112, 136
        SA0, SA1, SW = T[4], T[5], T[6]
        src = OO if which == 3 else HH
        for sa, m in ((SA0, S_A3), (SA1, S_A3B)):
            A(f"s_mul_i32 s{sa}, s{m}, {2*nb*1024}\ns_add_u32 s{sa}, s{sa}, s{SL}\ns_mul_i32 s{T[7]}, s{KH}, {nb*1024}\ns_add_u32 s{sa}, s{sa}, s{T[7]}\ns_add_u32 s{sa}, s{sa}, {src}")
        def aload(b):
            L = []
            if b and b % 4 == 0: L += [f"s_add_u32 s{SA0}, s{SA0}, 4096", f"s_add_u32 s{SA1}, s{SA1}, 4096"]
            for u, sa in enumerate((SA0, SA1)):
                L.append(('vm', f"buffer_load_dwordx4 {a(8*b+4*u,4)}, v{VL16}, {WS}, s{sa} offen offset:{(b&3)*1024} {self.ld}", ('a', b)))
            return L
        o = self.o
        up = o.get("up3", 6) if which == 3 else o.get("up5", 6)
        for b in range(up):
            for x in aload(b): self.emit(x)
        ntail = o.get("tail1", 0)
        jobs = [(0, b, aload(b)) for b in range(up, nb)]
        if which == 5:
            jobs += [(2*(c-6)+1, 2*c - 1.5, self.rnd(S_W5, c*20480, (c % 7)*20480, 5, ('w', c))) for c in range(7, 14)]
            jobs += [(2*(13-ntail+k)+1, 99+k, self.rnd(S_W1, k*20480, lds1(5*k), 5, 'w1')) for k in range(ntail)]
        sched = self.edf(jobs, nb, o.get("r3", 3.0) if which == 3 else o.get("r5", 3.3))
        khoff = 5120 if which == 3 else 10240
        A(f"s_mul_i32 s{T[7]}, s{KH}, {khoff}")
        for k in range(3): A(f"v_add_u32 v{B0+k}, s{T[7]}, v{[VL16, VB1, VB2][k]}")
        bases = [B0, B0+1, B0+2]
        for k in range(10):
            A(f"v_lshlrev_b32 v{ACC+2*k}, 16, v{RES+k}\nv_and_b32 v{ACC+2*k+1}, 0xffff0000, v{RES+k}")
        wl = (lambda b: lds3(b)) if which == 3 else (lambda b: ((b >> 1) % 7) * 20480 + (b & 1) * 5120)
        A.wait_vm(('a', 0)); A("s_barrier")
        self.stamp(f'p{which}.go')
        WFB = [WF, 140]
        for t in range(5): A.lds(f"ds_read_b128 {v(WF+4*t,4)}, {self.ldsaddr(wl(0) + 1024*t, bases)}", ('f', 0))
        fill = []
        for b in range(nb):
            if which == 5 and b % 2 == 1 and b >= 3:
                if b // 2 + 1 >= 7: self.need(('w', b // 2 + 1), fill)
                A("s_barrier")
            fill += sched[b]
            self.need(('a', b), fill)
            A.wait_lg(('f', b))
            if self.prof and which == 5 and o.get("in5") and b in (4, 9, 14, 19, 24): self.stamp(f'p5.b{b}')
            for t in range(5):
                for u in range(2):
                    d = ACC + 20*u + 4*t
                    A(f"v_mfma_f32_16x16x32_bf16 {v(d,4)}, {v(WFB[b&1]+4*t,4)}, {a(8*b+4*u,4)}, {'0' if (b == 0 and u == 1) else v(d,4)}")
                    k = 2*t + u
                    if k < 5 and b < nb - 1: A.lds(f"ds_read_b128 {v(WFB[(b+1)&1]+4*k,4)}, {self.ldsaddr(wl(b+1) + 1024*k, bases)}", ('f', b+1))
                    if k >= 4: self.drain(fill, 2)
        while fill: self.emit(fill.pop(0))
        self.stamp(f'p{which}.main')
        fill = []
        if which == 3:
            self.post = (S_W4, 0, 0, 39)
            self.pre = lambda: self.colsums(lambda: self.rnd3(S_W4, 39936, 39936, 15), 15)
        else:
            k0 = 5*ntail
            self.post = (S_W1, k0*4096, lds1(k0), 36)
            self.pre1 = min(31, k0 + 9 + o.get("s31", 12)*3//4)
            n3 = -(-(self.pre1 - k0 - 9) * 4 // 3)
            assert lds1(k0 + 9) + 3*n3*1024 <= LDS_MISC
            self.pre = lambda: self.rnd3(S_W1, (k0+9)*4096, lds1(k0+9), n3)
        xo = XCH3 if which == 3 else XCH5
        A(f"v_add_u32 v{B0}, {xo}, v{VXW}\nv_add_u32 v{B0+1}, {xo}, v{VXR}")
        for t in range(5): A.lds(f"ds_write_b128 v{B0}, {v(ACC+20+4*t,4)} offset:{1024*t}")
        A.wait_lg0(); A("s_barrier")
        for t in range(5): A.lds(f"ds_read_b128 {v(ACC+20+4*t,4)}, v{B0+1} offset:{1024*t}", ('x', t))
        if which == 5:
            A(f"s_cmp_lg_u32 s{LAY}, 0\ns_cbranch_scc1 main_final")
            self.fin_state = (list(A.lg), ACC)
        body = []
        for t in range(5):
            body.append(('wl', ('x', t)))
            body += [f"v_add_f32 v{ACC+4*t+i}, v{ACC+4*t+i}, v{ACC+20+4*t+i}" for i in range(4)]
            body += [f"v_cvt_pk_bf16_f32 v{RES+2*t}, v{ACC+4*t}, v{ACC+4*t+1}", f"v_cvt_pk_bf16_f32 v{RES+2*t+1}, v{ACC+4*t+2}, v{ACC+4*t+3}"]
        xoff = X1 if which == 3 else LS + XA
        soff = ST3 if which == 3 else LS + STA
        A(f"s_add_u32 s{T[4]}, s{SL}, s{S_X}\ns_add_u32 s{T[4]}, s{T[4]}, {xoff}\ns_add_u32 s{T[5]}, s{T[4]}, 4096\ns_add_u32 s{T[6]}, s{SL}, s{S_STX}\ns_add_u32 s{T[6]}, s{T[6]}, {soff}")
        body.append(('vm', f"buffer_store_dwordx4 {v(RES,4)}, v{VX}, {WS}, s{T[4]} offen {self.st}", 'out'))
        body.append(('vm', f"buffer_store_dwordx4 {v(RES+4,4)}, v{VX}, {WS}, s{T[4]} offen offset:2048 {self.st}", 'out'))
        t4 = WF
        body += [f"v_mov_b32 v{t4+k}, v{RES+8+(k&1)}" for k in range(6)]
        body += [f"v_permlane32_swap_b32 v{t4+4}, v{t4+2}", f"v_permlane32_swap_b32 v{t4+5}, v{t4+3}"]
        body.append(('vm', f"s_mov_b32 exec_hi, 0\nbuffer_store_dwordx4 {v(t4,4)}, v{VX}, {WS}, s{T[5]} offen {self.st}\ns_mov_b32 exec_hi, -1", 'out'))
        s0, s1 = WF + 8, WF + 9
        body += [f"v_add_f32 v{s0}, v{ACC}, v{ACC+1}", f"v_mul_f32 v{s1}, v{ACC}, v{ACC}", f"v_fmac_f32 v{s1}, v{ACC+1}, v{ACC+1}"]
        for i in range(2, 20): body += [f"v_add_f32 v{s0}, v{s0}, v{ACC+i}", f"v_fmac_f32 v{s1}, v{ACC+i}, v{ACC+i}"]
        for sw in ("v_permlane16_swap_b32", "v_permlane32_swap_b32"):
            body += [f"v_mov_b32 v{s0+2}, v{s0}", f"v_mov_b32 v{s0+3}, v{s1}", f"{sw} v{s0}, v{s0+2}", f"{sw} v{s1}, v{s0+3}", f"v_add_f32 v{s0}, v{s0}, v{s0+2}", f"v_add_f32 v{s1}, v{s1}, v{s0+3}"]
        self.mix(body, fill, 7)
        while fill: self.emit(fill.pop(0))
        A("s_mov_b64 exec, 0xffff")
        A.vmem(f"buffer_store_dwordx2 {v(s0,2)}, v{VSX}, {WS}, s{T[6]} offen {self.st}", 'out')
        A("s_mov_b64 exec, -1")

    def final(self):
        A = self.A; t = VFREE
        A.lab("main_final")
        A.lg, ACC = self.fin_state
        for k in range(5):
            A.wait_lg(('x', k))
            for i in range(4): A(f"v_add_f32 v{ACC+4*k+i}, v{ACC+4*k+i}, v{ACC+20+4*k+i}")
            A(f"v_cvt_pk_bf16_f32 v{RES+2*k}, v{ACC+4*k}, v{ACC+4*k+1}\nv_cvt_pk_bf16_f32 v{RES+2*k+1}, v{ACC+4*k+2}, v{ACC+4*k+3}")
        A(f"s_lshl_b32 s{T[4]}, s{S_A3}, 4\ns_mul_i32 s{T[4]}, s{T[4]}, 1280\ns_mul_i32 s{T[5]}, s{CT}, 160\ns_add_u32 s{T[4]}, s{T[4]}, s{T[5]}")
        A(f"v_and_b32 v{t}, 15, v{VL}\nv_mul_u32_u24 v{t}, 1280, v{t}\nv_lshrrev_b32 v{t+1}, 4, v{VL}\nv_lshl_add_u32 v{t}, v{t+1}, 3, v{t}")
        for k in range(5): A(f"buffer_store_dwordx2 {v(RES+2*k,2)}, v{t}, {OS}, s{T[4]} offen offset:{32*k}")

    def p4(self):
        A = self.A
        ACC, WF, STD, MU, RS = 64, 176, 204, 212, 213
        bases = [VL16, VB1, VB2]
        SA, SW = T[4], T[5]
        A(f"s_add_u32 s{SA}, s{SL}, s{S_A1}\ns_add_u32 s{SA}, s{SA}, {X1}")
        self.stats_load(ST3, STD)
        o = self.o
        def aload(st_):
            L = [f"s_add_u32 s{SA}, s{SA}, 4096"] if st_ and st_ % 4 == 0 else []
            return L + [('vm', f"buffer_load_dwordx4 {a(4*st_,4)}, v{VL16}, {WS}, s{SA} offen offset:{(st_ & 3)*1024} {self.ld}", ('a', st_))]
        up = o.get("up4", 8)
        for k in range(up): [self.emit(x) for x in aload(k)]
        wr = lambda c: self.rnd(S_W4, c*28672, (c % 5)*28672, 7, ('w', c))
        w5 = lambda c: self.rnd(S_W5, c*20480, c*20480, 5, 'w5')
        jobs = [(0, k, aload(k)) for k in range(up, 40)]
        jobs += [(0 if c < 5 else 4*(c-4)+3, 4*c - 1.5, wr(c)) for c in range(3, 10)]
        jobs += [(27, 90, w5(0)), (31, 91, w5(1)), (35, 92, w5(2)), (35, 93, w5(3))]
        sched = self.edf(jobs, 40, o.get("r4", 3.0))
        sched[30] += self.stats_finish(STD, MU, RS)
        wl = lambda st_: ((st_ >> 2) % 5) * 28672 + (st_ & 3) * 7168
        A.wait_vm(('a', 0)); A("s_barrier")
        self.stamp('p4.go')
        for t in range(7): A.lds(f"ds_read_b128 {v(WF+4*t,4)}, {self.ldsaddr(wl(0) + 1024*t, bases)}", ('f', 0, t))
        fill = []
        for st_ in range(40):
            if st_ % 4 == 3 and 7 <= st_ < 39:
                self.need(('w', st_ // 4 + 1), fill); A("s_barrier")
            fill += sched[st_]
            self.need(('a', st_), fill)
            for t in range(7):
                A.wait_lg(('f', st_, t))
                A(f"v_mfma_f32_32x32x16_bf16 {v(ACC+16*t,16)}, {v(WF+4*t,4)}, {a(4*st_,4)}, {'0' if st_ == 0 else v(ACC+16*t,16)}")
                if st_ < 39: A.lds(f"ds_read_b128 {v(WF+4*t,4)}, {self.ldsaddr(wl(st_+1) + 1024*t, bases)}", ('f', st_+1, t))
                self.drain(fill, 4 if t % 2 == 0 else 0)
        assert not fill
        A("s_barrier")
        self.stamp('p4.main')
        CSR, PK = [216, 232], 176
        A(f"v_mul_f32 v{RS}, v{RS}, v{RS}")
        A(f"s_add_u32 s{T[4]}, s{SL}, s{S_H}\ns_add_u32 s{T[4]}, s{T[4]}, {HH}\ns_mov_b32 s{T[5]}, s{T[4]}\ns_cmp_eq_u32 s{J}, 15\ns_cmov_b32 s{T[5]}, {OOB}")
        csload = lambda t: [('lg', f"ds_read_b128 {v(CSR[t&1]+4*j,4)}, v{VCS} offset:{512 + 128*t + 16*j}", ('cs', t)) for j in range(4)]
        body = csload(0)
        for t in range(7):
            if t < 6: body += csload(t + 1)
            body.append(('wl', ('cs', t)))
            r = ACC + 16*t; c = CSR[t & 1]
            body += [f"v_fma_f32 v{r+k}, v{MU}, v{c+k}, v{r+k}" for k in range(16)]
            for hf in range(2):
                g = r + 8*hf
                for i in range(4): body += [f"v_max_f32 v{g+i}, 0, v{g+i}", f"v_mul_f32 v{g+4+i}, v{RS}, v{g+4+i}"]
                body += [f"v_mul_f32 v{g+i}, v{g+i}, v{g+4+i}" for i in range(4)]
                body += [f"v_cvt_pk_bf16_f32 v{PK+4*t+2*hf}, v{g}, v{g+1}", f"v_cvt_pk_bf16_f32 v{PK+4*t+2*hf+1}, v{g+2}, v{g+3}"]
            body.append(('vm', f"buffer_store_dwordx4 {v(PK+4*t,4)}, v{VH}, {WS}, s{T[4] if t < 3 else T[5]} offen offset:{512*t} {self.st}", 'out'))
        for x in body: self.emit(x)
        self.post = (S_W5, 81920, 81920, 39)
        self.pre = lambda: self.rnd3(S_W5, 81920 + 39936, 81920 + 39936, 7)

    def gen(self):
        A = self.A
        o_big = False
        def stop(name):
            if self.stop == name: A.wait_all(); A("s_branch main_done")
        self.setup()
        self.stamp('start')
        self.p1_first()
        self.drain_post((S_W3, 0, 0, 30))
        A.lab("main_layer")
        self.kv_sync(); stop("p1")
        self.p2()
        self.cluster_sync((S_W3, 61440, lds3(6), 40), None, 0x200); stop("p2")
        self.proj(3)
        self.cluster_sync(self.post, self.pre, 0x300); stop("p3")
        self.p4()
        self.cluster_sync(self.post, self.pre, 0x400); stop("p4")
        self.proj(5)
        self.cluster_sync(self.post, self.pre, 0x500); stop("p5")
        A(f"s_mov_b32 s{LAY}, 1\ns_add_u32 s{SL}, s{SL}, {LS}\ns_mov_b32 s{S_PB}, {64 if o_big else 32}")
        self.stamp('start')
        self.p1()
        self.p1_epilogue(64, 152, 153)
        self.drain_post((S_W3, 0, 0, 30))
        A("s_branch main_layer")
        self.final()
        A.lab("main_done")
        if self.prof:
            A.wait_all()
            if self.stop: A(f"s_mov_b32 s{S_PB}, 32")
            self.stamp('end')
            A(f"s_cmp_lg_u32 s{WV}, 0\ns_cbranch_scc1 main_end\ns_lshl_b32 s3, s2, 8\ns_add_u32 s3, s3, {PROF}\nv_lshlrev_b32 v{VFREE}, 2, v{VL}")
            A(f"buffer_store_dword v{VPROF}, v{VFREE}, {WS}, s3 offen\ns_add_u32 s3, s3, 0x10000\nbuffer_store_dword v{VPROF+1}, v{VFREE}, {WS}, s3 offen")
        if self.o.get("diagpad"):
            A(f"v_readlane_b32 s3, v{VPROF}, 0")
            A.lab("main_pad")
            A(f"s_memrealtime s[38:39]\ns_waitcnt lgkmcnt(0)\ns_sub_u32 s38, s38, s3\ns_cmp_lt_u32 s38, {self.o['diagpad']}\ns_cbranch_scc1 main_pad")
        if self.o.get("dbgprof"):
            t = VFREE; src = VPROF + (self.o["dbgprof"] - 1)
            A(f"s_cmp_lg_u32 s2, {self.o.get('dbgwg', 100)}\ns_cbranch_scc1 main_end\nv_readlane_b32 s3, v{src}, 0\nv_subrev_u32 v{t}, s3, v{src}")
            A(f"v_lshrrev_b32 v{t+1}, 2, v{VL}\nv_and_b32 v{t+1}, 8, v{t+1}\nv_and_b32 v{t+2}, 7, v{VL}\nv_add_u32 v{t+1}, v{t+1}, v{t+2}\nv_lshlrev_b32 v{t+1}, 2, v{t+1}")
            A(f"s_mov_b32 exec_lo, 0xfe\ns_mov_b32 exec_hi, 0xff\nbuffer_store_dword v{t}, v{t+1}, {DS_}, 0 offen")
        A.lab("main_end")
        A("s_endpgm")
        for blk in self.rare: A(blk)
        A.lab("main_last")

def gen_main(A, opts):
    m = Main(A, opts); m.gen()
    assert len(m.names) <= 32, len(m.names)
    if m.names: A.L.insert(0, Ins(f"; stamps {opts.get('mx', 256)} " + " ".join(m.names)))
```

```python
S, D, F, H, DH, W = 2048, 640, 1728, 32, 20, 256
CNT = 0x0000
KVF = 0x2000
CG = 0x1000
PK3 = 0x1800
PK5 = 0x1C00
PK4 = 0xA000
FLAG_BYTES = 0x10000
CSP1 = 0x10000
CSP4 = 0x20000
PROF = 0x40000
WP1 = 0x100000;  WP1_J = 163840
WP3 = WP1 + 16 * WP1_J; WP3_C = 102400
WP4 = WP3 + 8 * WP3_C;  WP4_J = 286720
WP5 = WP4 + 16 * WP4_J; WP5_C = 286720
WEND = WP5 + 8 * WP5_C
LB = 0x1000000
assert WEND + 65536 < LB
XA = 0
X1 = XA + 2621440
OO = X1 + 2621440
HH = OO + 2621440
KV = HH + 128 * 54 * 1024; KV_WG = 23552
ST3 = KV + 256 * KV_WG
STA = ST3 + 131072
LS = 0x1500000
assert STA + 131072 <= LS
WS_USED = LB + 2 * LS

import os
M16 = int(os.environ.get('M16', '0'))
P4_GROUPS = [(0, 4), (4, 3)]

def cg32(u, h, p):
    return 8 * (u >> 1) + 2 * (u & 1) + h + (4 if u < 4 else 2) * p
def k32(s, h, e):
    return 80 * (s // 5) + 4 * cg32(s % 5, h, e >> 2) + (e & 3)
def col1(hp, t, n):
    cg = 8 * t + (n >> 2); i = n & 3
    if cg < 10: return 640 + 40 * hp + 4 * cg + i
    if cg < 20: return 1280 + 40 * hp + 4 * (cg - 10) + i
    if cg < 22: return None
    return 40 * hp + 4 * (cg - 22) + i
def col4(T, n):
    if M16: return (n >> 4, 16 * T + (n & 15))
    sg = n >> 2; j = sg >> 1; hh = sg & 1
    return (j & 1, 16 * T + 4 * (2 * hh + (j >> 1)) + (n & 3))
def off4(s, t):
    for t0, nt in P4_GROUPS:
        if t0 <= t < t0 + nt: return (40 * t0 + s * nt + (t - t0)) * 1024
VPOS = {('a', 4): 0, ('a', 0): 1, ('a', 2): 2, ('a', 1): 3, ('a', 3): 4,
        ('b', 1): 7, ('b', 3): 8, ('b', 2): 9, ('b', 4): 10, ('b', 0): 12}

def pos3(b):
    kh = b // 10; return 2 * (b - 10 * kh) + kh
def hpos(T):
    j, t = divmod(T, 7)
    return 4 * j + t if t < 4 else 63 + 3 * j + t - 4
def pos5(b):
    kh = b & 1; bl = b >> 1; return 4 * (bl >> 1) + 2 * kh + (bl & 1)

def off1(s, t):
    return (3 * s + t if t < 3 else 120 + s) * 1024
```

```python
from asmlib import *
from layout import *
from pack import srd, sel, OOB, frag32_steps
import math

WS = "s[4:7]"; XS = "s[8:11]"; OS = "s[12:15]"; DS_ = "s[16:19]"
MB, J, WV, LAY, RH, CT, RR, KH = 20, 21, 22, 23, 24, 25, 26, 27
SL = 40
TGT = 41
S_A1 = 42
S_ST1 = 43
S_KVO = 44
S_A3 = 45
S_A3B = 46
S_X = 47
S_STX = 48
S_W1, S_W3, S_W4, S_W5 = 49, 50, 51, 52
S_H = 53
S_PB = 54
S_WI = 55
S_U = 98
GUS = "s[56:59]"; WDS = "s[60:63]"
MASK = 64
T = [28, 29, 30, 31, 32, 33, 34, 35, 36, 37]

VL, VL16, VST, RES = 1, 2, 3, 4
VO1, VKT, VO3, VX, VSX, VH, VCNT, VKF, VK, VKS, VV, VW2, VW12, VW1, VXW, VXR, VB1, VB2 = range(14, 32)
PM = 32
VPROF = 40
VTG, VDUM = 42, 43
VFREE = 44

LDS_MISC = 147456
CSF1 = LDS_MISC; CSF4 = LDS_MISC + 4096
KREG = 36864; VREG = KREG + 12 * 2560
XCH3 = 86016; XCH5 = 0
STG4 = 16384; STG5 = STG4 + 20480; STG3 = LDS_MISC + 8192
QSCALE = math.log2(math.e) / math.sqrt(20.0)

def lds1(st): return ((st + 5) % 36) * 4096 if st < 36 else (st - 31) * 4096
def lds3(bl): return bl * 10240 if bl < 3 else (107520 + (bl - 3) * 10240 if bl < 6 else KREG + (bl - 6) * 10240)
def fhex(x):
    import struct
    return hex(struct.unpack("<I", struct.pack("<f", x))[0])

def qmap_step(x):
    import re
    m = re.match(r"ds_read_b64 a\[(\d+):", x[1])
    return int(m.group(1)) // 4 if m else 999

class Main:
    def __init__(self, A, opts):
        self.A = A; self.o = opts
        self.prof = opts.get("prof", 0); self.names = []; self.rare = []; self.pending = set()
        self.stop = opts.get("stop", None)
        self.fused = opts.get("fused", 1)
        self.kname = opts.get("kname", "main_kernel")
        self.ld = "sc1"; self.st = "sc1"; self.stkv = "sc1"
        self.ntu, self.ntx, self.nts = opts.get("ntu", "nt"), opts.get("ntx", "nt"), opts.get("nts", "nt")

    def stamp(self, name):
        if self.o.get("only") and name not in self.o["only"]: return
        if not self.prof or name.endswith(tuple(self.o.get("nostamp", ()))) and self.o.get("nostamp"): return
        A = self.A
        if name not in self.names: self.names.append(name)
        idx = self.names.index(name)
        A(f"s_memrealtime s[38:39]\ns_memtime s[96:97]\ns_waitcnt lgkmcnt(0)\ns_mov_b32 s97, m0\ns_add_u32 m0, s{S_PB}, {idx}\nv_writelane_b32 v{VPROF}, s38, m0\nv_writelane_b32 v{VPROF+1}, s96, m0\ns_mov_b32 m0, s97")
        A.lg = []

    def ldsaddr(self, off, bases):
        b = off >> 16
        return f"v{bases[b]} offset:{off & 0xffff}"

    def emit(self, x):
        if isinstance(x, tuple):
            if x[0] == 'vm': self.A.vmem(x[1], x[2])
            elif x[0] == 'lg': self.A.lds(x[1], x[2])
            else:
                assert x[1] in self.A.seen and x[1] not in self.pending, x
                (self.A.wait_vm if x[0] == 'wv' else self.A.wait_lg)(x[1])
        else: self.A(x)

    def drain(self, fill, n):
        vm = 0
        while fill and n > 0:
            isvm = isinstance(fill[0], tuple) and fill[0][0] == 'vm'
            if isvm and vm: break
            vm += isvm
            self.pending = {y[2] for y in fill if isinstance(y, tuple) and len(y) == 3}
            self.emit(fill.pop(0)); n -= 1
            self.pending = set()

    def need(self, tag, fill):
        while any(isinstance(x, tuple) and x[0] == 'vm' and x[2] == tag for x in fill): self.emit(fill.pop(0))
        self.A.wait_vm(tag)

    def rnd(self, sbase, goff, loff, kb, tag):
        L = [f"s_mul_i32 s{T[8]}, s{WV}, {kb*1024}", f"s_add_u32 s{T[9]}, s{T[8]}, s{sbase}", f"s_add_u32 s{T[9]}, s{T[9]}, {goff}", f"s_add_u32 m0, s{T[8]}, {loff}"]
        for i in range(kb):
            if i and i % 4 == 0: L += [f"s_add_u32 s{T[9]}, s{T[9]}, 4096", "s_add_u32 m0, m0, 4096"]
            L.append(('vm', f"buffer_load_dwordx4 v{VL16}, {WS}, s{T[9]} offen offset:{1024*(i&3)} lds", tag))
        return L

    def rnd3(self, sbase, goff, loff, kb):
        A = self.A
        A(f"s_mul_i32 s{T[8]}, s{S_WI}, {kb*1024}\ns_add_u32 s{T[9]}, s{T[8]}, s{sbase}\ns_add_u32 s{T[9]}, s{T[9]}, {goff}\ns_add_u32 m0, s{T[8]}, {loff}")
        for i in range(kb):
            if i and i % 4 == 0: A(f"s_add_u32 s{T[9]}, s{T[9]}, 4096\ns_add_u32 m0, m0, 4096")
            A(f"buffer_load_dwordx4 v{VL16}, {WS}, s{T[9]} offen offset:{1024*(i&3)} lds")

    def edf(self, jobs, nsteps, rate, credit=0.0):
        units = []
        for rel, dl, L in jobs:
            cur = []
            for x in L:
                cur.append(x)
                if isinstance(x, tuple) and x[0] == 'vm': units.append([rel, dl, cur, id(L)]); cur = []
            if cur: units[-1][2] += cur
        sched = {k: [] for k in range(nsteps)}
        busy = None
        for st_ in range(nsteps):
            credit += rate(st_) if callable(rate) else rate
            while credit >= 1 and units:
                cand = [u for u in units if u[0] <= st_]
                if busy is not None: cand = [u for u in cand if u[3] == busy or 'lds' not in u[2][-1 if isinstance(u[2][-1], tuple) else -2][1]]
                if not cand: credit = min(credit, 1.0); break
                u = min(cand, key=lambda u: u[1])
                units.remove(u); sched[st_] += u[2]; credit -= 1
                isdma = any(isinstance(x, tuple) and x[1].endswith('lds') for x in u[2])
                if isdma: busy = u[3] if any(w[3] == u[3] for w in units) else None
        assert not units, f"{len(units)} loads left"
        return sched

    def drain_post(self, post, extra=0):
        A = self.A
        if not post:
            A.wait_all(); return
        N = A.newlab("p0"); E = A.newlab("pe")
        kb = -(-post[3] // 3)
        A(f"s_cmp_eq_u32 s{WV}, 0\ns_cbranch_scc1 {N}")
        self.rnd3(post[0], post[1], post[2], kb)
        A(f"s_waitcnt vmcnt({kb + extra}) lgkmcnt(0)\ns_branch {E}")
        A.lab(N); A(f"s_waitcnt vmcnt({extra}) lgkmcnt(0)"); A.lab(E)
        A.vm = []; A.lg = []

    def plan(self, chunks, bars, dead_at=()):
        jobs = []; valid = {}; used = set()
        for k, (sb, go, kb, ad, vs, last, pre) in enumerate(chunks):
            if pre: continue
            busy = [c[5] for c in chunks[:k] if c[3] < ad + kb*4096 and ad < c[3] + c[2]*4096]
            busy += [t for lo, hi, t in dead_at if lo < ad + kb*4096 and ad < hi]
            rel = min(b for b in bars if b > max(busy)) if busy else 0
            if busy: used.add(rel)
            dl = 900 + k
            if vs is not None:
                dl = max(b for b in bars if b <= vs); assert dl > rel, (k, rel, dl)
                valid.setdefault(dl, []).append(('w', k)); used.add(dl)
            jobs.append((rel, dl - 0.5, self.rnd(sb, go, ad, kb, ('w', k))))
        return jobs, valid, used

    def run32(self, seq, WFS, sched, at_step, side=None):
        A = self.A; R = len(WFS); bases = [VL16, VB1, VB2]
        rd = lambda n: A.lds(f"ds_read_b128 {v(WFS[n % R],4)}, {self.ldsaddr(seq[n][2], bases)}", ('f', n))
        for n in range(R): rd(n)
        fill = []; prev = None
        for n, (st_, acc, ad, B, zero) in enumerate(seq):
            if st_ != prev:
                at_step(st_, fill); prev = st_
            if n % 2 == 0: A.wait_lg(('f', min(n + 1, len(seq) - 1)))
            A(f"v_mfma_f32_32x32x16_bf16 {v(acc,16)}, {v(WFS[n % R],4)}, {B}, {'0' if zero else v(acc,16)}")
            if n + R < len(seq): rd(n + R)
            if side and n >= side[1] and side[0]:
                k = len(fill); self.drain(fill, 2)
                self.drain(side[0], side[2] - (k - len(fill)))
            else: self.drain(fill, 4)
        while fill: self.emit(fill.pop(0))

    def split3(self, src, dst, t):
        return [f"v_and_b32 v{t}, 0xffff0000, v{src}", f"v_sub_f32 v{t+1}, v{src}, v{t}", f"v_and_b32 v{dst}, 0xffff0000, v{t+1}", f"v_sub_f32 v{t+1}, v{t+1}, v{dst}",
                f"v_lshrrev_b32 v{t}, 16, v{t}", f"v_and_b32 v{dst+1}, 0xffff0000, v{t+1}", f"v_or_b32 v{dst}, v{dst}, v{t}", f"v_or_b32 v{dst+1}, v{dst+1}, v{t}",
                f"v_mov_b32 v{dst+2}, v{dst}", f"v_mov_b32 v{dst+3}, 0"]

    def csfrag(self, c, w, z, ad):
        return [f"v_and_b32 v{w+1}, 0xffff0000, v{c}", f"v_sub_f32 v{c}, v{c}, v{w+1}", f"v_and_b32 v{w+2}, 0xffff0000, v{c}", f"v_sub_f32 v{c}, v{c}, v{w+2}",
                f"v_lshrrev_b32 v{w}, 16, v{w+1}", f"v_or_b32 v{w}, v{w}, v{w+1}", f"v_lshrrev_b32 v{w+3}, 16, v{w+2}", f"v_or_b32 v{w+1}, v{w+1}, v{w+3}",
                f"v_lshrrev_b32 v{c}, 16, v{c}", f"v_or_b32 v{w+2}, v{w+2}, v{c}", f"v_mov_b32 v{w+3}, 0"] + [f"v_mov_b32 v{z+k}, 0" for k in range(4)] + \
               [('lg', f"ds_write_b128 v{ad}, {v(w,4)}", 'csw'), ('lg', f"ds_write_b128 v{ad}, {v(z,4)} offset:512", 'csw')]

    def csaddr(self, e, dst, t, base):
        return (f"v_lshrrev_b32 v{dst}, 5, v{e}\nv_lshlrev_b32 v{dst}, 10, v{dst}\nv_bfe_u32 v{t}, v{e}, 2, 2\nv_lshl_add_u32 v{dst}, v{t}, 7, v{dst}\nv_bfe_u32 v{t}, v{e}, 4, 1\n"
                f"v_lshl_add_u32 v{dst}, v{t}, 6, v{dst}\nv_and_b32 v{t}, 3, v{e}\nv_lshl_add_u32 v{dst}, v{t}, 4, v{dst}\nv_add_u32 v{dst}, {base}, v{dst}")

    def mix(self, body, fill, every):
        for k, x in enumerate(body):
            self.emit(x)
            if (k + 1) % every == 0: self.drain(fill, 5)

    def spin(self, addr, tgt, code, srd_=WS):
        A = self.A; L = A.newlab("poll"); D = A.newlab("pdone"); t = 254
        ld = lambda r: f"buffer_load_dword v{r}, v{addr}, {srd_}, 0 offen sc1"
        A(f"s_mov_b32 s{T[2]}, 20000\n" + ld(t))
        A.lab(L)
        for r in (t + 1, t):
            A(f"s_sleep {self.o.get('psleep', 3)}\n" + ld(r) + f"\ns_waitcnt vmcnt(1)\nv_cmp_gt_u32 vcc, {tgt}, v{2*t + 1 - r}\ns_cbranch_vccz {D}")
        A(f"s_sub_u32 s{T[2]}, s{T[2]}, 1\ns_cmp_lg_u32 s{T[2]}, 0\ns_cbranch_scc1 {L}")
        A(f"s_waitcnt vmcnt(0)\nv_mov_b32 v{t}, {code}\nv_mov_b32 v{t+1}, 128\nbuffer_store_dword v{t}, v{t+1}, {DS_}, 0 offen")
        A.lab(D)

    def cluster_sync(self, post, pre, code, both=None):
        A = self.A; N = A.newlab("nw0"); E = A.newlab("syn")
        self.stamp(f'p{code>>8}.epi')
        self.drain_post(post); A("s_barrier")
        self.stamp(f'p{code>>8}.drain')
        A(f"s_add_u32 s{TGT}, s{TGT}, 16\ns_cmp_lg_u32 s{WV}, 0\ns_cbranch_scc1 {N}")
        A(f"s_mov_b64 exec, 1\nv_mov_b32 v{VFREE+3}, 1\nbuffer_atomic_add v{VFREE+3}, v{VCNT}, {WS}, 0 offen sc1")
        if both:
            A("s_mov_b64 exec, -1"); both(); A("s_mov_b64 exec, 1")
        self.spin(VCNT, f's{TGT}', code)
        A(f"s_mov_b64 exec, -1")
        self.stamp(f'p{code>>8}.poll')
        A(f"s_branch {E}")
        A.lab(N)
        if pre: pre()
        if both: both()
        A.lab(E)
        A("s_barrier")
        self.stamp(f'p{code>>8}.bar')

    def setup(self):
        A = self.A
        A.lab(self.kname)
        A("s_cmp_ge_u32 s2, 256\ns_cbranch_scc1 main_end")
        A("s_load_dwordx2 s[28:29], s[0:1], 0\ns_load_dwordx4 s[32:35], s[0:1], 56\ns_load_dwordx2 s[30:31], s[0:1], 72")
        if self.fused: A("s_load_dwordx4 s[80:83], s[0:1], 8\ns_load_dwordx4 s[84:87], s[0:1], 32\ns_load_dwordx2 s[88:89], s[0:1], 48")
        A(f"v_and_b32 v{VL}, 63, v0\nv_lshrrev_b32 v2, 6, v0\ns_nop 0\nv_readfirstlane_b32 s{WV}, v2\nv_lshlrev_b32 v{VL16}, 4, v{VL}")
        mx = self.o.get("mx", 256)
        if mx == 256:
            A(f"s_and_b32 s{MB}, s2, 7\ns_lshl_b32 s{MB}, s{MB}, 1\ns_lshr_b32 s3, s2, 7\ns_add_u32 s{MB}, s{MB}, s3\ns_bfe_u32 s{J}, s2, 0x40003")
        elif mx == 512:
            A(f"s_bfe_u32 s{MB}, s2, 0x20001\ns_lshl_b32 s{MB}, s{MB}, 2\ns_lshr_b32 s3, s2, 6\ns_add_u32 s{MB}, s{MB}, s3")
            A(f"s_and_b32 s{J}, s2, 1\ns_lshl_b32 s{J}, s{J}, 3\ns_bfe_u32 s3, s2, 0x30003\ns_add_u32 s{J}, s{J}, s3")
        elif mx == 1024:
            A(f"s_bfe_u32 s{MB}, s2, 0x10002\ns_lshl_b32 s{MB}, s{MB}, 3\ns_lshr_b32 s3, s2, 5\ns_add_u32 s{MB}, s{MB}, s3")
            A(f"s_and_b32 s{J}, s2, 3\ns_lshl_b32 s{J}, s{J}, 2\ns_bfe_u32 s3, s2, 0x20003\ns_add_u32 s{J}, s{J}, s3")
        A(f"s_and_b32 s{RH}, s{J}, 1\ns_lshr_b32 s{CT}, s{J}, 1\ns_lshr_b32 s{RR}, s{WV}, 1\ns_and_b32 s{KH}, s{WV}, 1\ns_sub_u32 s{S_WI}, s{WV}, 1")
        A(f"s_mov_b32 s{LAY}, 0\ns_mov_b32 s{SL}, {LB}\ns_mov_b32 s{TGT}, 0\ns_mov_b32 s{S_PB}, 0")
        A(f"s_lshl_b32 s3, s{MB}, 2\ns_add_u32 s3, s3, s{WV}\ns_mul_i32 s{S_A1}, s3, 40960\ns_lshl_b32 s{S_ST1}, s3, 11")
        A(f"s_mul_i32 s{S_H}, s3, {2*54*1024}\ns_nop 0")
        A(f"s_mul_i32 s{S_W1}, s{J}, {WP1_J}\ns_add_u32 s{S_W1}, s{S_W1}, {WP1}\ns_mul_i32 s{S_W4}, s{J}, {WP4_J}\ns_add_u32 s{S_W4}, s{S_W4}, {WP4}")
        A(f"s_mul_i32 s{S_W3}, s{CT}, {WP3_C}\ns_add_u32 s{S_W3}, s{S_W3}, {WP3}\ns_mul_i32 s{S_W5}, s{CT}, {WP5_C}\ns_add_u32 s{S_W5}, s{S_W5}, {WP5}")
        A("s_waitcnt lgkmcnt(0)")
        srd(A, 4, 30, WS_USED); srd(A, 8, 28, 2048*640*2); srd(A, 16, 34, 256)

    def p1_first(self):
        A = self.A; o = self.o; st = "sc1"
        QS = "s[68:71]"; WOS = "s[64:67]"
        ACC, GR, ONE, MU, RS, AP = 64, 176, 56, 168, 169, 172
        VXS, VAX, TMP, VU1, VU3, VZ = 209, 213, 218, 214, 215, 216
        r, c, G = 44, 45, 46
        AB = 49152; NB = 3
        srd(A, 68, 80, 640*1920*2); srd(A, 64, 82, 640*640*2); srd(A, 60, 88, 1728*640*2); srd(A, 12, 32, 2048*640*2)
        A(f"s_cmp_lt_u32 s{WV}, 2\ns_cselect_b32 s56, s84, s86\ns_cselect_b32 s57, s85, s87\ns_mov_b32 s58, {640*1728*2}\ns_mov_b32 s59, 0x20000")
        A(f"s_lshl_b32 s{S_U}, s{MB}, 4\ns_add_u32 s{S_U}, s{S_U}, s{J}")
        NZ = A.newlab("nz"); NZ2 = A.newlab("nz")
        A(f"s_cmp_lg_u32 s2, 0\ns_cbranch_scc1 {NZ}\ns_cmp_lg_u32 s{WV}, 3\ns_cbranch_scc1 {NZ}")
        A(f"v_lshlrev_b32 v56, 7, v{VL}\nv_mov_b32 v57, 0")
        for k in range(6): A(f"s_mov_b32 s3, {8192*k}\nbuffer_store_dword v57, v56, {WS}, s3 offen sc1")
        A.lab(NZ)
        A(f"v_and_b32 v51, 7, v{VL}\nv_lshrrev_b32 v52, 3, v{VL}\ns_and_b32 s34, s{MB}, 1\ns_lshr_b32 s35, s{MB}, 1")
        A("s_cmp_eq_u32 s34, 0\ns_cselect_b32 s31, 5, 2"); sel(A, 32, 1280, 2608); sel(A, 33, 2480, -48); sel(A, 36, -1, 0xfbfbfbfb)
        A("v_mov_b32 v53, s32\nv_mov_b32 v54, s33\nv_cmp_gt_u32 vcc, s31, v51\nv_cndmask_b32 v53, v54, v53, vcc\nv_lshl_add_u32 v53, v51, 4, v53\nv_mul_u32_u24 v54, 3840, v52\nv_add_u32 v53, v53, v54")
        A(f"s_mul_i32 s31, s35, 80*3840\ns_mul_i32 s32, s{J}, 80\ns_add_u32 s31, s31, s32\ns_mov_b32 exec_lo, s36\ns_mov_b32 exec_hi, s36")
        for n in range(3):
            A(f"s_add_u32 s32, s{WV}, {4*n}\ns_min_u32 s32, s32, 9\ns_lshl_b32 m0, s32, 10\ns_mul_i32 s32, s32, 8*3840\ns_add_u32 s32, s32, s31")
            A.vmem(f"buffer_load_dwordx4 v53, {QS}, s32 offen {self.ntu} lds", 'u')
        A("s_mov_b64 exec, -1")
        A(f"s_lshr_b32 s99, s{S_U}, 3\ns_and_b32 s100, s{S_U}, 7\ns_mul_i32 s30, s99, 32*1280\ns_mul_i32 s31, s100, 160\ns_add_u32 s30, s30, s31\ns_cmp_ge_u32 s{S_U}, 160\ns_cmov_b32 s30, {OOB}")
        for n in range(2):
            A(f"s_add_u32 s31, s{WV}, {4*n}\ns_min_u32 s31, s31, 4\ns_lshl_b32 s3, s31, 6\nv_add_u32 v54, s3, v{VL}\nv_mul_u32_u24 v55, 6554, v54\nv_lshrrev_b32 v55, 16, v55\nv_mul_u32_u24 v56, 10, v55\nv_sub_u32 v56, v54, v56")
            A(f"v_mul_u32_u24 v55, 1280, v55\nv_lshl_add_u32 v55, v56, 4, v55\ns_lshl_b32 s31, s31, 10\ns_add_u32 m0, s31, {STG3}")
            A.vmem(f"buffer_load_dwordx4 v55, {WOS}, s30 offen {self.ntu} lds", 'u')
        A(f"v_lshrrev_b32 v{G}, 4, v{VL}\nv_and_b32 v48, 15, v{VL}")
        for n in range(4):
            A(f"v_add_u32 v49, {4*n}, v{G}\nv_xor_b32 v50, v48, v49\nv_mul_u32_u24 v49, 1280, v49\nv_lshl_add_u32 v{VXS+n}, v50, 4, v49")
        SX, SXL = T[0], T[1]
        A(f"s_lshl_b32 s3, s{MB}, 2\ns_add_u32 s3, s3, s{WV}\ns_mul_i32 s{SX}, s3, 32*1280\ns_mul_i32 s{SXL}, s{WV}, {NB*8192}\ns_add_u32 s{SXL}, s{SXL}, {AB}")
        def xlist(ch):
            L = []
            for n in range(8):
                if n % 4 == 0: L.append(f"s_add_u32 s{T[9]}, s{SX}, {ch*256 + (n >> 2)*16*1280}")
                L += [f"s_add_u32 m0, s{SXL}, {(ch % NB)*8192 + n*1024}", ('vm', f"buffer_load_dwordx4 v{VXS + (n & 3)}, {XS}, s{T[9]} offen {self.ntx} lds", ('x', ch))]
            return L
        def xjob(ch):
            for x in xlist(ch): self.emit(x)
        if o.get("touchx", 1):
            A(f"s_lshl_b32 s30, s{MB}, 3\ns_and_b32 s31, s{J}, 7\ns_add_u32 s30, s30, s31\ns_lshl_b32 s3, s30, 2\ns_add_u32 s3, s3, s{WV}\ns_mul_i32 s3, s3, 5120\nv_lshlrev_b32 v54, 7, v{VL}\ns_mov_b32 exec_hi, 0xff")
            A.vmem(f"buffer_load_dword v{VDUM}, v54, {XS}, s3 offen {self.ntx}\ns_mov_b32 exec_hi, -1", 't')
        if o.get("codepf", 1):
            A(f"s_getpc_b64 s[64:65]\nmain_pc:\ns_sub_u32 s64, s64, main_pc - {self.kname}\ns_subb_u32 s65, s65, 0\ns_mov_b32 s66, main_last - {self.kname}\ns_mov_b32 s67, 0x20000")
            A(f"s_and_b32 s3, s{J}, 7\ns_lshl_b32 s3, s3, 13\ns_cmp_lg_u32 s{WV}, 3\ns_cmov_b32 s3, {OOB}\nv_lshlrev_b32 v54, 7, v{VL}")
            A.vmem(f"buffer_load_dword v{VDUM}, v54, s[64:67], s3 offen", 'c')
        xjob(0)
        if o.get("x1early", 0): xjob(1)
        A(f"s_cmp_lg_u32 s2, 0\ns_cbranch_scc1 {NZ2}\ns_cmp_lg_u32 s{WV}, 3\ns_cbranch_scc1 {NZ2}")
        A(f"s_waitcnt vmcnt({len(A.vm)})\ns_mov_b64 exec, 1\nv_mov_b32 v56, 0\nv_mov_b32 v55, 1\nbuffer_store_dword v55, v56, {DS_}, 0 offen sc1\ns_mov_b64 exec, -1")
        A.lab(NZ2)
        for i in range(4): A(f"v_mov_b32 v{ONE+i}, 0x3f803f80")
        NP = A.newlab("np")
        A(f"s_cmp_eq_u32 s34, 0\ns_cbranch_scc1 {NP}\nv_lshlrev_b32 v48, 7, v0\nv_cmp_gt_u32 vcc, 80, v0\ns_and_saveexec_b64 s[36:37], vcc\ns_cbranch_execz {NP}a\nds_write_b128 v48, {v(ONE,4)} offset:32")
        A.lab(NP + "a"); A("s_mov_b64 exec, s[36:37]"); A.lab(NP)
        A(f"v_bfe_u32 v{r}, v{VL}, 2, 2\nv_and_b32 v{c}, 3, v{VL}\nv_lshrrev_b32 v48, 1, v{G}\nv_lshl_add_u32 v48, v48, 2, v{r}\nv_lshlrev_b32 v48, 7, v48\nv_and_b32 v49, 1, v{G}\nv_lshl_add_u32 v49, v49, 2, v{c}\nv_lshl_add_u32 v48, v49, 3, v48\ns_lshl_b32 s3, s{WV}, 6\nv_add_u32 v{VU1}, s3, v48")
        A(f"v_and_b32 v48, 31, v{VL}\nv_and_b32 v49, 15, v{VL}\nv_lshlrev_b32 v{VAX}, 8, v48\nv_lshl_add_u32 v{VAX}, v49, 4, v{VAX}\nv_lshrrev_b32 v49, 5, v{VL}\nv_lshl_add_u32 v{VAX}, v49, 3, v{VAX}\nv_add_u32 v{VAX}, s{SXL}, v{VAX}")
        A(f"v_lshl_add_u32 v{VU3}, v{G}, 3, v{r}\nv_mul_u32_u24 v{VU3}, 160, v{VU3}\nv_lshl_add_u32 v{VU3}, v{c}, 3, v{VU3}\nv_add_u32 v{VU3}, {STG3}, v{VU3}\nv_mov_b32 v{VZ}, 0\nv_lshlrev_b32 v{VZ+1}, 7, v0")
        A(f"s_cmp_ge_u32 s99, 10\ns_cselect_b32 s30, 1, 0\ns_cselect_b32 s31, 10, 0\ns_sub_u32 s31, s99, s31\ns_lshl_b32 s31, s31, 1\ns_add_u32 s31, s31, s30\ns_mul_i32 s31, s31, 5120")
        A(f"s_mul_i32 s30, s100, {WP3_C}\ns_add_u32 s30, s30, s31\ns_add_u32 s30, s30, {WP3}\ns_cmp_ge_u32 s{S_U}, 160\ns_cmov_b32 s30, {OOB}")
        self.setup2()
        spre, j4, j5 = self.stage_jobs()
        for x in spre: self.emit(x)
        CP = 240
        A(f"v_and_b32 v48, 127, v0\nv_lshrrev_b32 v49, 5, v48\nv_and_b32 v50, 31, v48\nv_lshlrev_b32 v50, 2, v50\nv_lshl_add_u32 v{CP+8}, v49, 10, v50")
        A(self.csaddr(48, CP+9, 49, CSF1))
        A.wait_vm('u'); A.wait_lg0(); A("s_barrier")
        self.stamp('s.u')
        HI = A.newlab("hi"); DN = A.newlab("dn"); keep = list(A.vm)
        A(f"s_cmp_ge_u32 s{WV}, 2\ns_cbranch_scc1 {HI}")
        A(f"s_lshl_b32 s32, s34, 1\ns_add_u32 s32, s32, s{WV}\ns_cmp_lt_u32 s32, 3\ns_cselect_b32 s3, s32, 120"); sel(A, 36, 3072, 1024)
        A(f"s_lshl_b32 s3, s3, 10\ns_mul_i32 s33, s35, 5\ns_mul_i32 s33, s33, s36\ns_add_u32 s33, s33, s{S_W1}\ns_add_u32 s30, s33, s3")
        A(f"s_lshl_b32 s33, s{J}, 2\ns_add_u32 s33, s33, s32\ns_lshl_b32 s33, s33, 3\ns_add_u32 s33, s33, s35\ns_lshl_b32 s33, s33, 7\ns_add_u32 s33, s33, {CSP1}")
        ur = [30, 31, 32, 34, 35]
        for u in range(1, 5): A(f"s_add_u32 s{ur[u]}, s{ur[u-1]}, s36")
        frag32_steps(A, VU1, VL16, lambda u: (f"s{ur[u]}", 0), "s33", WS, 64, 88, ONE, st)
        A(f"s_branch {DN}")
        A.lab(HI)
        A(f"s_cmp_lg_u32 s{WV}, 2\ns_cmov_b32 s30, {OOB}\ns_add_u32 s31, s30, 4096\ns_mov_b32 s32, {OOB}")
        for t in range(5):
            for p in range(2): A(f"ds_read_b64_tr_b16 {v(64+4*t+2*p,2)}, v{VU3} offset:{p*640 + t*32}")
        A("s_waitcnt lgkmcnt(0)")
        for t in range(5): A(f"buffer_store_dwordx4 {v(64+4*t,4)}, v{VL16}, {WS}, {'s30' if t < 4 else 's31'} offen offset:{(t&3)*1024} {st}")
        A("s_mov_b64 exec, 1")
        for t in range(4): A(f"buffer_store_dword v64, v{VL16}, {WS}, s32 offen")
        A("s_mov_b64 exec, -1")
        A.lab(DN)
        A.vm = keep + ['us'] * 9; A.lg = []
        A.vmem(f"s_lshl_b32 s3, s{WV}, 8\ns_mov_b64 exec, 1\nbuffer_load_dword v47, v{VZ}, {DS_}, s3 offen sc1\ns_mov_b64 exec, -1", 'dbg')
        self.stamp('s.st')
        qmap = {}
        for st_ in range(40):
            for p in range(2): qmap[10*(st_//5) + cg32(st_ % 5, 0, p)//2] = (st_, p)
        done = set(); gram = [0]
        def gram1():
            if gram[0] < 40 and (gram[0], 0) in done and (gram[0], 1) in done:
                k = gram[0]; gram[0] += 1
                A(f"v_mfma_f32_32x32x16_bf16 {v(GR,16)}, {a(4*k,4)}, {a(4*k,4)}, {'0' if k == 0 else v(GR,16)}")
        def xreads(ch, also=()):
            also = list(also)
            A.wait_vm(('x', ch))
            for k, q in enumerate(range(16*ch, 16*ch + 16)):
                st_, p = qmap[q]
                A(f"v_xor_b32 v{TMP+(k&1)}, {k*16}, v{VAX}")
                A.lds(f"ds_read_b64 {a(4*st_+2*p,2)}, v{TMP+(k&1)} offset:{(ch % NB)*8192}")
                if k % 2:
                    gram1(); self.drain(also, 3)
            assert not also
            A.wait_lg0()
            for q in range(16*ch, 16*ch + 16): done.add(qmap[q])
        if not o.get("x1early", 0): xjob(1)
        xjob(2)
        xreads(0)
        A.wait_vm('dbg'); A("s_barrier")
        self.stamp('s.drain')
        W1_ = A.newlab("w"); OKI = A.newlab("oki")
        A(f"s_cmp_lg_u32 s{WV}, 0\ns_cbranch_scc1 {W1_}\ns_mov_b64 exec, 1\nv_cmp_gt_u32 vcc, 1, v47\ns_cbranch_vccz {OKI}")
        self.spin(VZ, "1", 0x10, DS_)
        A.lab(OKI)
        A(f"s_lshl_b32 s32, s{J}, 7\ns_add_u32 s32, s32, {CG}\nv_mov_b32 v48, s32\ns_and_b32 s32, s{S_U}, 7\ns_lshl_b32 s32, s32, 7\ns_add_u32 s32, s32, {PK3}\nv_writelane_b32 v48, s32, 1")
        A(f"s_cmp_lt_u32 s{S_U}, 160\ns_cselect_b32 exec_lo, 3, 1\nv_mov_b32 v51, 1\nbuffer_atomic_add v51, v48, {WS}, 0 offen sc1\ns_mov_b64 exec, -1")
        A.lab(W1_)
        for x in j4 + j5: self.emit(x)
        xreads(1, xlist(3)); xreads(2, xlist(4)); xreads(3); xreads(4)
        self.stamp('s.x')
        W2_ = A.newlab("w")
        A(f"s_cmp_lg_u32 s{WV}, 0\ns_cbranch_scc1 {W2_}")
        A(f"s_lshl_b32 s32, s{J}, 7\ns_add_u32 s32, s32, {CG}\nv_mov_b32 v48, s32\ns_lshl_b32 s32, s{CT}, 7\ns_add_u32 s32, s32, {PK3}\nv_writelane_b32 v48, s32, 1\nv_mov_b32 v50, 16\nv_writelane_b32 v50, 20, 1\ns_mov_b64 exec, 3")
        self.spin(48, "v50", 0x20)
        A("s_mov_b64 exec, -1")
        A.lab(W2_)
        A("s_barrier")
        self.stamp('s.poll')
        seq, ch = self.p1_seq([49152 + 12288*c for c in range(8)] + [0, 16384], [28672, 36864, 49152, 73728, 81920], AP)
        up = 4
        for k in range(up): [self.emit(x) for x in self.rnd(ch[k][0], ch[k][1], ch[k][3], ch[k][2], ('w', k))]
        while gram[0] < 40: gram1()
        A(f"s_lshl_b32 s99, s{J}, 12\ns_add_u32 s99, s99, {CSP1}")
        A(f"s_lshl_b32 s100, s{S_A3}, 4\ns_mul_i32 s100, s100, 1280\ns_mul_i32 s3, s{CT}, 160\ns_add_u32 s100, s100, s3")
        A(f"v_and_b32 v{CP+10}, 15, v{VL}\nv_mul_u32_u24 v{CP+10}, 1280, v{CP+10}\nv_lshrrev_b32 v48, 4, v{VL}\nv_lshl_add_u32 v{CP+10}, v48, 3, v{CP+10}")
        for k in range(1, 16): A(f"v_cndmask_b32 v{GR}, v{GR}, v{GR+k}, s[{MASK+2*k}:{MASK+2*k+1}]")
        A(f"v_mov_b32 v{GR+1}, v{GR}\nv_mov_b32 v{GR+2}, v{GR}\nv_permlane32_swap_b32 v{GR+1}, v{GR+2}\nv_bfe_u32 v48, v{VL}, 2, 1\nv_cmp_eq_u32 vcc, 0, v48\nv_cndmask_b32 v{GR}, v{GR+2}, v{GR+1}, vcc\nv_mul_f32 v{GR}, {fhex(1.0/640)}, v{GR}")
        ch = [c + (k < up,) for k, c in enumerate(ch)] + [(S_W3, 30720, 8, lds3(3), None, 999, False)]
        bars = list(range(1, 80, 4))
        jobs, valid, used = self.plan(ch, bars, [(STG4, STG5 + 10240, 12)])
        for k in range(1, up):
            b = max(x for x in bars if x <= ch[k][4]); valid.setdefault(b, []).append(('w', k)); used.add(b)
        jobs += [(4, 30 + k, [('vm', f"buffer_load_dword v{CP+k}, v{CP+8}, {WS}, s99 offen offset:{128*k} sc1", 'cp')]) for k in range(8)]
        jobs += [(26 + 2*k, 70 + k, [('vm', f"buffer_load_dwordx2 {v(RES+2*k,2)}, v{CP+10}, {XS}, s100 offen offset:{32*k}", 'res')]) for k in range(5)]
        sched = self.edf(jobs, 80, lambda k: o.get("r1a", 1.3) if k < 40 else 0.5)
        assert not any(isinstance(x, tuple) and x[2] == 'cp' for k in range(30, 80) for x in sched[k])
        sched[30] += [('wv', 'cp')] + [f"v_add_f32 v{CP}, v{CP}, v{CP+k}" for k in range(1, 8)] + self.csfrag(CP, CP+4, 160, CP+9)
        late = self.pack_late()
        nl = o.get("latelen", 30)
        for k in range(nl): sched[k] += late[k*len(late)//nl:(k+1)*len(late)//nl]
        assert not any(isinstance(x, tuple) and x[0] == 'lg' and 'tr_b16' in x[1] for k in range(11, 80) for x in sched[k])
        sched[41] = [f"v_mul_f32 v{MU}, {fhex(-1.0/640)}, v{ACC+40}"] + self.split3(MU, AP, 160) + \
            [f"v_fma_f32 v{GR}, -v{MU}, v{MU}, v{GR}", f"v_max_f32 v{GR}, 0, v{GR}", f"v_add_f32 v{GR}, 0x3727c5ac, v{GR}", f"v_rsq_f32 v{RS}, v{GR}"] + sched[41]
        A.wait_vm(('w', 0)); A.wait_lg0(); A("s_barrier")
        self.stamp('p1.go')
        def at_step(st_, fill):
            if st_ == 44: assert not any(isinstance(x, str) and f"v{AP+3}" in x for x in fill)
            if st_ in used or st_ in (33, 37):
                for tag in valid.get(st_, []): self.need(tag, fill)
                if st_ == 37: self.need('pst', fill)
                if st_ == 33:
                    while any(isinstance(x, tuple) and x[2] == 'csw' for x in fill): self.emit(fill.pop(0))
                    A.wait_lg('csw')
                A("s_barrier")
                if st_ == 37: self.packed_signal()
                if o.get("in1"): self.stamp(f'd.{st_}')
            if st_ == 40: self.stamp('p1.a')
            fill += sched[st_]
        self.p1_tail(seq, sched, at_step, RS)

    def stage_jobs(self):
        t = 160
        pre = [f"v_and_b32 v{t+4}, 7, v{VL}", f"v_lshrrev_b32 v{t+5}, 3, v{VL}", f"v_mul_u32_u24 v{t}, 3456, v{t+5}", f"v_lshl_add_u32 v{t}, v{t+4}, 4, v{t}",
               f"s_and_b32 s99, s{S_U}, 7", "s_mul_i32 s99, s99, 80", f"s_mul_i32 s100, s{KH}, 40", "s_add_u32 s99, s99, s100", "s_mul_i32 s99, s99, 3456",
               f"s_lshr_b32 s100, s{S_U}, 3", "s_lshl_b32 s100, s100, 7", "s_add_u32 s99, s99, s100",
               f"s_lshr_b32 s100, s{S_U}, 2", "s_mul_i32 s100, s100, 32*1280", f"s_and_b32 s101, s{S_U}, 3", "s_mul_i32 s101, s101, 320", "s_add_u32 s100, s100, s101",
               f"s_cmp_ge_u32 s{S_U}, 216\ns_cmov_b32 s99, {OOB}\ns_cmov_b32 s100, {OOB}"]
        for n in range(3):
            pre += [f"s_add_u32 s101, s{WV}, {4*n}", "s_min_u32 s101, s101, 9", "s_lshl_b32 s101, s101, 6", f"v_add_u32 v{t+4}, s101, v{VL}", f"v_mul_u32_u24 v{t+5}, 3277, v{t+4}", f"v_lshrrev_b32 v{t+5}, 16, v{t+5}",
                    f"v_mul_u32_u24 v{t+6}, 20, v{t+5}", f"v_sub_u32 v{t+6}, v{t+4}, v{t+6}", f"v_mul_u32_u24 v{t+5}, 1280, v{t+5}", f"v_lshl_add_u32 v{t+1+n}, v{t+6}, 4, v{t+5}"]
        j4 = [f"s_mul_i32 s{T[8]}, s{WV}, 5120"]
        for n in range(5):
            j4 += [f"s_add_u32 m0, s{T[8]}, {STG4 + n*1024}", ('vm', f"buffer_load_dwordx4 v{t}, {GUS}, s99 offen {self.nts} lds", 'stg'), f"s_add_u32 s99, s99, {8*3456}"]
        j5 = []
        for n in range(3):
            j5 += [f"s_add_u32 s{T[8]}, s{WV}, {4*n}", f"s_min_u32 s{T[8]}, s{T[8]}, 9", f"s_lshl_b32 s{T[8]}, s{T[8]}, 10", f"s_add_u32 m0, s{T[8]}, {STG5}",
                   ('vm', f"buffer_load_dwordx4 v{t+1+n}, {WDS}, s100 offen {self.nts} lds", 'stg')]
        return pre, j4[:-1], j5

    def pack_late(self):
        st = "sc1"; L = []
        r, c, G, ad, FR, FD, CA, ONE = 44, 45, 46, 47, 192, 212, 224, 56
        add = lambda txt: L.extend(txt.split("\n"))
        add(f"v_bfe_u32 v{r}, v{VL}, 2, 2\nv_and_b32 v{c}, 3, v{VL}\nv_lshrrev_b32 v{G}, 4, v{VL}")
        add(f"v_lshrrev_b32 v{ad}, 1, v{G}\nv_lshl_add_u32 v{ad}, v{ad}, 2, v{r}\nv_lshlrev_b32 v{ad}, 7, v{ad}\nv_and_b32 v48, 1, v{c}\nv_lshl_add_u32 v{ad}, v48, 4, v{ad}\nv_and_b32 v48, 1, v{G}\nv_lshl_add_u32 v{ad}, v48, 3, v{ad}")
        add(f"v_lshrrev_b32 v48, 1, v{c}\nv_mul_u32_u24 v48, 10240, v48\nv_add_u32 v{ad}, v{ad}, v48\ns_lshl_b32 s28, s{WV}, 5\ns_add_u32 s28, s28, {STG4}\nv_add_u32 v{ad}, s28, v{ad}")
        for u in range(5):
            for p in range(2): L.append(('lg', f"ds_read_b64_tr_b16 {v(FR+4*u+2*p,2)}, v{ad} offset:{4*cg32(u,0,p)*128}", ('pl', u)))
        add(f"v_lshl_add_u32 v49, v{G}, 3, v{r}\nv_mul_u32_u24 v49, 320, v49\nv_lshl_add_u32 v49, v{c}, 3, v49\ns_mul_i32 s29, s{KH}, 160\ns_mul_i32 s28, s{RR}, 96\ns_add_u32 s29, s29, s28\ns_add_u32 s29, s29, {STG5}\nv_add_u32 v49, s29, v49\ns_lshl_b32 s28, s{RR}, 5\nv_subrev_u32 v50, s28, v49")
        for k in range(3):
            for p in range(2): L.append(('lg', f"ds_read_b64_tr_b16 {v(FD+4*k+2*p,2)}, v{49 if k < 2 else 50} offset:{p*1280 + k*32}", 'pd'))
        add(f"s_and_b32 s29, s{S_U}, 7\ns_lshr_b32 s28, s{S_U}, 3\ns_lshl_b32 s28, s28, 2\ns_add_u32 s28, s28, s{WV}")
        add("s_mul_i32 s30, s28, 147\ns_lshr_b32 s30, s30, 10\ns_mul_i32 s31, s30, 7\ns_sub_u32 s31, s28, s31")
        add(f"s_mov_b32 s32, {P4_GROUPS[0][0]}\ns_mov_b32 s35, {P4_GROUPS[0][1]}")
        for t0, nt in P4_GROUPS[1:]: L.append(f"s_cmp_ge_u32 s31, {t0}\ns_cselect_b32 s32, {t0}, s32\ns_cselect_b32 s35, {nt}, s35")
        add(f"s_mul_i32 s30, s30, {WP4_J}\ns_mul_i32 s34, s32, 39\ns_add_u32 s34, s34, s31\ns_mul_i32 s32, s29, 5\ns_mul_i32 s32, s32, s35\ns_add_u32 s34, s34, s32\ns_lshl_b32 s34, s34, 10\ns_add_u32 s30, s30, s34\ns_add_u32 s30, s30, {WP4}\ns_lshl_b32 s35, s35, 10")
        add(f"s_lshl_b32 s28, s28, 3\ns_add_u32 s28, s28, s29\ns_lshl_b32 s28, s28, 7\ns_add_u32 s28, s28, {CSP4}")
        L.append(f"s_cmp_ge_u32 s{S_U}, 216\ns_cmov_b32 s30, {OOB}\ns_cmov_b32 s28, {OOB}")
        add(f"v_lshrrev_b32 v48, 5, v{VL}\nv_lshlrev_b32 v48, 6, v48")
        for u in range(5):
            L += [('wl', ('pl', u)), ('vm', f"buffer_store_dwordx4 {v(FR+4*u,4)}, v{VL16}, {WS}, s30 offen {st}", 'pst'),
                  f"v_mfma_f32_32x32x16_bf16 {v(CA,16)}, {v(FR+4*u,4)}, {v(ONE,4)}, {'0' if u == 0 else v(CA,16)}"]
            if u < 4: L.append("s_add_u32 s30, s30, s35")
        for hf in range(2):
            add(f"s_lshr_b32 s31, s{S_U}, 2\ns_lshl_b32 s31, s31, 1\ns_add_u32 s31, s31, {hf}\ns_mul_i32 s30, s31, 147\ns_lshr_b32 s30, s30, 10\ns_mul_i32 s29, s30, 7\ns_sub_u32 s29, s31, s29")
            add("s_lshl_b32 s31, s30, 2\ns_mul_i32 s30, s30, 3\ns_add_u32 s30, s30, 59")
            L.append("s_cmp_lt_u32 s29, 4\ns_cselect_b32 s30, s31, s30")
            add("s_add_u32 s30, s30, s29\ns_lshr_b32 s31, s30, 3\ns_lshl_b32 s31, s31, 2\ns_and_b32 s29, s30, 2\ns_add_u32 s31, s31, s29\ns_bfe_u32 s29, s30, 0x10002\ns_add_u32 s31, s31, s29\ns_mul_i32 s31, s31, 5120")
            add(f"s_and_b32 s30, s30, 1\ns_lshl_b32 s30, s30, 9\ns_add_u32 s31, s31, s30\nv_mov_b32 v{51+hf}, s31")
        L.append(f"s_mov_b32 exec_lo, 0\nv_mov_b32 v51, v52\ns_mov_b32 exec_lo, -1")
        add(f"v_and_b32 v52, 31, v{VL}\nv_lshl_add_u32 v51, v52, 4, v51")
        add(f"s_and_b32 s30, s{S_U}, 3\ns_lshl_b32 s30, s30, 1\ns_add_u32 s30, s30, s{KH}\ns_mul_i32 s30, s30, {WP5_C}\ns_mul_i32 s29, s{RR}, 3072\ns_add_u32 s30, s30, s29\ns_add_u32 s30, s30, {WP5}")
        L.append(f"s_cmp_ge_u32 s{S_U}, 216\ns_cmov_b32 s30, {OOB}")
        add(f"s_lshl_b32 s29, s{RR}, 10\ns_sub_u32 s29, s30, s29")
        L.append(('wl', 'pd'))
        for k in range(3): L.append(('vm', f"buffer_store_dwordx4 {v(FD+4*k,4)}, v51, {WS}, s{30 if k < 2 else 29} offen offset:{k*1024} {st}", 'pst'))
        for q in range(4): L.append(('vm', f"s_mov_b32 exec_lo, 1\ns_mov_b32 exec_hi, 1\nbuffer_store_dwordx4 {v(CA+4*q,4)}, v48, {WS}, s28 offen offset:{16*q} {st}\ns_mov_b64 exec, -1", 'pst'))
        return L

    def setup2(self):
        A = self.A; t = VFREE
        A(f"s_lshl_b32 s3, s{MB}, 4\ns_add_u32 s3, s3, s{J}\ns_mul_i32 s{S_KVO}, s3, {KV_WG}\ns_add_u32 s{S_KVO}, s{S_KVO}, {KV}")
        A(f"s_lshl_b32 s3, s{MB}, 2\ns_lshl_b32 s36, s{RH}, 1\ns_add_u32 s3, s3, s36\ns_add_u32 s3, s3, s{RR}")
        A(f"s_mul_i32 s{S_X}, s3, 40960\ns_mul_i32 s36, s{CT}, 5120\ns_add_u32 s{S_X}, s{S_X}, s36")
        A(f"s_lshl_b32 s{S_STX}, s3, 3\ns_add_u32 s{S_STX}, s{S_STX}, s{CT}\ns_lshl_b32 s{S_STX}, s{S_STX}, 8")
        A(f"s_lshl_b32 s3, s3, 1\ns_add_u32 s{S_A3}, s3, s{KH}\ns_xor_b32 s{S_A3B}, s{S_A3}, 1")
        m5, h, m4, g = t, t+1, t+2, t+3
        A(f"v_and_b32 v{m5}, 31, v{VL}\nv_lshrrev_b32 v{h}, 5, v{VL}\nv_and_b32 v{m4}, 15, v{VL}\nv_lshrrev_b32 v{g}, 4, v{VL}")
        A(f"v_lshlrev_b32 v{VST}, 3, v{m5}\nv_lshl_add_u32 v{VST}, v{h}, 8, v{VST}")
        A(f"v_add_u32 v{VB1}, 0x10000, v{VL16}\nv_add_u32 v{VB2}, 0x20000, v{VL16}")
        A(f"s_lshl_b32 s3, s{MB}, 8\nv_mov_b32 v{VCNT}, s3")
        A(f"v_sub_u32 v{VKF}, s{MB}, v{VL}\nv_cmp_gt_i32 vcc, 0, v{VKF}\nv_mov_b32 v{t+4}, s{MB}\nv_cndmask_b32 v{VKF}, v{VKF}, v{t+4}, vcc\nv_lshlrev_b32 v{VKF}, 4, v{VKF}\nv_add_u32 v{VKF}, s{J}, v{VKF}\nv_lshlrev_b32 v{VKF}, 7, v{VKF}\nv_add_u32 v{VKF}, {KVF}, v{VKF}")
        A(f"s_mul_i32 s3, s{J}, 7\ns_lshr_b32 s3, s3, 2\nv_mov_b32 v{VKT}, 8")
        for k in range(3): A(f"s_add_u32 s36, s3, {k}\ns_min_u32 s36, s36, 26\ns_lshl_b32 s36, s36, 7\ns_add_u32 s36, s36, {PK4}\nv_writelane_b32 v{VKF}, s36, {3+k}")
        A(f"s_lshr_b32 s3, s{CT}, 1\ns_lshl_b32 s3, s3, 7\ns_add_u32 s3, s3, {PK5}\nv_writelane_b32 v{VKF}, s3, 6\nv_writelane_b32 v{VKT}, 54, 6")
        A(f"s_lshl_b32 s3, s{MB}, 3\ns_lshl_b32 s36, s{WV}, 1\ns_add_u32 s3, s3, s36\ns_mul_i32 s3, s3, 20480\ns_mul_i32 s36, s{J}, 1280\ns_add_u32 s3, s3, s36\ns_add_u32 s3, s3, {OO}")
        A(f"v_lshrrev_b32 v{t+4}, 4, v{m5}\nv_mul_u32_u24 v{t+5}, 20480, v{t+4}\nv_lshl_add_u32 v{t+5}, v{m4}, 4, v{t+5}\nv_add_u32 v{VO3}, s3, v{t+5}\nv_lshl_add_u32 v{VO1}, v{h}, 8, v{VO3}")
        A(f"v_mul_u32_u24 v{VH}, {54*1024}, v{t+4}\nv_lshl_add_u32 v{VH}, v{m4}, 4, v{VH}\nv_lshl_add_u32 v{VH}, v{h}, 8, v{VH}")
        A(f"s_lshl_b32 s3, s{KH}, 4\nv_add_u32 v{t+4}, s3, v{m4}\nv_lshlrev_b32 v{VSX}, 3, v{t+4}\nv_and_b32 v{t+5}, 1, v{g}\nv_lshl_add_u32 v{t+4}, v{t+5}, 5, v{t+4}")
        A(f"v_lshlrev_b32 v{VX}, 4, v{t+4}\nv_lshl_add_u32 v{VX}, v{h}, 10, v{VX}")
        A(f"s_mul_i32 s3, s{WV}, 2560\ns_add_u32 s3, s3, {KREG}\nv_add_u32 v{VK}, s3, v{VL16}\ns_add_u32 s3, s3, 2048\nv_lshlrev_b32 v{VKS}, 3, v{VL}\nv_add_u32 v{VKS}, s3, v{VKS}")
        A(f"s_mul_i32 s3, s{WV}, 3328\ns_add_u32 s3, s3, {VREG - 32}")
        A(f"v_mul_u32_u24 v{VV}, 416, v{h}\nv_and_b32 v{t+4}, 1, v{g}\nv_lshl_add_u32 v{VV}, v{t+4}, 7, v{VV}\nv_and_b32 v{t+4}, 3, v{VL}\nv_lshl_add_u32 v{VV}, v{t+4}, 5, v{VV}")
        A(f"v_bfe_u32 v{t+4}, v{VL}, 2, 2\nv_lshl_add_u32 v{VV}, v{t+4}, 3, v{VV}\nv_add_u32 v{VV}, s3, v{VV}")
        A(f"s_add_u32 s3, s3, {8*3328 + 32}\nv_lshrrev_b32 v{t+4}, 2, v{m5}\nv_mul_u32_u24 v{t+4}, 416, v{t+4}\nv_and_b32 v{t+5}, 3, v{VL}\nv_lshl_add_u32 v{t+4}, v{t+5}, 3, v{t+4}\nv_add_u32 v{t+4}, s3, v{t+4}")
        A(f"v_lshl_add_u32 v{VW2}, v{h}, 6, v{t+4}\nv_lshl_add_u32 v{VW1}, v{h}, 5, v{t+4}\nv_mul_u32_u24 v{t+5}, 384, v{h}\nv_add_u32 v{VW12}, v{t+5}, v{t+4}")
        A(f"s_mul_i32 s3, s{WV}, 5120\nv_add_u32 v{VXW}, s3, v{VL16}\ns_xor_b32 s3, s{WV}, 1\ns_mul_i32 s3, s3, 5120\nv_add_u32 v{VXR}, s3, v{VL16}")
        A(f"v_lshlrev_b32 v{t+4}, 2, v{h}\nv_sub_u32 v{t+4}, v{m5}, v{t+4}")
        for r in range(16):
            A(f"v_cmp_le_i32 s[{MASK+2*r}:{MASK+2*r+1}], {8*(r>>2) + (r&3)}, v{t+4}")
        A(f"v_mov_b32 v{t+5}, 0xffff\nv_mov_b32 v{t+6}, 0xffff0000")
        for rr in range(8):
            A(f"v_cndmask_b32 v{PM+rr}, 0, v{t+5}, s[{MASK+4*rr}:{MASK+4*rr+1}]\nv_cndmask_b32 v{t+7}, 0, v{t+6}, s[{MASK+4*rr+2}:{MASK+4*rr+3}]\nv_or_b32 v{PM+rr}, v{PM+rr}, v{t+7}")

    def stats_load(self, off, dst):
        A = self.A
        A(f"s_add_u32 s{T[3]}, s{SL}, s{S_ST1}\ns_add_u32 s{T[3]}, s{T[3]}, {off}")
        for i in range(4):
            A.vmem(f"buffer_load_dwordx2 {v(dst+2*i,2)}, v{VST}, {WS}, s{T[3]} offen offset:{512*i} {self.ld}", 'st')

    def stats_finish(self, d, mu, rs):
        return [f"v_add_f32 v{d}, v{d}, v{d+2}", f"v_add_f32 v{d+1}, v{d+1}, v{d+3}", f"v_add_f32 v{d+4}, v{d+4}, v{d+6}", f"v_add_f32 v{d+5}, v{d+5}, v{d+7}",
                f"v_add_f32 v{d}, v{d}, v{d+4}", f"v_add_f32 v{d+1}, v{d+1}, v{d+5}", f"v_mov_b32 v{d+2}, v{d}", f"v_mov_b32 v{d+3}, v{d+1}",
                f"v_permlane32_swap_b32 v{d}, v{d+2}", f"v_permlane32_swap_b32 v{d+1}, v{d+3}",
                f"v_add_f32 v{d}, v{d}, v{d+2}", f"v_add_f32 v{d+1}, v{d+1}, v{d+3}",
                f"v_mul_f32 v{mu}, {fhex(-1.0/640)}, v{d}", f"v_mul_f32 v{d+1}, {fhex(1.0/640)}, v{d+1}",
                f"v_fma_f32 v{d+1}, -v{mu}, v{mu}, v{d+1}", f"v_max_f32 v{d+1}, 0, v{d+1}", f"v_add_f32 v{d+1}, 0x3727c5ac, v{d+1}",
                f"v_rsq_f32 v{rs}, v{d+1}"]

    def a_load(self, st_, sreg, dst, tag):
        self.A.vmem(f"buffer_load_dwordx4 {a(dst,4)}, v{VL16}, {WS}, s{sreg} offen offset:{(st_ & 3)*1024} {self.ld}", tag)

    def p1_seq(self, adA, adB, AP):
        ACC = 64; ACB = self.ACB = 44
        seq = [(k, ACC + 16*t, adA[k >> 2] + (k & 3)*3072 + 1024*t, a(4*k, 4), k == 0) for k in range(40) for t in range(3)]
        seqB = [(40 + k, (ACC + 48, ACB)[k & 1], adB[k >> 3] + (k & 7)*1024, a(4*k, 4), k < 2) for k in range(40)]
        cs = lambda t, st_: (st_, ACC + 16*t, CSF1 + 1024*t, v(AP, 4), False)
        seq += seqB[:5] + [cs(0, 44), cs(1, 44), cs(2, 44)] + seqB[5:] + [cs(3, 79)]
        R = 8
        vis = lambda nf: seq[max(nf - R, 0)][0]
        idx = {(e[0], e[1]): n for n, e in reversed(list(enumerate(seq)))}
        chA = [(S_W1, c*12288, 3, adA[c], vis(12*c), 4*c + 3) for c in range(10)]
        chB = [(S_W1, 122880 + c*8192, 2, adB[c], vis(idx[(40 + 8*c, ACC + 48)]), 47 + 8*c) for c in range(5)]
        return seq, chA + chB

    def p1(self):
        A = self.A; o = self.o
        STD, MU, RS, AP = 160, 168, 169, 172
        SA = T[4]
        def aload(st_):
            L = [f"s_add_u32 s{SA}, s{SA}, 4096"] if st_ and st_ % 4 == 0 else []
            return L + [('vm', f"buffer_load_dwordx4 {a(4*st_,4)}, v{VL16}, {WS}, s{SA} offen offset:{(st_ & 3)*1024} {self.ld}", ('a', st_))]
        A(f"s_add_u32 s{SA}, s{SL}, s{S_A1}")
        up = o.get("up1", 10)
        self.stats_load(STA, STD)
        for k in range(up): [self.emit(x) for x in aload(k)]
        seq, ch = self.p1_seq([20480 + 12288*c for c in range(10)], [0, 8192, 20480, 28672, 36864], AP)
        ch = [c + (k < self.pre1,) for k, c in enumerate(ch)] + [(S_W3, 30720, 8, lds3(3), None, 999, False)]
        bars = list(range(1, 80, 4))
        jobs, valid, used = self.plan(ch, bars)
        jobs[-1] = (o.get("w3at", 72),) + jobs[-1][1:]
        jobs += [(0, k, aload(k)) for k in range(up, 40)]
        sched = self.edf(jobs, 80, lambda k: o.get("r1", 1.4) if k < 40 else (0.5 if k < 72 else 1.0))
        sched[30] += self.stats_finish(STD, MU, RS) + self.split3(MU, AP, STD)
        A.wait_vm(('a', 0)); A("s_barrier")
        self.stamp('p1.go')
        def at_step(st_, fill):
            if st_ in used or st_ == 37:
                for tag in valid.get(st_, []): self.need(tag, fill)
                A("s_barrier")
            if st_ == 40: self.stamp('p1.a')
            fill += sched[st_]
            if st_ < 40: self.need(('a', st_), fill)
        self.p1_tail(seq, sched, at_step, RS)

    def p1_tail(self, seq, sched, at_step, RS):
        A = self.A; ACC, PK, RQ, VC = 64, 176, 170, 192
        self.QA1, self.QB1, self.QA2, self.QB2 = 224, 228, 232, 236
        def quad(t, j, dst, sc):
            r = ACC + 16*t + 4*j
            return [f"v_mul_f32 v{r+i}, v{sc}, v{r+i}" for i in range(4)] + [f"v_cvt_pk_bf16_f32 v{dst}, v{r}, v{r+1}", f"v_cvt_pk_bf16_f32 v{dst+1}, v{r+2}, v{r+3}"]
        KA, KB, KS, VT = PK, PK+4, PK+8, 208
        L = [f"s_add_u32 s{T[4]}, s{SL}, s{S_KVO}", f"s_mul_i32 s{T[5]}, s{WV}, 2560", f"s_add_u32 s{T[5]}, s{T[5]}, s{T[4]}", f"s_mul_i32 s{T[6]}, s{WV}, 3328",
             f"s_add_u32 s{T[7]}, s{T[6]}, {VREG + 8*3328}", f"s_add_u32 s{T[6]}, s{T[6]}, s{T[4]}", f"s_add_u32 s{T[6]}, s{T[6]}, 10240",
             f"v_add_u32 v{PK+11}, s{T[7]}, v{VL16}", f"v_lshlrev_b32 v{PK+10}, 3, v{VL}", f"v_mov_b32 v{VT+10}, 0x3f803f80", f"v_mov_b32 v{VT+11}, 0x3f803f80",
             ('lg', f"ds_write_b64 v{VW1}, {v(VT+10,2)} offset:{5*32}", None), f"v_mul_f32 v{RQ}, {fhex(QSCALE)}, v{RS}"]
        for n, (t, j, ad, pos) in enumerate(((1, 1, VW2, 1), (1, 2, VW2, 2), (1, 3, VW12, 0), (2, 0, VW2, 7), (2, 1, VW2, 8))):
            L += quad(t, j, VT+2*n, RS) + [('lg', f"ds_write_b64 v{ad}, {v(VT+2*n,2)} offset:{pos*32}", 'vw')]
        L += quad(0, 0, KA, RS) + [('wl', 'vw')] + [('lg', f"ds_read_b128 {v(VC+4*n,4)}, v{PK+11} offset:{1024*n}", ('vc', n)) for n in range(4)] + quad(0, 1, KA+2, RS)
        L += [('vm', f"buffer_store_dwordx4 {v(KA,4)}, v{VL16}, {WS}, s{T[5]} offen {self.stkv}", 'out'), ('lg', f"ds_write_b128 v{VK}, {v(KA,4)} offset:{8*2560}", None)]
        st_v = lambda n: [('wl', ('vc', n)), ('vm', ("s_mov_b64 exec, 0xffff\n" if n == 3 else "") + f"buffer_store_dwordx4 {v(VC+4*n,4)}, v{VL16}, {WS}, s{T[6]} offen offset:{1024*n} {self.stkv}" + ("\ns_mov_b64 exec, -1" if n == 3 else ""), 'out')]
        L += st_v(0) + quad(0, 3, KB, RS) + st_v(1) + quad(1, 0, KB+2, RS) + st_v(2)
        L += [('vm', f"buffer_store_dwordx4 {v(KB,4)}, v{VL16}, {WS}, s{T[5]} offen offset:1024 {self.stkv}", 'out'), ('lg', f"ds_write_b128 v{VK}, {v(KB,4)} offset:{8*2560+1024}", None)]
        L += quad(0, 2, KS, RS) + st_v(3)
        L += [('vm', f"buffer_store_dwordx2 {v(KS,2)}, v{PK+10}, {WS}, s{T[5]} offen offset:2048 {self.stkv}", 'out'), ('lg', f"ds_write_b64 v{VKS}, {v(KS,2)} offset:{8*2560}", None)]
        L += quad(2, 3, self.QA1, RQ) + [f"v_mov_b32 v{q+k}, 0" for q in (self.QA2, self.QB2) for k in (2, 3)]
        self.run32(seq, [128 + 4*k for k in range(8)], sched, at_step, (L, 128, self.o.get("kvrate", 3)))
        while L: self.emit(L.pop(0))
        self.stamp('p1.main')
        A.wait_vm('out'); A.wait_lg0()
        self.qpack = [f"v_add_f32 v{ACC+48+k}, v{ACC+48+k}, v{self.ACB+k}" for k in range(16)]
        self.qpack += quad(3, 0, self.QA1+2, RQ) + quad(3, 1, self.QA2, RQ) + quad(3, 2, self.QB1, RQ) + quad(3, 3, self.QB1+2, RQ)

    def kv_sync(self):
        A = self.A; N = A.newlab("nw0"); E = A.newlab("syn"); N0 = A.newlab("nw0")
        A.vm = []; A.lg = []
        A("s_barrier")
        self.stamp('p1.drain')
        A(f"s_cmp_lg_u32 s{WV}, 0\ns_cbranch_scc1 {N0}\ns_add_u32 s3, s{LAY}, 1\ns_mov_b64 exec, 7\nv_mov_b32 v{VKT}, s3\ns_mov_b64 exec, 1\nbuffer_store_dword v{VKT}, v{VKF}, {WS}, 0 offen sc1\ns_mov_b64 exec, -1")
        A.lab(N0)
        for x in self.qpack: A(x)
        A(f"v_mov_b32 v{self.QB2}, v{self.QA2}\nv_mov_b32 v{self.QB2+1}, v{self.QA2+1}")
        A(f"s_mov_b32 exec_lo, 0\nv_mov_b32 v{self.QA2}, 0\nv_mov_b32 v{self.QA2+1}, 0\ns_mov_b32 exec_lo, -1\ns_mov_b32 exec_hi, 0\nv_mov_b32 v{self.QB2}, 0\nv_mov_b32 v{self.QB2+1}, 0\ns_mov_b32 exec_hi, -1")
        G = [(28, 29, 31, 32), (33, 34, 35, 99)]
        A(f"s_mul_i32 s100, s{WV}, 6144\ns_add_u32 s101, s100, 4096\ns_min_u32 s101, s101, 21504")
        for src in range(2):
            back = 2 - src; g1, l1, g2, l2 = G[src]
            A(f"s_add_u32 s3, s{SL}, s{S_KVO}\ns_sub_u32 s3, s3, {back*16*KV_WG}\ns_cmp_lt_u32 s{MB}, {back}\ns_cmov_b32 s3, {OOB}\ns_add_u32 s{g1}, s3, s100\ns_add_u32 s{g2}, s3, s101")
            ko = KREG + src*10240; vo = VREG + src*13312 - 10240
            A(f"s_cmp_lt_u32 s{WV}, 2"); sel(A, l1, ko, vo); A(f"s_cmp_lt_u32 s{WV}, 1"); sel(A, l2, ko, vo)
            A(f"s_add_u32 s{l1}, s{l1}, s100\ns_add_u32 s{l2}, s{l2}, s101")
        A(f"s_cmp_lg_u32 s{WV}, 0\ns_cbranch_scc1 {N}\ns_mov_b64 exec, 0x7f")
        self.spin(VKF, f'v{VKT}', 0x100)
        A(f"s_mov_b64 exec, -1")
        self.stamp('p1.poll')
        A(f"s_branch {E}")
        A.lab(N)
        self.rnd3(S_W3, 0, 0, 10)
        A.lab(E)
        A("s_barrier")
        for g1, l1, g2, l2 in G:
            for g, l, n in ((g1, l1, 4), (g2, l2, 2)):
                A(f"s_mov_b32 m0, s{l}")
                for i in range(n): A.vmem(f"buffer_load_dwordx4 v{VL16}, {WS}, s{g} offen offset:{1024*i} {self.ld} lds", 'halo')
        A.wait_vm('halo'); A("s_barrier")
        self.stamp('p2.go')

    def packed_signal(self):
        A = self.A; L = A.newlab("ps"); t = 60
        A(f"s_cmp_lg_u32 s{WV}, 0\ns_cbranch_scc1 {L}\ns_cmp_ge_u32 s{S_U}, 216\ns_cbranch_scc1 {L}")
        A(f"s_lshr_b32 s3, s{S_U}, 3\ns_lshl_b32 s3, s3, 7\ns_add_u32 s3, s3, {PK4}\nv_mov_b32 v{t}, s3\ns_and_b32 s3, s{S_U}, 3\ns_lshl_b32 s3, s3, 7\ns_add_u32 s3, s3, {PK5}\nv_writelane_b32 v{t}, s3, 1")
        A(f"s_mov_b64 exec, 3\nv_mov_b32 v{t+1}, 1\nbuffer_atomic_add v{t+1}, v{t}, {WS}, 0 offen sc1\ns_mov_b64 exec, -1")
        A.lab(L)

    def colsums(self, between, nb):
        A = self.A; L = A.newlab("x0"); L1 = A.newlab("x1"); t = VFREE
        A(f"s_lshl_b32 s{T[7]}, s{LAY}, 2\ns_sub_u32 s{T[7]}, s{RR}, s{T[7]}\ns_cmp_lg_u32 s{T[7]}, 1\ns_cbranch_scc1 {L1}")
        A(f"s_mul_i32 s{T[5]}, s{J}, 7168\ns_add_u32 s{T[5]}, s{T[5]}, {CSP4 - 4096}")
        A(f"s_lshl_b32 s{T[6]}, s{S_WI}, 7\nv_add_u32 v{t}, s{T[6]}, v{VL}")
        for r in range(2):
            A(f"v_add_u32 v{t+1}, {64*r}, v{t}\nv_lshrrev_b32 v{t+2}, 5, v{t+1}\nv_and_b32 v{t+3}, 31, v{t+1}\nv_lshlrev_b32 v{t+3}, 2, v{t+3}\nv_lshl_add_u32 v{t+2}, v{t+2}, 10, v{t+3}")
            for k in range(8): A(f"buffer_load_dword v{t+4+8*r+k}, v{t+2}, {WS}, s{T[5]} offen offset:{128*k} sc1")
        A.lab(L1)
        between()
        A(f"s_cmp_lg_u32 s{T[7]}, 1\ns_cbranch_scc1 {L}")
        A(self.csaddr(t, t+2, t+3, CSF4 - 4096) + f"\nv_add_u32 v{t+3}, 2048, v{t+2}\ns_waitcnt vmcnt({nb})")
        for k in range(1, 8): A(f"v_add_f32 v{t+4}, v{t+4}, v{t+4+k}\nv_add_f32 v{t+12}, v{t+12}, v{t+12+k}")
        for x in self.csfrag(t+4, 64, 68, t+2) + self.csfrag(t+12, 72, 68, t+3): A(x[1] if isinstance(x, tuple) else x)
        A("s_waitcnt lgkmcnt(0)")
        A.lab(L)

    def p2(self):
        A = self.A
        SB = [48, 64, 80]; PB = [96, 104]; PD = 112; OA = [128, 144]; KF = [162, 174]; VF = [184, 192, 200]; CB = [208, 240]
        Q1 = [self.QA1, self.QB1]; Q2 = [self.QA2, self.QB2]
        cz = self.o.get("czero", True)
        blocks = [(i, hd) for i in range(1, 8) for hd in range(2)] + [('m', 0), ('m', 1)]
        N = len(blocks)
        def kread(i, buf):
            k = KF[buf]
            return [('lg', f"ds_read_b64 {v(k,2)}, v{VKS} offset:{i*2560}", ('k', i)), ('lg', f"ds_read_b128 {v(k+2,4)}, v{VK} offset:{i*2560}", ('k', i)),
                    ('lg', f"ds_read_b128 {v(k+6,4)}, v{VK} offset:{i*2560+1024}", ('k', i))]
        def vread(i, hd, buf):
            return [('lg', f"ds_read_b64_tr_b16 {v(VF[buf]+4*aa+2*p,2)}, v{VV} offset:{i*3328 + (4*aa+2*p)*416 + 192*hd}", ('v', i, hd)) for aa in range(2) for p in range(2)]
        kbuf = {i: i % 2 for i in range(1, 8)}; kbuf[0] = 0; kbuf[8] = 1
        def smf(i, hd, sb):
            k = KF[kbuf[i]]; c = '0' if cz else v(CB[hd], 16)
            return [('mf', f"v_mfma_f32_32x32x16_bf16 {v(sb,16)}, {v(k+2+4*hd,4)}, {v(Q1[hd],4)}, {c}", ('k', i)),
                    ('mf', f"v_mfma_f32_32x32x16_bf16 {v(sb,16)}, {v(k,4)}, {v(Q2[hd],4)}, {v(sb,16)}", None)]
        started = [False, False]
        def pvf(i, hd, pb, vb):
            L = []
            for aa in range(2):
                c = v(OA[hd], 16) if started[hd] else '0'; started[hd] = True
                L.append(('mf', f"v_mfma_f32_32x32x16_bf16 {v(OA[hd],16)}, {v(VF[vb]+4*aa,4)}, {v(pb+4*aa,4)}, {c}", ('v', i, hd) if aa == 0 else None))
            return L
        def emit(x):
            if isinstance(x, str): A(x)
            elif x[0] == 'vm': A.vmem(x[1], x[2])
            elif x[0] == 'lg': A.lds(x[1], x[2])
            else:
                if x[2] is not None: A.wait_lg(x[2])
                A(x[1])
        def weave(mfs, fill):
            cost = lambda x: 8 if isinstance(x, str) and x.startswith("v_exp") else 4
            tot = sum(map(cost, fill)); acc = 0; k = 0
            for x in fill:
                while k < len(mfs) and acc >= tot * k / len(mfs): emit(mfs[k]); k += 1
                emit(x); acc += cost(x)
            while k < len(mfs): emit(mfs[k]); k += 1
        sbuf = lambda n: SB[n % 2]
        for x in kread(1, kbuf[1]): emit(x)
        for x in smf(1, 0, sbuf(0)): emit(x)
        for n in range(N + 1):
            mfs = []; fill = []
            if n + 1 < N:
                i, hd = blocks[n+1]
                if i == 'm': mfs += smf(0, hd, sbuf(n+1)) + smf(8, hd, SB[2])
                else: mfs += smf(i, hd, sbuf(n+1))
            pv = []
            if n >= 1:
                i, hd = blocks[n-1]
                if i == 'm': pv = pvf(0, hd, PB[(n-1) % 2], (n-1) % 2) + pvf(8, hd, PD, 2)
                else: pv = pvf(i, hd, PB[(n-1) % 2], (n-1) % 2)
            if n < N:
                i, hd = blocks[n]
                if i != 'm' and hd == 0:
                    if i < 7: fill += kread(i+1, kbuf[i+1])
                    else: fill += kread(0, kbuf[0])
                sb = sbuf(n)
                if i == 'm':
                    pre = [f"v_cndmask_b32 v{sb+r}, v{sb+r}, v{SB[2]+r}, s[{MASK+2*r}:{MASK+2*r+1}]" for r in range(16)]
                    for x in pre: emit(x)
                    for x in pv: emit(x)
                    pv = []
                    fill += vread(0, hd, n % 2) + vread(8, hd, 2)
                else:
                    fill += vread(i, hd, n % 2)
                ex = []
                for r in range(16):
                    ex.append(f"v_exp_f32 v{sb+r}, v{sb+r}")
                    if r >= 3 and r % 2 == 1: ex.append(f"v_cvt_pk_bf16_f32 v{PB[n%2]+(r-3)//2}, v{sb+r-3}, v{sb+r-2}")
                ex.append(f"v_cvt_pk_bf16_f32 v{PB[n%2]+7}, v{sb+14}, v{sb+15}")
                if i == 'm':
                    for rr in range(8):
                        ex.append(f"v_and_b32 v{PD+rr}, v{PM+rr}, v{PB[n%2]+rr}")
                        ex.append(f"v_bfi_b32 v{PB[n%2]+rr}, v{PM+rr}, 0, v{PB[n%2]+rr}")
                fill += ex
                if blocks[n] == (7, 1):
                    for x in mfs[:2]: emit(x)
                    for x in kread(8, kbuf[8]): emit(x)
                    mfs = pv + mfs[2:]; pv = []
            weave(mfs + pv, fill) if fill else [emit(x) for x in mfs + pv]
        A(f"v_min_f32 v48, v{OA[0]+12}, v{OA[1]}\nv_max_f32 v49, v{OA[0]+12}, v{OA[1]}\nv_cmp_u_f32 s[36:37], v{OA[0]+12}, v{OA[1]}")
        A(f"v_cmp_gt_f32 vcc, {fhex(2.0**-60)}, v48\ns_or_b64 s[36:37], s[36:37], vcc\nv_cmp_lt_f32 vcc, {fhex(2.0**60)}, v49\ns_or_b64 s[36:37], s[36:37], vcc\ns_cbranch_scc1 main_slow")
        A.lab("main_slow_back")
        self.slow_attention(OA, Q1, Q2)
        A("s_barrier")
        self.stamp('p2.main')
        ra, rb = 48, 49
        A(f"v_rcp_f32 v{ra}, v{OA[0]+12}\nv_rcp_f32 v{rb}, v{OA[1]}")
        A(f"s_nop 0")
        def pk(dst, r, rs):
            for i in range(4): A(f"v_mul_f32 v{r+i}, v{rs}, v{r+i}")
            A(f"v_cvt_pk_bf16_f32 v{dst}, v{r}, v{r+1}\nv_cvt_pk_bf16_f32 v{dst+1}, v{r+2}, v{r+3}")
        pk(52, OA[0]+4, ra); pk(54, OA[0]+8, ra)
        A.vmem(f"buffer_store_dwordx4 {v(52,4)}, v{VO1}, {WS}, s{SL} offen {self.st}")
        pk(56, OA[1]+4, rb); pk(58, OA[1]+8, rb)
        A.vmem(f"buffer_store_dwordx4 {v(56,4)}, v{VO1}, {WS}, s{SL} offen offset:768 {self.st}")
        pk(60, OA[0], ra); pk(62, OA[1]+12, rb)
        A("s_mov_b32 exec_lo, 0")
        A.vmem(f"buffer_store_dwordx4 {v(60,4)}, v{VO3}, {WS}, s{SL} offen offset:512 {self.st}", 'out')
        A("s_mov_b32 exec_lo, -1")

    def slow_attention(self, OA, Q1, Q2):
        B = Asm(); B.uid = 9000
        S_, P_, K_, V_, C_, M_, AK, AKS, AV, NI = 48, 96, 162, 184, 208, 64, 65, 66, 67, 68
        I, I0 = T[0], T[1]
        B.lab("main_slow")
        B(f"s_lshl_b32 s{I0}, s{MB}, 2\ns_add_u32 s{I0}, s{I0}, s{WV}\ns_min_u32 s{I0}, s{I0}, 8\ns_sub_u32 s{I0}, 8, s{I0}\nv_mov_b32 v{NI}, 0xff800000")
        def scores(hd, c, tag):
            B(f"s_mul_i32 s3, s{I}, 2560\nv_add_u32 v{AK}, s3, v{VK}\nv_add_u32 v{AKS}, s3, v{VKS}\ns_mul_i32 s3, s{I}, 3328\nv_add_u32 v{AV}, s3, v{VV}")
            B(f"ds_read_b64 {v(K_,2)}, v{AKS}\nds_read_b128 {v(K_+2,4)}, v{AK}\nds_read_b128 {v(K_+6,4)}, v{AK} offset:1024\ns_waitcnt lgkmcnt(0)")
            B(f"v_mfma_f32_32x32x16_bf16 {v(S_,16)}, {v(K_+2+4*hd,4)}, {v(Q1[hd],4)}, {c}\nv_mfma_f32_32x32x16_bf16 {v(S_,16)}, {v(K_,4)}, {v(Q2[hd],4)}, {v(S_,16)}\ns_nop 15")
            B(f"s_cmp_lg_u32 s{I}, 0\ns_cbranch_scc1 {tag}_a")
            for r in range(16): B(f"v_cndmask_b32 v{S_+r}, v{S_+r}, v{NI}, s[{MASK+2*r}:{MASK+2*r+1}]")
            B.lab(f"{tag}_a")
            B(f"s_cmp_lg_u32 s{I}, 8\ns_cbranch_scc1 {tag}_b")
            for r in range(16): B(f"v_cndmask_b32 v{S_+r}, v{NI}, v{S_+r}, s[{MASK+2*r}:{MASK+2*r+1}]")
            B.lab(f"{tag}_b")
        for hd in range(2):
            B(f"v_mov_b32 v{M_}, v{NI}\ns_mov_b32 s{I}, s{I0}")
            B.lab(f"main_max{hd}")
            scores(hd, '0', f"main_m{hd}")
            for r in range(0, 16, 2): B(f"v_max3_f32 v{M_}, v{M_}, v{S_+r}, v{S_+r+1}")
            B(f"s_add_u32 s{I}, s{I}, 1\ns_cmp_le_u32 s{I}, 8\ns_cbranch_scc1 main_max{hd}")
            B(f"v_mov_b32 v{M_+5}, v{M_}\nv_permlane32_swap_b32 v{M_}, v{M_+5}\nv_max_f32 v{M_}, v{M_}, v{M_+5}")
            for r in range(16): B(f"v_sub_f32 v{C_+r}, 0, v{M_}\nv_mov_b32 v{OA[hd]+r}, 0")
            B(f"s_mov_b32 s{I}, s{I0}\ns_nop 1")
            B.lab(f"main_sum{hd}")
            scores(hd, v(C_, 16), f"main_s{hd}")
            for aa in range(2):
                for p in range(2): B(f"ds_read_b64_tr_b16 {v(V_+4*aa+2*p,2)}, v{AV} offset:{(4*aa+2*p)*416 + 192*hd}")
            for r in range(16): B(f"v_exp_f32 v{S_+r}, v{S_+r}")
            for r in range(8): B(f"v_cvt_pk_bf16_f32 v{P_+r}, v{S_+2*r}, v{S_+2*r+1}")
            B("s_waitcnt lgkmcnt(0)")
            for aa in range(2): B(f"v_mfma_f32_32x32x16_bf16 {v(OA[hd],16)}, {v(V_+4*aa,4)}, {v(P_+4*aa,4)}, {v(OA[hd],16)}")
            B(f"s_nop 7\ns_add_u32 s{I}, s{I}, 1\ns_cmp_le_u32 s{I}, 8\ns_cbranch_scc1 main_sum{hd}")
        B("s_nop 15\ns_branch main_slow_back")
        self.rare.append(B.render())

    def proj_setup(self, khoff):
        A = self.A; ACC, B0 = 64, 136
        A(f"s_mul_i32 s{T[7]}, s{KH}, {khoff}")
        for k in range(3): A(f"v_add_u32 v{B0+k}, s{T[7]}, v{[VL16, VB1, VB2][k]}")
        for k in range(10):
            A(f"v_lshlrev_b32 v{ACC+2*k}, 16, v{RES+k}\nv_and_b32 v{ACC+2*k+1}, 0xffff0000, v{RES+k}")

    def proj_loop(self, nb, wl, sched, hook, t0=0, nreg=0):
        A = self.A; ACC, WFB, B0 = 64, [112, 140], 136
        bases = [B0, B0+1, B0+2]
        for t in range(5): A.lds(f"ds_read_b128 {v(WFB[0]+4*t,4)}, {self.ldsaddr(wl(0) + 1024*t, bases)}", ('f', 0))
        fill = []
        for b in range(nb):
            hook(b, fill)
            fill += sched[t0 + b]
            self.need(('a5', b), fill)
            A.wait_lg(('f', b))
            for t in range(5):
                for u in range(2):
                    d = ACC + 20*u + 4*t
                    wop = v(WFB[b&1]+4*t, 4) if b < nb - nreg else self.wreg(5*(b - nb + nreg) + t)
                    A(f"v_mfma_f32_16x16x32_bf16 {v(d,4)}, {wop}, {a(8*(b % 20)+4*u,4)}, {'0' if (b == 0 and u == 1) else v(d,4)}")
                    k = 2*t + u
                    if k < 5 and b < nb - 1 - nreg: A.lds(f"ds_read_b128 {v(WFB[(b+1)&1]+4*k,4)}, {self.ldsaddr(wl(b+1) + 1024*k, bases)}", ('f', b+1))
                    if k >= 4: self.drain(fill, 2)
        while fill: self.emit(fill.pop(0))

    def wreg(self, f):
        return a(160 + 4*f, 4) if f < 24 else v(236, 4)

    def wreg_load(self):
        A = self.A; nreg = self.o.get("nreg5", 3)
        for b in range(27 - nreg, 27):
            A(f"s_mul_i32 s{T[6]}, s{KH}, 10240\ns_add_u32 s{T[6]}, s{T[6]}, s{S_W5}\ns_add_u32 s{T[6]}, s{T[6]}, {(4*(b >> 1) + (b & 1))*5120}\ns_add_u32 s{T[7]}, s{T[6]}, 4096")
            for t in range(5): A(f"buffer_load_dwordx4 {self.wreg(5*(b - 27 + nreg) + t)}, v{VL16}, {WS}, s{T[6 + t//4]} offen offset:{1024*(t & 3)}")

    def p3(self):
        A = self.A; o = self.o; SA0, SA1 = T[4], T[5]
        for sa, m in ((SA0, S_A3), (SA1, S_A3B)):
            A(f"s_mul_i32 s{sa}, s{m}, {20*1024}\ns_add_u32 s{sa}, s{sa}, s{SL}\ns_mul_i32 s{T[7]}, s{KH}, {10*1024}\ns_add_u32 s{sa}, s{sa}, s{T[7]}\ns_add_u32 s{sa}, s{sa}, {OO}")
        def aload(b):
            L = []
            if b and b % 4 == 0: L += [f"s_add_u32 s{SA0}, s{SA0}, 4096", f"s_add_u32 s{SA1}, s{SA1}, 4096"]
            for u, sa in enumerate((SA0, SA1)):
                L.append(('vm', f"buffer_load_dwordx4 {a(8*b+4*u,4)}, v{VL16}, {WS}, s{sa} offen offset:{(b&3)*1024} {self.ld}", ('a5', b)))
            return L
        up = o.get("up3", 6)
        for b in range(up): [self.emit(x) for x in aload(b)]
        early = o.get("early4", 2)
        sched = self.edf([(0, b, aload(b)) for b in range(up, 10)] + [(4, 20 + c, self.rnd(S_W4, c*16384, c*16384, 4, 'w4')) for c in range(early)], 10, o.get("r3", 3.0))
        self.proj_setup(5120)
        A.wait_vm(('a5', 0)); A("s_barrier")
        self.stamp('p3.go')
        self.proj_loop(10, lds3, sched, lambda b, fill: A("s_barrier") if b == 4 and early else None)
        self.stamp('p3.main')
        self.proj_epilogue(3, XCH3)

    def flag_check(self, reg, code):
        A = self.A; L = A.newlab("fc")
        A(f"s_mov_b64 exec, 1\nv_cmp_gt_u32 vcc, s{TGT}, v{reg}\ns_cbranch_vccz {L}")
        self.spin(VCNT, f"s{TGT}", code)
        A.lab(L); A("s_mov_b64 exec, -1")

    def signal(self):
        A = self.A; L = A.newlab("sg")
        A(f"s_add_u32 s{TGT}, s{TGT}, 16\ns_cmp_lg_u32 s{WV}, 0\ns_cbranch_scc1 {L}\ns_mov_b64 exec, 1\nv_mov_b32 v252, 1\nbuffer_atomic_add v252, v{VCNT}, {WS}, 0 offen sc1\ns_mov_b64 exec, -1")
        A.lab(L)

    def ffn(self):
        A = self.A; o = self.o
        ACC, STD, MU, RS, AP, PK = 64, 208, 216, 217, 220, 224
        WFS = [176 + 4*k for k in range(8)]
        SA, SA0, SA1, SH1, SH1B, SH2 = T[4], T[4], T[5], T[0], T[1], T[3]
        nreg = o.get("nreg5", 3)
        nc5 = (27 - nreg + 1) // 2
        sizes = [4]*10 + [3]*10 + [5]*nc5
        addr = []; p = 0
        for kb in sizes:
            if p + kb*4096 > LDS_MISC: p = 0
            addr.append(p); p += kb*4096
        seq = [(k, ACC + 16*t, addr[k >> 2] + (k & 3)*4096 + 1024*t, a(4*k, 4), k == 0) for k in range(40) for t in range(4)]
        seq += [(39, ACC + 16*t, CSF4 + 1024*t, v(AP, 4), False) for t in range(4)]
        seq += [(40 + k, ACC + 64 + 16*t, addr[10 + (k >> 2)] + (k & 3)*3072 + 1024*t, a(4*k, 4), k == 0) for k in range(40) for t in range(3)]
        seq += [(79, ACC + 64 + 16*t, CSF4 + 4096 + 1024*t, v(AP, 4), False) for t in range(3)]
        vis = lambda nf: seq[max(nf - len(WFS), 0)][0]
        npre = o.get("npre4", 6)
        ch = [(S_W4, c*16384, 4, addr[c], vis(16*c), 4*c + 3, c < npre) for c in range(10)]
        ch += [(S_W4, 163840 + c*12288, 3, addr[10 + c], vis(164 + 12*c), 43 + 4*c, False) for c in range(10)]
        ch += [(S_W5, c*20480, 5, addr[20 + c], max(80, 79 + 2*c), 81 + 2*c, False) for c in range(nc5)]
        bars = list(range(1, 80, 4)) + [80] + list(range(81, 107, 2))
        jobs, valid, used = self.plan(ch, bars)
        lastbar = max(b for b in used)
        live = [(c[3], c[3] + 20480) for c in ch[20:] if c[5] >= lastbar]
        xch = [x for x in (0, 57344, 77824, 98304, 118784, 126976) if all(x + 20480 <= lo or hi <= x for lo, hi in live)][0]
        wl5 = lambda b: addr[20 + (b >> 1)] + (b & 1)*5120
        A(f"s_add_u32 s{SA}, s{SL}, s{S_A1}\ns_add_u32 s{SA}, s{SA}, {X1}")
        self.stats_load(ST3, STD)
        def aload(st_):
            L = [f"s_add_u32 s{SA}, s{SA}, 4096"] if st_ and st_ % 4 == 0 else []
            return L + [('vm', f"buffer_load_dwordx4 {a(4*st_,4)}, v{VL16}, {WS}, s{SA} offen offset:{(st_ & 3)*1024} {self.ld}", ('a', st_))]
        def aload5(b):
            L = []
            if b == 0:
                for sa, m in ((SA0, S_A3), (SA1, S_A3B)):
                    L.append(f"s_mul_i32 s{sa}, s{m}, {54*1024}\ns_add_u32 s{sa}, s{sa}, s{SL}\ns_lshl_b32 s3, s{KH}, 10\ns_add_u32 s{sa}, s{sa}, s3\ns_add_u32 s{sa}, s{sa}, {HH}")
            elif b % 2 == 0: L += [f"s_add_u32 s{SA0}, s{SA0}, 4096", f"s_add_u32 s{SA1}, s{SA1}, 4096"]
            for u, sa in enumerate((SA0, SA1)):
                L.append(('vm', f"buffer_load_dwordx4 {a(8*(b % 20)+4*u,4)}, v{VL16}, {WS}, s{sa} offen offset:{(b&1)*2048} {self.ld}", ('a5', b)))
            return L
        up = o.get("up4", 10); chk1 = o.get("chk1", 75); chk2 = o.get("chk2", 10)
        for k in range(up): [self.emit(x) for x in aload(k)]
        jobs += [(0, k, aload(k)) for k in range(up, 40)]
        jobs += [(chk1 if b < 15 else max(80 + chk2, 80 + b - 19), 79.6 + (b >= o.get("up5", 5))*(b - 0.6), aload5(b)) for b in range(27)]
        r4a, r4b, r4c, r5 = o.get("r4a", 1.8), o.get("r4b", 1.4), o.get("r4c", 2.5), o.get("r5", 4.0)
        sched = self.edf(jobs, 107, lambda k: r4a if k < 40 else (0 if k < o.get("quiet4", 50) else (r4b if k < chk1 else (r4c if k < 80 else r5))))
        assert not any(isinstance(x, tuple) and x[2] in [('a5', b) for b in range(chk1 - 40 >> 1, 27)] for k in range(80) for x in sched[k])
        if o.get("verbose"): print("addr", addr, "xch", xch, "valid", valid, {k: [x[2] for x in L if isinstance(x, tuple)] for k, L in sched.items()})
        A(f"s_add_u32 s{SH1}, s{SL}, s{S_H}\ns_add_u32 s{SH1}, s{SH1}, {HH}\ns_mul_i32 s{SH2}, s{J}, 1536\ns_add_u32 s{SH2}, s{SH2}, s{SH1}\ns_add_u32 s{SH2}, s{SH2}, {63*512}")
        A(f"s_lshl_b32 s3, s{J}, 11\ns_add_u32 s{SH1}, s{SH1}, s3\ns_mov_b32 s{SH1B}, s{SH1}\ns_cmp_eq_u32 s{J}, 15\ns_cmov_b32 s{SH1B}, {OOB}\ns_cmov_b32 s{SH2}, {OOB}")
        sched[28] += self.stats_finish(STD, MU, RS) + [f"v_mul_f32 v{RS}, v{RS}, v{RS}"] + self.split3(MU, AP, STD)
        def epi(t0, t1, tag):
            body = []
            for t in range(t0, t1):
                r = ACC + 16*t; pk = PK + 4*(t % 3)
                for hf in range(2):
                    g = r + 8*hf
                    for i in range(4): body += [f"v_max_f32 v{g+i}, 0, v{g+i}", f"v_mul_f32 v{g+4+i}, v{RS}, v{g+4+i}"]
                    body += [f"v_mul_f32 v{g+i}, v{g+i}, v{g+4+i}" for i in range(4)]
                    body += [f"v_cvt_pk_bf16_f32 v{pk+2*hf}, v{g}, v{g+1}", f"v_cvt_pk_bf16_f32 v{pk+2*hf+1}, v{g+2}, v{g+3}"]
                sb, im = (SH1 if t < 3 else SH1B, 512*t) if t < 4 else (SH2, 512*(t-4))
                body.append(('vm', f"buffer_store_dwordx4 {v(pk,4)}, v{VH}, {WS}, s{sb} offen offset:{im} {self.st}", tag))
            return body
        epi1 = epi(0, 4, 'h1')
        preload = ('vm', f"s_mov_b64 exec, 1\nbuffer_load_dword v253, v{VCNT}, {WS}, 0 offen sc1\ns_mov_b64 exec, -1", 'fl')
        sig1 = o.get("sig1", 61)
        A.wait_vm(('a', 0)); A("s_barrier")
        self.stamp('p4.go')
        def at_step(st_, fill):
            if st_ in used or st_ == sig1:
                for tag in valid.get(st_, []): self.need(tag, fill)
                if st_ == sig1:
                    assert not epi1
                    A.wait_vm('h1')
                A("s_barrier")
                if st_ == sig1: self.signal()
                if o.get("in4") and st_ > 40: self.stamp(f'g.{st_}')
            if st_ == 40: self.stamp('p4.g1')
            if st_ == chk1 - o.get("fl1", 5): fill.insert(0, preload)
            if st_ == chk1:
                self.need('fl', fill); self.flag_check(253, 0x400); self.stamp('p4.chk')
            fill += sched[st_]
            if st_ < 40: self.need(('a', st_), fill)
        self.run32(seq, WFS, sched, at_step, (epi1, 165, o.get("epirate", 4)))
        self.stamp('p4.main')
        for x in epi(4, 7, 'h2'): self.emit(x)
        self.stamp('p4.epi')
        self.proj_setup(10240)
        for tag in valid.get(80, []): A.wait_vm(tag)
        A.wait_vm(('a5', 0)); A("s_barrier")
        self.stamp('p5.go')
        sig2 = o.get("sig2", 3)
        def hook(b, fill):
            if 80 + b in used and b or b == sig2:
                for tag in valid.get(80 + b, []): self.need(tag, fill)
                if b == sig2: A.wait_vm('h2')
                A("s_barrier")
                if b == sig2: self.signal()
            if b == chk2 - 2: fill.insert(0, preload)
            if o.get("in5") and b in (4, chk2, 15, 20): self.stamp(f'p5.b{b}')
            if b == chk2:
                self.need('fl', fill); self.flag_check(253, 0x480)
                if o.get("in5"): self.stamp('p5.chk')
        self.proj_loop(27, wl5, sched, hook, 80, nreg)
        self.stamp('p5.main')
        self.proj_epilogue(5, xch)

    def proj_epilogue(self, which, xo):
        A = self.A; o = self.o; ACC, WF, B0 = 64, 112, 136; ntail = 0
        fill = []
        if which == 3:
            e0 = o.get("early4", 2) * 16; e1 = e0 + o.get("post4", 33)
            n3 = -(-(o.get("npre4", 6)*16 - e1) // 3)
            assert e1*1024 <= XCH3 and (e1 + 3*n3)*1024 <= LDS_MISC
            self.post = (S_W4, e0*1024, e0*1024, e1 - e0)
            self.pre = lambda: self.colsums(lambda: self.rnd3(S_W4, e1*1024, e1*1024, n3), n3)
        else:
            self.pre1 = o.get("pre1", 6)
            assert xo + 20480 <= 20480 or xo >= 20480 + 36864
            self.post = (S_W1, 0, 20480, 36)
            self.pre = lambda: self.rnd3(S_W1, 36864, 20480 + 36864, 4*(self.pre1 - 3))
        A(f"v_add_u32 v{B0}, {xo}, v{VXW}\nv_add_u32 v{B0+1}, {xo}, v{VXR}")
        for t in range(5): A.lds(f"ds_write_b128 v{B0}, {v(ACC+20+4*t,4)} offset:{1024*t}")
        A.wait_lg0(); A("s_barrier")
        for t in range(5): A.lds(f"ds_read_b128 {v(ACC+20+4*t,4)}, v{B0+1} offset:{1024*t}", ('x', t))
        if which == 5:
            A(f"s_cmp_lg_u32 s{LAY}, 0\ns_cbranch_scc1 main_final")
            self.fin_state = (list(A.lg), ACC); self.fin_x = xo
        body = []
        for t in range(5):
            body.append(('wl', ('x', t)))
            body += [f"v_pk_add_f32 {v(ACC+4*t+i,2)}, {v(ACC+4*t+i,2)}, {v(ACC+20+4*t+i,2)}" for i in (0, 2)]
            body += [f"v_cvt_pk_bf16_f32 v{RES+2*t}, v{ACC+4*t}, v{ACC+4*t+1}", f"v_cvt_pk_bf16_f32 v{RES+2*t+1}, v{ACC+4*t+2}, v{ACC+4*t+3}"]
        xoff = X1 if which == 3 else LS + XA
        soff = ST3 if which == 3 else LS + STA
        A(f"s_add_u32 s{T[4]}, s{SL}, s{S_X}\ns_add_u32 s{T[4]}, s{T[4]}, {xoff}\ns_add_u32 s{T[5]}, s{T[4]}, 4096\ns_add_u32 s{T[6]}, s{SL}, s{S_STX}\ns_add_u32 s{T[6]}, s{T[6]}, {soff}")
        body.append(('vm', f"buffer_store_dwordx4 {v(RES,4)}, v{VX}, {WS}, s{T[4]} offen {self.st}", 'out'))
        body.append(('vm', f"buffer_store_dwordx4 {v(RES+4,4)}, v{VX}, {WS}, s{T[4]} offen offset:2048 {self.st}", 'out'))
        t4 = WF
        body += [f"v_mov_b32 v{t4+k}, v{RES+8+(k&1)}" for k in range(6)]
        body += [f"v_permlane32_swap_b32 v{t4+4}, v{t4+2}", f"v_permlane32_swap_b32 v{t4+5}, v{t4+3}"]
        body.append(('vm', f"s_mov_b32 exec_hi, 0\nbuffer_store_dwordx4 {v(t4,4)}, v{VX}, {WS}, s{T[5]} offen {self.st}\ns_mov_b32 exec_hi, -1", 'out'))
        s0, s1 = WF + 8, WF + 9
        p0, p1 = WF + 12, WF + 14
        body += [f"v_pk_add_f32 {v(p0,2)}, {v(ACC,2)}, {v(ACC+2,2)}", f"v_pk_mul_f32 {v(p1,2)}, {v(ACC,2)}, {v(ACC,2)}", f"v_pk_fma_f32 {v(p1,2)}, {v(ACC+2,2)}, {v(ACC+2,2)}, {v(p1,2)}"]
        for i in range(4, 20, 2): body += [f"v_pk_add_f32 {v(p0,2)}, {v(p0,2)}, {v(ACC+i,2)}", f"v_pk_fma_f32 {v(p1,2)}, {v(ACC+i,2)}, {v(ACC+i,2)}, {v(p1,2)}"]
        body += [f"v_add_f32 v{s0}, v{p0}, v{p0+1}", f"v_add_f32 v{s1}, v{p1}, v{p1+1}"]
        for sw in ("v_permlane16_swap_b32", "v_permlane32_swap_b32"):
            body += [f"v_mov_b32 v{s0+2}, v{s0}", f"v_mov_b32 v{s0+3}, v{s1}", f"{sw} v{s0}, v{s0+2}", f"{sw} v{s1}, v{s0+3}", f"v_add_f32 v{s0}, v{s0}, v{s0+2}", f"v_add_f32 v{s1}, v{s1}, v{s0+3}"]
        self.mix(body, fill, 7)
        while fill: self.emit(fill.pop(0))
        A("s_mov_b64 exec, 0xffff")
        A.vmem(f"buffer_store_dwordx2 {v(s0,2)}, v{VSX}, {WS}, s{T[6]} offen {self.st}", 'out')
        A("s_mov_b64 exec, -1")

    def final(self):
        A = self.A; t = VFREE
        A.lab("main_final")
        A.lg, ACC = self.fin_state
        xo = self.fin_x
        A(f"s_xor_b32 s3, s{WV}, 1\ns_mul_i32 s3, s3, 5120\ns_add_u32 s3, s3, {xo}\nv_and_b32 v{t}, 15, v{VL}\nv_mul_u32_u24 v{t}, 176, v{t}\nv_lshrrev_b32 v{t+1}, 4, v{VL}\nv_lshl_add_u32 v{t}, v{t+1}, 3, v{t}\nv_add_u32 v{t}, s3, v{t}")
        for n in range(3):
            A(f"v_add_u32 v{t+1}, {64*n}, v{VL}\nv_mul_u32_u24 v{t+2}, 6554, v{t+1}\nv_lshrrev_b32 v{t+2}, 16, v{t+2}\nv_mul_u32_u24 v{t+3}, 10, v{t+2}\nv_sub_u32 v{t+3}, v{t+1}, v{t+3}\nv_lshlrev_b32 v{t+3}, 4, v{t+3}")
            A(f"v_mad_u32_u24 v{t+4+n}, v{t+2}, s3, v{t+3}".replace("s3", f"v{t+11}") if False else f"v_mul_u32_u24 v{t+4+n}, 176, v{t+2}\nv_add3_u32 v{t+4+n}, v{t+4+n}, v{t+3}, s3\nv_mul_u32_u24 v{t+8+n}, 1280, v{t+2}\nv_add_u32 v{t+8+n}, v{t+8+n}, v{t+3}")
        A(f"s_lshl_b32 s{T[4]}, s{S_A3}, 4\ns_mul_i32 s{T[4]}, s{T[4]}, 1280\ns_mul_i32 s{T[5]}, s{CT}, 160\ns_add_u32 s{T[4]}, s{T[4]}, s{T[5]}")
        A.wait_lg0()
        for k in range(5):
            for i in (0, 2): A(f"v_pk_add_f32 {v(ACC+4*k+i,2)}, {v(ACC+4*k+i,2)}, {v(ACC+20+4*k+i,2)}")
            A(f"v_cvt_pk_bf16_f32 v{RES+2*k}, v{ACC+4*k}, v{ACC+4*k+1}\nv_cvt_pk_bf16_f32 v{RES+2*k+1}, v{ACC+4*k+2}, v{ACC+4*k+3}")
            A(f"ds_write_b64 v{t}, {v(RES+2*k,2)} offset:{32*k}")
        A("s_waitcnt lgkmcnt(0)")
        for n in range(3): A(f"ds_read_b128 {v(112+4*n,4)}, v{t+4+n}")
        for n in range(3):
            A(f"s_waitcnt lgkmcnt({2-n})")
            if n == 2: A("s_mov_b32 exec_hi, 0")
            A(f"buffer_store_dwordx4 {v(112+4*n,4)}, v{t+8+n}, {OS}, s{T[4]} offen {self.o.get('stout', '')}")
        A("s_mov_b32 exec_hi, -1")

    def gen(self):
        A = self.A
        o_big = False
        def stop(name):
            if self.stop == name: A.wait_all(); A("s_branch main_done")
        self.setup()
        self.stamp('start')
        self.p1_first()
        A.lab("main_layer")
        self.kv_sync(); stop("p1")
        self.p2()
        self.cluster_sync((S_W3, 61440, lds3(6), 40), None, 0x200, self.wreg_load if self.o.get('nreg5', 3) else None); stop("p2")
        self.p3()
        self.cluster_sync(self.post, self.pre, 0x300); stop("p3")
        self.ffn()
        self.cluster_sync(self.post, self.pre, 0x500); stop("p5")
        A(f"s_mov_b32 s{LAY}, 1\ns_add_u32 s{SL}, s{SL}, {LS}\ns_mov_b32 s{S_PB}, {64 if o_big else 32}")
        self.stamp('start')
        self.p1()
        A("s_branch main_layer")
        self.final()
        A.lab("main_done")
        if self.prof:
            A.wait_all()
            if self.stop: A(f"s_mov_b32 s{S_PB}, 32")
            self.stamp('end')
            A(f"s_cmp_lg_u32 s{WV}, 0\ns_cbranch_scc1 main_end\ns_lshl_b32 s3, s2, 8\ns_add_u32 s3, s3, {PROF}\nv_lshlrev_b32 v{VFREE}, 2, v{VL}")
            A(f"buffer_store_dword v{VPROF}, v{VFREE}, {WS}, s3 offen\ns_add_u32 s3, s3, 0x10000\nbuffer_store_dword v{VPROF+1}, v{VFREE}, {WS}, s3 offen")
        if self.o.get("diagpad"):
            A(f"v_readlane_b32 s3, v{VPROF}, 0")
            A.lab("main_pad")
            A(f"s_memrealtime s[38:39]\ns_waitcnt lgkmcnt(0)\ns_sub_u32 s38, s38, s3\ns_cmp_lt_u32 s38, {self.o['diagpad']}\ns_cbranch_scc1 main_pad")
        if self.o.get("dbgprof"):
            t = VFREE; src = VPROF + (self.o["dbgprof"] - 1)
            A(f"s_cmp_lg_u32 s2, {self.o.get('dbgwg', 100)}\ns_cbranch_scc1 main_end\nv_readlane_b32 s3, v{src}, 0\nv_subrev_u32 v{t}, s3, v{src}")
            A(f"v_lshrrev_b32 v{t+1}, 2, v{VL}\nv_and_b32 v{t+1}, 8, v{t+1}\nv_and_b32 v{t+2}, 7, v{VL}\nv_add_u32 v{t+1}, v{t+1}, v{t+2}\nv_lshlrev_b32 v{t+1}, 2, v{t+1}")
            A(f"s_mov_b32 exec_lo, 0xfe\ns_mov_b32 exec_hi, 0xff\nbuffer_store_dword v{t}, v{t+1}, {DS_}, 0 offen")
        A.lab("main_end")
        A("s_endpgm")
        for blk in self.rare: A(blk)
        A.lab("main_last")

def gen_main(A, opts):
    m = Main(A, opts); m.gen()
    assert len(m.names) <= 32, len(m.names)
    if m.names: A.L.insert(0, Ins(f"; stamps {opts.get('mx', 256)} " + " ".join(m.names)))
```

```python
from asmlib import *
from layout import *
from pack import srd, sel, OOB, frag32_steps
import math

WS = "s[4:7]"; XS = "s[8:11]"; OS = "s[12:15]"; DS_ = "s[16:19]"
MB, J, WV, LAY, RH, CT, RR, KH = 20, 21, 22, 23, 24, 25, 26, 27
SL = 40
TGT = 41
S_A1 = 42
S_ST1 = 43
S_KVO = 44
S_A3 = 45
S_A3B = 46
S_X = 47
S_STX = 48
S_W1, S_W3, S_W4, S_W5 = 49, 50, 51, 52
S_H = 53
S_PB = 54
S_WI = 55
S_U = 98
GUS = "s[56:59]"; WDS = "s[60:63]"
MASK = 64
T = [28, 29, 30, 31, 32, 33, 34, 35, 36, 37]

VL, VL16, VST, RES = 1, 2, 3, 4
VO1, VKT, VO3, VX, VSX, VH, VCNT, VKF, VK, VKS, VV, VW2, VW12, VW1, VXW, VXR, VB1, VB2 = range(14, 32)
PM = 32
VPROF = 40
VTG, VDUM = 42, 43
VFREE = 44

LDS_MISC = 147456
CSF1 = LDS_MISC; CSF4 = LDS_MISC + 4096
KREG = 36864; VREG = KREG + 12 * 2560
XCH3 = 86016; XCH5 = 0
STG4 = 16384; STG5 = STG4 + 20480; STG3 = LDS_MISC + 8192
QSCALE = math.log2(math.e) / math.sqrt(20.0)

def lds1(st): return ((st + 5) % 36) * 4096 if st < 36 else (st - 31) * 4096
def lds3(bl): return bl * 10240 if bl < 3 else (107520 + (bl - 3) * 10240 if bl < 6 else KREG + (bl - 6) * 10240)
def fhex(x):
    import struct
    return hex(struct.unpack("<I", struct.pack("<f", x))[0])

def qmap_step(x):
    import re
    m = re.match(r"ds_read_b64 a\[(\d+):", x[1])
    return int(m.group(1)) // 4 if m else 999

class Main:
    def __init__(self, A, opts):
        self.A = A; self.o = opts
        self.prof = opts.get("prof", 0); self.names = []; self.rare = []; self.pending = set()
        self.stop = opts.get("stop", None)
        self.fused = opts.get("fused", 1)
        self.kname = opts.get("kname", "main_kernel")
        self.ld = "sc1"; self.st = "sc1"; self.stkv = "sc1"
        self.ntu, self.ntx, self.nts = opts.get("ntu", ""), opts.get("ntx", ""), opts.get("nts", "nt")

    def stamp(self, name):
        if self.o.get("only") and name not in self.o["only"]: return
        if not self.prof or name.endswith(tuple(self.o.get("nostamp", ()))) and self.o.get("nostamp"): return
        A = self.A
        if name not in self.names: self.names.append(name)
        idx = self.names.index(name)
        A(f"s_memrealtime s[38:39]\ns_memtime s[96:97]\ns_waitcnt lgkmcnt(0)\ns_mov_b32 s97, m0\ns_add_u32 m0, s{S_PB}, {idx}\nv_writelane_b32 v{VPROF}, s38, m0\nv_writelane_b32 v{VPROF+1}, s96, m0\ns_mov_b32 m0, s97")
        A.lg = []

    def ldsaddr(self, off, bases):
        b = off >> 16
        return f"v{bases[b]} offset:{off & 0xffff}"

    def emit(self, x):
        if isinstance(x, tuple):
            if x[0] == 'vm': self.A.vmem(x[1], x[2])
            elif x[0] == 'lg': self.A.lds(x[1], x[2])
            else:
                assert x[1] in self.A.seen and x[1] not in self.pending, x
                (self.A.wait_vm if x[0] == 'wv' else self.A.wait_lg)(x[1])
        else: self.A(x)

    def drain(self, fill, n):
        vm = 0
        while fill and n > 0:
            isvm = isinstance(fill[0], tuple) and fill[0][0] == 'vm'
            if isvm and vm: break
            vm += isvm
            self.pending = {y[2] for y in fill if isinstance(y, tuple) and len(y) == 3}
            self.emit(fill.pop(0)); n -= 1
            self.pending = set()

    def need(self, tag, fill):
        while any(isinstance(x, tuple) and x[0] == 'vm' and x[2] == tag for x in fill): self.emit(fill.pop(0))
        assert tag in self.A.seen, tag
        self.A.wait_vm(tag)

    def rnd(self, sbase, goff, loff, kb, tag):
        L = [f"s_mul_i32 s{T[8]}, s{WV}, {kb*1024}", f"s_add_u32 s{T[9]}, s{T[8]}, s{sbase}", f"s_add_u32 s{T[9]}, s{T[9]}, {goff}", f"s_add_u32 m0, s{T[8]}, {loff}"]
        for i in range(kb):
            if i and i % 4 == 0: L += [f"s_add_u32 s{T[9]}, s{T[9]}, 4096", "s_add_u32 m0, m0, 4096"]
            L.append(('vm', f"buffer_load_dwordx4 v{VL16}, {WS}, s{T[9]} offen offset:{1024*(i&3)} lds", tag))
        return L

    def rnd3(self, sbase, goff, loff, kb):
        A = self.A
        A(f"s_mul_i32 s{T[8]}, s{S_WI}, {kb*1024}\ns_add_u32 s{T[9]}, s{T[8]}, s{sbase}\ns_add_u32 s{T[9]}, s{T[9]}, {goff}\ns_add_u32 m0, s{T[8]}, {loff}")
        for i in range(kb):
            if i and i % 4 == 0: A(f"s_add_u32 s{T[9]}, s{T[9]}, 4096\ns_add_u32 m0, m0, 4096")
            A(f"buffer_load_dwordx4 v{VL16}, {WS}, s{T[9]} offen offset:{1024*(i&3)} lds")

    def edf(self, jobs, nsteps, rate, credit=0.0):
        units = []
        for rel, dl, L, *hard in jobs:
            cur = []
            for x in L:
                cur.append(x)
                if isinstance(x, tuple) and x[0] == 'vm': units.append([rel, dl, cur, id(L), hard[0] if hard else dl]); cur = []
            if cur: units[-1][2] += cur
        sched = {k: [] for k in range(nsteps)}
        busy = None
        for st_ in range(nsteps):
            credit += rate(st_) if callable(rate) else rate
            while credit >= 1 and units:
                cand = [u for u in units if u[0] <= st_]
                if busy is not None: cand = [u for u in cand if u[3] == busy or 'lds' not in u[2][-1 if isinstance(u[2][-1], tuple) else -2][1]]
                if not cand: credit = min(credit, 1.0); break
                u = min(cand, key=lambda u: u[1])
                assert st_ <= u[4], f"load {u[2][-1]} issued at {st_}, after its deadline {u[4]}"
                units.remove(u); sched[st_] += u[2]; credit -= 1
                isdma = any(isinstance(x, tuple) and x[1].endswith('lds') for x in u[2])
                if isdma: busy = u[3] if any(w[3] == u[3] for w in units) else None
        assert not units, f"{len(units)} loads left"
        return sched

    def drain_post(self, post, extra=0):
        A = self.A
        if not post:
            A.wait_all(); return
        N = A.newlab("p0"); E = A.newlab("pe")
        kb = -(-post[3] // 3)
        A(f"s_cmp_eq_u32 s{WV}, 0\ns_cbranch_scc1 {N}")
        self.rnd3(post[0], post[1], post[2], kb)
        A(f"s_waitcnt vmcnt({kb + extra}) lgkmcnt(0)\ns_branch {E}")
        A.lab(N); A(f"s_waitcnt vmcnt({extra}) lgkmcnt(0)"); A.lab(E)
        A.vm = []; A.lg = []

    def plan(self, chunks, bars, dead_at=()):
        jobs = []; valid = {}; used = set()
        for k, (sb, go, kb, ad, vs, last, pre) in enumerate(chunks):
            if pre: continue
            busy = [c[5] for c in chunks[:k] if c[3] < ad + kb*4096 and ad < c[3] + c[2]*4096]
            busy += [t for lo, hi, t in dead_at if lo < ad + kb*4096 and ad < hi]
            rel = min(b for b in bars if b > max(busy)) if busy else 0
            if busy: used.add(rel)
            dl = 900 + k
            if vs is not None:
                dl = max(b for b in bars if b <= vs); assert dl > rel, (k, rel, dl)
                valid.setdefault(dl, []).append(('w', k)); used.add(dl)
            jobs.append((rel, dl - 0.5, self.rnd(sb, go, ad, kb, ('w', k))))
        return jobs, valid, used

    def go(self, tag, name):
        self.A.wait_vm(tag)
        if not self.o.get("onebar", 1): self.A("s_barrier")
        self.stamp(name)

    def run32(self, seq, WFS, sched, at_step, side=None, go=None):
        A = self.A; R = len(WFS); bases = [VL16, VB1, VB2]
        rd = lambda n: A.lds(f"ds_read_b128 {v(WFS[n % R],4)}, {self.ldsaddr(seq[n][2], bases)}", ('f', n))
        if go and not self.o.get("onebar", 1): self.go(*go); go = None
        for n in range(R): rd(n)
        if go: self.go(*go)
        fill = []; prev = None
        for n, (st_, acc, ad, B, zero) in enumerate(seq):
            if st_ != prev:
                at_step(st_, fill); prev = st_
            if n % 2 == 0: A.wait_lg(('f', min(n + 1, len(seq) - 1)))
            A(f"v_mfma_f32_32x32x16_bf16 {v(acc,16)}, {v(WFS[n % R],4)}, {B}, {'0' if zero else v(acc,16)}")
            if n + R < len(seq): rd(n + R)
            if side and n >= side[1] and side[0]:
                k = len(fill); self.drain(fill, 2)
                self.drain(side[0], side[2] - (k - len(fill)))
            else: self.drain(fill, 4)
        while fill: self.emit(fill.pop(0))

    def split3(self, src, dst, t):
        return [f"v_and_b32 v{t}, 0xffff0000, v{src}", f"v_sub_f32 v{t+1}, v{src}, v{t}", f"v_and_b32 v{dst}, 0xffff0000, v{t+1}", f"v_sub_f32 v{t+1}, v{t+1}, v{dst}",
                f"v_lshrrev_b32 v{t}, 16, v{t}", f"v_and_b32 v{dst+1}, 0xffff0000, v{t+1}", f"v_or_b32 v{dst}, v{dst}, v{t}", f"v_or_b32 v{dst+1}, v{dst+1}, v{t}",
                f"v_mov_b32 v{dst+2}, v{dst}", f"v_mov_b32 v{dst+3}, 0"]

    def csfrag(self, c, w, z, ad):
        return [f"v_and_b32 v{w+1}, 0xffff0000, v{c}", f"v_sub_f32 v{c}, v{c}, v{w+1}", f"v_and_b32 v{w+2}, 0xffff0000, v{c}", f"v_sub_f32 v{c}, v{c}, v{w+2}",
                f"v_lshrrev_b32 v{w}, 16, v{w+1}", f"v_or_b32 v{w}, v{w}, v{w+1}", f"v_lshrrev_b32 v{w+3}, 16, v{w+2}", f"v_or_b32 v{w+1}, v{w+1}, v{w+3}",
                f"v_lshrrev_b32 v{c}, 16, v{c}", f"v_or_b32 v{w+2}, v{w+2}, v{c}", f"v_mov_b32 v{w+3}, 0"] + [f"v_mov_b32 v{z+k}, 0" for k in range(4)] + \
               [('lg', f"ds_write_b128 v{ad}, {v(w,4)}", 'csw'), ('lg', f"ds_write_b128 v{ad}, {v(z,4)} offset:512", 'csw')]

    def csaddr(self, e, dst, t, base):
        return (f"v_lshrrev_b32 v{dst}, 5, v{e}\nv_lshlrev_b32 v{dst}, 10, v{dst}\nv_bfe_u32 v{t}, v{e}, 2, 2\nv_lshl_add_u32 v{dst}, v{t}, 7, v{dst}\nv_bfe_u32 v{t}, v{e}, 4, 1\n"
                f"v_lshl_add_u32 v{dst}, v{t}, 6, v{dst}\nv_and_b32 v{t}, 3, v{e}\nv_lshl_add_u32 v{dst}, v{t}, 4, v{dst}\nv_add_u32 v{dst}, {base}, v{dst}")

    def mix(self, body, fill, every):
        for k, x in enumerate(body):
            self.emit(x)
            if (k + 1) % every == 0: self.drain(fill, 5)

    def spin(self, addr, tgt, code, srd_=WS):
        A = self.A; L = A.newlab("poll"); D = A.newlab("pdone"); t = 254
        ld = lambda r: f"buffer_load_dword v{r}, v{addr}, {srd_}, 0 offen sc1"
        A(f"s_mov_b32 s{T[2]}, 20000\n" + ld(t))
        A.lab(L)
        for r in (t + 1, t):
            A(f"s_sleep {self.o.get('psleep', 5)}\n" + ld(r) + f"\ns_waitcnt vmcnt(1)\nv_cmp_gt_u32 vcc, {tgt}, v{2*t + 1 - r}\ns_cbranch_vccz {D}")
        A(f"s_sub_u32 s{T[2]}, s{T[2]}, 1\ns_cmp_lg_u32 s{T[2]}, 0\ns_cbranch_scc1 {L}")
        A(f"s_waitcnt vmcnt(0)\nv_mov_b32 v{t}, {code}\nv_mov_b32 v{t+1}, 128\nbuffer_store_dword v{t}, v{t+1}, {DS_}, 0 offen")
        A.lab(D)

    def code_touch(self):
        if not self.o.get("codepf2", 1): return
        A = self.A; L = A.newlab("ct"); P = A.newlab("pc")
        A(f"s_lshl_b32 s3, s{LAY}, 2\ns_add_u32 s3, s3, s{WV}\ns_cmp_lg_u32 s3, 3\ns_cbranch_scc1 {L}")
        A(f"s_getpc_b64 s[28:29]\n{P}:\ns_sub_u32 s28, s28, {P} - {self.kname}\ns_subb_u32 s29, s29, 0\ns_mov_b32 s30, main_last - {self.kname}\ns_mov_b32 s31, 0x20000")
        A(f"s_and_b32 s3, s{J}, 7\ns_lshl_b32 s3, s3, 13\nv_lshlrev_b32 v252, 3, v{VL16}\nbuffer_load_dword v{VDUM}, v252, s[28:31], s3 offen")
        A.lab(L)

    def cluster_sync(self, post, pre, code, both=None):
        A = self.A; N = A.newlab("nw0"); E = A.newlab("syn")
        self.stamp(f'p{code>>8}.epi')
        self.drain_post(post); A("s_barrier")
        self.stamp(f'p{code>>8}.drain')
        A(f"s_add_u32 s{TGT}, s{TGT}, 16\ns_cmp_lg_u32 s{WV}, 0\ns_cbranch_scc1 {N}")
        A(f"s_mov_b64 exec, 1\nv_mov_b32 v{VFREE+3}, 1\nbuffer_atomic_add v{VFREE+3}, v{VCNT}, {WS}, 0 offen sc1")
        if both:
            A("s_mov_b64 exec, -1"); both(); A("s_mov_b64 exec, 1")
        self.spin(VCNT, f's{TGT}', code)
        A(f"s_mov_b64 exec, -1")
        self.stamp(f'p{code>>8}.poll')
        A(f"s_branch {E}")
        A.lab(N)
        self.code_touch()
        if pre: pre()
        if both: both()
        if self.o.get("onebar", 1): A("s_waitcnt vmcnt(0)")
        A.lab(E)
        A("s_barrier")
        self.stamp(f'p{code>>8}.bar')

    def setup(self):
        A = self.A
        A.lab(self.kname)
        A("s_cmp_ge_u32 s2, 256\ns_cbranch_scc1 main_end")
        A("s_load_dwordx2 s[28:29], s[0:1], 0\ns_load_dwordx4 s[32:35], s[0:1], 56\ns_load_dwordx2 s[30:31], s[0:1], 72")
        if self.fused: A("s_load_dwordx4 s[80:83], s[0:1], 8\ns_load_dwordx4 s[84:87], s[0:1], 32\ns_load_dwordx2 s[88:89], s[0:1], 48")
        A(f"v_and_b32 v{VL}, 63, v0\nv_lshrrev_b32 v2, 6, v0\ns_nop 0\nv_readfirstlane_b32 s{WV}, v2\nv_lshlrev_b32 v{VL16}, 4, v{VL}")
        mx = self.o.get("mx", 512)
        if mx == 256:
            A(f"s_and_b32 s{MB}, s2, 7\ns_lshl_b32 s{MB}, s{MB}, 1\ns_lshr_b32 s3, s2, 7\ns_add_u32 s{MB}, s{MB}, s3\ns_bfe_u32 s{J}, s2, 0x40003")
        elif mx == 512:
            A(f"s_bfe_u32 s{MB}, s2, 0x20001\ns_lshl_b32 s{MB}, s{MB}, 2\ns_lshr_b32 s3, s2, 6\ns_add_u32 s{MB}, s{MB}, s3")
            A(f"s_and_b32 s{J}, s2, 1\ns_lshl_b32 s{J}, s{J}, 3\ns_bfe_u32 s3, s2, 0x30003\ns_add_u32 s{J}, s{J}, s3")
        elif mx == 1024:
            A(f"s_bfe_u32 s{MB}, s2, 0x10002\ns_lshl_b32 s{MB}, s{MB}, 3\ns_lshr_b32 s3, s2, 5\ns_add_u32 s{MB}, s{MB}, s3")
            A(f"s_and_b32 s{J}, s2, 3\ns_lshl_b32 s{J}, s{J}, 2\ns_bfe_u32 s3, s2, 0x20003\ns_add_u32 s{J}, s{J}, s3")
        A(f"s_and_b32 s{RH}, s{J}, 1\ns_lshr_b32 s{CT}, s{J}, 1\ns_lshr_b32 s{RR}, s{WV}, 1\ns_and_b32 s{KH}, s{WV}, 1\ns_sub_u32 s{S_WI}, s{WV}, 1")
        A(f"s_mov_b32 s{LAY}, 0\ns_mov_b32 s{SL}, {LB}\ns_mov_b32 s{TGT}, 0\ns_mov_b32 s{S_PB}, 0")
        A(f"s_lshl_b32 s3, s{MB}, 2\ns_add_u32 s3, s3, s{WV}\ns_mul_i32 s{S_A1}, s3, 40960\ns_lshl_b32 s{S_ST1}, s3, 11")
        A(f"s_mul_i32 s{S_H}, s3, {2*54*1024}\ns_nop 0")
        A(f"s_mul_i32 s{S_W1}, s{J}, {WP1_J}\ns_add_u32 s{S_W1}, s{S_W1}, {WP1}\ns_mul_i32 s{S_W4}, s{J}, {WP4_J}\ns_add_u32 s{S_W4}, s{S_W4}, {WP4}")
        A(f"s_mul_i32 s{S_W3}, s{CT}, {WP3_C}\ns_add_u32 s{S_W3}, s{S_W3}, {WP3}\ns_mul_i32 s{S_W5}, s{CT}, {WP5_C}\ns_add_u32 s{S_W5}, s{S_W5}, {WP5}")
        A("s_waitcnt lgkmcnt(0)")
        srd(A, 4, 30, WS_USED); srd(A, 8, 28, 2048*640*2); srd(A, 16, 34, 256)

    def p1_first(self):
        A = self.A; o = self.o; st = "sc1"
        QS = "s[68:71]"; WOS = "s[64:67]"
        ACC, GR, ONE, MU, RS, AP = 64, 176, 56, 168, 169, 172
        VXS, VAX, TMP, VU1, VU3, VZ = 209, 213, 218, 214, 215, 216
        r, c, G = 44, 45, 46
        AB = 49152; NB = 3
        srd(A, 68, 80, 640*1920*2); srd(A, 64, 82, 640*640*2); srd(A, 60, 88, 1728*640*2); srd(A, 12, 32, 2048*640*2)
        A(f"s_cmp_lt_u32 s{WV}, 2\ns_cselect_b32 s56, s84, s86\ns_cselect_b32 s57, s85, s87\ns_mov_b32 s58, {640*1728*2}\ns_mov_b32 s59, 0x20000")
        A(f"s_lshl_b32 s{S_U}, s{MB}, 4\ns_add_u32 s{S_U}, s{S_U}, s{J}")
        NZ = A.newlab("nz"); NZ2 = A.newlab("nz")
        A(f"s_cmp_lg_u32 s2, 0\ns_cbranch_scc1 {NZ}\ns_cmp_lg_u32 s{WV}, 3\ns_cbranch_scc1 {NZ}")
        A(f"v_lshlrev_b32 v56, 7, v{VL}\nv_mov_b32 v57, 0")
        for k in range(6): A(f"s_mov_b32 s3, {8192*k}\nbuffer_store_dword v57, v56, {WS}, s3 offen sc1")
        A.lab(NZ)
        A(f"v_and_b32 v51, 7, v{VL}\nv_lshrrev_b32 v52, 3, v{VL}\ns_and_b32 s34, s{MB}, 1\ns_lshr_b32 s35, s{MB}, 1")
        A("s_cmp_eq_u32 s34, 0\ns_cselect_b32 s31, 5, 2"); sel(A, 32, 1280, 2608); sel(A, 33, 2480, -48); sel(A, 36, -1, 0xfbfbfbfb)
        A("v_mov_b32 v53, s32\nv_mov_b32 v54, s33\nv_cmp_gt_u32 vcc, s31, v51\nv_cndmask_b32 v53, v54, v53, vcc\nv_lshl_add_u32 v53, v51, 4, v53\nv_mul_u32_u24 v54, 3840, v52\nv_add_u32 v53, v53, v54")
        A(f"s_mul_i32 s31, s35, 80*3840\ns_mul_i32 s32, s{J}, 80\ns_add_u32 s31, s31, s32\ns_mov_b32 exec_lo, s36\ns_mov_b32 exec_hi, s36")
        for n in range(3):
            A(f"s_add_u32 s32, s{WV}, {4*n}\ns_min_u32 s32, s32, 9\ns_lshl_b32 m0, s32, 10\ns_mul_i32 s32, s32, 8*3840\ns_add_u32 s32, s32, s31")
            A.vmem(f"buffer_load_dwordx4 v53, {QS}, s32 offen {self.ntu} lds", 'u')
        A("s_mov_b64 exec, -1")
        A(f"s_lshr_b32 s99, s{S_U}, 3\ns_and_b32 s100, s{S_U}, 7\ns_mul_i32 s30, s99, 32*1280\ns_mul_i32 s31, s100, 160\ns_add_u32 s30, s30, s31\ns_cmp_ge_u32 s{S_U}, 160\ns_cmov_b32 s30, {OOB}")
        for n in range(2):
            A(f"s_add_u32 s31, s{WV}, {4*n}\ns_min_u32 s31, s31, 4\ns_lshl_b32 s3, s31, 6\nv_add_u32 v54, s3, v{VL}\nv_mul_u32_u24 v55, 6554, v54\nv_lshrrev_b32 v55, 16, v55\nv_mul_u32_u24 v56, 10, v55\nv_sub_u32 v56, v54, v56")
            A(f"v_mul_u32_u24 v55, 1280, v55\nv_lshl_add_u32 v55, v56, 4, v55\ns_lshl_b32 s31, s31, 10\ns_add_u32 m0, s31, {STG3}")
            A.vmem(f"buffer_load_dwordx4 v55, {WOS}, s30 offen {self.ntu} lds", 'u')
        A(f"v_lshrrev_b32 v{G}, 4, v{VL}\nv_and_b32 v48, 15, v{VL}")
        for n in range(4):
            A(f"v_add_u32 v49, {4*n}, v{G}\nv_xor_b32 v50, v48, v49\nv_mul_u32_u24 v49, 1280, v49\nv_lshl_add_u32 v{VXS+n}, v50, 4, v49")
        SX, SXL = T[0], T[1]
        A(f"s_lshl_b32 s3, s{MB}, 2\ns_add_u32 s3, s3, s{WV}\ns_mul_i32 s{SX}, s3, 32*1280\ns_mul_i32 s{SXL}, s{WV}, {NB*8192}\ns_add_u32 s{SXL}, s{SXL}, {AB}")
        def xlist(ch):
            L = []
            for n in range(8):
                if n % 4 == 0: L.append(f"s_add_u32 s{T[9]}, s{SX}, {ch*256 + (n >> 2)*16*1280}")
                L += [f"s_add_u32 m0, s{SXL}, {(ch % NB)*8192 + n*1024}", ('vm', f"buffer_load_dwordx4 v{VXS + (n & 3)}, {XS}, s{T[9]} offen {self.ntx} lds", ('x', ch))]
            return L
        def xjob(ch):
            for x in xlist(ch): self.emit(x)
        if o.get("touchx", 0):
            A(f"s_lshl_b32 s30, s{MB}, 3\ns_and_b32 s31, s{J}, 7\ns_add_u32 s30, s30, s31\ns_lshl_b32 s3, s30, 2\ns_add_u32 s3, s3, s{WV}\ns_mul_i32 s3, s3, 5120\nv_lshlrev_b32 v54, 7, v{VL}\ns_mov_b32 exec_hi, 0xff")
            A.vmem(f"buffer_load_dword v{VDUM}, v54, {XS}, s3 offen {self.ntx}\ns_mov_b32 exec_hi, -1", 't')
        if o.get("codepf", 1):
            A(f"s_getpc_b64 s[64:65]\nmain_pc:\ns_sub_u32 s64, s64, main_pc - {self.kname}\ns_subb_u32 s65, s65, 0\ns_mov_b32 s66, main_last - {self.kname}\ns_mov_b32 s67, 0x20000")
            A(f"s_and_b32 s3, s{J}, 7\ns_lshl_b32 s3, s3, 13\ns_cmp_lg_u32 s{WV}, 3\ns_cmov_b32 s3, {OOB}\nv_lshlrev_b32 v54, 7, v{VL}")
            A.vmem(f"buffer_load_dword v{VDUM}, v54, s[64:67], s3 offen", 'c')
        xjob(0)
        nearly = o.get("xearly", 2)
        for ch in range(1, nearly): xjob(ch)
        A(f"s_cmp_lg_u32 s2, 0\ns_cbranch_scc1 {NZ2}\ns_cmp_lg_u32 s{WV}, 3\ns_cbranch_scc1 {NZ2}")
        A(f"s_waitcnt vmcnt({len(A.vm)})\ns_mov_b64 exec, 1\nv_mov_b32 v56, 0\nv_mov_b32 v55, 1\nbuffer_store_dword v55, v56, {DS_}, 0 offen sc1\ns_mov_b64 exec, -1")
        A.lab(NZ2)
        for i in range(4): A(f"v_mov_b32 v{ONE+i}, 0x3f803f80")
        NP = A.newlab("np")
        A(f"s_cmp_eq_u32 s34, 0\ns_cbranch_scc1 {NP}\nv_lshlrev_b32 v48, 7, v0\nv_cmp_gt_u32 vcc, 80, v0\ns_and_saveexec_b64 s[36:37], vcc\ns_cbranch_execz {NP}a\nds_write_b128 v48, {v(ONE,4)} offset:32")
        A.lab(NP + "a"); A("s_mov_b64 exec, s[36:37]"); A.lab(NP)
        A(f"v_bfe_u32 v{r}, v{VL}, 2, 2\nv_and_b32 v{c}, 3, v{VL}\nv_lshrrev_b32 v48, 1, v{G}\nv_lshl_add_u32 v48, v48, 2, v{r}\nv_lshlrev_b32 v48, 7, v48\nv_and_b32 v49, 1, v{G}\nv_lshl_add_u32 v49, v49, 2, v{c}\nv_lshl_add_u32 v48, v49, 3, v48\ns_lshl_b32 s3, s{WV}, 6\nv_add_u32 v{VU1}, s3, v48")
        A(f"v_and_b32 v48, 31, v{VL}\nv_and_b32 v49, 15, v{VL}\nv_lshlrev_b32 v{VAX}, 8, v48\nv_lshl_add_u32 v{VAX}, v49, 4, v{VAX}\nv_lshrrev_b32 v49, 5, v{VL}\nv_lshl_add_u32 v{VAX}, v49, 3, v{VAX}\nv_add_u32 v{VAX}, s{SXL}, v{VAX}")
        A(f"v_lshl_add_u32 v{VU3}, v{G}, 3, v{r}\nv_mul_u32_u24 v{VU3}, 160, v{VU3}\nv_lshl_add_u32 v{VU3}, v{c}, 3, v{VU3}\nv_add_u32 v{VU3}, {STG3}, v{VU3}\nv_mov_b32 v{VZ}, 0\nv_lshlrev_b32 v{VZ+1}, 7, v0")
        A(f"s_cmp_ge_u32 s99, 10\ns_cselect_b32 s30, 1, 0\ns_cselect_b32 s31, 10, 0\ns_sub_u32 s31, s99, s31\ns_lshl_b32 s31, s31, 1\ns_add_u32 s31, s31, s30\ns_mul_i32 s31, s31, 5120")
        A(f"s_mul_i32 s30, s100, {WP3_C}\ns_add_u32 s30, s30, s31\ns_add_u32 s30, s30, {WP3}\ns_cmp_ge_u32 s{S_U}, 160\ns_cmov_b32 s30, {OOB}")
        self.setup2()
        spre, j4, j5 = self.stage_jobs()
        for x in spre: self.emit(x)
        CP = 240
        A(f"v_and_b32 v48, 127, v0\nv_lshrrev_b32 v49, 5, v48\nv_and_b32 v50, 31, v48\nv_lshlrev_b32 v50, 2, v50\nv_lshl_add_u32 v{CP+8}, v49, 10, v50")
        A(self.csaddr(48, CP+9, 49, CSF1))
        A.wait_vm('u'); A.wait_lg0(); A("s_barrier")
        self.stamp('s.u')
        HI = A.newlab("hi"); DN = A.newlab("dn"); keep = list(A.vm)
        A(f"s_cmp_ge_u32 s{WV}, 2\ns_cbranch_scc1 {HI}")
        A(f"s_lshl_b32 s32, s34, 1\ns_add_u32 s32, s32, s{WV}\ns_cmp_lt_u32 s32, 3\ns_cselect_b32 s3, s32, 120"); sel(A, 36, 3072, 1024)
        A(f"s_lshl_b32 s3, s3, 10\ns_mul_i32 s33, s35, 5\ns_mul_i32 s33, s33, s36\ns_add_u32 s33, s33, s{S_W1}\ns_add_u32 s30, s33, s3")
        A(f"s_lshl_b32 s33, s{J}, 2\ns_add_u32 s33, s33, s32\ns_lshl_b32 s33, s33, 3\ns_add_u32 s33, s33, s35\ns_lshl_b32 s33, s33, 7\ns_add_u32 s33, s33, {CSP1}")
        ur = [30, 31, 32, 34, 35]
        for u in range(1, 5): A(f"s_add_u32 s{ur[u]}, s{ur[u-1]}, s36")
        frag32_steps(A, VU1, VL16, lambda u: (f"s{ur[u]}", 0), "s33", WS, 64, 88, ONE, st)
        A(f"s_branch {DN}")
        A.lab(HI)
        A(f"s_cmp_lg_u32 s{WV}, 2\ns_cmov_b32 s30, {OOB}\ns_add_u32 s31, s30, 4096\ns_mov_b32 s32, {OOB}")
        for t in range(5):
            for p in range(2): A(f"ds_read_b64_tr_b16 {v(64+4*t+2*p,2)}, v{VU3} offset:{p*640 + t*32}")
        A("s_waitcnt lgkmcnt(0)")
        for t in range(5): A(f"buffer_store_dwordx4 {v(64+4*t,4)}, v{VL16}, {WS}, {'s30' if t < 4 else 's31'} offen offset:{(t&3)*1024} {st}")
        A("s_mov_b64 exec, 1")
        for t in range(4): A(f"buffer_store_dword v64, v{VL16}, {WS}, s32 offen")
        A("s_mov_b64 exec, -1")
        A.lab(DN)
        A.vm = keep + ['us'] * 9; A.lg = []
        A.vmem(f"s_lshl_b32 s3, s{WV}, 8\ns_mov_b64 exec, 1\nbuffer_load_dword v47, v{VZ}, {DS_}, s3 offen sc1\ns_mov_b64 exec, -1", 'dbg')
        self.stamp('s.st')
        qmap = {}
        for st_ in range(40):
            for p in range(2): qmap[10*(st_//5) + cg32(st_ % 5, 0, p)//2] = (st_, p)
        done = set(); gram = [0]
        def gram1():
            if gram[0] < 40 and (gram[0], 0) in done and (gram[0], 1) in done:
                k = gram[0]; gram[0] += 1
                A(f"v_mfma_f32_32x32x16_bf16 {v(GR,16)}, {a(4*k,4)}, {a(4*k,4)}, {'0' if k == 0 else v(GR,16)}")
        def xreads(ch, also=()):
            also = list(also)
            A.wait_vm(('x', ch))
            for k, q in enumerate(range(16*ch, 16*ch + 16)):
                st_, p = qmap[q]
                A(f"v_xor_b32 v{TMP+(k&1)}, {k*16}, v{VAX}")
                A.lds(f"ds_read_b64 {a(4*st_+2*p,2)}, v{TMP+(k&1)} offset:{(ch % NB)*8192}")
                if k % 2:
                    gram1(); self.drain(also, 6)
            assert not also
            A.wait_lg0()
            for q in range(16*ch, 16*ch + 16): done.add(qmap[q])
        for ch in range(nearly, 3): xjob(ch)
        xfirst = o.get("xfirst", 1)
        xreads(0)
        if xfirst: xjob(3)
        A.wait_vm('dbg'); A("s_barrier")
        self.stamp('s.drain')
        W1_ = A.newlab("w"); OKI = A.newlab("oki")
        A(f"s_cmp_lg_u32 s{WV}, 0\ns_cbranch_scc1 {W1_}\ns_mov_b64 exec, 1\nv_cmp_gt_u32 vcc, 1, v47\ns_cbranch_vccz {OKI}")
        self.spin(VZ, "1", 0x10, DS_)
        A.lab(OKI)
        A(f"s_lshl_b32 s32, s{J}, 7\ns_add_u32 s32, s32, {CG}\nv_mov_b32 v48, s32\ns_and_b32 s32, s{S_U}, 7\ns_lshl_b32 s32, s32, 7\ns_add_u32 s32, s32, {PK3}\nv_writelane_b32 v48, s32, 1")
        A(f"s_cmp_lt_u32 s{S_U}, 160\ns_cselect_b32 exec_lo, 3, 1\nv_mov_b32 v51, 1\nbuffer_atomic_add v51, v48, {WS}, 0 offen sc1\ns_mov_b64 exec, -1")
        A.lab(W1_)
        if xfirst:
            xreads(1); xreads(2, xlist(4))
            for x in j4 + j5: self.emit(x)
        else:
            for x in j4 + j5: self.emit(x)
            xreads(1, xlist(3)); xreads(2, xlist(4))
        A(f"s_lshl_b32 s32, s{J}, 7\ns_add_u32 s32, s32, {CG}\nv_mov_b32 v53, s32\ns_lshl_b32 s32, s{CT}, 7\ns_add_u32 s32, s32, {PK3}\nv_writelane_b32 v53, s32, 1\nv_mov_b32 v54, 16\nv_writelane_b32 v54, 20, 1")
        A(f"s_lshl_b32 s100, s{S_A3}, 4\ns_mul_i32 s100, s100, 1280\ns_mul_i32 s3, s{CT}, 160\ns_add_u32 s100, s100, s3")
        A(f"v_and_b32 v{CP+10}, 15, v{VL}\nv_mul_u32_u24 v{CP+10}, 1280, v{CP+10}\nv_lshrrev_b32 v48, 4, v{VL}\nv_lshl_add_u32 v{CP+10}, v48, 3, v{CP+10}")
        A(f"s_cmp_lg_u32 s{WV}, 0\ns_cselect_b32 s3, {OOB}, 0\ns_mov_b64 exec, 3")
        A.vmem(f"buffer_load_dword v55, v53, {WS}, s3 offen sc1\ns_mov_b64 exec, -1", 'fl0')
        for k in range(5): A.vmem(f"buffer_load_dwordx2 {v(RES+2*k,2)}, v{CP+10}, {XS}, s100 offen offset:{32*k}", 'res')
        prep, late = self.pack_late()
        for x in prep: A(x)
        xreads(3); xreads(4)
        self.stamp('s.x')
        W2_ = A.newlab("w")
        A.wait_vm('fl0')
        A(f"s_cmp_lg_u32 s{WV}, 0\ns_cbranch_scc1 {W2_}\ns_mov_b64 exec, 3\nv_cmp_gt_u32 vcc, v54, v55\ns_cbranch_vccz {W2_}a")
        self.spin(53, "v54", 0x20)
        A.lab(W2_ + "a"); A("s_mov_b64 exec, -1")
        A.lab(W2_)
        A("s_barrier")
        self.stamp('s.poll')
        seq, ch = self.p1_seq([49152 + 12288*c for c in range(8)] + [0, 16384], [28672, 36864, 49152, 73728, 81920], AP)
        up = o.get("up1a", 4)
        for k in range(up): [self.emit(x) for x in self.rnd(ch[k][0], ch[k][1], ch[k][3], ch[k][2], ('w', k))]
        while gram[0] < 40: gram1()
        for x in late: self.emit(x)
        A(f"s_lshl_b32 s99, s{J}, 12\ns_add_u32 s99, s99, {CSP1}")
        for k in range(1, 16): A(f"v_cndmask_b32 v{GR}, v{GR}, v{GR+k}, s[{MASK+2*k}:{MASK+2*k+1}]")
        A(f"v_mov_b32 v{GR+1}, v{GR}\nv_mov_b32 v{GR+2}, v{GR}\nv_permlane32_swap_b32 v{GR+1}, v{GR+2}\nv_bfe_u32 v48, v{VL}, 2, 1\nv_cmp_eq_u32 vcc, 0, v48\nv_cndmask_b32 v{GR}, v{GR+2}, v{GR+1}, vcc\nv_mul_f32 v{GR}, {fhex(1.0/640)}, v{GR}")
        ch = [c + (k < up,) for k, c in enumerate(ch)] + [(S_W3, 30720, 8, lds3(3), None, 999, False)]
        bars = list(range(1, 80, 4))
        jobs, valid, used = self.plan(ch, bars)
        for k in range(1, up):
            b = max(x for x in bars if x <= ch[k][4]); valid.setdefault(b, []).append(('w', k)); used.add(b)
        jobs += [(4, 30 + k, [('vm', f"buffer_load_dword v{CP+k}, v{CP+8}, {WS}, s99 offen offset:{128*k} sc1", 'cp')]) for k in range(8)]
        sched = self.edf(jobs, 80, lambda k: o.get("r1a", 1.3) if k < 40 else 0.5)
        assert not any(isinstance(x, tuple) and x[2] == 'cp' for k in range(30, 80) for x in sched[k])
        sched[30] += [('wv', 'cp')] + [f"v_add_f32 v{CP}, v{CP}, v{CP+k}" for k in range(1, 8)] + self.csfrag(CP, CP+4, 160, CP+9)
        sched[41] = [f"v_mul_f32 v{MU}, {fhex(-1.0/640)}, v{ACC+40}"] + self.split3(MU, AP, 160) + \
            [f"v_fma_f32 v{GR}, -v{MU}, v{MU}, v{GR}", f"v_max_f32 v{GR}, 0, v{GR}", f"v_add_f32 v{GR}, 0x3727c5ac, v{GR}", f"v_rsq_f32 v{RS}, v{GR}"] + sched[41]
        psig = o.get("psig", 21)
        A.wait_vm(('w', 0)); A.wait_lg0(); A("s_barrier")
        self.stamp('p1.go')
        def at_step(st_, fill):
            if st_ == 44: assert not any(isinstance(x, str) and f"v{AP+3}" in x for x in fill)
            if st_ in used or st_ in (psig, 33, 37):
                for tag in valid.get(st_, []): self.need(tag, fill)
                if st_ == psig: self.need('pst', fill)
                if st_ == 33:
                    while any(isinstance(x, tuple) and x[2] == 'csw' for x in fill): self.emit(fill.pop(0))
                    A.wait_lg('csw')
                A("s_barrier")
                if st_ == psig: self.packed_signal()
                if o.get("in1"): self.stamp(f'd.{st_}')
            if st_ == 40: self.stamp('p1.a')
            fill += sched[st_]
        self.p1_tail(seq, sched, at_step, RS)

    def stage_jobs(self):
        t = 160
        pre = [f"v_and_b32 v{t+4}, 7, v{VL}", f"v_lshrrev_b32 v{t+5}, 3, v{VL}", f"v_mul_u32_u24 v{t}, 3456, v{t+5}", f"v_lshl_add_u32 v{t}, v{t+4}, 4, v{t}",
               f"s_and_b32 s99, s{S_U}, 7", "s_mul_i32 s99, s99, 80", f"s_mul_i32 s100, s{KH}, 40", "s_add_u32 s99, s99, s100", "s_mul_i32 s99, s99, 3456",
               f"s_lshr_b32 s100, s{S_U}, 3", "s_lshl_b32 s100, s100, 7", "s_add_u32 s99, s99, s100",
               f"s_lshr_b32 s100, s{S_U}, 2", "s_mul_i32 s100, s100, 32*1280", f"s_and_b32 s101, s{S_U}, 3", "s_mul_i32 s101, s101, 320", "s_add_u32 s100, s100, s101",
               f"s_cmp_ge_u32 s{S_U}, 216\ns_cmov_b32 s99, {OOB}\ns_cmov_b32 s100, {OOB}"]
        for n in range(3):
            pre += [f"s_add_u32 s101, s{WV}, {4*n}", "s_min_u32 s101, s101, 9", "s_lshl_b32 s101, s101, 6", f"v_add_u32 v{t+4}, s101, v{VL}", f"v_mul_u32_u24 v{t+5}, 3277, v{t+4}", f"v_lshrrev_b32 v{t+5}, 16, v{t+5}",
                    f"v_mul_u32_u24 v{t+6}, 20, v{t+5}", f"v_sub_u32 v{t+6}, v{t+4}, v{t+6}", f"v_mul_u32_u24 v{t+5}, 1280, v{t+5}", f"v_lshl_add_u32 v{t+1+n}, v{t+6}, 4, v{t+5}"]
        j4 = [f"s_mul_i32 s{T[8]}, s{WV}, 5120"]
        for n in range(5):
            j4 += [f"s_add_u32 m0, s{T[8]}, {STG4 + n*1024}", ('vm', f"buffer_load_dwordx4 v{t}, {GUS}, s99 offen {self.nts} lds", 'stg'), f"s_add_u32 s99, s99, {8*3456}"]
        j5 = []
        for n in range(3):
            j5 += [f"s_add_u32 s{T[8]}, s{WV}, {4*n}", f"s_min_u32 s{T[8]}, s{T[8]}, 9", f"s_lshl_b32 s{T[8]}, s{T[8]}, 10", f"s_add_u32 m0, s{T[8]}, {STG5}",
                   ('vm', f"buffer_load_dwordx4 v{t+1+n}, {WDS}, s100 offen {self.nts} lds", 'stg')]
        return pre, j4[:-1], j5

    def pack_late(self):
        st = "sc1"; P = []; L = []
        r, c, G, ad, FR, FD, CA, ONE = 44, 45, 46, 47, 64, 84, 96, 56
        add = lambda txt: P.append(txt)
        add(f"v_bfe_u32 v{r}, v{VL}, 2, 2\nv_and_b32 v{c}, 3, v{VL}\nv_lshrrev_b32 v{G}, 4, v{VL}")
        add(f"v_lshrrev_b32 v{ad}, 1, v{G}\nv_lshl_add_u32 v{ad}, v{ad}, 2, v{r}\nv_lshlrev_b32 v{ad}, 7, v{ad}\nv_and_b32 v48, 1, v{c}\nv_lshl_add_u32 v{ad}, v48, 4, v{ad}\nv_and_b32 v48, 1, v{G}\nv_lshl_add_u32 v{ad}, v48, 3, v{ad}")
        add(f"v_lshrrev_b32 v48, 1, v{c}\nv_mul_u32_u24 v48, 10240, v48\nv_add_u32 v{ad}, v{ad}, v48\ns_lshl_b32 s3, s{WV}, 5\ns_add_u32 s3, s3, {STG4}\nv_add_u32 v{ad}, s3, v{ad}")
        add(f"v_lshl_add_u32 v49, v{G}, 3, v{r}\nv_mul_u32_u24 v49, 320, v49\nv_lshl_add_u32 v49, v{c}, 3, v49\ns_mul_i32 s31, s{KH}, 160\ns_mul_i32 s3, s{RR}, 96\ns_add_u32 s31, s31, s3\ns_add_u32 s31, s31, {STG5}\nv_add_u32 v49, s31, v49\ns_lshl_b32 s3, s{RR}, 5\nv_subrev_u32 v50, s3, v49")
        for hf in range(2):
            add(f"s_lshr_b32 s31, s{S_U}, 2\ns_lshl_b32 s31, s31, 1\ns_add_u32 s31, s31, {hf}\ns_mul_i32 s32, s31, 147\ns_lshr_b32 s32, s32, 10\ns_mul_i32 s33, s32, 7\ns_sub_u32 s33, s31, s33")
            add("s_lshl_b32 s31, s32, 2\ns_mul_i32 s32, s32, 3\ns_add_u32 s32, s32, 59\ns_cmp_lt_u32 s33, 4\ns_cselect_b32 s32, s31, s32")
            add("s_add_u32 s32, s32, s33\ns_lshr_b32 s31, s32, 3\ns_lshl_b32 s31, s31, 2\ns_and_b32 s33, s32, 2\ns_add_u32 s31, s31, s33\ns_bfe_u32 s33, s32, 0x10002\ns_add_u32 s31, s31, s33\ns_mul_i32 s31, s31, 5120")
            add(f"s_and_b32 s32, s32, 1\ns_lshl_b32 s32, s32, 9\ns_add_u32 s31, s31, s32\nv_mov_b32 v{51+hf}, s31")
        add(f"s_mov_b32 exec_lo, 0\nv_mov_b32 v51, v52\ns_mov_b32 exec_lo, -1\nv_and_b32 v52, 31, v{VL}\nv_lshl_add_u32 v51, v52, 4, v51\nv_lshrrev_b32 v48, 5, v{VL}\nv_lshlrev_b32 v48, 6, v48")
        add(f"s_and_b32 s99, s{S_U}, 7\ns_lshr_b32 s33, s{S_U}, 3\ns_lshl_b32 s33, s33, 2\ns_add_u32 s33, s33, s{WV}")
        add("s_mul_i32 s100, s33, 147\ns_lshr_b32 s100, s100, 10\ns_mul_i32 s31, s100, 7\ns_sub_u32 s31, s33, s31")
        add(f"s_mov_b32 s32, {P4_GROUPS[0][0]}\ns_mov_b32 s35, {P4_GROUPS[0][1]}")
        for t0, nt in P4_GROUPS[1:]: add(f"s_cmp_ge_u32 s31, {t0}\ns_cselect_b32 s32, {t0}, s32\ns_cselect_b32 s35, {nt}, s35")
        add(f"s_mul_i32 s100, s100, {WP4_J}\ns_mul_i32 s34, s32, 39\ns_add_u32 s34, s34, s31\ns_mul_i32 s32, s99, 5\ns_mul_i32 s32, s32, s35\ns_add_u32 s34, s34, s32\ns_lshl_b32 s34, s34, 10\ns_add_u32 s34, s34, s100\ns_add_u32 s34, s34, {WP4}\ns_lshl_b32 s35, s35, 10")
        add(f"s_lshl_b32 s33, s33, 3\ns_add_u32 s33, s33, s99\ns_lshl_b32 s33, s33, 7\ns_add_u32 s33, s33, {CSP4}")
        add(f"s_and_b32 s32, s{S_U}, 3\ns_lshl_b32 s32, s32, 1\ns_add_u32 s32, s32, s{KH}\ns_mul_i32 s32, s32, {WP5_C}\ns_mul_i32 s31, s{RR}, 3072\ns_add_u32 s32, s32, s31\ns_add_u32 s32, s32, {WP5}")
        add(f"s_cmp_ge_u32 s{S_U}, 216\ns_cmov_b32 s34, {OOB}\ns_cmov_b32 s33, {OOB}\ns_cmov_b32 s32, {OOB}\ns_lshl_b32 s31, s{RR}, 10\ns_sub_u32 s31, s32, s31")
        for u in range(5):
            for p in range(2): L.append(('lg', f"ds_read_b64_tr_b16 {v(FR+4*u+2*p,2)}, v{ad} offset:{4*cg32(u,0,p)*128}", ('pl', u)))
        for k in range(3):
            for p in range(2): L.append(('lg', f"ds_read_b64_tr_b16 {v(FD+4*k+2*p,2)}, v{49 if k < 2 else 50} offset:{p*1280 + k*32}", 'pd'))
        for u in range(5):
            L += [('wl', ('pl', u)), f"v_mfma_f32_32x32x16_bf16 {v(CA,16)}, {v(FR+4*u,4)}, {v(ONE,4)}, {'0' if u == 0 else v(CA,16)}",
                  ('vm', f"buffer_store_dwordx4 {v(FR+4*u,4)}, v{VL16}, {WS}, s34 offen {st}", 'pst')]
            if u < 4: L.append("s_add_u32 s34, s34, s35")
        L.append(('wl', 'pd'))
        for k in range(3): L.append(('vm', f"buffer_store_dwordx4 {v(FD+4*k,4)}, v51, {WS}, s{32 if k < 2 else 31} offen offset:{k*1024} {st}", 'pst'))
        L.append("s_mov_b32 exec_lo, 1\ns_mov_b32 exec_hi, 1")
        for q in range(4): L.append(('vm', f"buffer_store_dwordx4 {v(CA+4*q,4)}, v48, {WS}, s33 offen offset:{16*q} {st}", 'pst'))
        L.append("s_mov_b64 exec, -1")
        return P, L

    def setup2(self):
        A = self.A; t = VFREE
        A(f"s_lshl_b32 s3, s{MB}, 4\ns_add_u32 s3, s3, s{J}\ns_mul_i32 s{S_KVO}, s3, {KV_WG}\ns_add_u32 s{S_KVO}, s{S_KVO}, {KV}")
        A(f"s_lshl_b32 s3, s{MB}, 2\ns_lshl_b32 s36, s{RH}, 1\ns_add_u32 s3, s3, s36\ns_add_u32 s3, s3, s{RR}")
        A(f"s_mul_i32 s{S_X}, s3, 40960\ns_mul_i32 s36, s{CT}, 5120\ns_add_u32 s{S_X}, s{S_X}, s36")
        A(f"s_lshl_b32 s{S_STX}, s3, 3\ns_add_u32 s{S_STX}, s{S_STX}, s{CT}\ns_lshl_b32 s{S_STX}, s{S_STX}, 8")
        A(f"s_lshl_b32 s3, s3, 1\ns_add_u32 s{S_A3}, s3, s{KH}\ns_xor_b32 s{S_A3B}, s{S_A3}, 1")
        m5, h, m4, g = t, t+1, t+2, t+3
        A(f"v_and_b32 v{m5}, 31, v{VL}\nv_lshrrev_b32 v{h}, 5, v{VL}\nv_and_b32 v{m4}, 15, v{VL}\nv_lshrrev_b32 v{g}, 4, v{VL}")
        A(f"v_lshlrev_b32 v{VST}, 3, v{m5}\nv_lshl_add_u32 v{VST}, v{h}, 8, v{VST}")
        A(f"v_add_u32 v{VB1}, 0x10000, v{VL16}\nv_add_u32 v{VB2}, 0x20000, v{VL16}")
        A(f"s_lshl_b32 s3, s{MB}, 8\nv_mov_b32 v{VCNT}, s3")
        A(f"v_sub_u32 v{VKF}, s{MB}, v{VL}\nv_cmp_gt_i32 vcc, 0, v{VKF}\nv_mov_b32 v{t+4}, s{MB}\nv_cndmask_b32 v{VKF}, v{VKF}, v{t+4}, vcc\nv_lshlrev_b32 v{VKF}, 4, v{VKF}\nv_add_u32 v{VKF}, s{J}, v{VKF}\nv_lshlrev_b32 v{VKF}, 7, v{VKF}\nv_add_u32 v{VKF}, {KVF}, v{VKF}")
        A(f"s_mul_i32 s3, s{J}, 7\ns_lshr_b32 s3, s3, 2\nv_mov_b32 v{VKT}, 8")
        for k in range(3): A(f"s_add_u32 s36, s3, {k}\ns_min_u32 s36, s36, 26\ns_lshl_b32 s36, s36, 7\ns_add_u32 s36, s36, {PK4}\nv_writelane_b32 v{VKF}, s36, {3+k}")
        A(f"s_lshr_b32 s3, s{CT}, 1\ns_lshl_b32 s3, s3, 7\ns_add_u32 s3, s3, {PK5}\nv_writelane_b32 v{VKF}, s3, 6\nv_writelane_b32 v{VKT}, 54, 6")
        A(f"s_lshl_b32 s3, s{MB}, 3\ns_lshl_b32 s36, s{WV}, 1\ns_add_u32 s3, s3, s36\ns_mul_i32 s3, s3, 20480\ns_mul_i32 s36, s{J}, 1280\ns_add_u32 s3, s3, s36\ns_add_u32 s3, s3, {OO}")
        A(f"v_lshrrev_b32 v{t+4}, 4, v{m5}\nv_mul_u32_u24 v{t+5}, 20480, v{t+4}\nv_lshl_add_u32 v{t+5}, v{m4}, 4, v{t+5}\nv_add_u32 v{VO3}, s3, v{t+5}\nv_lshl_add_u32 v{VO1}, v{h}, 8, v{VO3}")
        A(f"v_mul_u32_u24 v{VH}, {54*1024}, v{t+4}\nv_lshl_add_u32 v{VH}, v{m4}, 4, v{VH}\nv_lshl_add_u32 v{VH}, v{h}, 8, v{VH}")
        A(f"s_lshl_b32 s3, s{KH}, 4\nv_add_u32 v{t+4}, s3, v{m4}\nv_lshlrev_b32 v{VSX}, 3, v{t+4}\nv_and_b32 v{t+5}, 1, v{g}\nv_lshl_add_u32 v{t+4}, v{t+5}, 5, v{t+4}")
        A(f"v_lshlrev_b32 v{VX}, 4, v{t+4}\nv_lshl_add_u32 v{VX}, v{h}, 10, v{VX}")
        A(f"s_mul_i32 s3, s{WV}, 2560\ns_add_u32 s3, s3, {KREG}\nv_add_u32 v{VK}, s3, v{VL16}\ns_add_u32 s3, s3, 2048\nv_lshlrev_b32 v{VKS}, 3, v{VL}\nv_add_u32 v{VKS}, s3, v{VKS}")
        A(f"s_mul_i32 s3, s{WV}, 3328\ns_add_u32 s3, s3, {VREG - 32}")
        A(f"v_mul_u32_u24 v{VV}, 416, v{h}\nv_and_b32 v{t+4}, 1, v{g}\nv_lshl_add_u32 v{VV}, v{t+4}, 7, v{VV}\nv_and_b32 v{t+4}, 3, v{VL}\nv_lshl_add_u32 v{VV}, v{t+4}, 5, v{VV}")
        A(f"v_bfe_u32 v{t+4}, v{VL}, 2, 2\nv_lshl_add_u32 v{VV}, v{t+4}, 3, v{VV}\nv_add_u32 v{VV}, s3, v{VV}")
        A(f"s_add_u32 s3, s3, {8*3328 + 32}\nv_lshrrev_b32 v{t+4}, 2, v{m5}\nv_mul_u32_u24 v{t+4}, 416, v{t+4}\nv_and_b32 v{t+5}, 3, v{VL}\nv_lshl_add_u32 v{t+4}, v{t+5}, 3, v{t+4}\nv_add_u32 v{t+4}, s3, v{t+4}")
        A(f"v_lshl_add_u32 v{VW2}, v{h}, 6, v{t+4}\nv_lshl_add_u32 v{VW1}, v{h}, 5, v{t+4}\nv_mul_u32_u24 v{t+5}, 384, v{h}\nv_add_u32 v{VW12}, v{t+5}, v{t+4}")
        A(f"s_mul_i32 s3, s{WV}, 5120\nv_add_u32 v{VXW}, s3, v{VL16}\ns_xor_b32 s3, s{WV}, 1\ns_mul_i32 s3, s3, 5120\nv_add_u32 v{VXR}, s3, v{VL16}")
        A(f"v_lshlrev_b32 v{t+4}, 2, v{h}\nv_sub_u32 v{t+4}, v{m5}, v{t+4}")
        for r in range(16):
            A(f"v_cmp_le_i32 s[{MASK+2*r}:{MASK+2*r+1}], {8*(r>>2) + (r&3)}, v{t+4}")
        A(f"v_mov_b32 v{t+5}, 0xffff\nv_mov_b32 v{t+6}, 0xffff0000")
        for rr in range(8):
            A(f"v_cndmask_b32 v{PM+rr}, 0, v{t+5}, s[{MASK+4*rr}:{MASK+4*rr+1}]\nv_cndmask_b32 v{t+7}, 0, v{t+6}, s[{MASK+4*rr+2}:{MASK+4*rr+3}]\nv_or_b32 v{PM+rr}, v{PM+rr}, v{t+7}")

    def stats_load(self, off, dst):
        A = self.A
        A(f"s_add_u32 s{T[3]}, s{SL}, s{S_ST1}\ns_add_u32 s{T[3]}, s{T[3]}, {off}")
        for i in range(4):
            A.vmem(f"buffer_load_dwordx2 {v(dst+2*i,2)}, v{VST}, {WS}, s{T[3]} offen offset:{512*i} {self.ld}", 'st')

    def stats_finish(self, d, mu, rs):
        return [f"v_add_f32 v{d}, v{d}, v{d+2}", f"v_add_f32 v{d+1}, v{d+1}, v{d+3}", f"v_add_f32 v{d+4}, v{d+4}, v{d+6}", f"v_add_f32 v{d+5}, v{d+5}, v{d+7}",
                f"v_add_f32 v{d}, v{d}, v{d+4}", f"v_add_f32 v{d+1}, v{d+1}, v{d+5}", f"v_mov_b32 v{d+2}, v{d}", f"v_mov_b32 v{d+3}, v{d+1}",
                f"v_permlane32_swap_b32 v{d}, v{d+2}", f"v_permlane32_swap_b32 v{d+1}, v{d+3}",
                f"v_add_f32 v{d}, v{d}, v{d+2}", f"v_add_f32 v{d+1}, v{d+1}, v{d+3}",
                f"v_mul_f32 v{mu}, {fhex(-1.0/640)}, v{d}", f"v_mul_f32 v{d+1}, {fhex(1.0/640)}, v{d+1}",
                f"v_fma_f32 v{d+1}, -v{mu}, v{mu}, v{d+1}", f"v_max_f32 v{d+1}, 0, v{d+1}", f"v_add_f32 v{d+1}, 0x3727c5ac, v{d+1}",
                f"v_rsq_f32 v{rs}, v{d+1}"]

    def a_load(self, st_, sreg, dst, tag):
        self.A.vmem(f"buffer_load_dwordx4 {a(dst,4)}, v{VL16}, {WS}, s{sreg} offen offset:{(st_ & 3)*1024} {self.ld}", tag)

    def p1_seq(self, adA, adB, AP):
        ACC = 64; ACB = self.ACB = 44
        seq = [(k, ACC + 16*t, adA[k >> 2] + (k & 3)*3072 + 1024*t, a(4*k, 4), k == 0) for k in range(40) for t in range(3)]
        seqB = [(40 + k, (ACC + 48, ACB)[k & 1], adB[k >> 3] + (k & 7)*1024, a(4*k, 4), k < 2) for k in range(40)]
        cs = lambda t, st_: (st_, ACC + 16*t, CSF1 + 1024*t, v(AP, 4), False)
        seq += seqB[:5] + [cs(0, 44), cs(1, 44), cs(2, 44)] + seqB[5:] + [cs(3, 79)]
        R = 8
        vis = lambda nf: seq[max(nf - R, 0)][0]
        idx = {(e[0], e[1]): n for n, e in reversed(list(enumerate(seq)))}
        chA = [(S_W1, c*12288, 3, adA[c], vis(12*c), 4*c + 3) for c in range(10)]
        chB = [(S_W1, 122880 + c*8192, 2, adB[c], vis(idx[(40 + 8*c, ACC + 48)]), 47 + 8*c) for c in range(5)]
        return seq, chA + chB

    def p1(self):
        A = self.A; o = self.o
        STD, MU, RS, AP = 160, 168, 169, 172
        SA = T[4]
        def aload(st_):
            L = [f"s_add_u32 s{SA}, s{SA}, 4096"] if st_ and st_ % 4 == 0 else []
            return L + [('vm', f"buffer_load_dwordx4 {a(4*st_,4)}, v{VL16}, {WS}, s{SA} offen offset:{(st_ & 3)*1024} {self.ld}", ('a', st_))]
        A(f"s_add_u32 s{SA}, s{SL}, s{S_A1}")
        up = o.get("up1", 10)
        self.stats_load(STA, STD)
        for k in range(up): [self.emit(x) for x in aload(k)]
        seq, ch = self.p1_seq([20480 + 12288*c for c in range(10)], [0, 8192, 20480, 28672, 36864], AP)
        ch = [c + (k < self.pre1,) for k, c in enumerate(ch)] + [(S_W3, 30720, 8, lds3(3), None, 999, False)]
        bars = list(range(1, 80, 4))
        jobs, valid, used = self.plan(ch, bars)
        jobs[-1] = (o.get("w3at", 72),) + jobs[-1][1:]
        jobs += [(0, k, aload(k)) for k in range(up, 40)]
        sched = self.edf(jobs, 80, lambda k: o.get("r1", 1.4) if k < 40 else (0.5 if k < 72 else 1.0))
        sched[30] += self.stats_finish(STD, MU, RS) + self.split3(MU, AP, STD)
        def at_step(st_, fill):
            if st_ in used or st_ == 37:
                for tag in valid.get(st_, []): self.need(tag, fill)
                A("s_barrier")
            if st_ == 40: self.stamp('p1.a')
            fill += sched[st_]
            if st_ < 40: self.need(('a', st_), fill)
        self.p1_tail(seq, sched, at_step, RS, (('a', 0), 'p1.go'))

    def p1_tail(self, seq, sched, at_step, RS, go=None):
        A = self.A; ACC, PK, RQ, VC = 64, 176, 170, 192
        self.QA1, self.QB1, self.QA2, self.QB2 = 224, 228, 232, 236
        def quad(t, j, dst, sc):
            r = ACC + 16*t + 4*j
            return [f"v_mul_f32 v{r+i}, v{sc}, v{r+i}" for i in range(4)] + [f"v_cvt_pk_bf16_f32 v{dst}, v{r}, v{r+1}", f"v_cvt_pk_bf16_f32 v{dst+1}, v{r+2}, v{r+3}"]
        KA, KB, KS, VT = PK, PK+4, PK+8, 208
        L = [f"s_add_u32 s{T[4]}, s{SL}, s{S_KVO}", f"s_mul_i32 s{T[5]}, s{WV}, 2560", f"s_add_u32 s{T[5]}, s{T[5]}, s{T[4]}", f"s_mul_i32 s{T[6]}, s{WV}, 3328",
             f"s_add_u32 s{T[7]}, s{T[6]}, {VREG + 8*3328}", f"s_add_u32 s{T[6]}, s{T[6]}, s{T[4]}", f"s_add_u32 s{T[6]}, s{T[6]}, 10240",
             f"v_add_u32 v{PK+11}, s{T[7]}, v{VL16}", f"v_lshlrev_b32 v{PK+10}, 3, v{VL}", f"v_mov_b32 v{VT+10}, 0x3f803f80", f"v_mov_b32 v{VT+11}, 0x3f803f80",
             ('lg', f"ds_write_b64 v{VW1}, {v(VT+10,2)} offset:{5*32}", None), f"v_mul_f32 v{RQ}, {fhex(QSCALE)}, v{RS}"]
        for n, (t, j, ad, pos) in enumerate(((1, 1, VW2, 1), (1, 2, VW2, 2), (1, 3, VW12, 0), (2, 0, VW2, 7), (2, 1, VW2, 8))):
            L += quad(t, j, VT+2*n, RS) + [('lg', f"ds_write_b64 v{ad}, {v(VT+2*n,2)} offset:{pos*32}", 'vw')]
        L += quad(0, 0, KA, RS) + [('wl', 'vw')] + [('lg', f"ds_read_b128 {v(VC+4*n,4)}, v{PK+11} offset:{1024*n}", ('vc', n)) for n in range(4)] + quad(0, 1, KA+2, RS)
        L += [('vm', f"buffer_store_dwordx4 {v(KA,4)}, v{VL16}, {WS}, s{T[5]} offen {self.stkv}", 'out'), ('lg', f"ds_write_b128 v{VK}, {v(KA,4)} offset:{8*2560}", None)]
        st_v = lambda n: [('wl', ('vc', n)), ('vm', ("s_mov_b64 exec, 0xffff\n" if n == 3 else "") + f"buffer_store_dwordx4 {v(VC+4*n,4)}, v{VL16}, {WS}, s{T[6]} offen offset:{1024*n} {self.stkv}" + ("\ns_mov_b64 exec, -1" if n == 3 else ""), 'out')]
        L += st_v(0) + quad(0, 3, KB, RS) + st_v(1) + quad(1, 0, KB+2, RS) + st_v(2)
        L += [('vm', f"buffer_store_dwordx4 {v(KB,4)}, v{VL16}, {WS}, s{T[5]} offen offset:1024 {self.stkv}", 'out'), ('lg', f"ds_write_b128 v{VK}, {v(KB,4)} offset:{8*2560+1024}", None)]
        L += quad(0, 2, KS, RS) + st_v(3)
        L += [('vm', f"buffer_store_dwordx2 {v(KS,2)}, v{PK+10}, {WS}, s{T[5]} offen offset:2048 {self.stkv}", 'out'), ('lg', f"ds_write_b64 v{VKS}, {v(KS,2)} offset:{8*2560}", None)]
        L += quad(2, 3, self.QA1, RQ) + [f"v_mov_b32 v{q+k}, 0" for q in (self.QA2, self.QB2) for k in (2, 3)]
        self.run32(seq, [128 + 4*k for k in range(8)], sched, at_step, (L, 128, self.o.get("kvrate", 9)), go)
        while L: self.emit(L.pop(0))
        self.stamp('p1.main')
        A.wait_vm('out'); A.wait_lg0()
        self.qpack = [f"v_add_f32 v{ACC+48+k}, v{ACC+48+k}, v{self.ACB+k}" for k in range(16)]
        self.qpack += quad(3, 0, self.QA1+2, RQ) + quad(3, 1, self.QA2, RQ) + quad(3, 2, self.QB1, RQ) + quad(3, 3, self.QB1+2, RQ)

    def kv_sync(self):
        A = self.A; N = A.newlab("nw0"); E = A.newlab("syn"); N0 = A.newlab("nw0")
        A.vm = []; A.lg = []
        A("s_barrier")
        self.stamp('p1.drain')
        A(f"s_cmp_lg_u32 s{WV}, 0\ns_cbranch_scc1 {N0}\ns_add_u32 s3, s{LAY}, 1\ns_mov_b64 exec, 7\nv_mov_b32 v{VKT}, s3\ns_mov_b64 exec, 1\nbuffer_store_dword v{VKT}, v{VKF}, {WS}, 0 offen sc1\ns_mov_b64 exec, -1")
        A.lab(N0)
        for x in self.qpack: A(x)
        A(f"v_mov_b32 v{self.QB2}, v{self.QA2}\nv_mov_b32 v{self.QB2+1}, v{self.QA2+1}")
        A(f"s_mov_b32 exec_lo, 0\nv_mov_b32 v{self.QA2}, 0\nv_mov_b32 v{self.QA2+1}, 0\ns_mov_b32 exec_lo, -1\ns_mov_b32 exec_hi, 0\nv_mov_b32 v{self.QB2}, 0\nv_mov_b32 v{self.QB2+1}, 0\ns_mov_b32 exec_hi, -1")
        self.code_touch()
        G = [(28, 29, 31, 32), (33, 34, 35, 99)]
        A(f"s_mul_i32 s100, s{WV}, 6144\ns_add_u32 s101, s100, 4096\ns_min_u32 s101, s101, 21504")
        for src in range(2):
            back = 2 - src; g1, l1, g2, l2 = G[src]
            A(f"s_add_u32 s3, s{SL}, s{S_KVO}\ns_sub_u32 s3, s3, {back*16*KV_WG}\ns_cmp_lt_u32 s{MB}, {back}\ns_cmov_b32 s3, {OOB}\ns_add_u32 s{g1}, s3, s100\ns_add_u32 s{g2}, s3, s101")
            ko = KREG + src*10240; vo = VREG + src*13312 - 10240
            A(f"s_cmp_lt_u32 s{WV}, 2"); sel(A, l1, ko, vo); A(f"s_cmp_lt_u32 s{WV}, 1"); sel(A, l2, ko, vo)
            A(f"s_add_u32 s{l1}, s{l1}, s100\ns_add_u32 s{l2}, s{l2}, s101")
        A(f"s_cmp_lg_u32 s{WV}, 0\ns_cbranch_scc1 {N}\ns_mov_b64 exec, 0x7f")
        self.spin(VKF, f'v{VKT}', 0x100)
        A(f"s_mov_b64 exec, -1")
        self.stamp('p1.poll')
        A(f"s_branch {E}")
        A.lab(N)
        self.rnd3(S_W3, 0, 0, 10)
        A.lab(E)
        A("s_barrier")
        for tag, (g1, l1, g2, l2) in (('halo1', G[1]), ('halo2', G[0])):
            for g, l, n in ((g1, l1, 4), (g2, l2, 2)):
                A(f"s_mov_b32 m0, s{l}")
                for i in range(n): A.vmem(f"buffer_load_dwordx4 v{VL16}, {WS}, s{g} offen offset:{1024*i} {self.ld} lds", tag)
        A.wait_vm('halo1'); A("s_barrier")
        self.stamp('p2.go')

    def packed_signal(self):
        A = self.A; L = A.newlab("ps"); t = 60
        A(f"s_cmp_lg_u32 s{WV}, 0\ns_cbranch_scc1 {L}\ns_cmp_ge_u32 s{S_U}, 216\ns_cbranch_scc1 {L}")
        A(f"s_lshr_b32 s3, s{S_U}, 3\ns_lshl_b32 s3, s3, 7\ns_add_u32 s3, s3, {PK4}\nv_mov_b32 v{t}, s3\ns_and_b32 s3, s{S_U}, 3\ns_lshl_b32 s3, s3, 7\ns_add_u32 s3, s3, {PK5}\nv_writelane_b32 v{t}, s3, 1")
        A(f"s_mov_b64 exec, 3\nv_mov_b32 v{t+1}, 1\nbuffer_atomic_add v{t+1}, v{t}, {WS}, 0 offen sc1\ns_mov_b64 exec, -1")
        A.lab(L)

    def colsums(self, between, nb):
        A = self.A; L = A.newlab("x0"); L1 = A.newlab("x1"); t = VFREE
        A(f"s_lshl_b32 s{T[7]}, s{LAY}, 2\ns_sub_u32 s{T[7]}, s{RR}, s{T[7]}\ns_cmp_lg_u32 s{T[7]}, 1\ns_cbranch_scc1 {L1}")
        A(f"s_mul_i32 s{T[5]}, s{J}, 7168\ns_add_u32 s{T[5]}, s{T[5]}, {CSP4 - 4096}")
        A(f"s_lshl_b32 s{T[6]}, s{S_WI}, 7\nv_add_u32 v{t}, s{T[6]}, v{VL}")
        for r in range(2):
            A(f"v_add_u32 v{t+1}, {64*r}, v{t}\nv_lshrrev_b32 v{t+2}, 5, v{t+1}\nv_and_b32 v{t+3}, 31, v{t+1}\nv_lshlrev_b32 v{t+3}, 2, v{t+3}\nv_lshl_add_u32 v{t+2}, v{t+2}, 10, v{t+3}")
            for k in range(8): A(f"buffer_load_dword v{t+4+8*r+k}, v{t+2}, {WS}, s{T[5]} offen offset:{128*k} sc1")
        A.lab(L1)
        between()
        A(f"s_cmp_lg_u32 s{T[7]}, 1\ns_cbranch_scc1 {L}")
        A(self.csaddr(t, t+2, t+3, CSF4 - 4096) + f"\nv_add_u32 v{t+3}, 2048, v{t+2}\ns_waitcnt vmcnt({nb})")
        for k in range(1, 8): A(f"v_add_f32 v{t+4}, v{t+4}, v{t+4+k}\nv_add_f32 v{t+12}, v{t+12}, v{t+12+k}")
        for x in self.csfrag(t+4, 64, 68, t+2) + self.csfrag(t+12, 72, 68, t+3): A(x[1] if isinstance(x, tuple) else x)
        A("s_waitcnt lgkmcnt(0)")
        A.lab(L)

    def p2(self):
        A = self.A
        SB = [48, 64, 80]; PB = [96, 104]; PD = 112; OA = [128, 144]; KF = [162, 174]; VF = [184, 192, 200]; CB = [208, 240]
        Q1 = [self.QA1, self.QB1]; Q2 = [self.QA2, self.QB2]
        cz = self.o.get("czero", True)
        order = list(range(7, 0, -1))
        nxt = dict(zip(order, order[1:] + [0]))
        blocks = [(i, hd) for i in order for hd in range(2)] + [('m', 0), ('m', 1)]
        N = len(blocks)
        def kread(i, buf):
            k = KF[buf]
            return [('lg', f"ds_read_b64 {v(k,2)}, v{VKS} offset:{i*2560}", ('k', i)), ('lg', f"ds_read_b128 {v(k+2,4)}, v{VK} offset:{i*2560}", ('k', i)),
                    ('lg', f"ds_read_b128 {v(k+6,4)}, v{VK} offset:{i*2560+1024}", ('k', i))]
        def vread(i, hd, buf):
            return [('lg', f"ds_read_b64_tr_b16 {v(VF[buf]+4*aa+2*p,2)}, v{VV} offset:{i*3328 + (4*aa+2*p)*416 + 192*hd}", ('v', i, hd)) for aa in range(2) for p in range(2)]
        kbuf = {i: i % 2 for i in range(1, 8)}; kbuf[0] = 0; kbuf[8] = 1
        def smf(i, hd, sb):
            k = KF[kbuf[i]]; c = '0' if cz else v(CB[hd], 16)
            return [('mf', f"v_mfma_f32_32x32x16_bf16 {v(sb,16)}, {v(k+2+4*hd,4)}, {v(Q1[hd],4)}, {c}", ('k', i)),
                    ('mf', f"v_mfma_f32_32x32x16_bf16 {v(sb,16)}, {v(k,4)}, {v(Q2[hd],4)}, {v(sb,16)}", None)]
        started = [False, False]
        def pvf(i, hd, pb, vb):
            L = []
            for aa in range(2):
                c = v(OA[hd], 16) if started[hd] else '0'; started[hd] = True
                L.append(('mf', f"v_mfma_f32_32x32x16_bf16 {v(OA[hd],16)}, {v(VF[vb]+4*aa,4)}, {v(pb+4*aa,4)}, {c}", ('v', i, hd) if aa == 0 else None))
            return L
        def emit(x):
            if isinstance(x, str): A(x)
            elif x[0] == 'vm': A.vmem(x[1], x[2])
            elif x[0] == 'lg': A.lds(x[1], x[2])
            else:
                if x[2] is not None: A.wait_lg(x[2])
                A(x[1])
        def weave(mfs, fill):
            cost = lambda x: 8 if isinstance(x, str) and x.startswith("v_exp") else 4
            tot = sum(map(cost, fill)); acc = 0; k = 0
            for x in fill:
                while k < len(mfs) and acc >= tot * k / len(mfs): emit(mfs[k]); k += 1
                emit(x); acc += cost(x)
            while k < len(mfs): emit(mfs[k]); k += 1
        sbuf = lambda n: SB[n % 2]
        for x in kread(order[0], kbuf[order[0]]): emit(x)
        for x in smf(order[0], 0, sbuf(0)): emit(x)
        for n in range(N + 1):
            mfs = []; fill = []
            if n + 1 < N:
                i, hd = blocks[n+1]
                if i == 'm': mfs += smf(0, hd, sbuf(n+1)) + smf(8, hd, SB[2])
                else: mfs += smf(i, hd, sbuf(n+1))
            pv = []
            if n >= 1:
                i, hd = blocks[n-1]
                if i == 'm': pv = pvf(0, hd, PB[(n-1) % 2], (n-1) % 2) + pvf(8, hd, PD, 2)
                else: pv = pvf(i, hd, PB[(n-1) % 2], (n-1) % 2)
            if n < N:
                i, hd = blocks[n]
                if i != 'm' and hd == 0:
                    if nxt[i] == 3:
                        A.wait_vm('halo2'); A("s_barrier")
                    fill += kread(nxt[i], kbuf[nxt[i]])
                sb = sbuf(n)
                if i == 'm':
                    pre = [f"v_cndmask_b32 v{sb+r}, v{sb+r}, v{SB[2]+r}, s[{MASK+2*r}:{MASK+2*r+1}]" for r in range(16)]
                    for x in pre: emit(x)
                    for x in pv: emit(x)
                    pv = []
                    fill += vread(0, hd, n % 2) + vread(8, hd, 2)
                else:
                    fill += vread(i, hd, n % 2)
                ex = []
                for r in range(16):
                    ex.append(f"v_exp_f32 v{sb+r}, v{sb+r}")
                    if r >= 3 and r % 2 == 1: ex.append(f"v_cvt_pk_bf16_f32 v{PB[n%2]+(r-3)//2}, v{sb+r-3}, v{sb+r-2}")
                ex.append(f"v_cvt_pk_bf16_f32 v{PB[n%2]+7}, v{sb+14}, v{sb+15}")
                if i == 'm':
                    for rr in range(8):
                        ex.append(f"v_and_b32 v{PD+rr}, v{PM+rr}, v{PB[n%2]+rr}")
                        ex.append(f"v_bfi_b32 v{PB[n%2]+rr}, v{PM+rr}, 0, v{PB[n%2]+rr}")
                fill += ex
                if blocks[n] == (order[-1], 1):
                    for x in mfs[:2]: emit(x)
                    for x in kread(8, kbuf[8]): emit(x)
                    mfs = pv + mfs[2:]; pv = []
            weave(mfs + pv, fill) if fill else [emit(x) for x in mfs + pv]
        A(f"v_min_f32 v48, v{OA[0]+12}, v{OA[1]}\nv_max_f32 v49, v{OA[0]+12}, v{OA[1]}\nv_cmp_u_f32 s[36:37], v{OA[0]+12}, v{OA[1]}")
        A(f"v_cmp_gt_f32 vcc, {fhex(2.0**-60)}, v48\ns_or_b64 s[36:37], s[36:37], vcc\nv_cmp_lt_f32 vcc, {fhex(2.0**60)}, v49\ns_or_b64 s[36:37], s[36:37], vcc\ns_cbranch_scc1 main_slow")
        if self.o.get("forceslow"): A("s_branch main_slow")
        A.lab("main_slow_back")
        self.slow_attention(OA, Q1, Q2)
        A("s_barrier")
        self.stamp('p2.main')
        ra, rb = 48, 49
        A(f"v_rcp_f32 v{ra}, v{OA[0]+12}\nv_rcp_f32 v{rb}, v{OA[1]}")
        A(f"s_nop 0")
        def pk(dst, r, rs):
            for i in range(4): A(f"v_mul_f32 v{r+i}, v{rs}, v{r+i}")
            A(f"v_cvt_pk_bf16_f32 v{dst}, v{r}, v{r+1}\nv_cvt_pk_bf16_f32 v{dst+1}, v{r+2}, v{r+3}")
        pk(52, OA[0]+4, ra); pk(54, OA[0]+8, ra)
        A.vmem(f"buffer_store_dwordx4 {v(52,4)}, v{VO1}, {WS}, s{SL} offen {self.st}")
        pk(56, OA[1]+4, rb); pk(58, OA[1]+8, rb)
        A.vmem(f"buffer_store_dwordx4 {v(56,4)}, v{VO1}, {WS}, s{SL} offen offset:768 {self.st}")
        pk(60, OA[0], ra); pk(62, OA[1]+12, rb)
        A("s_mov_b32 exec_lo, 0")
        A.vmem(f"buffer_store_dwordx4 {v(60,4)}, v{VO3}, {WS}, s{SL} offen offset:512 {self.st}", 'out')
        A("s_mov_b32 exec_lo, -1")

    def slow_attention(self, OA, Q1, Q2):
        B = Asm(); B.uid = 9000
        S_, P_, K_, V_, C_, M_, AK, AKS, AV, NI = 48, 96, 162, 184, 208, 64, 65, 66, 67, 68
        I, I0 = T[0], T[1]
        B.lab("main_slow")
        B(f"s_lshl_b32 s{I0}, s{MB}, 2\ns_add_u32 s{I0}, s{I0}, s{WV}\ns_min_u32 s{I0}, s{I0}, 8\ns_sub_u32 s{I0}, 8, s{I0}\nv_mov_b32 v{NI}, 0xff800000")
        def scores(hd, c, tag):
            B(f"s_mul_i32 s3, s{I}, 2560\nv_add_u32 v{AK}, s3, v{VK}\nv_add_u32 v{AKS}, s3, v{VKS}\ns_mul_i32 s3, s{I}, 3328\nv_add_u32 v{AV}, s3, v{VV}")
            B(f"ds_read_b64 {v(K_,2)}, v{AKS}\nds_read_b128 {v(K_+2,4)}, v{AK}\nds_read_b128 {v(K_+6,4)}, v{AK} offset:1024\ns_waitcnt lgkmcnt(0)")
            B(f"v_mfma_f32_32x32x16_bf16 {v(S_,16)}, {v(K_+2+4*hd,4)}, {v(Q1[hd],4)}, {c}\nv_mfma_f32_32x32x16_bf16 {v(S_,16)}, {v(K_,4)}, {v(Q2[hd],4)}, {v(S_,16)}\ns_nop 15")
            B(f"s_cmp_lg_u32 s{I}, 0\ns_cbranch_scc1 {tag}_a")
            for r in range(16): B(f"v_cndmask_b32 v{S_+r}, v{S_+r}, v{NI}, s[{MASK+2*r}:{MASK+2*r+1}]")
            B.lab(f"{tag}_a")
            B(f"s_cmp_lg_u32 s{I}, 8\ns_cbranch_scc1 {tag}_b")
            for r in range(16): B(f"v_cndmask_b32 v{S_+r}, v{NI}, v{S_+r}, s[{MASK+2*r}:{MASK+2*r+1}]")
            B.lab(f"{tag}_b")
        for hd in range(2):
            B(f"v_mov_b32 v{M_}, v{NI}\ns_mov_b32 s{I}, s{I0}")
            B.lab(f"main_max{hd}")
            scores(hd, '0', f"main_m{hd}")
            for r in range(0, 16, 2): B(f"v_max3_f32 v{M_}, v{M_}, v{S_+r}, v{S_+r+1}")
            B(f"s_add_u32 s{I}, s{I}, 1\ns_cmp_le_u32 s{I}, 8\ns_cbranch_scc1 main_max{hd}")
            B(f"v_mov_b32 v{M_+5}, v{M_}\nv_permlane32_swap_b32 v{M_}, v{M_+5}\nv_max_f32 v{M_}, v{M_}, v{M_+5}")
            for r in range(16): B(f"v_sub_f32 v{C_+r}, 0, v{M_}\nv_mov_b32 v{OA[hd]+r}, 0")
            B(f"s_mov_b32 s{I}, s{I0}\ns_nop 1")
            B.lab(f"main_sum{hd}")
            scores(hd, v(C_, 16), f"main_s{hd}")
            for aa in range(2):
                for p in range(2): B(f"ds_read_b64_tr_b16 {v(V_+4*aa+2*p,2)}, v{AV} offset:{(4*aa+2*p)*416 + 192*hd}")
            for r in range(16): B(f"v_exp_f32 v{S_+r}, v{S_+r}")
            for r in range(8): B(f"v_cvt_pk_bf16_f32 v{P_+r}, v{S_+2*r}, v{S_+2*r+1}")
            B("s_waitcnt lgkmcnt(0)")
            for aa in range(2): B(f"v_mfma_f32_32x32x16_bf16 {v(OA[hd],16)}, {v(V_+4*aa,4)}, {v(P_+4*aa,4)}, {v(OA[hd],16)}")
            B(f"s_nop 7\ns_add_u32 s{I}, s{I}, 1\ns_cmp_le_u32 s{I}, 8\ns_cbranch_scc1 main_sum{hd}")
        B("s_nop 15\ns_branch main_slow_back")
        self.rare.append(B.render())

    def proj_setup(self, khoff):
        A = self.A; ACC, B0 = 64, 124
        A(f"s_mul_i32 s{T[7]}, s{KH}, {khoff}")
        for k in range(3): A(f"v_add_u32 v{B0+k}, s{T[7]}, v{[VL16, VB1, VB2][k]}")
        for k in range(10):
            A(f"v_lshlrev_b32 v{ACC+2*k}, 16, v{RES+k}\nv_and_b32 v{ACC+2*k+1}, 0xffff0000, v{RES+k}")

    def proj_loop(self, nb, wl, sched, hook, t0=0, nreg=0, go=None, side=None):
        A = self.A; ACC, WFB, B0 = 64, [104, 176], 124
        bases = [B0, B0+1, B0+2]
        if go and not self.o.get("onebar", 1): self.go(*go); go = None
        for t in range(5): A.lds(f"ds_read_b128 {v(WFB[0]+4*t,4)}, {self.ldsaddr(wl(0) + 1024*t, bases)}", ('f', 0))
        if go: self.go(*go)
        fill = []
        for b in range(nb):
            hook(b, fill)
            fill += sched[t0 + b]
            self.need(('a5', b), fill)
            A.wait_lg(('f', b))
            for t in range(5):
                for u in range(2):
                    d = ACC + 20*u + 4*t
                    wop = v(WFB[b&1]+4*t, 4) if b < nb - nreg else self.wreg(5*(b - nb + nreg) + t)
                    A(f"v_mfma_f32_16x16x32_bf16 {v(d,4)}, {wop}, {a(8*(b % 20)+4*u,4)}, {'0' if (b == 0 and u == 1) else v(d,4)}")
                    k = 2*t + u
                    if k < 5 and b < nb - 1 - nreg: A.lds(f"ds_read_b128 {v(WFB[(b+1)&1]+4*k,4)}, {self.ldsaddr(wl(b+1) + 1024*k, bases)}", ('f', b+1))
                    if k >= 4: self.drain(fill, 2)
                    if side: self.drain(side[0], side[1])
        while fill: self.emit(fill.pop(0))

    def wreg(self, f):
        return a(160 + 4*f, 4) if f < 24 else v(236, 4)

    def wreg_load(self):
        A = self.A; nreg = self.o.get("nreg5", 5)
        for b in range(27 - nreg, 27):
            A(f"s_mul_i32 s{T[6]}, s{KH}, 10240\ns_add_u32 s{T[6]}, s{T[6]}, s{S_W5}\ns_add_u32 s{T[6]}, s{T[6]}, {(4*(b >> 1) + (b & 1))*5120}\ns_add_u32 s{T[7]}, s{T[6]}, 4096")
            for t in range(5): A(f"buffer_load_dwordx4 {self.wreg(5*(b - 27 + nreg) + t)}, v{VL16}, {WS}, s{T[6 + t//4]} offen offset:{1024*(t & 3)}")

    def p3(self):
        A = self.A; o = self.o; SA0, SA1 = T[4], T[5]
        whole = o.get("whole3", 1)
        if whole:
            A(f"s_mul_i32 s{SA0}, s{S_A3}, {20*1024}\ns_add_u32 s{SA0}, s{SA0}, s{SL}\ns_add_u32 s{SA0}, s{SA0}, {OO}\ns_add_u32 s{SA1}, s{SA0}, {10*1024}")
        else:
            for sa, m in ((SA0, S_A3), (SA1, S_A3B)):
                A(f"s_mul_i32 s{sa}, s{m}, {20*1024}\ns_add_u32 s{sa}, s{sa}, s{SL}\ns_mul_i32 s{T[7]}, s{KH}, {10*1024}\ns_add_u32 s{sa}, s{sa}, s{T[7]}\ns_add_u32 s{sa}, s{sa}, {OO}")
        def aload(b):
            L = []
            if b and b % 4 == 0: L += [f"s_add_u32 s{SA0}, s{SA0}, 4096", f"s_add_u32 s{SA1}, s{SA1}, 4096"]
            for u, sa in enumerate((SA0, SA1)):
                L.append(('vm', f"buffer_load_dwordx4 {a(8*b+4*u,4)}, v{VL16}, {WS}, s{sa} offen offset:{(b&3)*1024} {self.ld}", ('a5', b)))
            return L
        up = o.get("up3", 6)
        for b in range(up): [self.emit(x) for x in aload(b)]
        early = o.get("early4", 2)
        sched = self.edf([(0, b, aload(b)) for b in range(up, 10)] + [(4, 20 + c, self.rnd(S_W4, c*16384, c*16384, 4, 'w4')) for c in range(early)], 10, o.get("r3", 3.0))
        self.proj_setup(5120)
        if whole:
            ACC = 64; bases = [VL16, VB1, VB2]; WFS = [104 + 4*k for k in range(5)] + [128 + 4*k for k in range(5)]
            rd = lambda n: A.lds(f"ds_read_b128 {v(WFS[n % 10],4)}, {self.ldsaddr(lds3(n // 10) + (n % 10)*1024, bases)}", ('f', n))
            for n in range(10): rd(n)
            self.go(('a5', 0), 'p3.go')
            fill = []
            for n in range(100):
                if n % 10 == 0:
                    if n == 40 and early: A("s_barrier")
                    fill += sched[n // 10]
                    self.need(('a5', n // 10), fill)
                if n % 2 == 0: A.wait_lg(('f', n + 1))
                d = ACC + 4*(n % 5)
                A(f"v_mfma_f32_16x16x32_bf16 {v(d,4)}, {v(WFS[n % 10],4)}, {a(4*(n // 5),4)}, {v(d,4)}")
                if n + 10 < 100: rd(n + 10)
                if n % 2: self.drain(fill, 2)
            while fill: self.emit(fill.pop(0))
            A("s_barrier")
        else:
            self.proj_loop(10, lds3, sched, lambda b, fill: A("s_barrier") if b == 4 and early else None, go=(('a5', 0), 'p3.go'))
        self.stamp('p3.main')
        self.proj_epilogue(3, None if whole else XCH3)

    def flag_check(self, reg, code):
        A = self.A; L = A.newlab("fc")
        A(f"s_mov_b64 exec, 1\nv_cmp_gt_u32 vcc, s{TGT}, v{reg}\ns_cbranch_vccz {L}")
        self.spin(VCNT, f"s{TGT}", code)
        A.lab(L); A("s_mov_b64 exec, -1")

    def signal(self):
        A = self.A; L = A.newlab("sg")
        A(f"s_add_u32 s{TGT}, s{TGT}, 16\ns_cmp_lg_u32 s{WV}, 0\ns_cbranch_scc1 {L}\ns_mov_b64 exec, 1\nv_mov_b32 v252, 1\nbuffer_atomic_add v252, v{VCNT}, {WS}, 0 offen sc1\ns_mov_b64 exec, -1")
        A.lab(L)

    def ffn(self):
        A = self.A; o = self.o
        ACC, STD, MU, RS, AP, PK = 64, 208, 216, 217, 220, 224
        WFS = [176 + 4*k for k in range(8)]
        SA, SA0, SA1, SH1, SH1B, SH2 = T[4], T[4], T[5], T[0], T[1], T[3]
        nreg = o.get("nreg5", 5)
        nc5 = (27 - nreg + 1) // 2
        sizes = [4]*10 + [3]*10 + [5]*nc5
        addr = []; p = 0
        for k, kb in enumerate(sizes):
            if k == 10: p = o.get("g2at", 24576)
            if p + kb*4096 > LDS_MISC: p = 0
            addr.append(p); p += kb*4096
        seq = [(k, ACC + 16*t, addr[k >> 2] + (k & 3)*4096 + 1024*t, a(4*k, 4), k == 0) for k in range(40) for t in range(4)]
        seq += [(39, ACC + 16*t, CSF4 + 1024*t, v(AP, 4), False) for t in range(4)]
        seq += [(40 + k, ACC + 64 + 16*t, addr[10 + (k >> 2)] + (k & 3)*3072 + 1024*t, a(4*k, 4), k == 0) for k in range(40) for t in range(3)]
        seq += [(79, ACC + 64 + 16*t, CSF4 + 4096 + 1024*t, v(AP, 4), False) for t in range(3)]
        vis = lambda nf: seq[max(nf - len(WFS), 0)][0]
        npre = o.get("npre4", 6)
        ch = [(S_W4, c*16384, 4, addr[c], vis(16*c), 4*c + 3, c < npre) for c in range(10)]
        ch += [(S_W4, 163840 + c*12288, 3, addr[10 + c], vis(164 + 12*c), 43 + 4*c, False) for c in range(10)]
        ch += [(S_W5, c*20480, 5, addr[20 + c], max(80, 79 + 2*c), 81 + 2*c, False) for c in range(nc5)]
        bars = list(range(1, 80, 4)) + [80] + list(range(81, 107, 2))
        jobs, valid, used = self.plan(ch, bars)
        lastbar = max(b for b in used)
        live = [(c[3], c[3] + 20480) for c in ch[20:] if c[5] >= lastbar]
        xch = [x for x in (0, 57344, 77824, 98304, 118784, 126976) if all(x + 20480 <= lo or hi <= x for lo, hi in live)][0]
        wl5 = lambda b: addr[20 + (b >> 1)] + (b & 1)*5120
        A(f"s_add_u32 s{SA}, s{SL}, s{S_A1}\ns_add_u32 s{SA}, s{SA}, {X1}")
        self.stats_load(ST3, STD)
        def aload(st_):
            L = [f"s_add_u32 s{SA}, s{SA}, 4096"] if st_ and st_ % 4 == 0 else []
            return L + [('vm', f"buffer_load_dwordx4 {a(4*st_,4)}, v{VL16}, {WS}, s{SA} offen offset:{(st_ & 3)*1024} {self.ld}", ('a', st_))]
        def aload5(b):
            L = []
            if b == 0:
                for sa, m in ((SA0, S_A3), (SA1, S_A3B)):
                    L.append(f"s_mul_i32 s{sa}, s{m}, {54*1024}\ns_add_u32 s{sa}, s{sa}, s{SL}\ns_lshl_b32 s3, s{KH}, 10\ns_add_u32 s{sa}, s{sa}, s3\ns_add_u32 s{sa}, s{sa}, {HH}")
            elif b % 2 == 0: L += [f"s_add_u32 s{SA0}, s{SA0}, 4096", f"s_add_u32 s{SA1}, s{SA1}, 4096"]
            for u, sa in enumerate((SA0, SA1)):
                L.append(('vm', f"buffer_load_dwordx4 {a(8*(b % 20)+4*u,4)}, v{VL16}, {WS}, s{sa} offen offset:{(b&1)*2048} {self.ld}", ('a5', b)))
            return L
        up = o.get("up4", 10); chk1 = o.get("chk1", 77); chk2 = o.get("chk2", 10)
        for k in range(up): [self.emit(x) for x in aload(k)]
        jobs += [(0, k, aload(k)) for k in range(up, 40)]
        jobs += [(chk1 if b < 15 else max(80 + chk2, 80 + b - 19), 79.6 + (b >= o.get("up5", 5))*(b - 0.6), aload5(b), 80 + b) for b in range(27)]
        r4a, r4b, r4c, r5 = o.get("r4a", 1.7), o.get("r4b", 1.4), o.get("r4c", 2.5), o.get("r5", 3.5)
        sched = self.edf(jobs, 107, lambda k: r4a if k < 40 else (0 if k < o.get("quiet4", 50) else (r4b if k < chk1 else (r4c if k < 80 else r5))))
        assert not any(isinstance(x, tuple) and x[2] in [('a5', b) for b in range(chk1 - 40 >> 1, 27)] for k in range(80) for x in sched[k])
        if o.get("verbose"): print("addr", addr, "xch", xch, "valid", valid, {k: [x[2] for x in L if isinstance(x, tuple)] for k, L in sched.items()})
        A(f"s_add_u32 s{SH1}, s{SL}, s{S_H}\ns_add_u32 s{SH1}, s{SH1}, {HH}\ns_mul_i32 s{SH2}, s{J}, 1536\ns_add_u32 s{SH2}, s{SH2}, s{SH1}\ns_add_u32 s{SH2}, s{SH2}, {63*512}")
        A(f"s_lshl_b32 s3, s{J}, 11\ns_add_u32 s{SH1}, s{SH1}, s3\ns_mov_b32 s{SH1B}, s{SH1}\ns_cmp_eq_u32 s{J}, 15\ns_cmov_b32 s{SH1B}, {OOB}\ns_cmov_b32 s{SH2}, {OOB}")
        sched[28] += self.stats_finish(STD, MU, RS) + [f"v_mul_f32 v{RS}, v{RS}, v{RS}"] + self.split3(MU, AP, STD)
        def epi(t0, t1, tag):
            body = []
            for t in range(t0, t1):
                r = ACC + 16*t; pk = PK + 4*(t % 3)
                for hf in range(2):
                    g = r + 8*hf
                    for i in range(4): body += [f"v_max_f32 v{g+i}, 0, v{g+i}", f"v_mul_f32 v{g+4+i}, v{RS}, v{g+4+i}"]
                    body += [f"v_mul_f32 v{g+i}, v{g+i}, v{g+4+i}" for i in range(4)]
                    body += [f"v_cvt_pk_bf16_f32 v{pk+2*hf}, v{g}, v{g+1}", f"v_cvt_pk_bf16_f32 v{pk+2*hf+1}, v{g+2}, v{g+3}"]
                sb, im = (SH1 if t < 3 else SH1B, 512*t) if t < 4 else (SH2, 512*(t-4))
                body.append(('vm', f"buffer_store_dwordx4 {v(pk,4)}, v{VH}, {WS}, s{sb} offen offset:{im} {self.st}", tag))
            return body
        epi1 = epi(0, 4, 'h1')
        preload = ('vm', f"s_mov_b64 exec, 1\nbuffer_load_dword v253, v{VCNT}, {WS}, 0 offen sc1\ns_mov_b64 exec, -1", 'fl')
        sig1 = o.get("sig1", 57)
        def at_step(st_, fill):
            if st_ in used or st_ == sig1:
                for tag in valid.get(st_, []): self.need(tag, fill)
                if st_ == sig1:
                    assert not epi1
                    A.wait_vm('h1')
                A("s_barrier")
                if st_ == sig1: self.signal()
                if o.get("in4") and st_ > 40: self.stamp(f'g.{st_}')
            if st_ == 40: self.stamp('p4.g1')
            if st_ == chk1 - o.get("fl1", 4): fill.insert(0, preload)
            if st_ == chk1:
                self.need('fl', fill); self.flag_check(253, 0x400); self.stamp('p4.chk')
            fill += sched[st_]
            if st_ < 40: self.need(('a', st_), fill)
        self.run32(seq, WFS, sched, at_step, (epi1, 165, o.get("epirate", 4)), (('a', 0), 'p4.go'))
        self.stamp('p4.main')
        epi2 = epi(4, 7, 'h2')
        if not o.get("epi2rate", 0):
            while epi2: self.emit(epi2.pop(0))
        self.stamp('p4.epi')
        self.proj_setup(10240)
        for tag in valid.get(80, []): A.wait_vm(tag)
        A.wait_vm(('a5', 0)); A("s_barrier")
        self.stamp('p5.go')
        sig2 = o.get("sig2", 3)
        def hook(b, fill):
            if 80 + b in used and b or b == sig2:
                for tag in valid.get(80 + b, []): self.need(tag, fill)
                if b == sig2:
                    assert not epi2
                    A.wait_vm('h2')
                A("s_barrier")
                if b == sig2: self.signal()
            if b == chk2 - 2: fill.insert(0, preload)
            if o.get("in5") and b in (4, chk2, 15, 20): self.stamp(f'p5.b{b}')
            if b == chk2:
                self.need('fl', fill); self.flag_check(253, 0x480)
                if o.get("in5"): self.stamp('p5.chk')
        self.proj_loop(27, wl5, sched, hook, 80, nreg, side=(epi2, o.get("epi2rate", 0)))
        self.stamp('p5.main')
        self.proj_epilogue(5, xch)

    def proj_epilogue(self, which, xo):
        A = self.A; o = self.o; ACC, WF, B0 = 64, 112, 136; ntail = 0
        fill = []
        if which == 3:
            e0 = o.get("early4", 2) * 16; e1 = e0 + o.get("post4", 33)
            n3 = -(-(o.get("npre4", 6)*16 - e1) // 3)
            assert e1*1024 <= XCH3 and (e1 + 3*n3)*1024 <= LDS_MISC
            self.post = (S_W4, e0*1024, e0*1024, e1 - e0)
            self.pre = lambda: self.colsums(lambda: self.rnd3(S_W4, e1*1024, e1*1024, n3), n3)
        else:
            self.pre1 = o.get("pre1", 6)
            assert xo + 20480 <= 20480 or xo >= 20480 + 36864
            self.post = (S_W1, 0, 20480, 36)
            self.pre = lambda: self.rnd3(S_W1, 36864, 20480 + 36864, 4*(self.pre1 - 3))
        if xo is not None:
            A(f"v_add_u32 v{B0}, {xo}, v{VXW}\nv_add_u32 v{B0+1}, {xo}, v{VXR}")
            for t in range(5): A.lds(f"ds_write_b128 v{B0}, {v(ACC+20+4*t,4)} offset:{1024*t}")
            A.wait_lg0(); A("s_barrier")
            for t in range(5): A.lds(f"ds_read_b128 {v(ACC+20+4*t,4)}, v{B0+1} offset:{1024*t}", ('x', t))
        if which == 5:
            A(f"s_cmp_lg_u32 s{LAY}, 0\ns_cbranch_scc1 main_final")
            self.fin_state = (list(A.lg), ACC); self.fin_x = xo
        body = []
        for t in range(5):
            if xo is not None:
                body.append(('wl', ('x', t)))
                body += [f"v_pk_add_f32 {v(ACC+4*t+i,2)}, {v(ACC+4*t+i,2)}, {v(ACC+20+4*t+i,2)}" for i in (0, 2)]
            body += [f"v_cvt_pk_bf16_f32 v{RES+2*t}, v{ACC+4*t}, v{ACC+4*t+1}", f"v_cvt_pk_bf16_f32 v{RES+2*t+1}, v{ACC+4*t+2}, v{ACC+4*t+3}"]
        xoff = X1 if which == 3 else LS + XA
        soff = ST3 if which == 3 else LS + STA
        A(f"s_add_u32 s{T[4]}, s{SL}, s{S_X}\ns_add_u32 s{T[4]}, s{T[4]}, {xoff}\ns_add_u32 s{T[5]}, s{T[4]}, 4096\ns_add_u32 s{T[6]}, s{SL}, s{S_STX}\ns_add_u32 s{T[6]}, s{T[6]}, {soff}")
        body.append(('vm', f"buffer_store_dwordx4 {v(RES,4)}, v{VX}, {WS}, s{T[4]} offen {self.st}", 'out'))
        body.append(('vm', f"buffer_store_dwordx4 {v(RES+4,4)}, v{VX}, {WS}, s{T[4]} offen offset:2048 {self.st}", 'out'))
        t4 = WF
        body += [f"v_mov_b32 v{t4+k}, v{RES+8+(k&1)}" for k in range(6)]
        body += [f"v_permlane32_swap_b32 v{t4+4}, v{t4+2}", f"v_permlane32_swap_b32 v{t4+5}, v{t4+3}"]
        body.append(('vm', f"s_mov_b32 exec_hi, 0\nbuffer_store_dwordx4 {v(t4,4)}, v{VX}, {WS}, s{T[5]} offen {self.st}\ns_mov_b32 exec_hi, -1", 'out'))
        s0, s1 = WF + 8, WF + 9
        p0, p1 = WF + 12, WF + 14
        body += [f"v_pk_add_f32 {v(p0,2)}, {v(ACC,2)}, {v(ACC+2,2)}", f"v_pk_mul_f32 {v(p1,2)}, {v(ACC,2)}, {v(ACC,2)}", f"v_pk_fma_f32 {v(p1,2)}, {v(ACC+2,2)}, {v(ACC+2,2)}, {v(p1,2)}"]
        for i in range(4, 20, 2): body += [f"v_pk_add_f32 {v(p0,2)}, {v(p0,2)}, {v(ACC+i,2)}", f"v_pk_fma_f32 {v(p1,2)}, {v(ACC+i,2)}, {v(ACC+i,2)}, {v(p1,2)}"]
        body += [f"v_add_f32 v{s0}, v{p0}, v{p0+1}", f"v_add_f32 v{s1}, v{p1}, v{p1+1}"]
        for sw in ("v_permlane16_swap_b32", "v_permlane32_swap_b32"):
            body += [f"v_mov_b32 v{s0+2}, v{s0}", f"v_mov_b32 v{s0+3}, v{s1}", f"{sw} v{s0}, v{s0+2}", f"{sw} v{s1}, v{s0+3}", f"v_add_f32 v{s0}, v{s0}, v{s0+2}", f"v_add_f32 v{s1}, v{s1}, v{s0+3}"]
        self.mix(body, fill, 7)
        while fill: self.emit(fill.pop(0))
        A("s_mov_b64 exec, 0xffff")
        A.vmem(f"buffer_store_dwordx2 {v(s0,2)}, v{VSX}, {WS}, s{T[6]} offen {self.st}", 'out')
        A("s_mov_b64 exec, -1")

    def final(self):
        A = self.A; t = VFREE
        A.lab("main_final")
        A.lg, ACC = self.fin_state
        xo = self.fin_x
        A(f"s_xor_b32 s3, s{WV}, 1\ns_mul_i32 s3, s3, 5120\ns_add_u32 s3, s3, {xo}\nv_and_b32 v{t}, 15, v{VL}\nv_mul_u32_u24 v{t}, 176, v{t}\nv_lshrrev_b32 v{t+1}, 4, v{VL}\nv_lshl_add_u32 v{t}, v{t+1}, 3, v{t}\nv_add_u32 v{t}, s3, v{t}")
        for n in range(3):
            A(f"v_add_u32 v{t+1}, {64*n}, v{VL}\nv_mul_u32_u24 v{t+2}, 6554, v{t+1}\nv_lshrrev_b32 v{t+2}, 16, v{t+2}\nv_mul_u32_u24 v{t+3}, 10, v{t+2}\nv_sub_u32 v{t+3}, v{t+1}, v{t+3}\nv_lshlrev_b32 v{t+3}, 4, v{t+3}")
            A(f"v_mad_u32_u24 v{t+4+n}, v{t+2}, s3, v{t+3}".replace("s3", f"v{t+11}") if False else f"v_mul_u32_u24 v{t+4+n}, 176, v{t+2}\nv_add3_u32 v{t+4+n}, v{t+4+n}, v{t+3}, s3\nv_mul_u32_u24 v{t+8+n}, 1280, v{t+2}\nv_add_u32 v{t+8+n}, v{t+8+n}, v{t+3}")
        A(f"s_lshl_b32 s{T[4]}, s{S_A3}, 4\ns_mul_i32 s{T[4]}, s{T[4]}, 1280\ns_mul_i32 s{T[5]}, s{CT}, 160\ns_add_u32 s{T[4]}, s{T[4]}, s{T[5]}")
        A.wait_lg0()
        for k in range(5):
            for i in (0, 2): A(f"v_pk_add_f32 {v(ACC+4*k+i,2)}, {v(ACC+4*k+i,2)}, {v(ACC+20+4*k+i,2)}")
            A(f"v_cvt_pk_bf16_f32 v{RES+2*k}, v{ACC+4*k}, v{ACC+4*k+1}\nv_cvt_pk_bf16_f32 v{RES+2*k+1}, v{ACC+4*k+2}, v{ACC+4*k+3}")
            A(f"ds_write_b64 v{t}, {v(RES+2*k,2)} offset:{32*k}")
        A("s_waitcnt lgkmcnt(0)")
        for n in range(3): A(f"ds_read_b128 {v(112+4*n,4)}, v{t+4+n}")
        for n in range(3):
            A(f"s_waitcnt lgkmcnt({2-n})")
            if n == 2: A("s_mov_b32 exec_hi, 0")
            A(f"buffer_store_dwordx4 {v(112+4*n,4)}, v{t+8+n}, {OS}, s{T[4]} offen {self.o.get('stout', '')}")
        A("s_mov_b32 exec_hi, -1")

    def gen(self):
        A = self.A
        o_big = False
        def stop(name):
            if self.stop == name: A.wait_all(); A("s_branch main_done")
        self.setup()
        self.stamp('start')
        self.p1_first()
        A.lab("main_layer")
        self.kv_sync(); stop("p1")
        self.p2()
        self.cluster_sync((S_W3, 61440, lds3(6), 40), None, 0x200, self.wreg_load if self.o.get('nreg5', 5) else None); stop("p2")
        self.p3()
        self.cluster_sync(self.post, self.pre, 0x300); stop("p3")
        self.ffn()
        self.cluster_sync(self.post, self.pre, 0x500); stop("p5")
        A(f"s_mov_b32 s{LAY}, 1\ns_add_u32 s{SL}, s{SL}, {LS}\ns_mov_b32 s{S_PB}, {64 if o_big else 32}")
        self.stamp('start')
        self.p1()
        A("s_branch main_layer")
        self.final()
        A.lab("main_done")
        if self.prof:
            A.wait_all()
            if self.stop: A(f"s_mov_b32 s{S_PB}, 32")
            self.stamp('end')
            A(f"s_cmp_lg_u32 s{WV}, 0\ns_cbranch_scc1 main_end\ns_lshl_b32 s3, s2, 8\ns_add_u32 s3, s3, {PROF}\nv_lshlrev_b32 v{VFREE}, 2, v{VL}")
            A(f"buffer_store_dword v{VPROF}, v{VFREE}, {WS}, s3 offen\ns_add_u32 s3, s3, 0x10000\nbuffer_store_dword v{VPROF+1}, v{VFREE}, {WS}, s3 offen")
        if self.o.get("diagpad"):
            A(f"v_readlane_b32 s3, v{VPROF}, 0")
            A.lab("main_pad")
            A(f"s_memrealtime s[38:39]\ns_waitcnt lgkmcnt(0)\ns_sub_u32 s38, s38, s3\ns_cmp_lt_u32 s38, {self.o['diagpad']}\ns_cbranch_scc1 main_pad")
        if self.o.get("dbgprof"):
            t = VFREE; src = VPROF + (self.o["dbgprof"] - 1)
            A(f"s_cmp_lg_u32 s2, {self.o.get('dbgwg', 100)}\ns_cbranch_scc1 main_end\nv_readlane_b32 s3, v{src}, 0\nv_subrev_u32 v{t}, s3, v{src}")
            A(f"v_lshrrev_b32 v{t+1}, 2, v{VL}\nv_and_b32 v{t+1}, 8, v{t+1}\nv_and_b32 v{t+2}, 7, v{VL}\nv_add_u32 v{t+1}, v{t+1}, v{t+2}\nv_lshlrev_b32 v{t+1}, 2, v{t+1}")
            A(f"s_mov_b32 exec_lo, 0xfe\ns_mov_b32 exec_hi, 0xff\nbuffer_store_dword v{t}, v{t+1}, {DS_}, 0 offen")
        A.lab("main_end")
        A("s_endpgm")
        for blk in self.rare: A(blk)
        A.lab("main_last")

def gen_main(A, opts):
    m = Main(A, opts); m.gen()
    assert len(m.names) <= 32, len(m.names)
    if m.names: A.L.insert(0, Ins(f"; stamps {opts.get('mx', 512)} " + " ".join(m.names)))
```

```python
from asmlib import *
from layout import *
from pack import srd, sel, OOB, frag32_steps
import math

WS = "s[4:7]"; XS = "s[8:11]"; OS = "s[12:15]"; DS_ = "s[16:19]"
MB, J, WV, LAY, RH, CT, RR, KH = 20, 21, 22, 23, 24, 25, 26, 27
SL = 40
TGT = 41
S_A1 = 42
S_ST1 = 43
S_KVO = 44
S_A3 = 45
S_A3B = 46
S_X = 47
S_STX = 48
S_W1, S_W3, S_W4, S_W5 = 49, 50, 51, 52
S_H = 53
S_PB = 54
S_WI = 55
S_W4B = 38
S_U = 98
GUS = "s[56:59]"; WDS = "s[60:63]"
MASK = 64
T = [28, 29, 30, 31, 32, 33, 34, 35, 36, 37]

VL, VL16, VST, RES = 1, 2, 3, 4
VO1, VKT, VO3, VX, VSX, VH, VCNT, VKF, VK, VKS, VV, VW2, VW12, VW1, VXW, VXR, VB1, VB2 = range(14, 32)
PM = 32
VPROF = 40
VTG, VDUM = 42, 43
VFREE = 44

LDS_MISC = 147456
CSF1 = LDS_MISC; CSF4 = LDS_MISC + 4096
KREG = 36864; VREG = KREG + 12 * 2560
XCH3 = 86016; XCH5 = 0
STG4 = 16384; STG5 = STG4 + 20480; STG3 = LDS_MISC + 8192
QSCALE = math.log2(math.e) / math.sqrt(20.0)

def lds1(st): return ((st + 5) % 36) * 4096 if st < 36 else (st - 31) * 4096
def lds3(bl): return bl * 10240 if bl < 3 else (107520 + (bl - 3) * 10240 if bl < 6 else KREG + (bl - 6) * 10240)
def fhex(x):
    import struct
    return hex(struct.unpack("<I", struct.pack("<f", x))[0])

def qmap_step(x):
    import re
    m = re.match(r"ds_read_b64 a\[(\d+):", x[1])
    return int(m.group(1)) // 4 if m else 999

class Main:
    def __init__(self, A, opts):
        self.A = A; self.o = opts
        self.prof = opts.get("prof", 0); self.names = []; self.rare = []; self.pending = set()
        self.stop = opts.get("stop", None)
        self.fused = opts.get("fused", 1)
        self.kname = opts.get("kname", "main_kernel")
        self.ld = "sc1"; self.st = "sc1"; self.stkv = "sc1"
        self.es = opts.get("es", 0)
        self.nsh = opts.get("nsh", 1); self.shm = (1 << self.nsh) - 1
        self.ntu, self.ntx, self.nts = opts.get("ntu", ""), opts.get("ntx", ""), opts.get("nts", "nt")

    def stamp(self, name):
        if self.o.get("only") and name not in self.o["only"]: return
        if name.startswith("z.") and not self.o.get("only"): return
        if not self.prof or name.endswith(tuple(self.o.get("nostamp", ()))) and self.o.get("nostamp"): return
        A = self.A
        if name not in self.names: self.names.append(name)
        idx = self.names.index(name)
        A(f"s_memrealtime s[96:97]\ns_waitcnt lgkmcnt(0)\ns_mov_b32 s39, m0\ns_add_u32 m0, s{S_PB}, {idx}\nv_writelane_b32 v{VPROF}, s96, m0\ns_memtime s[96:97]\ns_waitcnt lgkmcnt(0)\nv_writelane_b32 v{VPROF+1}, s96, m0\ns_mov_b32 m0, s39")
        A.lg = []

    def ldsaddr(self, off, bases):
        b = off >> 16
        return f"v{bases[b]} offset:{off & 0xffff}"

    def emit(self, x):
        if isinstance(x, tuple):
            if x[0] == 'vm': self.A.vmem(x[1], x[2])
            elif x[0] == 'lg': self.A.lds(x[1], x[2])
            else:
                assert x[1] in self.A.seen and x[1] not in self.pending, x
                (self.A.wait_vm if x[0] == 'wv' else self.A.wait_lg)(x[1])
        else: self.A(x)

    def drain(self, fill, n):
        vm = 0
        while fill and n > 0:
            isvm = isinstance(fill[0], tuple) and fill[0][0] == 'vm'
            if isvm and vm: break
            vm += isvm
            self.pending = {y[2] for y in fill if isinstance(y, tuple) and len(y) == 3}
            self.emit(fill.pop(0)); n -= 1
            self.pending = set()

    def need(self, tag, fill):
        while any(isinstance(x, tuple) and x[0] == 'vm' and x[2] == tag for x in fill): self.emit(fill.pop(0))
        assert tag in self.A.seen, tag
        self.A.wait_vm(tag)

    def rnd(self, sbase, goff, loff, kb, tag):
        L = [f"s_mul_i32 s{T[8]}, s{WV}, {kb*1024}", f"s_add_u32 s{T[9]}, s{T[8]}, s{sbase}", f"s_add_u32 s{T[9]}, s{T[9]}, {goff}", f"s_add_u32 m0, s{T[8]}, {loff}"]
        for i in range(kb):
            if i and i % 4 == 0: L += [f"s_add_u32 s{T[9]}, s{T[9]}, 4096", "s_add_u32 m0, m0, 4096"]
            L.append(('vm', f"buffer_load_dwordx4 v{VL16}, {WS}, s{T[9]} offen offset:{1024*(i&3)} lds", tag))
        return L

    def rnd3(self, sbase, goff, loff, kb):
        A = self.A
        A(f"s_mul_i32 s{T[8]}, s{S_WI}, {kb*1024}\ns_add_u32 s{T[9]}, s{T[8]}, s{sbase}\ns_add_u32 s{T[9]}, s{T[9]}, {goff}\ns_add_u32 m0, s{T[8]}, {loff}")
        for i in range(kb):
            if i and i % 4 == 0: A(f"s_add_u32 s{T[9]}, s{T[9]}, 4096\ns_add_u32 m0, m0, 4096")
            A(f"buffer_load_dwordx4 v{VL16}, {WS}, s{T[9]} offen offset:{1024*(i&3)} lds")

    def edf(self, jobs, nsteps, rate, credit=0.0):
        units = []
        for rel, dl, L, *hard in jobs:
            cur = []
            for x in L:
                cur.append(x)
                if isinstance(x, tuple) and x[0] == 'vm': units.append([rel, dl, cur, id(L), hard[0] if hard else dl]); cur = []
            if cur: units[-1][2] += cur
        sched = {k: [] for k in range(nsteps)}
        busy = None
        for st_ in range(nsteps):
            credit += rate(st_) if callable(rate) else rate
            while credit >= 1 and units:
                cand = [u for u in units if u[0] <= st_]
                if busy is not None: cand = [u for u in cand if u[3] == busy or 'lds' not in u[2][-1 if isinstance(u[2][-1], tuple) else -2][1]]
                if not cand: credit = min(credit, 1.0); break
                u = min(cand, key=lambda u: u[1])
                assert st_ <= u[4], f"load {u[2][-1]} issued at {st_}, after its deadline {u[4]}"
                units.remove(u); sched[st_] += u[2]; credit -= 1
                isdma = any(isinstance(x, tuple) and x[1].endswith('lds') for x in u[2])
                if isdma: busy = u[3] if any(w[3] == u[3] for w in units) else None
        assert not units, f"{len(units)} loads left"
        return sched

    def drain_post(self, post, extra=0):
        A = self.A
        if not post:
            A.wait_all(); return
        N = A.newlab("p0"); E = A.newlab("pe")
        kb = -(-post[3] // 3)
        A(f"s_cmp_eq_u32 s{WV}, 0\ns_cbranch_scc1 {N}")
        self.rnd3(post[0], post[1], post[2], kb)
        A(f"s_waitcnt vmcnt({kb + extra}) lgkmcnt(0)\ns_branch {E}")
        A.lab(N); A(f"s_waitcnt vmcnt({extra}) lgkmcnt(0)"); A.lab(E)
        A.vm = []; A.lg = []

    def plan(self, chunks, bars, dead_at=()):
        jobs = []; valid = {}; used = set()
        for k, (sb, go, kb, ad, vs, last, pre) in enumerate(chunks):
            if pre: continue
            busy = [c[5] for c in chunks[:k] if c[3] < ad + kb*4096 and ad < c[3] + c[2]*4096]
            busy += [t for lo, hi, t in dead_at if lo < ad + kb*4096 and ad < hi]
            rel = min(b for b in bars if b > max(busy)) if busy else 0
            if busy: used.add(rel)
            dl = 900 + k
            if vs is not None:
                dl = max(b for b in bars if b <= vs); assert dl > rel, (k, rel, dl)
                valid.setdefault(dl, []).append(('w', k)); used.add(dl)
            jobs.append((rel, dl - 0.5, self.rnd(sb, go, ad, kb, ('w', k))))
        return jobs, valid, used

    def go(self, tag, name):
        self.A.wait_vm(tag)
        if not self.o.get("onebar", 0): self.A("s_barrier")
        self.stamp(name)

    def run32(self, seq, WFS, sched, at_step, side=None, go=None):
        A = self.A; R = len(WFS); bases = [VL16, VB1, VB2]
        rd = lambda n: A.lds(f"ds_read_b128 {v(WFS[n % R],4)}, {self.ldsaddr(seq[n][2], bases)}", ('f', n))
        if go and not self.o.get("onebar", 0): self.go(*go); go = None
        for n in range(R): rd(n)
        if go: self.go(*go)
        fill = []; prev = None
        for n, (st_, acc, ad, B, zero) in enumerate(seq):
            if st_ != prev:
                at_step(st_, fill); prev = st_
            if n % 2 == 0: A.wait_lg(('f', min(n + 1, len(seq) - 1)))
            A(f"v_mfma_f32_32x32x16_bf16 {v(acc,16)}, {v(WFS[n % R],4)}, {B}, {'0' if zero else v(acc,16)}")
            if n + R < len(seq): rd(n + R)
            if side and n >= side[1] and side[0]:
                k = len(fill); self.drain(fill, 2)
                self.drain(side[0], side[2] - (k - len(fill)))
            else: self.drain(fill, 4)
        while fill: self.emit(fill.pop(0))

    def es_hooks(self, st_, fill, up, gate, name, code, stats):
        if not self.es: return
        A = self.A
        if st_ == 0:
            A.wait_vm(('a', 1))
            for x in self.verify([0, 4], name): A(x)
        if st_ == max(gate - 4, 0): fill.insert(0, ('vm', f"s_mov_b64 exec, 1\nbuffer_load_dword v253, v{VCNT}, {WS}, 0 offen sc1\ns_mov_b64 exec, -1", 'fl'))
        if st_ == gate:
            self.need('fl', fill); self.flag_check(253, code); stats()
        if st_ % 2 == 0: assert up % 2 == 0 and not any(isinstance(x, str) and "vccnz" in x for x in fill)
        if st_ % 2 == 0 and st_ + 2 < up: fill[:0] = [('wv', ('a', st_ + 3))] + self.verify([4*st_ + 8, 4*st_ + 12], name)

    def split3(self, src, dst, t):
        return [f"v_and_b32 v{t}, 0xffff0000, v{src}", f"v_sub_f32 v{t+1}, v{src}, v{t}", f"v_and_b32 v{dst}, 0xffff0000, v{t+1}", f"v_sub_f32 v{t+1}, v{t+1}, v{dst}",
                f"v_lshrrev_b32 v{t}, 16, v{t}", f"v_and_b32 v{dst+1}, 0xffff0000, v{t+1}", f"v_or_b32 v{dst}, v{dst}, v{t}", f"v_or_b32 v{dst+1}, v{dst+1}, v{t}",
                f"v_mov_b32 v{dst+2}, v{dst}", f"v_mov_b32 v{dst+3}, 0"]

    def csfrag(self, c, w, z, ad):
        return [f"v_and_b32 v{w+1}, 0xffff0000, v{c}", f"v_sub_f32 v{c}, v{c}, v{w+1}", f"v_and_b32 v{w+2}, 0xffff0000, v{c}", f"v_sub_f32 v{c}, v{c}, v{w+2}",
                f"v_lshrrev_b32 v{w}, 16, v{w+1}", f"v_or_b32 v{w}, v{w}, v{w+1}", f"v_lshrrev_b32 v{w+3}, 16, v{w+2}", f"v_or_b32 v{w+1}, v{w+1}, v{w+3}",
                f"v_lshrrev_b32 v{c}, 16, v{c}", f"v_or_b32 v{w+2}, v{w+2}, v{c}", f"v_mov_b32 v{w+3}, 0"] + [f"v_mov_b32 v{z+k}, 0" for k in range(4)] + \
               [('lg', f"ds_write_b128 v{ad}, {v(w,4)}", 'csw'), ('lg', f"ds_write_b128 v{ad}, {v(z,4)} offset:512", 'csw')]

    def csaddr(self, e, dst, t, base):
        return (f"v_lshrrev_b32 v{dst}, 5, v{e}\nv_lshlrev_b32 v{dst}, 10, v{dst}\nv_bfe_u32 v{t}, v{e}, 2, 2\nv_lshl_add_u32 v{dst}, v{t}, 7, v{dst}\nv_bfe_u32 v{t}, v{e}, 4, 1\n"
                f"v_lshl_add_u32 v{dst}, v{t}, 6, v{dst}\nv_and_b32 v{t}, 3, v{e}\nv_lshl_add_u32 v{dst}, v{t}, 4, v{dst}\nv_add_u32 v{dst}, {base}, v{dst}")

    def capture(self, fn):
        keep = self.A; self.A = Asm(); fn(); L = [i.text for i in self.A.L]; self.A = keep
        return L

    def weave_loads(self, body, loads, every, extra=None):
        def safe(i):
            ex = [x for x in body[i:] if "exec" in x]
            if ex and ex[0].endswith("-1"): return False
            for x in body[i:]:
                if x.startswith("s_cmp"): return True
                if x.startswith(("s_cmov", "s_cselect", "s_cbranch")): return False
            return True
        since = every
        for i, x in enumerate(body):
            if since >= every and loads and safe(i): self.drain(loads, 6); since = 0
            self.A(x); since += 1
            if extra and i % 7 == 6: extra()
        while loads: self.emit(loads.pop(0))

    def mix(self, body, fill, every):
        for k, x in enumerate(body):
            self.emit(x)
            if (k + 1) % every == 0: self.drain(fill, 5)

    def spin(self, addr, tgt, code, srd_=WS):
        A = self.A; L = A.newlab("poll"); D = A.newlab("pdone"); t = 254
        ld = lambda r: f"buffer_load_dword v{r}, v{addr}, {srd_}, 0 offen sc1"
        if self.o.get("poll1", 0):
            A(f"s_mov_b32 s{T[2]}, 20000")
            if self.o.get("pfirst", 0): A(f"s_sleep {self.o['pfirst']}")
            A.lab(L)
            A(ld(t) + f"\ns_waitcnt vmcnt(0)\nv_cmp_gt_u32 vcc, {tgt}, v{t}\ns_cbranch_vccz {D}\ns_sleep {self.o.get('psleep', 5)}")
        else:
            if self.o.get("pfirst", 0): A(f"s_sleep {self.o['pfirst']}")
            A(f"s_mov_b32 s{T[2]}, 20000\n" + ld(t))
            A.lab(L)
            for r in (t + 1, t):
                A(f"s_sleep {self.o.get('psleep', 5)}\n" + ld(r) + f"\ns_waitcnt vmcnt(1)\nv_cmp_gt_u32 vcc, {tgt}, v{2*t + 1 - r}\ns_cbranch_vccz {D}")
        A(f"s_sub_u32 s{T[2]}, s{T[2]}, 1\ns_cmp_lg_u32 s{T[2]}, 0\ns_cbranch_scc1 {L}")
        A(f"s_waitcnt vmcnt(0)\nv_mov_b32 v{t}, {code}\nv_mov_b32 v{t+1}, 128\nbuffer_store_dword v{t}, v{t+1}, {DS_}, 0 offen")
        A.lab(D)

    def shoff(self):
        mode = self.o.get("shmode", 0)
        if mode == 0: return f"s_and_b32 s3, s{J}, {self.nsh - 1}\ns_lshl_b32 s3, s3, 7\n"
        return f"s_lshr_b32 s3, s{J}, {5 - self.nsh.bit_length()}\ns_lshl_b32 s3, s3, 7\n"

    def code_touch(self):
        if not self.o.get("codepf2", 1): return
        A = self.A; L = A.newlab("ct"); P = A.newlab("pc")
        A(f"s_lshl_b32 s3, s{LAY}, 2\ns_add_u32 s3, s3, s{WV}\ns_cmp_lg_u32 s3, 3\ns_cbranch_scc1 {L}")
        A(f"s_getpc_b64 s[28:29]\n{P}:\ns_sub_u32 s28, s28, {P} - {self.kname}\ns_subb_u32 s29, s29, 0\ns_mov_b32 s30, main_last - {self.kname}\ns_mov_b32 s31, 0x20000")
        A(f"s_and_b32 s3, s{J}, 7\ns_lshl_b32 s3, s3, 13\nv_lshlrev_b32 v252, 3, v{VL16}\nbuffer_load_dword v{VDUM}, v252, s[28:31], s3 offen")
        A.lab(L)

    def cluster_sync(self, post, pre, code, both=None):
        A = self.A; N = A.newlab("nw0"); E = A.newlab("syn")
        self.stamp(f'p{code>>8}.epi')
        self.drain_post(post); A("s_barrier")
        self.stamp(f'p{code>>8}.drain')
        A(f"s_add_u32 s{TGT}, s{TGT}, {16 // self.nsh}\ns_cmp_lg_u32 s{WV}, 0\ns_cbranch_scc1 {N}")
        A(f"s_mov_b64 exec, 1\nv_mov_b32 v{VFREE+3}, 1\n{self.shoff()}buffer_atomic_add v{VFREE+3}, v{VCNT}, {WS}, s3 offen sc1\ns_mov_b64 exec, {self.shm}")
        if both:
            A("s_mov_b64 exec, -1"); both(); A(f"s_mov_b64 exec, {self.shm}")
        self.spin(VCNT, f's{TGT}', code)
        A(f"s_mov_b64 exec, -1")
        self.stamp(f'p{code>>8}.poll')
        A(f"s_branch {E}")
        A.lab(N)
        self.code_touch()
        if pre: pre()
        if both: both()
        if self.o.get("onebar", 0): A("s_waitcnt vmcnt(0)")
        A.lab(E)
        A("s_barrier")
        self.stamp(f'p{code>>8}.bar')

    def early_signal(self, first=False):
        if not self.es or self.o.get("estest") and not first: return
        A = self.A; L = A.newlab("es")
        A(f"s_cmp_lg_u32 s{WV}, 0\ns_cbranch_scc1 {L}\ns_mov_b64 exec, 1\nv_mov_b32 v252, 1\nbuffer_atomic_add v252, v{VCNT}, {WS}, 0 offen offset:128 sc1\ns_mov_b64 exec, -1")
        A.lab(L)

    def early_sync(self, post, code, k):
        A = self.A; N = A.newlab("nw0"); E = A.newlab("syn")
        self.stamp(f'p{code>>8}.epi')
        kb = -(-post[3] // 3)
        A(f"s_cmp_lg_u32 s{WV}, 0\ns_cbranch_scc1 {N}\ns_mul_i32 s{T[3]}, s{LAY}, 48\ns_add_u32 s{T[3]}, s{T[3]}, {16*k}\ns_mov_b64 exec, 1\nv_add_u32 v252, 128, v{VCNT}")
        self.spin(252, f's{T[3]}', code)
        A(f"s_mov_b64 exec, -1\ns_waitcnt lgkmcnt(0)\ns_branch {E}")
        A.lab(N)
        self.rnd3(post[0], post[1], post[2], kb)
        A(f"s_waitcnt vmcnt({kb}) lgkmcnt(0)")
        self.code_touch()
        A.lab(E)
        A.vm = []; A.lg = []
        A("s_barrier")
        self.stamp(f'p{code>>8}.poll')
        self.signal()
        if self.o.get("estest"): self.o["estest"] = 0; self.early_signal(); self.o["estest"] = 1

    def mark(self, stores):
        if not self.es: return
        A = self.A
        for k in range(4): A(f"v_mov_b32 v{248+k}, -1")
        for pre, ad, so, im, post in stores: A(f"{pre}buffer_store_dwordx4 v[248:251], v{ad}, {WS}, s{so} offen offset:{im} sc1{post}")

    def mark_x(self, off):
        if not self.es: return
        self.A(f"s_add_u32 s99, s{SL}, s{S_X}\ns_add_u32 s99, s99, {off}\ns_add_u32 s3, s99, 4096")
        self.mark([("", VX, 99, 0, ""), ("", VX, 99, 2048, ""), ("s_mov_b32 exec_hi, 0\n", VX, 3, 0, "\ns_mov_b32 exec_hi, -1")])

    def verify(self, regs, name):
        L = self.A.newlab("vf")
        out = [f"v_accvgpr_read_b32 v{250+k}, a{r}" for k, r in enumerate(regs)]
        if len(regs) == 2: out.append("v_max_u32 v250, v250, v251")
        out.append(f"v_cmp_eq_u32 vcc, -1, v250\ns_cbranch_vccnz {L}\n{L}b:")
        self.rare.append(f"{L}:\ns_call_b64 s[100:101], {name}\ns_branch {L}b")
        return out

    def reload(self, name, code, loads):
        keep = self.A; self.A = B = Asm(); B.uid = 20000 + code
        B.lab(name)
        B("s_mov_b64 exec, 1"); self.spin(VCNT, f"s{TGT}", code); B("s_mov_b64 exec, -1")
        for x in loads: B(x)
        B("s_waitcnt vmcnt(0)\ns_setpc_b64 s[100:101]")
        self.A = keep; self.rare.append(B.render())

    def setup(self):
        A = self.A
        A.lab(self.kname)
        if self.o.get("entry"): A("s_memrealtime s[94:95]")
        A("s_cmp_ge_u32 s2, 256\ns_cbranch_scc1 main_end")
        A("s_load_dwordx2 s[28:29], s[0:1], 0\ns_load_dwordx4 s[32:35], s[0:1], 56\ns_load_dwordx2 s[30:31], s[0:1], 72")
        if self.fused: A("s_load_dwordx4 s[80:83], s[0:1], 8\ns_load_dwordx4 s[84:87], s[0:1], 32\ns_load_dwordx2 s[88:89], s[0:1], 48")
        A(f"v_and_b32 v{VL}, 63, v0\nv_lshrrev_b32 v2, 6, v0\ns_nop 0\nv_readfirstlane_b32 s{WV}, v2\nv_lshlrev_b32 v{VL16}, 4, v{VL}")
        mx = self.o.get("mx", 512)
        if mx == 256:
            A(f"s_and_b32 s{MB}, s2, 7\ns_lshl_b32 s{MB}, s{MB}, 1\ns_lshr_b32 s3, s2, 7\ns_add_u32 s{MB}, s{MB}, s3\ns_bfe_u32 s{J}, s2, 0x40003")
        elif mx == 512:
            A(f"s_bfe_u32 s{MB}, s2, 0x20001\ns_lshl_b32 s{MB}, s{MB}, 2\ns_lshr_b32 s3, s2, 6\ns_add_u32 s{MB}, s{MB}, s3")
            A(f"s_and_b32 s{J}, s2, 1\ns_lshl_b32 s{J}, s{J}, 3\ns_bfe_u32 s3, s2, 0x30003\ns_add_u32 s{J}, s{J}, s3")
        elif mx == 1024:
            A(f"s_bfe_u32 s{MB}, s2, 0x10002\ns_lshl_b32 s{MB}, s{MB}, 3\ns_lshr_b32 s3, s2, 5\ns_add_u32 s{MB}, s{MB}, s3")
            A(f"s_and_b32 s{J}, s2, 3\ns_lshl_b32 s{J}, s{J}, 2\ns_bfe_u32 s3, s2, 0x20003\ns_add_u32 s{J}, s{J}, s3")
        A((f"s_lshr_b32 s{RH}, s{J}, 3\ns_and_b32 s{CT}, s{J}, 7" if self.o.get("rhhi", 0) else f"s_and_b32 s{RH}, s{J}, 1\ns_lshr_b32 s{CT}, s{J}, 1"))
        A(f"s_lshr_b32 s{RR}, s{WV}, 1\ns_and_b32 s{KH}, s{WV}, 1\ns_sub_u32 s{S_WI}, s{WV}, 1")
        A(f"s_mov_b32 s{LAY}, 0\ns_mov_b32 s{SL}, {LB}\ns_mov_b32 s{TGT}, 0\ns_mov_b32 s{S_PB}, 0")
        A(f"s_lshl_b32 s3, s{MB}, 2\ns_add_u32 s3, s3, s{WV}\ns_mul_i32 s{S_A1}, s3, 40960\ns_lshl_b32 s{S_ST1}, s3, 11")
        A(f"s_mul_i32 s{S_H}, s3, {2*54*1024}\ns_nop 0")
        A(f"s_mul_i32 s{S_W1}, s{J}, {WP1_J}\ns_add_u32 s{S_W1}, s{S_W1}, {WP1}\ns_mul_i32 s{S_W4}, s{J}, {WP4_J}\ns_add_u32 s{S_W4}, s{S_W4}, {WP4}")
        A(f"s_mul_i32 s{S_W3}, s{CT}, {WP3_C}\ns_add_u32 s{S_W3}, s{S_W3}, {WP3}\ns_mul_i32 s{S_W5}, s{CT}, {WP5_C}\ns_add_u32 s{S_W5}, s{S_W5}, {WP5}")
        A(f"s_mov_b32 s{S_W4B}, s{S_W4}\ns_cmp_eq_u32 s{J}, {15 if self.o.get('oob15', 1) else 99}\ns_cmov_b32 s{S_W4B}, {OOB}")
        A("s_waitcnt lgkmcnt(0)")
        srd(A, 4, 30, WS_USED); srd(A, 8, 28, 2048*640*2); srd(A, 16, 34, 256)

    def p1_first(self):
        A = self.A; o = self.o; st = "sc1"
        QS = "s[68:71]"; WOS = "s[64:67]"
        ACC, GR, ONE, MU, RS, AP = 64, 176, 56, 168, 169, 172
        VXS, VAX, TMP, VU1, VU3, VZ = 129, 133, 138, 134, 135, 136
        r, c, G = 44, 45, 46
        AB = 49152; NB = 3
        srd(A, 68, 80, 640*1920*2); srd(A, 64, 82, 640*640*2); srd(A, 60, 88, 1728*640*2); srd(A, 12, 32, 2048*640*2)
        A(f"s_cmp_lt_u32 s{WV}, 2\ns_cselect_b32 s56, s84, s86\ns_cselect_b32 s57, s85, s87\ns_mov_b32 s58, {640*1728*2}\ns_mov_b32 s59, 0x20000")
        A(f"s_lshl_b32 s{S_U}, s{MB}, 4\ns_add_u32 s{S_U}, s{S_U}, s{J}")
        NZ = A.newlab("nz"); NZ2 = A.newlab("nz")
        A(f"s_cmp_lg_u32 s2, 0\ns_cbranch_scc1 {NZ}\ns_cmp_lg_u32 s{WV}, 3\ns_cbranch_scc1 {NZ}")
        A(f"v_lshlrev_b32 v56, 7, v{VL}\nv_mov_b32 v57, 0\nbuffer_store_dword v57, v56, {WS}, 0 offen sc1\ns_mov_b32 s3, {PK4}\ns_mov_b32 exec_hi, 0\nbuffer_store_dword v57, v56, {WS}, s3 offen sc1\ns_mov_b32 exec_hi, -1")
        A.lab(NZ)
        A(f"v_and_b32 v51, 7, v{VL}\nv_lshrrev_b32 v52, 3, v{VL}\ns_and_b32 s34, s{MB}, 1\ns_lshr_b32 s35, s{MB}, 1")
        A("s_cmp_eq_u32 s34, 0\ns_cselect_b32 s31, 5, 2"); sel(A, 32, 1280, 2608); sel(A, 33, 2480, -48); sel(A, 36, -1, 0xfbfbfbfb)
        A("v_mov_b32 v53, s32\nv_mov_b32 v54, s33\nv_cmp_gt_u32 vcc, s31, v51\nv_cndmask_b32 v53, v54, v53, vcc\nv_lshl_add_u32 v53, v51, 4, v53\nv_mul_u32_u24 v54, 3840, v52\nv_add_u32 v53, v53, v54")
        A(f"s_mul_i32 s31, s35, 80*3840\ns_mul_i32 s32, s{J}, 80\ns_add_u32 s31, s31, s32\ns_mov_b32 exec_lo, s36\ns_mov_b32 exec_hi, s36")
        for n in range(3):
            A(f"s_add_u32 s32, s{WV}, {4*n}\ns_min_u32 s32, s32, 9\ns_lshl_b32 m0, s32, 10\ns_mul_i32 s32, s32, 8*3840\ns_add_u32 s32, s32, s31")
            A.vmem(f"buffer_load_dwordx4 v53, {QS}, s32 offen {self.ntu} lds", 'u')
        A("s_mov_b64 exec, -1")
        A(f"s_lshr_b32 s99, s{S_U}, 3\ns_and_b32 s100, s{S_U}, 7\ns_mul_i32 s30, s99, 32*1280\ns_mul_i32 s31, s100, 160\ns_add_u32 s30, s30, s31\ns_cmp_ge_u32 s{S_U}, 160\ns_cmov_b32 s30, {OOB}")
        for n in range(2):
            A(f"s_add_u32 s31, s{WV}, {4*n}\ns_min_u32 s31, s31, 4\ns_lshl_b32 s3, s31, 6\nv_add_u32 v54, s3, v{VL}\nv_mul_u32_u24 v55, 6554, v54\nv_lshrrev_b32 v55, 16, v55\nv_mul_u32_u24 v56, 10, v55\nv_sub_u32 v56, v54, v56")
            A(f"v_mul_u32_u24 v55, 1280, v55\nv_lshl_add_u32 v55, v56, 4, v55\ns_lshl_b32 s31, s31, 10\ns_add_u32 m0, s31, {STG3}")
            A.vmem(f"buffer_load_dwordx4 v55, {WOS}, s30 offen {self.ntu} lds", 'u')
        A(f"v_lshrrev_b32 v{G}, 4, v{VL}\nv_and_b32 v48, 15, v{VL}")
        for n in range(4):
            A(f"v_add_u32 v49, {4*n}, v{G}\nv_xor_b32 v50, v48, v49\nv_mul_u32_u24 v49, 1280, v49\nv_lshl_add_u32 v{VXS+n}, v50, 4, v49")
        SX, SXL = T[0], T[1]
        A(f"s_lshl_b32 s3, s{MB}, 2\ns_add_u32 s3, s3, s{WV}\ns_mul_i32 s{SX}, s3, 32*1280\ns_mul_i32 s{SXL}, s{WV}, {NB*8192}\ns_add_u32 s{SXL}, s{SXL}, {AB}")
        def xlist(ch):
            L = []
            for n in range(8):
                if n % 4 == 0: L.append(f"s_add_u32 s{T[9]}, s{SX}, {ch*256 + (n >> 2)*16*1280}")
                L += [f"s_add_u32 m0, s{SXL}, {(ch % NB)*8192 + n*1024}", ('vm', f"buffer_load_dwordx4 v{VXS + (n & 3)}, {XS}, s{T[9]} offen {self.ntx} lds", ('x', ch))]
            return L
        def xjob(ch):
            for x in xlist(ch): self.emit(x)
        def publish():
            A(f"s_cmp_lg_u32 s2, 0\ns_cbranch_scc1 {NZ2}\ns_cmp_lg_u32 s{WV}, 3\ns_cbranch_scc1 {NZ2}")
            A(f"s_waitcnt vmcnt({len(A.vm)})\ns_mov_b64 exec, 1\nv_mov_b32 v60, 0\nv_mov_b32 v61, 1\nbuffer_store_dword v61, v60, {DS_}, 0 offen sc1\ns_mov_b64 exec, -1")
            A.lab(NZ2)
        pubat = o.get("pubat", 1)
        if pubat == 0: publish()
        if o.get("tlb", 0):
            A(f"v_lshlrev_b32 v54, 21, v{VL}\ns_lshl_b32 s3, s{S_U}, 7\ns_add_u32 s3, s3, 0x80000\ns_cmp_lg_u32 s{WV}, 2\ns_cmov_b32 s3, {OOB}\ns_mov_b32 exec_hi, 0")
            A.vmem(f"buffer_load_dword v{VDUM}, v54, {WS}, s3 offen\ns_mov_b32 exec_hi, -1", 't')
        if o.get("touchx", 0):
            A(f"s_lshl_b32 s30, s{MB}, 3\ns_and_b32 s31, s{J}, 7\ns_add_u32 s30, s30, s31\ns_lshl_b32 s3, s30, 2\ns_add_u32 s3, s3, s{WV}\ns_mul_i32 s3, s3, 5120\nv_lshlrev_b32 v54, 7, v{VL}\ns_mov_b32 exec_hi, 0xff")
            A.vmem(f"buffer_load_dword v{VDUM}, v54, {XS}, s3 offen {self.ntx}\ns_mov_b32 exec_hi, -1", 't')
        if o.get("codepf", 1):
            A(f"s_getpc_b64 s[64:65]\nmain_pc:\ns_sub_u32 s64, s64, main_pc - {self.kname}\ns_subb_u32 s65, s65, 0\ns_mov_b32 s66, main_last - {self.kname}\ns_mov_b32 s67, 0x20000")
            A(f"s_and_b32 s3, s{J}, 7\ns_lshl_b32 s3, s3, 13\ns_cmp_lg_u32 s{WV}, 3\ns_cmov_b32 s3, {OOB}\nv_lshlrev_b32 v54, 7, v{VL}")
            A.vmem(f"buffer_load_dword v{VDUM}, v54, s[64:67], s3 offen", 'c')
        for i in range(4): A(f"v_mov_b32 v{ONE+i}, 0x3f803f80")
        NP = A.newlab("np")
        A(f"s_cmp_eq_u32 s34, 0\ns_cbranch_scc1 {NP}\nv_lshlrev_b32 v48, 7, v0\nv_cmp_gt_u32 vcc, 80, v0\ns_and_saveexec_b64 s[36:37], vcc\ns_cbranch_execz {NP}a\nds_write_b128 v48, {v(ONE,4)} offset:32")
        A.lab(NP + "a"); A("s_mov_b64 exec, s[36:37]"); A.lab(NP)
        spre, j4, j5 = self.stage_jobs()
        prep, late = self.pack_late()
        CP = 240; RL = LDS_MISC + 4096
        def part1():
            A = self.A
            A(f"s_cmp_ge_u32 s99, 10\ns_cselect_b32 s30, 1, 0\ns_cselect_b32 s31, 10, 0\ns_sub_u32 s31, s99, s31\ns_lshl_b32 s31, s31, 1\ns_add_u32 s31, s31, s30\ns_mul_i32 s31, s31, 5120")
            A(f"s_mul_i32 s30, s100, {WP3_C}\ns_add_u32 s30, s30, s31\ns_add_u32 s30, s30, {WP3}\ns_cmp_ge_u32 s{S_U}, 160\ns_cmov_b32 s30, {OOB}")
            A(f"v_bfe_u32 v{r}, v{VL}, 2, 2\nv_and_b32 v{c}, 3, v{VL}\nv_lshrrev_b32 v48, 1, v{G}\nv_lshl_add_u32 v48, v48, 2, v{r}\nv_lshlrev_b32 v48, 7, v48\nv_and_b32 v49, 1, v{G}\nv_lshl_add_u32 v49, v49, 2, v{c}\nv_lshl_add_u32 v48, v49, 3, v48\ns_lshl_b32 s3, s{WV}, 6\nv_add_u32 v{VU1}, s3, v48")
            A(f"v_lshl_add_u32 v{VU3}, v{G}, 3, v{r}\nv_mul_u32_u24 v{VU3}, 160, v{VU3}\nv_lshl_add_u32 v{VU3}, v{c}, 3, v{VU3}\nv_add_u32 v{VU3}, {STG3}, v{VU3}\nv_mov_b32 v{VZ}, 0")
            for x in spre: A(x)
        def part2():
            A = self.A
            A(f"v_and_b32 v48, 31, v{VL}\nv_and_b32 v49, 15, v{VL}\nv_lshlrev_b32 v{VAX}, 8, v48\nv_lshl_add_u32 v{VAX}, v49, 4, v{VAX}\nv_lshrrev_b32 v49, 5, v{VL}\nv_lshl_add_u32 v{VAX}, v49, 3, v{VAX}\nv_add_u32 v{VAX}, s{SXL}, v{VAX}")
            self.setup2a()
            A(f"s_lshl_b32 s3, s{J}, 7\ns_add_u32 s3, s3, {CG}\nv_mov_b32 v53, s3\nv_mov_b32 v62, s3\ns_lshl_b32 s3, s{CT}, 7\ns_add_u32 s3, s3, {PK3}\nv_writelane_b32 v53, s3, 1\nv_mov_b32 v54, 16\nv_writelane_b32 v54, 20, 1")
            A(f"s_and_b32 s3, s{S_U}, 7\ns_lshl_b32 s3, s3, 7\ns_add_u32 s3, s3, {PK3}\nv_writelane_b32 v62, s3, 1\nv_mov_b32 v63, 1")
            A(f"s_lshl_b32 s88, s{S_A3}, 4\ns_mul_i32 s88, s88, 1280\ns_mul_i32 s3, s{CT}, 160\ns_add_u32 s88, s88, s3\ns_mul_i32 s89, s{WV}, 2560\ns_add_u32 s89, s89, {RL}")
            A(f"v_and_b32 v{CP+10}, 15, v{VL}\nv_mul_u32_u24 v{CP+10}, 160, v{CP+10}\nv_lshrrev_b32 v48, 4, v{VL}\nv_lshl_add_u32 v{CP+10}, v48, 3, v{CP+10}\nv_add_u32 v{CP+10}, s89, v{CP+10}")
            for n in range(3):
                A(f"v_add_u32 v48, {64*n}, v{VL}\nv_mul_u32_u24 v49, 6554, v48\nv_lshrrev_b32 v49, 16, v49\nv_mul_u32_u24 v50, 10, v49\nv_sub_u32 v50, v48, v50\nv_mul_u32_u24 v49, 1280, v49\nv_lshl_add_u32 v{140+n}, v50, 4, v49")
            A(f"v_and_b32 v48, 127, v0\nv_lshrrev_b32 v49, 5, v48\nv_and_b32 v50, 31, v48\nv_lshlrev_b32 v50, 2, v50\nv_lshl_add_u32 v{CP+8}, v49, 10, v50")
            A(self.csaddr(48, CP+9, 49, CSF1))
            for x in prep: A(x)
        self.weave_loads(self.capture(part1), xlist(0), 9)
        if pubat == 1: publish()
        stg0 = o.get("stg0", 0)
        self.weave_loads(self.capture(part2), j4 + j5 if stg0 else xlist(1), o.get("cevery", 12))
        A.wait_vm('u')
        if pubat == 2: publish()
        A.wait_lg0(); A("s_barrier")
        self.stamp('s.u')
        HI = A.newlab("hi"); DN = A.newlab("dn"); keep = list(A.vm)
        A(f"s_cmp_ge_u32 s{WV}, 2\ns_cbranch_scc1 {HI}")
        A(f"s_lshl_b32 s32, s34, 1\ns_add_u32 s32, s32, s{WV}\ns_cmp_lt_u32 s32, 3\ns_cselect_b32 s3, s32, 120"); sel(A, 36, 3072, 1024)
        A(f"s_lshl_b32 s3, s3, 10\ns_mul_i32 s33, s35, 5\ns_mul_i32 s33, s33, s36\ns_add_u32 s33, s33, s{S_W1}\ns_add_u32 s30, s33, s3")
        A(f"s_lshl_b32 s33, s{J}, 2\ns_add_u32 s33, s33, s32\ns_lshl_b32 s33, s33, 3\ns_add_u32 s33, s33, s35\ns_lshl_b32 s33, s33, 7\ns_add_u32 s33, s33, {CSP1}")
        ur = [30, 31, 32, 34, 35]
        for u in range(1, 5): A(f"s_add_u32 s{ur[u]}, s{ur[u-1]}, s36")
        frag32_steps(A, VU1, VL16, lambda u: (f"s{ur[u]}", 0), "s33", WS, 64, 88, ONE, st)
        A(f"s_branch {DN}")
        A.lab(HI)
        A(f"s_cmp_lg_u32 s{WV}, 2\ns_cmov_b32 s30, {OOB}\ns_add_u32 s31, s30, 4096\ns_mov_b32 s32, {OOB}")
        for t in range(5):
            for p in range(2): A(f"ds_read_b64_tr_b16 {v(64+4*t+2*p,2)}, v{VU3} offset:{p*640 + t*32}")
        A("s_waitcnt lgkmcnt(0)")
        for t in range(5): A(f"buffer_store_dwordx4 {v(64+4*t,4)}, v{VL16}, {WS}, {'s30' if t < 4 else 's31'} offen offset:{(t&3)*1024} {st}")
        A("s_mov_b64 exec, 1")
        for t in range(4): A(f"buffer_store_dword v64, v{VL16}, {WS}, s32 offen")
        A("s_mov_b64 exec, -1")
        A.lab(DN)
        A.vm = keep + ['us'] * 9; A.lg = []
        A.vmem(f"s_lshl_b32 s3, s{S_U}, 7\ns_add_u32 s3, s3, {KVF}\ns_cmp_lg_u32 s{WV}, 0\ns_cmov_b32 s3, {OOB}\ns_mov_b64 exec, 1\nbuffer_store_dword v{VZ}, v{VZ}, {WS}, s3 offen sc1", 'us')
        A.vmem(f"s_lshl_b32 s3, s{WV}, 8\nbuffer_load_dword v61, v{VZ}, {DS_}, s3 offen sc1\ns_mov_b64 exec, -1", 'dbg')
        self.stamp('s.st')
        qmap = {}
        for st_ in range(40):
            for p in range(2): qmap[10*(st_//5) + cg32(st_ % 5, 0, p)//2] = (st_, p)
        done = set(); gram = [0]
        def gram1():
            if gram[0] < 40 and (gram[0], 0) in done and (gram[0], 1) in done:
                k = gram[0]; gram[0] += 1
                A(f"v_mfma_f32_32x32x16_bf16 {v(GR,16)}, {a(4*k,4)}, {a(4*k,4)}, {'0' if k == 0 else v(GR,16)}")
        def xreads(ch, also=()):
            also = list(also)
            A.wait_vm(('x', ch))
            for k, q in enumerate(range(16*ch, 16*ch + 16)):
                st_, p = qmap[q]
                A(f"v_xor_b32 v{TMP+(k&1)}, {k*16}, v{VAX}")
                A.lds(f"ds_read_b64 {a(4*st_+2*p,2)}, v{TMP+(k&1)} offset:{(ch % NB)*8192}")
                if k % 2:
                    if k % 4 == 3 or ch == 4: gram1()
                    self.drain(also, 6)
            assert not also
            A.wait_lg0()
            for q in range(16*ch, 16*ch + 16): done.add(qmap[q])
        xreads(0, xlist(1 if stg0 else 2))
        stgat = o.get("stgat", 1)
        for x in (xlist(2) if stg0 else (j4 + j5 if stgat == 0 else [])): self.emit(x)
        self.stamp('z.x0')
        A.wait_vm('dbg'); A("s_barrier")
        self.stamp('s.drain')
        W1_ = A.newlab("w"); OKI = A.newlab("oki")
        A(f"s_cmp_lg_u32 s{WV}, 0\ns_cbranch_scc1 {W1_}\ns_mov_b64 exec, 1\nv_cmp_gt_u32 vcc, 1, v61\ns_cbranch_vccz {OKI}")
        self.spin(VZ, "1", 0x10, DS_)
        A.lab(OKI)
        A(f"s_cmp_lt_u32 s{S_U}, 160\ns_cselect_b32 exec_lo, 3, 1\nbuffer_atomic_add v63, v62, {WS}, 0 offen sc1\ns_mov_b64 exec, -1")
        A.lab(W1_)
        x3 = xlist(3)
        if stg0:
            for x in late:
                self.emit(x); self.drain(x3, 3)
            assert not x3
            A.wait_lg0()
        if not stg0 and stgat == 1:
            for x in j4 + j5: self.emit(x)
        self.stamp('z.w2')
        xreads(1, x3)
        if not stg0 and stgat == 2:
            for x in j4 + j5: self.emit(x)
        x4 = xlist(4)
        for n in range(3):
            x4 += [f"s_add_u32 m0, s89, {1024*n}", ('vm', ("s_mov_b32 exec_hi, 0\n" if n == 2 else "") + f"buffer_load_dwordx4 v{140+n}, {XS}, s88 offen lds" + ("\ns_mov_b32 exec_hi, -1" if n == 2 else ""), 'res')]
        x4.append(('vm', f"s_cmp_lg_u32 s{WV}, 0\ns_cselect_b32 s3, {OOB}, 0\ns_mov_b64 exec, 3\nbuffer_load_dword v55, v53, {WS}, s3 offen sc1\ns_mov_b64 exec, -1", 'fl0'))
        while x4:
            self.drain(x4, 3); gram1()
        self.stamp('z.x1')
        ls = sum(self.late_stores, [])
        if not stg0:
            A.wait_vm('stg'); A("s_barrier")
            for x in late: self.emit(x)
            A.wait_lg0()
        xreads(2, ls[:len(ls)//2]); xreads(3, ls[len(ls)//2:])
        self.stamp('z.x3')
        xreads(4)
        self.stamp('s.x')
        W2_ = A.newlab("w")
        A.wait_vm('fl0')
        for k in range(5): A.lds(f"ds_read_b64 {v(RES+2*k,2)}, v{CP+10} offset:{32*k}")
        A(f"s_cmp_lg_u32 s{WV}, 0\ns_cbranch_scc1 {W2_}\ns_mov_b64 exec, 3\nv_cmp_gt_u32 vcc, v54, v55\ns_cbranch_vccz {W2_}a")
        self.spin(53, "v54", 0x20)
        A.lab(W2_ + "a"); A("s_mov_b64 exec, -1")
        A.lab(W2_)
        A("s_barrier")
        self.stamp('s.poll')
        seq, ch = self.p1_seq([49152 + 12288*c for c in range(8)] + [0, 16384], [28672, 36864, 49152, 73728, 81920], AP)
        up = o.get("up1a", 4)
        for k in range(up): [self.emit(x) for x in self.rnd(ch[k][0], ch[k][1], ch[k][3], ch[k][2], ('w', k))]
        while gram[0] < 40: gram1()
        A(f"s_lshl_b32 s99, s{J}, 12\ns_add_u32 s99, s99, {CSP1}")
        rest = self.capture(self.setup2b) + [f"v_cndmask_b32 v{GR}, v{GR}, v{GR+k}, s[{MASK+2*k}:{MASK+2*k+1}]" for k in range(1, 16)]
        rest += f"v_mov_b32 v{GR+1}, v{GR}\nv_mov_b32 v{GR+2}, v{GR}\nv_permlane32_swap_b32 v{GR+1}, v{GR+2}\nv_bfe_u32 v48, v{VL}, 2, 1\nv_cmp_eq_u32 vcc, 0, v48\nv_cndmask_b32 v{GR}, v{GR+2}, v{GR+1}, vcc\nv_mul_f32 v{GR}, {fhex(1.0/640)}, v{GR}".split("\n")
        ch = [c + (k < up,) for k, c in enumerate(ch)] + [(S_W3, 30720, 8, lds3(3), None, 999, False)]
        bars = list(range(1, 80, 4))
        jobs, valid, used = self.plan(ch, bars)
        for k in range(1, up):
            b = max(x for x in bars if x <= ch[k][4]); valid.setdefault(b, []).append(('w', k)); used.add(b)
        jobs += [(4, 30 + k, [('vm', f"buffer_load_dword v{CP+k}, v{CP+8}, {WS}, s99 offen offset:{128*k} sc1", 'cp')]) for k in range(8)]
        sched = self.edf(jobs, 80, lambda k: o.get("r1a", 1.3) if k < 40 else 0.5)
        for k in range(29): sched[k] += rest[k*len(rest)//29:(k+1)*len(rest)//29]
        assert not any(isinstance(x, tuple) and x[2] == 'cp' for k in range(30, 80) for x in sched[k])
        sched[30] += [('wv', 'cp')] + [f"v_add_f32 v{CP}, v{CP}, v{CP+k}" for k in range(1, 8)] + self.csfrag(CP, CP+4, 160, CP+9)
        sched[41] = [f"v_mul_f32 v{MU}, {fhex(-1.0/640)}, v{ACC+40}"] + self.split3(MU, AP, 160) + \
            [f"v_fma_f32 v{GR}, -v{MU}, v{MU}, v{GR}", f"v_max_f32 v{GR}, 0, v{GR}", f"v_add_f32 v{GR}, 0x3727c5ac, v{GR}", f"v_rsq_f32 v{RS}, v{GR}"] + sched[41]
        psig = o.get("psig", 21)
        A.wait_vm(('w', 0)); A.wait_lg0(); A("s_barrier")
        self.stamp('p1.go')
        def at_step(st_, fill):
            if st_ == 44: assert not any(isinstance(x, str) and f"v{AP+3}" in x for x in fill)
            if st_ in used or st_ in (psig, 33, 37):
                for tag in valid.get(st_, []): self.need(tag, fill)
                if st_ == psig: self.need('pst', fill)
                if st_ == 33:
                    while any(isinstance(x, tuple) and x[2] == 'csw' for x in fill): self.emit(fill.pop(0))
                    A.wait_lg('csw')
                A("s_barrier")
                if st_ == psig: self.packed_signal()
                if o.get("in1"): self.stamp(f'd.{st_}')
            if st_ == 40: self.stamp('p1.a')
            fill += sched[st_]
        self.p1_tail(seq, sched, at_step, RS)

    def stage_jobs(self):
        t = 160
        pre = [f"v_and_b32 v{t+4}, 7, v{VL}", f"v_lshrrev_b32 v{t+5}, 3, v{VL}", f"v_mul_u32_u24 v{t}, 3456, v{t+5}", f"v_lshl_add_u32 v{t}, v{t+4}, 4, v{t}",
               f"s_and_b32 s99, s{S_U}, 7", "s_mul_i32 s99, s99, 80", f"s_mul_i32 s100, s{KH}, 40", "s_add_u32 s99, s99, s100", "s_mul_i32 s99, s99, 3456",
               f"s_lshr_b32 s100, s{S_U}, 3", "s_lshl_b32 s100, s100, 7", "s_add_u32 s99, s99, s100",
               f"s_lshr_b32 s100, s{S_U}, 2", "s_mul_i32 s100, s100, 32*1280", f"s_and_b32 s101, s{S_U}, 3", "s_mul_i32 s101, s101, 320", "s_add_u32 s100, s100, s101",
               f"s_cmp_ge_u32 s{S_U}, 216\ns_cmov_b32 s99, {OOB}\ns_cmov_b32 s100, {OOB}"]
        for n in range(3):
            pre += [f"s_add_u32 s101, s{WV}, {4*n}", "s_min_u32 s101, s101, 9", "s_lshl_b32 s101, s101, 6", f"v_add_u32 v{t+4}, s101, v{VL}", f"v_mul_u32_u24 v{t+5}, 3277, v{t+4}", f"v_lshrrev_b32 v{t+5}, 16, v{t+5}",
                    f"v_mul_u32_u24 v{t+6}, 20, v{t+5}", f"v_sub_u32 v{t+6}, v{t+4}, v{t+6}", f"v_mul_u32_u24 v{t+5}, 1280, v{t+5}", f"v_lshl_add_u32 v{t+1+n}, v{t+6}, 4, v{t+5}"]
        j4 = [f"s_mul_i32 s101, s{WV}, 5120"]
        for n in range(5):
            j4 += [f"s_add_u32 m0, s101, {STG4 + n*1024}", ('vm', f"buffer_load_dwordx4 v{t}, {GUS}, s99 offen {self.nts} lds", 'stg'), f"s_add_u32 s99, s99, {8*3456}"]
        j5 = []
        for n in range(3):
            j5 += [f"s_add_u32 s101, s{WV}, {4*n}", f"s_min_u32 s101, s101, 9", f"s_lshl_b32 s101, s101, 10", f"s_add_u32 m0, s101, {STG5}",
                   ('vm', f"buffer_load_dwordx4 v{t+1+n}, {WDS}, s100 offen {self.nts} lds", 'stg')]
        return pre, j4[:-1], j5

    def pack_late(self):
        st = "sc1"; P = []; L = []
        r, c, G, ad, FR, FD, CA, ONE = 44, 45, 46, 47, 192, 212, 224, 56
        add = lambda txt: P.append(txt)
        add(f"v_bfe_u32 v{r}, v{VL}, 2, 2\nv_and_b32 v{c}, 3, v{VL}\nv_lshrrev_b32 v{G}, 4, v{VL}")
        add(f"v_lshrrev_b32 v{ad}, 1, v{G}\nv_lshl_add_u32 v{ad}, v{ad}, 2, v{r}\nv_lshlrev_b32 v{ad}, 7, v{ad}\nv_and_b32 v48, 1, v{c}\nv_lshl_add_u32 v{ad}, v48, 4, v{ad}\nv_and_b32 v48, 1, v{G}\nv_lshl_add_u32 v{ad}, v48, 3, v{ad}")
        add(f"v_lshrrev_b32 v48, 1, v{c}\nv_mul_u32_u24 v48, 10240, v48\nv_add_u32 v{ad}, v{ad}, v48\ns_lshl_b32 s3, s{WV}, 5\ns_add_u32 s3, s3, {STG4}\nv_add_u32 v{ad}, s3, v{ad}")
        add(f"v_lshl_add_u32 v49, v{G}, 3, v{r}\nv_mul_u32_u24 v49, 320, v49\nv_lshl_add_u32 v49, v{c}, 3, v49\ns_mul_i32 s81, s{KH}, 160\ns_mul_i32 s3, s{RR}, 96\ns_add_u32 s81, s81, s3\ns_add_u32 s81, s81, {STG5}\nv_add_u32 v49, s81, v49\ns_lshl_b32 s3, s{RR}, 5\nv_subrev_u32 v50, s3, v49")
        for hf in range(2):
            add(f"s_lshr_b32 s81, s{S_U}, 2\ns_lshl_b32 s81, s81, 1\ns_add_u32 s81, s81, {hf}\ns_mul_i32 s82, s81, 147\ns_lshr_b32 s82, s82, 10\ns_mul_i32 s83, s82, 7\ns_sub_u32 s83, s81, s83")
            add("s_lshl_b32 s81, s82, 2\ns_mul_i32 s82, s82, 3\ns_add_u32 s82, s82, 59\ns_cmp_lt_u32 s83, 4\ns_cselect_b32 s82, s81, s82")
            add("s_add_u32 s82, s82, s83\ns_lshr_b32 s81, s82, 3\ns_lshl_b32 s81, s81, 2\ns_and_b32 s83, s82, 2\ns_add_u32 s81, s81, s83\ns_bfe_u32 s83, s82, 0x10002\ns_add_u32 s81, s81, s83\ns_mul_i32 s81, s81, 5120")
            add(f"s_and_b32 s82, s82, 1\ns_lshl_b32 s82, s82, 9\ns_add_u32 s81, s81, s82\nv_mov_b32 v{51+hf}, s81")
        add(f"s_mov_b32 exec_lo, 0\nv_mov_b32 v51, v52\ns_mov_b32 exec_lo, -1\nv_and_b32 v52, 31, v{VL}\nv_lshl_add_u32 v51, v52, 4, v51\nv_lshrrev_b32 v52, 5, v{VL}\nv_lshlrev_b32 v52, 6, v52")
        add(f"s_and_b32 s86, s{S_U}, 7\ns_lshr_b32 s83, s{S_U}, 3\ns_lshl_b32 s83, s83, 2\ns_add_u32 s83, s83, s{WV}")
        add("s_mul_i32 s87, s83, 147\ns_lshr_b32 s87, s87, 10\ns_mul_i32 s81, s87, 7\ns_sub_u32 s81, s83, s81")
        add(f"s_mov_b32 s82, {P4_GROUPS[0][0]}\ns_mov_b32 s85, {P4_GROUPS[0][1]}")
        for t0, nt in P4_GROUPS[1:]: add(f"s_cmp_ge_u32 s81, {t0}\ns_cselect_b32 s82, {t0}, s82\ns_cselect_b32 s85, {nt}, s85")
        add(f"s_mul_i32 s87, s87, {WP4_J}\ns_mul_i32 s84, s82, 39\ns_add_u32 s84, s84, s81\ns_mul_i32 s82, s86, 5\ns_mul_i32 s82, s82, s85\ns_add_u32 s84, s84, s82\ns_lshl_b32 s84, s84, 10\ns_add_u32 s84, s84, s87\ns_add_u32 s84, s84, {WP4}\ns_lshl_b32 s85, s85, 10")
        add(f"s_lshl_b32 s83, s83, 3\ns_add_u32 s83, s83, s86\ns_lshl_b32 s83, s83, 7\ns_add_u32 s83, s83, {CSP4}")
        add(f"s_and_b32 s82, s{S_U}, 3\ns_lshl_b32 s82, s82, 1\ns_add_u32 s82, s82, s{KH}\ns_mul_i32 s82, s82, {WP5_C}\ns_mul_i32 s81, s{RR}, 3072\ns_add_u32 s82, s82, s81\ns_add_u32 s82, s82, {WP5}")
        add(f"s_cmp_ge_u32 s{S_U}, 216\ns_cmov_b32 s84, {OOB}\ns_cmov_b32 s83, {OOB}\ns_cmov_b32 s82, {OOB}\ns_lshl_b32 s81, s{RR}, 10\ns_sub_u32 s81, s82, s81")
        if self.o.get('oob15', 1):
            add(f"s_sub_u32 s86, s{S_U}, 216\ns_lshl_b32 s86, s86, 12\ns_add_u32 s86, s86, {WP4 + 15*WP4_J + 3072}\ns_lshl_b32 s87, s{WV}, 8\ns_sub_u32 s87, s{S_U}, s87\ns_cmp_ge_i32 s87, 216\ns_cmov_b32 s84, s86\ns_cmov_b32 s85, 0x20000000")
        for u in range(5):
            for p in range(2): L.append(('lg', f"ds_read_b64_tr_b16 {v(FR+4*u+2*p,2)}, v{ad} offset:{4*cg32(u,0,p)*128}", ('pl', u)))
        for k in range(3):
            for p in range(2): L.append(('lg', f"ds_read_b64_tr_b16 {v(FD+4*k+2*p,2)}, v{49 if k < 2 else 50} offset:{p*1280 + k*32}", 'pd'))
        S_ = []
        for u in range(5):
            L += [('wl', ('pl', u)), f"v_mfma_f32_32x32x16_bf16 {v(CA,16)}, {v(FR+4*u,4)}, {v(ONE,4)}, {'0' if u == 0 else v(CA,16)}"]
            S_.append(([f"s_add_u32 s84, s84, s85"] if u else []) + [('vm', f"buffer_store_dwordx4 {v(FR+4*u,4)}, v{VL16}, {WS}, s84 offen {st}", 'pst')])
        for k in range(3): S_.append([('vm', f"buffer_store_dwordx4 {v(FD+4*k,4)}, v51, {WS}, s{82 if k < 2 else 81} offen offset:{k*1024} {st}", 'pst')])
        for q in range(4): S_.append([('vm', f"s_mov_b32 exec_lo, 1\ns_mov_b32 exec_hi, 1\nbuffer_store_dwordx4 {v(CA+4*q,4)}, v52, {WS}, s83 offen offset:{16*q} {st}\ns_mov_b64 exec, -1", 'pst')])
        self.late_stores = S_
        return P, L

    def setup2a(self):
        A = self.A; t = VFREE
        A(f"s_lshl_b32 s3, s{MB}, 4\ns_add_u32 s3, s3, s{J}\ns_mul_i32 s{S_KVO}, s3, {KV_WG}\ns_add_u32 s{S_KVO}, s{S_KVO}, {KV}")
        A(f"s_lshl_b32 s3, s{MB}, 2\ns_lshl_b32 s90, s{RH}, 1\ns_add_u32 s3, s3, s90\ns_add_u32 s3, s3, s{RR}")
        A(f"s_mul_i32 s{S_X}, s3, 40960\ns_mul_i32 s90, s{CT}, 5120\ns_add_u32 s{S_X}, s{S_X}, s90")
        A(f"s_lshl_b32 s{S_STX}, s3, 3\ns_add_u32 s{S_STX}, s{S_STX}, s{CT}\ns_lshl_b32 s{S_STX}, s{S_STX}, 8")
        A(f"s_lshl_b32 s3, s3, 1\ns_add_u32 s{S_A3}, s3, s{KH}\ns_xor_b32 s{S_A3B}, s{S_A3}, 1")
        A(f"v_add_u32 v{VB1}, 0x10000, v{VL16}\nv_add_u32 v{VB2}, 0x20000, v{VL16}")

    def setup2b(self):
        A = self.A; t = VFREE
        m5, h, m4, g = t, t+1, t+2, t+3
        A(f"v_and_b32 v{m5}, 31, v{VL}\nv_lshrrev_b32 v{h}, 5, v{VL}\nv_and_b32 v{m4}, 15, v{VL}\nv_lshrrev_b32 v{g}, 4, v{VL}")
        A(f"v_lshlrev_b32 v{VST}, 3, v{m5}\nv_lshl_add_u32 v{VST}, v{h}, 8, v{VST}")
        assert self.nsh <= 2
        A(f"s_lshl_b32 s3, s{MB}, 8\nv_lshlrev_b32 v{VCNT}, 7, v{VL}\nv_add_u32 v{VCNT}, s3, v{VCNT}")
        A(f"v_sub_u32 v{VKF}, s{MB}, v{VL}\nv_cmp_gt_i32 vcc, 0, v{VKF}\nv_mov_b32 v{t+4}, s{MB}\nv_cndmask_b32 v{VKF}, v{VKF}, v{t+4}, vcc\nv_lshlrev_b32 v{VKF}, 4, v{VKF}\nv_add_u32 v{VKF}, s{J}, v{VKF}\nv_lshlrev_b32 v{VKF}, 7, v{VKF}\nv_add_u32 v{VKF}, {KVF}, v{VKF}")
        A(f"s_mul_i32 s3, s{J}, 7\ns_lshr_b32 s3, s3, 2\nv_mov_b32 v{VKT}, 8")
        for k in range(3): A(f"s_add_u32 s100, s3, {k}\ns_min_u32 s100, s100, 26\ns_lshl_b32 s100, s100, 7\ns_add_u32 s100, s100, {PK4}\nv_writelane_b32 v{VKF}, s100, {3+k}")
        A(f"s_lshr_b32 s3, s{CT}, 1\ns_lshl_b32 s3, s3, 7\ns_add_u32 s3, s3, {PK5}\nv_writelane_b32 v{VKF}, s3, 6\nv_writelane_b32 v{VKT}, 54, 6")
        A(f"s_lshl_b32 s3, s{MB}, 3\ns_lshl_b32 s100, s{WV}, 1\ns_add_u32 s3, s3, s100\ns_mul_i32 s3, s3, 20480\ns_mul_i32 s100, s{J}, 1280\ns_add_u32 s3, s3, s100\ns_add_u32 s3, s3, {OO}")
        A(f"v_lshrrev_b32 v{t+4}, 4, v{m5}\nv_mul_u32_u24 v{t+5}, 20480, v{t+4}\nv_lshl_add_u32 v{t+5}, v{m4}, 4, v{t+5}\nv_add_u32 v{VO3}, s3, v{t+5}\nv_lshl_add_u32 v{VO1}, v{h}, 8, v{VO3}")
        A(f"v_mul_u32_u24 v{VH}, {54*1024}, v{t+4}\nv_lshl_add_u32 v{VH}, v{m4}, 4, v{VH}\nv_lshl_add_u32 v{VH}, v{h}, 8, v{VH}")
        A(f"s_lshl_b32 s3, s{KH}, 4\nv_add_u32 v{t+4}, s3, v{m4}\nv_lshlrev_b32 v{VSX}, 3, v{t+4}\nv_and_b32 v{t+5}, 1, v{g}\nv_lshl_add_u32 v{t+4}, v{t+5}, 5, v{t+4}")
        A(f"v_lshlrev_b32 v{VX}, 4, v{t+4}\nv_lshl_add_u32 v{VX}, v{h}, 10, v{VX}")
        A(f"s_mul_i32 s3, s{WV}, 2560\ns_add_u32 s3, s3, {KREG}\nv_add_u32 v{VK}, s3, v{VL16}\ns_add_u32 s3, s3, 2048\nv_lshlrev_b32 v{VKS}, 3, v{VL}\nv_add_u32 v{VKS}, s3, v{VKS}")
        A(f"s_mul_i32 s3, s{WV}, 3328\ns_add_u32 s3, s3, {VREG - 32}")
        A(f"v_mul_u32_u24 v{VV}, 416, v{h}\nv_and_b32 v{t+4}, 1, v{g}\nv_lshl_add_u32 v{VV}, v{t+4}, 7, v{VV}\nv_and_b32 v{t+4}, 3, v{VL}\nv_lshl_add_u32 v{VV}, v{t+4}, 5, v{VV}")
        A(f"v_bfe_u32 v{t+4}, v{VL}, 2, 2\nv_lshl_add_u32 v{VV}, v{t+4}, 3, v{VV}\nv_add_u32 v{VV}, s3, v{VV}")
        A(f"s_add_u32 s3, s3, {8*3328 + 32}\nv_lshrrev_b32 v{t+4}, 2, v{m5}\nv_mul_u32_u24 v{t+4}, 416, v{t+4}\nv_and_b32 v{t+5}, 3, v{VL}\nv_lshl_add_u32 v{t+4}, v{t+5}, 3, v{t+4}\nv_add_u32 v{t+4}, s3, v{t+4}")
        A(f"v_lshl_add_u32 v{VW2}, v{h}, 6, v{t+4}\nv_lshl_add_u32 v{VW1}, v{h}, 5, v{t+4}\nv_mul_u32_u24 v{t+5}, 384, v{h}\nv_add_u32 v{VW12}, v{t+5}, v{t+4}")
        A(f"s_mul_i32 s3, s{WV}, 5120\nv_add_u32 v{VXW}, s3, v{VL16}\ns_xor_b32 s3, s{WV}, 1\ns_mul_i32 s3, s3, 5120\nv_add_u32 v{VXR}, s3, v{VL16}")
        A(f"v_lshlrev_b32 v{t+4}, 2, v{h}\nv_sub_u32 v{t+4}, v{m5}, v{t+4}")
        for r in range(16):
            A(f"v_cmp_le_i32 s[{MASK+2*r}:{MASK+2*r+1}], {8*(r>>2) + (r&3)}, v{t+4}")
        A(f"v_mov_b32 v{t+5}, 0xffff\nv_mov_b32 v{t+6}, 0xffff0000")
        for rr in range(8):
            A(f"v_cndmask_b32 v{PM+rr}, 0, v{t+5}, s[{MASK+4*rr}:{MASK+4*rr+1}]\nv_cndmask_b32 v{t+7}, 0, v{t+6}, s[{MASK+4*rr+2}:{MASK+4*rr+3}]\nv_or_b32 v{PM+rr}, v{PM+rr}, v{t+7}")

    def stats_load(self, off, dst, sr=T[3]):
        A = self.A
        A(f"s_add_u32 s{sr}, s{SL}, s{S_ST1}\ns_add_u32 s{sr}, s{sr}, {off}")
        for i in range(4):
            A.vmem(f"buffer_load_dwordx2 {v(dst+2*i,2)}, v{VST}, {WS}, s{sr} offen offset:{512*i} {self.ld}", 'st')

    def stats_finish(self, d, mu, rs):
        return [f"v_add_f32 v{d}, v{d}, v{d+2}", f"v_add_f32 v{d+1}, v{d+1}, v{d+3}", f"v_add_f32 v{d+4}, v{d+4}, v{d+6}", f"v_add_f32 v{d+5}, v{d+5}, v{d+7}",
                f"v_add_f32 v{d}, v{d}, v{d+4}", f"v_add_f32 v{d+1}, v{d+1}, v{d+5}", f"v_mov_b32 v{d+2}, v{d}", f"v_mov_b32 v{d+3}, v{d+1}",
                f"v_permlane32_swap_b32 v{d}, v{d+2}", f"v_permlane32_swap_b32 v{d+1}, v{d+3}",
                f"v_add_f32 v{d}, v{d}, v{d+2}", f"v_add_f32 v{d+1}, v{d+1}, v{d+3}",
                f"v_mul_f32 v{mu}, {fhex(-1.0/640)}, v{d}", f"v_mul_f32 v{d+1}, {fhex(1.0/640)}, v{d+1}",
                f"v_fma_f32 v{d+1}, -v{mu}, v{mu}, v{d+1}", f"v_max_f32 v{d+1}, 0, v{d+1}", f"v_add_f32 v{d+1}, 0x3727c5ac, v{d+1}",
                f"v_rsq_f32 v{rs}, v{d+1}"]

    def a_load(self, st_, sreg, dst, tag):
        self.A.vmem(f"buffer_load_dwordx4 {a(dst,4)}, v{VL16}, {WS}, s{sreg} offen offset:{(st_ & 3)*1024} {self.ld}", tag)

    def p1_seq(self, adA, adB, AP):
        ACC = 64; ACB = self.ACB = 44
        seq = [(k, ACC + 16*t, adA[k >> 2] + (k & 3)*3072 + 1024*t, a(4*k, 4), k == 0) for k in range(40) for t in range(3)]
        seqB = [(40 + k, (ACC + 48, ACB)[k & 1], adB[k >> 3] + (k & 7)*1024, a(4*k, 4), k < 2) for k in range(40)]
        cs = lambda t, st_: (st_, ACC + 16*t, CSF1 + 1024*t, v(AP, 4), False)
        seq += seqB[:5] + [cs(0, 44), cs(1, 44), cs(2, 44)] + seqB[5:] + [cs(3, 79)]
        R = 8
        vis = lambda nf: seq[max(nf - R, 0)][0]
        idx = {(e[0], e[1]): n for n, e in reversed(list(enumerate(seq)))}
        chA = [(S_W1, c*12288, 3, adA[c], vis(12*c), 4*c + 3) for c in range(10)]
        chB = [(S_W1, 122880 + c*8192, 2, adB[c], vis(idx[(40 + 8*c, ACC + 48)]), 47 + 8*c) for c in range(5)]
        return seq, chA + chB

    def p1(self):
        A = self.A; o = self.o
        STD, MU, RS, AP = 160, 168, 169, 172
        SA = T[4]
        def aload(st_):
            L = [f"s_add_u32 s{SA}, s{SA}, 4096"] if st_ and st_ % 4 == 0 else []
            return L + [('vm', f"buffer_load_dwordx4 {a(4*st_,4)}, v{VL16}, {WS}, s{SA} offen offset:{(st_ & 3)*1024} {self.ld}", ('a', st_))]
        A(f"s_add_u32 s{SA}, s{SL}, s{S_A1}")
        up = o.get("up1", 10); gate = o.get("gate1", 4) if self.es else 0
        if not self.es: self.stats_load(STA, STD)
        for k in range(up): [self.emit(x) for x in aload(k)]
        if self.es: self.reload("main_rl1", 0x580, [f"s_add_u32 s3, s{SL}, s{S_A1}\ns_add_u32 s3, s3, {k*1024}\nbuffer_load_dwordx4 {a(4*k,4)}, v{VL16}, {WS}, s3 offen sc1" for k in range(up)])
        seq, ch = self.p1_seq([20480 + 12288*c for c in range(10)], [0, 8192, 20480, 28672, 36864], AP)
        ch = [c + (k < self.pre1,) for k, c in enumerate(ch)] + [(S_W3, 30720, 8, lds3(3), None, 999, False)]
        bars = list(range(1, 80, 4))
        jobs, valid, used = self.plan(ch, bars)
        jobs[-1] = (o.get("w3at", 72),) + jobs[-1][1:]
        jobs += [(gate, k, aload(k)) for k in range(up, 40)]
        sched = self.edf(jobs, 80, lambda k: o.get("r1", 1.4) if k < 40 else (0.5 if k < 72 else 1.0), o.get("cr1", 0))
        sched[30] += [('wv', 'st')] + self.stats_finish(STD, MU, RS) + self.split3(MU, AP, STD)
        def at_step(st_, fill):
            if st_ in used or st_ == 37:
                for tag in valid.get(st_, []): self.need(tag, fill)
                A("s_barrier")
            if st_ == 40: self.stamp('p1.a')
            self.es_hooks(st_, fill, up, gate, "main_rl1", 0x590, lambda: self.stats_load(STA, STD))
            fill += sched[st_]
            if st_ < 40: self.need(('a', st_), fill)
        self.p1_tail(seq, sched, at_step, RS, (('a', 0), 'p1.go'))

    def p1_tail(self, seq, sched, at_step, RS, go=None):
        A = self.A; ACC, PK, RQ, VC = 64, 176, 170, 192
        self.QA1, self.QB1, self.QA2, self.QB2 = 224, 228, 232, 236
        def quad(t, j, dst, sc):
            r = ACC + 16*t + 4*j
            return [f"v_mul_f32 v{r+i}, v{sc}, v{r+i}" for i in range(4)] + [f"v_cvt_pk_bf16_f32 v{dst}, v{r}, v{r+1}", f"v_cvt_pk_bf16_f32 v{dst+1}, v{r+2}, v{r+3}"]
        KA, KB, KS, VT = PK, PK+4, PK+8, 208
        L = [f"s_add_u32 s{T[4]}, s{SL}, s{S_KVO}", f"s_mul_i32 s{T[5]}, s{WV}, 2560", f"s_add_u32 s{T[5]}, s{T[5]}, s{T[4]}", f"s_mul_i32 s{T[6]}, s{WV}, 3328",
             f"s_add_u32 s{T[7]}, s{T[6]}, {VREG + 8*3328}", f"s_add_u32 s{T[6]}, s{T[6]}, s{T[4]}", f"s_add_u32 s{T[6]}, s{T[6]}, 10240",
             f"v_add_u32 v{PK+11}, s{T[7]}, v{VL16}", f"v_lshlrev_b32 v{PK+10}, 3, v{VL}", f"v_mov_b32 v{VT+10}, 0x3f803f80", f"v_mov_b32 v{VT+11}, 0x3f803f80",
             ('lg', f"ds_write_b64 v{VW1}, {v(VT+10,2)} offset:{5*32}", None), f"v_mul_f32 v{RQ}, {fhex(QSCALE)}, v{RS}"]
        for n, (t, j, ad, pos) in enumerate(((1, 1, VW2, 1), (1, 2, VW2, 2), (1, 3, VW12, 0), (2, 0, VW2, 7), (2, 1, VW2, 8))):
            L += quad(t, j, VT+2*n, RS) + [('lg', f"ds_write_b64 v{ad}, {v(VT+2*n,2)} offset:{pos*32}", 'vw')]
        L += quad(0, 0, KA, RS) + [('wl', 'vw')] + [('lg', f"ds_read_b128 {v(VC+4*n,4)}, v{PK+11} offset:{1024*n}", ('vc', n)) for n in range(4)] + quad(0, 1, KA+2, RS)
        L += [('vm', f"buffer_store_dwordx4 {v(KA,4)}, v{VL16}, {WS}, s{T[5]} offen {self.stkv}", 'out'), ('lg', f"ds_write_b128 v{VK}, {v(KA,4)} offset:{8*2560}", None)]
        st_v = lambda n: [('wl', ('vc', n)), ('vm', ("s_mov_b64 exec, 0xffff\n" if n == 3 else "") + f"buffer_store_dwordx4 {v(VC+4*n,4)}, v{VL16}, {WS}, s{T[6]} offen offset:{1024*n} {self.stkv}" + ("\ns_mov_b64 exec, -1" if n == 3 else ""), 'out')]
        L += st_v(0) + quad(0, 3, KB, RS) + st_v(1) + quad(1, 0, KB+2, RS) + st_v(2)
        L += [('vm', f"buffer_store_dwordx4 {v(KB,4)}, v{VL16}, {WS}, s{T[5]} offen offset:1024 {self.stkv}", 'out'), ('lg', f"ds_write_b128 v{VK}, {v(KB,4)} offset:{8*2560+1024}", None)]
        L += quad(0, 2, KS, RS) + st_v(3)
        L += [('vm', f"buffer_store_dwordx2 {v(KS,2)}, v{PK+10}, {WS}, s{T[5]} offen offset:2048 {self.stkv}", 'out'), ('lg', f"ds_write_b64 v{VKS}, {v(KS,2)} offset:{8*2560}", None)]
        L += quad(2, 3, self.QA1, RQ) + [f"v_mov_b32 v{q+k}, 0" for q in (self.QA2, self.QB2) for k in (2, 3)]
        self.run32(seq, [128 + 4*k for k in range(8)], sched, at_step, (L, 128, self.o.get("kvrate", 9)), go)
        while L: self.emit(L.pop(0))
        self.stamp('p1.main')
        A.wait_vm('out'); A.wait_lg0()
        self.qpack = [f"v_add_f32 v{ACC+48+k}, v{ACC+48+k}, v{self.ACB+k}" for k in range(16)]
        self.qpack += quad(3, 0, self.QA1+2, RQ) + quad(3, 1, self.QA2, RQ) + quad(3, 2, self.QB1, RQ) + quad(3, 3, self.QB1+2, RQ)

    def kv_sync(self):
        A = self.A; N = A.newlab("nw0"); E = A.newlab("syn"); N0 = A.newlab("nw0")
        A.vm = []; A.lg = []
        A("s_barrier")
        self.stamp('p1.drain')
        A(f"s_cmp_lg_u32 s{WV}, 0\ns_cbranch_scc1 {N0}\ns_add_u32 s3, s{LAY}, 1\ns_mov_b64 exec, 7\nv_mov_b32 v{VKT}, s3\ns_mov_b64 exec, 1\nbuffer_store_dword v{VKT}, v{VKF}, {WS}, 0 offen sc1\ns_mov_b64 exec, -1")
        A.lab(N0)
        for x in self.qpack: A(x)
        A(f"v_mov_b32 v{self.QB2}, v{self.QA2}\nv_mov_b32 v{self.QB2+1}, v{self.QA2+1}")
        A(f"s_mov_b32 exec_lo, 0\nv_mov_b32 v{self.QA2}, 0\nv_mov_b32 v{self.QA2+1}, 0\ns_mov_b32 exec_lo, -1\ns_mov_b32 exec_hi, 0\nv_mov_b32 v{self.QB2}, 0\nv_mov_b32 v{self.QB2+1}, 0\ns_mov_b32 exec_hi, -1")
        self.code_touch()
        self.mark([("", VO1, SL, 0, ""), ("", VO1, SL, 768, ""), ("s_mov_b32 exec_lo, 0\n", VO3, SL, 512, "\ns_mov_b32 exec_lo, -1")])
        G = [(28, 29, 31, 32), (33, 34, 35, 99)]
        A(f"s_mul_i32 s100, s{WV}, 6144\ns_add_u32 s101, s100, 4096\ns_min_u32 s101, s101, 21504")
        for src in range(2):
            back = 2 - src; g1, l1, g2, l2 = G[src]
            A(f"s_add_u32 s3, s{SL}, s{S_KVO}\ns_sub_u32 s3, s3, {back*16*KV_WG}\ns_cmp_lt_u32 s{MB}, {back}\ns_cmov_b32 s3, {OOB}\ns_add_u32 s{g1}, s3, s100\ns_add_u32 s{g2}, s3, s101")
            ko = KREG + src*10240; vo = VREG + src*13312 - 10240
            A(f"s_cmp_lt_u32 s{WV}, 2"); sel(A, l1, ko, vo); A(f"s_cmp_lt_u32 s{WV}, 1"); sel(A, l2, ko, vo)
            A(f"s_add_u32 s{l1}, s{l1}, s100\ns_add_u32 s{l2}, s{l2}, s101")
        A(f"s_cmp_lg_u32 s{WV}, 0\ns_cbranch_scc1 {N}\ns_mov_b64 exec, 0x7f")
        self.spin(VKF, f'v{VKT}', 0x100)
        A(f"s_mov_b64 exec, -1")
        self.stamp('p1.poll')
        A(f"s_branch {E}")
        A.lab(N)
        self.rnd3(S_W3, 0, 0, 10)
        A.lab(E)
        A("s_barrier")
        for tag, (g1, l1, g2, l2) in (('halo1', G[1]), ('halo2', G[0])):
            for g, l, n in ((g1, l1, 4), (g2, l2, 2)):
                A(f"s_mov_b32 m0, s{l}")
                for i in range(n): A.vmem(f"buffer_load_dwordx4 v{VL16}, {WS}, s{g} offen offset:{1024*i} {self.ld} lds", tag)
        A.wait_vm('halo1'); A("s_barrier")
        self.stamp('p2.go')

    def packed_signal(self):
        A = self.A; L = A.newlab("ps"); t = 60
        A(f"s_cmp_lg_u32 s{WV}, 0\ns_cbranch_scc1 {L}\ns_cmp_ge_u32 s{S_U}, 216\ns_cbranch_scc1 {L}")
        A(f"s_lshr_b32 s101, s{S_U}, 3\ns_lshl_b32 s101, s101, 7\ns_add_u32 s101, s101, {PK4}\nv_mov_b32 v{t}, s101\ns_and_b32 s101, s{S_U}, 3\ns_lshl_b32 s101, s101, 7\ns_add_u32 s101, s101, {PK5}\nv_writelane_b32 v{t}, s101, 1")
        A(f"s_mov_b64 exec, 3\nv_mov_b32 v{t+1}, 1\nbuffer_atomic_add v{t+1}, v{t}, {WS}, 0 offen sc1\ns_mov_b64 exec, -1")
        A.lab(L)

    def colsums(self, between, nb):
        A = self.A; L = A.newlab("x0"); L1 = A.newlab("x1"); t = VFREE
        A(f"s_lshl_b32 s{T[7]}, s{LAY}, 2\ns_sub_u32 s{T[7]}, s{RR}, s{T[7]}\ns_cmp_lg_u32 s{T[7]}, 1\ns_cbranch_scc1 {L1}")
        A(f"s_mul_i32 s{T[5]}, s{J}, 7168\ns_add_u32 s{T[5]}, s{T[5]}, {CSP4 - 4096}")
        A(f"s_lshl_b32 s{T[6]}, s{S_WI}, 7\nv_add_u32 v{t}, s{T[6]}, v{VL}")
        for r in range(2):
            A(f"v_add_u32 v{t+1}, {64*r}, v{t}\nv_lshrrev_b32 v{t+2}, 5, v{t+1}\nv_and_b32 v{t+3}, 31, v{t+1}\nv_lshlrev_b32 v{t+3}, 2, v{t+3}\nv_lshl_add_u32 v{t+2}, v{t+2}, 10, v{t+3}")
            for k in range(8): A(f"buffer_load_dword v{t+4+8*r+k}, v{t+2}, {WS}, s{T[5]} offen offset:{128*k} sc1")
        A.lab(L1)
        between()
        A(f"s_cmp_lg_u32 s{T[7]}, 1\ns_cbranch_scc1 {L}")
        A(self.csaddr(t, t+2, t+3, CSF4 - 4096) + f"\nv_add_u32 v{t+3}, 2048, v{t+2}\ns_waitcnt vmcnt({nb})")
        for k in range(1, 8): A(f"v_add_f32 v{t+4}, v{t+4}, v{t+4+k}\nv_add_f32 v{t+12}, v{t+12}, v{t+12+k}")
        for x in self.csfrag(t+4, 64, 68, t+2) + self.csfrag(t+12, 72, 68, t+3): A(x[1] if isinstance(x, tuple) else x)
        A("s_waitcnt lgkmcnt(0)")
        A.lab(L)

    def p2(self):
        A = self.A
        SB = [48, 64, 80]; PB = [96, 104]; PD = 112; OA = [128, 144]; KF = [162, 174]; VF = [184, 192, 200]; CB = [208, 240]
        Q1 = [self.QA1, self.QB1]; Q2 = [self.QA2, self.QB2]
        cz = self.o.get("czero", True)
        order = list(range(7, 0, -1))
        nxt = dict(zip(order, order[1:] + [0]))
        blocks = [(i, hd) for i in order for hd in range(2)] + [('m', 0), ('m', 1)]
        N = len(blocks)
        def kread(i, buf):
            k = KF[buf]
            return [('lg', f"ds_read_b64 {v(k,2)}, v{VKS} offset:{i*2560}", ('k', i)), ('lg', f"ds_read_b128 {v(k+2,4)}, v{VK} offset:{i*2560}", ('k', i)),
                    ('lg', f"ds_read_b128 {v(k+6,4)}, v{VK} offset:{i*2560+1024}", ('k', i))]
        def vread(i, hd, buf):
            return [('lg', f"ds_read_b64_tr_b16 {v(VF[buf]+4*aa+2*p,2)}, v{VV} offset:{i*3328 + (4*aa+2*p)*416 + 192*hd}", ('v', i, hd)) for aa in range(2) for p in range(2)]
        kbuf = {i: i % 2 for i in range(1, 8)}; kbuf[0] = 0; kbuf[8] = 1
        def smf(i, hd, sb):
            k = KF[kbuf[i]]; c = '0' if cz else v(CB[hd], 16)
            return [('mf', f"v_mfma_f32_32x32x16_bf16 {v(sb,16)}, {v(k+2+4*hd,4)}, {v(Q1[hd],4)}, {c}", ('k', i)),
                    ('mf', f"v_mfma_f32_32x32x16_bf16 {v(sb,16)}, {v(k,4)}, {v(Q2[hd],4)}, {v(sb,16)}", None)]
        started = [False, False]
        def pvf(i, hd, pb, vb):
            L = []
            for aa in range(2):
                c = v(OA[hd], 16) if started[hd] else '0'; started[hd] = True
                L.append(('mf', f"v_mfma_f32_32x32x16_bf16 {v(OA[hd],16)}, {v(VF[vb]+4*aa,4)}, {v(pb+4*aa,4)}, {c}", ('v', i, hd) if aa == 0 else None))
            return L
        def emit(x):
            if isinstance(x, str): A(x)
            elif x[0] == 'vm': A.vmem(x[1], x[2])
            elif x[0] == 'lg': A.lds(x[1], x[2])
            else:
                if x[2] is not None: A.wait_lg(x[2])
                A(x[1])
        def weave(mfs, fill):
            cost = lambda x: 8 if isinstance(x, str) and x.startswith("v_exp") else 4
            tot = sum(map(cost, fill)); acc = 0; k = 0
            for x in fill:
                while k < len(mfs) and acc >= tot * k / len(mfs): emit(mfs[k]); k += 1
                emit(x); acc += cost(x)
            while k < len(mfs): emit(mfs[k]); k += 1
        sbuf = lambda n: SB[n % 2]
        for x in kread(order[0], kbuf[order[0]]): emit(x)
        for x in smf(order[0], 0, sbuf(0)): emit(x)
        for n in range(N + 1):
            mfs = []; fill = []
            if n + 1 < N:
                i, hd = blocks[n+1]
                if i == 'm': mfs += smf(0, hd, sbuf(n+1)) + smf(8, hd, SB[2])
                else: mfs += smf(i, hd, sbuf(n+1))
            pv = []
            if n >= 1:
                i, hd = blocks[n-1]
                if i == 'm': pv = pvf(0, hd, PB[(n-1) % 2], (n-1) % 2) + pvf(8, hd, PD, 2)
                else: pv = pvf(i, hd, PB[(n-1) % 2], (n-1) % 2)
            if n < N:
                i, hd = blocks[n]
                if i != 'm' and hd == 0:
                    if nxt[i] == 3:
                        A.wait_vm('halo2'); A("s_barrier")
                    fill += kread(nxt[i], kbuf[nxt[i]])
                sb = sbuf(n)
                if i == 'm':
                    pre = [f"v_cndmask_b32 v{sb+r}, v{sb+r}, v{SB[2]+r}, s[{MASK+2*r}:{MASK+2*r+1}]" for r in range(16)]
                    for x in pre: emit(x)
                    for x in pv: emit(x)
                    pv = []
                    fill += vread(0, hd, n % 2) + vread(8, hd, 2)
                else:
                    fill += vread(i, hd, n % 2)
                ex = []
                for r in range(16):
                    ex.append(f"v_exp_f32 v{sb+r}, v{sb+r}")
                    if r >= 3 and r % 2 == 1: ex.append(f"v_cvt_pk_bf16_f32 v{PB[n%2]+(r-3)//2}, v{sb+r-3}, v{sb+r-2}")
                ex.append(f"v_cvt_pk_bf16_f32 v{PB[n%2]+7}, v{sb+14}, v{sb+15}")
                if i == 'm':
                    for rr in range(8):
                        ex.append(f"v_and_b32 v{PD+rr}, v{PM+rr}, v{PB[n%2]+rr}")
                        ex.append(f"v_bfi_b32 v{PB[n%2]+rr}, v{PM+rr}, 0, v{PB[n%2]+rr}")
                fill += ex
                if blocks[n] == (order[-1], 1):
                    for x in mfs[:2]: emit(x)
                    for x in kread(8, kbuf[8]): emit(x)
                    mfs = pv + mfs[2:]; pv = []
            weave(mfs + pv, fill) if fill else [emit(x) for x in mfs + pv]
        A(f"v_min_f32 v48, v{OA[0]+12}, v{OA[1]}\nv_max_f32 v49, v{OA[0]+12}, v{OA[1]}\nv_cmp_u_f32 s[36:37], v{OA[0]+12}, v{OA[1]}")
        A(f"v_cmp_gt_f32 vcc, {fhex(2.0**-60)}, v48\ns_or_b64 s[36:37], s[36:37], vcc\nv_cmp_lt_f32 vcc, {fhex(2.0**60)}, v49\ns_or_b64 s[36:37], s[36:37], vcc\ns_cbranch_scc1 main_slow")
        if self.o.get("forceslow"): A("s_branch main_slow")
        A.lab("main_slow_back")
        self.slow_attention(OA, Q1, Q2)
        A("s_barrier")
        if self.o.get("estest"):
            LT = A.newlab("t"); A(f"s_cmp_lg_u32 s{LAY}, 0\ns_cbranch_scc1 {LT}"); self.early_signal(True); A.lab(LT)
        self.early_signal()
        self.stamp('p2.main')
        ra, rb = 48, 49
        A(f"v_rcp_f32 v{ra}, v{OA[0]+12}\nv_rcp_f32 v{rb}, v{OA[1]}")
        A(f"s_nop 0")
        def pk(dst, r, rs):
            for i in range(4): A(f"v_mul_f32 v{r+i}, v{rs}, v{r+i}")
            A(f"v_cvt_pk_bf16_f32 v{dst}, v{r}, v{r+1}\nv_cvt_pk_bf16_f32 v{dst+1}, v{r+2}, v{r+3}")
        pk(52, OA[0]+4, ra); pk(54, OA[0]+8, ra)
        A.vmem(f"buffer_store_dwordx4 {v(52,4)}, v{VO1}, {WS}, s{SL} offen {self.st}")
        pk(56, OA[1]+4, rb); pk(58, OA[1]+8, rb)
        A.vmem(f"buffer_store_dwordx4 {v(56,4)}, v{VO1}, {WS}, s{SL} offen offset:768 {self.st}")
        pk(60, OA[0], ra); pk(62, OA[1]+12, rb)
        A("s_mov_b32 exec_lo, 0")
        A.vmem(f"buffer_store_dwordx4 {v(60,4)}, v{VO3}, {WS}, s{SL} offen offset:512 {self.st}", 'out')
        A("s_mov_b32 exec_lo, -1")

    def slow_attention(self, OA, Q1, Q2):
        B = Asm(); B.uid = 9000
        S_, P_, K_, V_, C_, M_, AK, AKS, AV, NI = 48, 96, 162, 184, 208, 64, 65, 66, 67, 68
        I, I0 = T[0], T[1]
        B.lab("main_slow")
        B(f"s_lshl_b32 s{I0}, s{MB}, 2\ns_add_u32 s{I0}, s{I0}, s{WV}\ns_min_u32 s{I0}, s{I0}, 8\ns_sub_u32 s{I0}, 8, s{I0}\nv_mov_b32 v{NI}, 0xff800000")
        def scores(hd, c, tag):
            B(f"s_mul_i32 s3, s{I}, 2560\nv_add_u32 v{AK}, s3, v{VK}\nv_add_u32 v{AKS}, s3, v{VKS}\ns_mul_i32 s3, s{I}, 3328\nv_add_u32 v{AV}, s3, v{VV}")
            B(f"ds_read_b64 {v(K_,2)}, v{AKS}\nds_read_b128 {v(K_+2,4)}, v{AK}\nds_read_b128 {v(K_+6,4)}, v{AK} offset:1024\ns_waitcnt lgkmcnt(0)")
            B(f"v_mfma_f32_32x32x16_bf16 {v(S_,16)}, {v(K_+2+4*hd,4)}, {v(Q1[hd],4)}, {c}\nv_mfma_f32_32x32x16_bf16 {v(S_,16)}, {v(K_,4)}, {v(Q2[hd],4)}, {v(S_,16)}\ns_nop 15")
            B(f"s_cmp_lg_u32 s{I}, 0\ns_cbranch_scc1 {tag}_a")
            for r in range(16): B(f"v_cndmask_b32 v{S_+r}, v{S_+r}, v{NI}, s[{MASK+2*r}:{MASK+2*r+1}]")
            B.lab(f"{tag}_a")
            B(f"s_cmp_lg_u32 s{I}, 8\ns_cbranch_scc1 {tag}_b")
            for r in range(16): B(f"v_cndmask_b32 v{S_+r}, v{NI}, v{S_+r}, s[{MASK+2*r}:{MASK+2*r+1}]")
            B.lab(f"{tag}_b")
        for hd in range(2):
            B(f"v_mov_b32 v{M_}, v{NI}\ns_mov_b32 s{I}, s{I0}")
            B.lab(f"main_max{hd}")
            scores(hd, '0', f"main_m{hd}")
            for r in range(0, 16, 2): B(f"v_max3_f32 v{M_}, v{M_}, v{S_+r}, v{S_+r+1}")
            B(f"s_add_u32 s{I}, s{I}, 1\ns_cmp_le_u32 s{I}, 8\ns_cbranch_scc1 main_max{hd}")
            B(f"v_mov_b32 v{M_+5}, v{M_}\nv_permlane32_swap_b32 v{M_}, v{M_+5}\nv_max_f32 v{M_}, v{M_}, v{M_+5}")
            for r in range(16): B(f"v_sub_f32 v{C_+r}, 0, v{M_}\nv_mov_b32 v{OA[hd]+r}, 0")
            B(f"s_mov_b32 s{I}, s{I0}\ns_nop 1")
            B.lab(f"main_sum{hd}")
            scores(hd, v(C_, 16), f"main_s{hd}")
            for aa in range(2):
                for p in range(2): B(f"ds_read_b64_tr_b16 {v(V_+4*aa+2*p,2)}, v{AV} offset:{(4*aa+2*p)*416 + 192*hd}")
            for r in range(16): B(f"v_exp_f32 v{S_+r}, v{S_+r}")
            for r in range(8): B(f"v_cvt_pk_bf16_f32 v{P_+r}, v{S_+2*r}, v{S_+2*r+1}")
            B("s_waitcnt lgkmcnt(0)")
            for aa in range(2): B(f"v_mfma_f32_32x32x16_bf16 {v(OA[hd],16)}, {v(V_+4*aa,4)}, {v(P_+4*aa,4)}, {v(OA[hd],16)}")
            B(f"s_nop 7\ns_add_u32 s{I}, s{I}, 1\ns_cmp_le_u32 s{I}, 8\ns_cbranch_scc1 main_sum{hd}")
        B("s_nop 15\ns_branch main_slow_back")
        self.rare.append(B.render())

    def proj_setup(self, khoff):
        A = self.A; ACC, B0 = 64, 124
        A(f"s_mul_i32 s{T[7]}, s{KH}, {khoff}")
        for k in range(3): A(f"v_add_u32 v{B0+k}, s{T[7]}, v{[VL16, VB1, VB2][k]}")
        for k in range(10):
            A(f"v_lshlrev_b32 v{ACC+2*k}, 16, v{RES+k}\nv_and_b32 v{ACC+2*k+1}, 0xffff0000, v{RES+k}")

    def proj_loop(self, nb, wl, sched, hook, t0=0, nreg=0, go=None, side=None):
        A = self.A; ACC, WFB, B0 = 64, [104, 176], 124
        bases = [B0, B0+1, B0+2]
        if go and not self.o.get("onebar", 0): self.go(*go); go = None
        for t in range(5): A.lds(f"ds_read_b128 {v(WFB[0]+4*t,4)}, {self.ldsaddr(wl(0) + 1024*t, bases)}", ('f', 0))
        if go: self.go(*go)
        fill = []
        for b in range(nb):
            hook(b, fill)
            fill += sched[t0 + b]
            self.need(('a5', b), fill)
            A.wait_lg(('f', b))
            for t in range(5):
                for u in range(2):
                    d = ACC + 20*u + 4*t
                    wop = v(WFB[b&1]+4*t, 4) if b < nb - nreg else self.wreg(5*(b - nb + nreg) + t)
                    A(f"v_mfma_f32_16x16x32_bf16 {v(d,4)}, {wop}, {a(8*(b % 20)+4*u,4)}, {'0' if (b == 0 and u == 1) else v(d,4)}")
                    k = 2*t + u
                    if k < 5 and b < nb - 1 - nreg: A.lds(f"ds_read_b128 {v(WFB[(b+1)&1]+4*k,4)}, {self.ldsaddr(wl(b+1) + 1024*k, bases)}", ('f', b+1))
                    if k >= 4: self.drain(fill, 2)
                    if side: self.drain(side[0], side[1])
        while fill: self.emit(fill.pop(0))

    def wreg(self, f):
        return a(160 + 4*f, 4) if f < 24 else v(236, 4)

    def wreg_load(self):
        A = self.A; nreg = self.o.get("nreg5", 5)
        for b in range(27 - nreg, 27):
            A(f"s_mul_i32 s{T[6]}, s{KH}, 10240\ns_add_u32 s{T[6]}, s{T[6]}, s{S_W5}\ns_add_u32 s{T[6]}, s{T[6]}, {(4*(b >> 1) + (b & 1))*5120}\ns_add_u32 s{T[7]}, s{T[6]}, 4096")
            for t in range(5): A(f"buffer_load_dwordx4 {self.wreg(5*(b - 27 + nreg) + t)}, v{VL16}, {WS}, s{T[6 + t//4]} offen offset:{1024*(t & 3)}")

    def p3(self):
        A = self.A; o = self.o; SA0, SA1 = T[4], T[5]
        whole = o.get("whole3", 1)
        if whole:
            A(f"s_mul_i32 s{SA0}, s{S_A3}, {20*1024}\ns_add_u32 s{SA0}, s{SA0}, s{SL}\ns_add_u32 s{SA0}, s{SA0}, {OO}\ns_add_u32 s{SA1}, s{SA0}, {10*1024}")
        else:
            for sa, m in ((SA0, S_A3), (SA1, S_A3B)):
                A(f"s_mul_i32 s{sa}, s{m}, {20*1024}\ns_add_u32 s{sa}, s{sa}, s{SL}\ns_mul_i32 s{T[7]}, s{KH}, {10*1024}\ns_add_u32 s{sa}, s{sa}, s{T[7]}\ns_add_u32 s{sa}, s{sa}, {OO}")
        def aload(b):
            L = []
            if b and b % 4 == 0: L += [f"s_add_u32 s{SA0}, s{SA0}, 4096", f"s_add_u32 s{SA1}, s{SA1}, 4096"]
            for u, sa in enumerate((SA0, SA1)):
                L.append(('vm', f"buffer_load_dwordx4 {a(8*b+4*u,4)}, v{VL16}, {WS}, s{sa} offen offset:{(b&3)*1024} {self.ld}", ('a5', b)))
            return L
        up = o.get("up3", 6)
        for b in range(up): [self.emit(x) for x in aload(b)]
        early = o.get("early4", 2); gate = o.get("gate3", 2) if self.es else 0
        preload = ('vm', f"s_mov_b64 exec, 1\nbuffer_load_dword v253, v{VCNT}, {WS}, 0 offen sc1\ns_mov_b64 exec, -1", 'fl')
        if self.es:
            assert whole
            self.mark_x(X1)
            self.reload("main_rl3", 0x280, [f"s_mul_i32 s3, s{S_A3}, {20*1024}\ns_add_u32 s3, s3, s{SL}\ns_add_u32 s3, s3, {OO + (10*u + b)*1024}\nbuffer_load_dwordx4 {a(8*b+4*u,4)}, v{VL16}, {WS}, s3 offen sc1" for b in range(up) for u in range(2)])
        sched = self.edf([(gate, b, aload(b)) for b in range(up, 10)] + [(4, 20 + c, self.rnd(S_W4, c*16384, c*16384, 4, 'w4')) for c in range(early)], 10, o.get("r3", 3.0))
        self.proj_setup(5120)
        if whole:
            ACC = 64; bases = [VL16, VB1, VB2]; WFS = [104 + 4*k for k in range(5)] + [128 + 4*k for k in range(5)]
            rd = lambda n: A.lds(f"ds_read_b128 {v(WFS[n % 10],4)}, {self.ldsaddr(lds3(n // 10) + (n % 10)*1024, bases)}", ('f', n))
            for n in range(10): rd(n)
            self.go(('a5', 0), 'p3.go')
            fill = []
            for n in range(100):
                if n % 10 == 0:
                    b = n // 10
                    if n == 40 and early: A("s_barrier")
                    assert not any(isinstance(x, str) and "vccnz" in x for x in fill)
                    if self.es and b == 0:
                        for x in self.verify([0, 4], "main_rl3"): A(x)
                    if self.es and b == max(gate - 2, 0): self.emit(preload)
                    if self.es and b == gate:
                        A.wait_vm('fl'); self.flag_check(253, 0x290)
                    fill += sched[b]
                    self.need(('a5', b), fill)
                    if self.es and b + 1 < up: fill = [('wv', ('a5', b + 1))] + self.verify([8*b + 8, 8*b + 12], "main_rl3") + fill
                if n % 2 == 0: A.wait_lg(('f', n + 1))
                d = ACC + 4*(n % 5)
                A(f"v_mfma_f32_16x16x32_bf16 {v(d,4)}, {v(WFS[n % 10],4)}, {a(4*(n // 5),4)}, {v(d,4)}")
                if n + 10 < 100: rd(n + 10)
                if n % 2: self.drain(fill, 2)
            while fill: self.emit(fill.pop(0))
            A("s_barrier")
            self.early_signal()
        else:
            self.proj_loop(10, lds3, sched, lambda b, fill: A("s_barrier") if b == 4 and early else None, go=(('a5', 0), 'p3.go'))
        self.stamp('p3.main')
        self.proj_epilogue(3, None if whole else XCH3)

    def flag_check(self, reg, code):
        A = self.A; L = A.newlab("fc")
        A(f"s_mov_b64 exec, {self.shm}\nv_cmp_gt_u32 vcc, s{TGT}, v{reg}\ns_cbranch_vccz {L}")
        self.spin(VCNT, f"s{TGT}", code)
        A.lab(L); A("s_mov_b64 exec, -1")

    def signal(self):
        A = self.A; L = A.newlab("sg")
        A(f"s_add_u32 s{TGT}, s{TGT}, {16 // self.nsh}\ns_cmp_lg_u32 s{WV}, 0\ns_cbranch_scc1 {L}\ns_mov_b64 exec, 1\nv_mov_b32 v252, 1\n{self.shoff()}buffer_atomic_add v252, v{VCNT}, {WS}, s3 offen sc1\ns_mov_b64 exec, -1")
        A.lab(L)

    def ffn(self):
        A = self.A; o = self.o
        ACC, STD, MU, RS, AP, PK = 64, 208, 216, 217, 220, 224
        WFS = [176 + 4*k for k in range(8)]
        SA, SA0, SA1, SH1, SH1B, SH2 = T[4], T[4], T[5], T[0], T[1], T[3]
        nreg = o.get("nreg5", 5)
        nc5 = (27 - nreg + 1) // 2
        sizes = [4]*10 + [3]*10 + [5]*nc5
        addr = []; p = 0
        for k, kb in enumerate(sizes):
            if k == 10: p = o.get("g2at", 24576)
            if p + kb*4096 > LDS_MISC: p = 0
            addr.append(p); p += kb*4096
        seq = [(k, ACC + 16*t, addr[k >> 2] + (k & 3)*4096 + 1024*t, a(4*k, 4), k == 0) for k in range(40) for t in range(4)]
        seq += [(39, ACC + 16*t, CSF4 + 1024*t, v(AP, 4), False) for t in range(4)]
        seq += [(40 + k, ACC + 64 + 16*t, addr[10 + (k >> 2)] + (k & 3)*3072 + 1024*t, a(4*k, 4), k == 0) for k in range(40) for t in range(3)]
        seq += [(79, ACC + 64 + 16*t, CSF4 + 4096 + 1024*t, v(AP, 4), False) for t in range(3)]
        vis = lambda nf: seq[max(nf - len(WFS), 0)][0]
        npre = o.get("npre4", 6)
        ch = [(S_W4, c*16384, 4, addr[c], vis(16*c), 4*c + 3, c < npre) for c in range(10)]
        ch += [(S_W4B, 163840 + c*12288, 3, addr[10 + c], vis(164 + 12*c), 43 + 4*c, False) for c in range(10)]
        ch += [(S_W5, c*20480, 5, addr[20 + c], max(80, 79 + 2*c), 81 + 2*c, False) for c in range(nc5)]
        bars = list(range(1, 80, 4)) + [80] + list(range(81, 107, 2))
        jobs, valid, used = self.plan(ch, bars)
        lastbar = max(b for b in used)
        live = [(c[3], c[3] + 20480) for c in ch[20:] if c[5] >= lastbar]
        xch = [x for x in (0, 57344, 77824, 98304, 118784, 126976) if all(x + 20480 <= lo or hi <= x for lo, hi in live)][0]
        wl5 = lambda b: addr[20 + (b >> 1)] + (b & 1)*5120
        A(f"s_add_u32 s{SA}, s{SL}, s{S_A1}\ns_add_u32 s{SA}, s{SA}, {X1}")
        if not self.es: self.stats_load(ST3, STD)
        def aload(st_):
            L = [f"s_add_u32 s{SA}, s{SA}, 4096"] if st_ and st_ % 4 == 0 else []
            return L + [('vm', f"buffer_load_dwordx4 {a(4*st_,4)}, v{VL16}, {WS}, s{SA} offen offset:{(st_ & 3)*1024} {self.ld}", ('a', st_))]
        def aload5(b):
            L = []
            if b == 0:
                for sa, m in ((SA0, S_A3), (SA1, S_A3B)):
                    L.append(f"s_mul_i32 s{sa}, s{m}, {54*1024}\ns_add_u32 s{sa}, s{sa}, s{SL}\ns_lshl_b32 s3, s{KH}, 10\ns_add_u32 s{sa}, s{sa}, s3\ns_add_u32 s{sa}, s{sa}, {HH}")
            elif b % 2 == 0: L += [f"s_add_u32 s{SA0}, s{SA0}, 4096", f"s_add_u32 s{SA1}, s{SA1}, 4096"]
            for u, sa in enumerate((SA0, SA1)):
                L.append(('vm', f"buffer_load_dwordx4 {a(8*(b % 20)+4*u,4)}, v{VL16}, {WS}, s{sa} offen offset:{(b&1)*2048} {self.ld}", ('a5', b)))
            return L
        up = o.get("up4", 10); chk1 = o.get("chk1", 77); chk2 = o.get("chk2", 10)
        for k in range(up): [self.emit(x) for x in aload(k)]
        gate = o.get("gate4", 4) if self.es else 0
        if self.es:
            self.reload("main_rl4", 0x380, [f"s_add_u32 s3, s{SL}, s{S_A1}\ns_add_u32 s3, s3, {X1 + k*1024}\nbuffer_load_dwordx4 {a(4*k,4)}, v{VL16}, {WS}, s3 offen sc1" for k in range(up)])
            L1 = A.newlab("m1")
            A(f"s_cmp_lg_u32 s{LAY}, 0\ns_cbranch_scc1 {L1}")
            self.mark_x(LS + XA); self.colsums(lambda: None, 0)
            A.lab(L1)
        jobs += [(gate, k, aload(k)) for k in range(up, 40)]
        if self.es and nreg:
            wr = self.capture(self.wreg_load)
            jobs.append((o.get("wrat", 47), 79, [('vm', x, 'wr') if x.startswith("buffer") else x for x in wr]))
        jobs += [(chk1 if b < 15 else max(80 + chk2, 80 + b - 19), 79.6 + (b >= o.get("up5", 5))*(b - 0.6), aload5(b), 80 + b) for b in range(27)]
        r4a, r4b, r4c, r5 = o.get("r4a", 1.85), o.get("r4b", 1.3), o.get("r4c", 2.5), o.get("r5", 3.5)
        sched = self.edf(jobs, 107, lambda k: r4a if k < 40 else (0 if k < o.get("quiet4", 47) else (r4b if k < chk1 else (r4c if k < 80 else (o.get("r5a", r5) if k < 80 + o.get("k5", 0) else r5)))))
        assert not any(isinstance(x, tuple) and x[2] in [('a5', b) for b in range(chk1 - 40 >> 1, 27)] for k in range(80) for x in sched[k])
        if o.get("verbose"): print("addr", addr, "xch", xch, "valid", valid, {k: [x[2] for x in L if isinstance(x, tuple)] for k, L in sched.items()})
        A(f"s_add_u32 s{SH1}, s{SL}, s{S_H}\ns_add_u32 s{SH1}, s{SH1}, {HH}\ns_mul_i32 s{SH2}, s{J}, 1536\ns_add_u32 s{SH2}, s{SH2}, s{SH1}\ns_add_u32 s{SH2}, s{SH2}, {63*512}")
        A(f"s_lshl_b32 s3, s{J}, 11\ns_add_u32 s{SH1}, s{SH1}, s3\ns_mov_b32 s{SH1B}, s{SH1}\ns_cmp_eq_u32 s{J}, 15\ns_cmov_b32 s{SH1B}, {OOB}\ns_cmov_b32 s{SH2}, {OOB}")
        sched[28] += [('wv', 'st')] + self.stats_finish(STD, MU, RS) + [f"v_mul_f32 v{RS}, v{RS}, v{RS}"] + self.split3(MU, AP, STD)
        def epi(t0, t1, tag):
            body = []
            for t in range(t0, t1):
                r = ACC + 16*t; pk = PK + 4*(t % 3)
                for hf in range(2):
                    g = r + 8*hf
                    for i in range(4): body += [f"v_max_f32 v{g+i}, 0, v{g+i}", f"v_mul_f32 v{g+4+i}, v{RS}, v{g+4+i}"]
                    body += [f"v_mul_f32 v{g+i}, v{g+i}, v{g+4+i}" for i in range(4)]
                    body += [f"v_cvt_pk_bf16_f32 v{pk+2*hf}, v{g}, v{g+1}", f"v_cvt_pk_bf16_f32 v{pk+2*hf+1}, v{g+2}, v{g+3}"]
                sb, im = (SH1 if t < 3 else SH1B, 512*t) if t < 4 else (SH2, 512*(t-4))
                body.append(('vm', f"buffer_store_dwordx4 {v(pk,4)}, v{VH}, {WS}, s{sb} offen offset:{im} {self.st}", tag))
            return body
        epi1 = epi(0, 4, 'h1')
        preload = ('vm', f"s_mov_b64 exec, {self.shm}\nbuffer_load_dword v253, v{VCNT}, {WS}, 0 offen sc1\ns_mov_b64 exec, -1", 'fl')
        sig1 = o.get("sig1", 57)
        def at_step(st_, fill):
            if st_ in used or st_ == sig1:
                for tag in valid.get(st_, []): self.need(tag, fill)
                if st_ == sig1:
                    assert not epi1
                    A.wait_vm('h1')
                A("s_barrier")
                if st_ == sig1: self.signal()
                if o.get("in4") and st_ > 40: self.stamp(f'g.{st_}')
            if st_ == 40: self.stamp('p4.g1')
            if st_ == chk1 - o.get("fl1", 4): fill.insert(0, preload)
            if st_ == chk1:
                self.need('fl', fill); self.flag_check(253, 0x400); self.stamp('p4.chk')
            self.es_hooks(st_, fill, up, gate, "main_rl4", 0x390, lambda: self.stats_load(ST3, STD, 99))
            fill += sched[st_]
            if st_ < 40: self.need(('a', st_), fill)
        self.run32(seq, WFS, sched, at_step, (epi1, 165, o.get("epirate", 4)), (('a', 0), 'p4.go'))
        self.stamp('p4.main')
        epi2 = epi(4, 7, 'h2')
        if not o.get("epi2rate", 0):
            while epi2: self.emit(epi2.pop(0))
        self.stamp('p4.epi')
        self.proj_setup(10240)
        for tag in valid.get(80, []): A.wait_vm(tag)
        A.wait_vm(('a5', 0)); A("s_barrier")
        self.stamp('p5.go')
        sig2 = o.get("sig2", 3)
        def hook(b, fill):
            if 80 + b in used and b or b == sig2:
                for tag in valid.get(80 + b, []): self.need(tag, fill)
                if b == sig2:
                    assert not epi2
                    A.wait_vm('h2')
                A("s_barrier")
                if b == sig2: self.signal()
            if b == chk2 - 2: fill.insert(0, preload)
            if o.get("in5") and b in (4, chk2, 15, 20): self.stamp(f'p5.b{b}')
            if b == chk2:
                self.need('fl', fill); self.flag_check(253, 0x480)
                if o.get("in5"): self.stamp('p5.chk')
        self.proj_loop(27, wl5, sched, hook, 80, nreg, side=(epi2, o.get("epi2rate", 0)))
        self.stamp('p5.main')
        self.proj_epilogue(5, xch)

    def proj_epilogue(self, which, xo):
        A = self.A; o = self.o; ACC, WF, B0 = 64, 112, 136; ntail = 0
        fill = []
        if which == 3:
            e0 = o.get("early4", 2) * 16; e1 = e0 + o.get("post4", 33)
            n3 = -(-(o.get("npre4", 6)*16 - e1) // 3)
            assert e1*1024 <= XCH3 and (e1 + 3*n3)*1024 <= LDS_MISC and (not self.es or n3 <= 0)
            self.post = (S_W4, e0*1024, e0*1024, e1 - e0)
            self.pre = lambda: self.colsums(lambda: self.rnd3(S_W4, e1*1024, e1*1024, n3), n3)
        else:
            self.pre1 = o.get("pre1", 6)
            assert xo + 20480 <= 20480 or xo >= 20480 + 36864
            assert not self.es or self.pre1 == 3
            self.post = (S_W1, 0, 20480, 36)
            self.pre = lambda: self.rnd3(S_W1, 36864, 20480 + 36864, 4*(self.pre1 - 3))
        if xo is not None:
            A(f"v_add_u32 v{B0}, {xo}, v{VXW}\nv_add_u32 v{B0+1}, {xo}, v{VXR}")
            for t in range(5): A.lds(f"ds_write_b128 v{B0}, {v(ACC+20+4*t,4)} offset:{1024*t}")
            A.wait_lg0(); A("s_barrier")
            for t in range(5): A.lds(f"ds_read_b128 {v(ACC+20+4*t,4)}, v{B0+1} offset:{1024*t}", ('x', t))
            self.early_signal()
        if which == 5:
            A(f"s_cmp_lg_u32 s{LAY}, 0\ns_cbranch_scc1 main_final")
            self.fin_state = (list(A.lg), ACC); self.fin_x = xo
        body = []
        for t in range(5):
            if xo is not None:
                body.append(('wl', ('x', t)))
                body += [f"v_pk_add_f32 {v(ACC+4*t+i,2)}, {v(ACC+4*t+i,2)}, {v(ACC+20+4*t+i,2)}" for i in (0, 2)]
            body += [f"v_cvt_pk_bf16_f32 v{RES+2*t}, v{ACC+4*t}, v{ACC+4*t+1}", f"v_cvt_pk_bf16_f32 v{RES+2*t+1}, v{ACC+4*t+2}, v{ACC+4*t+3}"]
        xoff = X1 if which == 3 else LS + XA
        soff = ST3 if which == 3 else LS + STA
        A(f"s_add_u32 s{T[4]}, s{SL}, s{S_X}\ns_add_u32 s{T[4]}, s{T[4]}, {xoff}\ns_add_u32 s{T[5]}, s{T[4]}, 4096\ns_add_u32 s{T[6]}, s{SL}, s{S_STX}\ns_add_u32 s{T[6]}, s{T[6]}, {soff}")
        body.append(('vm', f"buffer_store_dwordx4 {v(RES,4)}, v{VX}, {WS}, s{T[4]} offen {self.st}", 'out'))
        body.append(('vm', f"buffer_store_dwordx4 {v(RES+4,4)}, v{VX}, {WS}, s{T[4]} offen offset:2048 {self.st}", 'out'))
        t4 = WF
        body += [f"v_mov_b32 v{t4+k}, v{RES+8+(k&1)}" for k in range(6)]
        body += [f"v_permlane32_swap_b32 v{t4+4}, v{t4+2}", f"v_permlane32_swap_b32 v{t4+5}, v{t4+3}"]
        body.append(('vm', f"s_mov_b32 exec_hi, 0\nbuffer_store_dwordx4 {v(t4,4)}, v{VX}, {WS}, s{T[5]} offen {self.st}\ns_mov_b32 exec_hi, -1", 'out'))
        s0, s1 = WF + 8, WF + 9
        p0, p1 = WF + 12, WF + 14
        body += [f"v_pk_add_f32 {v(p0,2)}, {v(ACC,2)}, {v(ACC+2,2)}", f"v_pk_mul_f32 {v(p1,2)}, {v(ACC,2)}, {v(ACC,2)}", f"v_pk_fma_f32 {v(p1,2)}, {v(ACC+2,2)}, {v(ACC+2,2)}, {v(p1,2)}"]
        for i in range(4, 20, 2): body += [f"v_pk_add_f32 {v(p0,2)}, {v(p0,2)}, {v(ACC+i,2)}", f"v_pk_fma_f32 {v(p1,2)}, {v(ACC+i,2)}, {v(ACC+i,2)}, {v(p1,2)}"]
        body += [f"v_add_f32 v{s0}, v{p0}, v{p0+1}", f"v_add_f32 v{s1}, v{p1}, v{p1+1}"]
        for sw in ("v_permlane16_swap_b32", "v_permlane32_swap_b32"):
            body += [f"v_mov_b32 v{s0+2}, v{s0}", f"v_mov_b32 v{s0+3}, v{s1}", f"{sw} v{s0}, v{s0+2}", f"{sw} v{s1}, v{s0+3}", f"v_add_f32 v{s0}, v{s0}, v{s0+2}", f"v_add_f32 v{s1}, v{s1}, v{s0+3}"]
        self.mix(body, fill, 7)
        while fill: self.emit(fill.pop(0))
        A("s_mov_b64 exec, 0xffff")
        A.vmem(f"buffer_store_dwordx2 {v(s0,2)}, v{VSX}, {WS}, s{T[6]} offen {self.st}", 'out')
        A("s_mov_b64 exec, -1")

    def final(self):
        A = self.A; t = VFREE
        A.lab("main_final")
        A.lg, ACC = self.fin_state
        xo = self.fin_x
        A(f"s_xor_b32 s3, s{WV}, 1\ns_mul_i32 s3, s3, 5120\ns_add_u32 s3, s3, {xo}\nv_and_b32 v{t}, 15, v{VL}\nv_mul_u32_u24 v{t}, 176, v{t}\nv_lshrrev_b32 v{t+1}, 4, v{VL}\nv_lshl_add_u32 v{t}, v{t+1}, 3, v{t}\nv_add_u32 v{t}, s3, v{t}")
        for n in range(3):
            A(f"v_add_u32 v{t+1}, {64*n}, v{VL}\nv_mul_u32_u24 v{t+2}, 6554, v{t+1}\nv_lshrrev_b32 v{t+2}, 16, v{t+2}\nv_mul_u32_u24 v{t+3}, 10, v{t+2}\nv_sub_u32 v{t+3}, v{t+1}, v{t+3}\nv_lshlrev_b32 v{t+3}, 4, v{t+3}")
            A(f"v_mad_u32_u24 v{t+4+n}, v{t+2}, s3, v{t+3}".replace("s3", f"v{t+11}") if False else f"v_mul_u32_u24 v{t+4+n}, 176, v{t+2}\nv_add3_u32 v{t+4+n}, v{t+4+n}, v{t+3}, s3\nv_mul_u32_u24 v{t+8+n}, 1280, v{t+2}\nv_add_u32 v{t+8+n}, v{t+8+n}, v{t+3}")
        A(f"s_lshl_b32 s{T[4]}, s{S_A3}, 4\ns_mul_i32 s{T[4]}, s{T[4]}, 1280\ns_mul_i32 s{T[5]}, s{CT}, 160\ns_add_u32 s{T[4]}, s{T[4]}, s{T[5]}")
        A.wait_lg0()
        for k in range(5):
            for i in (0, 2): A(f"v_pk_add_f32 {v(ACC+4*k+i,2)}, {v(ACC+4*k+i,2)}, {v(ACC+20+4*k+i,2)}")
            A(f"v_cvt_pk_bf16_f32 v{RES+2*k}, v{ACC+4*k}, v{ACC+4*k+1}\nv_cvt_pk_bf16_f32 v{RES+2*k+1}, v{ACC+4*k+2}, v{ACC+4*k+3}")
            A(f"ds_write_b64 v{t}, {v(RES+2*k,2)} offset:{32*k}")
        A("s_waitcnt lgkmcnt(0)")
        for n in range(3): A(f"ds_read_b128 {v(112+4*n,4)}, v{t+4+n}")
        for n in range(3):
            A(f"s_waitcnt lgkmcnt({2-n})")
            if n == 2: A("s_mov_b32 exec_hi, 0")
            A(f"buffer_store_dwordx4 {v(112+4*n,4)}, v{t+8+n}, {OS}, s{T[4]} offen {self.o.get('stout', '')}")
        A("s_mov_b32 exec_hi, -1")

    def gen(self):
        A = self.A
        o_big = False
        def stop(name):
            if self.stop == name: A.wait_all(); A("s_branch main_done")
        self.setup()
        self.stamp('start')
        if self.o.get("entry"): A(f"v_writelane_b32 v{VPROF}, s94, 31")
        self.p1_first()
        A.lab("main_layer")
        self.kv_sync(); stop("p1")
        self.p2()
        if self.es:
            self.early_sync((S_W3, 61440, lds3(6), 40), 0x200, 1)
            self.p3()
            self.early_sync(self.post, 0x300, 2)
            self.ffn()
            self.early_sync(self.post, 0x500, 3)
        else:
            self.cluster_sync((S_W3, 61440, lds3(6), 40), None, 0x200, self.wreg_load if self.o.get('nreg5', 5) else None); stop("p2")
            self.p3()
            self.cluster_sync(self.post, self.pre, 0x300); stop("p3")
            self.ffn()
            self.cluster_sync(self.post, self.pre, 0x500); stop("p5")
        A(f"s_mov_b32 s{LAY}, 1\ns_add_u32 s{SL}, s{SL}, {LS}\ns_mov_b32 s{S_PB}, {64 if o_big else 32}")
        self.stamp('start')
        self.p1()
        A("s_branch main_layer")
        self.final()
        A.lab("main_done")
        if self.prof:
            A.wait_all()
            if self.stop: A(f"s_mov_b32 s{S_PB}, 32")
            self.stamp('end')
            A(f"s_cmp_lg_u32 s{WV}, 0\ns_cbranch_scc1 main_end\ns_lshl_b32 s3, s2, 8\ns_add_u32 s3, s3, {PROF}\nv_lshlrev_b32 v{VFREE}, 2, v{VL}")
            A(f"buffer_store_dword v{VPROF}, v{VFREE}, {WS}, s3 offen\ns_add_u32 s3, s3, 0x10000\nbuffer_store_dword v{VPROF+1}, v{VFREE}, {WS}, s3 offen")
        if self.o.get("diagpad"):
            A(f"v_readlane_b32 s3, v{VPROF}, 0")
            A.lab("main_pad")
            A(f"s_memrealtime s[96:97]\ns_waitcnt lgkmcnt(0)\ns_sub_u32 s96, s96, s3\ns_cmp_lt_u32 s96, {self.o['diagpad']}\ns_cbranch_scc1 main_pad")
        if self.o.get("dbgprof"):
            t = VFREE; src = VPROF + (self.o["dbgprof"] - 1)
            A(f"s_cmp_lg_u32 s2, {self.o.get('dbgwg', 100)}\ns_cbranch_scc1 main_end\nv_readlane_b32 s3, v{src}, 0\nv_subrev_u32 v{t}, s3, v{src}")
            A(f"v_lshrrev_b32 v{t+1}, 2, v{VL}\nv_and_b32 v{t+1}, 8, v{t+1}\nv_and_b32 v{t+2}, 7, v{VL}\nv_add_u32 v{t+1}, v{t+1}, v{t+2}\nv_lshlrev_b32 v{t+1}, 2, v{t+1}")
            A(f"s_mov_b32 exec_lo, 0xfe\ns_mov_b32 exec_hi, 0xff\nbuffer_store_dword v{t}, v{t+1}, {DS_}, 0 offen")
        A.lab("main_end")
        A("s_endpgm")
        for blk in self.rare: A(blk)
        A.lab("main_last")

def gen_main(A, opts):
    m = Main(A, opts); m.gen()
    assert len(m.names) <= 32, len(m.names)
    if m.names: A.L.insert(0, Ins(f"; stamps {opts.get('mx', 512)} " + " ".join(m.names)))
```

```python
from asmlib import *
from layout import *
from pack import srd, sel, OOB, frag32_steps
import math

WS = "s[4:7]"; XS = "s[8:11]"; OS = "s[12:15]"; DS_ = "s[16:19]"
MB, J, WV, LAY, RH, CT, RR, KH = 20, 21, 22, 23, 24, 25, 26, 27
SL = 40
TGT = 41
S_A1 = 42
S_ST1 = 43
S_KVO = 44
S_A3 = 45
S_A3B = 46
S_X = 47
S_STX = 48
S_W1, S_W3, S_W4, S_W5 = 49, 50, 51, 52
S_H = 53
S_PB = 54
S_WI = 55
S_W4B = 38
S_U = 98
GUS = "s[56:59]"; WDS = "s[60:63]"
MASK = 64
T = [28, 29, 30, 31, 32, 33, 34, 35, 36, 37]

VL, VL16, VST, RES = 1, 2, 3, 4
VO1, VKT, VO3, VX, VSX, VH, VCNT, VKF, VK, VKS, VV, VW2, VW12, VW1, VXW, VXR, VB1, VB2 = range(14, 32)
PM = 32
VPROF = 40
VTG, VDUM = 42, 43
VFREE = 44

LDS_MISC = 147456
CSF1 = LDS_MISC; CSF4 = LDS_MISC + 4096
KREG = 36864; VREG = KREG + 12 * 2560
XCH3 = 86016; XCH5 = 0
STG4 = 16384; STG5 = STG4 + 20480; STG3 = LDS_MISC + 8192
QSCALE = math.log2(math.e) / math.sqrt(20.0)

def lds1(st): return ((st + 5) % 36) * 4096 if st < 36 else (st - 31) * 4096
def lds3(bl): return bl * 10240 if bl < 3 else (107520 + (bl - 3) * 10240 if bl < 6 else KREG + (bl - 6) * 10240)
def fhex(x):
    import struct
    return hex(struct.unpack("<I", struct.pack("<f", x))[0])

def qmap_step(x):
    import re
    m = re.match(r"ds_read_b64 a\[(\d+):", x[1])
    return int(m.group(1)) // 4 if m else 999

class Main:
    def __init__(self, A, opts):
        self.A = A; self.o = opts
        self.prof = opts.get("prof", 0); self.names = []; self.rare = []; self.pending = set()
        self.stop = opts.get("stop", None)
        self.fused = opts.get("fused", 1)
        self.kname = opts.get("kname", "main_kernel")
        self.ld = "sc1"; self.st = "sc1"; self.stkv = "sc1"
        self.ldw = opts.get("ldw", "sc1")
        self.es = opts.get("es", 0)
        self.nsh = opts.get("nsh", 1); self.shm = (1 << self.nsh) - 1
        self.ntu, self.ntx, self.nts = opts.get("ntu", ""), opts.get("ntx", ""), opts.get("nts", "nt")

    def stamp(self, name):
        if self.o.get("only") and name not in self.o["only"]: return
        if name.startswith("z.") and not self.o.get("only"): return
        if not self.prof or name.endswith(tuple(self.o.get("nostamp", ()))) and self.o.get("nostamp"): return
        A = self.A
        if name not in self.names: self.names.append(name)
        idx = self.names.index(name)
        A(f"s_memrealtime s[96:97]\ns_waitcnt lgkmcnt(0)\ns_mov_b32 s39, m0\ns_add_u32 m0, s{S_PB}, {idx}\nv_writelane_b32 v{VPROF}, s96, m0\ns_memtime s[96:97]\ns_waitcnt lgkmcnt(0)\nv_writelane_b32 v{VPROF+1}, s96, m0\ns_mov_b32 m0, s39")
        A.lg = []

    def ldsaddr(self, off, bases):
        b = off >> 16
        return f"v{bases[b]} offset:{off & 0xffff}"

    def emit(self, x):
        if isinstance(x, tuple):
            if x[0] == 'vm': self.A.vmem(x[1], x[2])
            elif x[0] == 'lg': self.A.lds(x[1], x[2])
            else:
                assert x[1] in self.A.seen and x[1] not in self.pending, x
                (self.A.wait_vm if x[0] == 'wv' else self.A.wait_lg)(x[1])
        else: self.A(x)

    def drain(self, fill, n):
        vm = 0
        while fill and n > 0:
            isvm = isinstance(fill[0], tuple) and fill[0][0] == 'vm'
            if isvm and vm: break
            vm += isvm
            self.pending = {y[2] for y in fill if isinstance(y, tuple) and len(y) == 3}
            self.emit(fill.pop(0)); n -= 1
            self.pending = set()

    def need(self, tag, fill):
        while any(isinstance(x, tuple) and x[0] == 'vm' and x[2] == tag for x in fill): self.emit(fill.pop(0))
        assert tag in self.A.seen, tag
        self.A.wait_vm(tag)

    def rnd(self, sbase, goff, loff, kb, tag):
        L = [f"s_mul_i32 s{T[8]}, s{WV}, {kb*1024}", f"s_add_u32 s{T[9]}, s{T[8]}, s{sbase}", f"s_add_u32 s{T[9]}, s{T[9]}, {goff}", f"s_add_u32 m0, s{T[8]}, {loff}"]
        for i in range(kb):
            if i and i % 4 == 0: L += [f"s_add_u32 s{T[9]}, s{T[9]}, 4096", "s_add_u32 m0, m0, 4096"]
            L.append(('vm', f"buffer_load_dwordx4 v{VL16}, {WS}, s{T[9]} offen offset:{1024*(i&3)} {self.ldw} lds", tag))
        return L

    def rnd3(self, sbase, goff, loff, kb):
        A = self.A
        A(f"s_mul_i32 s{T[8]}, s{S_WI}, {kb*1024}\ns_add_u32 s{T[9]}, s{T[8]}, s{sbase}\ns_add_u32 s{T[9]}, s{T[9]}, {goff}\ns_add_u32 m0, s{T[8]}, {loff}")
        for i in range(kb):
            if i and i % 4 == 0: A(f"s_add_u32 s{T[9]}, s{T[9]}, 4096\ns_add_u32 m0, m0, 4096")
            A(f"buffer_load_dwordx4 v{VL16}, {WS}, s{T[9]} offen offset:{1024*(i&3)} {self.ldw} lds")

    def edf(self, jobs, nsteps, rate, credit=0.0):
        units = []
        for rel, dl, L, *hard in jobs:
            cur = []
            for x in L:
                cur.append(x)
                if isinstance(x, tuple) and x[0] == 'vm': units.append([rel, dl, cur, id(L), hard[0] if hard else dl]); cur = []
            if cur: units[-1][2] += cur
        sched = {k: [] for k in range(nsteps)}
        busy = None
        for st_ in range(nsteps):
            credit += rate(st_) if callable(rate) else rate
            while credit >= 1 and units:
                cand = [u for u in units if u[0] <= st_]
                if busy is not None: cand = [u for u in cand if u[3] == busy or 'lds' not in u[2][-1 if isinstance(u[2][-1], tuple) else -2][1]]
                if not cand: credit = min(credit, 1.0); break
                u = min(cand, key=lambda u: u[1])
                assert st_ <= u[4], f"load {u[2][-1]} issued at {st_}, after its deadline {u[4]}"
                units.remove(u); sched[st_] += u[2]; credit -= 1
                isdma = any(isinstance(x, tuple) and x[1].endswith('lds') for x in u[2])
                if isdma: busy = u[3] if any(w[3] == u[3] for w in units) else None
        assert not units, f"{len(units)} loads left"
        return sched

    def drain_post(self, post, extra=0):
        A = self.A
        if not post:
            A.wait_all(); return
        N = A.newlab("p0"); E = A.newlab("pe")
        kb = -(-post[3] // 3)
        A(f"s_cmp_eq_u32 s{WV}, 0\ns_cbranch_scc1 {N}")
        self.rnd3(post[0], post[1], post[2], kb)
        A(f"s_waitcnt vmcnt({kb + extra}) lgkmcnt(0)\ns_branch {E}")
        A.lab(N); A(f"s_waitcnt vmcnt({extra}) lgkmcnt(0)"); A.lab(E)
        A.vm = []; A.lg = []

    def plan(self, chunks, bars, dead_at=()):
        jobs = []; valid = {}; used = set()
        for k, (sb, go, kb, ad, vs, last, pre) in enumerate(chunks):
            if pre: continue
            busy = [c[5] for c in chunks[:k] if c[3] < ad + kb*4096 and ad < c[3] + c[2]*4096]
            busy += [t for lo, hi, t in dead_at if lo < ad + kb*4096 and ad < hi]
            rel = min(b for b in bars if b > max(busy)) if busy else 0
            if busy: used.add(rel)
            dl = 900 + k
            if vs is not None:
                dl = max(b for b in bars if b <= vs); assert dl > rel, (k, rel, dl)
                valid.setdefault(dl, []).append(('w', k)); used.add(dl)
            jobs.append((rel, dl - 0.5, self.rnd(sb, go, ad, kb, ('w', k))))
        return jobs, valid, used

    def go(self, tag, name):
        self.A.wait_vm(tag)
        if not self.o.get("onebar", 0): self.A("s_barrier")
        self.stamp(name)

    def run32(self, seq, WFS, sched, at_step, side=None, go=None):
        A = self.A; R = len(WFS)
        rd = lambda n: A.lds(f"ds_read_b128 {v(WFS[n % R],4)}, {self.ldsaddr(seq[n][2], seq[n][5] if len(seq[n]) > 5 else [VL16, VB1, VB2])}", ('f', n))
        if go and not self.o.get("onebar", 0): self.go(*go); go = None
        for n in range(R): rd(n)
        if go: self.go(*go)
        fill = []; prev = None
        for n, (st_, acc, ad, B, zero, *_) in enumerate(seq):
            if st_ != prev:
                at_step(st_, fill); prev = st_
            if n % 2 == 0: A.wait_lg(('f', min(n + 1, len(seq) - 1)))
            pair = isinstance(acc, tuple); used = 0
            if pair:
                A(f"v_mfma_f32_16x16x32_bf16 {v(acc[0],4)}, {v(WFS[n % R],4)}, {B[0]}, {'0' if zero else v(acc[0],4)}")
                k = len(fill); self.drain(fill, 2); used = k - len(fill)
                if side and n >= side[1] and side[0] and used < 2:
                    k = len(side[0]); self.drain(side[0], min(2 - used, side[2])); used += k - len(side[0])
                A(f"v_mfma_f32_16x16x32_bf16 {v(acc[1],4)}, {v(WFS[n % R],4)}, {B[1]}, {'0' if zero else v(acc[1],4)}")
            else:
                A(f"v_mfma_f32_32x32x16_bf16 {v(acc,16)}, {v(WFS[n % R],4)}, {B}, {'0' if zero else v(acc,16)}")
            if n + R < len(seq): rd(n + R)
            if side and n >= side[1] and side[0]:
                k = len(fill)
                if not pair: self.drain(fill, 2)
                self.drain(side[0], side[2] - (k - len(fill)) - used)
            else: self.drain(fill, 1 if pair else 4)
        while fill: self.emit(fill.pop(0))

    def es_hooks(self, st_, fill, up, gate, name, code, stats):
        if not self.es: return
        A = self.A
        if st_ == 0:
            A.wait_vm(('a', 1))
            for x in self.verify([0, 4], name): A(x)
        if st_ == max(gate - 4, 0): fill.insert(0, ('vm', f"s_mov_b64 exec, 1\nbuffer_load_dword v253, v{VCNT}, {WS}, 0 offen sc1\ns_mov_b64 exec, -1", 'fl'))
        if st_ == gate:
            self.need('fl', fill); self.flag_check(253, code); stats()
        if st_ % 2 == 0: assert up % 2 == 0 and not any(isinstance(x, str) and "vccnz" in x for x in fill)
        if st_ % 2 == 0 and st_ + 2 < up: fill[:0] = [('wv', ('a', st_ + 3))] + self.verify([4*st_ + 8, 4*st_ + 12], name)

    def split3(self, src, dst, t):
        return [f"v_and_b32 v{t}, 0xffff0000, v{src}", f"v_sub_f32 v{t+1}, v{src}, v{t}", f"v_and_b32 v{dst}, 0xffff0000, v{t+1}", f"v_sub_f32 v{t+1}, v{t+1}, v{dst}",
                f"v_lshrrev_b32 v{t}, 16, v{t}", f"v_and_b32 v{dst+1}, 0xffff0000, v{t+1}", f"v_or_b32 v{dst}, v{dst}, v{t}", f"v_or_b32 v{dst+1}, v{dst+1}, v{t}",
                f"v_mov_b32 v{dst+2}, v{dst}", f"v_mov_b32 v{dst+3}, 0"]

    def csfrag(self, c, w, z, ad):
        return [f"v_and_b32 v{w+1}, 0xffff0000, v{c}", f"v_sub_f32 v{c}, v{c}, v{w+1}", f"v_and_b32 v{w+2}, 0xffff0000, v{c}", f"v_sub_f32 v{c}, v{c}, v{w+2}",
                f"v_lshrrev_b32 v{w}, 16, v{w+1}", f"v_or_b32 v{w}, v{w}, v{w+1}", f"v_lshrrev_b32 v{w+3}, 16, v{w+2}", f"v_or_b32 v{w+1}, v{w+1}, v{w+3}",
                f"v_lshrrev_b32 v{c}, 16, v{c}", f"v_or_b32 v{w+2}, v{w+2}, v{c}", f"v_mov_b32 v{w+3}, 0"] + [f"v_mov_b32 v{z+k}, 0" for k in range(4)] + \
               [('lg', f"ds_write_b128 v{ad}, {v(w,4)}", 'csw'), ('lg', f"ds_write_b128 v{ad}, {v(z,4)} offset:512", 'csw')]

    def csaddr(self, e, dst, t, base):
        return (f"v_lshrrev_b32 v{dst}, 5, v{e}\nv_lshlrev_b32 v{dst}, 10, v{dst}\nv_bfe_u32 v{t}, v{e}, 2, 2\nv_lshl_add_u32 v{dst}, v{t}, 7, v{dst}\nv_bfe_u32 v{t}, v{e}, 4, 1\n"
                f"v_lshl_add_u32 v{dst}, v{t}, 6, v{dst}\nv_and_b32 v{t}, 3, v{e}\nv_lshl_add_u32 v{dst}, v{t}, 4, v{dst}\nv_add_u32 v{dst}, {base}, v{dst}")

    def capture(self, fn):
        keep = self.A; self.A = Asm(); fn(); L = [i.text for i in self.A.L]; self.A = keep
        return L

    def weave_loads(self, body, loads, every, extra=None):
        def safe(i):
            ex = [x for x in body[i:] if "exec" in x]
            if ex and ex[0].endswith("-1"): return False
            for x in body[i:]:
                if x.startswith("s_cmp"): return True
                if x.startswith(("s_cmov", "s_cselect", "s_cbranch")): return False
            return True
        since = every
        for i, x in enumerate(body):
            if since >= every and loads and safe(i): self.drain(loads, 6); since = 0
            self.A(x); since += 1
            if extra and i % 7 == 6: extra()
        while loads: self.emit(loads.pop(0))

    def mix(self, body, fill, every):
        for k, x in enumerate(body):
            self.emit(x)
            if (k + 1) % every == 0: self.drain(fill, 5)

    def spin(self, addr, tgt, code, srd_=WS):
        A = self.A; L = A.newlab("poll"); D = A.newlab("pdone"); t = 254
        ld = lambda r: f"buffer_load_dword v{r}, v{addr}, {srd_}, 0 offen sc1"
        if self.o.get("poll1", 0):
            A(f"s_mov_b32 s{T[2]}, 20000")
            if self.o.get("pfirst", 0): A(f"s_sleep {self.o['pfirst']}")
            A.lab(L)
            A(ld(t) + f"\ns_waitcnt vmcnt(0)\nv_cmp_gt_u32 vcc, {tgt}, v{t}\ns_cbranch_vccz {D}\ns_sleep {self.o.get('psleep', 5)}")
        else:
            pf = self.o.get(f"pfirst{code >> 8}", self.o.get("pfirst", 0)); ps = self.o.get(f"psleep{code >> 8}", self.o.get("psleep", 5))
            if pf: A(f"s_sleep {pf}")
            A(f"s_mov_b32 s{T[2]}, 20000\n" + ld(t))
            A.lab(L)
            for r in (t + 1, t):
                A(f"s_sleep {ps}\n" + ld(r) + f"\ns_waitcnt vmcnt(1)\nv_cmp_gt_u32 vcc, {tgt}, v{2*t + 1 - r}\ns_cbranch_vccz {D}")
        A(f"s_sub_u32 s{T[2]}, s{T[2]}, 1\ns_cmp_lg_u32 s{T[2]}, 0\ns_cbranch_scc1 {L}")
        A(f"s_waitcnt vmcnt(0)\nv_mov_b32 v{t}, {code}\nv_mov_b32 v{t+1}, 128\nbuffer_store_dword v{t}, v{t+1}, {DS_}, 0 offen")
        A.lab(D)

    def shoff(self):
        mode = self.o.get("shmode", 0)
        if mode == 0: return f"s_and_b32 s3, s{J}, {self.nsh - 1}\ns_lshl_b32 s3, s3, 7\n"
        return f"s_lshr_b32 s3, s{J}, {5 - self.nsh.bit_length()}\ns_lshl_b32 s3, s3, 7\n"

    def code_touch(self):
        if not self.o.get("codepf2", 1): return
        A = self.A; L = A.newlab("ct"); P = A.newlab("pc")
        A(f"s_lshl_b32 s3, s{LAY}, 2\ns_add_u32 s3, s3, s{WV}\ns_cmp_lg_u32 s3, 3\ns_cbranch_scc1 {L}")
        A(f"s_getpc_b64 s[28:29]\n{P}:\ns_sub_u32 s28, s28, {P} - {self.kname}\ns_subb_u32 s29, s29, 0\ns_mov_b32 s30, main_last - {self.kname}\ns_mov_b32 s31, 0x20000")
        A(f"s_and_b32 s3, s{J}, 7\ns_lshl_b32 s3, s3, 13\nv_lshlrev_b32 v252, 3, v{VL16}\nbuffer_load_dword v{VDUM}, v252, s[28:31], s3 offen")
        A.lab(L)

    def own_touch(self, code):
        if not (self.o.get("own", 0) >> (code >> 8)) & 1: return
        A = self.A
        if code == 0x200:
            A(f"buffer_load_dword v{VDUM}, v{VO1}, {WS}, s{SL} offen sc1\nbuffer_load_dword v{VDUM}, v{VO1}, {WS}, s{SL} offen offset:768 sc1\ns_mov_b32 exec_lo, 0\nbuffer_load_dword v{VDUM}, v{VO3}, {WS}, s{SL} offen offset:512 sc1\ns_mov_b32 exec_lo, -1")
        else:
            A(f"buffer_load_dword v{VDUM}, v{VX}, {WS}, s{T[4]} offen sc1\nbuffer_load_dword v{VDUM}, v{VX}, {WS}, s{T[4]} offen offset:2048 sc1\ns_mov_b32 exec_hi, 0\nbuffer_load_dword v{VDUM}, v{VX}, {WS}, s{T[5]} offen sc1\ns_mov_b32 exec_hi, -1")

    def cluster_sync(self, post, pre, code, both=None):
        A = self.A; N = A.newlab("nw0"); E = A.newlab("syn")
        self.stamp(f'p{code>>8}.epi')
        self.drain_post(post); A("s_barrier")
        self.stamp(f'p{code>>8}.drain')
        rank = self.o.get("rank", 0); RD = A.newlab("rk")
        A(f"s_add_u32 s{TGT}, s{TGT}, {16 // self.nsh}\ns_cmp_lg_u32 s{WV}, 0\ns_cbranch_scc1 {N}")
        A(f"s_mov_b64 exec, 1\nv_mov_b32 v252, 1\n{self.shoff()}buffer_atomic_add v252, v{VCNT}, {WS}, s3 offen {'sc0 ' if rank else ''}sc1\ns_mov_b64 exec, {self.shm}")
        if both or self.o.get("own", 0):
            A("s_mov_b64 exec, -1"); self.own_touch(code)
            if both: both()
            A(f"s_mov_b64 exec, {self.shm}")
        if rank:
            A(f"s_waitcnt vmcnt(0)\nv_readfirstlane_b32 s3, v252\ns_sub_u32 s3, s{TGT}, s3\ns_cmp_le_u32 s3, 1\ns_cbranch_scc1 {RD}\ns_cmp_le_u32 s3, {self.o.get('rankn', 6)}\ns_cbranch_scc1 {RD}a\ns_sleep {rank}")
            A.lab(RD + "a")
        self.spin(VCNT, f's{TGT}', code)
        if rank: A.lab(RD)
        A(f"s_mov_b64 exec, -1")
        self.stamp(f'p{code>>8}.poll')
        A(f"s_branch {E}")
        A.lab(N)
        self.own_touch(code)
        self.code_touch()
        if code == 0x300 and self.o.get("tlbout", 0):
            A(f"s_lshl_b32 s3, s{S_A3}, 4\ns_mul_i32 s3, s3, 1280\ns_mov_b64 exec, 1\nbuffer_load_dword v{VDUM}, v{VL16}, {OS}, s3 offen\ns_mov_b64 exec, -1")
        if pre: pre()
        if both: both()
        if self.o.get("onebar", 0): A("s_waitcnt vmcnt(0)")
        A.lab(E)
        A("s_barrier")
        self.stamp(f'p{code>>8}.bar')

    def early_signal(self, first=False):
        if not self.es or self.o.get("estest") and not first: return
        A = self.A; L = A.newlab("es")
        A(f"s_cmp_lg_u32 s{WV}, 0\ns_cbranch_scc1 {L}\ns_mov_b64 exec, 1\nv_mov_b32 v252, 1\nbuffer_atomic_add v252, v{VCNT}, {WS}, 0 offen offset:128 sc1\ns_mov_b64 exec, -1")
        A.lab(L)

    def early_sync(self, post, code, k):
        A = self.A; N = A.newlab("nw0"); E = A.newlab("syn")
        self.stamp(f'p{code>>8}.epi')
        kb = -(-post[3] // 3)
        A(f"s_cmp_lg_u32 s{WV}, 0\ns_cbranch_scc1 {N}\ns_mul_i32 s{T[3]}, s{LAY}, 48\ns_add_u32 s{T[3]}, s{T[3]}, {16*k}\ns_mov_b64 exec, 1\nv_add_u32 v252, 128, v{VCNT}")
        self.spin(252, f's{T[3]}', code)
        A(f"s_mov_b64 exec, -1\ns_waitcnt lgkmcnt(0)\ns_branch {E}")
        A.lab(N)
        self.rnd3(post[0], post[1], post[2], kb)
        A(f"s_waitcnt vmcnt({kb}) lgkmcnt(0)")
        self.code_touch()
        A.lab(E)
        A.vm = []; A.lg = []
        A("s_barrier")
        self.stamp(f'p{code>>8}.poll')
        self.signal()
        if self.o.get("estest"): self.o["estest"] = 0; self.early_signal(); self.o["estest"] = 1

    def mark(self, stores):
        if not self.es: return
        A = self.A
        for k in range(4): A(f"v_mov_b32 v{248+k}, -1")
        for pre, ad, so, im, post in stores: A(f"{pre}buffer_store_dwordx4 v[248:251], v{ad}, {WS}, s{so} offen offset:{im} sc1{post}")

    def mark_x(self, off):
        if not self.es: return
        self.A(f"s_add_u32 s99, s{SL}, s{S_X}\ns_add_u32 s99, s99, {off}\ns_add_u32 s3, s99, 4096")
        self.mark([("", VX, 99, 0, ""), ("", VX, 99, 2048, ""), ("s_mov_b32 exec_hi, 0\n", VX, 3, 0, "\ns_mov_b32 exec_hi, -1")])

    def verify(self, regs, name):
        L = self.A.newlab("vf")
        out = [f"v_accvgpr_read_b32 v{250+k}, a{r}" for k, r in enumerate(regs)]
        if len(regs) == 2: out.append("v_max_u32 v250, v250, v251")
        out.append(f"v_cmp_eq_u32 vcc, -1, v250\ns_cbranch_vccnz {L}\n{L}b:")
        self.rare.append(f"{L}:\ns_call_b64 s[100:101], {name}\ns_branch {L}b")
        return out

    def reload(self, name, code, loads):
        keep = self.A; self.A = B = Asm(); B.uid = 20000 + code
        B.lab(name)
        B("s_mov_b64 exec, 1"); self.spin(VCNT, f"s{TGT}", code); B("s_mov_b64 exec, -1")
        for x in loads: B(x)
        B("s_waitcnt vmcnt(0)\ns_setpc_b64 s[100:101]")
        self.A = keep; self.rare.append(B.render())

    def setup(self):
        A = self.A
        A.lab(self.kname)
        if self.o.get("entry"): A("s_memrealtime s[94:95]")
        A("s_cmp_ge_u32 s2, 256\ns_cbranch_scc1 main_end")
        A("s_load_dwordx2 s[28:29], s[0:1], 0\ns_load_dwordx4 s[32:35], s[0:1], 56\ns_load_dwordx2 s[30:31], s[0:1], 72")
        if self.fused: A("s_load_dwordx4 s[80:83], s[0:1], 8\ns_load_dwordx4 s[84:87], s[0:1], 32\ns_load_dwordx2 s[88:89], s[0:1], 48")
        A(f"v_and_b32 v{VL}, 63, v0\nv_lshrrev_b32 v2, 6, v0\ns_nop 0\nv_readfirstlane_b32 s{WV}, v2\nv_lshlrev_b32 v{VL16}, 4, v{VL}")
        mx = self.o.get("mx", 512)
        if mx == 256:
            A(f"s_and_b32 s{MB}, s2, 7\ns_lshl_b32 s{MB}, s{MB}, 1\ns_lshr_b32 s3, s2, 7\ns_add_u32 s{MB}, s{MB}, s3\ns_bfe_u32 s{J}, s2, 0x40003")
        elif mx == 512:
            A(f"s_bfe_u32 s{MB}, s2, 0x20001\ns_lshl_b32 s{MB}, s{MB}, 2\ns_lshr_b32 s3, s2, 6\ns_add_u32 s{MB}, s{MB}, s3")
            A(f"s_and_b32 s{J}, s2, 1\ns_lshl_b32 s{J}, s{J}, 3\ns_bfe_u32 s3, s2, 0x30003\ns_add_u32 s{J}, s{J}, s3")
        elif mx == 1024:
            A(f"s_bfe_u32 s{MB}, s2, 0x10002\ns_lshl_b32 s{MB}, s{MB}, 3\ns_lshr_b32 s3, s2, 5\ns_add_u32 s{MB}, s{MB}, s3")
            A(f"s_and_b32 s{J}, s2, 3\ns_lshl_b32 s{J}, s{J}, 2\ns_bfe_u32 s3, s2, 0x20003\ns_add_u32 s{J}, s{J}, s3")
        A((f"s_lshr_b32 s{RH}, s{J}, 3\ns_and_b32 s{CT}, s{J}, 7" if self.o.get("rhhi", 0) else f"s_and_b32 s{RH}, s{J}, 1\ns_lshr_b32 s{CT}, s{J}, 1"))
        A(f"s_lshr_b32 s{RR}, s{WV}, 1\ns_and_b32 s{KH}, s{WV}, 1\ns_sub_u32 s{S_WI}, s{WV}, 1")
        A(f"s_mov_b32 s{LAY}, 0\ns_mov_b32 s{SL}, {LB}\ns_mov_b32 s{TGT}, 0\ns_mov_b32 s{S_PB}, 0")
        A(f"s_lshl_b32 s3, s{MB}, 2\ns_add_u32 s3, s3, s{WV}\ns_mul_i32 s{S_A1}, s3, 40960\ns_lshl_b32 s{S_ST1}, s3, 11")
        A(f"s_mul_i32 s{S_H}, s3, {2*54*1024}\ns_nop 0")
        A(f"s_mul_i32 s{S_W1}, s{J}, {WP1_J}\ns_add_u32 s{S_W1}, s{S_W1}, {WP1}\ns_mul_i32 s{S_W4}, s{J}, {WP4_J}\ns_add_u32 s{S_W4}, s{S_W4}, {WP4}")
        A(f"s_mul_i32 s{S_W3}, s{CT}, {WP3_C}\ns_add_u32 s{S_W3}, s{S_W3}, {WP3}\ns_mul_i32 s{S_W5}, s{CT}, {WP5_C}\ns_add_u32 s{S_W5}, s{S_W5}, {WP5}")
        A(f"s_mov_b32 s{S_W4B}, s{S_W4}\ns_cmp_eq_u32 s{J}, {15 if self.o.get('oob15', 1) else 99}\ns_cmov_b32 s{S_W4B}, {OOB}")
        A("s_waitcnt lgkmcnt(0)")
        srd(A, 4, 30, WS_USED); srd(A, 8, 28, 2048*640*2); srd(A, 16, 34, 256)

    def p1_first(self):
        A = self.A; o = self.o; st = "sc1"
        QS = "s[68:71]"; WOS = "s[64:67]"
        ACC, GR, ONE, MU, RS, AP = 64, 176, 56, 168, 169, 172
        VXS, VAX, TMP, VU1, VU3, VZ = 129, 133, 138, 134, 135, 136
        r, c, G = 44, 45, 46
        AB = 49152; NB = 3
        srd(A, 68, 80, 640*1920*2); srd(A, 64, 82, 640*640*2); srd(A, 60, 88, 1728*640*2); srd(A, 12, 32, 2048*640*2)
        A(f"s_cmp_lt_u32 s{WV}, 2\ns_cselect_b32 s56, s84, s86\ns_cselect_b32 s57, s85, s87\ns_mov_b32 s58, {640*1728*2}\ns_mov_b32 s59, 0x20000")
        A(f"s_lshl_b32 s{S_U}, s{MB}, 4\ns_add_u32 s{S_U}, s{S_U}, s{J}")
        NZ = A.newlab("nz"); NZ2 = A.newlab("nz")
        A(f"s_cmp_lg_u32 s2, 0\ns_cbranch_scc1 {NZ}\ns_cmp_lg_u32 s{WV}, 3\ns_cbranch_scc1 {NZ}")
        A(f"v_lshlrev_b32 v56, 7, v{VL}\nv_mov_b32 v57, 0\nbuffer_store_dword v57, v56, {WS}, 0 offen sc1\ns_mov_b32 s3, {PK4}\ns_mov_b32 exec_hi, 0\nbuffer_store_dword v57, v56, {WS}, s3 offen sc1\ns_mov_b32 exec_hi, -1")
        A.lab(NZ)
        A(f"v_and_b32 v51, 7, v{VL}\nv_lshrrev_b32 v52, 3, v{VL}\ns_and_b32 s34, s{MB}, 1\ns_lshr_b32 s35, s{MB}, 1")
        A("s_cmp_eq_u32 s34, 0\ns_cselect_b32 s31, 5, 2"); sel(A, 32, 1280, 2608); sel(A, 33, 2480, -48); sel(A, 36, -1, 0xfbfbfbfb)
        A("v_mov_b32 v53, s32\nv_mov_b32 v54, s33\nv_cmp_gt_u32 vcc, s31, v51\nv_cndmask_b32 v53, v54, v53, vcc\nv_lshl_add_u32 v53, v51, 4, v53\nv_mul_u32_u24 v54, 3840, v52\nv_add_u32 v53, v53, v54")
        A(f"s_mul_i32 s31, s35, 80*3840\ns_mul_i32 s32, s{J}, 80\ns_add_u32 s31, s31, s32\ns_mov_b32 exec_lo, s36\ns_mov_b32 exec_hi, s36")
        for n in range(3):
            A(f"s_add_u32 s32, s{WV}, {4*n}\ns_min_u32 s32, s32, 9\ns_lshl_b32 m0, s32, 10\ns_mul_i32 s32, s32, 8*3840\ns_add_u32 s32, s32, s31")
            A.vmem(f"buffer_load_dwordx4 v53, {QS}, s32 offen {self.ntu} lds", 'u')
        A("s_mov_b64 exec, -1")
        A(f"s_lshr_b32 s99, s{S_U}, 3\ns_and_b32 s100, s{S_U}, 7\ns_mul_i32 s30, s99, 32*1280\ns_mul_i32 s31, s100, 160\ns_add_u32 s30, s30, s31\ns_cmp_ge_u32 s{S_U}, 160\ns_cmov_b32 s30, {OOB}")
        for n in range(2):
            A(f"s_add_u32 s31, s{WV}, {4*n}\ns_min_u32 s31, s31, 4\ns_lshl_b32 s3, s31, 6\nv_add_u32 v54, s3, v{VL}\nv_mul_u32_u24 v55, 6554, v54\nv_lshrrev_b32 v55, 16, v55\nv_mul_u32_u24 v56, 10, v55\nv_sub_u32 v56, v54, v56")
            A(f"v_mul_u32_u24 v55, 1280, v55\nv_lshl_add_u32 v55, v56, 4, v55\ns_lshl_b32 s31, s31, 10\ns_add_u32 m0, s31, {STG3}")
            A.vmem(f"buffer_load_dwordx4 v55, {WOS}, s30 offen {self.ntu} lds", 'u')
        A(f"v_lshrrev_b32 v{G}, 4, v{VL}\nv_and_b32 v48, 15, v{VL}")
        for n in range(4):
            A(f"v_add_u32 v49, {4*n}, v{G}\nv_xor_b32 v50, v48, v49\nv_mul_u32_u24 v49, 1280, v49\nv_lshl_add_u32 v{VXS+n}, v50, 4, v49")
        SX, SXL = T[0], T[1]
        A(f"s_lshl_b32 s3, s{MB}, 2\ns_add_u32 s3, s3, s{WV}\ns_mul_i32 s{SX}, s3, 32*1280\ns_mul_i32 s{SXL}, s{WV}, {NB*8192}\ns_add_u32 s{SXL}, s{SXL}, {AB}")
        def xlist(ch):
            L = []
            for n in range(8):
                if n % 4 == 0: L.append(f"s_add_u32 s{T[9]}, s{SX}, {ch*256 + (n >> 2)*16*1280}")
                L += [f"s_add_u32 m0, s{SXL}, {(ch % NB)*8192 + n*1024}", ('vm', f"buffer_load_dwordx4 v{VXS + (n & 3)}, {XS}, s{T[9]} offen {self.ntx} lds", ('x', ch))]
            return L
        def xjob(ch):
            for x in xlist(ch): self.emit(x)
        def publish():
            A(f"s_cmp_lg_u32 s2, 0\ns_cbranch_scc1 {NZ2}\ns_cmp_lg_u32 s{WV}, 3\ns_cbranch_scc1 {NZ2}")
            A(f"s_waitcnt vmcnt({len(A.vm)})\ns_mov_b64 exec, 1\nv_mov_b32 v60, 0\nv_mov_b32 v61, 1\nbuffer_store_dword v61, v60, {DS_}, 0 offen sc1\ns_mov_b64 exec, -1")
            A.lab(NZ2)
        pubat = o.get("pubat", 1)
        if pubat == 0: publish()
        if o.get("tlb", 0):
            A(f"v_lshlrev_b32 v54, 21, v{VL}\ns_lshl_b32 s3, s{S_U}, 7\ns_add_u32 s3, s3, 0x80000\ns_cmp_lg_u32 s{WV}, 2\ns_cmov_b32 s3, {OOB}\ns_mov_b32 exec_hi, 0")
            A.vmem(f"buffer_load_dword v{VDUM}, v54, {WS}, s3 offen\ns_mov_b32 exec_hi, -1", 't')
        if o.get("tlb2", 0):
            A(f"v_lshlrev_b32 v54, 21, v{VL}\ns_lshl_b32 s3, s{S_U}, 7\ns_mov_b64 exec, 3")
            A.vmem(f"buffer_load_dword v{VDUM}, v54, {GUS}, s3 offen", 't'); A.vmem(f"buffer_load_dword v{VDUM}, v54, {WDS}, s3 offen\ns_mov_b64 exec, -1", 't')
        if o.get("touchx", 0):
            A(f"s_lshl_b32 s30, s{MB}, 3\ns_and_b32 s31, s{J}, 7\ns_add_u32 s30, s30, s31\ns_lshl_b32 s3, s30, 2\ns_add_u32 s3, s3, s{WV}\ns_mul_i32 s3, s3, 5120\nv_lshlrev_b32 v54, 7, v{VL}\ns_mov_b32 exec_hi, 0xff")
            A.vmem(f"buffer_load_dword v{VDUM}, v54, {XS}, s3 offen {self.ntx}\ns_mov_b32 exec_hi, -1", 't')
        if o.get("codepf", 1):
            A(f"s_getpc_b64 s[64:65]\nmain_pc:\ns_sub_u32 s64, s64, main_pc - {self.kname}\ns_subb_u32 s65, s65, 0\ns_mov_b32 s66, main_last - {self.kname}\ns_mov_b32 s67, 0x20000")
            A(f"s_and_b32 s3, s{J}, 7\ns_lshl_b32 s3, s3, 13\ns_cmp_lg_u32 s{WV}, 3\ns_cmov_b32 s3, {OOB}\nv_lshlrev_b32 v54, 7, v{VL}")
            A.vmem(f"buffer_load_dword v{VDUM}, v54, s[64:67], s3 offen", 'c')
        for i in range(4): A(f"v_mov_b32 v{ONE+i}, 0x3f803f80")
        NP = A.newlab("np")
        A(f"s_cmp_eq_u32 s34, 0\ns_cbranch_scc1 {NP}\nv_lshlrev_b32 v48, 7, v0\nv_cmp_gt_u32 vcc, 80, v0\ns_and_saveexec_b64 s[36:37], vcc\ns_cbranch_execz {NP}a\nds_write_b128 v48, {v(ONE,4)} offset:32")
        A.lab(NP + "a"); A("s_mov_b64 exec, s[36:37]"); A.lab(NP)
        spre, j4, j5 = self.stage_jobs()
        prep, late = self.pack_late()
        CP = 240; RL = LDS_MISC + 4096
        def part1():
            A = self.A
            A(f"s_cmp_ge_u32 s99, 10\ns_cselect_b32 s30, 1, 0\ns_cselect_b32 s31, 10, 0\ns_sub_u32 s31, s99, s31\ns_lshl_b32 s31, s31, 1\ns_add_u32 s31, s31, s30\ns_mul_i32 s31, s31, 5120")
            A(f"s_mul_i32 s30, s100, {WP3_C}\ns_add_u32 s30, s30, s31\ns_add_u32 s30, s30, {WP3}\ns_cmp_ge_u32 s{S_U}, 160\ns_cmov_b32 s30, {OOB}")
            A(f"v_bfe_u32 v{r}, v{VL}, 2, 2\nv_and_b32 v{c}, 3, v{VL}\nv_lshrrev_b32 v48, 1, v{G}\nv_lshl_add_u32 v48, v48, 2, v{r}\nv_lshlrev_b32 v48, 7, v48\nv_and_b32 v49, 1, v{G}\nv_lshl_add_u32 v49, v49, 2, v{c}\nv_lshl_add_u32 v48, v49, 3, v48\ns_lshl_b32 s3, s{WV}, 6\nv_add_u32 v{VU1}, s3, v48")
            A(f"v_lshl_add_u32 v{VU3}, v{G}, 3, v{r}\nv_mul_u32_u24 v{VU3}, 160, v{VU3}\nv_lshl_add_u32 v{VU3}, v{c}, 3, v{VU3}\nv_add_u32 v{VU3}, {STG3}, v{VU3}\nv_mov_b32 v{VZ}, 0")
            for x in spre: A(x)
        def part2():
            A = self.A
            A(f"v_and_b32 v48, 31, v{VL}\nv_and_b32 v49, 15, v{VL}\nv_lshlrev_b32 v{VAX}, 8, v48\nv_lshl_add_u32 v{VAX}, v49, 4, v{VAX}\nv_lshrrev_b32 v49, 5, v{VL}\nv_lshl_add_u32 v{VAX}, v49, 3, v{VAX}\nv_add_u32 v{VAX}, s{SXL}, v{VAX}")
            self.setup2a()
            A(f"s_lshl_b32 s3, s{J}, 7\ns_add_u32 s3, s3, {CG}\nv_mov_b32 v53, s3\nv_mov_b32 v62, s3\ns_lshl_b32 s3, s{CT}, 7\ns_add_u32 s3, s3, {PK3}\nv_writelane_b32 v53, s3, 1\nv_mov_b32 v54, 16\nv_writelane_b32 v54, 20, 1")
            A(f"s_and_b32 s3, s{S_U}, 7\ns_lshl_b32 s3, s3, 7\ns_add_u32 s3, s3, {PK3}\nv_writelane_b32 v62, s3, 1\nv_mov_b32 v63, 1")
            A(f"s_lshl_b32 s88, s{S_A3}, 4\ns_mul_i32 s88, s88, 1280\ns_mul_i32 s3, s{CT}, 160\ns_add_u32 s88, s88, s3\ns_mul_i32 s89, s{WV}, 2560\ns_add_u32 s89, s89, {RL}")
            A(f"v_and_b32 v{CP+10}, 15, v{VL}\nv_mul_u32_u24 v{CP+10}, 160, v{CP+10}\nv_lshrrev_b32 v48, 4, v{VL}\nv_lshl_add_u32 v{CP+10}, v48, 3, v{CP+10}\nv_add_u32 v{CP+10}, s89, v{CP+10}")
            for n in range(3):
                A(f"v_add_u32 v48, {64*n}, v{VL}\nv_mul_u32_u24 v49, 6554, v48\nv_lshrrev_b32 v49, 16, v49\nv_mul_u32_u24 v50, 10, v49\nv_sub_u32 v50, v48, v50\nv_mul_u32_u24 v49, 1280, v49\nv_lshl_add_u32 v{140+n}, v50, 4, v49")
            A(f"v_and_b32 v48, 127, v0\nv_lshrrev_b32 v49, 5, v48\nv_and_b32 v50, 31, v48\nv_lshlrev_b32 v50, 2, v50\nv_lshl_add_u32 v{CP+8}, v49, 10, v50")
            A(self.csaddr(48, CP+9, 49, CSF1))
            for x in prep: A(x)
        self.weave_loads(self.capture(part1), xlist(0), 9)
        if pubat == 1: publish()
        stg0 = o.get("stg0", 0)
        self.weave_loads(self.capture(part2), j4 + j5 if stg0 else xlist(1), o.get("cevery", 12))
        A.wait_vm('u')
        if pubat == 2: publish()
        A.wait_lg0(); A("s_barrier")
        self.stamp('s.u')
        HI = A.newlab("hi"); DN = A.newlab("dn"); keep = list(A.vm)
        A(f"s_cmp_ge_u32 s{WV}, 2\ns_cbranch_scc1 {HI}")
        A(f"s_lshl_b32 s32, s34, 1\ns_add_u32 s32, s32, s{WV}\ns_cmp_lt_u32 s32, 3\ns_cselect_b32 s3, s32, 120"); sel(A, 36, 3072, 1024)
        A(f"s_lshl_b32 s3, s3, 10\ns_mul_i32 s33, s35, 5\ns_mul_i32 s33, s33, s36\ns_add_u32 s33, s33, s{S_W1}\ns_add_u32 s30, s33, s3")
        A(f"s_lshl_b32 s33, s{J}, 2\ns_add_u32 s33, s33, s32\ns_lshl_b32 s33, s33, 3\ns_add_u32 s33, s33, s35\ns_lshl_b32 s33, s33, 7\ns_add_u32 s33, s33, {CSP1}")
        ur = [30, 31, 32, 34, 35]
        for u in range(1, 5): A(f"s_add_u32 s{ur[u]}, s{ur[u-1]}, s36")
        frag32_steps(A, VU1, VL16, lambda u: (f"s{ur[u]}", 0), "s33", WS, 64, 88, ONE, st)
        A(f"s_branch {DN}")
        A.lab(HI)
        A(f"s_cmp_lg_u32 s{WV}, 2\ns_cmov_b32 s30, {OOB}\ns_add_u32 s31, s30, 4096\ns_mov_b32 s32, {OOB}")
        for t in range(5):
            for p in range(2): A(f"ds_read_b64_tr_b16 {v(64+4*t+2*p,2)}, v{VU3} offset:{p*640 + t*32}")
        A("s_waitcnt lgkmcnt(0)")
        for t in range(5): A(f"buffer_store_dwordx4 {v(64+4*t,4)}, v{VL16}, {WS}, {'s30' if t < 4 else 's31'} offen offset:{(t&3)*1024} {st}")
        A("s_mov_b64 exec, 1")
        for t in range(4): A(f"buffer_store_dword v64, v{VL16}, {WS}, s32 offen")
        A("s_mov_b64 exec, -1")
        A.lab(DN)
        A.vm = keep + ['us'] * 9; A.lg = []
        A.vmem(f"s_lshl_b32 s3, s{S_U}, 7\ns_add_u32 s3, s3, {KVF}\ns_cmp_lg_u32 s{WV}, 0\ns_cmov_b32 s3, {OOB}\ns_mov_b64 exec, 1\nbuffer_store_dword v{VZ}, v{VZ}, {WS}, s3 offen sc1", 'us')
        A.vmem(f"s_lshl_b32 s3, s{WV}, 8\nbuffer_load_dword v61, v{VZ}, {DS_}, s3 offen sc1\ns_mov_b64 exec, -1", 'dbg')
        self.stamp('s.st')
        qmap = {}
        for st_ in range(40):
            for p in range(2): qmap[10*(st_//5) + cg32(st_ % 5, 0, p)//2] = (st_, p)
        done = set(); gram = [0]
        def gram1():
            if gram[0] < 40 and (gram[0], 0) in done and (gram[0], 1) in done:
                k = gram[0]; gram[0] += 1
                A(f"v_mfma_f32_32x32x16_bf16 {v(GR,16)}, {a(4*k,4)}, {a(4*k,4)}, {'0' if k == 0 else v(GR,16)}")
        def xreads(ch, also=()):
            also = list(also)
            A.wait_vm(('x', ch))
            for k, q in enumerate(range(16*ch, 16*ch + 16)):
                st_, p = qmap[q]
                A(f"v_xor_b32 v{TMP+(k&1)}, {k*16}, v{VAX}")
                A.lds(f"ds_read_b64 {a(4*st_+2*p,2)}, v{TMP+(k&1)} offset:{(ch % NB)*8192}")
                if k % 2:
                    if k % 4 == 3 or ch == 4: gram1()
                    self.drain(also, 6)
            assert not also
            A.wait_lg0()
            for q in range(16*ch, 16*ch + 16): done.add(qmap[q])
        xreads(0, xlist(1 if stg0 else 2))
        stgat = o.get("stgat", 0)
        for x in (xlist(2) if stg0 else (j4 + j5 if stgat == 0 else [])): self.emit(x)
        self.stamp('z.x0')
        A.wait_vm('dbg'); A("s_barrier")
        self.stamp('s.drain')
        W1_ = A.newlab("w"); OKI = A.newlab("oki")
        A(f"s_cmp_lg_u32 s{WV}, 0\ns_cbranch_scc1 {W1_}\ns_mov_b64 exec, 1\nv_cmp_gt_u32 vcc, 1, v61\ns_cbranch_vccz {OKI}")
        self.spin(VZ, "1", 0x10, DS_)
        A.lab(OKI)
        A(f"s_cmp_lt_u32 s{S_U}, 160\ns_cselect_b32 exec_lo, 3, 1\nbuffer_atomic_add v63, v62, {WS}, 0 offen sc1\ns_mov_b64 exec, -1")
        A.lab(W1_)
        x3 = xlist(3)
        if stg0:
            for x in late:
                self.emit(x); self.drain(x3, 3)
            assert not x3
            A.wait_lg0()
        if not stg0 and stgat == 1:
            for x in j4 + j5: self.emit(x)
        self.stamp('z.w2')
        xreads(1, x3)
        if not stg0 and stgat == 2:
            for x in j4 + j5: self.emit(x)
        x4 = xlist(4)
        for n in range(3):
            x4 += [f"s_add_u32 m0, s89, {1024*n}", ('vm', ("s_mov_b32 exec_hi, 0\n" if n == 2 else "") + f"buffer_load_dwordx4 v{140+n}, {XS}, s88 offen lds" + ("\ns_mov_b32 exec_hi, -1" if n == 2 else ""), 'res')]
        x4.append(('vm', f"s_cmp_lg_u32 s{WV}, 0\ns_cselect_b32 s3, {OOB}, 0\ns_mov_b64 exec, 3\nbuffer_load_dword v55, v53, {WS}, s3 offen sc1\ns_mov_b64 exec, -1", 'fl0'))
        while x4:
            self.drain(x4, 3); gram1()
        self.stamp('z.x1')
        ls = sum(self.late_stores, [])
        if not stg0:
            A.wait_vm('stg'); A("s_barrier")
            for x in late: self.emit(x)
            A.wait_lg0()
        xreads(2, ls[:len(ls)//2]); xreads(3, ls[len(ls)//2:])
        self.stamp('z.x3')
        xreads(4)
        self.stamp('s.x')
        W2_ = A.newlab("w")
        A.wait_vm('fl0')
        for k in range(5): A.lds(f"ds_read_b64 {v(RES+2*k,2)}, v{CP+10} offset:{32*k}")
        A(f"s_cmp_lg_u32 s{WV}, 0\ns_cbranch_scc1 {W2_}\ns_mov_b64 exec, 3\nv_cmp_gt_u32 vcc, v54, v55\ns_cbranch_vccz {W2_}a")
        self.spin(53, "v54", 0x20)
        A.lab(W2_ + "a"); A("s_mov_b64 exec, -1")
        A.lab(W2_)
        A("s_barrier")
        self.stamp('s.poll')
        seq, ch = self.p1_seq([49152 + 12288*c for c in range(8)] + [0, 16384], [28672, 36864, 49152, 73728, 81920], AP)
        up = o.get("up1a", 4)
        for k in range(up): [self.emit(x) for x in self.rnd(ch[k][0], ch[k][1], ch[k][3], ch[k][2], ('w', k))]
        while gram[0] < 40: gram1()
        A(f"s_lshl_b32 s99, s{J}, 12\ns_add_u32 s99, s99, {CSP1}")
        rest = self.capture(self.setup2b) + [f"v_cndmask_b32 v{GR}, v{GR}, v{GR+k}, s[{MASK+2*k}:{MASK+2*k+1}]" for k in range(1, 16)]
        rest += f"v_mov_b32 v{GR+1}, v{GR}\nv_mov_b32 v{GR+2}, v{GR}\nv_permlane32_swap_b32 v{GR+1}, v{GR+2}\nv_bfe_u32 v48, v{VL}, 2, 1\nv_cmp_eq_u32 vcc, 0, v48\nv_cndmask_b32 v{GR}, v{GR+2}, v{GR+1}, vcc\nv_mul_f32 v{GR}, {fhex(1.0/640)}, v{GR}".split("\n")
        ch = [c + (k < up,) for k, c in enumerate(ch)] + [(S_W3, 30720, 8, lds3(3), None, 999, False)]
        bars = list(range(1, 80, 4))
        jobs, valid, used = self.plan(ch, bars)
        for k in range(1, up):
            b = max(x for x in bars if x <= ch[k][4]); valid.setdefault(b, []).append(('w', k)); used.add(b)
        jobs += [(4, 30 + k, [('vm', f"buffer_load_dword v{CP+k}, v{CP+8}, {WS}, s99 offen offset:{128*k} sc1", 'cp')]) for k in range(8)]
        sched = self.edf(jobs, 80, lambda k: o.get("r1a", 1.3) if k < 40 else 0.5)
        for k in range(29): sched[k] += rest[k*len(rest)//29:(k+1)*len(rest)//29]
        assert not any(isinstance(x, tuple) and x[2] == 'cp' for k in range(30, 80) for x in sched[k])
        sched[30] += [('wv', 'cp')] + [f"v_add_f32 v{CP}, v{CP}, v{CP+k}" for k in range(1, 8)] + self.csfrag(CP, CP+4, 160, CP+9)
        sched[41] = [f"v_mul_f32 v{MU}, {fhex(-1.0/640)}, v{ACC+40}"] + self.split3(MU, AP, 160) + \
            [f"v_fma_f32 v{GR}, -v{MU}, v{MU}, v{GR}", f"v_max_f32 v{GR}, 0, v{GR}", f"v_add_f32 v{GR}, 0x3727c5ac, v{GR}", f"v_rsq_f32 v{RS}, v{GR}"] + sched[41]
        psig = o.get("psig", 21)
        A.wait_vm(('w', 0)); A.wait_lg0(); A("s_barrier")
        self.stamp('p1.go')
        def at_step(st_, fill):
            if st_ == 44: assert not any(isinstance(x, str) and f"v{AP+3}" in x for x in fill)
            if st_ in used or st_ in (psig, 33, 37):
                for tag in valid.get(st_, []): self.need(tag, fill)
                if st_ == psig: self.need('pst', fill)
                if st_ == 33:
                    while any(isinstance(x, tuple) and x[2] == 'csw' for x in fill): self.emit(fill.pop(0))
                    A.wait_lg('csw')
                A("s_barrier")
                if st_ == psig: self.packed_signal()
                if o.get("in1"): self.stamp(f'd.{st_}')
            if st_ == 40: self.stamp('p1.a')
            fill += sched[st_]
        self.p1_tail(seq, sched, at_step, RS)

    def stage_jobs(self):
        t = 160
        pre = [f"v_and_b32 v{t+4}, 7, v{VL}", f"v_lshrrev_b32 v{t+5}, 3, v{VL}", f"v_mul_u32_u24 v{t}, 3456, v{t+5}", f"v_lshl_add_u32 v{t}, v{t+4}, 4, v{t}",
               f"s_and_b32 s99, s{S_U}, 7", "s_mul_i32 s99, s99, 80", f"s_mul_i32 s100, s{KH}, 40", "s_add_u32 s99, s99, s100", "s_mul_i32 s99, s99, 3456",
               f"s_lshr_b32 s100, s{S_U}, 3", "s_lshl_b32 s100, s100, 7", "s_add_u32 s99, s99, s100",
               f"s_lshr_b32 s100, s{S_U}, 2", "s_mul_i32 s100, s100, 32*1280", f"s_and_b32 s101, s{S_U}, 3", "s_mul_i32 s101, s101, 320", "s_add_u32 s100, s100, s101",
               f"s_cmp_ge_u32 s{S_U}, 216\ns_cmov_b32 s99, {OOB}\ns_cmov_b32 s100, {OOB}"]
        for n in range(3):
            pre += [f"s_add_u32 s101, s{WV}, {4*n}", "s_min_u32 s101, s101, 9", "s_lshl_b32 s101, s101, 6", f"v_add_u32 v{t+4}, s101, v{VL}", f"v_mul_u32_u24 v{t+5}, 3277, v{t+4}", f"v_lshrrev_b32 v{t+5}, 16, v{t+5}",
                    f"v_mul_u32_u24 v{t+6}, 20, v{t+5}", f"v_sub_u32 v{t+6}, v{t+4}, v{t+6}", f"v_mul_u32_u24 v{t+5}, 1280, v{t+5}", f"v_lshl_add_u32 v{t+1+n}, v{t+6}, 4, v{t+5}"]
        j4 = [f"s_mul_i32 s101, s{WV}, 5120"]
        for n in range(5):
            j4 += [f"s_add_u32 m0, s101, {STG4 + n*1024}", ('vm', f"buffer_load_dwordx4 v{t}, {GUS}, s99 offen {self.nts} lds", 'stg'), f"s_add_u32 s99, s99, {8*3456}"]
        j5 = []
        for n in range(3):
            j5 += [f"s_add_u32 s101, s{WV}, {4*n}", f"s_min_u32 s101, s101, 9", f"s_lshl_b32 s101, s101, 10", f"s_add_u32 m0, s101, {STG5}",
                   ('vm', f"buffer_load_dwordx4 v{t+1+n}, {WDS}, s100 offen {self.nts} lds", 'stg')]
        return pre, j4[:-1], j5

    def pack_late(self):
        st = "sc1"; P = []; L = []
        r, c, G, ad, FR, FD, CA, ONE = 44, 45, 46, 47, 192, 212, 224, 56
        add = lambda txt: P.append(txt)
        add(f"v_bfe_u32 v{r}, v{VL}, 2, 2\nv_and_b32 v{c}, 3, v{VL}\nv_lshrrev_b32 v{G}, 4, v{VL}")
        if M16:
            add(f"v_lshrrev_b32 v{ad}, 1, v{G}\nv_lshl_add_u32 v{ad}, v{ad}, 2, v{r}\nv_lshlrev_b32 v{ad}, 7, v{ad}\nv_lshl_add_u32 v{ad}, v{c}, 3, v{ad}\nv_and_b32 v48, 1, v{G}")
            add(f"v_mul_u32_u24 v48, 10240, v48\nv_add_u32 v{ad}, v{ad}, v48\ns_lshl_b32 s3, s{WV}, 5\ns_add_u32 s3, s3, {STG4}\nv_add_u32 v{ad}, s3, v{ad}")
        else:
            add(f"v_lshrrev_b32 v{ad}, 1, v{G}\nv_lshl_add_u32 v{ad}, v{ad}, 2, v{r}\nv_lshlrev_b32 v{ad}, 7, v{ad}\nv_and_b32 v48, 1, v{c}\nv_lshl_add_u32 v{ad}, v48, 4, v{ad}\nv_and_b32 v48, 1, v{G}\nv_lshl_add_u32 v{ad}, v48, 3, v{ad}")
            add(f"v_lshrrev_b32 v48, 1, v{c}\nv_mul_u32_u24 v48, 10240, v48\nv_add_u32 v{ad}, v{ad}, v48\ns_lshl_b32 s3, s{WV}, 5\ns_add_u32 s3, s3, {STG4}\nv_add_u32 v{ad}, s3, v{ad}")
        add(f"v_lshl_add_u32 v49, v{G}, 3, v{r}\nv_mul_u32_u24 v49, 320, v49\nv_lshl_add_u32 v49, v{c}, 3, v49\ns_mul_i32 s81, s{KH}, 160\ns_mul_i32 s3, s{RR}, 96\ns_add_u32 s81, s81, s3\ns_add_u32 s81, s81, {STG5}\nv_add_u32 v49, s81, v49\ns_lshl_b32 s3, s{RR}, 5\nv_subrev_u32 v50, s3, v49")
        for hf in range(2):
            add(f"s_lshr_b32 s81, s{S_U}, 2\ns_lshl_b32 s81, s81, 1\ns_add_u32 s81, s81, {hf}\ns_mul_i32 s82, s81, 147\ns_lshr_b32 s82, s82, 10\ns_mul_i32 s83, s82, 7\ns_sub_u32 s83, s81, s83")
            add("s_lshl_b32 s81, s82, 2\ns_mul_i32 s82, s82, 3\ns_add_u32 s82, s82, 59\ns_cmp_lt_u32 s83, 4\ns_cselect_b32 s82, s81, s82")
            add("s_add_u32 s82, s82, s83\ns_lshr_b32 s81, s82, 3\ns_lshl_b32 s81, s81, 2\ns_and_b32 s83, s82, 2\ns_add_u32 s81, s81, s83\ns_bfe_u32 s83, s82, 0x10002\ns_add_u32 s81, s81, s83\ns_mul_i32 s81, s81, 5120")
            add(f"s_and_b32 s82, s82, 1\ns_lshl_b32 s82, s82, 9\ns_add_u32 s81, s81, s82\nv_mov_b32 v{51+hf}, s81")
        add(f"s_mov_b32 exec_lo, 0\nv_mov_b32 v51, v52\ns_mov_b32 exec_lo, -1\nv_and_b32 v52, 31, v{VL}\nv_lshl_add_u32 v51, v52, 4, v51\nv_lshrrev_b32 v52, 5, v{VL}\nv_lshlrev_b32 v52, 6, v52")
        add(f"s_and_b32 s86, s{S_U}, 7\ns_lshr_b32 s83, s{S_U}, 3\ns_lshl_b32 s83, s83, 2\ns_add_u32 s83, s83, s{WV}")
        add("s_mul_i32 s87, s83, 147\ns_lshr_b32 s87, s87, 10\ns_mul_i32 s81, s87, 7\ns_sub_u32 s81, s83, s81")
        add(f"s_mov_b32 s82, {P4_GROUPS[0][0]}\ns_mov_b32 s85, {P4_GROUPS[0][1]}")
        for t0, nt in P4_GROUPS[1:]: add(f"s_cmp_ge_u32 s81, {t0}\ns_cselect_b32 s82, {t0}, s82\ns_cselect_b32 s85, {nt}, s85")
        add(f"s_mul_i32 s87, s87, {WP4_J}\ns_mul_i32 s84, s82, 39\ns_add_u32 s84, s84, s81\ns_mul_i32 s82, s86, 5\ns_mul_i32 s82, s82, s85\ns_add_u32 s84, s84, s82\ns_lshl_b32 s84, s84, 10\ns_add_u32 s84, s84, s87\ns_add_u32 s84, s84, {WP4}\ns_lshl_b32 s85, s85, 10")
        add(f"s_lshl_b32 s83, s83, 3\ns_add_u32 s83, s83, s86\ns_lshl_b32 s83, s83, 7\ns_add_u32 s83, s83, {CSP4}")
        add(f"s_and_b32 s82, s{S_U}, 3\ns_lshl_b32 s82, s82, 1\ns_add_u32 s82, s82, s{KH}\ns_mul_i32 s82, s82, {WP5_C}\ns_mul_i32 s81, s{RR}, 3072\ns_add_u32 s82, s82, s81\ns_add_u32 s82, s82, {WP5}")
        add(f"s_cmp_ge_u32 s{S_U}, 216\ns_cmov_b32 s84, {OOB}\ns_cmov_b32 s83, {OOB}\ns_cmov_b32 s82, {OOB}\ns_lshl_b32 s81, s{RR}, 10\ns_sub_u32 s81, s82, s81")
        if self.o.get('oob15', 1):
            add(f"s_sub_u32 s86, s{S_U}, 216\ns_lshl_b32 s86, s86, 12\ns_add_u32 s86, s86, {WP4 + 15*WP4_J + 3072}\ns_lshl_b32 s87, s{WV}, 8\ns_sub_u32 s87, s{S_U}, s87\ns_cmp_ge_i32 s87, 216\ns_cmov_b32 s84, s86\ns_cmov_b32 s85, 0x20000000")
        for u in range(5):
            for p in range(2): L.append(('lg', f"ds_read_b64_tr_b16 {v(FR+4*u+2*p,2)}, v{ad} offset:{4*cg32(u,0,p)*128}", ('pl', u)))
        for k in range(3):
            for p in range(2): L.append(('lg', f"ds_read_b64_tr_b16 {v(FD+4*k+2*p,2)}, v{49 if k < 2 else 50} offset:{p*1280 + k*32}", 'pd'))
        S_ = []
        for u in range(5):
            L += [('wl', ('pl', u)), f"v_mfma_f32_32x32x16_bf16 {v(CA,16)}, {v(FR+4*u,4)}, {v(ONE,4)}, {'0' if u == 0 else v(CA,16)}"]
            S_.append(([f"s_add_u32 s84, s84, s85"] if u else []) + [('vm', f"buffer_store_dwordx4 {v(FR+4*u,4)}, v{VL16}, {WS}, s84 offen {st}", 'pst')])
        for k in range(3): S_.append([('vm', f"buffer_store_dwordx4 {v(FD+4*k,4)}, v51, {WS}, s{82 if k < 2 else 81} offen offset:{k*1024} {st}", 'pst')])
        for q in range(4): S_.append([('vm', f"s_mov_b32 exec_lo, 1\ns_mov_b32 exec_hi, 1\nbuffer_store_dwordx4 {v(CA+4*q,4)}, v52, {WS}, s83 offen offset:{16*q} {st}\ns_mov_b64 exec, -1", 'pst')])
        self.late_stores = S_
        return P, L

    def setup2a(self):
        A = self.A; t = VFREE
        A(f"s_lshl_b32 s3, s{MB}, 4\ns_add_u32 s3, s3, s{J}\ns_mul_i32 s{S_KVO}, s3, {KV_WG}\ns_add_u32 s{S_KVO}, s{S_KVO}, {KV}")
        A(f"s_lshl_b32 s3, s{MB}, 2\ns_lshl_b32 s90, s{RH}, 1\ns_add_u32 s3, s3, s90\ns_add_u32 s3, s3, s{RR}")
        A(f"s_mul_i32 s{S_X}, s3, 40960\ns_mul_i32 s90, s{CT}, 5120\ns_add_u32 s{S_X}, s{S_X}, s90")
        A(f"s_lshl_b32 s{S_STX}, s3, 3\ns_add_u32 s{S_STX}, s{S_STX}, s{CT}\ns_lshl_b32 s{S_STX}, s{S_STX}, 8")
        A(f"s_lshl_b32 s3, s3, 1\ns_add_u32 s{S_A3}, s3, s{KH}\ns_xor_b32 s{S_A3B}, s{S_A3}, 1")
        A(f"v_add_u32 v{VB1}, 0x10000, v{VL16}\nv_add_u32 v{VB2}, 0x20000, v{VL16}")

    def setup2b(self):
        A = self.A; t = VFREE
        m5, h, m4, g = t, t+1, t+2, t+3
        A(f"v_and_b32 v{m5}, 31, v{VL}\nv_lshrrev_b32 v{h}, 5, v{VL}\nv_and_b32 v{m4}, 15, v{VL}\nv_lshrrev_b32 v{g}, 4, v{VL}")
        A(f"v_lshlrev_b32 v{VST}, 3, v{m5}\nv_lshl_add_u32 v{VST}, v{h}, 8, v{VST}")
        assert self.nsh <= 2
        A(f"s_lshl_b32 s3, s{MB}, 8\nv_lshlrev_b32 v{VCNT}, 7, v{VL}\nv_add_u32 v{VCNT}, s3, v{VCNT}")
        A(f"v_sub_u32 v{VKF}, s{MB}, v{VL}\nv_cmp_gt_i32 vcc, 0, v{VKF}\nv_mov_b32 v{t+4}, s{MB}\nv_cndmask_b32 v{VKF}, v{VKF}, v{t+4}, vcc\nv_lshlrev_b32 v{VKF}, 4, v{VKF}\nv_add_u32 v{VKF}, s{J}, v{VKF}\nv_lshlrev_b32 v{VKF}, 7, v{VKF}\nv_add_u32 v{VKF}, {KVF}, v{VKF}")
        A(f"s_mul_i32 s3, s{J}, 7\ns_lshr_b32 s3, s3, 2\nv_mov_b32 v{VKT}, 8")
        for k in range(3): A(f"s_add_u32 s100, s3, {k}\ns_min_u32 s100, s100, 26\ns_lshl_b32 s100, s100, 7\ns_add_u32 s100, s100, {PK4}\nv_writelane_b32 v{VKF}, s100, {3+k}")
        A(f"s_lshr_b32 s3, s{CT}, 1\ns_lshl_b32 s3, s3, 7\ns_add_u32 s3, s3, {PK5}\nv_writelane_b32 v{VKF}, s3, 6\nv_writelane_b32 v{VKT}, 54, 6")
        A(f"s_lshl_b32 s3, s{MB}, 3\ns_lshl_b32 s100, s{WV}, 1\ns_add_u32 s3, s3, s100\ns_mul_i32 s3, s3, 20480\ns_mul_i32 s100, s{J}, 1280\ns_add_u32 s3, s3, s100\ns_add_u32 s3, s3, {OO}")
        A(f"v_lshrrev_b32 v{t+4}, 4, v{m5}\nv_mul_u32_u24 v{t+5}, 20480, v{t+4}\nv_lshl_add_u32 v{t+5}, v{m4}, 4, v{t+5}\nv_add_u32 v{VO3}, s3, v{t+5}\nv_lshl_add_u32 v{VO1}, v{h}, 8, v{VO3}")
        A(f"v_mul_u32_u24 v{VH}, {54*1024}, v{t+4}\nv_lshl_add_u32 v{VH}, v{m4}, 4, v{VH}\nv_lshl_add_u32 v{VH}, v{h}, 8, v{VH}")
        A(f"s_lshl_b32 s3, s{KH}, 4\nv_add_u32 v{t+4}, s3, v{m4}\nv_lshlrev_b32 v{VSX}, 3, v{t+4}\nv_and_b32 v{t+5}, 1, v{g}\nv_lshl_add_u32 v{t+4}, v{t+5}, 5, v{t+4}")
        A(f"v_lshlrev_b32 v{VX}, 4, v{t+4}\nv_lshl_add_u32 v{VX}, v{h}, 10, v{VX}")
        A(f"s_mul_i32 s3, s{WV}, 2560\ns_add_u32 s3, s3, {KREG}\nv_add_u32 v{VK}, s3, v{VL16}\ns_add_u32 s3, s3, 2048\nv_lshlrev_b32 v{VKS}, 3, v{VL}\nv_add_u32 v{VKS}, s3, v{VKS}")
        A(f"s_mul_i32 s3, s{WV}, 3328\ns_add_u32 s3, s3, {VREG - 32}")
        A(f"v_mul_u32_u24 v{VV}, 416, v{h}\nv_and_b32 v{t+4}, 1, v{g}\nv_lshl_add_u32 v{VV}, v{t+4}, 7, v{VV}\nv_and_b32 v{t+4}, 3, v{VL}\nv_lshl_add_u32 v{VV}, v{t+4}, 5, v{VV}")
        A(f"v_bfe_u32 v{t+4}, v{VL}, 2, 2\nv_lshl_add_u32 v{VV}, v{t+4}, 3, v{VV}\nv_add_u32 v{VV}, s3, v{VV}")
        A(f"s_add_u32 s3, s3, {8*3328 + 32}\nv_lshrrev_b32 v{t+4}, 2, v{m5}\nv_mul_u32_u24 v{t+4}, 416, v{t+4}\nv_and_b32 v{t+5}, 3, v{VL}\nv_lshl_add_u32 v{t+4}, v{t+5}, 3, v{t+4}\nv_add_u32 v{t+4}, s3, v{t+4}")
        A(f"v_lshl_add_u32 v{VW2}, v{h}, 6, v{t+4}\nv_lshl_add_u32 v{VW1}, v{h}, 5, v{t+4}\nv_mul_u32_u24 v{t+5}, 384, v{h}\nv_add_u32 v{VW12}, v{t+5}, v{t+4}")
        A(f"s_mul_i32 s3, s{WV}, 5120\nv_add_u32 v{VXW}, s3, v{VL16}\ns_xor_b32 s3, s{WV}, 1\ns_mul_i32 s3, s3, 5120\nv_add_u32 v{VXR}, s3, v{VL16}")
        A(f"v_lshlrev_b32 v{t+4}, 2, v{h}\nv_sub_u32 v{t+4}, v{m5}, v{t+4}")
        for r in range(16):
            A(f"v_cmp_le_i32 s[{MASK+2*r}:{MASK+2*r+1}], {8*(r>>2) + (r&3)}, v{t+4}")
        A(f"v_mov_b32 v{t+5}, 0xffff\nv_mov_b32 v{t+6}, 0xffff0000")
        for rr in range(8):
            A(f"v_cndmask_b32 v{PM+rr}, 0, v{t+5}, s[{MASK+4*rr}:{MASK+4*rr+1}]\nv_cndmask_b32 v{t+7}, 0, v{t+6}, s[{MASK+4*rr+2}:{MASK+4*rr+3}]\nv_or_b32 v{PM+rr}, v{PM+rr}, v{t+7}")

    def stats_load(self, off, dst, sr=T[3]):
        A = self.A
        A(f"s_add_u32 s{sr}, s{SL}, s{S_ST1}\ns_add_u32 s{sr}, s{sr}, {off}")
        for i in range(4):
            A.vmem(f"buffer_load_dwordx2 {v(dst+2*i,2)}, v{VST}, {WS}, s{sr} offen offset:{512*i} {self.ld}", 'st')

    def stats_finish(self, d, mu, rs):
        return [f"v_add_f32 v{d}, v{d}, v{d+2}", f"v_add_f32 v{d+1}, v{d+1}, v{d+3}", f"v_add_f32 v{d+4}, v{d+4}, v{d+6}", f"v_add_f32 v{d+5}, v{d+5}, v{d+7}",
                f"v_add_f32 v{d}, v{d}, v{d+4}", f"v_add_f32 v{d+1}, v{d+1}, v{d+5}", f"v_mov_b32 v{d+2}, v{d}", f"v_mov_b32 v{d+3}, v{d+1}",
                f"v_permlane32_swap_b32 v{d}, v{d+2}", f"v_permlane32_swap_b32 v{d+1}, v{d+3}",
                f"v_add_f32 v{d}, v{d}, v{d+2}", f"v_add_f32 v{d+1}, v{d+1}, v{d+3}",
                f"v_mul_f32 v{mu}, {fhex(-1.0/640)}, v{d}", f"v_mul_f32 v{d+1}, {fhex(1.0/640)}, v{d+1}",
                f"v_fma_f32 v{d+1}, -v{mu}, v{mu}, v{d+1}", f"v_max_f32 v{d+1}, 0, v{d+1}", f"v_add_f32 v{d+1}, 0x3727c5ac, v{d+1}",
                f"v_rsq_f32 v{rs}, v{d+1}"]

    def a_load(self, st_, sreg, dst, tag):
        self.A.vmem(f"buffer_load_dwordx4 {a(dst,4)}, v{VL16}, {WS}, s{sreg} offen offset:{(st_ & 3)*1024} {self.ld}", tag)

    def p1_seq(self, adA, adB, AP):
        ACC = 64; ACB = self.ACB = 44
        seq = [(k, ACC + 16*t, adA[k >> 2] + (k & 3)*3072 + 1024*t, a(4*k, 4), k == 0) for k in range(40) for t in range(3)]
        seqB = [(40 + k, (ACC + 48, ACB)[k & 1], adB[k >> 3] + (k & 7)*1024, a(4*k, 4), k < 2) for k in range(40)]
        cs = lambda t, st_: (st_, ACC + 16*t, CSF1 + 1024*t, v(AP, 4), False)
        seq += seqB[:5] + [cs(0, 44), cs(1, 44), cs(2, 44)] + seqB[5:] + [cs(3, 79)]
        R = 8
        vis = lambda nf: seq[max(nf - R, 0)][0]
        idx = {(e[0], e[1]): n for n, e in reversed(list(enumerate(seq)))}
        chA = [(S_W1, c*12288, 3, adA[c], vis(12*c), 4*c + 3) for c in range(10)]
        chB = [(S_W1, 122880 + c*8192, 2, adB[c], vis(idx[(40 + 8*c, ACC + 48)]), 47 + 8*c) for c in range(5)]
        return seq, chA + chB

    def p1(self):
        A = self.A; o = self.o
        STD, MU, RS, AP = 160, 168, 169, 172
        SA = T[4]
        def aload(st_):
            L = [f"s_add_u32 s{SA}, s{SA}, 4096"] if st_ and st_ % 4 == 0 else []
            return L + [('vm', f"buffer_load_dwordx4 {a(4*st_,4)}, v{VL16}, {WS}, s{SA} offen offset:{(st_ & 3)*1024} {self.ld}", ('a', st_))]
        A(f"s_add_u32 s{SA}, s{SL}, s{S_A1}")
        up = o.get("up1", 10); gate = o.get("gate1", 4) if self.es else 0
        if not self.es: self.stats_load(STA, STD)
        for k in range(up): [self.emit(x) for x in aload(k)]
        if self.es: self.reload("main_rl1", 0x580, [f"s_add_u32 s3, s{SL}, s{S_A1}\ns_add_u32 s3, s3, {k*1024}\nbuffer_load_dwordx4 {a(4*k,4)}, v{VL16}, {WS}, s3 offen sc1" for k in range(up)])
        seq, ch = self.p1_seq([20480 + 12288*c for c in range(10)], [0, 8192, 20480, 28672, 36864], AP)
        ch = [c + (k < self.pre1,) for k, c in enumerate(ch)] + [(S_W3, 30720, 8, lds3(3), None, 999, False)]
        bars = list(range(o.get("b1", 4) - 3, 80, o.get("b1", 4)))
        jobs, valid, used = self.plan(ch, bars)
        jobs[-1] = (o.get("w3at", 72),) + jobs[-1][1:]
        jobs += [(gate, k, aload(k)) for k in range(up, 40)]
        sched = self.edf(jobs, 80, lambda k: o.get("r1", 1.4) if k < 40 else (0.5 if k < 72 else 1.0), o.get("cr1", 0))
        sched[30] += [('wv', 'st')] + self.stats_finish(STD, MU, RS) + self.split3(MU, AP, STD)
        def at_step(st_, fill):
            if st_ in used or st_ == 37:
                for tag in valid.get(st_, []): self.need(tag, fill)
                A("s_barrier")
            if st_ == 40: self.stamp('p1.a')
            self.es_hooks(st_, fill, up, gate, "main_rl1", 0x590, lambda: self.stats_load(STA, STD))
            fill += sched[st_]
            if st_ < 40: self.need(('a', st_), fill)
        self.p1_tail(seq, sched, at_step, RS, (('a', 0), 'p1.go'))

    def p1_tail(self, seq, sched, at_step, RS, go=None):
        A = self.A; ACC, PK, RQ, VC = 64, 176, 170, 192
        self.QA1, self.QB1, self.QA2, self.QB2 = 224, 228, 232, 236
        def quad(t, j, dst, sc):
            r = ACC + 16*t + 4*j
            return [f"v_mul_f32 v{r+i}, v{sc}, v{r+i}" for i in range(4)] + [f"v_cvt_pk_bf16_f32 v{dst}, v{r}, v{r+1}", f"v_cvt_pk_bf16_f32 v{dst+1}, v{r+2}, v{r+3}"]
        KA, KB, KS, VT = PK, PK+4, PK+8, 208
        L = [f"s_add_u32 s{T[4]}, s{SL}, s{S_KVO}", f"s_mul_i32 s{T[5]}, s{WV}, 2560", f"s_add_u32 s{T[5]}, s{T[5]}, s{T[4]}", f"s_mul_i32 s{T[6]}, s{WV}, 3328",
             f"s_add_u32 s{T[7]}, s{T[6]}, {VREG + 8*3328}", f"s_add_u32 s{T[6]}, s{T[6]}, s{T[4]}", f"s_add_u32 s{T[6]}, s{T[6]}, 10240",
             f"v_add_u32 v{PK+11}, s{T[7]}, v{VL16}", f"v_lshlrev_b32 v{PK+10}, 3, v{VL}", f"v_mov_b32 v{VT+10}, 0x3f803f80", f"v_mov_b32 v{VT+11}, 0x3f803f80",
             ('lg', f"ds_write_b64 v{VW1}, {v(VT+10,2)} offset:{5*32}", None), f"v_mul_f32 v{RQ}, {fhex(QSCALE)}, v{RS}"]
        for n, (t, j, ad, pos) in enumerate(((1, 1, VW2, 1), (1, 2, VW2, 2), (1, 3, VW12, 0), (2, 0, VW2, 7), (2, 1, VW2, 8))):
            L += quad(t, j, VT+2*n, RS) + [('lg', f"ds_write_b64 v{ad}, {v(VT+2*n,2)} offset:{pos*32}", 'vw')]
        L += quad(0, 0, KA, RS) + [('wl', 'vw')] + [('lg', f"ds_read_b128 {v(VC+4*n,4)}, v{PK+11} offset:{1024*n}", ('vc', n)) for n in range(4)] + quad(0, 1, KA+2, RS)
        L += [('vm', f"buffer_store_dwordx4 {v(KA,4)}, v{VL16}, {WS}, s{T[5]} offen {self.stkv}", 'out'), ('lg', f"ds_write_b128 v{VK}, {v(KA,4)} offset:{8*2560}", None)]
        st_v = lambda n: [('wl', ('vc', n)), ('vm', ("s_mov_b64 exec, 0xffff\n" if n == 3 else "") + f"buffer_store_dwordx4 {v(VC+4*n,4)}, v{VL16}, {WS}, s{T[6]} offen offset:{1024*n} {self.stkv}" + ("\ns_mov_b64 exec, -1" if n == 3 else ""), 'out')]
        L += st_v(0) + quad(0, 3, KB, RS) + st_v(1) + quad(1, 0, KB+2, RS) + st_v(2)
        L += [('vm', f"buffer_store_dwordx4 {v(KB,4)}, v{VL16}, {WS}, s{T[5]} offen offset:1024 {self.stkv}", 'out'), ('lg', f"ds_write_b128 v{VK}, {v(KB,4)} offset:{8*2560+1024}", None)]
        L += quad(0, 2, KS, RS) + st_v(3)
        L += [('vm', f"buffer_store_dwordx2 {v(KS,2)}, v{PK+10}, {WS}, s{T[5]} offen offset:2048 {self.stkv}", 'out'), ('lg', f"ds_write_b64 v{VKS}, {v(KS,2)} offset:{8*2560}", None)]
        L += quad(2, 3, self.QA1, RQ) + [f"v_mov_b32 v{q+k}, 0" for q in (self.QA2, self.QB2) for k in (2, 3)]
        self.run32(seq, [128 + 4*k for k in range(8)], sched, at_step, (L, 128, self.o.get("kvrate", 9)), go)
        while L: self.emit(L.pop(0))
        self.stamp('p1.main')
        A.wait_vm('out'); A.wait_lg0()
        self.qpack = [f"v_add_f32 v{ACC+48+k}, v{ACC+48+k}, v{self.ACB+k}" for k in range(16)]
        self.qpack += quad(3, 0, self.QA1+2, RQ) + quad(3, 1, self.QA2, RQ) + quad(3, 2, self.QB1, RQ) + quad(3, 3, self.QB1+2, RQ)

    def kv_sync(self):
        A = self.A; N = A.newlab("nw0"); E = A.newlab("syn"); N0 = A.newlab("nw0")
        A.vm = []; A.lg = []
        A("s_barrier")
        self.stamp('p1.drain')
        A(f"s_cmp_lg_u32 s{WV}, 0\ns_cbranch_scc1 {N0}\ns_add_u32 s3, s{LAY}, 1\ns_mov_b64 exec, 7\nv_mov_b32 v{VKT}, s3\ns_mov_b64 exec, 1\nbuffer_store_dword v{VKT}, v{VKF}, {WS}, 0 offen sc1\ns_mov_b64 exec, -1")
        A.lab(N0)
        A("s_nop 7")
        for x in self.qpack: A(x)
        A(f"v_mov_b32 v{self.QB2}, v{self.QA2}\nv_mov_b32 v{self.QB2+1}, v{self.QA2+1}")
        A(f"s_mov_b32 exec_lo, 0\nv_mov_b32 v{self.QA2}, 0\nv_mov_b32 v{self.QA2+1}, 0\ns_mov_b32 exec_lo, -1\ns_mov_b32 exec_hi, 0\nv_mov_b32 v{self.QB2}, 0\nv_mov_b32 v{self.QB2+1}, 0\ns_mov_b32 exec_hi, -1")
        self.code_touch()
        self.mark([("", VO1, SL, 0, ""), ("", VO1, SL, 768, ""), ("s_mov_b32 exec_lo, 0\n", VO3, SL, 512, "\ns_mov_b32 exec_lo, -1")])
        G = [(28, 29, 31, 32), (33, 34, 35, 99)]
        A(f"s_mul_i32 s100, s{WV}, 6144\ns_add_u32 s101, s100, 4096\ns_min_u32 s101, s101, 21504")
        for src in range(2):
            back = 2 - src; g1, l1, g2, l2 = G[src]
            A(f"s_add_u32 s3, s{SL}, s{S_KVO}\ns_sub_u32 s3, s3, {back*16*KV_WG}\ns_cmp_lt_u32 s{MB}, {back}\ns_cmov_b32 s3, {OOB}\ns_add_u32 s{g1}, s3, s100\ns_add_u32 s{g2}, s3, s101")
            ko = KREG + src*10240; vo = VREG + src*13312 - 10240
            A(f"s_cmp_lt_u32 s{WV}, 2"); sel(A, l1, ko, vo); A(f"s_cmp_lt_u32 s{WV}, 1"); sel(A, l2, ko, vo)
            A(f"s_add_u32 s{l1}, s{l1}, s100\ns_add_u32 s{l2}, s{l2}, s101")
        A(f"s_cmp_lg_u32 s{WV}, 0\ns_cbranch_scc1 {N}\ns_cmp_eq_u32 s{LAY}, 0\ns_cselect_b32 exec_lo, 0x7f, 7\ns_mov_b32 exec_hi, 0")
        self.spin(VKF, f'v{VKT}', 0x100)
        A(f"s_mov_b64 exec, -1")
        self.stamp('p1.poll')
        A(f"s_branch {E}")
        A.lab(N)
        self.rnd3(S_W3, 0, 0, 10)
        A.lab(E)
        A("s_barrier")
        for tag, (g1, l1, g2, l2) in (('halo1', G[1]), ('halo2', G[0])):
            for g, l, n in ((g1, l1, 4), (g2, l2, 2)):
                A(f"s_mov_b32 m0, s{l}")
                for i in range(n): A.vmem(f"buffer_load_dwordx4 v{VL16}, {WS}, s{g} offen offset:{1024*i} {self.ld} lds", tag)
        if self.o.get("prediag", 1):
            k = 162
            A(f"ds_read_b64 {v(k,2)}, v{VKS} offset:{8*2560}\nds_read_b128 {v(k+2,4)}, v{VK} offset:{8*2560}\nds_read_b128 {v(k+6,4)}, v{VK} offset:{8*2560+1024}\ns_waitcnt lgkmcnt(0)")
            for hd, (sd, q1, q2) in enumerate(((80, self.QA1, self.QA2), (208, self.QB1, self.QB2))):
                A(f"v_mfma_f32_32x32x16_bf16 {v(sd,16)}, {v(k+2+4*hd,4)}, {v(q1,4)}, 0\nv_mfma_f32_32x32x16_bf16 {v(sd,16)}, {v(k,4)}, {v(q2,4)}, {v(sd,16)}")
        A.wait_vm('halo1'); A("s_barrier")
        self.stamp('p2.go')

    def packed_signal(self):
        A = self.A; L = A.newlab("ps"); t = 60
        A(f"s_cmp_lg_u32 s{WV}, 0\ns_cbranch_scc1 {L}\ns_cmp_ge_u32 s{S_U}, 216\ns_cbranch_scc1 {L}")
        A(f"s_lshr_b32 s101, s{S_U}, 3\ns_lshl_b32 s101, s101, 7\ns_add_u32 s101, s101, {PK4}\nv_mov_b32 v{t}, s101\ns_and_b32 s101, s{S_U}, 3\ns_lshl_b32 s101, s101, 7\ns_add_u32 s101, s101, {PK5}\nv_writelane_b32 v{t}, s101, 1")
        A(f"s_mov_b64 exec, 3\nv_mov_b32 v{t+1}, 1\nbuffer_atomic_add v{t+1}, v{t}, {WS}, 0 offen sc1\ns_mov_b64 exec, -1")
        A.lab(L)

    def colsums(self, between, nb):
        A = self.A; L = A.newlab("x0"); L1 = A.newlab("x1"); t = 80
        A(f"s_lshl_b32 s{T[7]}, s{LAY}, 2\ns_sub_u32 s{T[7]}, s{RR}, s{T[7]}\ns_cmp_lg_u32 s{T[7]}, 1\ns_cbranch_scc1 {L1}")
        A(f"s_mul_i32 s{T[5]}, s{J}, 7168\ns_add_u32 s{T[5]}, s{T[5]}, {CSP4 - 4096}")
        A(f"s_lshl_b32 s{T[6]}, s{S_WI}, 7\nv_add_u32 v{t}, s{T[6]}, v{VL}")
        for r in range(2):
            A(f"v_add_u32 v{t+1}, {64*r}, v{t}\nv_lshrrev_b32 v{t+2}, 5, v{t+1}\nv_and_b32 v{t+3}, 31, v{t+1}\nv_lshlrev_b32 v{t+3}, 2, v{t+3}\nv_lshl_add_u32 v{t+2}, v{t+2}, 10, v{t+3}")
            for k in range(8): A(f"buffer_load_dword v{t+4+8*r+k}, v{t+2}, {WS}, s{T[5]} offen offset:{128*k} sc1")
        A.lab(L1)
        between()
        A(f"s_cmp_lg_u32 s{T[7]}, 1\ns_cbranch_scc1 {L}")
        A(self.csaddr(t, t+2, t+3, CSF4 - 4096) + f"\nv_add_u32 v{t+3}, 2048, v{t+2}\ns_waitcnt vmcnt({nb})")
        for k in range(1, 8): A(f"v_add_f32 v{t+4}, v{t+4}, v{t+4+k}\nv_add_f32 v{t+12}, v{t+12}, v{t+12+k}")
        for x in self.csfrag(t+4, 64, 68, t+2) + self.csfrag(t+12, 72, 68, t+3): A(x[1] if isinstance(x, tuple) else x)
        A("s_waitcnt lgkmcnt(0)")
        A.lab(L)

    def p2(self):
        A = self.A
        SB = [48, 64, 80]; PB = [96, 104]; PD = 112; OA = [128, 144]; KF = [162, 174]; VF = [184, 192, 200]; CB = [208, 240]
        Q1 = [self.QA1, self.QB1]; Q2 = [self.QA2, self.QB2]
        cz = self.o.get("czero", True)
        order = list(range(7, 0, -1))
        nxt = dict(zip(order, order[1:] + [0]))
        blocks = [(i, hd) for i in order for hd in range(2)] + [('m', 0), ('m', 1)]
        N = len(blocks)
        def kread(i, buf):
            k = KF[buf]
            return [('lg', f"ds_read_b64 {v(k,2)}, v{VKS} offset:{i*2560}", ('k', i)), ('lg', f"ds_read_b128 {v(k+2,4)}, v{VK} offset:{i*2560}", ('k', i)),
                    ('lg', f"ds_read_b128 {v(k+6,4)}, v{VK} offset:{i*2560+1024}", ('k', i))]
        def vread(i, hd, buf):
            return [('lg', f"ds_read_b64_tr_b16 {v(VF[buf]+4*aa+2*p,2)}, v{VV} offset:{i*3328 + (4*aa+2*p)*416 + 192*hd}", ('v', i, hd)) for aa in range(2) for p in range(2)]
        kbuf = {i: i % 2 for i in range(1, 8)}; kbuf[0] = 0; kbuf[8] = 1
        def smf(i, hd, sb):
            k = KF[kbuf[i]]; c = '0' if cz else v(CB[hd], 16)
            return [('mf', f"v_mfma_f32_32x32x16_bf16 {v(sb,16)}, {v(k+2+4*hd,4)}, {v(Q1[hd],4)}, {c}", ('k', i)),
                    ('mf', f"v_mfma_f32_32x32x16_bf16 {v(sb,16)}, {v(k,4)}, {v(Q2[hd],4)}, {v(sb,16)}", None)]
        started = [False, False]
        def pvf(i, hd, pb, vb):
            L = []
            for aa in range(2):
                c = v(OA[hd], 16) if started[hd] else '0'; started[hd] = True
                L.append(('mf', f"v_mfma_f32_32x32x16_bf16 {v(OA[hd],16)}, {v(VF[vb]+4*aa,4)}, {v(pb+4*aa,4)}, {c}", ('v', i, hd) if aa == 0 else None))
            return L
        def emit(x):
            if isinstance(x, str): A(x)
            elif x[0] == 'vm': A.vmem(x[1], x[2])
            elif x[0] == 'lg': A.lds(x[1], x[2])
            else:
                if x[2] is not None: A.wait_lg(x[2])
                A(x[1])
        def weave(mfs, fill):
            cost = lambda x: 8 if isinstance(x, str) and x.startswith("v_exp") else 4
            tot = sum(map(cost, fill)); acc = 0; k = 0
            for x in fill:
                while k < len(mfs) and acc >= tot * k / len(mfs): emit(mfs[k]); k += 1
                emit(x); acc += cost(x)
            while k < len(mfs): emit(mfs[k]); k += 1
        sbuf = lambda n: SB[n % 2]
        pd = self.o.get("prediag", 1); SD = [80, 208] if pd else [80, 80]
        for x in kread(order[0], kbuf[order[0]]): emit(x)
        for x in smf(order[0], 0, sbuf(0)): emit(x)
        for n in range(N + 1):
            mfs = []; fill = []
            if n + 1 < N:
                i, hd = blocks[n+1]
                if i == 'm': mfs += smf(0, hd, sbuf(n+1)) + ([] if pd else smf(8, hd, SB[2]))
                else: mfs += smf(i, hd, sbuf(n+1))
            pv = []
            if n >= 1:
                i, hd = blocks[n-1]
                if i == 'm': pv = pvf(0, hd, PB[(n-1) % 2], (n-1) % 2) + pvf(8, hd, PD, 2)
                else: pv = pvf(i, hd, PB[(n-1) % 2], (n-1) % 2)
            if n < N:
                i, hd = blocks[n]
                if i != 'm' and hd == 0:
                    if nxt[i] == 3:
                        A.wait_vm('halo2'); A("s_barrier")
                    fill += kread(nxt[i], kbuf[nxt[i]])
                sb = sbuf(n)
                if i == 'm':
                    pre = [f"v_cndmask_b32 v{sb+r}, v{sb+r}, v{SD[hd]+r}, s[{MASK+2*r}:{MASK+2*r+1}]" for r in range(16)]
                    for x in pre: emit(x)
                    for x in pv: emit(x)
                    pv = []
                    fill += vread(0, hd, n % 2) + vread(8, hd, 2)
                else:
                    fill += vread(i, hd, n % 2)
                ex = []
                for r in range(16):
                    ex.append(f"v_exp_f32 v{sb+r}, v{sb+r}")
                    if r >= 3 and r % 2 == 1: ex.append(f"v_cvt_pk_bf16_f32 v{PB[n%2]+(r-3)//2}, v{sb+r-3}, v{sb+r-2}")
                ex.append(f"v_cvt_pk_bf16_f32 v{PB[n%2]+7}, v{sb+14}, v{sb+15}")
                if i == 'm':
                    for rr in range(8):
                        ex.append(f"v_and_b32 v{PD+rr}, v{PM+rr}, v{PB[n%2]+rr}")
                        ex.append(f"v_bfi_b32 v{PB[n%2]+rr}, v{PM+rr}, 0, v{PB[n%2]+rr}")
                fill += ex
                if blocks[n] == (order[-1], 1) and not pd:
                    for x in mfs[:2]: emit(x)
                    for x in kread(8, kbuf[8]): emit(x)
                    mfs = pv + mfs[2:]; pv = []
            weave(mfs + pv, fill) if fill else [emit(x) for x in mfs + pv]
        A(f"v_min_f32 v48, v{OA[0]+12}, v{OA[1]}\nv_max_f32 v49, v{OA[0]+12}, v{OA[1]}\nv_cmp_u_f32 s[36:37], v{OA[0]+12}, v{OA[1]}")
        A(f"v_cmp_gt_f32 vcc, {fhex(2.0**-60)}, v48\ns_or_b64 s[36:37], s[36:37], vcc\nv_cmp_lt_f32 vcc, {fhex(2.0**60)}, v49\ns_or_b64 s[36:37], s[36:37], vcc\ns_cbranch_scc1 main_slow")
        if self.o.get("forceslow"): A("s_branch main_slow")
        A.lab("main_slow_back")
        self.slow_attention(OA, Q1, Q2)
        A("s_barrier")
        if self.o.get("estest"):
            LT = A.newlab("t"); A(f"s_cmp_lg_u32 s{LAY}, 0\ns_cbranch_scc1 {LT}"); self.early_signal(True); A.lab(LT)
        self.early_signal()
        self.stamp('p2.main')
        ra, rb = 48, 49
        A(f"v_rcp_f32 v{ra}, v{OA[0]+12}\nv_rcp_f32 v{rb}, v{OA[1]}")
        A(f"s_nop 0")
        def pk(dst, r, rs):
            for i in range(4): A(f"v_mul_f32 v{r+i}, v{rs}, v{r+i}")
            A(f"v_cvt_pk_bf16_f32 v{dst}, v{r}, v{r+1}\nv_cvt_pk_bf16_f32 v{dst+1}, v{r+2}, v{r+3}")
        pk(52, OA[0]+4, ra); pk(54, OA[0]+8, ra)
        A.vmem(f"buffer_store_dwordx4 {v(52,4)}, v{VO1}, {WS}, s{SL} offen {self.st}")
        pk(56, OA[1]+4, rb); pk(58, OA[1]+8, rb)
        A.vmem(f"buffer_store_dwordx4 {v(56,4)}, v{VO1}, {WS}, s{SL} offen offset:768 {self.st}")
        pk(60, OA[0], ra); pk(62, OA[1]+12, rb)
        A("s_mov_b32 exec_lo, 0")
        A.vmem(f"buffer_store_dwordx4 {v(60,4)}, v{VO3}, {WS}, s{SL} offen offset:512 {self.st}", 'out')
        A("s_mov_b32 exec_lo, -1")

    def slow_attention(self, OA, Q1, Q2):
        B = Asm(); B.uid = 9000
        S_, P_, K_, V_, C_, M_, AK, AKS, AV, NI = 48, 96, 162, 184, 208, 64, 65, 66, 67, 68
        I, I0 = T[0], T[1]
        B.lab("main_slow")
        B(f"s_lshl_b32 s{I0}, s{MB}, 2\ns_add_u32 s{I0}, s{I0}, s{WV}\ns_min_u32 s{I0}, s{I0}, 8\ns_sub_u32 s{I0}, 8, s{I0}\nv_mov_b32 v{NI}, 0xff800000")
        def scores(hd, c, tag):
            B(f"s_mul_i32 s3, s{I}, 2560\nv_add_u32 v{AK}, s3, v{VK}\nv_add_u32 v{AKS}, s3, v{VKS}\ns_mul_i32 s3, s{I}, 3328\nv_add_u32 v{AV}, s3, v{VV}")
            B(f"ds_read_b64 {v(K_,2)}, v{AKS}\nds_read_b128 {v(K_+2,4)}, v{AK}\nds_read_b128 {v(K_+6,4)}, v{AK} offset:1024\ns_waitcnt lgkmcnt(0)")
            B(f"v_mfma_f32_32x32x16_bf16 {v(S_,16)}, {v(K_+2+4*hd,4)}, {v(Q1[hd],4)}, {c}\nv_mfma_f32_32x32x16_bf16 {v(S_,16)}, {v(K_,4)}, {v(Q2[hd],4)}, {v(S_,16)}\ns_nop 15")
            B(f"s_cmp_lg_u32 s{I}, 0\ns_cbranch_scc1 {tag}_a")
            for r in range(16): B(f"v_cndmask_b32 v{S_+r}, v{S_+r}, v{NI}, s[{MASK+2*r}:{MASK+2*r+1}]")
            B.lab(f"{tag}_a")
            B(f"s_cmp_lg_u32 s{I}, 8\ns_cbranch_scc1 {tag}_b")
            for r in range(16): B(f"v_cndmask_b32 v{S_+r}, v{NI}, v{S_+r}, s[{MASK+2*r}:{MASK+2*r+1}]")
            B.lab(f"{tag}_b")
        for hd in range(2):
            B(f"v_mov_b32 v{M_}, v{NI}\ns_mov_b32 s{I}, s{I0}")
            B.lab(f"main_max{hd}")
            scores(hd, '0', f"main_m{hd}")
            for r in range(0, 16, 2): B(f"v_max3_f32 v{M_}, v{M_}, v{S_+r}, v{S_+r+1}")
            B(f"s_add_u32 s{I}, s{I}, 1\ns_cmp_le_u32 s{I}, 8\ns_cbranch_scc1 main_max{hd}")
            B(f"v_mov_b32 v{M_+5}, v{M_}\nv_permlane32_swap_b32 v{M_}, v{M_+5}\nv_max_f32 v{M_}, v{M_}, v{M_+5}")
            for r in range(16): B(f"v_sub_f32 v{C_+r}, 0, v{M_}\nv_mov_b32 v{OA[hd]+r}, 0")
            B(f"s_mov_b32 s{I}, s{I0}\ns_nop 1")
            B.lab(f"main_sum{hd}")
            scores(hd, v(C_, 16), f"main_s{hd}")
            for aa in range(2):
                for p in range(2): B(f"ds_read_b64_tr_b16 {v(V_+4*aa+2*p,2)}, v{AV} offset:{(4*aa+2*p)*416 + 192*hd}")
            for r in range(16): B(f"v_exp_f32 v{S_+r}, v{S_+r}")
            for r in range(8): B(f"v_cvt_pk_bf16_f32 v{P_+r}, v{S_+2*r}, v{S_+2*r+1}")
            B("s_waitcnt lgkmcnt(0)")
            for aa in range(2): B(f"v_mfma_f32_32x32x16_bf16 {v(OA[hd],16)}, {v(V_+4*aa,4)}, {v(P_+4*aa,4)}, {v(OA[hd],16)}")
            B(f"s_nop 7\ns_add_u32 s{I}, s{I}, 1\ns_cmp_le_u32 s{I}, 8\ns_cbranch_scc1 main_sum{hd}")
        B("s_nop 15\ns_branch main_slow_back")
        self.rare.append(B.render())

    def proj_setup(self, khoff):
        A = self.A; ACC, B0 = 64, 124
        A(f"s_mul_i32 s{T[7]}, s{KH}, {khoff}")
        for k in range(3): A(f"v_add_u32 v{B0+k}, s{T[7]}, v{[VL16, VB1, VB2][k]}")
        for k in range(10):
            A(f"v_lshlrev_b32 v{ACC+2*k}, 16, v{RES+k}\nv_and_b32 v{ACC+2*k+1}, 0xffff0000, v{RES+k}")

    def proj_loop(self, nb, wl, sched, hook, t0=0, nreg=0, go=None, side=None):
        A = self.A; ACC, WFB, B0 = 64, [104, 176], 124
        bases = [B0, B0+1, B0+2]
        if go and not self.o.get("onebar", 0): self.go(*go); go = None
        for t in range(5): A.lds(f"ds_read_b128 {v(WFB[0]+4*t,4)}, {self.ldsaddr(wl(0) + 1024*t, bases)}", ('f', 0))
        if go: self.go(*go)
        fill = []
        for b in range(nb):
            hook(b, fill)
            fill += sched[t0 + b]
            self.need(('a5', b), fill)
            A.wait_lg(('f', b))
            for t in range(5):
                for u in range(2):
                    d = ACC + 20*u + 4*t
                    wop = v(WFB[b&1]+4*t, 4) if b < nb - nreg else self.wreg(b, t)
                    A(f"v_mfma_f32_16x16x32_bf16 {v(d,4)}, {wop}, {a(8*(b % 20)+4*u,4)}, {'0' if (b == 0 and u == 1) else v(d,4)}")
                    k = 2*t + u
                    if k < 5 and b < nb - 1 - nreg: A.lds(f"ds_read_b128 {v(WFB[(b+1)&1]+4*k,4)}, {self.ldsaddr(wl(b+1) + 1024*k, bases)}", ('f', b+1))
                    if k >= 4: self.drain(fill, 2)
                    if side: self.drain(side[0], side[1])
        while fill: self.emit(fill.pop(0))

    def wreg(self, b, t):
        if b >= 22:
            f = 5*(b - 22) + t
            return a(160 + 4*f, 4) if f < 24 else v(240, 4)
        return v({21: [236, 244, 248, 208, 212], 20: [44, 48, 52, 56, 60]}[b][t], 4)

    def wreg_load(self):
        A = self.A; nreg = self.o.get("nreg5", 5); L = A.newlab("wr")
        keep = self.o.get("wrkeep", 1) and not self.es
        for b in range(27 - nreg, 27):
            if keep and b == max(22, 27 - nreg): A(f"s_cmp_lg_u32 s{LAY}, 0\ns_cbranch_scc1 {L}")
            A(f"s_mul_i32 s{T[6]}, s{KH}, 10240\ns_add_u32 s{T[6]}, s{T[6]}, s{S_W5}\ns_add_u32 s{T[6]}, s{T[6]}, {(4*(b >> 1) + (b & 1))*5120}\ns_add_u32 s{T[7]}, s{T[6]}, 4096")
            for t in range(5): A(f"buffer_load_dwordx4 {self.wreg(b, t)}, v{VL16}, {WS}, s{T[6 + t//4]} offen offset:{1024*(t & 3)} {self.ldw}")
        if keep: A.lab(L)

    def p3(self):
        A = self.A; o = self.o; SA0, SA1 = T[4], T[5]
        whole = o.get("whole3", 1)
        if whole:
            A(f"s_mul_i32 s{SA0}, s{S_A3}, {20*1024}\ns_add_u32 s{SA0}, s{SA0}, s{SL}\ns_add_u32 s{SA0}, s{SA0}, {OO}\ns_add_u32 s{SA1}, s{SA0}, {10*1024}")
        else:
            for sa, m in ((SA0, S_A3), (SA1, S_A3B)):
                A(f"s_mul_i32 s{sa}, s{m}, {20*1024}\ns_add_u32 s{sa}, s{sa}, s{SL}\ns_mul_i32 s{T[7]}, s{KH}, {10*1024}\ns_add_u32 s{sa}, s{sa}, s{T[7]}\ns_add_u32 s{sa}, s{sa}, {OO}")
        def aload(b):
            L = []
            if b and b % 4 == 0: L += [f"s_add_u32 s{SA0}, s{SA0}, 4096", f"s_add_u32 s{SA1}, s{SA1}, 4096"]
            for u, sa in enumerate((SA0, SA1)):
                L.append(('vm', f"buffer_load_dwordx4 {a(8*b+4*u,4)}, v{VL16}, {WS}, s{sa} offen offset:{(b&3)*1024} {self.ld}", ('a5', b)))
            return L
        up = o.get("up3", 6)
        for b in range(up): [self.emit(x) for x in aload(b)]
        early = o.get("early4", 2); gate = o.get("gate3", 2) if self.es else 0
        preload = ('vm', f"s_mov_b64 exec, 1\nbuffer_load_dword v253, v{VCNT}, {WS}, 0 offen sc1\ns_mov_b64 exec, -1", 'fl')
        if self.es:
            assert whole
            self.mark_x(X1)
            self.reload("main_rl3", 0x280, [f"s_mul_i32 s3, s{S_A3}, {20*1024}\ns_add_u32 s3, s3, s{SL}\ns_add_u32 s3, s3, {OO + (10*u + b)*1024}\nbuffer_load_dwordx4 {a(8*b+4*u,4)}, v{VL16}, {WS}, s3 offen sc1" for b in range(up) for u in range(2)])
        sched = self.edf([(gate, b, aload(b)) for b in range(up, 10)] + [(4, 20 + c, self.rnd(S_W4, c*16384, c*16384, 4, 'w4')) for c in range(early)], 10, o.get("r3", 3.0))
        self.proj_setup(5120)
        if whole:
            ACC = 64; bases = [VL16, VB1, VB2]; WFS = [104 + 4*k for k in range(5)] + [128 + 4*k for k in range(5)]
            rd = lambda n: A.lds(f"ds_read_b128 {v(WFS[n % 10],4)}, {self.ldsaddr(lds3(n // 10) + (n % 10)*1024, bases)}", ('f', n))
            for n in range(10): rd(n)
            self.go(('a5', 0), 'p3.go')
            fill = []
            for n in range(100):
                if n % 10 == 0:
                    b = n // 10
                    if n == 40 and early: A("s_barrier")
                    assert not any(isinstance(x, str) and "vccnz" in x for x in fill)
                    if self.es and b == 0:
                        for x in self.verify([0, 4], "main_rl3"): A(x)
                    if self.es and b == max(gate - 2, 0): self.emit(preload)
                    if self.es and b == gate:
                        A.wait_vm('fl'); self.flag_check(253, 0x290)
                    fill += sched[b]
                    self.need(('a5', b), fill)
                    if self.es and b + 1 < up: fill = [('wv', ('a5', b + 1))] + self.verify([8*b + 8, 8*b + 12], "main_rl3") + fill
                if n % 2 == 0: A.wait_lg(('f', n + 1))
                d = ACC + 4*(n % 5)
                A(f"v_mfma_f32_16x16x32_bf16 {v(d,4)}, {v(WFS[n % 10],4)}, {a(4*(n // 5),4)}, {v(d,4)}")
                if n + 10 < 100: rd(n + 10)
                if n % 2: self.drain(fill, 2)
            while fill: self.emit(fill.pop(0))
            A("s_barrier")
            self.early_signal()
        else:
            self.proj_loop(10, lds3, sched, lambda b, fill: A("s_barrier") if b == 4 and early else None, go=(('a5', 0), 'p3.go'))
        self.stamp('p3.main')
        self.proj_epilogue(3, None if whole else XCH3)

    def flag_check(self, reg, code):
        A = self.A; L = A.newlab("fc")
        A(f"s_mov_b64 exec, {self.shm}\nv_cmp_gt_u32 vcc, s{TGT}, v{reg}\ns_cbranch_vccz {L}")
        self.spin(VCNT, f"s{TGT}", code)
        A.lab(L); A("s_mov_b64 exec, -1")

    def signal(self):
        A = self.A; L = A.newlab("sg")
        A(f"s_add_u32 s{TGT}, s{TGT}, {16 // self.nsh}\ns_cmp_lg_u32 s{WV}, 0\ns_cbranch_scc1 {L}\ns_mov_b64 exec, 1\nv_mov_b32 v252, 1\n{self.shoff()}buffer_atomic_add v252, v{VCNT}, {WS}, s3 offen sc1\ns_mov_b64 exec, -1")
        A.lab(L)

    def ffn(self):
        A = self.A; o = self.o
        ACC, STD, MU, RS, AP, PK = 64, 224, 216, 217, 220, 224
        WFS = [176 + 4*k for k in range(8)]
        SA, SA0, SA1, SH1, SH1B, SH2 = T[4], T[4], T[5], T[0], T[1], T[3]
        nreg = o.get("nreg5", 5)
        nc5 = (27 - nreg + 1) // 2
        sizes = [4]*10 + [3]*10 + [5]*nc5
        addr = []; p = 0
        for k, kb in enumerate(sizes):
            if k == 10: p = o.get("g2at", 24576)
            if p + kb*4096 > LDS_MISC: p = 0
            addr.append(p); p += kb*4096
        if M16:
            BA, BB, BC, VA, RS1, AP1 = [44, 45, 46], [47, 48, 49], 50, [51, 52], 218, 56
            el = lambda k, g, t, x: (40*g + k + (2*t + x >= 4 - g), (ACC + 64*g + 16*t + 4*x, ACC + 64*g + 16*t + 8 + 4*x),
                                     addr[10*g + (k >> 2)] + (k & 3)*(4 - g)*1024 + 1024*t + 256*x, (a(4*k, 4), a(4*k + 4, 4)), k == 0, (BA, BB)[g])
            ce = lambda g, t, x: (39 + 40*g, (ACC + 64*g + 16*t + 4*x, ACC + 64*g + 16*t + 8 + 4*x), (CSF4 + 4096*g + 1024*t + 256*x) & 0xffff, (v(AP, 4), v(AP1, 4)), False, [BC])
            seq = []
            for g in range(2):
                seq += [el(k, g, t, x) for k in range(0, 40, 2) for t in range(4 - g) for x in range(2)]
                seq += [ce(g, t, x) for t in range(4 - g) for x in range(2)]
            n1 = 168
            A(f"v_lshrrev_b32 v53, 5, v{VL}\nv_bfe_u32 v54, v{VL}, 4, 1\nv_and_b32 v55, 15, v{VL}\nv_lshlrev_b32 v55, 4, v55\nv_lshl_add_u32 v55, v54, 9, v55")
            A(f"v_lshl_add_u32 v{VA[0]}, v53, 10, v55\nv_add_u32 v{VA[1]}, 256, v{VA[0]}\nv_lshl_add_u32 v{BA[0]}, v53, 12, v55\nv_mul_u32_u24 v53, 3072, v53\nv_add_u32 v{BB[0]}, v53, v55\nv_add_u32 v{BC}, {CSF4 & ~0xffff}, v55")
        else:
            seq = [(k, ACC + 16*t, addr[k >> 2] + (k & 3)*4096 + 1024*t, a(4*k, 4), k == 0) for k in range(40) for t in range(4)]
            seq += [(39, ACC + 16*t, CSF4 + 1024*t, v(AP, 4), False) for t in range(4)]
            seq += [(40 + k, ACC + 64 + 16*t, addr[10 + (k >> 2)] + (k & 3)*3072 + 1024*t, a(4*k, 4), k == 0) for k in range(40) for t in range(3)]
            seq += [(79, ACC + 64 + 16*t, CSF4 + 4096 + 1024*t, v(AP, 4), False) for t in range(3)]
            n1 = 164
        vis = lambda nf: seq[max(nf - len(WFS), 0)][0]
        npre = o.get("npre4", 6)
        ch = [(S_W4, c*16384, 4, addr[c], vis(16*c), 4*c + 3, c < npre) for c in range(10)]
        ch += [(S_W4B, 163840 + c*12288, 3, addr[10 + c], vis(n1 + 12*c), 43 + 4*c, False) for c in range(10)]
        ch += [(S_W5, c*20480, 5, addr[20 + c], max(80, 79 + 2*c), 81 + 2*c, False) for c in range(nc5)]
        bars = list(range(1, 40, o.get("b4a", 4))) + list(range(41, 80, o.get("b4b", 4))) + [80] + list(range(81, 107, o.get("b5", 2)))
        if o.get("b4a", 4) == 8: bars = sorted(set(bars) - set(range(1, 40, 8)) | set(range(5, 40, 8)))
        jobs, valid, used = self.plan(ch, bars)
        lastbar = max(b for b in used)
        live = [(c[3], c[3] + 20480) for c in ch[20:] if c[5] >= lastbar]
        xch = [x for x in (0, 57344, 77824, 98304, 118784, 126976) if all(x + 20480 <= lo or hi <= x for lo, hi in live)][0]
        wl5 = lambda b: addr[20 + (b >> 1)] + (b & 1)*5120
        A(f"s_add_u32 s{SA}, s{SL}, s{S_A1}\ns_add_u32 s{SA}, s{SA}, {X1}")
        if not self.es: self.stats_load(ST3, STD)
        def aload(st_):
            L = [f"s_add_u32 s{SA}, s{SA}, 4096"] if st_ and st_ % 4 == 0 else []
            if M16: return L + [('vm', f"buffer_load_dwordx4 {a(4*st_,4)}, v{VA[st_ & 1]}, {WS}, s{SA} offen offset:{(st_ & 2)*1024} {self.ld}", ('a', st_))]
            return L + [('vm', f"buffer_load_dwordx4 {a(4*st_,4)}, v{VL16}, {WS}, s{SA} offen offset:{(st_ & 3)*1024} {self.ld}", ('a', st_))]
        def aload5(b):
            L = []
            if b == 0:
                for sa, m in ((SA0, S_A3), (SA1, S_A3B)):
                    L.append(f"s_mul_i32 s{sa}, s{m}, {54*1024}\ns_add_u32 s{sa}, s{sa}, s{SL}\ns_lshl_b32 s3, s{KH}, 10\ns_add_u32 s{sa}, s{sa}, s3\ns_add_u32 s{sa}, s{sa}, {HH}")
            elif b % 2 == 0: L += [f"s_add_u32 s{SA0}, s{SA0}, 4096", f"s_add_u32 s{SA1}, s{SA1}, 4096"]
            for u, sa in enumerate((SA0, SA1)):
                L.append(('vm', f"buffer_load_dwordx4 {a(8*(b % 20)+4*u,4)}, v{VL16}, {WS}, s{sa} offen offset:{(b&1)*2048} {self.ld}", ('a5', b)))
            return L
        up = o.get("up4", 10); chk1 = o.get("chk1", 77); chk2 = o.get("chk2", 10)
        for k in range(up): [self.emit(x) for x in aload(k)]
        gate = o.get("gate4", 4) if self.es else 0
        if self.es:
            self.reload("main_rl4", 0x380, [f"s_add_u32 s3, s{SL}, s{S_A1}\ns_add_u32 s3, s3, {X1 + k*1024}\nbuffer_load_dwordx4 {a(4*k,4)}, v{VL16}, {WS}, s3 offen sc1" for k in range(up)])
            L1 = A.newlab("m1")
            A(f"s_cmp_lg_u32 s{LAY}, 0\ns_cbranch_scc1 {L1}")
            self.mark_x(LS + XA); self.colsums(lambda: None, 0)
            A.lab(L1)
        jobs += [(gate, k - (k & 1)*M16, aload(k)) for k in range(up, 40)]
        if M16:
            for B_ in (BA, BB): A(f"v_add_u32 v{B_[1]}, 0x10000, v{B_[0]}\nv_add_u32 v{B_[2]}, 0x20000, v{B_[0]}")
        if self.es and nreg:
            wr = self.capture(self.wreg_load)
            jobs.append((o.get("wrat", 47), 79, [('vm', x, 'wr') if x.startswith("buffer") else x for x in wr]))
        jobs += [(chk1 if b < 15 else max(80 + chk2, 80 + b - 19), 79.6 + (b >= o.get("up5", 5))*(b - 0.6), aload5(b), 80 + b) for b in range(27)]
        r4a, r4b, r4c, r5 = o.get("r4a", 1.85), o.get("r4b", 1.3), o.get("r4c", 2.5), o.get("r5", 3.5)
        sched = self.edf(jobs, 107, lambda k: r4a if k < 40 else (0 if k < o.get("quiet4", 47) else (r4b if k < chk1 else (r4c if k < 80 else (o.get("r5a", r5) if k < 80 + o.get("k5", 0) else (r5 if k < 80 + chk2 else o.get("r5c", r5)))))))
        assert not any(isinstance(x, tuple) and x[2] in [('a5', b) for b in range(chk1 - 40 >> 1, 27)] for k in range(80) for x in sched[k])
        if o.get("verbose"): print("addr", addr, "xch", xch, "valid", valid, {k: [x[2] for x in L if isinstance(x, tuple)] for k, L in sched.items()})
        A(f"s_add_u32 s{SH1}, s{SL}, s{S_H}\ns_add_u32 s{SH1}, s{SH1}, {HH}\ns_mul_i32 s{SH2}, s{J}, 1536\ns_add_u32 s{SH2}, s{SH2}, s{SH1}\ns_add_u32 s{SH2}, s{SH2}, {63*512}")
        A(f"s_lshl_b32 s3, s{J}, 11\ns_add_u32 s{SH1}, s{SH1}, s3\ns_mov_b32 s{SH1B}, s{SH1}\ns_cmp_eq_u32 s{J}, 15\ns_cmov_b32 s{SH1B}, {OOB}\ns_cmov_b32 s{SH2}, {OOB}")
        sched[28] += [('wv', 'st')] + self.stats_finish(STD, MU, RS) + [f"v_mul_f32 v{RS}, v{RS}, v{RS}"]
        if M16:
            sched[28] += [f"v_mov_b32 v{RS1}, v{RS}", f"v_mov_b32 v{RS1+1}, v{MU}", f"v_permlane16_swap_b32 v{RS}, v{RS1}", f"v_permlane16_swap_b32 v{MU}, v{RS1+1}",
                          f"s_mov_b32 exec_lo, 0xffff0000\nv_mov_b32 v{MU}, 0\nv_mov_b32 v{RS1+1}, 0\ns_mov_b32 exec_lo, -1"] + self.split3(RS1+1, AP1, STD)
        sched[28] += self.split3(MU, AP, STD)
        def epi(t0, t1, tag):
            body = []
            for t in range(t0, t1):
                r = ACC + 16*t; pk = PK + 4*(t % 3)
                for hf in range(2):
                    g = r + 8*hf; rs = RS1 if M16 and hf else RS
                    for i in range(4): body += [f"v_max_f32 v{g+i}, 0, v{g+i}", f"v_mul_f32 v{g+4+i}, v{rs}, v{g+4+i}"]
                    body += [f"v_mul_f32 v{g+i}, v{g+i}, v{g+4+i}" for i in range(4)]
                    body += [f"v_cvt_pk_bf16_f32 v{pk+2*hf}, v{g}, v{g+1}", f"v_cvt_pk_bf16_f32 v{pk+2*hf+1}, v{g+2}, v{g+3}"]
                sb, im = (SH1 if t < 3 else SH1B, 512*t) if t < 4 else (SH2, 512*(t-4))
                st_ = [('vm', f"buffer_store_dwordx4 {v(pk,4)}, v{VH}, {WS}, s{sb} offen offset:{im} {self.st}", tag)]
                if M16: st_ = [f"v_permlane16_swap_b32 v{pk}, v{pk+2}", f"v_permlane16_swap_b32 v{pk+1}, v{pk+3}"] + st_
                if M16 and t + 1 < t1: late = st_; body.append(('later', late))
                else: body += st_
            out = []; held = []
            for x in body:
                if isinstance(x, tuple) and x[0] == 'later': held = [2, x[1]]; continue
                out.append(x)
                if held:
                    held[0] -= 1
                    if not held[0]: out += held[1]; held = []
            return out
        epi1 = epi(0, 4, 'h1')
        preload = ('vm', f"s_mov_b64 exec, {self.shm}\nbuffer_load_dword v253, v{VCNT}, {WS}, 0 offen sc1\ns_mov_b64 exec, -1", 'fl')
        sig1 = o.get("sig1", 57)
        def at_step(st_, fill):
            if st_ in used or st_ == sig1:
                for tag in valid.get(st_, []): self.need(tag, fill)
                if st_ == sig1:
                    assert not epi1
                    A.wait_vm('h1')
                A("s_barrier")
                if st_ == sig1: self.signal()
                if o.get("in4") and st_ > 40: self.stamp(f'g.{st_}')
            if st_ == 40: self.stamp('p4.g1')
            if st_ == chk1 - o.get("fl1", 4): fill.insert(0, preload)
            if st_ == chk1:
                self.need('fl', fill); self.flag_check(253, 0x400); self.stamp('p4.chk')
            self.es_hooks(st_, fill, up, gate, "main_rl4", 0x390, lambda: self.stats_load(ST3, STD, 99))
            fill += sched[st_]
            if st_ < 40: self.need(('a', st_ | M16), fill)
        self.run32(seq, WFS, sched, at_step, (epi1, n1 + 1 + M16, o.get("epirate", 4)), (('a', M16), 'p4.go'))
        self.stamp('p4.main')
        epi2 = epi(4, 7, 'h2')
        if not o.get("epi2rate", 0):
            while epi2: self.emit(epi2.pop(0))
        self.stamp('p4.epi')
        self.proj_setup(10240)
        for tag in valid.get(80, []): A.wait_vm(tag)
        A.wait_vm(('a5', 0)); A("s_barrier")
        self.stamp('p5.go')
        sig2 = o.get("sig2", 3)
        def hook(b, fill):
            if 80 + b in used and b or b == sig2:
                for tag in valid.get(80 + b, []): self.need(tag, fill)
                if b == sig2:
                    assert not epi2
                    A.wait_vm('h2')
                A("s_barrier")
                if b == sig2: self.signal()
            if b == chk2 - o.get("fl2", 2): fill.insert(0, preload)
            if o.get("in5") and b in (4, chk2, 15, 20): self.stamp(f'p5.b{b}')
            if b == chk2:
                self.need('fl', fill); self.flag_check(253, 0x480)
                if o.get("in5"): self.stamp('p5.chk')
        self.proj_loop(27, wl5, sched, hook, 80, nreg, side=(epi2, o.get("epi2rate", 0)))
        self.stamp('p5.main')
        self.proj_epilogue(5, xch)

    def proj_epilogue(self, which, xo):
        A = self.A; o = self.o; ACC, WF, B0 = 64, 112, 136; ntail = 0
        fill = []
        if which == 3:
            e0 = o.get("early4", 2) * 16; e1 = e0 + o.get("post4", 33)
            n3 = -(-(o.get("npre4", 6)*16 - e1) // 3)
            assert e1*1024 <= XCH3 and (e1 + 3*n3)*1024 <= LDS_MISC and (not self.es or n3 <= 0)
            self.post = (S_W4, e0*1024, e0*1024, e1 - e0)
            self.pre = lambda: self.colsums(lambda: self.rnd3(S_W4, e1*1024, e1*1024, n3), n3)
        else:
            self.pre1 = o.get("pre1", 6)
            assert xo + 20480 <= 20480 or xo >= 20480 + 36864
            assert not self.es or self.pre1 == 3
            self.post = (S_W1, 0, 20480, 36)
            self.pre = lambda: self.rnd3(S_W1, 36864, 20480 + 36864, 4*(self.pre1 - 3))
        if xo is not None:
            A(f"v_add_u32 v{B0}, {xo}, v{VXW}\nv_add_u32 v{B0+1}, {xo}, v{VXR}")
            for t in range(5): A.lds(f"ds_write_b128 v{B0}, {v(ACC+20+4*t,4)} offset:{1024*t}")
            A.wait_lg0(); A("s_barrier")
            for t in range(5): A.lds(f"ds_read_b128 {v(ACC+20+4*t,4)}, v{B0+1} offset:{1024*t}", ('x', t))
            self.early_signal()
        if which == 5:
            A(f"s_cmp_lg_u32 s{LAY}, 0\ns_cbranch_scc1 main_final")
            self.fin_state = (list(A.lg), ACC); self.fin_x = xo
        body = []
        for t in range(5):
            if xo is not None:
                body.append(('wl', ('x', t)))
                body += [f"v_pk_add_f32 {v(ACC+4*t+i,2)}, {v(ACC+4*t+i,2)}, {v(ACC+20+4*t+i,2)}" for i in (0, 2)]
            body += [f"v_cvt_pk_bf16_f32 v{RES+2*t}, v{ACC+4*t}, v{ACC+4*t+1}", f"v_cvt_pk_bf16_f32 v{RES+2*t+1}, v{ACC+4*t+2}, v{ACC+4*t+3}"]
        xoff = X1 if which == 3 else LS + XA
        soff = ST3 if which == 3 else LS + STA
        A(f"s_add_u32 s{T[4]}, s{SL}, s{S_X}\ns_add_u32 s{T[4]}, s{T[4]}, {xoff}\ns_add_u32 s{T[5]}, s{T[4]}, 4096\ns_add_u32 s{T[6]}, s{SL}, s{S_STX}\ns_add_u32 s{T[6]}, s{T[6]}, {soff}")
        body.append(('vm', f"buffer_store_dwordx4 {v(RES,4)}, v{VX}, {WS}, s{T[4]} offen {self.st}", 'out'))
        body.append(('vm', f"buffer_store_dwordx4 {v(RES+4,4)}, v{VX}, {WS}, s{T[4]} offen offset:2048 {self.st}", 'out'))
        t4 = WF
        body += [f"v_mov_b32 v{t4+k}, v{RES+8+(k&1)}" for k in range(6)]
        body += [f"v_permlane32_swap_b32 v{t4+4}, v{t4+2}", f"v_permlane32_swap_b32 v{t4+5}, v{t4+3}"]
        body.append(('vm', f"s_mov_b32 exec_hi, 0\nbuffer_store_dwordx4 {v(t4,4)}, v{VX}, {WS}, s{T[5]} offen {self.st}\ns_mov_b32 exec_hi, -1", 'out'))
        s0, s1 = WF + 8, WF + 9
        p0, p1 = WF + 12, WF + 14
        body += [f"v_pk_add_f32 {v(p0,2)}, {v(ACC,2)}, {v(ACC+2,2)}", f"v_pk_mul_f32 {v(p1,2)}, {v(ACC,2)}, {v(ACC,2)}", f"v_pk_fma_f32 {v(p1,2)}, {v(ACC+2,2)}, {v(ACC+2,2)}, {v(p1,2)}"]
        for i in range(4, 20, 2): body += [f"v_pk_add_f32 {v(p0,2)}, {v(p0,2)}, {v(ACC+i,2)}", f"v_pk_fma_f32 {v(p1,2)}, {v(ACC+i,2)}, {v(ACC+i,2)}, {v(p1,2)}"]
        body += [f"v_add_f32 v{s0}, v{p0}, v{p0+1}", f"v_add_f32 v{s1}, v{p1}, v{p1+1}"]
        for sw in ("v_permlane16_swap_b32", "v_permlane32_swap_b32"):
            body += [f"v_mov_b32 v{s0+2}, v{s0}", f"v_mov_b32 v{s0+3}, v{s1}", f"{sw} v{s0}, v{s0+2}", f"{sw} v{s1}, v{s0+3}", f"v_add_f32 v{s0}, v{s0}, v{s0+2}", f"v_add_f32 v{s1}, v{s1}, v{s0+3}"]
        self.mix(body, fill, 7)
        while fill: self.emit(fill.pop(0))
        A("s_mov_b64 exec, 0xffff")
        A.vmem(f"buffer_store_dwordx2 {v(s0,2)}, v{VSX}, {WS}, s{T[6]} offen {self.st}", 'out')
        A("s_mov_b64 exec, -1")

    def final(self):
        A = self.A; t = VFREE
        A.lab("main_final")
        A.lg, ACC = self.fin_state
        xo = self.fin_x
        A(f"s_xor_b32 s3, s{WV}, 1\ns_mul_i32 s3, s3, 5120\ns_add_u32 s3, s3, {xo}\nv_and_b32 v{t}, 15, v{VL}\nv_mul_u32_u24 v{t}, 176, v{t}\nv_lshrrev_b32 v{t+1}, 4, v{VL}\nv_lshl_add_u32 v{t}, v{t+1}, 3, v{t}\nv_add_u32 v{t}, s3, v{t}")
        for n in range(3):
            A(f"v_add_u32 v{t+1}, {64*n}, v{VL}\nv_mul_u32_u24 v{t+2}, 6554, v{t+1}\nv_lshrrev_b32 v{t+2}, 16, v{t+2}\nv_mul_u32_u24 v{t+3}, 10, v{t+2}\nv_sub_u32 v{t+3}, v{t+1}, v{t+3}\nv_lshlrev_b32 v{t+3}, 4, v{t+3}")
            A(f"v_mad_u32_u24 v{t+4+n}, v{t+2}, s3, v{t+3}".replace("s3", f"v{t+11}") if False else f"v_mul_u32_u24 v{t+4+n}, 176, v{t+2}\nv_add3_u32 v{t+4+n}, v{t+4+n}, v{t+3}, s3\nv_mul_u32_u24 v{t+8+n}, 1280, v{t+2}\nv_add_u32 v{t+8+n}, v{t+8+n}, v{t+3}")
        A(f"s_lshl_b32 s{T[4]}, s{S_A3}, 4\ns_mul_i32 s{T[4]}, s{T[4]}, 1280\ns_mul_i32 s{T[5]}, s{CT}, 160\ns_add_u32 s{T[4]}, s{T[4]}, s{T[5]}")
        A.wait_lg0()
        for k in range(5):
            for i in (0, 2): A(f"v_pk_add_f32 {v(ACC+4*k+i,2)}, {v(ACC+4*k+i,2)}, {v(ACC+20+4*k+i,2)}")
            A(f"v_cvt_pk_bf16_f32 v{RES+2*k}, v{ACC+4*k}, v{ACC+4*k+1}\nv_cvt_pk_bf16_f32 v{RES+2*k+1}, v{ACC+4*k+2}, v{ACC+4*k+3}")
            A(f"ds_write_b64 v{t}, {v(RES+2*k,2)} offset:{32*k}")
        A("s_waitcnt lgkmcnt(0)")
        for n in range(3): A(f"ds_read_b128 {v(112+4*n,4)}, v{t+4+n}")
        for n in range(3):
            A(f"s_waitcnt lgkmcnt({2-n})")
            if n == 2: A("s_mov_b32 exec_hi, 0")
            A(f"buffer_store_dwordx4 {v(112+4*n,4)}, v{t+8+n}, {OS}, s{T[4]} offen {self.o.get('stout', 'nt')}")
        A("s_mov_b32 exec_hi, -1")

    def gen(self):
        A = self.A
        o_big = False
        def stop(name):
            if self.stop == name: A.wait_all(); A("s_branch main_done")
        self.setup()
        self.stamp('start')
        if self.o.get("entry"): A(f"v_writelane_b32 v{VPROF}, s94, 31")
        self.p1_first()
        A.lab("main_layer")
        self.kv_sync(); stop("p1")
        self.p2()
        if self.es:
            self.early_sync((S_W3, 61440, lds3(6), 40), 0x200, 1)
            self.p3()
            self.early_sync(self.post, 0x300, 2)
            self.ffn()
            self.early_sync(self.post, 0x500, 3)
        else:
            n2 = self.o.get("post2", 42)
            self.cluster_sync((S_W3, 61440, lds3(6), n2) if n2 else None, (lambda: self.rnd3(S_W3, 61440 + n2*1024, lds3(6) + n2*1024, -(-(40 - n2) // 3))) if n2 < 40 else None,
                              0x200, self.wreg_load if self.o.get('nreg5', 5) else None); stop("p2")
            self.p3()
            self.cluster_sync(self.post, self.pre, 0x300); stop("p3")
            self.ffn()
            self.cluster_sync(self.post, self.pre, 0x500); stop("p5")
        A(f"s_mov_b32 s{LAY}, 1\ns_add_u32 s{SL}, s{SL}, {LS}\ns_mov_b32 s{S_PB}, {64 if o_big else 32}")
        self.stamp('start')
        self.p1()
        A("s_branch main_layer")
        self.final()
        A.lab("main_done")
        if self.prof:
            A.wait_all()
            if self.stop: A(f"s_mov_b32 s{S_PB}, 32")
            self.stamp('end')
            A(f"s_cmp_lg_u32 s{WV}, 0\ns_cbranch_scc1 main_end\ns_lshl_b32 s3, s2, 8\ns_add_u32 s3, s3, {PROF}\nv_lshlrev_b32 v{VFREE}, 2, v{VL}")
            A(f"buffer_store_dword v{VPROF}, v{VFREE}, {WS}, s3 offen\ns_add_u32 s3, s3, 0x10000\nbuffer_store_dword v{VPROF+1}, v{VFREE}, {WS}, s3 offen")
        if self.o.get("diagpad"):
            A(f"v_readlane_b32 s3, v{VPROF}, 0")
            A.lab("main_pad")
            A(f"s_memrealtime s[96:97]\ns_waitcnt lgkmcnt(0)\ns_sub_u32 s96, s96, s3\ns_cmp_lt_u32 s96, {self.o['diagpad']}\ns_cbranch_scc1 main_pad")
        if self.o.get("dbgprof"):
            t = VFREE; src = VPROF + (self.o["dbgprof"] - 1)
            A(f"s_cmp_lg_u32 s2, {self.o.get('dbgwg', 100)}\ns_cbranch_scc1 main_end\nv_readlane_b32 s3, v{src}, 0\nv_subrev_u32 v{t}, s3, v{src}")
            A(f"v_lshrrev_b32 v{t+1}, 2, v{VL}\nv_and_b32 v{t+1}, 8, v{t+1}\nv_and_b32 v{t+2}, 7, v{VL}\nv_add_u32 v{t+1}, v{t+1}, v{t+2}\nv_lshlrev_b32 v{t+1}, 2, v{t+1}")
            A(f"s_mov_b32 exec_lo, 0xfe\ns_mov_b32 exec_hi, 0xff\nbuffer_store_dword v{t}, v{t+1}, {DS_}, 0 offen")
        A.lab("main_end")
        A("s_endpgm")
        for blk in self.rare: A(blk)
        A.lab("main_last")

def gen_main(A, opts):
    m = Main(A, opts); m.gen()
    assert len(m.names) <= 32, len(m.names)
    if m.names: A.L.insert(0, Ins(f"; stamps {opts.get('mx', 512)} " + " ".join(m.names)))
```

```python
S, D, F, H, DH, W = 2048, 640, 1728, 32, 20, 256
CNT = 0x0000
KVF = 0x2000
CG = 0x1000
PK3 = 0x1800
PK5 = 0x1C00
PK4 = 0xA000
FLAG_BYTES = 0x10000
CSP1 = 0x10000
CSP4 = 0x20000
PROF = 0x40000
WP1 = 0x100000;  WP1_J = 163840
WP3 = WP1 + 16 * WP1_J; WP3_C = 102400
WP4 = WP3 + 8 * WP3_C;  WP4_J = 286720
WP5 = WP4 + 16 * WP4_J; WP5_C = 286720
WEND = WP5 + 8 * WP5_C
LB = 0x1000000
assert WEND + 65536 < LB
XA = 0
X1 = XA + 2621440
OO = X1 + 2621440
HH = OO + 2621440
KV = HH + 128 * 54 * 1024; KV_WG = 23552
ST3 = KV + 256 * KV_WG
STA = ST3 + 131072
LS = 0x1500000
assert STA + 131072 <= LS
WS_USED = LB + 2 * LS

import os
M16 = int(os.environ.get('M16', '0'))
P4_GROUPS = [(0, 4), (4, 3)]

def cg32(u, h, p):
    return 8 * (u >> 1) + 2 * (u & 1) + h + (4 if u < 4 else 2) * p
def k32(s, h, e):
    return 80 * (s // 5) + 4 * cg32(s % 5, h, e >> 2) + (e & 3)
def col1(hp, t, n):
    cg = 8 * t + (n >> 2); i = n & 3
    if cg < 10: return 1280 + 40 * hp + 4 * cg + i
    if cg < 12: return None
    if cg < 22: return 640 + 40 * hp + 4 * (cg - 12) + i
    return 40 * hp + 4 * (cg - 22) + i
def col4(T, n):
    if M16: return (n >> 4, 16 * T + (n & 15))
    sg = n >> 2; j = sg >> 1; hh = sg & 1
    return (j & 1, 16 * T + 4 * (2 * hh + (j >> 1)) + (n & 3))
def off4(s, t):
    for t0, nt in P4_GROUPS:
        if t0 <= t < t0 + nt: return (40 * t0 + s * nt + (t - t0)) * 1024
VPOS = {('a', 4): 0, ('a', 0): 1, ('a', 2): 2, ('a', 1): 3, ('a', 3): 4,
        ('b', 1): 7, ('b', 3): 8, ('b', 2): 9, ('b', 4): 10, ('b', 0): 12}

def pos3(b):
    kh = b // 10; return 2 * (b - 10 * kh) + kh
def hpos(T):
    j, t = divmod(T, 7)
    return 4 * j + t if t < 4 else 63 + 3 * j + t - 4
def pos5(b):
    kh = b & 1; bl = b >> 1; return 4 * (bl >> 1) + 2 * kh + (bl & 1)

def off1(s, t):
    return (2 * s + t if t < 2 else 40 * t + s) * 1024
```

```python
from asmlib import *
from layout import *
from pack import srd, sel, OOB, frag32_steps
import math

WS = "s[4:7]"; XS = "s[8:11]"; OS = "s[12:15]"; DS_ = "s[16:19]"
MB, J, WV, LAY, RH, CT, RR, KH = 20, 21, 22, 23, 24, 25, 26, 27
SL = 40
TGT = 41
S_A1 = 42
S_ST1 = 43
S_KVO = 44
S_A3 = 45
S_A3B = 46
S_X = 47
S_STX = 48
S_W1, S_W3, S_W4, S_W5 = 49, 50, 51, 52
S_H = 53
S_PB = 54
S_WI = 55
S_W4B = 38
S_U = 98
GUS = "s[56:59]"; WDS = "s[60:63]"
MASK = 64
T = [28, 29, 30, 31, 32, 33, 34, 35, 36, 37]

VL, VL16, VST, RES = 1, 2, 3, 4
VO1, VKT, VO3, VX, VSX, VH, VCNT, VKF, VK, VKS, VV, VW2, VW12, VW1, VXW, VXR, VB1, VB2 = range(14, 32)
PM = 32
VPROF = 40
VTG, VDUM = 42, 43
VFREE = 44

LDS_MISC = 147456
CSF1 = LDS_MISC; CSF4 = LDS_MISC + 4096
KREG = 36864; VREG = KREG + 12 * 2560
XCH3 = 86016; XCH5 = 0
STG4 = 16384; STG5 = STG4 + 20480; STG3 = LDS_MISC + 8192
QSCALE = math.log2(math.e) / math.sqrt(20.0)

def lds1(st): return ((st + 5) % 36) * 4096 if st < 36 else (st - 31) * 4096
def lds3(bl): return bl * 10240 if bl < 3 else (107520 + (bl - 3) * 10240 if bl < 6 else KREG + (bl - 6) * 10240)
def fhex(x):
    import struct
    return hex(struct.unpack("<I", struct.pack("<f", x))[0])

def qmap_step(x):
    import re
    m = re.match(r"ds_read_b64 a\[(\d+):", x[1])
    return int(m.group(1)) // 4 if m else 999

class Main:
    def __init__(self, A, opts):
        self.A = A; self.o = opts
        self.prof = opts.get("prof", 0); self.names = []; self.rare = []; self.pending = set()
        self.stop = opts.get("stop", None)
        self.fused = opts.get("fused", 1)
        self.kname = opts.get("kname", "main_kernel")
        self.ld = "sc1"; self.st = "sc1"; self.stkv = "sc1"
        self.ldw = opts.get("ldw", "sc1")
        self.es = opts.get("es", 0)
        self.nsh = opts.get("nsh", 1); self.shm = (1 << self.nsh) - 1
        self.ntu, self.ntx, self.nts = opts.get("ntu", ""), opts.get("ntx", ""), opts.get("nts", "nt")

    def stamp(self, name):
        if self.o.get("only") and name not in self.o["only"]: return
        if name.startswith("z.") and not self.o.get("only"): return
        if not self.prof or name.endswith(tuple(self.o.get("nostamp", ()))) and self.o.get("nostamp"): return
        A = self.A
        if name not in self.names: self.names.append(name)
        idx = self.names.index(name)
        A(f"s_memrealtime s[96:97]\ns_waitcnt lgkmcnt(0)\ns_mov_b32 s39, m0\ns_add_u32 m0, s{S_PB}, {idx}\nv_writelane_b32 v{VPROF}, s96, m0\ns_memtime s[96:97]\ns_waitcnt lgkmcnt(0)\nv_writelane_b32 v{VPROF+1}, s96, m0\ns_mov_b32 m0, s39")
        A.lg = []

    def ldsaddr(self, off, bases):
        b = off >> 16
        return f"v{bases[b]} offset:{off & 0xffff}"

    def emit(self, x):
        if isinstance(x, tuple):
            if x[0] == 'vm': self.A.vmem(x[1], x[2])
            elif x[0] == 'lg': self.A.lds(x[1], x[2])
            else:
                assert x[1] in self.A.seen and x[1] not in self.pending, x
                (self.A.wait_vm if x[0] == 'wv' else self.A.wait_lg)(x[1])
        else: self.A(x)

    def drain(self, fill, n):
        vm = 0
        while fill and n > 0:
            isvm = isinstance(fill[0], tuple) and fill[0][0] == 'vm'
            if isvm and vm: break
            vm += isvm
            self.pending = {y[2] for y in fill if isinstance(y, tuple) and len(y) == 3}
            self.emit(fill.pop(0)); n -= 1
            self.pending = set()

    def cost(self, x):
        o = self.o
        txt = x if isinstance(x, str) else (x[1] if isinstance(x[1], str) and len(x) == 3 else "w")
        c = 0
        for l in txt.split("\n"):
            if l.endswith(":"): continue
            c += (o.get("cst", 20) if l.startswith("buffer_store") else o.get("cld", 12) if l.startswith("buffer_") else 16 if l.startswith("ds_write_b128")
                  else 10 if l.startswith("ds_write") else 32 if l.startswith("v_mfma") else 8 if l.startswith(("v_rsq", "v_rcp")) else 4)
        return c

    def spend(self, lists, budget):
        first = True
        for L in lists:
            while L and budget > 0:
                c = self.cost(L[0])
                if c > budget and not first: return budget
                self.pending = {y[2] for y in L if isinstance(y, tuple) and len(y) == 3}
                self.emit(L.pop(0)); self.pending = set()
                budget -= c; first = False
        return budget

    def need(self, tag, fill):
        while any(isinstance(x, tuple) and x[0] == 'vm' and x[2] == tag for x in fill): self.emit(fill.pop(0))
        assert tag in self.A.seen, tag
        self.A.wait_vm(tag)

    def rnd(self, sbase, goff, loff, kb, tag):
        L = [f"s_mul_i32 s{T[8]}, s{WV}, {kb*1024}", f"s_add_u32 s{T[9]}, s{T[8]}, s{sbase}", f"s_add_u32 s{T[9]}, s{T[9]}, {goff}", f"s_add_u32 m0, s{T[8]}, {loff}"]
        for i in range(kb):
            if i and i % 4 == 0: L += [f"s_add_u32 s{T[9]}, s{T[9]}, 4096", "s_add_u32 m0, m0, 4096"]
            L.append(('vm', f"buffer_load_dwordx4 v{VL16}, {WS}, s{T[9]} offen offset:{1024*(i&3)} {self.ldw} lds", tag))
        return L

    def rnd3(self, sbase, goff, loff, kb):
        A = self.A
        A(f"s_mul_i32 s{T[8]}, s{S_WI}, {kb*1024}\ns_add_u32 s{T[9]}, s{T[8]}, s{sbase}\ns_add_u32 s{T[9]}, s{T[9]}, {goff}\ns_add_u32 m0, s{T[8]}, {loff}")
        for i in range(kb):
            if i and i % 4 == 0: A(f"s_add_u32 s{T[9]}, s{T[9]}, 4096\ns_add_u32 m0, m0, 4096")
            A(f"buffer_load_dwordx4 v{VL16}, {WS}, s{T[9]} offen offset:{1024*(i&3)} {self.ldw} lds")

    def edf(self, jobs, nsteps, rate, credit=0.0):
        units = []
        for rel, dl, L, *hard in jobs:
            cur = []
            for x in L:
                cur.append(x)
                if isinstance(x, tuple) and x[0] == 'vm': units.append([rel, dl, cur, id(L), hard[0] if hard else dl]); cur = []
            if cur: units[-1][2] += cur
        sched = {k: [] for k in range(nsteps)}
        busy = None
        for st_ in range(nsteps):
            credit += rate(st_) if callable(rate) else rate
            while credit >= 1 and units:
                cand = [u for u in units if u[0] <= st_]
                if busy is not None: cand = [u for u in cand if u[3] == busy or 'lds' not in u[2][-1 if isinstance(u[2][-1], tuple) else -2][1]]
                if not cand: credit = min(credit, 1.0); break
                u = min(cand, key=lambda u: u[1])
                assert st_ <= u[4], f"load {u[2][-1]} issued at {st_}, after its deadline {u[4]}"
                units.remove(u); sched[st_] += u[2]; credit -= 1
                isdma = any(isinstance(x, tuple) and x[1].endswith('lds') for x in u[2])
                if isdma: busy = u[3] if any(w[3] == u[3] for w in units) else None
        assert not units, f"{len(units)} loads left"
        return sched

    def drain_post(self, post, extra=0):
        A = self.A
        if not post:
            A.wait_all(); return
        N = A.newlab("p0"); E = A.newlab("pe")
        kb = -(-post[3] // 3)
        A(f"s_cmp_eq_u32 s{WV}, 0\ns_cbranch_scc1 {N}")
        self.rnd3(post[0], post[1], post[2], kb)
        A(f"s_waitcnt vmcnt({kb + extra}) lgkmcnt(0)\ns_branch {E}")
        A.lab(N); A(f"s_waitcnt vmcnt({extra}) lgkmcnt(0)"); A.lab(E)
        A.vm = []; A.lg = []

    def plan(self, chunks, bars, dead_at=()):
        jobs = []; valid = {}; used = set()
        for k, (sb, go, kb, ad, vs, last, pre) in enumerate(chunks):
            if pre: continue
            busy = [c[5] for c in chunks[:k] if c[3] < ad + kb*4096 and ad < c[3] + c[2]*4096]
            busy += [t for lo, hi, t in dead_at if lo < ad + kb*4096 and ad < hi]
            rel = min(b for b in bars if b > max(busy)) if busy else 0
            if busy: used.add(rel)
            dl = 900 + k
            if vs is not None:
                dl = max(b for b in bars if b <= vs); assert dl > rel, (k, rel, dl)
                valid.setdefault(dl, []).append(('w', k)); used.add(dl)
            jobs.append((rel, dl - 0.5, self.rnd(sb, go, ad, kb, ('w', k))))
        return jobs, valid, used

    def go(self, tag, name):
        self.A.wait_vm(tag)
        if not self.o.get("onebar", 0): self.A("s_barrier")
        self.stamp(name)

    def run32(self, seq, WFS, sched, at_step, side=None, go=None):
        A = self.A; R = len(WFS)
        rd = lambda n: A.lds(f"ds_read_b128 {v(WFS[n % R],4)}, {self.ldsaddr(seq[n][2], seq[n][5] if len(seq[n]) > 5 else [VL16, VB1, VB2])}", ('f', n))
        if go and not self.o.get("onebar", 0): self.go(*go); go = None
        for n in range(R): rd(n)
        if go: self.go(*go)
        fill = []; prev = None; owed = 0; sides = list(side) if isinstance(side, list) else [side]
        for n, (st_, acc, ad, B, zero, *_) in enumerate(seq):
            if len(sides) > 1 and n >= sides[1][1]:
                while sides[0][0]: self.emit(sides[0][0].pop(0))
                sides.pop(0)
            side = sides[0]
            if st_ != prev:
                at_step(st_, fill); prev = st_
            if n % 2 == 0: A.wait_lg(('f', min(n + 1, len(seq) - 1)))
            pair = isinstance(acc, tuple); used = 0
            if pair:
                A(f"v_mfma_f32_16x16x32_bf16 {v(acc[0],4)}, {v(WFS[n % R],4)}, {B[0]}, {'0' if zero else v(acc[0],4)}")
                k = len(fill); self.drain(fill, 2); used = k - len(fill)
                if side and n >= side[1] and side[0] and used < 2:
                    k = len(side[0]); self.drain(side[0], min(2 - used, side[2])); used += k - len(side[0])
                A(f"v_mfma_f32_16x16x32_bf16 {v(acc[1],4)}, {v(WFS[n % R],4)}, {B[1]}, {'0' if zero else v(acc[1],4)}")
            else:
                A(f"v_mfma_f32_32x32x16_bf16 {v(acc,16)}, {v(WFS[n % R],4)}, {B}, {'0' if zero else v(acc,16)}")
            if n + R < len(seq): rd(n + R)
            act = side and n >= side[1] and side[0]
            if self.o.get("budget", 1) and not pair:
                owed = min(0, self.spend([fill] + ([side[0]] if act else []), (side[3] if act and len(side) > 3 else self.o.get("gap", 18)) + owed))
            elif act:
                k = len(fill)
                if not pair: self.drain(fill, 2)
                self.drain(side[0], side[2] - (k - len(fill)) - used)
            else: self.drain(fill, 1 if pair else 4)
        for sd in sides:
            while sd and sd[0]: self.emit(sd[0].pop(0))
        while fill: self.emit(fill.pop(0))

    def es_hooks(self, st_, fill, up, gate, name, code, stats):
        if not self.es: return
        A = self.A
        if st_ == 0:
            A.wait_vm(('a', 1))
            for x in self.verify([0, 4], name): A(x)
        if st_ == max(gate - 4, 0): fill.insert(0, ('vm', f"s_mov_b64 exec, 1\nbuffer_load_dword v253, v{VCNT}, {WS}, 0 offen sc1\ns_mov_b64 exec, -1", 'fl'))
        if st_ == gate:
            self.need('fl', fill); self.flag_check(253, code); stats()
        if st_ % 2 == 0: assert up % 2 == 0 and not any(isinstance(x, str) and "vccnz" in x for x in fill)
        if st_ % 2 == 0 and st_ + 2 < up: fill[:0] = [('wv', ('a', st_ + 3))] + self.verify([4*st_ + 8, 4*st_ + 12], name)

    def split3(self, src, dst, t):
        return [f"v_and_b32 v{t}, 0xffff0000, v{src}", f"v_sub_f32 v{t+1}, v{src}, v{t}", f"v_and_b32 v{dst}, 0xffff0000, v{t+1}", f"v_sub_f32 v{t+1}, v{t+1}, v{dst}",
                f"v_lshrrev_b32 v{t}, 16, v{t}", f"v_and_b32 v{dst+1}, 0xffff0000, v{t+1}", f"v_or_b32 v{dst}, v{dst}, v{t}", f"v_or_b32 v{dst+1}, v{dst+1}, v{t}",
                f"v_mov_b32 v{dst+2}, v{dst}", f"v_mov_b32 v{dst+3}, 0"]

    def csfrag(self, c, w, z, ad):
        return [f"v_and_b32 v{w+1}, 0xffff0000, v{c}", f"v_sub_f32 v{c}, v{c}, v{w+1}", f"v_and_b32 v{w+2}, 0xffff0000, v{c}", f"v_sub_f32 v{c}, v{c}, v{w+2}",
                f"v_lshrrev_b32 v{w}, 16, v{w+1}", f"v_or_b32 v{w}, v{w}, v{w+1}", f"v_lshrrev_b32 v{w+3}, 16, v{w+2}", f"v_or_b32 v{w+1}, v{w+1}, v{w+3}",
                f"v_lshrrev_b32 v{c}, 16, v{c}", f"v_or_b32 v{w+2}, v{w+2}, v{c}", f"v_mov_b32 v{w+3}, 0"] + [f"v_mov_b32 v{z+k}, 0" for k in range(4)] + \
               [('lg', f"ds_write_b128 v{ad}, {v(w,4)}", 'csw'), ('lg', f"ds_write_b128 v{ad}, {v(z,4)} offset:512", 'csw')]

    def csaddr(self, e, dst, t, base):
        return (f"v_lshrrev_b32 v{dst}, 5, v{e}\nv_lshlrev_b32 v{dst}, 10, v{dst}\nv_bfe_u32 v{t}, v{e}, 2, 2\nv_lshl_add_u32 v{dst}, v{t}, 7, v{dst}\nv_bfe_u32 v{t}, v{e}, 4, 1\n"
                f"v_lshl_add_u32 v{dst}, v{t}, 6, v{dst}\nv_and_b32 v{t}, 3, v{e}\nv_lshl_add_u32 v{dst}, v{t}, 4, v{dst}\nv_add_u32 v{dst}, {base}, v{dst}")

    def capture(self, fn):
        keep = self.A; self.A = Asm(); fn(); L = [i.text for i in self.A.L]; self.A = keep
        return L

    def weave_loads(self, body, loads, every, extra=None):
        def safe(i):
            ex = [x for x in body[i:] if "exec" in x]
            if ex and ex[0].endswith("-1"): return False
            for x in body[i:]:
                if x.startswith("s_cmp"): return True
                if x.startswith(("s_cmov", "s_cselect", "s_cbranch")): return False
            return True
        since = every
        for i, x in enumerate(body):
            if since >= every and loads and safe(i): self.drain(loads, 6); since = 0
            self.A(x); since += 1
            if extra and i % 7 == 6: extra()
        while loads: self.emit(loads.pop(0))

    def mix(self, body, fill, every):
        for k, x in enumerate(body):
            self.emit(x)
            if (k + 1) % every == 0: self.drain(fill, 5)

    def spin(self, addr, tgt, code, srd_=WS):
        A = self.A; L = A.newlab("poll"); D = A.newlab("pdone"); t = 254
        ld = lambda r: f"buffer_load_dword v{r}, v{addr}, {srd_}, 0 offen sc1"
        if self.o.get("poll1", 0):
            A(f"s_mov_b32 s{T[2]}, 20000")
            if self.o.get("pfirst", 0): A(f"s_sleep {self.o['pfirst']}")
            A.lab(L)
            A(ld(t) + f"\ns_waitcnt vmcnt(0)\nv_cmp_gt_u32 vcc, {tgt}, v{t}\ns_cbranch_vccz {D}\ns_sleep {self.o.get('psleep', 5)}")
        else:
            pf = self.o.get(f"pfirst{code >> 8}", self.o.get("pfirst", 0)); ps = self.o.get(f"psleep{code >> 8}", self.o.get("psleep", 5))
            if pf: A(f"s_sleep {pf}")
            A(f"s_mov_b32 s{T[2]}, 20000\n" + ld(t))
            A.lab(L)
            for r in (t + 1, t):
                A(f"s_sleep {ps}\n" + ld(r) + f"\ns_waitcnt vmcnt(1)\nv_cmp_gt_u32 vcc, {tgt}, v{2*t + 1 - r}\ns_cbranch_vccz {D}")
        A(f"s_sub_u32 s{T[2]}, s{T[2]}, 1\ns_cmp_lg_u32 s{T[2]}, 0\ns_cbranch_scc1 {L}")
        A(f"s_waitcnt vmcnt(0)\nv_mov_b32 v{t}, {code}\nv_mov_b32 v{t+1}, 128\nbuffer_store_dword v{t}, v{t+1}, {DS_}, 0 offen")
        A.lab(D)

    def shoff(self):
        mode = self.o.get("shmode", 0)
        if mode == 0: return f"s_and_b32 s3, s{J}, {self.nsh - 1}\ns_lshl_b32 s3, s3, 7\n"
        return f"s_lshr_b32 s3, s{J}, {5 - self.nsh.bit_length()}\ns_lshl_b32 s3, s3, 7\n"

    def code_touch(self):
        if not self.o.get("codepf2", 1): return
        A = self.A; L = A.newlab("ct"); P = A.newlab("pc")
        A(f"s_lshl_b32 s3, s{LAY}, 2\ns_add_u32 s3, s3, s{WV}\ns_cmp_lg_u32 s3, 3\ns_cbranch_scc1 {L}")
        A(f"s_getpc_b64 s[28:29]\n{P}:\ns_sub_u32 s28, s28, {P} - {self.kname}\ns_subb_u32 s29, s29, 0\ns_mov_b32 s30, main_last - {self.kname}\ns_mov_b32 s31, 0x20000")
        A(f"s_and_b32 s3, s{J}, 7\ns_lshl_b32 s3, s3, 13\nv_lshlrev_b32 v252, 3, v{VL16}\nbuffer_load_dword v{VDUM}, v252, s[28:31], s3 offen")
        A.lab(L)

    def own_touch(self, code):
        if not (self.o.get("own", 0) >> (code >> 8)) & 1: return
        A = self.A
        if code == 0x200:
            A(f"buffer_load_dword v{VDUM}, v{VO1}, {WS}, s{SL} offen sc1\nbuffer_load_dword v{VDUM}, v{VO1}, {WS}, s{SL} offen offset:768 sc1\ns_mov_b32 exec_lo, 0\nbuffer_load_dword v{VDUM}, v{VO3}, {WS}, s{SL} offen offset:512 sc1\ns_mov_b32 exec_lo, -1")
        else:
            A(f"buffer_load_dword v{VDUM}, v{VX}, {WS}, s{T[4]} offen sc1\nbuffer_load_dword v{VDUM}, v{VX}, {WS}, s{T[4]} offen offset:2048 sc1\ns_mov_b32 exec_hi, 0\nbuffer_load_dword v{VDUM}, v{VX}, {WS}, s{T[5]} offen sc1\ns_mov_b32 exec_hi, -1")

    def cluster_sync(self, post, pre, code, both=None):
        A = self.A; N = A.newlab("nw0"); E = A.newlab("syn")
        self.stamp(f'p{code>>8}.epi')
        self.drain_post(post); A("s_barrier")
        self.stamp(f'p{code>>8}.drain')
        rank = self.o.get("rank", 1); RD = A.newlab("rk")
        A(f"s_add_u32 s{TGT}, s{TGT}, {16 // self.nsh}\ns_cmp_lg_u32 s{WV}, 0\ns_cbranch_scc1 {N}")
        A(f"s_mov_b64 exec, 1\nv_mov_b32 v252, 1\n{self.shoff()}buffer_atomic_add v252, v{VCNT}, {WS}, s3 offen {'sc0 ' if rank else ''}sc1\ns_mov_b64 exec, {self.shm}")
        if both or self.o.get("own", 0):
            A("s_mov_b64 exec, -1"); self.own_touch(code)
            if both: both()
            A(f"s_mov_b64 exec, {self.shm}")
        if rank:
            A(f"s_waitcnt vmcnt(0)\nv_readfirstlane_b32 s3, v252\ns_sub_u32 s3, s{TGT}, s3\ns_cmp_le_u32 s3, 1\ns_cbranch_scc1 {RD}\ns_cmp_le_u32 s3, {self.o.get('rankn', 6)}\ns_cbranch_scc1 {RD}a\ns_sleep {rank}")
            A.lab(RD + "a")
        self.spin(VCNT, f's{TGT}', code)
        if rank: A.lab(RD)
        A(f"s_mov_b64 exec, -1")
        self.stamp(f'p{code>>8}.poll')
        A(f"s_branch {E}")
        A.lab(N)
        self.own_touch(code)
        self.code_touch()
        if code == 0x300 and self.o.get("tlbout", 0):
            A(f"s_lshl_b32 s3, s{S_A3}, 4\ns_mul_i32 s3, s3, 1280\ns_mov_b64 exec, 1\nbuffer_load_dword v{VDUM}, v{VL16}, {OS}, s3 offen\ns_mov_b64 exec, -1")
        if pre: pre()
        if both: both()
        if self.o.get("onebar", 0): A("s_waitcnt vmcnt(0)")
        A.lab(E)
        A("s_barrier")
        self.stamp(f'p{code>>8}.bar')

    def early_signal(self, first=False):
        if not self.es or self.o.get("estest") and not first: return
        A = self.A; L = A.newlab("es")
        A(f"s_cmp_lg_u32 s{WV}, 0\ns_cbranch_scc1 {L}\ns_mov_b64 exec, 1\nv_mov_b32 v252, 1\nbuffer_atomic_add v252, v{VCNT}, {WS}, 0 offen offset:128 sc1\ns_mov_b64 exec, -1")
        A.lab(L)

    def early_sync(self, post, code, k):
        A = self.A; N = A.newlab("nw0"); E = A.newlab("syn")
        self.stamp(f'p{code>>8}.epi')
        kb = -(-post[3] // 3)
        A(f"s_cmp_lg_u32 s{WV}, 0\ns_cbranch_scc1 {N}\ns_mul_i32 s{T[3]}, s{LAY}, 48\ns_add_u32 s{T[3]}, s{T[3]}, {16*k}\ns_mov_b64 exec, 1\nv_add_u32 v252, 128, v{VCNT}")
        self.spin(252, f's{T[3]}', code)
        A(f"s_mov_b64 exec, -1\ns_waitcnt lgkmcnt(0)\ns_branch {E}")
        A.lab(N)
        self.rnd3(post[0], post[1], post[2], kb)
        A(f"s_waitcnt vmcnt({kb}) lgkmcnt(0)")
        self.code_touch()
        A.lab(E)
        A.vm = []; A.lg = []
        A("s_barrier")
        self.stamp(f'p{code>>8}.poll')
        self.signal()
        if self.o.get("estest"): self.o["estest"] = 0; self.early_signal(); self.o["estest"] = 1

    def mark(self, stores):
        if not self.es: return
        A = self.A
        for k in range(4): A(f"v_mov_b32 v{248+k}, -1")
        for pre, ad, so, im, post in stores: A(f"{pre}buffer_store_dwordx4 v[248:251], v{ad}, {WS}, s{so} offen offset:{im} sc1{post}")

    def mark_x(self, off):
        if not self.es: return
        self.A(f"s_add_u32 s99, s{SL}, s{S_X}\ns_add_u32 s99, s99, {off}\ns_add_u32 s3, s99, 4096")
        self.mark([("", VX, 99, 0, ""), ("", VX, 99, 2048, ""), ("s_mov_b32 exec_hi, 0\n", VX, 3, 0, "\ns_mov_b32 exec_hi, -1")])

    def verify(self, regs, name):
        L = self.A.newlab("vf")
        out = [f"v_accvgpr_read_b32 v{250+k}, a{r}" for k, r in enumerate(regs)]
        if len(regs) == 2: out.append("v_max_u32 v250, v250, v251")
        out.append(f"v_cmp_eq_u32 vcc, -1, v250\ns_cbranch_vccnz {L}\n{L}b:")
        self.rare.append(f"{L}:\ns_call_b64 s[100:101], {name}\ns_branch {L}b")
        return out

    def reload(self, name, code, loads):
        keep = self.A; self.A = B = Asm(); B.uid = 20000 + code
        B.lab(name)
        B("s_mov_b64 exec, 1"); self.spin(VCNT, f"s{TGT}", code); B("s_mov_b64 exec, -1")
        for x in loads: B(x)
        B("s_waitcnt vmcnt(0)\ns_setpc_b64 s[100:101]")
        self.A = keep; self.rare.append(B.render())

    def setup(self):
        A = self.A
        A.lab(self.kname)
        if self.o.get("entry"): A("s_memrealtime s[94:95]")
        A("s_cmp_ge_u32 s2, 256\ns_cbranch_scc1 main_end")
        A("s_load_dwordx2 s[28:29], s[0:1], 0\ns_load_dwordx4 s[32:35], s[0:1], 56\ns_load_dwordx2 s[30:31], s[0:1], 72")
        if self.fused: A("s_load_dwordx4 s[80:83], s[0:1], 8\ns_load_dwordx4 s[84:87], s[0:1], 32\ns_load_dwordx2 s[88:89], s[0:1], 48")
        A(f"v_and_b32 v{VL}, 63, v0\nv_lshrrev_b32 v2, 6, v0\ns_nop 0\nv_readfirstlane_b32 s{WV}, v2\nv_lshlrev_b32 v{VL16}, 4, v{VL}")
        mx = self.o.get("mx", 512)
        if mx == 256:
            A(f"s_and_b32 s{MB}, s2, 7\ns_lshl_b32 s{MB}, s{MB}, 1\ns_lshr_b32 s3, s2, 7\ns_add_u32 s{MB}, s{MB}, s3\ns_bfe_u32 s{J}, s2, 0x40003")
        elif mx == 512:
            A(f"s_bfe_u32 s{MB}, s2, 0x20001\ns_lshl_b32 s{MB}, s{MB}, 2\ns_lshr_b32 s3, s2, 6\ns_add_u32 s{MB}, s{MB}, s3")
            A(f"s_and_b32 s{J}, s2, 1\ns_lshl_b32 s{J}, s{J}, 3\ns_bfe_u32 s3, s2, 0x30003\ns_add_u32 s{J}, s{J}, s3")
        elif mx == 1024:
            A(f"s_bfe_u32 s{MB}, s2, 0x10002\ns_lshl_b32 s{MB}, s{MB}, 3\ns_lshr_b32 s3, s2, 5\ns_add_u32 s{MB}, s{MB}, s3")
            A(f"s_and_b32 s{J}, s2, 3\ns_lshl_b32 s{J}, s{J}, 2\ns_bfe_u32 s3, s2, 0x20003\ns_add_u32 s{J}, s{J}, s3")
        A((f"s_lshr_b32 s{RH}, s{J}, 3\ns_and_b32 s{CT}, s{J}, 7" if self.o.get("rhhi", 0) else f"s_and_b32 s{RH}, s{J}, 1\ns_lshr_b32 s{CT}, s{J}, 1"))
        A(f"s_lshr_b32 s{RR}, s{WV}, 1\ns_and_b32 s{KH}, s{WV}, 1\ns_sub_u32 s{S_WI}, s{WV}, 1")
        A(f"s_mov_b32 s{LAY}, 0\ns_mov_b32 s{SL}, {LB}\ns_mov_b32 s{TGT}, 0\ns_mov_b32 s{S_PB}, 0")
        A(f"s_lshl_b32 s3, s{MB}, 2\ns_add_u32 s3, s3, s{WV}\ns_mul_i32 s{S_A1}, s3, 40960\ns_lshl_b32 s{S_ST1}, s3, 11")
        A(f"s_mul_i32 s{S_H}, s3, {2*54*1024}\ns_nop 0")
        A(f"s_mul_i32 s{S_W1}, s{J}, {WP1_J}\ns_add_u32 s{S_W1}, s{S_W1}, {WP1}\ns_mul_i32 s{S_W4}, s{J}, {WP4_J}\ns_add_u32 s{S_W4}, s{S_W4}, {WP4}")
        A(f"s_mul_i32 s{S_W3}, s{CT}, {WP3_C}\ns_add_u32 s{S_W3}, s{S_W3}, {WP3}\ns_mul_i32 s{S_W5}, s{CT}, {WP5_C}\ns_add_u32 s{S_W5}, s{S_W5}, {WP5}")
        A(f"s_mov_b32 s{S_W4B}, s{S_W4}\ns_cmp_eq_u32 s{J}, {15 if self.o.get('oob15', 1) else 99}\ns_cmov_b32 s{S_W4B}, {OOB}")
        A("s_waitcnt lgkmcnt(0)")
        srd(A, 4, 30, WS_USED); srd(A, 8, 28, 2048*640*2); srd(A, 16, 34, 256)

    def p1_first(self):
        A = self.A; o = self.o; st = "sc1"
        QS = "s[68:71]"; WOS = "s[64:67]"
        ACC, GR, ONE, MU, RS, AP = 64, 176, 56, 168, 169, 172
        VXS, VAX, TMP, VU1, VU3, VZ = 129, 133, 138, 134, 135, 136
        r, c, G = 44, 45, 46
        AB = 49152; NB = 3
        srd(A, 68, 80, 640*1920*2); srd(A, 64, 82, 640*640*2); srd(A, 60, 88, 1728*640*2); srd(A, 12, 32, 2048*640*2)
        A(f"s_cmp_lt_u32 s{WV}, 2\ns_cselect_b32 s56, s84, s86\ns_cselect_b32 s57, s85, s87\ns_mov_b32 s58, {640*1728*2}\ns_mov_b32 s59, 0x20000")
        A(f"s_lshl_b32 s{S_U}, s{MB}, 4\ns_add_u32 s{S_U}, s{S_U}, s{J}")
        NZ = A.newlab("nz"); NZ2 = A.newlab("nz")
        A(f"s_cmp_lg_u32 s2, 0\ns_cbranch_scc1 {NZ}\ns_cmp_lg_u32 s{WV}, 3\ns_cbranch_scc1 {NZ}")
        A(f"v_lshlrev_b32 v56, 7, v{VL}\nv_mov_b32 v57, 0\nbuffer_store_dword v57, v56, {WS}, 0 offen sc1\ns_mov_b32 s3, {PK4}\ns_mov_b32 exec_hi, 0\nbuffer_store_dword v57, v56, {WS}, s3 offen sc1\ns_mov_b32 exec_hi, -1")
        A.lab(NZ)
        A(f"v_and_b32 v51, 7, v{VL}\nv_lshrrev_b32 v52, 3, v{VL}\ns_and_b32 s34, s{MB}, 1\ns_lshr_b32 s35, s{MB}, 1")
        A("s_cmp_eq_u32 s34, 0\ns_cselect_b32 s31, 5, 3"); sel(A, 32, 2560, 1312); sel(A, 33, 1184, -48); sel(A, 36, 0xdfdfdfdf, -1)
        A("v_mov_b32 v53, s32\nv_mov_b32 v54, s33\nv_cmp_gt_u32 vcc, s31, v51\nv_cndmask_b32 v53, v54, v53, vcc\nv_lshl_add_u32 v53, v51, 4, v53\nv_mul_u32_u24 v54, 3840, v52\nv_add_u32 v53, v53, v54")
        A(f"s_mul_i32 s31, s35, 80*3840\ns_mul_i32 s32, s{J}, 80\ns_add_u32 s31, s31, s32\ns_mov_b32 exec_lo, s36\ns_mov_b32 exec_hi, s36")
        for n in range(3):
            A(f"s_add_u32 s32, s{WV}, {4*n}\ns_min_u32 s32, s32, 9\ns_lshl_b32 m0, s32, 10\ns_mul_i32 s32, s32, 8*3840\ns_add_u32 s32, s32, s31")
            A.vmem(f"buffer_load_dwordx4 v53, {QS}, s32 offen {self.ntu} lds", 'u')
        A("s_mov_b64 exec, -1")
        A(f"s_lshr_b32 s99, s{S_U}, 3\ns_and_b32 s100, s{S_U}, 7\ns_mul_i32 s30, s99, 32*1280\ns_mul_i32 s31, s100, 160\ns_add_u32 s30, s30, s31\ns_cmp_ge_u32 s{S_U}, 160\ns_cmov_b32 s30, {OOB}")
        for n in range(2):
            A(f"s_add_u32 s31, s{WV}, {4*n}\ns_min_u32 s31, s31, 4\ns_lshl_b32 s3, s31, 6\nv_add_u32 v54, s3, v{VL}\nv_mul_u32_u24 v55, 6554, v54\nv_lshrrev_b32 v55, 16, v55\nv_mul_u32_u24 v56, 10, v55\nv_sub_u32 v56, v54, v56")
            A(f"v_mul_u32_u24 v55, 1280, v55\nv_lshl_add_u32 v55, v56, 4, v55\ns_lshl_b32 s31, s31, 10\ns_add_u32 m0, s31, {STG3}")
            A.vmem(f"buffer_load_dwordx4 v55, {WOS}, s30 offen {self.ntu} lds", 'u')
        A(f"v_lshrrev_b32 v{G}, 4, v{VL}\nv_and_b32 v48, 15, v{VL}")
        for n in range(4):
            A(f"v_add_u32 v49, {4*n}, v{G}\nv_xor_b32 v50, v48, v49\nv_mul_u32_u24 v49, 1280, v49\nv_lshl_add_u32 v{VXS+n}, v50, 4, v49")
        SX, SXL = T[0], T[1]
        A(f"s_lshl_b32 s3, s{MB}, 2\ns_add_u32 s3, s3, s{WV}\ns_mul_i32 s{SX}, s3, 32*1280\ns_mul_i32 s{SXL}, s{WV}, {NB*8192}\ns_add_u32 s{SXL}, s{SXL}, {AB}")
        def xlist(ch):
            L = []
            for n in range(8):
                if n % 4 == 0: L.append(f"s_add_u32 s{T[9]}, s{SX}, {ch*256 + (n >> 2)*16*1280}")
                L += [f"s_add_u32 m0, s{SXL}, {(ch % NB)*8192 + n*1024}", ('vm', f"buffer_load_dwordx4 v{VXS + (n & 3)}, {XS}, s{T[9]} offen {self.ntx} lds", ('x', ch))]
            return L
        def xjob(ch):
            for x in xlist(ch): self.emit(x)
        def publish():
            A(f"s_cmp_lg_u32 s2, 0\ns_cbranch_scc1 {NZ2}\ns_cmp_lg_u32 s{WV}, 3\ns_cbranch_scc1 {NZ2}")
            A(f"s_waitcnt vmcnt({len(A.vm)})\ns_mov_b64 exec, 1\nv_mov_b32 v60, 0\nv_mov_b32 v61, 1\nbuffer_store_dword v61, v60, {DS_}, 0 offen sc1\ns_mov_b64 exec, -1")
            A.lab(NZ2)
        pubat = o.get("pubat", 1)
        if pubat == 0: publish()
        if o.get("tlb", 0):
            A(f"v_lshlrev_b32 v54, 21, v{VL}\ns_lshl_b32 s3, s{S_U}, 7\ns_add_u32 s3, s3, 0x80000\ns_cmp_lg_u32 s{WV}, 2\ns_cmov_b32 s3, {OOB}\ns_mov_b32 exec_hi, 0")
            A.vmem(f"buffer_load_dword v{VDUM}, v54, {WS}, s3 offen\ns_mov_b32 exec_hi, -1", 't')
        if o.get("tlb2", 0):
            A(f"v_lshlrev_b32 v54, 21, v{VL}\ns_lshl_b32 s3, s{S_U}, 7\ns_mov_b64 exec, 3")
            A.vmem(f"buffer_load_dword v{VDUM}, v54, {GUS}, s3 offen", 't'); A.vmem(f"buffer_load_dword v{VDUM}, v54, {WDS}, s3 offen\ns_mov_b64 exec, -1", 't')
        if o.get("touchx", 0):
            A(f"s_lshl_b32 s30, s{MB}, 3\ns_and_b32 s31, s{J}, 7\ns_add_u32 s30, s30, s31\ns_lshl_b32 s3, s30, 2\ns_add_u32 s3, s3, s{WV}\ns_mul_i32 s3, s3, 5120\nv_lshlrev_b32 v54, 7, v{VL}\ns_mov_b32 exec_hi, 0xff")
            A.vmem(f"buffer_load_dword v{VDUM}, v54, {XS}, s3 offen {self.ntx}\ns_mov_b32 exec_hi, -1", 't')
        if o.get("codepf", 1):
            A(f"s_getpc_b64 s[64:65]\nmain_pc:\ns_sub_u32 s64, s64, main_pc - {self.kname}\ns_subb_u32 s65, s65, 0\ns_mov_b32 s66, main_last - {self.kname}\ns_mov_b32 s67, 0x20000")
            A(f"s_and_b32 s3, s{J}, 7\ns_lshl_b32 s3, s3, 13\ns_cmp_lg_u32 s{WV}, 3\ns_cmov_b32 s3, {OOB}\nv_lshlrev_b32 v54, 7, v{VL}")
            A.vmem(f"buffer_load_dword v{VDUM}, v54, s[64:67], s3 offen", 'c')
        for i in range(4): A(f"v_mov_b32 v{ONE+i}, 0x3f803f80")
        NP = A.newlab("np")
        A(f"s_cmp_lg_u32 s34, 0\ns_cbranch_scc1 {NP}\nv_lshlrev_b32 v48, 7, v0\nv_cmp_gt_u32 vcc, 80, v0\ns_and_saveexec_b64 s[36:37], vcc\ns_cbranch_execz {NP}a\nds_write_b128 v48, {v(ONE,4)} offset:80")
        A.lab(NP + "a"); A("s_mov_b64 exec, s[36:37]"); A.lab(NP)
        spre, j4, j5 = self.stage_jobs()
        prep, late = self.pack_late()
        CP = 240; RL = LDS_MISC + 4096
        def part1():
            A = self.A
            A(f"s_cmp_ge_u32 s99, 10\ns_cselect_b32 s30, 1, 0\ns_cselect_b32 s31, 10, 0\ns_sub_u32 s31, s99, s31\ns_lshl_b32 s31, s31, 1\ns_add_u32 s31, s31, s30\ns_mul_i32 s31, s31, 5120")
            A(f"s_mul_i32 s30, s100, {WP3_C}\ns_add_u32 s30, s30, s31\ns_add_u32 s30, s30, {WP3}\ns_cmp_ge_u32 s{S_U}, 160\ns_cmov_b32 s30, {OOB}")
            A(f"v_bfe_u32 v{r}, v{VL}, 2, 2\nv_and_b32 v{c}, 3, v{VL}\nv_lshrrev_b32 v48, 1, v{G}\nv_lshl_add_u32 v48, v48, 2, v{r}\nv_lshlrev_b32 v48, 7, v48\nv_and_b32 v49, 1, v{G}\nv_lshl_add_u32 v49, v49, 2, v{c}\nv_lshl_add_u32 v48, v49, 3, v48\ns_lshl_b32 s3, s{WV}, 6\nv_add_u32 v{VU1}, s3, v48")
            A(f"v_lshl_add_u32 v{VU3}, v{G}, 3, v{r}\nv_mul_u32_u24 v{VU3}, 160, v{VU3}\nv_lshl_add_u32 v{VU3}, v{c}, 3, v{VU3}\nv_add_u32 v{VU3}, {STG3}, v{VU3}\nv_mov_b32 v{VZ}, 0")
            for x in spre: A(x)
        def part2():
            A = self.A
            A(f"v_and_b32 v48, 31, v{VL}\nv_and_b32 v49, 15, v{VL}\nv_lshlrev_b32 v{VAX}, 8, v48\nv_lshl_add_u32 v{VAX}, v49, 4, v{VAX}\nv_lshrrev_b32 v49, 5, v{VL}\nv_lshl_add_u32 v{VAX}, v49, 3, v{VAX}\nv_add_u32 v{VAX}, s{SXL}, v{VAX}")
            self.setup2a()
            A(f"s_lshl_b32 s3, s{J}, 7\ns_add_u32 s3, s3, {CG}\nv_mov_b32 v53, s3\nv_mov_b32 v62, s3\ns_lshl_b32 s3, s{CT}, 7\ns_add_u32 s3, s3, {PK3}\nv_writelane_b32 v53, s3, 1\nv_mov_b32 v54, 16\nv_writelane_b32 v54, 20, 1")
            A(f"s_and_b32 s3, s{S_U}, 7\ns_lshl_b32 s3, s3, 7\ns_add_u32 s3, s3, {PK3}\nv_writelane_b32 v62, s3, 1\nv_mov_b32 v63, 1")
            A(f"s_lshl_b32 s88, s{S_A3}, 4\ns_mul_i32 s88, s88, 1280\ns_mul_i32 s3, s{CT}, 160\ns_add_u32 s88, s88, s3\ns_mul_i32 s89, s{WV}, 2560\ns_add_u32 s89, s89, {RL}")
            A(f"v_and_b32 v{CP+10}, 15, v{VL}\nv_mul_u32_u24 v{CP+10}, 160, v{CP+10}\nv_lshrrev_b32 v48, 4, v{VL}\nv_lshl_add_u32 v{CP+10}, v48, 3, v{CP+10}\nv_add_u32 v{CP+10}, s89, v{CP+10}")
            for n in range(3):
                A(f"v_add_u32 v48, {64*n}, v{VL}\nv_mul_u32_u24 v49, 6554, v48\nv_lshrrev_b32 v49, 16, v49\nv_mul_u32_u24 v50, 10, v49\nv_sub_u32 v50, v48, v50\nv_mul_u32_u24 v49, 1280, v49\nv_lshl_add_u32 v{140+n}, v50, 4, v49")
            A(f"v_and_b32 v48, 127, v0\nv_lshrrev_b32 v49, 5, v48\nv_and_b32 v50, 31, v48\nv_lshlrev_b32 v50, 2, v50\nv_lshl_add_u32 v{CP+8}, v49, 10, v50")
            A(self.csaddr(48, CP+9, 49, CSF1))
            for x in prep: A(x)
        self.weave_loads(self.capture(part1), xlist(0), 9)
        if pubat == 1: publish()
        stg0 = o.get("stg0", 0)
        self.weave_loads(self.capture(part2), j4 + j5 if stg0 else xlist(1), o.get("cevery", 12))
        A.wait_vm('u')
        if pubat == 2: publish()
        A.wait_lg0(); A("s_barrier")
        self.stamp('s.u')
        HI = A.newlab("hi"); DN = A.newlab("dn"); keep = list(A.vm)
        A(f"s_cmp_ge_u32 s{WV}, 2\ns_cbranch_scc1 {HI}")
        A(f"s_lshl_b32 s32, s34, 1\ns_add_u32 s32, s32, s{WV}\ns_mul_i32 s3, s32, 40\ns_cmp_lt_u32 s32, 2\ns_cselect_b32 s3, s32, s3"); sel(A, 36, 2048, 1024)
        A(f"s_lshl_b32 s3, s3, 10\ns_mul_i32 s33, s35, 5\ns_mul_i32 s33, s33, s36\ns_add_u32 s33, s33, s{S_W1}\ns_add_u32 s30, s33, s3")
        A(f"s_lshl_b32 s33, s{J}, 2\ns_add_u32 s33, s33, s32\ns_lshl_b32 s33, s33, 3\ns_add_u32 s33, s33, s35\ns_lshl_b32 s33, s33, 7\ns_add_u32 s33, s33, {CSP1}")
        ur = [30, 31, 32, 34, 35]
        for u in range(1, 5): A(f"s_add_u32 s{ur[u]}, s{ur[u-1]}, s36")
        frag32_steps(A, VU1, VL16, lambda u: (f"s{ur[u]}", 0), "s33", WS, 64, 88, ONE, st)
        A(f"s_branch {DN}")
        A.lab(HI)
        A(f"s_cmp_lg_u32 s{WV}, 2\ns_cmov_b32 s30, {OOB}\ns_add_u32 s31, s30, 4096\ns_mov_b32 s32, {OOB}")
        for t in range(5):
            for p in range(2): A(f"ds_read_b64_tr_b16 {v(64+4*t+2*p,2)}, v{VU3} offset:{p*640 + t*32}")
        A("s_waitcnt lgkmcnt(0)")
        for t in range(5): A(f"buffer_store_dwordx4 {v(64+4*t,4)}, v{VL16}, {WS}, {'s30' if t < 4 else 's31'} offen offset:{(t&3)*1024} {st}")
        A("s_mov_b64 exec, 1")
        for t in range(4): A(f"buffer_store_dword v64, v{VL16}, {WS}, s32 offen")
        A("s_mov_b64 exec, -1")
        A.lab(DN)
        A.vm = keep + ['us'] * 9; A.lg = []
        A.vmem(f"s_lshl_b32 s3, s{S_U}, 7\ns_add_u32 s3, s3, {KVF}\ns_cmp_lg_u32 s{WV}, 0\ns_cmov_b32 s3, {OOB}\ns_mov_b64 exec, 1\nbuffer_store_dword v{VZ}, v{VZ}, {WS}, s3 offen sc1", 'us')
        A.vmem(f"s_lshl_b32 s3, s{WV}, 8\nbuffer_load_dword v61, v{VZ}, {DS_}, s3 offen sc1\ns_mov_b64 exec, -1", 'dbg')
        self.stamp('s.st')
        qmap = {}
        for st_ in range(40):
            for p in range(2): qmap[10*(st_//5) + cg32(st_ % 5, 0, p)//2] = (st_, p)
        done = set(); gram = [0]
        def gram1():
            if gram[0] < 40 and (gram[0], 0) in done and (gram[0], 1) in done:
                k = gram[0]; gram[0] += 1
                A(f"v_mfma_f32_32x32x16_bf16 {v(GR,16)}, {a(4*k,4)}, {a(4*k,4)}, {'0' if k == 0 else v(GR,16)}")
        def xreads(ch, also=()):
            also = list(also)
            A.wait_vm(('x', ch))
            for k, q in enumerate(range(16*ch, 16*ch + 16)):
                st_, p = qmap[q]
                A(f"v_xor_b32 v{TMP+(k&1)}, {k*16}, v{VAX}")
                A.lds(f"ds_read_b64 {a(4*st_+2*p,2)}, v{TMP+(k&1)} offset:{(ch % NB)*8192}")
                if k % 2:
                    if k % 4 == 3 or ch == 4: gram1()
                    self.drain(also, 6)
            assert not also
            A.wait_lg0()
            for q in range(16*ch, 16*ch + 16): done.add(qmap[q])
        xreads(0, xlist(1 if stg0 else 2))
        stgat = o.get("stgat", 0)
        for x in (xlist(2) if stg0 else (j4 + j5 if stgat == 0 else [])): self.emit(x)
        self.stamp('z.x0')
        A.wait_vm('dbg'); A("s_barrier")
        self.stamp('s.drain')
        W1_ = A.newlab("w"); OKI = A.newlab("oki")
        A(f"s_cmp_lg_u32 s{WV}, 0\ns_cbranch_scc1 {W1_}\ns_mov_b64 exec, 1\nv_cmp_gt_u32 vcc, 1, v61\ns_cbranch_vccz {OKI}")
        self.spin(VZ, "1", 0x10, DS_)
        A.lab(OKI)
        A(f"s_cmp_lt_u32 s{S_U}, 160\ns_cselect_b32 exec_lo, 3, 1\nbuffer_atomic_add v63, v62, {WS}, 0 offen sc1\ns_mov_b64 exec, -1")
        A.lab(W1_)
        x3 = xlist(3)
        if stg0:
            for x in late:
                self.emit(x); self.drain(x3, 3)
            assert not x3
            A.wait_lg0()
        if not stg0 and stgat == 1:
            for x in j4 + j5: self.emit(x)
        self.stamp('z.w2')
        xreads(1, x3)
        if not stg0 and stgat == 2:
            for x in j4 + j5: self.emit(x)
        x4 = xlist(4)
        for n in range(3):
            x4 += [f"s_add_u32 m0, s89, {1024*n}", ('vm', ("s_mov_b32 exec_hi, 0\n" if n == 2 else "") + f"buffer_load_dwordx4 v{140+n}, {XS}, s88 offen lds" + ("\ns_mov_b32 exec_hi, -1" if n == 2 else ""), 'res')]
        x4.append(('vm', f"s_cmp_lg_u32 s{WV}, 0\ns_cselect_b32 s3, {OOB}, 0\ns_mov_b64 exec, 3\nbuffer_load_dword v55, v53, {WS}, s3 offen sc1\ns_mov_b64 exec, -1", 'fl0'))
        while x4:
            self.drain(x4, 3); gram1()
        self.stamp('z.x1')
        ls = sum(self.late_stores, [])
        if not stg0:
            A.wait_vm('stg'); A("s_barrier")
            for x in late: self.emit(x)
            A.wait_lg0()
        xreads(2, ls[:len(ls)//2]); xreads(3, ls[len(ls)//2:])
        self.stamp('z.x3')
        xreads(4)
        self.stamp('s.x')
        W2_ = A.newlab("w")
        A.wait_vm('fl0')
        for k in range(5): A.lds(f"ds_read_b64 {v(RES+2*k,2)}, v{CP+10} offset:{32*k}")
        A(f"s_cmp_lg_u32 s{WV}, 0\ns_cbranch_scc1 {W2_}\ns_mov_b64 exec, 3\nv_cmp_gt_u32 vcc, v54, v55\ns_cbranch_vccz {W2_}a")
        self.spin(53, "v54", 0x20)
        A.lab(W2_ + "a"); A("s_mov_b64 exec, -1")
        A.lab(W2_)
        A("s_barrier")
        self.stamp('s.poll')
        seq, ch = self.p1_seq(AP)
        up = o.get("up1a", 6)
        self.weave_loads(self.capture(self.setup2b), sum((self.rnd(ch[k][0], ch[k][1], ch[k][3], ch[k][2], ('w', k)) for k in range(up)), []), o.get("cevery3", 6), gram1)
        assert gram[0] == 40
        A(f"s_lshl_b32 s99, s{J}, 12\ns_add_u32 s99, s99, {CSP1}")
        rest = [f"v_cndmask_b32 v{GR}, v{GR}, v{GR+k}, s[{MASK+2*k}:{MASK+2*k+1}]" for k in range(1, 16)]
        rest += f"v_mov_b32 v{GR+1}, v{GR}\nv_mov_b32 v{GR+2}, v{GR}\nv_permlane32_swap_b32 v{GR+1}, v{GR+2}\nv_bfe_u32 v48, v{VL}, 2, 1\nv_cmp_eq_u32 vcc, 0, v48\nv_cndmask_b32 v{GR}, v{GR+2}, v{GR+1}, vcc\nv_mul_f32 v{GR}, {fhex(1.0/640)}, v{GR}".split("\n")
        ch = [c + (k < up,) for k, c in enumerate(ch)] + [(S_W3, 30720, 8, lds3(3), None, 999, False)]
        bars = list(range(4, 120, 4))
        jobs, valid, used = self.plan(ch, bars)
        jobs[-1] = (o.get("w3at", 96),) + jobs[-1][1:]
        for k in range(2, up):
            b = max(x for x in bars if x <= ch[k][4]); valid.setdefault(b, []).append(('w', k)); used.add(b)
        jobs += [(2, 22 + k, [('vm', f"buffer_load_dword v{CP+k}, v{CP+8}, {WS}, s99 offen offset:{128*k} sc1", 'cp')]) for k in range(8)]
        sched = self.edf(jobs, 120, lambda k: o.get("r1a", 1.3) if k < 40 else o.get("r1b", 0.4))
        for k in range(28): sched[k] += rest[k*len(rest)//28:(k+1)*len(rest)//28]
        assert not any(isinstance(x, tuple) and x[2] == 'cp' for k in range(29, 120) for x in sched[k])
        sched[29] += [('wv', 'cp')] + [f"v_add_f32 v{CP}, v{CP}, v{CP+k}" for k in range(1, 8)] + self.csfrag(CP, CP+4, 160, CP+9)
        sched[41] = [f"v_mul_f32 v{MU}, {fhex(-1.0/640)}, v{ACC+20}"] + self.split3(MU, AP, 160) + \
            [f"v_fma_f32 v{GR}, -v{MU}, v{MU}, v{GR}", f"v_max_f32 v{GR}, 0, v{GR}", f"v_add_f32 v{GR}, 0x3727c5ac, v{GR}", f"v_rsq_f32 v{RS}, v{GR}"] + sched[41]
        psig = o.get("psig", 24)
        A.wait_vm(('w', 1)); A.wait_lg0(); A("s_barrier")
        self.stamp('p1.go')
        def at_step(st_, fill):
            if st_ in (36, 40, 44):
                while fill: self.emit(fill.pop(0))
            if st_ in used or st_ in (psig, 36, 40):
                for tag in valid.get(st_, []): self.need(tag, fill)
                if st_ == psig: self.need('pst', fill)
                if st_ == 36:
                    A.wait_lg('csw')
                A("s_barrier")
                if st_ == psig: self.packed_signal()
                if o.get("in1"): self.stamp(f'd.{st_}')
            if st_ == 40: self.stamp('p1.a')
            fill += sched[st_]
        self.p1_tail(seq, sched, at_step, RS)

    def stage_jobs(self):
        t = 160
        pre = [f"v_and_b32 v{t+4}, 7, v{VL}", f"v_lshrrev_b32 v{t+5}, 3, v{VL}", f"v_mul_u32_u24 v{t}, 3456, v{t+5}", f"v_lshl_add_u32 v{t}, v{t+4}, 4, v{t}",
               f"s_and_b32 s99, s{S_U}, 7", "s_mul_i32 s99, s99, 80", f"s_mul_i32 s100, s{KH}, 40", "s_add_u32 s99, s99, s100", "s_mul_i32 s99, s99, 3456",
               f"s_lshr_b32 s100, s{S_U}, 3", "s_lshl_b32 s100, s100, 7", "s_add_u32 s99, s99, s100",
               f"s_lshr_b32 s100, s{S_U}, 2", "s_mul_i32 s100, s100, 32*1280", f"s_and_b32 s101, s{S_U}, 3", "s_mul_i32 s101, s101, 320", "s_add_u32 s100, s100, s101",
               f"s_cmp_ge_u32 s{S_U}, 216\ns_cmov_b32 s99, {OOB}\ns_cmov_b32 s100, {OOB}"]
        for n in range(3):
            pre += [f"s_add_u32 s101, s{WV}, {4*n}", "s_min_u32 s101, s101, 9", "s_lshl_b32 s101, s101, 6", f"v_add_u32 v{t+4}, s101, v{VL}", f"v_mul_u32_u24 v{t+5}, 3277, v{t+4}", f"v_lshrrev_b32 v{t+5}, 16, v{t+5}",
                    f"v_mul_u32_u24 v{t+6}, 20, v{t+5}", f"v_sub_u32 v{t+6}, v{t+4}, v{t+6}", f"v_mul_u32_u24 v{t+5}, 1280, v{t+5}", f"v_lshl_add_u32 v{t+1+n}, v{t+6}, 4, v{t+5}"]
        j4 = [f"s_mul_i32 s101, s{WV}, 5120"]
        for n in range(5):
            j4 += [f"s_add_u32 m0, s101, {STG4 + n*1024}", ('vm', f"buffer_load_dwordx4 v{t}, {GUS}, s99 offen {self.nts} lds", 'stg'), f"s_add_u32 s99, s99, {8*3456}"]
        j5 = []
        for n in range(3):
            j5 += [f"s_add_u32 s101, s{WV}, {4*n}", f"s_min_u32 s101, s101, 9", f"s_lshl_b32 s101, s101, 10", f"s_add_u32 m0, s101, {STG5}",
                   ('vm', f"buffer_load_dwordx4 v{t+1+n}, {WDS}, s100 offen {self.nts} lds", 'stg')]
        return pre, j4[:-1], j5

    def pack_late(self):
        st = "sc1"; P = []; L = []
        r, c, G, ad, FR, FD, CA, ONE = 44, 45, 46, 47, 192, 212, 224, 56
        add = lambda txt: P.append(txt)
        add(f"v_bfe_u32 v{r}, v{VL}, 2, 2\nv_and_b32 v{c}, 3, v{VL}\nv_lshrrev_b32 v{G}, 4, v{VL}")
        if M16:
            add(f"v_lshrrev_b32 v{ad}, 1, v{G}\nv_lshl_add_u32 v{ad}, v{ad}, 2, v{r}\nv_lshlrev_b32 v{ad}, 7, v{ad}\nv_lshl_add_u32 v{ad}, v{c}, 3, v{ad}\nv_and_b32 v48, 1, v{G}")
            add(f"v_mul_u32_u24 v48, 10240, v48\nv_add_u32 v{ad}, v{ad}, v48\ns_lshl_b32 s3, s{WV}, 5\ns_add_u32 s3, s3, {STG4}\nv_add_u32 v{ad}, s3, v{ad}")
        else:
            add(f"v_lshrrev_b32 v{ad}, 1, v{G}\nv_lshl_add_u32 v{ad}, v{ad}, 2, v{r}\nv_lshlrev_b32 v{ad}, 7, v{ad}\nv_and_b32 v48, 1, v{c}\nv_lshl_add_u32 v{ad}, v48, 4, v{ad}\nv_and_b32 v48, 1, v{G}\nv_lshl_add_u32 v{ad}, v48, 3, v{ad}")
            add(f"v_lshrrev_b32 v48, 1, v{c}\nv_mul_u32_u24 v48, 10240, v48\nv_add_u32 v{ad}, v{ad}, v48\ns_lshl_b32 s3, s{WV}, 5\ns_add_u32 s3, s3, {STG4}\nv_add_u32 v{ad}, s3, v{ad}")
        add(f"v_lshl_add_u32 v49, v{G}, 3, v{r}\nv_mul_u32_u24 v49, 320, v49\nv_lshl_add_u32 v49, v{c}, 3, v49\ns_mul_i32 s81, s{KH}, 160\ns_mul_i32 s3, s{RR}, 96\ns_add_u32 s81, s81, s3\ns_add_u32 s81, s81, {STG5}\nv_add_u32 v49, s81, v49\ns_lshl_b32 s3, s{RR}, 5\nv_subrev_u32 v50, s3, v49")
        for hf in range(2):
            add(f"s_lshr_b32 s81, s{S_U}, 2\ns_lshl_b32 s81, s81, 1\ns_add_u32 s81, s81, {hf}\ns_mul_i32 s82, s81, 147\ns_lshr_b32 s82, s82, 10\ns_mul_i32 s83, s82, 7\ns_sub_u32 s83, s81, s83")
            add("s_lshl_b32 s81, s82, 2\ns_mul_i32 s82, s82, 3\ns_add_u32 s82, s82, 59\ns_cmp_lt_u32 s83, 4\ns_cselect_b32 s82, s81, s82")
            add("s_add_u32 s82, s82, s83\ns_lshr_b32 s81, s82, 3\ns_lshl_b32 s81, s81, 2\ns_and_b32 s83, s82, 2\ns_add_u32 s81, s81, s83\ns_bfe_u32 s83, s82, 0x10002\ns_add_u32 s81, s81, s83\ns_mul_i32 s81, s81, 5120")
            add(f"s_and_b32 s82, s82, 1\ns_lshl_b32 s82, s82, 9\ns_add_u32 s81, s81, s82\nv_mov_b32 v{51+hf}, s81")
        add(f"s_mov_b32 exec_lo, 0\nv_mov_b32 v51, v52\ns_mov_b32 exec_lo, -1\nv_and_b32 v52, 31, v{VL}\nv_lshl_add_u32 v51, v52, 4, v51\nv_lshrrev_b32 v52, 5, v{VL}\nv_lshlrev_b32 v52, 6, v52")
        add(f"s_and_b32 s86, s{S_U}, 7\ns_lshr_b32 s83, s{S_U}, 3\ns_lshl_b32 s83, s83, 2\ns_add_u32 s83, s83, s{WV}")
        add("s_mul_i32 s87, s83, 147\ns_lshr_b32 s87, s87, 10\ns_mul_i32 s81, s87, 7\ns_sub_u32 s81, s83, s81")
        add(f"s_mov_b32 s82, {P4_GROUPS[0][0]}\ns_mov_b32 s85, {P4_GROUPS[0][1]}")
        for t0, nt in P4_GROUPS[1:]: add(f"s_cmp_ge_u32 s81, {t0}\ns_cselect_b32 s82, {t0}, s82\ns_cselect_b32 s85, {nt}, s85")
        add(f"s_mul_i32 s87, s87, {WP4_J}\ns_mul_i32 s84, s82, 39\ns_add_u32 s84, s84, s81\ns_mul_i32 s82, s86, 5\ns_mul_i32 s82, s82, s85\ns_add_u32 s84, s84, s82\ns_lshl_b32 s84, s84, 10\ns_add_u32 s84, s84, s87\ns_add_u32 s84, s84, {WP4}\ns_lshl_b32 s85, s85, 10")
        add(f"s_lshl_b32 s83, s83, 3\ns_add_u32 s83, s83, s86\ns_lshl_b32 s83, s83, 7\ns_add_u32 s83, s83, {CSP4}")
        add(f"s_and_b32 s82, s{S_U}, 3\ns_lshl_b32 s82, s82, 1\ns_add_u32 s82, s82, s{KH}\ns_mul_i32 s82, s82, {WP5_C}\ns_mul_i32 s81, s{RR}, 3072\ns_add_u32 s82, s82, s81\ns_add_u32 s82, s82, {WP5}")
        add(f"s_cmp_ge_u32 s{S_U}, 216\ns_cmov_b32 s84, {OOB}\ns_cmov_b32 s83, {OOB}\ns_cmov_b32 s82, {OOB}\ns_lshl_b32 s81, s{RR}, 10\ns_sub_u32 s81, s82, s81")
        if self.o.get('oob15', 1):
            add(f"s_sub_u32 s86, s{S_U}, 216\ns_lshl_b32 s86, s86, 12\ns_add_u32 s86, s86, {WP4 + 15*WP4_J + 3072}\ns_lshl_b32 s87, s{WV}, 8\ns_sub_u32 s87, s{S_U}, s87\ns_cmp_ge_i32 s87, 216\ns_cmov_b32 s84, s86\ns_cmov_b32 s85, 0x20000000")
        for u in range(5):
            for p in range(2): L.append(('lg', f"ds_read_b64_tr_b16 {v(FR+4*u+2*p,2)}, v{ad} offset:{4*cg32(u,0,p)*128}", ('pl', u)))
        for k in range(3):
            for p in range(2): L.append(('lg', f"ds_read_b64_tr_b16 {v(FD+4*k+2*p,2)}, v{49 if k < 2 else 50} offset:{p*1280 + k*32}", 'pd'))
        S_ = []
        for u in range(5):
            L += [('wl', ('pl', u)), f"v_mfma_f32_32x32x16_bf16 {v(CA,16)}, {v(FR+4*u,4)}, {v(ONE,4)}, {'0' if u == 0 else v(CA,16)}"]
            S_.append(([f"s_add_u32 s84, s84, s85"] if u else []) + [('vm', f"buffer_store_dwordx4 {v(FR+4*u,4)}, v{VL16}, {WS}, s84 offen {st}", 'pst')])
        for k in range(3): S_.append([('vm', f"buffer_store_dwordx4 {v(FD+4*k,4)}, v51, {WS}, s{82 if k < 2 else 81} offen offset:{k*1024} {st}", 'pst')])
        for q in range(4): S_.append([('vm', f"s_mov_b32 exec_lo, 1\ns_mov_b32 exec_hi, 1\nbuffer_store_dwordx4 {v(CA+4*q,4)}, v52, {WS}, s83 offen offset:{16*q} {st}\ns_mov_b64 exec, -1", 'pst')])
        self.late_stores = S_
        return P, L

    def setup2a(self):
        A = self.A; t = VFREE
        A(f"s_lshl_b32 s3, s{MB}, 4\ns_add_u32 s3, s3, s{J}\ns_mul_i32 s{S_KVO}, s3, {KV_WG}\ns_add_u32 s{S_KVO}, s{S_KVO}, {KV}")
        A(f"s_lshl_b32 s3, s{MB}, 2\ns_lshl_b32 s90, s{RH}, 1\ns_add_u32 s3, s3, s90\ns_add_u32 s3, s3, s{RR}")
        A(f"s_mul_i32 s{S_X}, s3, 40960\ns_mul_i32 s90, s{CT}, 5120\ns_add_u32 s{S_X}, s{S_X}, s90")
        A(f"s_lshl_b32 s{S_STX}, s3, 3\ns_add_u32 s{S_STX}, s{S_STX}, s{CT}\ns_lshl_b32 s{S_STX}, s{S_STX}, 8")
        A(f"s_lshl_b32 s3, s3, 1\ns_add_u32 s{S_A3}, s3, s{KH}\ns_xor_b32 s{S_A3B}, s{S_A3}, 1")
        A(f"v_add_u32 v{VB1}, 0x10000, v{VL16}\nv_add_u32 v{VB2}, 0x20000, v{VL16}")

    def setup2b(self):
        A = self.A; t = VFREE
        m5, h, m4, g = t, t+1, t+2, t+3
        A(f"v_and_b32 v{m5}, 31, v{VL}\nv_lshrrev_b32 v{h}, 5, v{VL}\nv_and_b32 v{m4}, 15, v{VL}\nv_lshrrev_b32 v{g}, 4, v{VL}")
        A(f"v_lshlrev_b32 v{VST}, 3, v{m5}\nv_lshl_add_u32 v{VST}, v{h}, 8, v{VST}")
        assert self.nsh <= 2
        A(f"s_lshl_b32 s3, s{MB}, 8\nv_lshlrev_b32 v{VCNT}, 7, v{VL}\nv_add_u32 v{VCNT}, s3, v{VCNT}")
        A(f"v_sub_u32 v{VKF}, s{MB}, v{VL}\nv_cmp_gt_i32 vcc, 0, v{VKF}\nv_mov_b32 v{t+4}, s{MB}\nv_cndmask_b32 v{VKF}, v{VKF}, v{t+4}, vcc\nv_lshlrev_b32 v{VKF}, 4, v{VKF}\nv_add_u32 v{VKF}, s{J}, v{VKF}\nv_lshlrev_b32 v{VKF}, 7, v{VKF}\nv_add_u32 v{VKF}, {KVF}, v{VKF}")
        A(f"s_mul_i32 s3, s{J}, 7\ns_lshr_b32 s3, s3, 2\nv_mov_b32 v{VKT}, 8")
        for k in range(3): A(f"s_add_u32 s100, s3, {k}\ns_min_u32 s100, s100, 26\ns_lshl_b32 s100, s100, 7\ns_add_u32 s100, s100, {PK4}\nv_writelane_b32 v{VKF}, s100, {3+k}")
        A(f"s_lshr_b32 s3, s{CT}, 1\ns_lshl_b32 s3, s3, 7\ns_add_u32 s3, s3, {PK5}\nv_writelane_b32 v{VKF}, s3, 6\nv_writelane_b32 v{VKT}, 54, 6")
        A(f"s_lshl_b32 s3, s{MB}, 3\ns_lshl_b32 s100, s{WV}, 1\ns_add_u32 s3, s3, s100\ns_mul_i32 s3, s3, 20480\ns_mul_i32 s100, s{J}, 1280\ns_add_u32 s3, s3, s100\ns_add_u32 s3, s3, {OO}")
        A(f"v_lshrrev_b32 v{t+4}, 4, v{m5}\nv_mul_u32_u24 v{t+5}, 20480, v{t+4}\nv_lshl_add_u32 v{t+5}, v{m4}, 4, v{t+5}\nv_add_u32 v{VO3}, s3, v{t+5}\nv_lshl_add_u32 v{VO1}, v{h}, 8, v{VO3}")
        A(f"v_mul_u32_u24 v{VH}, {54*1024}, v{t+4}\nv_lshl_add_u32 v{VH}, v{m4}, 4, v{VH}\nv_lshl_add_u32 v{VH}, v{h}, 8, v{VH}")
        A(f"s_lshl_b32 s3, s{KH}, 4\nv_add_u32 v{t+4}, s3, v{m4}\nv_lshlrev_b32 v{VSX}, 3, v{t+4}\nv_and_b32 v{t+5}, 1, v{g}\nv_lshl_add_u32 v{t+4}, v{t+5}, 5, v{t+4}")
        A(f"v_lshlrev_b32 v{VX}, 4, v{t+4}\nv_lshl_add_u32 v{VX}, v{h}, 10, v{VX}")
        A(f"s_mul_i32 s3, s{WV}, 2560\ns_add_u32 s3, s3, {KREG}\nv_add_u32 v{VK}, s3, v{VL16}\ns_add_u32 s3, s3, 2048\nv_lshlrev_b32 v{VKS}, 3, v{VL}\nv_add_u32 v{VKS}, s3, v{VKS}")
        A(f"s_mul_i32 s3, s{WV}, 3328\ns_add_u32 s3, s3, {VREG - 32}")
        A(f"v_mul_u32_u24 v{VV}, 416, v{h}\nv_and_b32 v{t+4}, 1, v{g}\nv_lshl_add_u32 v{VV}, v{t+4}, 7, v{VV}\nv_and_b32 v{t+4}, 3, v{VL}\nv_lshl_add_u32 v{VV}, v{t+4}, 5, v{VV}")
        A(f"v_bfe_u32 v{t+4}, v{VL}, 2, 2\nv_lshl_add_u32 v{VV}, v{t+4}, 3, v{VV}\nv_add_u32 v{VV}, s3, v{VV}")
        A(f"s_add_u32 s3, s3, {8*3328 + 32}\nv_lshrrev_b32 v{t+4}, 2, v{m5}\nv_mul_u32_u24 v{t+4}, 416, v{t+4}\nv_and_b32 v{t+5}, 3, v{VL}\nv_lshl_add_u32 v{t+4}, v{t+5}, 3, v{t+4}\nv_add_u32 v{t+4}, s3, v{t+4}")
        A(f"v_lshl_add_u32 v{VW2}, v{h}, 6, v{t+4}\nv_lshl_add_u32 v{VW1}, v{h}, 5, v{t+4}\nv_mul_u32_u24 v{t+5}, 384, v{h}\nv_add_u32 v{VW12}, v{t+5}, v{t+4}")
        A(f"s_mul_i32 s3, s{WV}, 5120\nv_add_u32 v{VXW}, s3, v{VL16}\ns_xor_b32 s3, s{WV}, 1\ns_mul_i32 s3, s3, 5120\nv_add_u32 v{VXR}, s3, v{VL16}")
        A(f"v_lshlrev_b32 v{t+4}, 2, v{h}\nv_sub_u32 v{t+4}, v{m5}, v{t+4}")
        for r in range(16):
            A(f"v_cmp_le_i32 s[{MASK+2*r}:{MASK+2*r+1}], {8*(r>>2) + (r&3)}, v{t+4}")
        A(f"v_mov_b32 v{t+5}, 0xffff\nv_mov_b32 v{t+6}, 0xffff0000")
        for rr in range(8):
            A(f"v_cndmask_b32 v{PM+rr}, 0, v{t+5}, s[{MASK+4*rr}:{MASK+4*rr+1}]\nv_cndmask_b32 v{t+7}, 0, v{t+6}, s[{MASK+4*rr+2}:{MASK+4*rr+3}]\nv_or_b32 v{PM+rr}, v{PM+rr}, v{t+7}")

    def stats_load(self, off, dst, sr=T[3]):
        A = self.A
        A(f"s_add_u32 s{sr}, s{SL}, s{S_ST1}\ns_add_u32 s{sr}, s{sr}, {off}")
        for i in range(4):
            A.vmem(f"buffer_load_dwordx2 {v(dst+2*i,2)}, v{VST}, {WS}, s{sr} offen offset:{512*i} {self.ld}", 'st')

    def stats_finish(self, d, mu, rs):
        return [f"v_add_f32 v{d}, v{d}, v{d+2}", f"v_add_f32 v{d+1}, v{d+1}, v{d+3}", f"v_add_f32 v{d+4}, v{d+4}, v{d+6}", f"v_add_f32 v{d+5}, v{d+5}, v{d+7}",
                f"v_add_f32 v{d}, v{d}, v{d+4}", f"v_add_f32 v{d+1}, v{d+1}, v{d+5}", f"v_mov_b32 v{d+2}, v{d}", f"v_mov_b32 v{d+3}, v{d+1}",
                f"v_permlane32_swap_b32 v{d}, v{d+2}", f"v_permlane32_swap_b32 v{d+1}, v{d+3}",
                f"v_add_f32 v{d}, v{d}, v{d+2}", f"v_add_f32 v{d+1}, v{d+1}, v{d+3}",
                f"v_mul_f32 v{mu}, {fhex(-1.0/640)}, v{d}", f"v_mul_f32 v{d+1}, {fhex(1.0/640)}, v{d+1}",
                f"v_fma_f32 v{d+1}, -v{mu}, v{mu}, v{d+1}", f"v_max_f32 v{d+1}, 0, v{d+1}", f"v_add_f32 v{d+1}, 0x3727c5ac, v{d+1}",
                f"v_rsq_f32 v{rs}, v{d+1}"]

    def a_load(self, st_, sreg, dst, tag):
        self.A.vmem(f"buffer_load_dwordx4 {a(dst,4)}, v{VL16}, {WS}, s{sreg} offen offset:{(st_ & 3)*1024} {self.ld}", tag)

    def p1_seq(self, AP):
        ACC = 64
        ad = [[20480 + 8192*c for c in range(10)], [110592, 118784, 126976, 135168, 45056], [0, 8192, 20480, 28672, 36864]]
        seq = [(k, ACC + 16*t, ad[0][k >> 2] + (k & 3)*2048 + 1024*t, a(4*k, 4), k == 0) for k in range(40) for t in range(2)]
        two = self.o.get("twoacc", 0); self.alt = {2: 44, 3: ACC} if two else None
        one = lambda t: [(40*(t - 1) + k, self.alt[t] if two and k & 1 else ACC + 16*t, ad[t - 1][k >> 3] + (k & 7)*1024, a(4*k, 4), k <= two) for k in range(40)]
        cs = lambda t, st_: (st_, ACC + 16*t, CSF1 + 1024*t, v(AP, 4), False)
        sB, sC = one(2), one(3)
        seq += sB[:5] + [cs(0, 44), cs(1, 44)] + sB[5:] + [cs(2, 79)] + sC + [cs(3, 119)]
        vis = lambda nf: seq[max(nf - 8, 0)][0]
        idx = {(e[0], e[1]): n for n, e in reversed(list(enumerate(seq)))}
        ch = [(S_W1, c*8192, 2, ad[0][c], vis(8*c), 4*c + 3) for c in range(10)]
        for t in (2, 3): ch += [(S_W1, 40960*t + c*8192, 2, ad[t - 1][c], vis(idx[(40*(t - 1) + 8*c, ACC + 16*t)]), 40*(t - 1) + 8*c + 7) for c in range(5)]
        return seq, ch

    def p1(self):
        A = self.A; o = self.o
        STD, MU, RS, AP = 160, 168, 169, 172
        SA = T[4]
        def aload(st_):
            L = [f"s_add_u32 s{SA}, s{SA}, 4096"] if st_ and st_ % 4 == 0 else []
            return L + [('vm', f"buffer_load_dwordx4 {a(4*st_,4)}, v{VL16}, {WS}, s{SA} offen offset:{(st_ & 3)*1024} {self.ld}", ('a', st_))]
        A(f"s_add_u32 s{SA}, s{SL}, s{S_A1}")
        up = o.get("up1", 12); gate = o.get("gate1", 4) if self.es else 0
        if not self.es: self.stats_load(STA, STD)
        for k in range(up): [self.emit(x) for x in aload(k)]
        if self.es: self.reload("main_rl1", 0x580, [f"s_add_u32 s3, s{SL}, s{S_A1}\ns_add_u32 s3, s3, {k*1024}\nbuffer_load_dwordx4 {a(4*k,4)}, v{VL16}, {WS}, s3 offen sc1" for k in range(up)])
        seq, ch = self.p1_seq(AP)
        ch = [c + (k < self.pre1,) for k, c in enumerate(ch)] + [(S_W3, 30720, 8, lds3(3), None, 999, False)]
        bars = list(range(4, 120, 4))
        jobs, valid, used = self.plan(ch, bars)
        jobs[-1] = (o.get("w3at", 96),) + jobs[-1][1:]
        jobs += [(gate, k, aload(k)) for k in range(up, 40)]
        sched = self.edf(jobs, 120, lambda k: o.get("r1", 1.1) if k < 40 else o.get("r1b", 0.4), o.get("cr1", 0))
        sched[26] += [('wv', 'st')] + self.stats_finish(STD, MU, RS) + self.split3(MU, AP, STD)
        def at_step(st_, fill):
            if st_ == 40:
                while fill: self.emit(fill.pop(0))
            if st_ in used or st_ == 40:
                for tag in valid.get(st_, []): self.need(tag, fill)
                A("s_barrier")
            if st_ == 40: self.stamp('p1.a')
            self.es_hooks(st_, fill, up, gate, "main_rl1", 0x590, lambda: self.stats_load(STA, STD))
            fill += sched[st_]
            if st_ < 40: self.need(('a', st_), fill)
        self.p1_tail(seq, sched, at_step, RS, (('a', 0), 'p1.go'))

    def p1_tail(self, seq, sched, at_step, RS, go=None):
        A = self.A; ACC, PK, RQ, VC = 64, 176, 170, 192
        self.QA1, self.QB1, self.QA2, self.QB2 = 224, 228, 232, 236
        def quad(t, j, dst, sc):
            r = ACC + 16*t + 4*j
            return [f"v_mul_f32 v{r+i}, v{sc}, v{r+i}" for i in range(4)] + [f"v_cvt_pk_bf16_f32 v{dst}, v{r}, v{r+1}", f"v_cvt_pk_bf16_f32 v{dst+1}, v{r+2}, v{r+3}"]
        KA, KB, KS, VT = PK, PK+4, PK+8, 208
        L = [f"s_add_u32 s{T[4]}, s{SL}, s{S_KVO}", f"s_mul_i32 s{T[5]}, s{WV}, 2560", f"s_add_u32 s{T[5]}, s{T[5]}, s{T[4]}", f"s_mul_i32 s{T[6]}, s{WV}, 3328",
             f"s_add_u32 s{T[7]}, s{T[6]}, {VREG + 8*3328}", f"s_add_u32 s{T[6]}, s{T[6]}, s{T[4]}", f"s_add_u32 s{T[6]}, s{T[6]}, 10240",
             f"v_add_u32 v{PK+11}, s{T[7]}, v{VL16}", f"v_lshlrev_b32 v{PK+10}, 3, v{VL}", f"v_mov_b32 v{VT+10}, 0x3f803f80", f"v_mov_b32 v{VT+11}, 0x3f803f80",
             ('lg', f"ds_write_b64 v{VW1}, {v(VT+10,2)} offset:{5*32}", None), f"v_mul_f32 v{RQ}, {fhex(QSCALE)}, v{RS}"]
        for n, (t, j, ad, pos) in enumerate(((0, 0, VW2, 1), (0, 1, VW2, 2), (0, 2, VW12, 0), (0, 3, VW2, 7), (1, 0, VW2, 8))):
            L += quad(t, j, VT+2*n, RS) + [('lg', f"ds_write_b64 v{ad}, {v(VT+2*n,2)} offset:{pos*32}", 'vw')]
        L += quad(1, 2, KA, RS) + [('wl', 'vw')] + [('lg', f"ds_read_b128 {v(VC+4*n,4)}, v{PK+11} offset:{1024*n}", ('vc', n)) for n in range(4)] + quad(1, 3, KA+2, RS)
        L += [('vm', f"buffer_store_dwordx4 {v(KA,4)}, v{VL16}, {WS}, s{T[5]} offen {self.stkv}", 'out'), ('lg', f"ds_write_b128 v{VK}, {v(KA,4)} offset:{8*2560}", None)]
        st_v = lambda n: [('wl', ('vc', n)), ('vm', ("s_mov_b64 exec, 0xffff\n" if n == 3 else "") + f"buffer_store_dwordx4 {v(VC+4*n,4)}, v{VL16}, {WS}, s{T[6]} offen offset:{1024*n} {self.stkv}" + ("\ns_mov_b64 exec, -1" if n == 3 else ""), 'out')]
        L += st_v(0) + st_v(1) + st_v(2) + st_v(3)
        join = lambda t, j: [f"v_add_f32 v{ACC+16*t+4*j+i}, v{ACC+16*t+4*j+i}, v{self.alt[t]+4*j+i}" for i in range(4)] if self.alt else []
        q0 = quad
        quad = lambda t, j, dst, sc: join(t, j) + q0(t, j, dst, sc)
        M = quad(2, 1, KB, RS) + quad(2, 2, KB+2, RS)
        M += [('vm', f"buffer_store_dwordx4 {v(KB,4)}, v{VL16}, {WS}, s{T[5]} offen offset:1024 {self.stkv}", 'out')] + quad(2, 0, KS, RS)
        M += [('vm', f"buffer_store_dwordx2 {v(KS,2)}, v{PK+10}, {WS}, s{T[5]} offen offset:2048 {self.stkv}", 'out')]
        M += [('lg', f"ds_write_b128 v{VK}, {v(KB,4)} offset:{8*2560+1024}", None), ('lg', f"ds_write_b64 v{VKS}, {v(KS,2)} offset:{8*2560}", None)]
        M += quad(2, 3, self.QA1, RQ) + [f"v_mov_b32 v{q+k}, 0" for q in (self.QA2, self.QB2) for k in (2, 3)]
        self.run32(seq, [128 + 4*k for k in range(8)], sched, at_step, [(L, 88, self.o.get("kvrate", 3), self.o.get("gapv", 20)), (M, 125, self.o.get("krate", 4), self.o.get("gapk", 24))], go)
        assert not L and not M
        self.stamp('p1.main')
        A.wait_vm('out'); A.wait_lg0()
        self.qpack = quad(3, 0, self.QA1+2, RQ) + quad(3, 1, self.QA2, RQ) + quad(3, 2, self.QB1, RQ) + quad(3, 3, self.QB1+2, RQ)

    def kv_sync(self):
        A = self.A; N = A.newlab("nw0"); E = A.newlab("syn"); N0 = A.newlab("nw0")
        A.vm = []; A.lg = []
        A("s_barrier")
        self.stamp('p1.drain')
        A(f"s_cmp_lg_u32 s{WV}, 0\ns_cbranch_scc1 {N0}\ns_add_u32 s3, s{LAY}, 1\ns_mov_b64 exec, 7\nv_mov_b32 v{VKT}, s3\ns_mov_b64 exec, 1\nbuffer_store_dword v{VKT}, v{VKF}, {WS}, 0 offen sc1\ns_mov_b64 exec, -1")
        A.lab(N0)
        A("s_nop 7")
        for x in self.qpack: A(x)
        A(f"v_mov_b32 v{self.QB2}, v{self.QA2}\nv_mov_b32 v{self.QB2+1}, v{self.QA2+1}")
        A(f"s_mov_b32 exec_lo, 0\nv_mov_b32 v{self.QA2}, 0\nv_mov_b32 v{self.QA2+1}, 0\ns_mov_b32 exec_lo, -1\ns_mov_b32 exec_hi, 0\nv_mov_b32 v{self.QB2}, 0\nv_mov_b32 v{self.QB2+1}, 0\ns_mov_b32 exec_hi, -1")
        self.code_touch()
        self.mark([("", VO1, SL, 0, ""), ("", VO1, SL, 768, ""), ("s_mov_b32 exec_lo, 0\n", VO3, SL, 512, "\ns_mov_b32 exec_lo, -1")])
        G = [(28, 29, 31, 32), (33, 34, 35, 99)]
        A(f"s_mul_i32 s100, s{WV}, 6144\ns_add_u32 s101, s100, 4096\ns_min_u32 s101, s101, 21504")
        for src in range(2):
            back = 2 - src; g1, l1, g2, l2 = G[src]
            A(f"s_add_u32 s3, s{SL}, s{S_KVO}\ns_sub_u32 s3, s3, {back*16*KV_WG}\ns_cmp_lt_u32 s{MB}, {back}\ns_cmov_b32 s3, {OOB}\ns_add_u32 s{g1}, s3, s100\ns_add_u32 s{g2}, s3, s101")
            ko = KREG + src*10240; vo = VREG + src*13312 - 10240
            A(f"s_cmp_lt_u32 s{WV}, 2"); sel(A, l1, ko, vo); A(f"s_cmp_lt_u32 s{WV}, 1"); sel(A, l2, ko, vo)
            A(f"s_add_u32 s{l1}, s{l1}, s100\ns_add_u32 s{l2}, s{l2}, s101")
        A(f"s_cmp_lg_u32 s{WV}, 0\ns_cbranch_scc1 {N}\ns_cmp_eq_u32 s{LAY}, 0\ns_cselect_b32 exec_lo, 0x7f, 7\ns_mov_b32 exec_hi, 0")
        self.spin(VKF, f'v{VKT}', 0x100)
        A(f"s_mov_b64 exec, -1")
        self.stamp('p1.poll')
        A(f"s_branch {E}")
        A.lab(N)
        self.rnd3(S_W3, 0, 0, 10)
        A.lab(E)
        A("s_barrier")
        for tag, (g1, l1, g2, l2) in (('halo1', G[1]), ('halo2', G[0])):
            for g, l, n in ((g1, l1, 4), (g2, l2, 2)):
                A(f"s_mov_b32 m0, s{l}")
                for i in range(n): A.vmem(f"buffer_load_dwordx4 v{VL16}, {WS}, s{g} offen offset:{1024*i} {self.ld} lds", tag)
        if self.o.get("prediag", 1):
            k = 162
            A(f"ds_read_b64 {v(k,2)}, v{VKS} offset:{8*2560}\nds_read_b128 {v(k+2,4)}, v{VK} offset:{8*2560}\nds_read_b128 {v(k+6,4)}, v{VK} offset:{8*2560+1024}\ns_waitcnt lgkmcnt(0)")
            for hd, (sd, q1, q2) in enumerate(((80, self.QA1, self.QA2), (208, self.QB1, self.QB2))):
                A(f"v_mfma_f32_32x32x16_bf16 {v(sd,16)}, {v(k+2+4*hd,4)}, {v(q1,4)}, 0\nv_mfma_f32_32x32x16_bf16 {v(sd,16)}, {v(k,4)}, {v(q2,4)}, {v(sd,16)}")
        A.wait_vm('halo1'); A("s_barrier")
        self.stamp('p2.go')

    def packed_signal(self):
        A = self.A; L = A.newlab("ps"); t = 60
        A(f"s_cmp_lg_u32 s{WV}, 0\ns_cbranch_scc1 {L}\ns_cmp_ge_u32 s{S_U}, 216\ns_cbranch_scc1 {L}")
        A(f"s_lshr_b32 s101, s{S_U}, 3\ns_lshl_b32 s101, s101, 7\ns_add_u32 s101, s101, {PK4}\nv_mov_b32 v{t}, s101\ns_and_b32 s101, s{S_U}, 3\ns_lshl_b32 s101, s101, 7\ns_add_u32 s101, s101, {PK5}\nv_writelane_b32 v{t}, s101, 1")
        A(f"s_mov_b64 exec, 3\nv_mov_b32 v{t+1}, 1\nbuffer_atomic_add v{t+1}, v{t}, {WS}, 0 offen sc1\ns_mov_b64 exec, -1")
        A.lab(L)

    def colsums(self, between, nb):
        A = self.A; L = A.newlab("x0"); L1 = A.newlab("x1"); t = 80
        A(f"s_lshl_b32 s{T[7]}, s{LAY}, 2\ns_sub_u32 s{T[7]}, s{RR}, s{T[7]}\ns_cmp_lg_u32 s{T[7]}, 1\ns_cbranch_scc1 {L1}")
        A(f"s_mul_i32 s{T[5]}, s{J}, 7168\ns_add_u32 s{T[5]}, s{T[5]}, {CSP4 - 4096}")
        A(f"s_lshl_b32 s{T[6]}, s{S_WI}, 7\nv_add_u32 v{t}, s{T[6]}, v{VL}")
        for r in range(2):
            A(f"v_add_u32 v{t+1}, {64*r}, v{t}\nv_lshrrev_b32 v{t+2}, 5, v{t+1}\nv_and_b32 v{t+3}, 31, v{t+1}\nv_lshlrev_b32 v{t+3}, 2, v{t+3}\nv_lshl_add_u32 v{t+2}, v{t+2}, 10, v{t+3}")
            for k in range(8): A(f"buffer_load_dword v{t+4+8*r+k}, v{t+2}, {WS}, s{T[5]} offen offset:{128*k} sc1")
        A.lab(L1)
        between()
        A(f"s_cmp_lg_u32 s{T[7]}, 1\ns_cbranch_scc1 {L}")
        A(self.csaddr(t, t+2, t+3, CSF4 - 4096) + f"\nv_add_u32 v{t+3}, 2048, v{t+2}\ns_waitcnt vmcnt({nb})")
        for k in range(1, 8): A(f"v_add_f32 v{t+4}, v{t+4}, v{t+4+k}\nv_add_f32 v{t+12}, v{t+12}, v{t+12+k}")
        for x in self.csfrag(t+4, 64, 68, t+2) + self.csfrag(t+12, 72, 68, t+3): A(x[1] if isinstance(x, tuple) else x)
        A("s_waitcnt lgkmcnt(0)")
        A.lab(L)

    def p2(self):
        A = self.A
        SB = [48, 64, 80]; PB = [96, 104]; PD = 112; OA = [128, 144]; KF = [162, 174]; VF = [184, 192, 200]; CB = [208, 240]
        Q1 = [self.QA1, self.QB1]; Q2 = [self.QA2, self.QB2]
        cz = self.o.get("czero", True)
        order = list(range(7, 0, -1))
        nxt = dict(zip(order, order[1:] + [0]))
        blocks = [(i, hd) for i in order for hd in range(2)] + [('m', 0), ('m', 1)]
        N = len(blocks)
        def kread(i, buf):
            k = KF[buf]
            return [('lg', f"ds_read_b64 {v(k,2)}, v{VKS} offset:{i*2560}", ('k', i)), ('lg', f"ds_read_b128 {v(k+2,4)}, v{VK} offset:{i*2560}", ('k', i)),
                    ('lg', f"ds_read_b128 {v(k+6,4)}, v{VK} offset:{i*2560+1024}", ('k', i))]
        def vread(i, hd, buf):
            return [('lg', f"ds_read_b64_tr_b16 {v(VF[buf]+4*aa+2*p,2)}, v{VV} offset:{i*3328 + (4*aa+2*p)*416 + 192*hd}", ('v', i, hd)) for aa in range(2) for p in range(2)]
        kbuf = {i: i % 2 for i in range(1, 8)}; kbuf[0] = 0; kbuf[8] = 1
        def smf(i, hd, sb):
            k = KF[kbuf[i]]; c = '0' if cz else v(CB[hd], 16)
            return [('mf', f"v_mfma_f32_32x32x16_bf16 {v(sb,16)}, {v(k+2+4*hd,4)}, {v(Q1[hd],4)}, {c}", ('k', i)),
                    ('mf', f"v_mfma_f32_32x32x16_bf16 {v(sb,16)}, {v(k,4)}, {v(Q2[hd],4)}, {v(sb,16)}", None)]
        started = [False, False]
        def pvf(i, hd, pb, vb):
            L = []
            for aa in range(2):
                c = v(OA[hd], 16) if started[hd] else '0'; started[hd] = True
                L.append(('mf', f"v_mfma_f32_32x32x16_bf16 {v(OA[hd],16)}, {v(VF[vb]+4*aa,4)}, {v(pb+4*aa,4)}, {c}", ('v', i, hd) if aa == 0 else None))
            return L
        def emit(x):
            if isinstance(x, str): A(x)
            elif x[0] == 'vm': A.vmem(x[1], x[2])
            elif x[0] == 'lg': A.lds(x[1], x[2])
            else:
                if x[2] is not None: A.wait_lg(x[2])
                A(x[1])
        def weave(mfs, fill):
            cost = lambda x: 8 if isinstance(x, str) and x.startswith("v_exp") else 4
            tot = sum(map(cost, fill)); acc = 0; k = 0
            for x in fill:
                while k < len(mfs) and acc >= tot * k / len(mfs): emit(mfs[k]); k += 1
                emit(x); acc += cost(x)
            while k < len(mfs): emit(mfs[k]); k += 1
        sbuf = lambda n: SB[n % 2]
        pd = self.o.get("prediag", 1); SD = [80, 208] if pd else [80, 80]
        for x in kread(order[0], kbuf[order[0]]): emit(x)
        for x in smf(order[0], 0, sbuf(0)): emit(x)
        for n in range(N + 1):
            mfs = []; fill = []
            if n + 1 < N:
                i, hd = blocks[n+1]
                if i == 'm': mfs += smf(0, hd, sbuf(n+1)) + ([] if pd else smf(8, hd, SB[2]))
                else: mfs += smf(i, hd, sbuf(n+1))
            pv = []
            if n >= 1:
                i, hd = blocks[n-1]
                if i == 'm': pv = pvf(0, hd, PB[(n-1) % 2], (n-1) % 2) + pvf(8, hd, PD, 2)
                else: pv = pvf(i, hd, PB[(n-1) % 2], (n-1) % 2)
            if n < N:
                i, hd = blocks[n]
                if i != 'm' and hd == 0:
                    if nxt[i] == 3:
                        A.wait_vm('halo2'); A("s_barrier")
                    fill += kread(nxt[i], kbuf[nxt[i]])
                sb = sbuf(n)
                if i == 'm':
                    pre = [f"v_cndmask_b32 v{sb+r}, v{sb+r}, v{SD[hd]+r}, s[{MASK+2*r}:{MASK+2*r+1}]" for r in range(16)]
                    for x in pre: emit(x)
                    for x in pv: emit(x)
                    pv = []
                    fill += vread(0, hd, n % 2) + vread(8, hd, 2)
                else:
                    fill += vread(i, hd, n % 2)
                ex = []
                for r in range(16):
                    ex.append(f"v_exp_f32 v{sb+r}, v{sb+r}")
                    if r >= 3 and r % 2 == 1: ex.append(f"v_cvt_pk_bf16_f32 v{PB[n%2]+(r-3)//2}, v{sb+r-3}, v{sb+r-2}")
                ex.append(f"v_cvt_pk_bf16_f32 v{PB[n%2]+7}, v{sb+14}, v{sb+15}")
                if i == 'm':
                    for rr in range(8):
                        ex.append(f"v_and_b32 v{PD+rr}, v{PM+rr}, v{PB[n%2]+rr}")
                        ex.append(f"v_bfi_b32 v{PB[n%2]+rr}, v{PM+rr}, 0, v{PB[n%2]+rr}")
                fill += ex
                if blocks[n] == (order[-1], 1) and not pd:
                    for x in mfs[:2]: emit(x)
                    for x in kread(8, kbuf[8]): emit(x)
                    mfs = pv + mfs[2:]; pv = []
            weave(mfs + pv, fill) if fill else [emit(x) for x in mfs + pv]
        A(f"v_min_f32 v48, v{OA[0]+12}, v{OA[1]}\nv_max_f32 v49, v{OA[0]+12}, v{OA[1]}\nv_cmp_u_f32 s[36:37], v{OA[0]+12}, v{OA[1]}")
        A(f"v_cmp_gt_f32 vcc, {fhex(2.0**-60)}, v48\ns_or_b64 s[36:37], s[36:37], vcc\nv_cmp_lt_f32 vcc, {fhex(2.0**60)}, v49\ns_or_b64 s[36:37], s[36:37], vcc\ns_cbranch_scc1 main_slow")
        if self.o.get("forceslow"): A("s_branch main_slow")
        A.lab("main_slow_back")
        self.slow_attention(OA, Q1, Q2)
        A("s_barrier")
        if self.o.get("estest"):
            LT = A.newlab("t"); A(f"s_cmp_lg_u32 s{LAY}, 0\ns_cbranch_scc1 {LT}"); self.early_signal(True); A.lab(LT)
        self.early_signal()
        self.stamp('p2.main')
        ra, rb = 48, 49
        A(f"v_rcp_f32 v{ra}, v{OA[0]+12}\nv_rcp_f32 v{rb}, v{OA[1]}")
        A(f"s_nop 0")
        def pk(dst, r, rs):
            for i in range(4): A(f"v_mul_f32 v{r+i}, v{rs}, v{r+i}")
            A(f"v_cvt_pk_bf16_f32 v{dst}, v{r}, v{r+1}\nv_cvt_pk_bf16_f32 v{dst+1}, v{r+2}, v{r+3}")
        pk(52, OA[0]+4, ra); pk(54, OA[0]+8, ra)
        A.vmem(f"buffer_store_dwordx4 {v(52,4)}, v{VO1}, {WS}, s{SL} offen {self.st}")
        pk(56, OA[1]+4, rb); pk(58, OA[1]+8, rb)
        A.vmem(f"buffer_store_dwordx4 {v(56,4)}, v{VO1}, {WS}, s{SL} offen offset:768 {self.st}")
        pk(60, OA[0], ra); pk(62, OA[1]+12, rb)
        A("s_mov_b32 exec_lo, 0")
        A.vmem(f"buffer_store_dwordx4 {v(60,4)}, v{VO3}, {WS}, s{SL} offen offset:512 {self.st}", 'out')
        A("s_mov_b32 exec_lo, -1")

    def slow_attention(self, OA, Q1, Q2):
        B = Asm(); B.uid = 9000
        S_, P_, K_, V_, C_, M_, AK, AKS, AV, NI = 48, 96, 162, 184, 208, 64, 65, 66, 67, 68
        I, I0 = T[0], T[1]
        B.lab("main_slow")
        B(f"s_lshl_b32 s{I0}, s{MB}, 2\ns_add_u32 s{I0}, s{I0}, s{WV}\ns_min_u32 s{I0}, s{I0}, 8\ns_sub_u32 s{I0}, 8, s{I0}\nv_mov_b32 v{NI}, 0xff800000")
        def scores(hd, c, tag):
            B(f"s_mul_i32 s3, s{I}, 2560\nv_add_u32 v{AK}, s3, v{VK}\nv_add_u32 v{AKS}, s3, v{VKS}\ns_mul_i32 s3, s{I}, 3328\nv_add_u32 v{AV}, s3, v{VV}")
            B(f"ds_read_b64 {v(K_,2)}, v{AKS}\nds_read_b128 {v(K_+2,4)}, v{AK}\nds_read_b128 {v(K_+6,4)}, v{AK} offset:1024\ns_waitcnt lgkmcnt(0)")
            B(f"v_mfma_f32_32x32x16_bf16 {v(S_,16)}, {v(K_+2+4*hd,4)}, {v(Q1[hd],4)}, {c}\nv_mfma_f32_32x32x16_bf16 {v(S_,16)}, {v(K_,4)}, {v(Q2[hd],4)}, {v(S_,16)}\ns_nop 15")
            B(f"s_cmp_lg_u32 s{I}, 0\ns_cbranch_scc1 {tag}_a")
            for r in range(16): B(f"v_cndmask_b32 v{S_+r}, v{S_+r}, v{NI}, s[{MASK+2*r}:{MASK+2*r+1}]")
            B.lab(f"{tag}_a")
            B(f"s_cmp_lg_u32 s{I}, 8\ns_cbranch_scc1 {tag}_b")
            for r in range(16): B(f"v_cndmask_b32 v{S_+r}, v{NI}, v{S_+r}, s[{MASK+2*r}:{MASK+2*r+1}]")
            B.lab(f"{tag}_b")
        for hd in range(2):
            B(f"v_mov_b32 v{M_}, v{NI}\ns_mov_b32 s{I}, s{I0}")
            B.lab(f"main_max{hd}")
            scores(hd, '0', f"main_m{hd}")
            for r in range(0, 16, 2): B(f"v_max3_f32 v{M_}, v{M_}, v{S_+r}, v{S_+r+1}")
            B(f"s_add_u32 s{I}, s{I}, 1\ns_cmp_le_u32 s{I}, 8\ns_cbranch_scc1 main_max{hd}")
            B(f"v_mov_b32 v{M_+5}, v{M_}\nv_permlane32_swap_b32 v{M_}, v{M_+5}\nv_max_f32 v{M_}, v{M_}, v{M_+5}")
            for r in range(16): B(f"v_sub_f32 v{C_+r}, 0, v{M_}\nv_mov_b32 v{OA[hd]+r}, 0")
            B(f"s_mov_b32 s{I}, s{I0}\ns_nop 1")
            B.lab(f"main_sum{hd}")
            scores(hd, v(C_, 16), f"main_s{hd}")
            for aa in range(2):
                for p in range(2): B(f"ds_read_b64_tr_b16 {v(V_+4*aa+2*p,2)}, v{AV} offset:{(4*aa+2*p)*416 + 192*hd}")
            for r in range(16): B(f"v_exp_f32 v{S_+r}, v{S_+r}")
            for r in range(8): B(f"v_cvt_pk_bf16_f32 v{P_+r}, v{S_+2*r}, v{S_+2*r+1}")
            B("s_waitcnt lgkmcnt(0)")
            for aa in range(2): B(f"v_mfma_f32_32x32x16_bf16 {v(OA[hd],16)}, {v(V_+4*aa,4)}, {v(P_+4*aa,4)}, {v(OA[hd],16)}")
            B(f"s_nop 7\ns_add_u32 s{I}, s{I}, 1\ns_cmp_le_u32 s{I}, 8\ns_cbranch_scc1 main_sum{hd}")
        B("s_nop 15\ns_branch main_slow_back")
        self.rare.append(B.render())

    def proj_setup(self, khoff):
        A = self.A; ACC, B0 = 64, 124
        A(f"s_mul_i32 s{T[7]}, s{KH}, {khoff}")
        for k in range(3): A(f"v_add_u32 v{B0+k}, s{T[7]}, v{[VL16, VB1, VB2][k]}")
        for k in range(10):
            A(f"v_lshlrev_b32 v{ACC+2*k}, 16, v{RES+k}\nv_and_b32 v{ACC+2*k+1}, 0xffff0000, v{RES+k}")

    def proj_loop(self, nb, wl, sched, hook, t0=0, nreg=0, go=None, side=None):
        A = self.A; ACC, WFB, B0 = 64, [104, 176], 124
        bases = [B0, B0+1, B0+2]
        if go and not self.o.get("onebar", 0): self.go(*go); go = None
        for t in range(5): A.lds(f"ds_read_b128 {v(WFB[0]+4*t,4)}, {self.ldsaddr(wl(0) + 1024*t, bases)}", ('f', 0))
        if go: self.go(*go)
        fill = []
        for b in range(nb):
            hook(b, fill)
            fill += sched[t0 + b]
            self.need(('a5', b), fill)
            A.wait_lg(('f', b))
            for t in range(5):
                for u in range(2):
                    d = ACC + 20*u + 4*t
                    wop = v(WFB[b&1]+4*t, 4) if b < nb - nreg else self.wreg(b, t)
                    A(f"v_mfma_f32_16x16x32_bf16 {v(d,4)}, {wop}, {a(8*(b % 20)+4*u,4)}, {'0' if (b == 0 and u == 1) else v(d,4)}")
                    k = 2*t + u
                    if k < 5 and b < nb - 1 - nreg: A.lds(f"ds_read_b128 {v(WFB[(b+1)&1]+4*k,4)}, {self.ldsaddr(wl(b+1) + 1024*k, bases)}", ('f', b+1))
                    if k >= 4: self.drain(fill, 2)
                    if side: self.drain(side[0], side[1])
        while fill: self.emit(fill.pop(0))

    def wreg(self, b, t):
        if b >= 22:
            f = 5*(b - 22) + t
            return a(160 + 4*f, 4) if f < 24 else v(240, 4)
        return v({21: [236, 244, 248, 208, 212], 20: [44, 48, 52, 56, 60]}[b][t], 4)

    def wreg_load(self):
        A = self.A; nreg = self.o.get("nreg5", 7); L = A.newlab("wr")
        keep = self.o.get("wrkeep", 1) and not self.es
        for b in range(27 - nreg, 27):
            if keep and b == max(22, 27 - nreg): A(f"s_cmp_lg_u32 s{LAY}, 0\ns_cbranch_scc1 {L}")
            A(f"s_mul_i32 s{T[6]}, s{KH}, 10240\ns_add_u32 s{T[6]}, s{T[6]}, s{S_W5}\ns_add_u32 s{T[6]}, s{T[6]}, {(4*(b >> 1) + (b & 1))*5120}\ns_add_u32 s{T[7]}, s{T[6]}, 4096")
            for t in range(5): A(f"buffer_load_dwordx4 {self.wreg(b, t)}, v{VL16}, {WS}, s{T[6 + t//4]} offen offset:{1024*(t & 3)} {self.ldw}")
        if keep: A.lab(L)

    def p3(self):
        A = self.A; o = self.o; SA0, SA1 = T[4], T[5]
        whole = o.get("whole3", 1)
        if whole:
            A(f"s_mul_i32 s{SA0}, s{S_A3}, {20*1024}\ns_add_u32 s{SA0}, s{SA0}, s{SL}\ns_add_u32 s{SA0}, s{SA0}, {OO}\ns_add_u32 s{SA1}, s{SA0}, {10*1024}")
        else:
            for sa, m in ((SA0, S_A3), (SA1, S_A3B)):
                A(f"s_mul_i32 s{sa}, s{m}, {20*1024}\ns_add_u32 s{sa}, s{sa}, s{SL}\ns_mul_i32 s{T[7]}, s{KH}, {10*1024}\ns_add_u32 s{sa}, s{sa}, s{T[7]}\ns_add_u32 s{sa}, s{sa}, {OO}")
        def aload(b):
            L = []
            if b and b % 4 == 0: L += [f"s_add_u32 s{SA0}, s{SA0}, 4096", f"s_add_u32 s{SA1}, s{SA1}, 4096"]
            for u, sa in enumerate((SA0, SA1)):
                L.append(('vm', f"buffer_load_dwordx4 {a(8*b+4*u,4)}, v{VL16}, {WS}, s{sa} offen offset:{(b&3)*1024} {self.ld}", ('a5', b)))
            return L
        up = o.get("up3", 6)
        for b in range(up): [self.emit(x) for x in aload(b)]
        early = o.get("early4", 2); gate = o.get("gate3", 2) if self.es else 0
        preload = ('vm', f"s_mov_b64 exec, 1\nbuffer_load_dword v253, v{VCNT}, {WS}, 0 offen sc1\ns_mov_b64 exec, -1", 'fl')
        if self.es:
            assert whole
            self.mark_x(X1)
            self.reload("main_rl3", 0x280, [f"s_mul_i32 s3, s{S_A3}, {20*1024}\ns_add_u32 s3, s3, s{SL}\ns_add_u32 s3, s3, {OO + (10*u + b)*1024}\nbuffer_load_dwordx4 {a(8*b+4*u,4)}, v{VL16}, {WS}, s3 offen sc1" for b in range(up) for u in range(2)])
        sched = self.edf([(gate, b, aload(b)) for b in range(up, 10)] + [(4, 20 + c, self.rnd(S_W4, c*16384, c*16384, 4, 'w4')) for c in range(early)], 10, o.get("r3", 3.0))
        self.proj_setup(5120)
        if whole:
            ACC = 64; bases = [VL16, VB1, VB2]; WFS = [104 + 4*k for k in range(5)] + [128 + 4*k for k in range(5)]
            rd = lambda n: A.lds(f"ds_read_b128 {v(WFS[n % 10],4)}, {self.ldsaddr(lds3(n // 10) + (n % 10)*1024, bases)}", ('f', n))
            for n in range(10): rd(n)
            self.go(('a5', 0), 'p3.go')
            fill = []
            for n in range(100):
                if n % 10 == 0:
                    b = n // 10
                    if n == 40 and early: A("s_barrier")
                    assert not any(isinstance(x, str) and "vccnz" in x for x in fill)
                    if self.es and b == 0:
                        for x in self.verify([0, 4], "main_rl3"): A(x)
                    if self.es and b == max(gate - 2, 0): self.emit(preload)
                    if self.es and b == gate:
                        A.wait_vm('fl'); self.flag_check(253, 0x290)
                    fill += sched[b]
                    self.need(('a5', b), fill)
                    if self.es and b + 1 < up: fill = [('wv', ('a5', b + 1))] + self.verify([8*b + 8, 8*b + 12], "main_rl3") + fill
                if n % 2 == 0: A.wait_lg(('f', n + 1))
                d = ACC + 4*(n % 5)
                A(f"v_mfma_f32_16x16x32_bf16 {v(d,4)}, {v(WFS[n % 10],4)}, {a(4*(n // 5),4)}, {v(d,4)}")
                if n + 10 < 100: rd(n + 10)
                if n % 2: self.drain(fill, 2)
            while fill: self.emit(fill.pop(0))
            A("s_barrier")
            self.early_signal()
        else:
            self.proj_loop(10, lds3, sched, lambda b, fill: A("s_barrier") if b == 4 and early else None, go=(('a5', 0), 'p3.go'))
        self.stamp('p3.main')
        self.proj_epilogue(3, None if whole else XCH3)

    def flag_check0(self, reg, code):
        A = self.A; L = A.newlab("f0")
        A(f"s_cmp_lg_u32 s{WV}, 0\ns_cbranch_scc1 {L}")
        self.flag_check(reg, code)
        A.lab(L)

    def flag_check(self, reg, code):
        A = self.A; L = A.newlab("fc")
        A(f"s_mov_b64 exec, {self.shm}\nv_cmp_gt_u32 vcc, s{TGT}, v{reg}\ns_cbranch_vccz {L}")
        self.spin(VCNT, f"s{TGT}", code)
        A.lab(L); A("s_mov_b64 exec, -1")

    def signal(self):
        A = self.A; L = A.newlab("sg")
        A(f"s_add_u32 s{TGT}, s{TGT}, {16 // self.nsh}\ns_cmp_lg_u32 s{WV}, 0\ns_cbranch_scc1 {L}\ns_mov_b64 exec, 1\nv_mov_b32 v252, 1\n{self.shoff()}buffer_atomic_add v252, v{VCNT}, {WS}, s3 offen sc1\ns_mov_b64 exec, -1")
        A.lab(L)

    def ffn(self):
        A = self.A; o = self.o
        ACC, STD, MU, RS, AP, PK = 64, 224, 216, 217, 220, 224
        WFS = [176 + 4*k for k in range(8)]
        SA, SA0, SA1, SH1, SH1B, SH2 = T[4], T[4], T[5], T[0], T[1], T[3]
        nreg = o.get("nreg5", 7)
        nc5 = (27 - nreg + 1) // 2
        sizes = [4]*10 + [3]*10 + [5]*nc5
        addr = []; p = 0
        for k, kb in enumerate(sizes):
            if k == 10: p = o.get("g2at", 24576)
            if p + kb*4096 > LDS_MISC: p = 0
            addr.append(p); p += kb*4096
        if M16:
            BA, BB, BC, VA, RS1, AP1 = [44, 45, 46], [47, 48, 49], 50, [51, 52], 218, 56
            el = lambda k, g, t, x: (40*g + k + (2*t + x >= 4 - g), (ACC + 64*g + 16*t + 4*x, ACC + 64*g + 16*t + 8 + 4*x),
                                     addr[10*g + (k >> 2)] + (k & 3)*(4 - g)*1024 + 1024*t + 256*x, (a(4*k, 4), a(4*k + 4, 4)), k == 0, (BA, BB)[g])
            ce = lambda g, t, x: (39 + 40*g, (ACC + 64*g + 16*t + 4*x, ACC + 64*g + 16*t + 8 + 4*x), (CSF4 + 4096*g + 1024*t + 256*x) & 0xffff, (v(AP, 4), v(AP1, 4)), False, [BC])
            seq = []
            for g in range(2):
                seq += [el(k, g, t, x) for k in range(0, 40, 2) for t in range(4 - g) for x in range(2)]
                seq += [ce(g, t, x) for t in range(4 - g) for x in range(2)]
            n1 = 168
            A(f"v_lshrrev_b32 v53, 5, v{VL}\nv_bfe_u32 v54, v{VL}, 4, 1\nv_and_b32 v55, 15, v{VL}\nv_lshlrev_b32 v55, 4, v55\nv_lshl_add_u32 v55, v54, 9, v55")
            A(f"v_lshl_add_u32 v{VA[0]}, v53, 10, v55\nv_add_u32 v{VA[1]}, 256, v{VA[0]}\nv_lshl_add_u32 v{BA[0]}, v53, 12, v55\nv_mul_u32_u24 v53, 3072, v53\nv_add_u32 v{BB[0]}, v53, v55\nv_add_u32 v{BC}, {CSF4 & ~0xffff}, v55")
        else:
            seq = [(k, ACC + 16*t, addr[k >> 2] + (k & 3)*4096 + 1024*t, a(4*k, 4), k == 0) for k in range(40) for t in range(4)]
            seq += [(39, ACC + 16*t, CSF4 + 1024*t, v(AP, 4), False) for t in range(4)]
            seq += [(40 + k, ACC + 64 + 16*t, addr[10 + (k >> 2)] + (k & 3)*3072 + 1024*t, a(4*k, 4), k == 0) for k in range(40) for t in range(3)]
            seq += [(79, ACC + 64 + 16*t, CSF4 + 4096 + 1024*t, v(AP, 4), False) for t in range(3)]
            n1 = 164
        vis = lambda nf: seq[max(nf - len(WFS), 0)][0]
        npre = o.get("npre4", 6)
        ch = [(S_W4, c*16384, 4, addr[c], vis(16*c), 4*c + 3, c < npre) for c in range(10)]
        ch += [(S_W4B, 163840 + c*12288, 3, addr[10 + c], vis(n1 + 12*c), 43 + 4*c, False) for c in range(10)]
        ch += [(S_W5, c*20480, 5, addr[20 + c], max(80, 79 + 2*c), 81 + 2*c, False) for c in range(nc5)]
        bars = list(range(1, 40, o.get("b4a", 4))) + list(range(41, 80, o.get("b4b", 4))) + [80] + list(range(81, 107, o.get("b5", 2)))
        if o.get("b4a", 4) == 8: bars = sorted(set(bars) - set(range(1, 40, 8)) | set(range(5, 40, 8)))
        jobs, valid, used = self.plan(ch, bars)
        lastbar = max(b for b in used)
        live = [(c[3], c[3] + 20480) for c in ch[20:] if c[5] >= lastbar]
        xch = [x for x in (0, 57344, 77824, 98304, 118784, 126976) if all(x + 20480 <= lo or hi <= x for lo, hi in live)][0]
        wl5 = lambda b: addr[20 + (b >> 1)] + (b & 1)*5120
        A(f"s_add_u32 s{SA}, s{SL}, s{S_A1}\ns_add_u32 s{SA}, s{SA}, {X1}")
        if not self.es: self.stats_load(ST3, STD)
        def aload(st_):
            L = [f"s_add_u32 s{SA}, s{SA}, 4096"] if st_ and st_ % 4 == 0 else []
            if M16: return L + [('vm', f"buffer_load_dwordx4 {a(4*st_,4)}, v{VA[st_ & 1]}, {WS}, s{SA} offen offset:{(st_ & 2)*1024} {self.ld}", ('a', st_))]
            return L + [('vm', f"buffer_load_dwordx4 {a(4*st_,4)}, v{VL16}, {WS}, s{SA} offen offset:{(st_ & 3)*1024} {self.ld}", ('a', st_))]
        def aload5(b):
            L = []
            if b == 0:
                for sa, m in ((SA0, S_A3), (SA1, S_A3B)):
                    L.append(f"s_mul_i32 s{sa}, s{m}, {54*1024}\ns_add_u32 s{sa}, s{sa}, s{SL}\ns_lshl_b32 s3, s{KH}, 10\ns_add_u32 s{sa}, s{sa}, s3\ns_add_u32 s{sa}, s{sa}, {HH}")
            elif b % 2 == 0: L += [f"s_add_u32 s{SA0}, s{SA0}, 4096", f"s_add_u32 s{SA1}, s{SA1}, 4096"]
            for u, sa in enumerate((SA0, SA1)):
                L.append(('vm', f"buffer_load_dwordx4 {a(8*(b % 20)+4*u,4)}, v{VL16}, {WS}, s{sa} offen offset:{(b&1)*2048} {self.ld}", ('a5', b)))
            return L
        up = o.get("up4", 10); chk1 = o.get("chk1", 77); chk2 = o.get("chk2", 10)
        for k in range(up): [self.emit(x) for x in aload(k)]
        gate = o.get("gate4", 4) if self.es else 0
        if self.es:
            self.reload("main_rl4", 0x380, [f"s_add_u32 s3, s{SL}, s{S_A1}\ns_add_u32 s3, s3, {X1 + k*1024}\nbuffer_load_dwordx4 {a(4*k,4)}, v{VL16}, {WS}, s3 offen sc1" for k in range(up)])
            L1 = A.newlab("m1")
            A(f"s_cmp_lg_u32 s{LAY}, 0\ns_cbranch_scc1 {L1}")
            self.mark_x(LS + XA); self.colsums(lambda: None, 0)
            A.lab(L1)
        jobs += [(gate, k - (k & 1)*M16, aload(k)) for k in range(up, 40)]
        if M16:
            for B_ in (BA, BB): A(f"v_add_u32 v{B_[1]}, 0x10000, v{B_[0]}\nv_add_u32 v{B_[2]}, 0x20000, v{B_[0]}")
        if self.es and nreg:
            wr = self.capture(self.wreg_load)
            jobs.append((o.get("wrat", 47), 79, [('vm', x, 'wr') if x.startswith("buffer") else x for x in wr]))
        jobs += [(chk1 if b < 15 else max(80 + chk2, 80 + b - 19), 79.6 + (b >= o.get("up5", 5))*(b - 0.6), aload5(b), 80 + b) for b in range(27)]
        r4a, r4b, r4c, r5 = o.get("r4a", 1.85), o.get("r4b", 1.3), o.get("r4c", 2.5), o.get("r5", 3.5)
        sched = self.edf(jobs, 107, lambda k: r4a if k < 40 else (0 if k < o.get("quiet4", 47) else (r4b if k < chk1 else (r4c if k < 80 else (o.get("r5a", r5) if k < 80 + o.get("k5", 0) else (r5 if k < 80 + chk2 else o.get("r5c", r5)))))))
        assert not any(isinstance(x, tuple) and x[2] in [('a5', b) for b in range(chk1 - 40 >> 1, 27)] for k in range(80) for x in sched[k])
        if o.get("verbose"): print("addr", addr, "xch", xch, "valid", valid, {k: [x[2] for x in L if isinstance(x, tuple)] for k, L in sched.items()})
        A(f"s_add_u32 s{SH1}, s{SL}, s{S_H}\ns_add_u32 s{SH1}, s{SH1}, {HH}\ns_mul_i32 s{SH2}, s{J}, 1536\ns_add_u32 s{SH2}, s{SH2}, s{SH1}\ns_add_u32 s{SH2}, s{SH2}, {63*512}")
        A(f"s_lshl_b32 s3, s{J}, 11\ns_add_u32 s{SH1}, s{SH1}, s3\ns_mov_b32 s{SH1B}, s{SH1}\ns_cmp_eq_u32 s{J}, 15\ns_cmov_b32 s{SH1B}, {OOB}\ns_cmov_b32 s{SH2}, {OOB}")
        sched[28] += [('wv', 'st')] + self.stats_finish(STD, MU, RS) + [f"v_mul_f32 v{RS}, v{RS}, v{RS}"]
        if M16:
            sched[28] += [f"v_mov_b32 v{RS1}, v{RS}", f"v_mov_b32 v{RS1+1}, v{MU}", f"v_permlane16_swap_b32 v{RS}, v{RS1}", f"v_permlane16_swap_b32 v{MU}, v{RS1+1}",
                          f"s_mov_b32 exec_lo, 0xffff0000\nv_mov_b32 v{MU}, 0\nv_mov_b32 v{RS1+1}, 0\ns_mov_b32 exec_lo, -1"] + self.split3(RS1+1, AP1, STD)
        sched[28] += self.split3(MU, AP, STD)
        def epi(t0, t1, tag):
            body = []
            for t in range(t0, t1):
                r = ACC + 16*t; pk = PK + 4*(t % 3)
                for hf in range(2):
                    g = r + 8*hf; rs = RS1 if M16 and hf else RS
                    for i in range(4): body += [f"v_max_f32 v{g+i}, 0, v{g+i}", f"v_mul_f32 v{g+4+i}, v{rs}, v{g+4+i}"]
                    body += [f"v_mul_f32 v{g+i}, v{g+i}, v{g+4+i}" for i in range(4)]
                    body += [f"v_cvt_pk_bf16_f32 v{pk+2*hf}, v{g}, v{g+1}", f"v_cvt_pk_bf16_f32 v{pk+2*hf+1}, v{g+2}, v{g+3}"]
                sb, im = (SH1 if t < 3 else SH1B, 512*t) if t < 4 else (SH2, 512*(t-4))
                st_ = [('vm', f"buffer_store_dwordx4 {v(pk,4)}, v{VH}, {WS}, s{sb} offen offset:{im} {self.st}", tag)]
                if M16: st_ = [f"v_permlane16_swap_b32 v{pk}, v{pk+2}", f"v_permlane16_swap_b32 v{pk+1}, v{pk+3}"] + st_
                if M16 and t + 1 < t1: late = st_; body.append(('later', late))
                else: body += st_
            out = []; held = []
            for x in body:
                if isinstance(x, tuple) and x[0] == 'later': held = [2, x[1]]; continue
                out.append(x)
                if held:
                    held[0] -= 1
                    if not held[0]: out += held[1]; held = []
            return out
        epi1 = epi(0, 4, 'h1')
        w0 = o.get("w0chk", 0)
        if w0: A(f"s_mov_b32 s99, {OOB}\ns_cmp_eq_u32 s{WV}, 0\ns_cmov_b32 s99, 0")
        preload = ('vm', f"s_mov_b64 exec, {self.shm}\nbuffer_load_dword v253, v{VCNT}, {WS}, {'s99' if w0 else '0'} offen sc1\ns_mov_b64 exec, -1", 'fl')
        sig1 = o.get("sig1", 57)
        def at_step(st_, fill):
            if st_ == 38:
                while any(isinstance(x, str) and x.startswith("v_") for x in fill): self.emit(fill.pop(0))
            if w0 and st_ == chk1:
                self.need('fl', fill); self.flag_check0(253, 0x400)
            if st_ in used or st_ == sig1 or w0 and st_ == chk1:
                for tag in valid.get(st_, []): self.need(tag, fill)
                if st_ == sig1:
                    while epi1: self.emit(epi1.pop(0))
                    A.wait_vm('h1')
                A("s_barrier")
                if st_ == sig1: self.signal()
                if o.get("in4") and st_ > 40: self.stamp(f'g.{st_}')
            if st_ == 40: self.stamp('p4.g1')
            if st_ == chk1 - o.get("fl1", 4): fill.insert(0, preload)
            if st_ == chk1 and not w0:
                self.need('fl', fill); self.flag_check(253, 0x400)
            if st_ == chk1: self.stamp('p4.chk')
            self.es_hooks(st_, fill, up, gate, "main_rl4", 0x390, lambda: self.stats_load(ST3, STD, 99))
            fill += sched[st_]
            if st_ < 40: self.need(('a', st_ | M16), fill)
        self.run32(seq, WFS, sched, at_step, (epi1, n1 + 1 + M16, o.get("epirate", 4), o.get("gape", 20)), (('a', M16), 'p4.go'))
        self.stamp('p4.main')
        epi2 = epi(4, 7, 'h2')
        if not o.get("epi2rate", 0):
            while epi2: self.emit(epi2.pop(0))
        self.stamp('p4.epi')
        self.proj_setup(10240)
        for tag in valid.get(80, []): A.wait_vm(tag)
        A.wait_vm(('a5', 0)); A("s_barrier")
        self.stamp('p5.go')
        sig2 = o.get("sig2", 3)
        def hook(b, fill):
            if w0 and b == chk2:
                self.need('fl', fill); self.flag_check0(253, 0x480)
            if 80 + b in used and b or b == sig2 or w0 and b == chk2:
                for tag in valid.get(80 + b, []): self.need(tag, fill)
                if b == sig2:
                    assert not epi2
                    A.wait_vm('h2')
                A("s_barrier")
                if b == sig2: self.signal()
            if b == chk2 - o.get("fl2", 2): fill.insert(0, preload)
            if o.get("in5") and b in (4, chk2, 15, 20): self.stamp(f'p5.b{b}')
            if b == chk2 and not w0:
                self.need('fl', fill); self.flag_check(253, 0x480)
                if o.get("in5"): self.stamp('p5.chk')
        self.proj_loop(27, wl5, sched, hook, 80, nreg, side=(epi2, o.get("epi2rate", 0)))
        self.stamp('p5.main')
        self.proj_epilogue(5, xch)

    def proj_epilogue(self, which, xo):
        A = self.A; o = self.o; ACC, WF, B0 = 64, 112, 136; ntail = 0
        fill = []
        if which == 3:
            e0 = o.get("early4", 2) * 16; e1 = e0 + o.get("post4", 33)
            n3 = -(-(o.get("npre4", 6)*16 - e1) // 3)
            assert e1*1024 <= XCH3 and (e1 + 3*n3)*1024 <= LDS_MISC and (not self.es or n3 <= 0)
            self.post = (S_W4, e0*1024, e0*1024, e1 - e0)
            self.pre = lambda: self.colsums(lambda: self.rnd3(S_W4, e1*1024, e1*1024, n3), n3)
        else:
            self.pre1 = o.get("pre1", 10)
            assert xo + 20480 <= 20480 or xo >= 20480 + 36864
            assert not self.es or self.pre1 == 3
            self.post = (S_W1, 0, 20480, 36)
            def pre():
                self.rnd3(S_W1, 36864, 20480 + 36864, -(-(8*min(self.pre1, 10) - 36) // 3))
                if self.pre1 > 10: self.rnd3(S_W1, 81920, 110592, -(-8*(self.pre1 - 10) // 3))
            self.pre = pre
        if xo is not None:
            A(f"v_add_u32 v{B0}, {xo}, v{VXW}\nv_add_u32 v{B0+1}, {xo}, v{VXR}")
            for t in range(5): A.lds(f"ds_write_b128 v{B0}, {v(ACC+20+4*t,4)} offset:{1024*t}")
            A.wait_lg0(); A("s_barrier")
            for t in range(5): A.lds(f"ds_read_b128 {v(ACC+20+4*t,4)}, v{B0+1} offset:{1024*t}", ('x', t))
            self.early_signal()
        if which == 5:
            A(f"s_cmp_lg_u32 s{LAY}, 0\ns_cbranch_scc1 main_final")
            self.fin_state = (list(A.lg), ACC); self.fin_x = xo
        body = []
        for t in range(5):
            if xo is not None:
                body.append(('wl', ('x', t)))
                body += [f"v_pk_add_f32 {v(ACC+4*t+i,2)}, {v(ACC+4*t+i,2)}, {v(ACC+20+4*t+i,2)}" for i in (0, 2)]
            body += [f"v_cvt_pk_bf16_f32 v{RES+2*t}, v{ACC+4*t}, v{ACC+4*t+1}", f"v_cvt_pk_bf16_f32 v{RES+2*t+1}, v{ACC+4*t+2}, v{ACC+4*t+3}"]
        xoff = X1 if which == 3 else LS + XA
        soff = ST3 if which == 3 else LS + STA
        A(f"s_add_u32 s{T[4]}, s{SL}, s{S_X}\ns_add_u32 s{T[4]}, s{T[4]}, {xoff}\ns_add_u32 s{T[5]}, s{T[4]}, 4096\ns_add_u32 s{T[6]}, s{SL}, s{S_STX}\ns_add_u32 s{T[6]}, s{T[6]}, {soff}")
        body.append(('vm', f"buffer_store_dwordx4 {v(RES,4)}, v{VX}, {WS}, s{T[4]} offen {self.st}", 'out'))
        body.append(('vm', f"buffer_store_dwordx4 {v(RES+4,4)}, v{VX}, {WS}, s{T[4]} offen offset:2048 {self.st}", 'out'))
        t4 = WF
        body += [f"v_mov_b32 v{t4+k}, v{RES+8+(k&1)}" for k in range(6)]
        body += [f"v_permlane32_swap_b32 v{t4+4}, v{t4+2}", f"v_permlane32_swap_b32 v{t4+5}, v{t4+3}"]
        body.append(('vm', f"s_mov_b32 exec_hi, 0\nbuffer_store_dwordx4 {v(t4,4)}, v{VX}, {WS}, s{T[5]} offen {self.st}\ns_mov_b32 exec_hi, -1", 'out'))
        s0, s1 = WF + 8, WF + 9
        p0, p1 = WF + 12, WF + 14
        body += [f"v_pk_add_f32 {v(p0,2)}, {v(ACC,2)}, {v(ACC+2,2)}", f"v_pk_mul_f32 {v(p1,2)}, {v(ACC,2)}, {v(ACC,2)}", f"v_pk_fma_f32 {v(p1,2)}, {v(ACC+2,2)}, {v(ACC+2,2)}, {v(p1,2)}"]
        for i in range(4, 20, 2): body += [f"v_pk_add_f32 {v(p0,2)}, {v(p0,2)}, {v(ACC+i,2)}", f"v_pk_fma_f32 {v(p1,2)}, {v(ACC+i,2)}, {v(ACC+i,2)}, {v(p1,2)}"]
        body += [f"v_add_f32 v{s0}, v{p0}, v{p0+1}", f"v_add_f32 v{s1}, v{p1}, v{p1+1}"]
        for sw in ("v_permlane16_swap_b32", "v_permlane32_swap_b32"):
            body += [f"v_mov_b32 v{s0+2}, v{s0}", f"v_mov_b32 v{s0+3}, v{s1}", f"{sw} v{s0}, v{s0+2}", f"{sw} v{s1}, v{s0+3}", f"v_add_f32 v{s0}, v{s0}, v{s0+2}", f"v_add_f32 v{s1}, v{s1}, v{s0+3}"]
        self.mix(body, fill, 7)
        while fill: self.emit(fill.pop(0))
        A("s_mov_b64 exec, 0xffff")
        A.vmem(f"buffer_store_dwordx2 {v(s0,2)}, v{VSX}, {WS}, s{T[6]} offen {self.st}", 'out')
        A("s_mov_b64 exec, -1")

    def final(self):
        A = self.A; t = VFREE
        A.lab("main_final")
        A.lg, ACC = self.fin_state
        xo = self.fin_x
        A(f"s_xor_b32 s3, s{WV}, 1\ns_mul_i32 s3, s3, 5120\ns_add_u32 s3, s3, {xo}\nv_and_b32 v{t}, 15, v{VL}\nv_mul_u32_u24 v{t}, 176, v{t}\nv_lshrrev_b32 v{t+1}, 4, v{VL}\nv_lshl_add_u32 v{t}, v{t+1}, 3, v{t}\nv_add_u32 v{t}, s3, v{t}")
        for n in range(3):
            A(f"v_add_u32 v{t+1}, {64*n}, v{VL}\nv_mul_u32_u24 v{t+2}, 6554, v{t+1}\nv_lshrrev_b32 v{t+2}, 16, v{t+2}\nv_mul_u32_u24 v{t+3}, 10, v{t+2}\nv_sub_u32 v{t+3}, v{t+1}, v{t+3}\nv_lshlrev_b32 v{t+3}, 4, v{t+3}")
            A(f"v_mad_u32_u24 v{t+4+n}, v{t+2}, s3, v{t+3}".replace("s3", f"v{t+11}") if False else f"v_mul_u32_u24 v{t+4+n}, 176, v{t+2}\nv_add3_u32 v{t+4+n}, v{t+4+n}, v{t+3}, s3\nv_mul_u32_u24 v{t+8+n}, 1280, v{t+2}\nv_add_u32 v{t+8+n}, v{t+8+n}, v{t+3}")
        A(f"s_lshl_b32 s{T[4]}, s{S_A3}, 4\ns_mul_i32 s{T[4]}, s{T[4]}, 1280\ns_mul_i32 s{T[5]}, s{CT}, 160\ns_add_u32 s{T[4]}, s{T[4]}, s{T[5]}")
        A.wait_lg0()
        for k in range(5):
            for i in (0, 2): A(f"v_pk_add_f32 {v(ACC+4*k+i,2)}, {v(ACC+4*k+i,2)}, {v(ACC+20+4*k+i,2)}")
            A(f"v_cvt_pk_bf16_f32 v{RES+2*k}, v{ACC+4*k}, v{ACC+4*k+1}\nv_cvt_pk_bf16_f32 v{RES+2*k+1}, v{ACC+4*k+2}, v{ACC+4*k+3}")
            A(f"ds_write_b64 v{t}, {v(RES+2*k,2)} offset:{32*k}")
        A("s_waitcnt lgkmcnt(0)")
        for n in range(3): A(f"ds_read_b128 {v(112+4*n,4)}, v{t+4+n}")
        for n in range(3):
            A(f"s_waitcnt lgkmcnt({2-n})")
            if n == 2: A("s_mov_b32 exec_hi, 0")
            A(f"buffer_store_dwordx4 {v(112+4*n,4)}, v{t+8+n}, {OS}, s{T[4]} offen {self.o.get('stout', 'nt')}")
        A("s_mov_b32 exec_hi, -1")

    def gen(self):
        A = self.A
        o_big = False
        def stop(name):
            if self.stop == name: A.wait_all(); A("s_branch main_done")
        self.setup()
        self.stamp('start')
        if self.o.get("entry"): A(f"v_writelane_b32 v{VPROF}, s94, 31")
        self.p1_first()
        A.lab("main_layer")
        self.kv_sync(); stop("p1")
        self.p2()
        if self.es:
            self.early_sync((S_W3, 61440, lds3(6), 40), 0x200, 1)
            self.p3()
            self.early_sync(self.post, 0x300, 2)
            self.ffn()
            self.early_sync(self.post, 0x500, 3)
        else:
            n2 = self.o.get("post2", 42)
            self.cluster_sync((S_W3, 61440, lds3(6), n2) if n2 else None, (lambda: self.rnd3(S_W3, 61440 + n2*1024, lds3(6) + n2*1024, -(-(40 - n2) // 3))) if n2 < 40 else None,
                              0x200, self.wreg_load if self.o.get('nreg5', 7) else None); stop("p2")
            self.p3()
            self.cluster_sync(self.post, self.pre, 0x300); stop("p3")
            self.ffn()
            self.cluster_sync(self.post, self.pre, 0x500); stop("p5")
        A(f"s_mov_b32 s{LAY}, 1\ns_add_u32 s{SL}, s{SL}, {LS}\ns_mov_b32 s{S_PB}, {64 if o_big else 32}")
        self.stamp('start')
        self.p1()
        A("s_branch main_layer")
        self.final()
        A.lab("main_done")
        if self.prof:
            A.wait_all()
            if self.stop: A(f"s_mov_b32 s{S_PB}, 32")
            self.stamp('end')
            A(f"s_cmp_lg_u32 s{WV}, 0\ns_cbranch_scc1 main_end\ns_lshl_b32 s3, s2, 8\ns_add_u32 s3, s3, {PROF}\nv_lshlrev_b32 v{VFREE}, 2, v{VL}")
            A(f"buffer_store_dword v{VPROF}, v{VFREE}, {WS}, s3 offen\ns_add_u32 s3, s3, 0x10000\nbuffer_store_dword v{VPROF+1}, v{VFREE}, {WS}, s3 offen")
        if self.o.get("diagpad"):
            A(f"v_readlane_b32 s3, v{VPROF}, 0")
            A.lab("main_pad")
            A(f"s_memrealtime s[96:97]\ns_waitcnt lgkmcnt(0)\ns_sub_u32 s96, s96, s3\ns_cmp_lt_u32 s96, {self.o['diagpad']}\ns_cbranch_scc1 main_pad")
        if self.o.get("dbgprof"):
            t = VFREE; src = VPROF + (self.o["dbgprof"] - 1)
            A(f"s_cmp_lg_u32 s2, {self.o.get('dbgwg', 100)}\ns_cbranch_scc1 main_end\nv_readlane_b32 s3, v{src}, 0\nv_subrev_u32 v{t}, s3, v{src}")
            A(f"v_lshrrev_b32 v{t+1}, 2, v{VL}\nv_and_b32 v{t+1}, 8, v{t+1}\nv_and_b32 v{t+2}, 7, v{VL}\nv_add_u32 v{t+1}, v{t+1}, v{t+2}\nv_lshlrev_b32 v{t+1}, 2, v{t+1}")
            A(f"s_mov_b32 exec_lo, 0xfe\ns_mov_b32 exec_hi, 0xff\nbuffer_store_dword v{t}, v{t+1}, {DS_}, 0 offen")
        A.lab("main_end")
        A("s_endpgm")
        for blk in self.rare: A(blk)
        A.lab("main_last")

def gen_main(A, opts):
    m = Main(A, opts); m.gen()
    assert len(m.names) <= 32, len(m.names)
    if m.names: A.L.insert(0, Ins(f"; stamps {opts.get('mx', 512)} " + " ".join(m.names)))
```

```python
from asmlib import *
from layout import *
from pack import srd, sel, OOB, frag32_steps
import math

WS = "s[4:7]"; XS = "s[8:11]"; OS = "s[12:15]"; DS_ = "s[16:19]"
MB, J, WV, LAY, RH, CT, RR, KH = 20, 21, 22, 23, 24, 25, 26, 27
SL = 40
TGT = 41
S_A1 = 42
S_ST1 = 43
S_KVO = 44
S_A3 = 45
S_A3B = 46
S_X = 47
S_STX = 48
S_W1, S_W3, S_W4, S_W5 = 49, 50, 51, 52
S_H = 53
S_PB = 54
S_WI = 55
S_W4B = 38
S_U = 98
GUS = "s[56:59]"; WDS = "s[60:63]"
MASK = 64
T = [28, 29, 30, 31, 32, 33, 34, 35, 36, 37]

VL, VL16, VST, RES = 1, 2, 3, 4
VO1, VKT, VO3, VX, VSX, VH, VCNT, VKF, VK, VKS, VV, VW2, VW12, VW1, VXW, VXR, VB1, VB2 = range(14, 32)
PM = 32
VPROF = 40
VTG, VDUM = 42, 43
VFREE = 44

LDS_MISC = 147456
CSF1 = LDS_MISC; CSF4 = LDS_MISC + 4096
KREG = 36864; VREG = KREG + 12 * 2560
XCH3 = 86016; XCH5 = 0
STG4 = 16384; STG5 = STG4 + 20480; STG3 = LDS_MISC + 8192
QSCALE = math.log2(math.e) / math.sqrt(20.0)

def lds1(st): return ((st + 5) % 36) * 4096 if st < 36 else (st - 31) * 4096
def lds3(bl): return bl * 10240 if bl < 3 else (107520 + (bl - 3) * 10240 if bl < 6 else KREG + (bl - 6) * 10240)
def fhex(x):
    import struct
    return hex(struct.unpack("<I", struct.pack("<f", x))[0])

def qmap_step(x):
    import re
    m = re.match(r"ds_read_b64 a\[(\d+):", x[1])
    return int(m.group(1)) // 4 if m else 999

class Main:
    def __init__(self, A, opts):
        self.A = A; self.o = opts
        self.prof = opts.get("prof", 0); self.names = []; self.rare = []; self.pending = set()
        self.stop = opts.get("stop", None)
        self.fused = opts.get("fused", 1)
        self.kname = opts.get("kname", "main_kernel")
        self.ld = "sc1"; self.st = "sc1"; self.stkv = "sc1"
        self.ldw = opts.get("ldw", "sc1")
        self.es = opts.get("es", 0)
        self.nsh = opts.get("nsh", 1); self.shm = (1 << self.nsh) - 1
        self.ntu, self.ntx, self.nts = opts.get("ntu", ""), opts.get("ntx", ""), opts.get("nts", "nt")

    def stamp(self, name):
        if self.o.get("only") and name not in self.o["only"]: return
        if name.startswith("z.") and not self.o.get("only"): return
        if not self.prof or name.endswith(tuple(self.o.get("nostamp", ()))) and self.o.get("nostamp"): return
        A = self.A
        if name not in self.names: self.names.append(name)
        idx = self.names.index(name)
        A(f"s_memrealtime s[96:97]\ns_waitcnt lgkmcnt(0)\ns_mov_b32 s39, m0\ns_add_u32 m0, s{S_PB}, {idx}\nv_writelane_b32 v{VPROF}, s96, m0\ns_memtime s[96:97]\ns_waitcnt lgkmcnt(0)\nv_writelane_b32 v{VPROF+1}, s96, m0\ns_mov_b32 m0, s39")
        A.lg = []

    def ldsaddr(self, off, bases):
        b = off >> 16
        return f"v{bases[b]} offset:{off & 0xffff}"

    def emit(self, x):
        if isinstance(x, tuple):
            if x[0] == 'vm': self.A.vmem(x[1], x[2])
            elif x[0] == 'lg': self.A.lds(x[1], x[2])
            else:
                assert x[1] in self.A.seen and x[1] not in self.pending, x
                (self.A.wait_vm if x[0] == 'wv' else self.A.wait_lg)(x[1])
        else: self.A(x)

    def drain(self, fill, n):
        vm = 0
        while fill and n > 0:
            isvm = isinstance(fill[0], tuple) and fill[0][0] == 'vm'
            if isvm and vm: break
            vm += isvm
            self.pending = {y[2] for y in fill if isinstance(y, tuple) and len(y) == 3}
            self.emit(fill.pop(0)); n -= 1
            self.pending = set()

    def cost(self, x):
        o = self.o
        txt = x if isinstance(x, str) else (x[1] if isinstance(x[1], str) and len(x) == 3 else "w")
        c = 0
        for l in txt.split("\n"):
            if l.endswith(":"): continue
            c += (o.get("cst", 20) if l.startswith("buffer_store") else o.get("cld", 12) if l.startswith("buffer_") else 16 if l.startswith("ds_write_b128")
                  else 10 if l.startswith("ds_write") else 32 if l.startswith("v_mfma") else 8 if l.startswith(("v_rsq", "v_rcp")) else 4)
        return c

    def spend(self, lists, budget):
        first = True
        for L in lists:
            while L and budget > 0:
                c = self.cost(L[0])
                if c > budget and not first: return budget
                self.pending = {y[2] for y in L if isinstance(y, tuple) and len(y) == 3}
                self.emit(L.pop(0)); self.pending = set()
                budget -= c; first = False
        return budget

    def need(self, tag, fill):
        while any(isinstance(x, tuple) and x[0] == 'vm' and x[2] == tag for x in fill): self.emit(fill.pop(0))
        assert tag in self.A.seen, tag
        self.A.wait_vm(tag)

    def rnd(self, sbase, goff, loff, kb, tag):
        L = [f"s_mul_i32 s{T[8]}, s{WV}, {kb*1024}", f"s_add_u32 s{T[9]}, s{T[8]}, s{sbase}", f"s_add_u32 s{T[9]}, s{T[9]}, {goff}", f"s_add_u32 m0, s{T[8]}, {loff}"]
        for i in range(kb):
            if i and i % 4 == 0: L += [f"s_add_u32 s{T[9]}, s{T[9]}, 4096", "s_add_u32 m0, m0, 4096"]
            L.append(('vm', f"buffer_load_dwordx4 v{VL16}, {WS}, s{T[9]} offen offset:{1024*(i&3)} {self.ldw} lds", tag))
        return L

    def rnd3(self, sbase, goff, loff, kb):
        A = self.A
        A(f"s_mul_i32 s{T[8]}, s{S_WI}, {kb*1024}\ns_add_u32 s{T[9]}, s{T[8]}, s{sbase}\ns_add_u32 s{T[9]}, s{T[9]}, {goff}\ns_add_u32 m0, s{T[8]}, {loff}")
        for i in range(kb):
            if i and i % 4 == 0: A(f"s_add_u32 s{T[9]}, s{T[9]}, 4096\ns_add_u32 m0, m0, 4096")
            A(f"buffer_load_dwordx4 v{VL16}, {WS}, s{T[9]} offen offset:{1024*(i&3)} {self.ldw} lds")

    def edf(self, jobs, nsteps, rate, credit=0.0):
        units = []
        for rel, dl, L, *hard in jobs:
            cur = []
            for x in L:
                cur.append(x)
                if isinstance(x, tuple) and x[0] == 'vm': units.append([rel, dl, cur, id(L), hard[0] if hard else dl]); cur = []
            if cur: units[-1][2] += cur
        sched = {k: [] for k in range(nsteps)}
        busy = None
        for st_ in range(nsteps):
            credit += rate(st_) if callable(rate) else rate
            while credit >= 1 and units:
                cand = [u for u in units if u[0] <= st_]
                if busy is not None: cand = [u for u in cand if u[3] == busy or 'lds' not in u[2][-1 if isinstance(u[2][-1], tuple) else -2][1]]
                if not cand: credit = min(credit, 1.0); break
                u = min(cand, key=lambda u: u[1])
                assert st_ <= u[4], f"load {u[2][-1]} issued at {st_}, after its deadline {u[4]}"
                units.remove(u); sched[st_] += u[2]; credit -= 1
                isdma = any(isinstance(x, tuple) and x[1].endswith('lds') for x in u[2])
                if isdma: busy = u[3] if any(w[3] == u[3] for w in units) else None
        assert not units, f"{len(units)} loads left"
        return sched

    def drain_post(self, post, extra=0):
        A = self.A
        if not post:
            A.wait_all(); return
        N = A.newlab("p0"); E = A.newlab("pe")
        kb = -(-post[3] // 3)
        A(f"s_cmp_eq_u32 s{WV}, 0\ns_cbranch_scc1 {N}")
        self.rnd3(post[0], post[1], post[2], kb)
        A(f"s_waitcnt vmcnt({kb + extra}) lgkmcnt(0)\ns_branch {E}")
        A.lab(N); A(f"s_waitcnt vmcnt({extra}) lgkmcnt(0)"); A.lab(E)
        A.vm = []; A.lg = []

    def plan(self, chunks, bars, dead_at=()):
        jobs = []; valid = {}; used = set()
        for k, (sb, go, kb, ad, vs, last, pre) in enumerate(chunks):
            if pre: continue
            busy = [c[5] for c in chunks[:k] if c[3] < ad + kb*4096 and ad < c[3] + c[2]*4096]
            busy += [t for lo, hi, t in dead_at if lo < ad + kb*4096 and ad < hi]
            rel = min(b for b in bars if b > max(busy)) if busy else 0
            if busy: used.add(rel)
            dl = 900 + k
            if vs is not None:
                dl = max(b for b in bars if b <= vs); assert dl > rel, (k, rel, dl)
                valid.setdefault(dl, []).append(('w', k)); used.add(dl)
            jobs.append((rel, dl - 0.5, self.rnd(sb, go, ad, kb, ('w', k))))
        return jobs, valid, used

    def go(self, tag, name):
        self.A.wait_vm(tag)
        if not self.o.get("onebar", 0): self.A("s_barrier")
        self.stamp(name)

    def run32(self, seq, WFS, sched, at_step, side=None, go=None):
        A = self.A; R = len(WFS)
        rd = lambda n: A.lds(f"ds_read_b128 {v(WFS[n % R],4)}, {self.ldsaddr(seq[n][2], seq[n][5] if len(seq[n]) > 5 else [VL16, VB1, VB2])}", ('f', n))
        if go and not self.o.get("onebar", 0): self.go(*go); go = None
        for n in range(R): rd(n)
        if go: self.go(*go)
        fill = []; prev = None; owed = 0; sides = list(side) if isinstance(side, list) else [side]
        for n, (st_, acc, ad, B, zero, *_) in enumerate(seq):
            if len(sides) > 1 and n >= sides[1][1]:
                while sides[0][0]: self.emit(sides[0][0].pop(0))
                sides.pop(0)
            side = sides[0]
            if st_ != prev:
                at_step(st_, fill); prev = st_
            if n % 2 == 0: A.wait_lg(('f', min(n + 1, len(seq) - 1)))
            pair = isinstance(acc, tuple); used = 0
            if pair:
                A(f"v_mfma_f32_16x16x32_bf16 {v(acc[0],4)}, {v(WFS[n % R],4)}, {B[0]}, {'0' if zero else v(acc[0],4)}")
                k = len(fill); self.drain(fill, 2); used = k - len(fill)
                if side and n >= side[1] and side[0] and used < 2:
                    k = len(side[0]); self.drain(side[0], min(2 - used, side[2])); used += k - len(side[0])
                A(f"v_mfma_f32_16x16x32_bf16 {v(acc[1],4)}, {v(WFS[n % R],4)}, {B[1]}, {'0' if zero else v(acc[1],4)}")
            else:
                A(f"v_mfma_f32_32x32x16_bf16 {v(acc,16)}, {v(WFS[n % R],4)}, {B}, {'0' if zero else v(acc,16)}")
            if n + R < len(seq): rd(n + R)
            act = side and n >= side[1] and side[0]
            if self.o.get("budget", 1) and not pair:
                owed = min(0, self.spend([fill] + ([side[0]] if act else []), (side[3] if act and len(side) > 3 else self.o.get("gap", 18)) + owed))
            elif act:
                k = len(fill)
                if not pair: self.drain(fill, 2)
                self.drain(side[0], side[2] - (k - len(fill)) - used)
            else: self.drain(fill, 1 if pair else 4)
        for sd in sides:
            while sd and sd[0]: self.emit(sd[0].pop(0))
        while fill: self.emit(fill.pop(0))

    def es_hooks(self, st_, fill, up, gate, name, code, stats):
        if not self.es: return
        A = self.A
        if st_ == 0:
            A.wait_vm(('a', 1))
            for x in self.verify([0, 4], name): A(x)
        if st_ == max(gate - 4, 0): fill.insert(0, ('vm', f"s_mov_b64 exec, 1\nbuffer_load_dword v253, v{VCNT}, {WS}, 0 offen sc1\ns_mov_b64 exec, -1", 'fl'))
        if st_ == gate:
            self.need('fl', fill); self.flag_check(253, code); stats()
        if st_ % 2 == 0: assert up % 2 == 0 and not any(isinstance(x, str) and "vccnz" in x for x in fill)
        if st_ % 2 == 0 and st_ + 2 < up: fill[:0] = [('wv', ('a', st_ + 3))] + self.verify([4*st_ + 8, 4*st_ + 12], name)

    def split3(self, src, dst, t):
        return [f"v_and_b32 v{t}, 0xffff0000, v{src}", f"v_sub_f32 v{t+1}, v{src}, v{t}", f"v_and_b32 v{dst}, 0xffff0000, v{t+1}", f"v_sub_f32 v{t+1}, v{t+1}, v{dst}",
                f"v_lshrrev_b32 v{t}, 16, v{t}", f"v_and_b32 v{dst+1}, 0xffff0000, v{t+1}", f"v_or_b32 v{dst}, v{dst}, v{t}", f"v_or_b32 v{dst+1}, v{dst+1}, v{t}",
                f"v_mov_b32 v{dst+2}, v{dst}", f"v_mov_b32 v{dst+3}, 0"]

    def csfrag(self, c, w, z, ad):
        return [f"v_and_b32 v{w+1}, 0xffff0000, v{c}", f"v_sub_f32 v{c}, v{c}, v{w+1}", f"v_and_b32 v{w+2}, 0xffff0000, v{c}", f"v_sub_f32 v{c}, v{c}, v{w+2}",
                f"v_lshrrev_b32 v{w}, 16, v{w+1}", f"v_or_b32 v{w}, v{w}, v{w+1}", f"v_lshrrev_b32 v{w+3}, 16, v{w+2}", f"v_or_b32 v{w+1}, v{w+1}, v{w+3}",
                f"v_lshrrev_b32 v{c}, 16, v{c}", f"v_or_b32 v{w+2}, v{w+2}, v{c}", f"v_mov_b32 v{w+3}, 0"] + [f"v_mov_b32 v{z+k}, 0" for k in range(4)] + \
               [('lg', f"ds_write_b128 v{ad}, {v(w,4)}", 'csw'), ('lg', f"ds_write_b128 v{ad}, {v(z,4)} offset:512", 'csw')]

    def csaddr(self, e, dst, t, base):
        return (f"v_lshrrev_b32 v{dst}, 5, v{e}\nv_lshlrev_b32 v{dst}, 10, v{dst}\nv_bfe_u32 v{t}, v{e}, 2, 2\nv_lshl_add_u32 v{dst}, v{t}, 7, v{dst}\nv_bfe_u32 v{t}, v{e}, 4, 1\n"
                f"v_lshl_add_u32 v{dst}, v{t}, 6, v{dst}\nv_and_b32 v{t}, 3, v{e}\nv_lshl_add_u32 v{dst}, v{t}, 4, v{dst}\nv_add_u32 v{dst}, {base}, v{dst}")

    def capture(self, fn):
        keep = self.A; self.A = Asm(); fn(); L = [i.text for i in self.A.L]; self.A = keep
        return L

    def weave_loads(self, body, loads, every, extra=None):
        def safe(i):
            ex = [x for x in body[i:] if "exec" in x]
            if ex and ex[0].endswith("-1"): return False
            for x in body[i:]:
                if x.startswith("s_cmp"): return True
                if x.startswith(("s_cmov", "s_cselect", "s_cbranch")): return False
            return True
        since = every
        for i, x in enumerate(body):
            if since >= every and loads and safe(i): self.drain(loads, 6); since = 0
            self.A(x); since += 1
            if extra and i % 7 == 6: extra()
        while loads: self.emit(loads.pop(0))

    def mix(self, body, fill, every):
        for k, x in enumerate(body):
            self.emit(x)
            if (k + 1) % every == 0: self.drain(fill, 5)

    def spin(self, addr, tgt, code, srd_=WS):
        A = self.A; L = A.newlab("poll"); D = A.newlab("pdone"); t = 254
        ld = lambda r: f"buffer_load_dword v{r}, v{addr}, {srd_}, 0 offen sc1"
        if self.o.get("poll1", 0):
            A(f"s_mov_b32 s{T[2]}, 20000")
            if self.o.get("pfirst", 0): A(f"s_sleep {self.o['pfirst']}")
            A.lab(L)
            A(ld(t) + f"\ns_waitcnt vmcnt(0)\nv_cmp_gt_u32 vcc, {tgt}, v{t}\ns_cbranch_vccz {D}\ns_sleep {self.o.get('psleep', 5)}")
        else:
            pf = self.o.get(f"pfirst{code >> 8}", self.o.get("pfirst", 0)); ps = self.o.get(f"psleep{code >> 8}", self.o.get("psleep", 5))
            if pf: A(f"s_sleep {pf}")
            A(f"s_mov_b32 s{T[2]}, 20000\n" + ld(t))
            A.lab(L)
            for r in (t + 1, t):
                A(f"s_sleep {ps}\n" + ld(r) + f"\ns_waitcnt vmcnt(1)\nv_cmp_gt_u32 vcc, {tgt}, v{2*t + 1 - r}\ns_cbranch_vccz {D}")
        A(f"s_sub_u32 s{T[2]}, s{T[2]}, 1\ns_cmp_lg_u32 s{T[2]}, 0\ns_cbranch_scc1 {L}")
        A(f"s_waitcnt vmcnt(0)\nv_mov_b32 v{t}, {code}\nv_mov_b32 v{t+1}, 128\nbuffer_store_dword v{t}, v{t+1}, {DS_}, 0 offen")
        A.lab(D)

    def shoff(self):
        mode = self.o.get("shmode", 0)
        if mode == 0: return f"s_and_b32 s3, s{J}, {self.nsh - 1}\ns_lshl_b32 s3, s3, 7\n"
        return f"s_lshr_b32 s3, s{J}, {5 - self.nsh.bit_length()}\ns_lshl_b32 s3, s3, 7\n"

    def code_touch(self):
        if not self.o.get("codepf2", 1): return
        A = self.A; L = A.newlab("ct"); P = A.newlab("pc")
        A(f"s_lshl_b32 s3, s{LAY}, 2\ns_add_u32 s3, s3, s{WV}\ns_cmp_lg_u32 s3, 3\ns_cbranch_scc1 {L}")
        A(f"s_getpc_b64 s[28:29]\n{P}:\ns_sub_u32 s28, s28, {P} - {self.kname}\ns_subb_u32 s29, s29, 0\ns_mov_b32 s30, main_last - {self.kname}\ns_mov_b32 s31, 0x20000")
        A(f"s_and_b32 s3, s{J}, 7\ns_lshl_b32 s3, s3, 13\nv_lshlrev_b32 v252, 3, v{VL16}\nbuffer_load_dword v{VDUM}, v252, s[28:31], s3 offen")
        A.lab(L)

    def own_touch(self, code):
        if not (self.o.get("own", 0) >> (code >> 8)) & 1: return
        A = self.A
        if code == 0x200:
            A(f"buffer_load_dword v{VDUM}, v{VO1}, {WS}, s{SL} offen sc1\nbuffer_load_dword v{VDUM}, v{VO1}, {WS}, s{SL} offen offset:768 sc1\ns_mov_b32 exec_lo, 0\nbuffer_load_dword v{VDUM}, v{VO3}, {WS}, s{SL} offen offset:512 sc1\ns_mov_b32 exec_lo, -1")
        else:
            A(f"buffer_load_dword v{VDUM}, v{VX}, {WS}, s{T[4]} offen sc1\nbuffer_load_dword v{VDUM}, v{VX}, {WS}, s{T[4]} offen offset:2048 sc1\ns_mov_b32 exec_hi, 0\nbuffer_load_dword v{VDUM}, v{VX}, {WS}, s{T[5]} offen sc1\ns_mov_b32 exec_hi, -1")

    def cluster_sync(self, post, pre, code, both=None):
        A = self.A; N = A.newlab("nw0"); E = A.newlab("syn")
        self.stamp(f'p{code>>8}.epi')
        self.drain_post(post); A("s_barrier")
        self.stamp(f'p{code>>8}.drain')
        rank = self.o.get("rank", 1); RD = A.newlab("rk")
        A(f"s_add_u32 s{TGT}, s{TGT}, {16 // self.nsh}\ns_cmp_lg_u32 s{WV}, 0\ns_cbranch_scc1 {N}")
        A(f"s_mov_b64 exec, 1\nv_mov_b32 v252, 1\n{self.shoff()}buffer_atomic_add v252, v{VCNT}, {WS}, s3 offen {'sc0 ' if rank else ''}sc1\ns_mov_b64 exec, {self.shm}")
        if both or self.o.get("own", 0):
            A("s_mov_b64 exec, -1"); self.own_touch(code)
            if both: both()
            A(f"s_mov_b64 exec, {self.shm}")
        if rank:
            A(f"s_waitcnt vmcnt(0)\nv_readfirstlane_b32 s3, v252\ns_sub_u32 s3, s{TGT}, s3\ns_cmp_le_u32 s3, 1\ns_cbranch_scc1 {RD}\ns_cmp_le_u32 s3, {self.o.get('rankn', 6)}\ns_cbranch_scc1 {RD}a\ns_sleep {rank}")
            A.lab(RD + "a")
        self.spin(VCNT, f's{TGT}', code)
        if rank: A.lab(RD)
        A(f"s_mov_b64 exec, -1")
        self.stamp(f'p{code>>8}.poll')
        A(f"s_branch {E}")
        A.lab(N)
        self.own_touch(code)
        self.code_touch()
        if code == 0x300 and self.o.get("tlbout", 0):
            A(f"s_lshl_b32 s3, s{S_A3}, 4\ns_mul_i32 s3, s3, 1280\ns_mov_b64 exec, 1\nbuffer_load_dword v{VDUM}, v{VL16}, {OS}, s3 offen\ns_mov_b64 exec, -1")
        if pre: pre()
        if both: both()
        if self.o.get("onebar", 0): A("s_waitcnt vmcnt(0)")
        A.lab(E)
        A("s_barrier")
        self.stamp(f'p{code>>8}.bar')

    def early_signal(self, first=False):
        if not self.es or self.o.get("estest") and not first: return
        A = self.A; L = A.newlab("es")
        A(f"s_cmp_lg_u32 s{WV}, 0\ns_cbranch_scc1 {L}\ns_mov_b64 exec, 1\nv_mov_b32 v252, 1\nbuffer_atomic_add v252, v{VCNT}, {WS}, 0 offen offset:128 sc1\ns_mov_b64 exec, -1")
        A.lab(L)

    def early_sync(self, post, code, k):
        A = self.A; N = A.newlab("nw0"); E = A.newlab("syn")
        self.stamp(f'p{code>>8}.epi')
        kb = -(-post[3] // 3)
        A(f"s_cmp_lg_u32 s{WV}, 0\ns_cbranch_scc1 {N}\ns_mul_i32 s{T[3]}, s{LAY}, 48\ns_add_u32 s{T[3]}, s{T[3]}, {16*k}\ns_mov_b64 exec, 1\nv_add_u32 v252, 128, v{VCNT}")
        self.spin(252, f's{T[3]}', code)
        A(f"s_mov_b64 exec, -1\ns_waitcnt lgkmcnt(0)\ns_branch {E}")
        A.lab(N)
        self.rnd3(post[0], post[1], post[2], kb)
        A(f"s_waitcnt vmcnt({kb}) lgkmcnt(0)")
        self.code_touch()
        A.lab(E)
        A.vm = []; A.lg = []
        A("s_barrier")
        self.stamp(f'p{code>>8}.poll')
        self.signal()
        if self.o.get("estest"): self.o["estest"] = 0; self.early_signal(); self.o["estest"] = 1

    def mark(self, stores):
        if not self.es: return
        A = self.A
        for k in range(4): A(f"v_mov_b32 v{248+k}, -1")
        for pre, ad, so, im, post in stores: A(f"{pre}buffer_store_dwordx4 v[248:251], v{ad}, {WS}, s{so} offen offset:{im} sc1{post}")

    def mark_x(self, off):
        if not self.es: return
        self.A(f"s_add_u32 s99, s{SL}, s{S_X}\ns_add_u32 s99, s99, {off}\ns_add_u32 s3, s99, 4096")
        self.mark([("", VX, 99, 0, ""), ("", VX, 99, 2048, ""), ("s_mov_b32 exec_hi, 0\n", VX, 3, 0, "\ns_mov_b32 exec_hi, -1")])

    def verify(self, regs, name):
        L = self.A.newlab("vf")
        out = [f"v_accvgpr_read_b32 v{250+k}, a{r}" for k, r in enumerate(regs)]
        if len(regs) == 2: out.append("v_max_u32 v250, v250, v251")
        out.append(f"v_cmp_eq_u32 vcc, -1, v250\ns_cbranch_vccnz {L}\n{L}b:")
        self.rare.append(f"{L}:\ns_call_b64 s[100:101], {name}\ns_branch {L}b")
        return out

    def reload(self, name, code, loads):
        keep = self.A; self.A = B = Asm(); B.uid = 20000 + code
        B.lab(name)
        B("s_mov_b64 exec, 1"); self.spin(VCNT, f"s{TGT}", code); B("s_mov_b64 exec, -1")
        for x in loads: B(x)
        B("s_waitcnt vmcnt(0)\ns_setpc_b64 s[100:101]")
        self.A = keep; self.rare.append(B.render())

    def setup(self):
        A = self.A
        A.lab(self.kname)
        if self.o.get("entry"): A("s_memrealtime s[94:95]")
        A("s_cmp_ge_u32 s2, 256\ns_cbranch_scc1 main_end")
        A("s_load_dwordx2 s[28:29], s[0:1], 0\ns_load_dwordx4 s[32:35], s[0:1], 56\ns_load_dwordx2 s[30:31], s[0:1], 72")
        if self.fused: A("s_load_dwordx4 s[80:83], s[0:1], 8\ns_load_dwordx4 s[84:87], s[0:1], 32\ns_load_dwordx2 s[88:89], s[0:1], 48")
        A(f"v_and_b32 v{VL}, 63, v0\nv_lshrrev_b32 v2, 6, v0\ns_nop 0\nv_readfirstlane_b32 s{WV}, v2\nv_lshlrev_b32 v{VL16}, 4, v{VL}")
        mx = self.o.get("mx", 512)
        if mx == 256:
            A(f"s_and_b32 s{MB}, s2, 7\ns_lshl_b32 s{MB}, s{MB}, 1\ns_lshr_b32 s3, s2, 7\ns_add_u32 s{MB}, s{MB}, s3\ns_bfe_u32 s{J}, s2, 0x40003")
        elif mx == 512:
            A(f"s_bfe_u32 s{MB}, s2, 0x20001\ns_lshl_b32 s{MB}, s{MB}, 2\ns_lshr_b32 s3, s2, 6\ns_add_u32 s{MB}, s{MB}, s3")
            A(f"s_and_b32 s{J}, s2, 1\ns_lshl_b32 s{J}, s{J}, 3\ns_bfe_u32 s3, s2, 0x30003\ns_add_u32 s{J}, s{J}, s3")
        elif mx == 1024:
            A(f"s_bfe_u32 s{MB}, s2, 0x10002\ns_lshl_b32 s{MB}, s{MB}, 3\ns_lshr_b32 s3, s2, 5\ns_add_u32 s{MB}, s{MB}, s3")
            A(f"s_and_b32 s{J}, s2, 3\ns_lshl_b32 s{J}, s{J}, 2\ns_bfe_u32 s3, s2, 0x20003\ns_add_u32 s{J}, s{J}, s3")
        A((f"s_lshr_b32 s{RH}, s{J}, 3\ns_and_b32 s{CT}, s{J}, 7" if self.o.get("rhhi", 0) else f"s_and_b32 s{RH}, s{J}, 1\ns_lshr_b32 s{CT}, s{J}, 1"))
        A(f"s_lshr_b32 s{RR}, s{WV}, 1\ns_and_b32 s{KH}, s{WV}, 1\ns_sub_u32 s{S_WI}, s{WV}, 1")
        A(f"s_mov_b32 s{LAY}, 0\ns_mov_b32 s{SL}, {LB}\ns_mov_b32 s{TGT}, 0\ns_mov_b32 s{S_PB}, 0")
        A(f"s_lshl_b32 s3, s{MB}, 2\ns_add_u32 s3, s3, s{WV}\ns_mul_i32 s{S_A1}, s3, 40960\ns_lshl_b32 s{S_ST1}, s3, 11")
        A(f"s_mul_i32 s{S_H}, s3, {2*54*1024}\ns_nop 0")
        A(f"s_mul_i32 s{S_W1}, s{J}, {WP1_J}\ns_add_u32 s{S_W1}, s{S_W1}, {WP1}\ns_mul_i32 s{S_W4}, s{J}, {WP4_J}\ns_add_u32 s{S_W4}, s{S_W4}, {WP4}")
        A(f"s_mul_i32 s{S_W3}, s{CT}, {WP3_C}\ns_add_u32 s{S_W3}, s{S_W3}, {WP3}\ns_mul_i32 s{S_W5}, s{CT}, {WP5_C}\ns_add_u32 s{S_W5}, s{S_W5}, {WP5}")
        A(f"s_mov_b32 s{S_W4B}, s{S_W4}\ns_cmp_eq_u32 s{J}, {15 if self.o.get('oob15', 1) else 99}\ns_cmov_b32 s{S_W4B}, {OOB}")
        A("s_waitcnt lgkmcnt(0)")
        srd(A, 4, 30, WS_USED); srd(A, 8, 28, 2048*640*2); srd(A, 16, 34, 256)

    def p1_first(self):
        A = self.A; o = self.o; st = "sc1"
        QS = "s[68:71]"; WOS = "s[64:67]"
        ACC, GR, ONE, MU, RS, AP = 64, 176, 56, 168, 169, 172
        VXS, VAX, TMP, VU1, VU3, VZ = 129, 133, 138, 134, 135, 136
        r, c, G = 44, 45, 46
        AB = 49152; NB = 3
        srd(A, 68, 80, 640*1920*2); srd(A, 64, 82, 640*640*2); srd(A, 60, 88, 1728*640*2); srd(A, 12, 32, 2048*640*2)
        A(f"s_cmp_lt_u32 s{WV}, 2\ns_cselect_b32 s56, s84, s86\ns_cselect_b32 s57, s85, s87\ns_mov_b32 s58, {640*1728*2}\ns_mov_b32 s59, 0x20000")
        A(f"s_lshl_b32 s{S_U}, s{MB}, 4\ns_add_u32 s{S_U}, s{S_U}, s{J}")
        NZ = A.newlab("nz"); NZ2 = A.newlab("nz")
        A(f"s_cmp_lg_u32 s2, 0\ns_cbranch_scc1 {NZ}\ns_cmp_lg_u32 s{WV}, 3\ns_cbranch_scc1 {NZ}")
        A(f"v_lshlrev_b32 v56, 7, v{VL}\nv_mov_b32 v57, 0\nbuffer_store_dword v57, v56, {WS}, 0 offen sc1\ns_mov_b32 s3, {PK4}\ns_mov_b32 exec_hi, 0\nbuffer_store_dword v57, v56, {WS}, s3 offen sc1\ns_mov_b32 exec_hi, -1")
        A.lab(NZ)
        A(f"v_and_b32 v51, 7, v{VL}\nv_lshrrev_b32 v52, 3, v{VL}\ns_and_b32 s34, s{MB}, 1\ns_lshr_b32 s35, s{MB}, 1")
        A("s_cmp_eq_u32 s34, 0\ns_cselect_b32 s31, 5, 3"); sel(A, 32, 2560, 1312); sel(A, 33, 1184, -48); sel(A, 36, 0xdfdfdfdf, -1)
        A("v_mov_b32 v53, s32\nv_mov_b32 v54, s33\nv_cmp_gt_u32 vcc, s31, v51\nv_cndmask_b32 v53, v54, v53, vcc\nv_lshl_add_u32 v53, v51, 4, v53\nv_mul_u32_u24 v54, 3840, v52\nv_add_u32 v53, v53, v54")
        A(f"s_mul_i32 s31, s35, 80*3840\ns_mul_i32 s32, s{J}, 80\ns_add_u32 s31, s31, s32\ns_mov_b32 exec_lo, s36\ns_mov_b32 exec_hi, s36")
        for n in range(3):
            A(f"s_add_u32 s32, s{WV}, {4*n}\ns_min_u32 s32, s32, 9\ns_lshl_b32 m0, s32, 10\ns_mul_i32 s32, s32, 8*3840\ns_add_u32 s32, s32, s31")
            A.vmem(f"buffer_load_dwordx4 v53, {QS}, s32 offen {self.ntu} lds", 'u')
        A("s_mov_b64 exec, -1")
        A(f"s_lshr_b32 s99, s{S_U}, 3\ns_and_b32 s100, s{S_U}, 7\ns_mul_i32 s30, s99, 32*1280\ns_mul_i32 s31, s100, 160\ns_add_u32 s30, s30, s31\ns_cmp_ge_u32 s{S_U}, 160\ns_cmov_b32 s30, {OOB}")
        for n in range(2):
            A(f"s_add_u32 s31, s{WV}, {4*n}\ns_min_u32 s31, s31, 4\ns_lshl_b32 s3, s31, 6\nv_add_u32 v54, s3, v{VL}\nv_mul_u32_u24 v55, 6554, v54\nv_lshrrev_b32 v55, 16, v55\nv_mul_u32_u24 v56, 10, v55\nv_sub_u32 v56, v54, v56")
            A(f"v_mul_u32_u24 v55, 1280, v55\nv_lshl_add_u32 v55, v56, 4, v55\ns_lshl_b32 s31, s31, 10\ns_add_u32 m0, s31, {STG3}")
            A.vmem(f"buffer_load_dwordx4 v55, {WOS}, s30 offen {self.ntu} lds", 'u')
        A(f"v_lshrrev_b32 v{G}, 4, v{VL}\nv_and_b32 v48, 15, v{VL}")
        for n in range(4):
            A(f"v_add_u32 v49, {4*n}, v{G}\nv_xor_b32 v50, v48, v49\nv_mul_u32_u24 v49, 1280, v49\nv_lshl_add_u32 v{VXS+n}, v50, 4, v49")
        SX, SXL = T[0], T[1]
        A(f"s_lshl_b32 s3, s{MB}, 2\ns_add_u32 s3, s3, s{WV}\ns_mul_i32 s{SX}, s3, 32*1280\ns_mul_i32 s{SXL}, s{WV}, {NB*8192}\ns_add_u32 s{SXL}, s{SXL}, {AB}")
        def xlist(ch):
            L = []
            for n in range(8):
                if n % 4 == 0: L.append(f"s_add_u32 s{T[9]}, s{SX}, {ch*256 + (n >> 2)*16*1280}")
                L += [f"s_add_u32 m0, s{SXL}, {(ch % NB)*8192 + n*1024}", ('vm', f"buffer_load_dwordx4 v{VXS + (n & 3)}, {XS}, s{T[9]} offen {self.ntx} lds", ('x', ch))]
            return L
        def xjob(ch):
            for x in xlist(ch): self.emit(x)
        def publish():
            A(f"s_cmp_lg_u32 s2, 0\ns_cbranch_scc1 {NZ2}\ns_cmp_lg_u32 s{WV}, 3\ns_cbranch_scc1 {NZ2}")
            A(f"s_waitcnt vmcnt({len(A.vm)})\ns_mov_b64 exec, 1\nv_mov_b32 v60, 0\nv_mov_b32 v61, 1\nbuffer_store_dword v61, v60, {DS_}, 0 offen sc1\ns_mov_b64 exec, -1")
            A.lab(NZ2)
        pubat = o.get("pubat", 1)
        if pubat == 0: publish()
        if o.get("tlb", 0):
            A(f"v_lshlrev_b32 v54, 21, v{VL}\ns_lshl_b32 s3, s{S_U}, 7\ns_add_u32 s3, s3, 0x80000\ns_cmp_lg_u32 s{WV}, 2\ns_cmov_b32 s3, {OOB}\ns_mov_b32 exec_hi, 0")
            A.vmem(f"buffer_load_dword v{VDUM}, v54, {WS}, s3 offen\ns_mov_b32 exec_hi, -1", 't')
        if o.get("tlb2", 0):
            A(f"v_lshlrev_b32 v54, 21, v{VL}\ns_lshl_b32 s3, s{S_U}, 7\ns_mov_b64 exec, 3")
            A.vmem(f"buffer_load_dword v{VDUM}, v54, {GUS}, s3 offen", 't'); A.vmem(f"buffer_load_dword v{VDUM}, v54, {WDS}, s3 offen\ns_mov_b64 exec, -1", 't')
        if o.get("touchx", 0):
            A(f"s_lshl_b32 s30, s{MB}, 3\ns_and_b32 s31, s{J}, 7\ns_add_u32 s30, s30, s31\ns_lshl_b32 s3, s30, 2\ns_add_u32 s3, s3, s{WV}\ns_mul_i32 s3, s3, 5120\nv_lshlrev_b32 v54, 7, v{VL}\ns_mov_b32 exec_hi, 0xff")
            A.vmem(f"buffer_load_dword v{VDUM}, v54, {XS}, s3 offen {self.ntx}\ns_mov_b32 exec_hi, -1", 't')
        if o.get("codepf", 1):
            A(f"s_getpc_b64 s[64:65]\nmain_pc:\ns_sub_u32 s64, s64, main_pc - {self.kname}\ns_subb_u32 s65, s65, 0\ns_mov_b32 s66, main_last - {self.kname}\ns_mov_b32 s67, 0x20000")
            A(f"s_and_b32 s3, s{J}, 7\ns_lshl_b32 s3, s3, 13\ns_cmp_lg_u32 s{WV}, 3\ns_cmov_b32 s3, {OOB}\nv_lshlrev_b32 v54, 7, v{VL}")
            A.vmem(f"buffer_load_dword v{VDUM}, v54, s[64:67], s3 offen", 'c')
        for i in range(4): A(f"v_mov_b32 v{ONE+i}, 0x3f803f80")
        NP = A.newlab("np")
        A(f"s_cmp_lg_u32 s34, 0\ns_cbranch_scc1 {NP}\nv_lshlrev_b32 v48, 7, v0\nv_cmp_gt_u32 vcc, 80, v0\ns_and_saveexec_b64 s[36:37], vcc\ns_cbranch_execz {NP}a\nds_write_b128 v48, {v(ONE,4)} offset:80")
        A.lab(NP + "a"); A("s_mov_b64 exec, s[36:37]"); A.lab(NP)
        spre, j4, j5 = self.stage_jobs()
        prep, late = self.pack_late()
        CP = 240; RL = LDS_MISC + 4096
        def part1():
            A = self.A
            A(f"s_cmp_ge_u32 s99, 10\ns_cselect_b32 s30, 1, 0\ns_cselect_b32 s31, 10, 0\ns_sub_u32 s31, s99, s31\ns_lshl_b32 s31, s31, 1\ns_add_u32 s31, s31, s30\ns_mul_i32 s31, s31, 5120")
            A(f"s_mul_i32 s30, s100, {WP3_C}\ns_add_u32 s30, s30, s31\ns_add_u32 s30, s30, {WP3}\ns_cmp_ge_u32 s{S_U}, 160\ns_cmov_b32 s30, {OOB}")
            A(f"v_bfe_u32 v{r}, v{VL}, 2, 2\nv_and_b32 v{c}, 3, v{VL}\nv_lshrrev_b32 v48, 1, v{G}\nv_lshl_add_u32 v48, v48, 2, v{r}\nv_lshlrev_b32 v48, 7, v48\nv_and_b32 v49, 1, v{G}\nv_lshl_add_u32 v49, v49, 2, v{c}\nv_lshl_add_u32 v48, v49, 3, v48\ns_lshl_b32 s3, s{WV}, 6\nv_add_u32 v{VU1}, s3, v48")
            A(f"v_lshl_add_u32 v{VU3}, v{G}, 3, v{r}\nv_mul_u32_u24 v{VU3}, 160, v{VU3}\nv_lshl_add_u32 v{VU3}, v{c}, 3, v{VU3}\nv_add_u32 v{VU3}, {STG3}, v{VU3}\nv_mov_b32 v{VZ}, 0")
            for x in spre: A(x)
        def part2():
            A = self.A
            A(f"v_and_b32 v48, 31, v{VL}\nv_and_b32 v49, 15, v{VL}\nv_lshlrev_b32 v{VAX}, 8, v48\nv_lshl_add_u32 v{VAX}, v49, 4, v{VAX}\nv_lshrrev_b32 v49, 5, v{VL}\nv_lshl_add_u32 v{VAX}, v49, 3, v{VAX}\nv_add_u32 v{VAX}, s{SXL}, v{VAX}")
            self.setup2a()
            A(f"s_lshl_b32 s3, s{J}, 7\ns_add_u32 s3, s3, {CG}\nv_mov_b32 v53, s3\nv_mov_b32 v62, s3\ns_lshl_b32 s3, s{CT}, 7\ns_add_u32 s3, s3, {PK3}\nv_writelane_b32 v53, s3, 1\nv_mov_b32 v54, 16\nv_writelane_b32 v54, 20, 1")
            A(f"s_and_b32 s3, s{S_U}, 7\ns_lshl_b32 s3, s3, 7\ns_add_u32 s3, s3, {PK3}\nv_writelane_b32 v62, s3, 1\nv_mov_b32 v63, 1")
            A(f"s_lshl_b32 s88, s{S_A3}, 4\ns_mul_i32 s88, s88, 1280\ns_mul_i32 s3, s{CT}, 160\ns_add_u32 s88, s88, s3\ns_mul_i32 s89, s{WV}, 2560\ns_add_u32 s89, s89, {RL}")
            A(f"v_and_b32 v{CP+10}, 15, v{VL}\nv_mul_u32_u24 v{CP+10}, 160, v{CP+10}\nv_lshrrev_b32 v48, 4, v{VL}\nv_lshl_add_u32 v{CP+10}, v48, 3, v{CP+10}\nv_add_u32 v{CP+10}, s89, v{CP+10}")
            for n in range(3):
                A(f"v_add_u32 v48, {64*n}, v{VL}\nv_mul_u32_u24 v49, 6554, v48\nv_lshrrev_b32 v49, 16, v49\nv_mul_u32_u24 v50, 10, v49\nv_sub_u32 v50, v48, v50\nv_mul_u32_u24 v49, 1280, v49\nv_lshl_add_u32 v{140+n}, v50, 4, v49")
            A(f"v_and_b32 v48, 127, v0\nv_lshrrev_b32 v49, 5, v48\nv_and_b32 v50, 31, v48\nv_lshlrev_b32 v50, 2, v50\nv_lshl_add_u32 v{CP+8}, v49, 10, v50")
            A(self.csaddr(48, CP+9, 49, CSF1))
            for x in prep: A(x)
        self.weave_loads(self.capture(part1), xlist(0), 9)
        if pubat == 1: publish()
        stg0 = o.get("stg0", 0)
        self.weave_loads(self.capture(part2), j4 + j5 if stg0 else xlist(1), o.get("cevery", 12))
        A.wait_vm('u')
        if pubat == 2: publish()
        A.wait_lg0(); A("s_barrier")
        self.stamp('s.u')
        HI = A.newlab("hi"); DN = A.newlab("dn"); keep = list(A.vm)
        A(f"s_cmp_ge_u32 s{WV}, 2\ns_cbranch_scc1 {HI}")
        A(f"s_lshl_b32 s32, s34, 1\ns_add_u32 s32, s32, s{WV}\ns_mul_i32 s3, s32, 40\ns_cmp_lt_u32 s32, 2\ns_cselect_b32 s3, s32, s3"); sel(A, 36, 2048, 1024)
        A(f"s_lshl_b32 s3, s3, 10\ns_mul_i32 s33, s35, 5\ns_mul_i32 s33, s33, s36\ns_add_u32 s33, s33, s{S_W1}\ns_add_u32 s30, s33, s3")
        A(f"s_lshl_b32 s33, s{J}, 2\ns_add_u32 s33, s33, s32\ns_lshl_b32 s33, s33, 3\ns_add_u32 s33, s33, s35\ns_lshl_b32 s33, s33, 7\ns_add_u32 s33, s33, {CSP1}")
        ur = [30, 31, 32, 34, 35]
        for u in range(1, 5): A(f"s_add_u32 s{ur[u]}, s{ur[u-1]}, s36")
        frag32_steps(A, VU1, VL16, lambda u: (f"s{ur[u]}", 0), "s33", WS, 64, 88, ONE, st)
        A(f"s_branch {DN}")
        A.lab(HI)
        A(f"s_cmp_lg_u32 s{WV}, 2\ns_cmov_b32 s30, {OOB}\ns_add_u32 s31, s30, 4096\ns_mov_b32 s32, {OOB}")
        for t in range(5):
            for p in range(2): A(f"ds_read_b64_tr_b16 {v(64+4*t+2*p,2)}, v{VU3} offset:{p*640 + t*32}")
        A("s_waitcnt lgkmcnt(0)")
        for t in range(5): A(f"buffer_store_dwordx4 {v(64+4*t,4)}, v{VL16}, {WS}, {'s30' if t < 4 else 's31'} offen offset:{(t&3)*1024} {st}")
        A("s_mov_b64 exec, 1")
        for t in range(4): A(f"buffer_store_dword v64, v{VL16}, {WS}, s32 offen")
        A("s_mov_b64 exec, -1")
        A.lab(DN)
        A.vm = keep + ['us'] * 9; A.lg = []
        A.vmem(f"s_lshl_b32 s3, s{S_U}, 7\ns_add_u32 s3, s3, {KVF}\ns_cmp_lg_u32 s{WV}, 0\ns_cmov_b32 s3, {OOB}\ns_mov_b64 exec, 1\nbuffer_store_dword v{VZ}, v{VZ}, {WS}, s3 offen sc1", 'us')
        A.vmem(f"s_lshl_b32 s3, s{WV}, 8\nbuffer_load_dword v61, v{VZ}, {DS_}, s3 offen sc1\ns_mov_b64 exec, -1", 'dbg')
        self.stamp('s.st')
        qmap = {}
        for st_ in range(40):
            for p in range(2): qmap[10*(st_//5) + cg32(st_ % 5, 0, p)//2] = (st_, p)
        done = set(); gram = [0]
        def gram1():
            if gram[0] < 40 and (gram[0], 0) in done and (gram[0], 1) in done:
                k = gram[0]; gram[0] += 1
                A(f"v_mfma_f32_32x32x16_bf16 {v(GR,16)}, {a(4*k,4)}, {a(4*k,4)}, {'0' if k == 0 else v(GR,16)}")
        def xreads(ch, also=()):
            also = list(also)
            A.wait_vm(('x', ch))
            for k, q in enumerate(range(16*ch, 16*ch + 16)):
                st_, p = qmap[q]
                A(f"v_xor_b32 v{TMP+(k&1)}, {k*16}, v{VAX}")
                A.lds(f"ds_read_b64 {a(4*st_+2*p,2)}, v{TMP+(k&1)} offset:{(ch % NB)*8192}")
                if k % 2:
                    if k % 4 == 3 or ch == 4: gram1()
                    self.drain(also, 6)
            assert not also
            A.wait_lg0()
            for q in range(16*ch, 16*ch + 16): done.add(qmap[q])
        xreads(0, xlist(1 if stg0 else 2))
        stgat = o.get("stgat", 0)
        for x in (xlist(2) if stg0 else (j4 + j5 if stgat == 0 else [])): self.emit(x)
        self.stamp('z.x0')
        A.wait_vm('dbg'); A("s_barrier")
        self.stamp('s.drain')
        W1_ = A.newlab("w"); OKI = A.newlab("oki")
        A(f"s_cmp_lg_u32 s{WV}, 0\ns_cbranch_scc1 {W1_}\ns_mov_b64 exec, 1\nv_cmp_gt_u32 vcc, 1, v61\ns_cbranch_vccz {OKI}")
        self.spin(VZ, "1", 0x10, DS_)
        A.lab(OKI)
        A(f"s_cmp_lt_u32 s{S_U}, 160\ns_cselect_b32 exec_lo, 3, 1\nbuffer_atomic_add v63, v62, {WS}, 0 offen sc1\ns_mov_b64 exec, -1")
        A.lab(W1_)
        x3 = xlist(3)
        if stg0:
            for x in late:
                self.emit(x); self.drain(x3, 3)
            assert not x3
            A.wait_lg0()
        if not stg0 and stgat == 1:
            for x in j4 + j5: self.emit(x)
        self.stamp('z.w2')
        xreads(1, x3)
        if not stg0 and stgat == 2:
            for x in j4 + j5: self.emit(x)
        x4 = xlist(4); late3 = o.get("pk3late", 1); m0_ = 1 if late3 else 3
        for n in range(3):
            x4 += [f"s_add_u32 m0, s89, {1024*n}", ('vm', ("s_mov_b32 exec_hi, 0\n" if n == 2 else "") + f"buffer_load_dwordx4 v{140+n}, {XS}, s88 offen lds" + ("\ns_mov_b32 exec_hi, -1" if n == 2 else ""), 'res')]
        x4.append(('vm', f"s_cmp_lg_u32 s{WV}, 0\ns_cselect_b32 s3, {OOB}, 0\ns_mov_b64 exec, {m0_}\nbuffer_load_dword v55, v53, {WS}, s3 offen sc1\ns_mov_b64 exec, -1", 'fl0'))
        while x4:
            self.drain(x4, 3); gram1()
        self.stamp('z.x1')
        ls = sum(self.late_stores, [])
        if not stg0:
            A.wait_vm('stg'); A("s_barrier")
            for x in late: self.emit(x)
            A.wait_lg0()
        xreads(2, ls[:len(ls)//2]); xreads(3, ls[len(ls)//2:])
        self.stamp('z.x3')
        xreads(4)
        self.stamp('s.x')
        W2_ = A.newlab("w")
        A.wait_vm('fl0')
        for k in range(5): A.lds(f"ds_read_b64 {v(RES+2*k,2)}, v{CP+10} offset:{32*k}")
        A(f"s_cmp_lg_u32 s{WV}, 0\ns_cbranch_scc1 {W2_}\ns_mov_b64 exec, {m0_}\nv_cmp_gt_u32 vcc, v54, v55\ns_cbranch_vccz {W2_}a")
        self.spin(53, "v54", 0x20)
        A.lab(W2_ + "a"); A("s_mov_b64 exec, -1")
        A.lab(W2_)
        A("s_barrier")
        self.stamp('s.poll')
        seq, ch = self.p1_seq(AP)
        up = o.get("up1a", 6)
        self.weave_loads(self.capture(self.setup2b), sum((self.rnd(ch[k][0], ch[k][1], ch[k][3], ch[k][2], ('w', k)) for k in range(up)), []), o.get("cevery3", 6), gram1)
        assert gram[0] == 40
        A(f"s_lshl_b32 s99, s{J}, 12\ns_add_u32 s99, s99, {CSP1}")
        rest = [f"v_cndmask_b32 v{GR}, v{GR}, v{GR+k}, s[{MASK+2*k}:{MASK+2*k+1}]" for k in range(1, 16)]
        rest += f"v_mov_b32 v{GR+1}, v{GR}\nv_mov_b32 v{GR+2}, v{GR}\nv_permlane32_swap_b32 v{GR+1}, v{GR+2}\nv_bfe_u32 v48, v{VL}, 2, 1\nv_cmp_eq_u32 vcc, 0, v48\nv_cndmask_b32 v{GR}, v{GR+2}, v{GR+1}, vcc\nv_mul_f32 v{GR}, {fhex(1.0/640)}, v{GR}".split("\n")
        ch = [c + (k < up,) for k, c in enumerate(ch)] + [(S_W3, 30720, 8, lds3(3), None, 999, False)]
        bars = list(range(4, 120, 4))
        jobs, valid, used = self.plan(ch, bars)
        jobs[-1] = (o.get("w3at", 96),) + jobs[-1][1:]
        for k in range(2, up):
            b = max(x for x in bars if x <= ch[k][4]); valid.setdefault(b, []).append(('w', k)); used.add(b)
        jobs += [(2, 22 + k, [('vm', f"buffer_load_dword v{CP+k}, v{CP+8}, {WS}, s99 offen offset:{128*k} sc1", 'cp')]) for k in range(8)]
        sched = self.edf(jobs, 120, lambda k: o.get("r1a", 1.3) if k < 40 else o.get("r1b", 0.4))
        for k in range(28): sched[k] += rest[k*len(rest)//28:(k+1)*len(rest)//28]
        assert not any(isinstance(x, tuple) and x[2] == 'cp' for k in range(29, 120) for x in sched[k])
        sched[29] += [('wv', 'cp')] + [f"v_add_f32 v{CP}, v{CP}, v{CP+k}" for k in range(1, 8)] + self.csfrag(CP, CP+4, 160, CP+9)
        sched[41] = [f"v_mul_f32 v{MU}, {fhex(-1.0/640)}, v{ACC+20}"] + self.split3(MU, AP, 160) + \
            [f"v_fma_f32 v{GR}, -v{MU}, v{MU}, v{GR}", f"v_max_f32 v{GR}, 0, v{GR}", f"v_add_f32 v{GR}, 0x3727c5ac, v{GR}", f"v_rsq_f32 v{RS}, v{GR}"] + sched[41]
        psig = o.get("psig", 24)
        A.wait_vm(('w', 1)); A.wait_lg0(); A("s_barrier")
        self.stamp('p1.go')
        def at_step(st_, fill):
            if st_ in (36, 40, 44):
                while fill: self.emit(fill.pop(0))
            if late3 and st_ == 76:
                fill.insert(0, ('vm', f"s_cmp_lg_u32 s{WV}, 0\ns_cselect_b32 s3, {OOB}, 0\ns_mov_b64 exec, 2\nbuffer_load_dword v55, v53, {WS}, s3 offen sc1\ns_mov_b64 exec, -1", 'fl3'))
            if late3 and st_ == 92:
                self.need('fl3', fill); L3 = A.newlab("p3")
                A(f"s_cmp_lg_u32 s{WV}, 0\ns_cbranch_scc1 {L3}\ns_mov_b64 exec, 2\nv_cmp_gt_u32 vcc, v54, v55\ns_cbranch_vccz {L3}a")
                self.spin(53, "v54", 0x30)
                A.lab(L3 + "a"); A("s_mov_b64 exec, -1"); A.lab(L3)
                assert o.get("w3at", 96) >= 92 and not self.alt
            if st_ in used or st_ in (psig, 36, 40, 92 if late3 else 40):
                for tag in valid.get(st_, []): self.need(tag, fill)
                if st_ == psig: self.need('pst', fill)
                if st_ == 36:
                    A.wait_lg('csw')
                A("s_barrier")
                if st_ == psig: self.packed_signal()
                if o.get("in1"): self.stamp(f'd.{st_}')
            if st_ == 40: self.stamp('p1.a')
            fill += sched[st_]
        self.p1_tail(seq, sched, at_step, RS)

    def stage_jobs(self):
        t = 160
        pre = [f"v_and_b32 v{t+4}, 7, v{VL}", f"v_lshrrev_b32 v{t+5}, 3, v{VL}", f"v_mul_u32_u24 v{t}, 3456, v{t+5}", f"v_lshl_add_u32 v{t}, v{t+4}, 4, v{t}",
               f"s_and_b32 s99, s{S_U}, 7", "s_mul_i32 s99, s99, 80", f"s_mul_i32 s100, s{KH}, 40", "s_add_u32 s99, s99, s100", "s_mul_i32 s99, s99, 3456",
               f"s_lshr_b32 s100, s{S_U}, 3", "s_lshl_b32 s100, s100, 7", "s_add_u32 s99, s99, s100",
               f"s_lshr_b32 s100, s{S_U}, 2", "s_mul_i32 s100, s100, 32*1280", f"s_and_b32 s101, s{S_U}, 3", "s_mul_i32 s101, s101, 320", "s_add_u32 s100, s100, s101",
               f"s_cmp_ge_u32 s{S_U}, 216\ns_cmov_b32 s99, {OOB}\ns_cmov_b32 s100, {OOB}"]
        for n in range(3):
            pre += [f"s_add_u32 s101, s{WV}, {4*n}", "s_min_u32 s101, s101, 9", "s_lshl_b32 s101, s101, 6", f"v_add_u32 v{t+4}, s101, v{VL}", f"v_mul_u32_u24 v{t+5}, 3277, v{t+4}", f"v_lshrrev_b32 v{t+5}, 16, v{t+5}",
                    f"v_mul_u32_u24 v{t+6}, 20, v{t+5}", f"v_sub_u32 v{t+6}, v{t+4}, v{t+6}", f"v_mul_u32_u24 v{t+5}, 1280, v{t+5}", f"v_lshl_add_u32 v{t+1+n}, v{t+6}, 4, v{t+5}"]
        j4 = [f"s_mul_i32 s101, s{WV}, 5120"]
        for n in range(5):
            j4 += [f"s_add_u32 m0, s101, {STG4 + n*1024}", ('vm', f"buffer_load_dwordx4 v{t}, {GUS}, s99 offen {self.nts} lds", 'stg'), f"s_add_u32 s99, s99, {8*3456}"]
        j5 = []
        for n in range(3):
            j5 += [f"s_add_u32 s101, s{WV}, {4*n}", f"s_min_u32 s101, s101, 9", f"s_lshl_b32 s101, s101, 10", f"s_add_u32 m0, s101, {STG5}",
                   ('vm', f"buffer_load_dwordx4 v{t+1+n}, {WDS}, s100 offen {self.nts} lds", 'stg')]
        return pre, j4[:-1], j5

    def pack_late(self):
        st = "sc1"; P = []; L = []
        r, c, G, ad, FR, FD, CA, ONE = 44, 45, 46, 47, 192, 212, 224, 56
        add = lambda txt: P.append(txt)
        add(f"v_bfe_u32 v{r}, v{VL}, 2, 2\nv_and_b32 v{c}, 3, v{VL}\nv_lshrrev_b32 v{G}, 4, v{VL}")
        if M16:
            add(f"v_lshrrev_b32 v{ad}, 1, v{G}\nv_lshl_add_u32 v{ad}, v{ad}, 2, v{r}\nv_lshlrev_b32 v{ad}, 7, v{ad}\nv_lshl_add_u32 v{ad}, v{c}, 3, v{ad}\nv_and_b32 v48, 1, v{G}")
            add(f"v_mul_u32_u24 v48, 10240, v48\nv_add_u32 v{ad}, v{ad}, v48\ns_lshl_b32 s3, s{WV}, 5\ns_add_u32 s3, s3, {STG4}\nv_add_u32 v{ad}, s3, v{ad}")
        else:
            add(f"v_lshrrev_b32 v{ad}, 1, v{G}\nv_lshl_add_u32 v{ad}, v{ad}, 2, v{r}\nv_lshlrev_b32 v{ad}, 7, v{ad}\nv_and_b32 v48, 1, v{c}\nv_lshl_add_u32 v{ad}, v48, 4, v{ad}\nv_and_b32 v48, 1, v{G}\nv_lshl_add_u32 v{ad}, v48, 3, v{ad}")
            add(f"v_lshrrev_b32 v48, 1, v{c}\nv_mul_u32_u24 v48, 10240, v48\nv_add_u32 v{ad}, v{ad}, v48\ns_lshl_b32 s3, s{WV}, 5\ns_add_u32 s3, s3, {STG4}\nv_add_u32 v{ad}, s3, v{ad}")
        add(f"v_lshl_add_u32 v49, v{G}, 3, v{r}\nv_mul_u32_u24 v49, 320, v49\nv_lshl_add_u32 v49, v{c}, 3, v49\ns_mul_i32 s81, s{KH}, 160\ns_mul_i32 s3, s{RR}, 96\ns_add_u32 s81, s81, s3\ns_add_u32 s81, s81, {STG5}\nv_add_u32 v49, s81, v49\ns_lshl_b32 s3, s{RR}, 5\nv_subrev_u32 v50, s3, v49")
        for hf in range(2):
            add(f"s_lshr_b32 s81, s{S_U}, 2\ns_lshl_b32 s81, s81, 1\ns_add_u32 s81, s81, {hf}\ns_mul_i32 s82, s81, 147\ns_lshr_b32 s82, s82, 10\ns_mul_i32 s83, s82, 7\ns_sub_u32 s83, s81, s83")
            add("s_lshl_b32 s81, s82, 2\ns_mul_i32 s82, s82, 3\ns_add_u32 s82, s82, 59\ns_cmp_lt_u32 s83, 4\ns_cselect_b32 s82, s81, s82")
            add("s_add_u32 s82, s82, s83\ns_lshr_b32 s81, s82, 3\ns_lshl_b32 s81, s81, 2\ns_and_b32 s83, s82, 2\ns_add_u32 s81, s81, s83\ns_bfe_u32 s83, s82, 0x10002\ns_add_u32 s81, s81, s83\ns_mul_i32 s81, s81, 5120")
            add(f"s_and_b32 s82, s82, 1\ns_lshl_b32 s82, s82, 9\ns_add_u32 s81, s81, s82\nv_mov_b32 v{51+hf}, s81")
        add(f"s_mov_b32 exec_lo, 0\nv_mov_b32 v51, v52\ns_mov_b32 exec_lo, -1\nv_and_b32 v52, 31, v{VL}\nv_lshl_add_u32 v51, v52, 4, v51\nv_lshrrev_b32 v52, 5, v{VL}\nv_lshlrev_b32 v52, 6, v52")
        add(f"s_and_b32 s86, s{S_U}, 7\ns_lshr_b32 s83, s{S_U}, 3\ns_lshl_b32 s83, s83, 2\ns_add_u32 s83, s83, s{WV}")
        add("s_mul_i32 s87, s83, 147\ns_lshr_b32 s87, s87, 10\ns_mul_i32 s81, s87, 7\ns_sub_u32 s81, s83, s81")
        add(f"s_mov_b32 s82, {P4_GROUPS[0][0]}\ns_mov_b32 s85, {P4_GROUPS[0][1]}")
        for t0, nt in P4_GROUPS[1:]: add(f"s_cmp_ge_u32 s81, {t0}\ns_cselect_b32 s82, {t0}, s82\ns_cselect_b32 s85, {nt}, s85")
        add(f"s_mul_i32 s87, s87, {WP4_J}\ns_mul_i32 s84, s82, 39\ns_add_u32 s84, s84, s81\ns_mul_i32 s82, s86, 5\ns_mul_i32 s82, s82, s85\ns_add_u32 s84, s84, s82\ns_lshl_b32 s84, s84, 10\ns_add_u32 s84, s84, s87\ns_add_u32 s84, s84, {WP4}\ns_lshl_b32 s85, s85, 10")
        add(f"s_lshl_b32 s83, s83, 3\ns_add_u32 s83, s83, s86\ns_lshl_b32 s83, s83, 7\ns_add_u32 s83, s83, {CSP4}")
        add(f"s_and_b32 s82, s{S_U}, 3\ns_lshl_b32 s82, s82, 1\ns_add_u32 s82, s82, s{KH}\ns_mul_i32 s82, s82, {WP5_C}\ns_mul_i32 s81, s{RR}, 3072\ns_add_u32 s82, s82, s81\ns_add_u32 s82, s82, {WP5}")
        add(f"s_cmp_ge_u32 s{S_U}, 216\ns_cmov_b32 s84, {OOB}\ns_cmov_b32 s83, {OOB}\ns_cmov_b32 s82, {OOB}\ns_lshl_b32 s81, s{RR}, 10\ns_sub_u32 s81, s82, s81")
        if self.o.get('oob15', 1):
            add(f"s_sub_u32 s86, s{S_U}, 216\ns_lshl_b32 s86, s86, 12\ns_add_u32 s86, s86, {WP4 + 15*WP4_J + 3072}\ns_lshl_b32 s87, s{WV}, 8\ns_sub_u32 s87, s{S_U}, s87\ns_cmp_ge_i32 s87, 216\ns_cmov_b32 s84, s86\ns_cmov_b32 s85, 0x20000000")
        for u in range(5):
            for p in range(2): L.append(('lg', f"ds_read_b64_tr_b16 {v(FR+4*u+2*p,2)}, v{ad} offset:{4*cg32(u,0,p)*128}", ('pl', u)))
        for k in range(3):
            for p in range(2): L.append(('lg', f"ds_read_b64_tr_b16 {v(FD+4*k+2*p,2)}, v{49 if k < 2 else 50} offset:{p*1280 + k*32}", 'pd'))
        S_ = []
        for u in range(5):
            L += [('wl', ('pl', u)), f"v_mfma_f32_32x32x16_bf16 {v(CA,16)}, {v(FR+4*u,4)}, {v(ONE,4)}, {'0' if u == 0 else v(CA,16)}"]
            S_.append(([f"s_add_u32 s84, s84, s85"] if u else []) + [('vm', f"buffer_store_dwordx4 {v(FR+4*u,4)}, v{VL16}, {WS}, s84 offen {st}", 'pst')])
        for k in range(3): S_.append([('vm', f"buffer_store_dwordx4 {v(FD+4*k,4)}, v51, {WS}, s{82 if k < 2 else 81} offen offset:{k*1024} {st}", 'pst')])
        for q in range(4): S_.append([('vm', f"s_mov_b32 exec_lo, 1\ns_mov_b32 exec_hi, 1\nbuffer_store_dwordx4 {v(CA+4*q,4)}, v52, {WS}, s83 offen offset:{16*q} {st}\ns_mov_b64 exec, -1", 'pst')])
        self.late_stores = S_
        return P, L

    def setup2a(self):
        A = self.A; t = VFREE
        A(f"s_lshl_b32 s3, s{MB}, 4\ns_add_u32 s3, s3, s{J}\ns_mul_i32 s{S_KVO}, s3, {KV_WG}\ns_add_u32 s{S_KVO}, s{S_KVO}, {KV}")
        A(f"s_lshl_b32 s3, s{MB}, 2\ns_lshl_b32 s90, s{RH}, 1\ns_add_u32 s3, s3, s90\ns_add_u32 s3, s3, s{RR}")
        A(f"s_mul_i32 s{S_X}, s3, 40960\ns_mul_i32 s90, s{CT}, 5120\ns_add_u32 s{S_X}, s{S_X}, s90")
        A(f"s_lshl_b32 s{S_STX}, s3, 3\ns_add_u32 s{S_STX}, s{S_STX}, s{CT}\ns_lshl_b32 s{S_STX}, s{S_STX}, 8")
        A(f"s_lshl_b32 s3, s3, 1\ns_add_u32 s{S_A3}, s3, s{KH}\ns_xor_b32 s{S_A3B}, s{S_A3}, 1")
        A(f"v_add_u32 v{VB1}, 0x10000, v{VL16}\nv_add_u32 v{VB2}, 0x20000, v{VL16}")

    def setup2b(self):
        A = self.A; t = VFREE
        m5, h, m4, g = t, t+1, t+2, t+3
        A(f"v_and_b32 v{m5}, 31, v{VL}\nv_lshrrev_b32 v{h}, 5, v{VL}\nv_and_b32 v{m4}, 15, v{VL}\nv_lshrrev_b32 v{g}, 4, v{VL}")
        A(f"v_lshlrev_b32 v{VST}, 3, v{m5}\nv_lshl_add_u32 v{VST}, v{h}, 8, v{VST}")
        assert self.nsh <= 2
        A(f"s_lshl_b32 s3, s{MB}, 8\nv_lshlrev_b32 v{VCNT}, 7, v{VL}\nv_add_u32 v{VCNT}, s3, v{VCNT}")
        A(f"v_sub_u32 v{VKF}, s{MB}, v{VL}\nv_cmp_gt_i32 vcc, 0, v{VKF}\nv_mov_b32 v{t+4}, s{MB}\nv_cndmask_b32 v{VKF}, v{VKF}, v{t+4}, vcc\nv_lshlrev_b32 v{VKF}, 4, v{VKF}\nv_add_u32 v{VKF}, s{J}, v{VKF}\nv_lshlrev_b32 v{VKF}, 7, v{VKF}\nv_add_u32 v{VKF}, {KVF}, v{VKF}")
        A(f"s_mul_i32 s3, s{J}, 7\ns_lshr_b32 s3, s3, 2\nv_mov_b32 v{VKT}, 8")
        for k in range(3): A(f"s_add_u32 s100, s3, {k}\ns_min_u32 s100, s100, 26\ns_lshl_b32 s100, s100, 7\ns_add_u32 s100, s100, {PK4}\nv_writelane_b32 v{VKF}, s100, {3+k}")
        A(f"s_lshr_b32 s3, s{CT}, 1\ns_lshl_b32 s3, s3, 7\ns_add_u32 s3, s3, {PK5}\nv_writelane_b32 v{VKF}, s3, 6\nv_writelane_b32 v{VKT}, 54, 6")
        A(f"s_lshl_b32 s3, s{MB}, 3\ns_lshl_b32 s100, s{WV}, 1\ns_add_u32 s3, s3, s100\ns_mul_i32 s3, s3, 20480\ns_mul_i32 s100, s{J}, 1280\ns_add_u32 s3, s3, s100\ns_add_u32 s3, s3, {OO}")
        A(f"v_lshrrev_b32 v{t+4}, 4, v{m5}\nv_mul_u32_u24 v{t+5}, 20480, v{t+4}\nv_lshl_add_u32 v{t+5}, v{m4}, 4, v{t+5}\nv_add_u32 v{VO3}, s3, v{t+5}\nv_lshl_add_u32 v{VO1}, v{h}, 8, v{VO3}")
        A(f"v_mul_u32_u24 v{VH}, {54*1024}, v{t+4}\nv_lshl_add_u32 v{VH}, v{m4}, 4, v{VH}\nv_lshl_add_u32 v{VH}, v{h}, 8, v{VH}")
        A(f"s_lshl_b32 s3, s{KH}, 4\nv_add_u32 v{t+4}, s3, v{m4}\nv_lshlrev_b32 v{VSX}, 3, v{t+4}\nv_and_b32 v{t+5}, 1, v{g}\nv_lshl_add_u32 v{t+4}, v{t+5}, 5, v{t+4}")
        A(f"v_lshlrev_b32 v{VX}, 4, v{t+4}\nv_lshl_add_u32 v{VX}, v{h}, 10, v{VX}")
        A(f"s_mul_i32 s3, s{WV}, 2560\ns_add_u32 s3, s3, {KREG}\nv_add_u32 v{VK}, s3, v{VL16}\ns_add_u32 s3, s3, 2048\nv_lshlrev_b32 v{VKS}, 3, v{VL}\nv_add_u32 v{VKS}, s3, v{VKS}")
        A(f"s_mul_i32 s3, s{WV}, 3328\ns_add_u32 s3, s3, {VREG - 32}")
        A(f"v_mul_u32_u24 v{VV}, 416, v{h}\nv_and_b32 v{t+4}, 1, v{g}\nv_lshl_add_u32 v{VV}, v{t+4}, 7, v{VV}\nv_and_b32 v{t+4}, 3, v{VL}\nv_lshl_add_u32 v{VV}, v{t+4}, 5, v{VV}")
        A(f"v_bfe_u32 v{t+4}, v{VL}, 2, 2\nv_lshl_add_u32 v{VV}, v{t+4}, 3, v{VV}\nv_add_u32 v{VV}, s3, v{VV}")
        A(f"s_add_u32 s3, s3, {8*3328 + 32}\nv_lshrrev_b32 v{t+4}, 2, v{m5}\nv_mul_u32_u24 v{t+4}, 416, v{t+4}\nv_and_b32 v{t+5}, 3, v{VL}\nv_lshl_add_u32 v{t+4}, v{t+5}, 3, v{t+4}\nv_add_u32 v{t+4}, s3, v{t+4}")
        A(f"v_lshl_add_u32 v{VW2}, v{h}, 6, v{t+4}\nv_lshl_add_u32 v{VW1}, v{h}, 5, v{t+4}\nv_mul_u32_u24 v{t+5}, 384, v{h}\nv_add_u32 v{VW12}, v{t+5}, v{t+4}")
        A(f"s_mul_i32 s3, s{WV}, 5120\nv_add_u32 v{VXW}, s3, v{VL16}\ns_xor_b32 s3, s{WV}, 1\ns_mul_i32 s3, s3, 5120\nv_add_u32 v{VXR}, s3, v{VL16}")
        A(f"v_lshlrev_b32 v{t+4}, 2, v{h}\nv_sub_u32 v{t+4}, v{m5}, v{t+4}")
        for r in range(16):
            A(f"v_cmp_le_i32 s[{MASK+2*r}:{MASK+2*r+1}], {8*(r>>2) + (r&3)}, v{t+4}")
        A(f"v_mov_b32 v{t+5}, 0xffff\nv_mov_b32 v{t+6}, 0xffff0000")
        for rr in range(8):
            A(f"v_cndmask_b32 v{PM+rr}, 0, v{t+5}, s[{MASK+4*rr}:{MASK+4*rr+1}]\nv_cndmask_b32 v{t+7}, 0, v{t+6}, s[{MASK+4*rr+2}:{MASK+4*rr+3}]\nv_or_b32 v{PM+rr}, v{PM+rr}, v{t+7}")

    def stats_load(self, off, dst, sr=T[3]):
        A = self.A
        A(f"s_add_u32 s{sr}, s{SL}, s{S_ST1}\ns_add_u32 s{sr}, s{sr}, {off}")
        for i in range(4):
            A.vmem(f"buffer_load_dwordx2 {v(dst+2*i,2)}, v{VST}, {WS}, s{sr} offen offset:{512*i} {self.ld}", 'st')

    def stats_finish(self, d, mu, rs):
        return [f"v_add_f32 v{d}, v{d}, v{d+2}", f"v_add_f32 v{d+1}, v{d+1}, v{d+3}", f"v_add_f32 v{d+4}, v{d+4}, v{d+6}", f"v_add_f32 v{d+5}, v{d+5}, v{d+7}",
                f"v_add_f32 v{d}, v{d}, v{d+4}", f"v_add_f32 v{d+1}, v{d+1}, v{d+5}", f"v_mov_b32 v{d+2}, v{d}", f"v_mov_b32 v{d+3}, v{d+1}",
                f"v_permlane32_swap_b32 v{d}, v{d+2}", f"v_permlane32_swap_b32 v{d+1}, v{d+3}",
                f"v_add_f32 v{d}, v{d}, v{d+2}", f"v_add_f32 v{d+1}, v{d+1}, v{d+3}",
                f"v_mul_f32 v{mu}, {fhex(-1.0/640)}, v{d}", f"v_mul_f32 v{d+1}, {fhex(1.0/640)}, v{d+1}",
                f"v_fma_f32 v{d+1}, -v{mu}, v{mu}, v{d+1}", f"v_max_f32 v{d+1}, 0, v{d+1}", f"v_add_f32 v{d+1}, 0x3727c5ac, v{d+1}",
                f"v_rsq_f32 v{rs}, v{d+1}"]

    def a_load(self, st_, sreg, dst, tag):
        self.A.vmem(f"buffer_load_dwordx4 {a(dst,4)}, v{VL16}, {WS}, s{sreg} offen offset:{(st_ & 3)*1024} {self.ld}", tag)

    def p1_seq(self, AP):
        ACC = 64
        ad = [[20480 + 8192*c for c in range(10)], [110592, 118784, 126976, 135168, 45056], [0, 8192, 20480, 28672, 36864]]
        seq = [(k, ACC + 16*t, ad[0][k >> 2] + (k & 3)*2048 + 1024*t, a(4*k, 4), k == 0) for k in range(40) for t in range(2)]
        two = self.o.get("twoacc", 0); self.alt = {2: 44, 3: ACC} if two else None
        one = lambda t: [(40*(t - 1) + k, self.alt[t] if two and k & 1 else ACC + 16*t, ad[t - 1][k >> 3] + (k & 7)*1024, a(4*k, 4), k <= two) for k in range(40)]
        cs = lambda t, st_: (st_, ACC + 16*t, CSF1 + 1024*t, v(AP, 4), False)
        sB, sC = one(2), one(3)
        seq += sB[:5] + [cs(0, 44), cs(1, 44)] + sB[5:] + [cs(2, 79)] + sC + [cs(3, 119)]
        vis = lambda nf: seq[max(nf - 8, 0)][0]
        idx = {(e[0], e[1]): n for n, e in reversed(list(enumerate(seq)))}
        ch = [(S_W1, c*8192, 2, ad[0][c], vis(8*c), 4*c + 3) for c in range(10)]
        for t in (2, 3): ch += [(S_W1, 40960*t + c*8192, 2, ad[t - 1][c], vis(idx[(40*(t - 1) + 8*c, ACC + 16*t)]), 40*(t - 1) + 8*c + 7) for c in range(5)]
        return seq, ch

    def p1(self):
        A = self.A; o = self.o
        STD, MU, RS, AP = 160, 168, 169, 172
        SA = T[4]
        def aload(st_):
            L = [f"s_add_u32 s{SA}, s{SA}, 4096"] if st_ and st_ % 4 == 0 else []
            return L + [('vm', f"buffer_load_dwordx4 {a(4*st_,4)}, v{VL16}, {WS}, s{SA} offen offset:{(st_ & 3)*1024} {self.ld}", ('a', st_))]
        A(f"s_add_u32 s{SA}, s{SL}, s{S_A1}")
        up = o.get("up1", 12); gate = o.get("gate1", 4) if self.es else 0
        if not self.es: self.stats_load(STA, STD)
        for k in range(up): [self.emit(x) for x in aload(k)]
        if self.es: self.reload("main_rl1", 0x580, [f"s_add_u32 s3, s{SL}, s{S_A1}\ns_add_u32 s3, s3, {k*1024}\nbuffer_load_dwordx4 {a(4*k,4)}, v{VL16}, {WS}, s3 offen sc1" for k in range(up)])
        seq, ch = self.p1_seq(AP)
        ch = [c + (k < self.pre1,) for k, c in enumerate(ch)] + [(S_W3, 30720, 8, lds3(3), None, 999, False)]
        bars = list(range(4, 120, 4))
        jobs, valid, used = self.plan(ch, bars)
        jobs[-1] = (o.get("w3at", 96),) + jobs[-1][1:]
        jobs += [(gate, k, aload(k)) for k in range(up, 40)]
        sched = self.edf(jobs, 120, lambda k: o.get("r1", 1.1) if k < 40 else o.get("r1b", 0.4), o.get("cr1", 0))
        sched[26] += [('wv', 'st')] + self.stats_finish(STD, MU, RS) + self.split3(MU, AP, STD)
        def at_step(st_, fill):
            if st_ == 40:
                while fill: self.emit(fill.pop(0))
            if st_ in used or st_ == 40:
                for tag in valid.get(st_, []): self.need(tag, fill)
                A("s_barrier")
            if st_ == 40: self.stamp('p1.a')
            self.es_hooks(st_, fill, up, gate, "main_rl1", 0x590, lambda: self.stats_load(STA, STD))
            fill += sched[st_]
            if st_ < 40: self.need(('a', st_), fill)
        self.p1_tail(seq, sched, at_step, RS, (('a', 0), 'p1.go'))

    def p1_tail(self, seq, sched, at_step, RS, go=None):
        A = self.A; ACC, PK, RQ, VC = 64, 176, 170, 192
        self.QA1, self.QB1, self.QA2, self.QB2 = 224, 228, 232, 236
        def quad(t, j, dst, sc):
            r = ACC + 16*t + 4*j
            return [f"v_mul_f32 v{r+i}, v{sc}, v{r+i}" for i in range(4)] + [f"v_cvt_pk_bf16_f32 v{dst}, v{r}, v{r+1}", f"v_cvt_pk_bf16_f32 v{dst+1}, v{r+2}, v{r+3}"]
        KA, KB, KS, VT = PK, PK+4, PK+8, 208
        L = [f"s_add_u32 s{T[4]}, s{SL}, s{S_KVO}", f"s_mul_i32 s{T[5]}, s{WV}, 2560", f"s_add_u32 s{T[5]}, s{T[5]}, s{T[4]}", f"s_mul_i32 s{T[6]}, s{WV}, 3328",
             f"s_add_u32 s{T[7]}, s{T[6]}, {VREG + 8*3328}", f"s_add_u32 s{T[6]}, s{T[6]}, s{T[4]}", f"s_add_u32 s{T[6]}, s{T[6]}, 10240",
             f"v_add_u32 v{PK+11}, s{T[7]}, v{VL16}", f"v_lshlrev_b32 v{PK+10}, 3, v{VL}", f"v_mov_b32 v{VT+10}, 0x3f803f80", f"v_mov_b32 v{VT+11}, 0x3f803f80",
             ('lg', f"ds_write_b64 v{VW1}, {v(VT+10,2)} offset:{5*32}", None), f"v_mul_f32 v{RQ}, {fhex(QSCALE)}, v{RS}"]
        for n, (t, j, ad, pos) in enumerate(((0, 0, VW2, 1), (0, 1, VW2, 2), (0, 2, VW12, 0), (0, 3, VW2, 7), (1, 0, VW2, 8))):
            L += quad(t, j, VT+2*n, RS) + [('lg', f"ds_write_b64 v{ad}, {v(VT+2*n,2)} offset:{pos*32}", 'vw')]
        L += quad(1, 2, KA, RS) + [('wl', 'vw')] + [('lg', f"ds_read_b128 {v(VC+4*n,4)}, v{PK+11} offset:{1024*n}", ('vc', n)) for n in range(4)] + quad(1, 3, KA+2, RS)
        L += [('vm', f"buffer_store_dwordx4 {v(KA,4)}, v{VL16}, {WS}, s{T[5]} offen {self.stkv}", 'out'), ('lg', f"ds_write_b128 v{VK}, {v(KA,4)} offset:{8*2560}", None)]
        st_v = lambda n: [('wl', ('vc', n)), ('vm', ("s_mov_b64 exec, 0xffff\n" if n == 3 else "") + f"buffer_store_dwordx4 {v(VC+4*n,4)}, v{VL16}, {WS}, s{T[6]} offen offset:{1024*n} {self.stkv}" + ("\ns_mov_b64 exec, -1" if n == 3 else ""), 'out')]
        L += st_v(0) + st_v(1) + st_v(2) + st_v(3)
        join = lambda t, j: [f"v_add_f32 v{ACC+16*t+4*j+i}, v{ACC+16*t+4*j+i}, v{self.alt[t]+4*j+i}" for i in range(4)] if self.alt else []
        q0 = quad
        quad = lambda t, j, dst, sc: join(t, j) + q0(t, j, dst, sc)
        M = quad(2, 1, KB, RS) + quad(2, 2, KB+2, RS)
        M += [('vm', f"buffer_store_dwordx4 {v(KB,4)}, v{VL16}, {WS}, s{T[5]} offen offset:1024 {self.stkv}", 'out')] + quad(2, 0, KS, RS)
        M += [('vm', f"buffer_store_dwordx2 {v(KS,2)}, v{PK+10}, {WS}, s{T[5]} offen offset:2048 {self.stkv}", 'out')]
        M += [('lg', f"ds_write_b128 v{VK}, {v(KB,4)} offset:{8*2560+1024}", None), ('lg', f"ds_write_b64 v{VKS}, {v(KS,2)} offset:{8*2560}", None)]
        M += quad(2, 3, self.QA1, RQ) + [f"v_mov_b32 v{q+k}, 0" for q in (self.QA2, self.QB2) for k in (2, 3)]
        def at2(st_, fill):
            if st_ == self.o.get("kvsig", -1):
                assert not any(isinstance(x, tuple) and len(x) == 3 and x[2] == 'out' for x in L + M)
                A.wait_vm('out'); A("s_barrier"); self.kv_flag()
            at_step(st_, fill)
        self.run32(seq, [128 + 4*k for k in range(8)], sched, at2, [(L, 88, self.o.get("kvrate", 3), self.o.get("gapv", 20)), (M, 125, self.o.get("krate", 4), self.o.get("gapk", 24))], go)
        assert not L and not M
        self.stamp('p1.main')
        A.wait_vm('out'); A.wait_lg0()
        self.qpack = quad(3, 0, self.QA1+2, RQ) + quad(3, 1, self.QA2, RQ) + quad(3, 2, self.QB1, RQ) + quad(3, 3, self.QB1+2, RQ)

    def kv_flag(self):
        A = self.A; N0 = A.newlab("kf")
        A(f"s_cmp_lg_u32 s{WV}, 0\ns_cbranch_scc1 {N0}\ns_add_u32 s3, s{LAY}, 1\ns_mov_b64 exec, 7\nv_mov_b32 v{VKT}, s3\ns_mov_b64 exec, 1\nbuffer_store_dword v{VKT}, v{VKF}, {WS}, 0 offen sc1\ns_mov_b64 exec, -1")
        A.lab(N0)

    def kv_sync(self):
        A = self.A; N = A.newlab("nw0"); E = A.newlab("syn"); N0 = A.newlab("nw0")
        A.vm = []; A.lg = []
        A("s_barrier")
        self.stamp('p1.drain')
        if self.o.get("kvsig", -1) < 0: self.kv_flag()
        A("s_nop 7")
        for x in self.qpack: A(x)
        A(f"v_mov_b32 v{self.QB2}, v{self.QA2}\nv_mov_b32 v{self.QB2+1}, v{self.QA2+1}")
        A(f"s_mov_b32 exec_lo, 0\nv_mov_b32 v{self.QA2}, 0\nv_mov_b32 v{self.QA2+1}, 0\ns_mov_b32 exec_lo, -1\ns_mov_b32 exec_hi, 0\nv_mov_b32 v{self.QB2}, 0\nv_mov_b32 v{self.QB2+1}, 0\ns_mov_b32 exec_hi, -1")
        self.code_touch()
        self.mark([("", VO1, SL, 0, ""), ("", VO1, SL, 768, ""), ("s_mov_b32 exec_lo, 0\n", VO3, SL, 512, "\ns_mov_b32 exec_lo, -1")])
        G = [(28, 29, 31, 32), (33, 34, 35, 99)]
        A(f"s_mul_i32 s100, s{WV}, 6144\ns_add_u32 s101, s100, 4096\ns_min_u32 s101, s101, 21504")
        for src in range(2):
            back = 2 - src; g1, l1, g2, l2 = G[src]
            A(f"s_add_u32 s3, s{SL}, s{S_KVO}\ns_sub_u32 s3, s3, {back*16*KV_WG}\ns_cmp_lt_u32 s{MB}, {back}\ns_cmov_b32 s3, {OOB}\ns_add_u32 s{g1}, s3, s100\ns_add_u32 s{g2}, s3, s101")
            ko = KREG + src*10240; vo = VREG + src*13312 - 10240
            A(f"s_cmp_lt_u32 s{WV}, 2"); sel(A, l1, ko, vo); A(f"s_cmp_lt_u32 s{WV}, 1"); sel(A, l2, ko, vo)
            A(f"s_add_u32 s{l1}, s{l1}, s100\ns_add_u32 s{l2}, s{l2}, s101")
        A(f"s_cmp_lg_u32 s{WV}, 0\ns_cbranch_scc1 {N}\ns_cmp_eq_u32 s{LAY}, 0\ns_cselect_b32 exec_lo, 0x7f, 7\ns_mov_b32 exec_hi, 0")
        self.spin(VKF, f'v{VKT}', 0x100)
        A(f"s_mov_b64 exec, -1")
        self.stamp('p1.poll')
        A(f"s_branch {E}")
        A.lab(N)
        self.rnd3(S_W3, 0, 0, 10)
        A.lab(E)
        A("s_barrier")
        for tag, (g1, l1, g2, l2) in (('halo1', G[1]), ('halo2', G[0])):
            for g, l, n in ((g1, l1, 4), (g2, l2, 2)):
                A(f"s_mov_b32 m0, s{l}")
                for i in range(n): A.vmem(f"buffer_load_dwordx4 v{VL16}, {WS}, s{g} offen offset:{1024*i} {self.ld} lds", tag)
        if self.o.get("prediag", 1):
            k = 162
            A(f"ds_read_b64 {v(k,2)}, v{VKS} offset:{8*2560}\nds_read_b128 {v(k+2,4)}, v{VK} offset:{8*2560}\nds_read_b128 {v(k+6,4)}, v{VK} offset:{8*2560+1024}\ns_waitcnt lgkmcnt(0)")
            for hd, (sd, q1, q2) in enumerate(((80, self.QA1, self.QA2), (208, self.QB1, self.QB2))):
                A(f"v_mfma_f32_32x32x16_bf16 {v(sd,16)}, {v(k+2+4*hd,4)}, {v(q1,4)}, 0\nv_mfma_f32_32x32x16_bf16 {v(sd,16)}, {v(k,4)}, {v(q2,4)}, {v(sd,16)}")
        A.wait_vm('halo1'); A("s_barrier")
        self.stamp('p2.go')

    def packed_signal(self):
        A = self.A; L = A.newlab("ps"); t = 60
        A(f"s_cmp_lg_u32 s{WV}, 0\ns_cbranch_scc1 {L}\ns_cmp_ge_u32 s{S_U}, 216\ns_cbranch_scc1 {L}")
        A(f"s_lshr_b32 s101, s{S_U}, 3\ns_lshl_b32 s101, s101, 7\ns_add_u32 s101, s101, {PK4}\nv_mov_b32 v{t}, s101\ns_and_b32 s101, s{S_U}, 3\ns_lshl_b32 s101, s101, 7\ns_add_u32 s101, s101, {PK5}\nv_writelane_b32 v{t}, s101, 1")
        A(f"s_mov_b64 exec, 3\nv_mov_b32 v{t+1}, 1\nbuffer_atomic_add v{t+1}, v{t}, {WS}, 0 offen sc1\ns_mov_b64 exec, -1")
        A.lab(L)

    def colsums(self, between, nb):
        A = self.A; L = A.newlab("x0"); L1 = A.newlab("x1"); t = 80
        A(f"s_lshl_b32 s{T[7]}, s{LAY}, 2\ns_sub_u32 s{T[7]}, s{RR}, s{T[7]}\ns_cmp_lg_u32 s{T[7]}, 1\ns_cbranch_scc1 {L1}")
        A(f"s_mul_i32 s{T[5]}, s{J}, 7168\ns_add_u32 s{T[5]}, s{T[5]}, {CSP4 - 4096}")
        A(f"s_lshl_b32 s{T[6]}, s{S_WI}, 7\nv_add_u32 v{t}, s{T[6]}, v{VL}")
        for r in range(2):
            A(f"v_add_u32 v{t+1}, {64*r}, v{t}\nv_lshrrev_b32 v{t+2}, 5, v{t+1}\nv_and_b32 v{t+3}, 31, v{t+1}\nv_lshlrev_b32 v{t+3}, 2, v{t+3}\nv_lshl_add_u32 v{t+2}, v{t+2}, 10, v{t+3}")
            for k in range(8): A(f"buffer_load_dword v{t+4+8*r+k}, v{t+2}, {WS}, s{T[5]} offen offset:{128*k} sc1")
        A.lab(L1)
        between()
        A(f"s_cmp_lg_u32 s{T[7]}, 1\ns_cbranch_scc1 {L}")
        A(self.csaddr(t, t+2, t+3, CSF4 - 4096) + f"\nv_add_u32 v{t+3}, 2048, v{t+2}\ns_waitcnt vmcnt({nb})")
        for k in range(1, 8): A(f"v_add_f32 v{t+4}, v{t+4}, v{t+4+k}\nv_add_f32 v{t+12}, v{t+12}, v{t+12+k}")
        for x in self.csfrag(t+4, 64, 68, t+2) + self.csfrag(t+12, 72, 68, t+3): A(x[1] if isinstance(x, tuple) else x)
        A("s_waitcnt lgkmcnt(0)")
        A.lab(L)

    def p2(self):
        A = self.A
        SB = [48, 64, 80]; PB = [96, 104]; PD = 112; OA = [128, 144]; KF = [162, 174]; VF = [184, 192, 200]; CB = [208, 240]
        Q1 = [self.QA1, self.QB1]; Q2 = [self.QA2, self.QB2]
        cz = self.o.get("czero", True)
        order = list(range(7, 0, -1))
        nxt = dict(zip(order, order[1:] + [0]))
        blocks = [(i, hd) for i in order for hd in range(2)] + [('m', 0), ('m', 1)]
        N = len(blocks)
        def kread(i, buf):
            k = KF[buf]
            return [('lg', f"ds_read_b64 {v(k,2)}, v{VKS} offset:{i*2560}", ('k', i)), ('lg', f"ds_read_b128 {v(k+2,4)}, v{VK} offset:{i*2560}", ('k', i)),
                    ('lg', f"ds_read_b128 {v(k+6,4)}, v{VK} offset:{i*2560+1024}", ('k', i))]
        def vread(i, hd, buf):
            return [('lg', f"ds_read_b64_tr_b16 {v(VF[buf]+4*aa+2*p,2)}, v{VV} offset:{i*3328 + (4*aa+2*p)*416 + 192*hd}", ('v', i, hd)) for aa in range(2) for p in range(2)]
        kbuf = {i: i % 2 for i in range(1, 8)}; kbuf[0] = 0; kbuf[8] = 1
        def smf(i, hd, sb):
            k = KF[kbuf[i]]; c = '0' if cz else v(CB[hd], 16)
            return [('mf', f"v_mfma_f32_32x32x16_bf16 {v(sb,16)}, {v(k+2+4*hd,4)}, {v(Q1[hd],4)}, {c}", ('k', i)),
                    ('mf', f"v_mfma_f32_32x32x16_bf16 {v(sb,16)}, {v(k,4)}, {v(Q2[hd],4)}, {v(sb,16)}", None)]
        started = [False, False]
        def pvf(i, hd, pb, vb):
            L = []
            for aa in range(2):
                c = v(OA[hd], 16) if started[hd] else '0'; started[hd] = True
                L.append(('mf', f"v_mfma_f32_32x32x16_bf16 {v(OA[hd],16)}, {v(VF[vb]+4*aa,4)}, {v(pb+4*aa,4)}, {c}", ('v', i, hd) if aa == 0 else None))
            return L
        def emit(x):
            if isinstance(x, str): A(x)
            elif x[0] == 'vm': A.vmem(x[1], x[2])
            elif x[0] == 'lg': A.lds(x[1], x[2])
            else:
                if x[2] is not None: A.wait_lg(x[2])
                A(x[1])
        def weave(mfs, fill):
            cost = lambda x: 8 if isinstance(x, str) and x.startswith("v_exp") else 4
            tot = sum(map(cost, fill)); acc = 0; k = 0
            for x in fill:
                while k < len(mfs) and acc >= tot * k / len(mfs): emit(mfs[k]); k += 1
                emit(x); acc += cost(x)
            while k < len(mfs): emit(mfs[k]); k += 1
        sbuf = lambda n: SB[n % 2]
        pd = self.o.get("prediag", 1); SD = [80, 208] if pd else [80, 80]
        for x in kread(order[0], kbuf[order[0]]): emit(x)
        for x in smf(order[0], 0, sbuf(0)): emit(x)
        for n in range(N + 1):
            mfs = []; fill = []
            if n + 1 < N:
                i, hd = blocks[n+1]
                if i == 'm': mfs += smf(0, hd, sbuf(n+1)) + ([] if pd else smf(8, hd, SB[2]))
                else: mfs += smf(i, hd, sbuf(n+1))
            pv = []
            if n >= 1:
                i, hd = blocks[n-1]
                if i == 'm': pv = pvf(0, hd, PB[(n-1) % 2], (n-1) % 2) + pvf(8, hd, PD, 2)
                else: pv = pvf(i, hd, PB[(n-1) % 2], (n-1) % 2)
            if n < N:
                i, hd = blocks[n]
                if i != 'm' and hd == 0:
                    if nxt[i] == 3:
                        A.wait_vm('halo2'); A("s_barrier")
                    fill += kread(nxt[i], kbuf[nxt[i]])
                sb = sbuf(n)
                if i == 'm':
                    pre = [f"v_cndmask_b32 v{sb+r}, v{sb+r}, v{SD[hd]+r}, s[{MASK+2*r}:{MASK+2*r+1}]" for r in range(16)]
                    for x in pre: emit(x)
                    for x in pv: emit(x)
                    pv = []
                    fill += vread(0, hd, n % 2) + vread(8, hd, 2)
                else:
                    fill += vread(i, hd, n % 2)
                ex = []
                for r in range(16):
                    ex.append(f"v_exp_f32 v{sb+r}, v{sb+r}")
                    if r >= 3 and r % 2 == 1: ex.append(f"v_cvt_pk_bf16_f32 v{PB[n%2]+(r-3)//2}, v{sb+r-3}, v{sb+r-2}")
                ex.append(f"v_cvt_pk_bf16_f32 v{PB[n%2]+7}, v{sb+14}, v{sb+15}")
                if i == 'm':
                    for rr in range(8):
                        ex.append(f"v_and_b32 v{PD+rr}, v{PM+rr}, v{PB[n%2]+rr}")
                        ex.append(f"v_bfi_b32 v{PB[n%2]+rr}, v{PM+rr}, 0, v{PB[n%2]+rr}")
                fill += ex
                if blocks[n] == (order[-1], 1) and not pd:
                    for x in mfs[:2]: emit(x)
                    for x in kread(8, kbuf[8]): emit(x)
                    mfs = pv + mfs[2:]; pv = []
            weave(mfs + pv, fill) if fill else [emit(x) for x in mfs + pv]
        A(f"v_min_f32 v48, v{OA[0]+12}, v{OA[1]}\nv_max_f32 v49, v{OA[0]+12}, v{OA[1]}\nv_cmp_u_f32 s[36:37], v{OA[0]+12}, v{OA[1]}")
        A(f"v_cmp_gt_f32 vcc, {fhex(2.0**-60)}, v48\ns_or_b64 s[36:37], s[36:37], vcc\nv_cmp_lt_f32 vcc, {fhex(2.0**60)}, v49\ns_or_b64 s[36:37], s[36:37], vcc\ns_cbranch_scc1 main_slow")
        if self.o.get("forceslow"): A("s_branch main_slow")
        A.lab("main_slow_back")
        self.slow_attention(OA, Q1, Q2)
        A("s_barrier")
        if self.o.get("estest"):
            LT = A.newlab("t"); A(f"s_cmp_lg_u32 s{LAY}, 0\ns_cbranch_scc1 {LT}"); self.early_signal(True); A.lab(LT)
        self.early_signal()
        self.stamp('p2.main')
        ra, rb = 48, 49
        A(f"v_rcp_f32 v{ra}, v{OA[0]+12}\nv_rcp_f32 v{rb}, v{OA[1]}")
        A(f"s_nop 0")
        def pk(dst, r, rs):
            for i in range(4): A(f"v_mul_f32 v{r+i}, v{rs}, v{r+i}")
            A(f"v_cvt_pk_bf16_f32 v{dst}, v{r}, v{r+1}\nv_cvt_pk_bf16_f32 v{dst+1}, v{r+2}, v{r+3}")
        pk(52, OA[0]+4, ra); pk(54, OA[0]+8, ra)
        A.vmem(f"buffer_store_dwordx4 {v(52,4)}, v{VO1}, {WS}, s{SL} offen {self.st}")
        pk(56, OA[1]+4, rb); pk(58, OA[1]+8, rb)
        A.vmem(f"buffer_store_dwordx4 {v(56,4)}, v{VO1}, {WS}, s{SL} offen offset:768 {self.st}")
        pk(60, OA[0], ra); pk(62, OA[1]+12, rb)
        A("s_mov_b32 exec_lo, 0")
        A.vmem(f"buffer_store_dwordx4 {v(60,4)}, v{VO3}, {WS}, s{SL} offen offset:512 {self.st}", 'out')
        A("s_mov_b32 exec_lo, -1")

    def slow_attention(self, OA, Q1, Q2):
        B = Asm(); B.uid = 9000
        S_, P_, K_, V_, C_, M_, AK, AKS, AV, NI = 48, 96, 162, 184, 208, 64, 65, 66, 67, 68
        I, I0 = T[0], T[1]
        B.lab("main_slow")
        B(f"s_lshl_b32 s{I0}, s{MB}, 2\ns_add_u32 s{I0}, s{I0}, s{WV}\ns_min_u32 s{I0}, s{I0}, 8\ns_sub_u32 s{I0}, 8, s{I0}\nv_mov_b32 v{NI}, 0xff800000")
        def scores(hd, c, tag):
            B(f"s_mul_i32 s3, s{I}, 2560\nv_add_u32 v{AK}, s3, v{VK}\nv_add_u32 v{AKS}, s3, v{VKS}\ns_mul_i32 s3, s{I}, 3328\nv_add_u32 v{AV}, s3, v{VV}")
            B(f"ds_read_b64 {v(K_,2)}, v{AKS}\nds_read_b128 {v(K_+2,4)}, v{AK}\nds_read_b128 {v(K_+6,4)}, v{AK} offset:1024\ns_waitcnt lgkmcnt(0)")
            B(f"v_mfma_f32_32x32x16_bf16 {v(S_,16)}, {v(K_+2+4*hd,4)}, {v(Q1[hd],4)}, {c}\nv_mfma_f32_32x32x16_bf16 {v(S_,16)}, {v(K_,4)}, {v(Q2[hd],4)}, {v(S_,16)}\ns_nop 15")
            B(f"s_cmp_lg_u32 s{I}, 0\ns_cbranch_scc1 {tag}_a")
            for r in range(16): B(f"v_cndmask_b32 v{S_+r}, v{S_+r}, v{NI}, s[{MASK+2*r}:{MASK+2*r+1}]")
            B.lab(f"{tag}_a")
            B(f"s_cmp_lg_u32 s{I}, 8\ns_cbranch_scc1 {tag}_b")
            for r in range(16): B(f"v_cndmask_b32 v{S_+r}, v{NI}, v{S_+r}, s[{MASK+2*r}:{MASK+2*r+1}]")
            B.lab(f"{tag}_b")
        for hd in range(2):
            B(f"v_mov_b32 v{M_}, v{NI}\ns_mov_b32 s{I}, s{I0}")
            B.lab(f"main_max{hd}")
            scores(hd, '0', f"main_m{hd}")
            for r in range(0, 16, 2): B(f"v_max3_f32 v{M_}, v{M_}, v{S_+r}, v{S_+r+1}")
            B(f"s_add_u32 s{I}, s{I}, 1\ns_cmp_le_u32 s{I}, 8\ns_cbranch_scc1 main_max{hd}")
            B(f"v_mov_b32 v{M_+5}, v{M_}\nv_permlane32_swap_b32 v{M_}, v{M_+5}\nv_max_f32 v{M_}, v{M_}, v{M_+5}")
            for r in range(16): B(f"v_sub_f32 v{C_+r}, 0, v{M_}\nv_mov_b32 v{OA[hd]+r}, 0")
            B(f"s_mov_b32 s{I}, s{I0}\ns_nop 1")
            B.lab(f"main_sum{hd}")
            scores(hd, v(C_, 16), f"main_s{hd}")
            for aa in range(2):
                for p in range(2): B(f"ds_read_b64_tr_b16 {v(V_+4*aa+2*p,2)}, v{AV} offset:{(4*aa+2*p)*416 + 192*hd}")
            for r in range(16): B(f"v_exp_f32 v{S_+r}, v{S_+r}")
            for r in range(8): B(f"v_cvt_pk_bf16_f32 v{P_+r}, v{S_+2*r}, v{S_+2*r+1}")
            B("s_waitcnt lgkmcnt(0)")
            for aa in range(2): B(f"v_mfma_f32_32x32x16_bf16 {v(OA[hd],16)}, {v(V_+4*aa,4)}, {v(P_+4*aa,4)}, {v(OA[hd],16)}")
            B(f"s_nop 7\ns_add_u32 s{I}, s{I}, 1\ns_cmp_le_u32 s{I}, 8\ns_cbranch_scc1 main_sum{hd}")
        B("s_nop 15\ns_branch main_slow_back")
        self.rare.append(B.render())

    def proj_setup(self, khoff):
        A = self.A; ACC, B0 = 64, 124
        A(f"s_mul_i32 s{T[7]}, s{KH}, {khoff}")
        for k in range(3): A(f"v_add_u32 v{B0+k}, s{T[7]}, v{[VL16, VB1, VB2][k]}")
        for k in range(10):
            A(f"v_lshlrev_b32 v{ACC+2*k}, 16, v{RES+k}\nv_and_b32 v{ACC+2*k+1}, 0xffff0000, v{RES+k}")

    def proj_loop(self, nb, wl, sched, hook, t0=0, nreg=0, go=None, side=None):
        A = self.A; ACC, WFB, B0 = 64, [104, 176], 124
        bases = [B0, B0+1, B0+2]
        if go and not self.o.get("onebar", 0): self.go(*go); go = None
        for t in range(5): A.lds(f"ds_read_b128 {v(WFB[0]+4*t,4)}, {self.ldsaddr(wl(0) + 1024*t, bases)}", ('f', 0))
        if go: self.go(*go)
        fill = []
        for b in range(nb):
            hook(b, fill)
            fill += sched[t0 + b]
            self.need(('a5', b), fill)
            A.wait_lg(('f', b))
            for t in range(5):
                for u in range(2):
                    d = ACC + 20*u + 4*t
                    wop = v(WFB[b&1]+4*t, 4) if b < nb - nreg else self.wreg(b, t)
                    A(f"v_mfma_f32_16x16x32_bf16 {v(d,4)}, {wop}, {a(8*(b % 20)+4*u,4)}, {'0' if (b == 0 and u == 1) else v(d,4)}")
                    k = 2*t + u
                    if k < 5 and b < nb - 1 - nreg: A.lds(f"ds_read_b128 {v(WFB[(b+1)&1]+4*k,4)}, {self.ldsaddr(wl(b+1) + 1024*k, bases)}", ('f', b+1))
                    if k >= 4: self.drain(fill, 2)
                    if side: self.drain(side[0], side[1])
        while fill: self.emit(fill.pop(0))

    def wreg(self, b, t):
        if b >= 22:
            f = 5*(b - 22) + t
            return a(160 + 4*f, 4) if f < 24 else v(240, 4)
        return v({21: [236, 244, 248, 208, 212], 20: [44, 48, 52, 56, 60]}[b][t], 4)

    def wreg_load(self):
        A = self.A; nreg = self.o.get("nreg5", 7); L = A.newlab("wr")
        keep = self.o.get("wrkeep", 1) and not self.es
        for b in range(27 - nreg, 27):
            if keep and b == max(22, 27 - nreg): A(f"s_cmp_lg_u32 s{LAY}, 0\ns_cbranch_scc1 {L}")
            A(f"s_mul_i32 s{T[6]}, s{KH}, 10240\ns_add_u32 s{T[6]}, s{T[6]}, s{S_W5}\ns_add_u32 s{T[6]}, s{T[6]}, {(4*(b >> 1) + (b & 1))*5120}\ns_add_u32 s{T[7]}, s{T[6]}, 4096")
            for t in range(5): A(f"buffer_load_dwordx4 {self.wreg(b, t)}, v{VL16}, {WS}, s{T[6 + t//4]} offen offset:{1024*(t & 3)} {self.ldw}")
        if keep: A.lab(L)

    def p3(self):
        A = self.A; o = self.o; SA0, SA1 = T[4], T[5]
        whole = o.get("whole3", 1)
        if whole:
            A(f"s_mul_i32 s{SA0}, s{S_A3}, {20*1024}\ns_add_u32 s{SA0}, s{SA0}, s{SL}\ns_add_u32 s{SA0}, s{SA0}, {OO}\ns_add_u32 s{SA1}, s{SA0}, {10*1024}")
        else:
            for sa, m in ((SA0, S_A3), (SA1, S_A3B)):
                A(f"s_mul_i32 s{sa}, s{m}, {20*1024}\ns_add_u32 s{sa}, s{sa}, s{SL}\ns_mul_i32 s{T[7]}, s{KH}, {10*1024}\ns_add_u32 s{sa}, s{sa}, s{T[7]}\ns_add_u32 s{sa}, s{sa}, {OO}")
        def aload(b):
            L = []
            if b and b % 4 == 0: L += [f"s_add_u32 s{SA0}, s{SA0}, 4096", f"s_add_u32 s{SA1}, s{SA1}, 4096"]
            for u, sa in enumerate((SA0, SA1)):
                L.append(('vm', f"buffer_load_dwordx4 {a(8*b+4*u,4)}, v{VL16}, {WS}, s{sa} offen offset:{(b&3)*1024} {self.ld}", ('a5', b)))
            return L
        up = o.get("up3", 6)
        for b in range(up): [self.emit(x) for x in aload(b)]
        early = o.get("early4", 2); gate = o.get("gate3", 2) if self.es else 0
        preload = ('vm', f"s_mov_b64 exec, 1\nbuffer_load_dword v253, v{VCNT}, {WS}, 0 offen sc1\ns_mov_b64 exec, -1", 'fl')
        if self.es:
            assert whole
            self.mark_x(X1)
            self.reload("main_rl3", 0x280, [f"s_mul_i32 s3, s{S_A3}, {20*1024}\ns_add_u32 s3, s3, s{SL}\ns_add_u32 s3, s3, {OO + (10*u + b)*1024}\nbuffer_load_dwordx4 {a(8*b+4*u,4)}, v{VL16}, {WS}, s3 offen sc1" for b in range(up) for u in range(2)])
        sched = self.edf([(gate, b, aload(b)) for b in range(up, 10)] + [(4, 20 + c, self.rnd(S_W4, c*16384, c*16384, 4, 'w4')) for c in range(early)], 10, o.get("r3", 3.0))
        self.proj_setup(5120)
        if whole:
            ACC = 64; bases = [VL16, VB1, VB2]; WFS = [104 + 4*k for k in range(5)] + [128 + 4*k for k in range(5)]
            rd = lambda n: A.lds(f"ds_read_b128 {v(WFS[n % 10],4)}, {self.ldsaddr(lds3(n // 10) + (n % 10)*1024, bases)}", ('f', n))
            for n in range(10): rd(n)
            self.go(('a5', 0), 'p3.go')
            fill = []
            for n in range(100):
                if n % 10 == 0:
                    b = n // 10
                    if n == 40 and early: A("s_barrier")
                    assert not any(isinstance(x, str) and "vccnz" in x for x in fill)
                    if self.es and b == 0:
                        for x in self.verify([0, 4], "main_rl3"): A(x)
                    if self.es and b == max(gate - 2, 0): self.emit(preload)
                    if self.es and b == gate:
                        A.wait_vm('fl'); self.flag_check(253, 0x290)
                    fill += sched[b]
                    self.need(('a5', b), fill)
                    if self.es and b + 1 < up: fill = [('wv', ('a5', b + 1))] + self.verify([8*b + 8, 8*b + 12], "main_rl3") + fill
                if n % 2 == 0: A.wait_lg(('f', n + 1))
                d = ACC + 4*(n % 5)
                A(f"v_mfma_f32_16x16x32_bf16 {v(d,4)}, {v(WFS[n % 10],4)}, {a(4*(n // 5),4)}, {v(d,4)}")
                if n + 10 < 100: rd(n + 10)
                if n % 2: self.drain(fill, 2)
            while fill: self.emit(fill.pop(0))
            A("s_barrier")
            self.early_signal()
        else:
            self.proj_loop(10, lds3, sched, lambda b, fill: A("s_barrier") if b == 4 and early else None, go=(('a5', 0), 'p3.go'))
        self.stamp('p3.main')
        self.proj_epilogue(3, None if whole else XCH3)

    def flag_check0(self, reg, code):
        A = self.A; L = A.newlab("f0")
        A(f"s_cmp_lg_u32 s{WV}, 0\ns_cbranch_scc1 {L}")
        self.flag_check(reg, code)
        A.lab(L)

    def flag_check(self, reg, code):
        A = self.A; L = A.newlab("fc")
        A(f"s_mov_b64 exec, {self.shm}\nv_cmp_gt_u32 vcc, s{TGT}, v{reg}\ns_cbranch_vccz {L}")
        self.spin(VCNT, f"s{TGT}", code)
        A.lab(L); A("s_mov_b64 exec, -1")

    def signal(self):
        A = self.A; L = A.newlab("sg")
        A(f"s_add_u32 s{TGT}, s{TGT}, {16 // self.nsh}\ns_cmp_lg_u32 s{WV}, 0\ns_cbranch_scc1 {L}\ns_mov_b64 exec, 1\nv_mov_b32 v252, 1\n{self.shoff()}buffer_atomic_add v252, v{VCNT}, {WS}, s3 offen sc1\ns_mov_b64 exec, -1")
        A.lab(L)

    def ffn(self):
        A = self.A; o = self.o
        ACC, STD, MU, RS, AP, PK = 64, 224, 216, 217, 220, 224
        WFS = [176 + 4*k for k in range(8)]
        SA, SA0, SA1, SH1, SH1B, SH2 = T[4], T[4], T[5], T[0], T[1], T[3]
        nreg = o.get("nreg5", 7)
        nc5 = (27 - nreg + 1) // 2
        sizes = [4]*10 + [3]*10 + [5]*nc5
        addr = []; p = 0
        for k, kb in enumerate(sizes):
            if k == 10: p = o.get("g2at", 24576)
            if p + kb*4096 > LDS_MISC: p = 0
            addr.append(p); p += kb*4096
        if M16:
            BA, BB, BC, VA, RS1, AP1 = [44, 45, 46], [47, 48, 49], 50, [51, 52], 218, 56
            el = lambda k, g, t, x: (40*g + k + (2*t + x >= 4 - g), (ACC + 64*g + 16*t + 4*x, ACC + 64*g + 16*t + 8 + 4*x),
                                     addr[10*g + (k >> 2)] + (k & 3)*(4 - g)*1024 + 1024*t + 256*x, (a(4*k, 4), a(4*k + 4, 4)), k == 0, (BA, BB)[g])
            ce = lambda g, t, x: (39 + 40*g, (ACC + 64*g + 16*t + 4*x, ACC + 64*g + 16*t + 8 + 4*x), (CSF4 + 4096*g + 1024*t + 256*x) & 0xffff, (v(AP, 4), v(AP1, 4)), False, [BC])
            seq = []
            for g in range(2):
                seq += [el(k, g, t, x) for k in range(0, 40, 2) for t in range(4 - g) for x in range(2)]
                seq += [ce(g, t, x) for t in range(4 - g) for x in range(2)]
            n1 = 168
            A(f"v_lshrrev_b32 v53, 5, v{VL}\nv_bfe_u32 v54, v{VL}, 4, 1\nv_and_b32 v55, 15, v{VL}\nv_lshlrev_b32 v55, 4, v55\nv_lshl_add_u32 v55, v54, 9, v55")
            A(f"v_lshl_add_u32 v{VA[0]}, v53, 10, v55\nv_add_u32 v{VA[1]}, 256, v{VA[0]}\nv_lshl_add_u32 v{BA[0]}, v53, 12, v55\nv_mul_u32_u24 v53, 3072, v53\nv_add_u32 v{BB[0]}, v53, v55\nv_add_u32 v{BC}, {CSF4 & ~0xffff}, v55")
        else:
            seq = [(k, ACC + 16*t, addr[k >> 2] + (k & 3)*4096 + 1024*t, a(4*k, 4), k == 0) for k in range(40) for t in range(4)]
            seq += [(39, ACC + 16*t, CSF4 + 1024*t, v(AP, 4), False) for t in range(4)]
            seq += [(40 + k, ACC + 64 + 16*t, addr[10 + (k >> 2)] + (k & 3)*3072 + 1024*t, a(4*k, 4), k == 0) for k in range(40) for t in range(3)]
            seq += [(79, ACC + 64 + 16*t, CSF4 + 4096 + 1024*t, v(AP, 4), False) for t in range(3)]
            n1 = 164
        vis = lambda nf: seq[max(nf - len(WFS), 0)][0]
        npre = o.get("npre4", 6)
        ch = [(S_W4, c*16384, 4, addr[c], vis(16*c), 4*c + 3, c < npre) for c in range(10)]
        ch += [(S_W4B, 163840 + c*12288, 3, addr[10 + c], vis(n1 + 12*c), 43 + 4*c, False) for c in range(10)]
        ch += [(S_W5, c*20480, 5, addr[20 + c], max(80, 79 + 2*c), 81 + 2*c, False) for c in range(nc5)]
        bars = list(range(1, 40, o.get("b4a", 4))) + list(range(41, 80, o.get("b4b", 4))) + [80] + list(range(81, 107, o.get("b5", 2)))
        if o.get("b4a", 4) == 8: bars = sorted(set(bars) - set(range(1, 40, 8)) | set(range(5, 40, 8)))
        jobs, valid, used = self.plan(ch, bars)
        lastbar = max(b for b in used)
        live = [(c[3], c[3] + 20480) for c in ch[20:] if c[5] >= lastbar]
        xch = [x for x in (0, 57344, 77824, 98304, 118784, 126976) if all(x + 20480 <= lo or hi <= x for lo, hi in live)][0]
        wl5 = lambda b: addr[20 + (b >> 1)] + (b & 1)*5120
        A(f"s_add_u32 s{SA}, s{SL}, s{S_A1}\ns_add_u32 s{SA}, s{SA}, {X1}")
        if not self.es: self.stats_load(ST3, STD)
        def aload(st_):
            L = [f"s_add_u32 s{SA}, s{SA}, 4096"] if st_ and st_ % 4 == 0 else []
            if M16: return L + [('vm', f"buffer_load_dwordx4 {a(4*st_,4)}, v{VA[st_ & 1]}, {WS}, s{SA} offen offset:{(st_ & 2)*1024} {self.ld}", ('a', st_))]
            return L + [('vm', f"buffer_load_dwordx4 {a(4*st_,4)}, v{VL16}, {WS}, s{SA} offen offset:{(st_ & 3)*1024} {self.ld}", ('a', st_))]
        def aload5(b):
            L = []
            if b == 0:
                for sa, m in ((SA0, S_A3), (SA1, S_A3B)):
                    L.append(f"s_mul_i32 s{sa}, s{m}, {54*1024}\ns_add_u32 s{sa}, s{sa}, s{SL}\ns_lshl_b32 s3, s{KH}, 10\ns_add_u32 s{sa}, s{sa}, s3\ns_add_u32 s{sa}, s{sa}, {HH}")
            elif b % 2 == 0: L += [f"s_add_u32 s{SA0}, s{SA0}, 4096", f"s_add_u32 s{SA1}, s{SA1}, 4096"]
            for u, sa in enumerate((SA0, SA1)):
                L.append(('vm', f"buffer_load_dwordx4 {a(8*(b % 20)+4*u,4)}, v{VL16}, {WS}, s{sa} offen offset:{(b&1)*2048} {self.ld}", ('a5', b)))
            return L
        up = o.get("up4", 10); chk1 = o.get("chk1", 77); chk2 = o.get("chk2", 10)
        for k in range(up): [self.emit(x) for x in aload(k)]
        gate = o.get("gate4", 4) if self.es else 0
        if self.es:
            self.reload("main_rl4", 0x380, [f"s_add_u32 s3, s{SL}, s{S_A1}\ns_add_u32 s3, s3, {X1 + k*1024}\nbuffer_load_dwordx4 {a(4*k,4)}, v{VL16}, {WS}, s3 offen sc1" for k in range(up)])
            L1 = A.newlab("m1")
            A(f"s_cmp_lg_u32 s{LAY}, 0\ns_cbranch_scc1 {L1}")
            self.mark_x(LS + XA); self.colsums(lambda: None, 0)
            A.lab(L1)
        jobs += [(gate, k - (k & 1)*M16, aload(k)) for k in range(up, 40)]
        if M16:
            for B_ in (BA, BB): A(f"v_add_u32 v{B_[1]}, 0x10000, v{B_[0]}\nv_add_u32 v{B_[2]}, 0x20000, v{B_[0]}")
        if self.es and nreg:
            wr = self.capture(self.wreg_load)
            jobs.append((o.get("wrat", 47), 79, [('vm', x, 'wr') if x.startswith("buffer") else x for x in wr]))
        jobs += [(chk1 if b < 15 else max(80 + chk2, 80 + b - 19), 79.6 + (b >= o.get("up5", 5))*(b - 0.6), aload5(b), 80 + b) for b in range(27)]
        r4a, r4b, r4c, r5 = o.get("r4a", 1.85), o.get("r4b", 1.3), o.get("r4c", 2.5), o.get("r5", 3.5)
        sched = self.edf(jobs, 107, lambda k: r4a if k < 40 else (0 if k < o.get("quiet4", 47) else (r4b if k < chk1 else (r4c if k < 80 else (o.get("r5a", r5) if k < 80 + o.get("k5", 0) else (r5 if k < 80 + chk2 else o.get("r5c", r5)))))))
        assert not any(isinstance(x, tuple) and x[2] in [('a5', b) for b in range(chk1 - 40 >> 1, 27)] for k in range(80) for x in sched[k])
        if o.get("verbose"): print("addr", addr, "xch", xch, "valid", valid, {k: [x[2] for x in L if isinstance(x, tuple)] for k, L in sched.items()})
        A(f"s_add_u32 s{SH1}, s{SL}, s{S_H}\ns_add_u32 s{SH1}, s{SH1}, {HH}\ns_mul_i32 s{SH2}, s{J}, 1536\ns_add_u32 s{SH2}, s{SH2}, s{SH1}\ns_add_u32 s{SH2}, s{SH2}, {63*512}")
        A(f"s_lshl_b32 s3, s{J}, 11\ns_add_u32 s{SH1}, s{SH1}, s3\ns_mov_b32 s{SH1B}, s{SH1}\ns_cmp_eq_u32 s{J}, 15\ns_cmov_b32 s{SH1B}, {OOB}\ns_cmov_b32 s{SH2}, {OOB}")
        sched[28] += [('wv', 'st')] + self.stats_finish(STD, MU, RS) + [f"v_mul_f32 v{RS}, v{RS}, v{RS}"]
        if M16:
            sched[28] += [f"v_mov_b32 v{RS1}, v{RS}", f"v_mov_b32 v{RS1+1}, v{MU}", f"v_permlane16_swap_b32 v{RS}, v{RS1}", f"v_permlane16_swap_b32 v{MU}, v{RS1+1}",
                          f"s_mov_b32 exec_lo, 0xffff0000\nv_mov_b32 v{MU}, 0\nv_mov_b32 v{RS1+1}, 0\ns_mov_b32 exec_lo, -1"] + self.split3(RS1+1, AP1, STD)
        sched[28] += self.split3(MU, AP, STD)
        def epi(t0, t1, tag):
            body = []
            for t in range(t0, t1):
                r = ACC + 16*t; pk = PK + 4*(t % 3)
                for hf in range(2):
                    g = r + 8*hf; rs = RS1 if M16 and hf else RS
                    for i in range(4): body += [f"v_max_f32 v{g+i}, 0, v{g+i}", f"v_mul_f32 v{g+4+i}, v{rs}, v{g+4+i}"]
                    body += [f"v_mul_f32 v{g+i}, v{g+i}, v{g+4+i}" for i in range(4)]
                    body += [f"v_cvt_pk_bf16_f32 v{pk+2*hf}, v{g}, v{g+1}", f"v_cvt_pk_bf16_f32 v{pk+2*hf+1}, v{g+2}, v{g+3}"]
                sb, im = (SH1 if t < 3 else SH1B, 512*t) if t < 4 else (SH2, 512*(t-4))
                st_ = [('vm', f"buffer_store_dwordx4 {v(pk,4)}, v{VH}, {WS}, s{sb} offen offset:{im} {self.st}", tag)]
                if M16: st_ = [f"v_permlane16_swap_b32 v{pk}, v{pk+2}", f"v_permlane16_swap_b32 v{pk+1}, v{pk+3}"] + st_
                if M16 and t + 1 < t1: late = st_; body.append(('later', late))
                else: body += st_
            out = []; held = []
            for x in body:
                if isinstance(x, tuple) and x[0] == 'later': held = [2, x[1]]; continue
                out.append(x)
                if held:
                    held[0] -= 1
                    if not held[0]: out += held[1]; held = []
            return out
        epi1 = epi(0, 4, 'h1')
        w0 = o.get("w0chk", 0)
        if w0: A(f"s_mov_b32 s99, {OOB}\ns_cmp_eq_u32 s{WV}, 0\ns_cmov_b32 s99, 0")
        preload = ('vm', f"s_mov_b64 exec, {self.shm}\nbuffer_load_dword v253, v{VCNT}, {WS}, {'s99' if w0 else '0'} offen sc1\ns_mov_b64 exec, -1", 'fl')
        sig1 = o.get("sig1", 57)
        def at_step(st_, fill):
            if st_ == 38:
                while any(isinstance(x, str) and x.startswith("v_") for x in fill): self.emit(fill.pop(0))
            if w0 and st_ == chk1:
                self.need('fl', fill); self.flag_check0(253, 0x400)
            if st_ in used or st_ == sig1 or w0 and st_ == chk1:
                for tag in valid.get(st_, []): self.need(tag, fill)
                if st_ == sig1:
                    while epi1: self.emit(epi1.pop(0))
                    A.wait_vm('h1')
                A("s_barrier")
                if st_ == sig1: self.signal()
                if o.get("in4") and st_ > 40: self.stamp(f'g.{st_}')
            if st_ == 40: self.stamp('p4.g1')
            if st_ == chk1 - o.get("fl1", 4): fill.insert(0, preload)
            if st_ == chk1 and not w0:
                self.need('fl', fill); self.flag_check(253, 0x400)
            if st_ == chk1: self.stamp('p4.chk')
            self.es_hooks(st_, fill, up, gate, "main_rl4", 0x390, lambda: self.stats_load(ST3, STD, 99))
            fill += sched[st_]
            if st_ < 40: self.need(('a', st_ | M16), fill)
        self.run32(seq, WFS, sched, at_step, (epi1, n1 + 1 + M16, o.get("epirate", 4), o.get("gape", 20)), (('a', M16), 'p4.go'))
        self.stamp('p4.main')
        epi2 = epi(4, 7, 'h2')
        if not o.get("epi2rate", 0):
            while epi2: self.emit(epi2.pop(0))
        self.stamp('p4.epi')
        self.proj_setup(10240)
        for tag in valid.get(80, []): A.wait_vm(tag)
        A.wait_vm(('a5', 0)); A("s_barrier")
        self.stamp('p5.go')
        sig2 = o.get("sig2", 3)
        def hook(b, fill):
            if w0 and b == chk2:
                self.need('fl', fill); self.flag_check0(253, 0x480)
            if 80 + b in used and b or b == sig2 or w0 and b == chk2:
                for tag in valid.get(80 + b, []): self.need(tag, fill)
                if b == sig2:
                    assert not epi2
                    A.wait_vm('h2')
                A("s_barrier")
                if b == sig2: self.signal()
            if b == chk2 - o.get("fl2", 2): fill.insert(0, preload)
            if o.get("in5") and b in (4, chk2, 15, 20): self.stamp(f'p5.b{b}')
            if b == chk2 and not w0:
                self.need('fl', fill); self.flag_check(253, 0x480)
                if o.get("in5"): self.stamp('p5.chk')
        self.proj_loop(27, wl5, sched, hook, 80, nreg, side=(epi2, o.get("epi2rate", 0)))
        self.stamp('p5.main')
        self.proj_epilogue(5, xch)

    def proj_epilogue(self, which, xo):
        A = self.A; o = self.o; ACC, WF, B0 = 64, 112, 136; ntail = 0
        fill = []
        if which == 3:
            e0 = o.get("early4", 2) * 16; e1 = e0 + o.get("post4", 33)
            n3 = -(-(o.get("npre4", 6)*16 - e1) // 3)
            assert e1*1024 <= XCH3 and (e1 + 3*n3)*1024 <= LDS_MISC and (not self.es or n3 <= 0)
            self.post = (S_W4, e0*1024, e0*1024, e1 - e0)
            self.pre = lambda: self.colsums(lambda: self.rnd3(S_W4, e1*1024, e1*1024, n3), n3)
        else:
            self.pre1 = o.get("pre1", 10)
            assert xo + 20480 <= 20480 or xo >= 20480 + 36864
            assert not self.es or self.pre1 == 3
            self.post = (S_W1, 0, 20480, 36)
            def pre():
                self.rnd3(S_W1, 36864, 20480 + 36864, -(-(8*min(self.pre1, 10) - 36) // 3))
                if self.pre1 > 10: self.rnd3(S_W1, 81920, 110592, -(-8*(self.pre1 - 10) // 3))
            self.pre = pre
        if xo is not None:
            A(f"v_add_u32 v{B0}, {xo}, v{VXW}\nv_add_u32 v{B0+1}, {xo}, v{VXR}")
            for t in range(5): A.lds(f"ds_write_b128 v{B0}, {v(ACC+20+4*t,4)} offset:{1024*t}")
            A.wait_lg0(); A("s_barrier")
            for t in range(5): A.lds(f"ds_read_b128 {v(ACC+20+4*t,4)}, v{B0+1} offset:{1024*t}", ('x', t))
            self.early_signal()
        if which == 5:
            A(f"s_cmp_lg_u32 s{LAY}, 0\ns_cbranch_scc1 main_final")
            self.fin_state = (list(A.lg), ACC); self.fin_x = xo
        body = []
        for t in range(5):
            if xo is not None:
                body.append(('wl', ('x', t)))
                body += [f"v_pk_add_f32 {v(ACC+4*t+i,2)}, {v(ACC+4*t+i,2)}, {v(ACC+20+4*t+i,2)}" for i in (0, 2)]
            body += [f"v_cvt_pk_bf16_f32 v{RES+2*t}, v{ACC+4*t}, v{ACC+4*t+1}", f"v_cvt_pk_bf16_f32 v{RES+2*t+1}, v{ACC+4*t+2}, v{ACC+4*t+3}"]
        xoff = X1 if which == 3 else LS + XA
        soff = ST3 if which == 3 else LS + STA
        A(f"s_add_u32 s{T[4]}, s{SL}, s{S_X}\ns_add_u32 s{T[4]}, s{T[4]}, {xoff}\ns_add_u32 s{T[5]}, s{T[4]}, 4096\ns_add_u32 s{T[6]}, s{SL}, s{S_STX}\ns_add_u32 s{T[6]}, s{T[6]}, {soff}")
        body.append(('vm', f"buffer_store_dwordx4 {v(RES,4)}, v{VX}, {WS}, s{T[4]} offen {self.st}", 'out'))
        body.append(('vm', f"buffer_store_dwordx4 {v(RES+4,4)}, v{VX}, {WS}, s{T[4]} offen offset:2048 {self.st}", 'out'))
        t4 = WF
        body += [f"v_mov_b32 v{t4+k}, v{RES+8+(k&1)}" for k in range(6)]
        body += [f"v_permlane32_swap_b32 v{t4+4}, v{t4+2}", f"v_permlane32_swap_b32 v{t4+5}, v{t4+3}"]
        body.append(('vm', f"s_mov_b32 exec_hi, 0\nbuffer_store_dwordx4 {v(t4,4)}, v{VX}, {WS}, s{T[5]} offen {self.st}\ns_mov_b32 exec_hi, -1", 'out'))
        s0, s1 = WF + 8, WF + 9
        p0, p1 = WF + 12, WF + 14
        body += [f"v_pk_add_f32 {v(p0,2)}, {v(ACC,2)}, {v(ACC+2,2)}", f"v_pk_mul_f32 {v(p1,2)}, {v(ACC,2)}, {v(ACC,2)}", f"v_pk_fma_f32 {v(p1,2)}, {v(ACC+2,2)}, {v(ACC+2,2)}, {v(p1,2)}"]
        for i in range(4, 20, 2): body += [f"v_pk_add_f32 {v(p0,2)}, {v(p0,2)}, {v(ACC+i,2)}", f"v_pk_fma_f32 {v(p1,2)}, {v(ACC+i,2)}, {v(ACC+i,2)}, {v(p1,2)}"]
        body += [f"v_add_f32 v{s0}, v{p0}, v{p0+1}", f"v_add_f32 v{s1}, v{p1}, v{p1+1}"]
        for sw in ("v_permlane16_swap_b32", "v_permlane32_swap_b32"):
            body += [f"v_mov_b32 v{s0+2}, v{s0}", f"v_mov_b32 v{s0+3}, v{s1}", f"{sw} v{s0}, v{s0+2}", f"{sw} v{s1}, v{s0+3}", f"v_add_f32 v{s0}, v{s0}, v{s0+2}", f"v_add_f32 v{s1}, v{s1}, v{s0+3}"]
        self.mix(body, fill, 7)
        while fill: self.emit(fill.pop(0))
        A("s_mov_b64 exec, 0xffff")
        A.vmem(f"buffer_store_dwordx2 {v(s0,2)}, v{VSX}, {WS}, s{T[6]} offen {self.st}", 'out')
        A("s_mov_b64 exec, -1")

    def final(self):
        A = self.A; t = VFREE
        A.lab("main_final")
        A.lg, ACC = self.fin_state
        xo = self.fin_x
        A(f"s_xor_b32 s3, s{WV}, 1\ns_mul_i32 s3, s3, 5120\ns_add_u32 s3, s3, {xo}\nv_and_b32 v{t}, 15, v{VL}\nv_mul_u32_u24 v{t}, 176, v{t}\nv_lshrrev_b32 v{t+1}, 4, v{VL}\nv_lshl_add_u32 v{t}, v{t+1}, 3, v{t}\nv_add_u32 v{t}, s3, v{t}")
        for n in range(3):
            A(f"v_add_u32 v{t+1}, {64*n}, v{VL}\nv_mul_u32_u24 v{t+2}, 6554, v{t+1}\nv_lshrrev_b32 v{t+2}, 16, v{t+2}\nv_mul_u32_u24 v{t+3}, 10, v{t+2}\nv_sub_u32 v{t+3}, v{t+1}, v{t+3}\nv_lshlrev_b32 v{t+3}, 4, v{t+3}")
            A(f"v_mad_u32_u24 v{t+4+n}, v{t+2}, s3, v{t+3}".replace("s3", f"v{t+11}") if False else f"v_mul_u32_u24 v{t+4+n}, 176, v{t+2}\nv_add3_u32 v{t+4+n}, v{t+4+n}, v{t+3}, s3\nv_mul_u32_u24 v{t+8+n}, 1280, v{t+2}\nv_add_u32 v{t+8+n}, v{t+8+n}, v{t+3}")
        A(f"s_lshl_b32 s{T[4]}, s{S_A3}, 4\ns_mul_i32 s{T[4]}, s{T[4]}, 1280\ns_mul_i32 s{T[5]}, s{CT}, 160\ns_add_u32 s{T[4]}, s{T[4]}, s{T[5]}")
        A.wait_lg0()
        for k in range(5):
            for i in (0, 2): A(f"v_pk_add_f32 {v(ACC+4*k+i,2)}, {v(ACC+4*k+i,2)}, {v(ACC+20+4*k+i,2)}")
            A(f"v_cvt_pk_bf16_f32 v{RES+2*k}, v{ACC+4*k}, v{ACC+4*k+1}\nv_cvt_pk_bf16_f32 v{RES+2*k+1}, v{ACC+4*k+2}, v{ACC+4*k+3}")
            A(f"ds_write_b64 v{t}, {v(RES+2*k,2)} offset:{32*k}")
        A("s_waitcnt lgkmcnt(0)")
        for n in range(3): A(f"ds_read_b128 {v(112+4*n,4)}, v{t+4+n}")
        for n in range(3):
            A(f"s_waitcnt lgkmcnt({2-n})")
            if n == 2: A("s_mov_b32 exec_hi, 0")
            A(f"buffer_store_dwordx4 {v(112+4*n,4)}, v{t+8+n}, {OS}, s{T[4]} offen {self.o.get('stout', 'nt')}")
        A("s_mov_b32 exec_hi, -1")

    def gen(self):
        A = self.A
        o_big = False
        def stop(name):
            if self.stop == name: A.wait_all(); A("s_branch main_done")
        self.setup()
        self.stamp('start')
        if self.o.get("entry"): A(f"v_writelane_b32 v{VPROF}, s94, 31")
        self.p1_first()
        A.lab("main_layer")
        self.kv_sync(); stop("p1")
        self.p2()
        if self.es:
            self.early_sync((S_W3, 61440, lds3(6), 40), 0x200, 1)
            self.p3()
            self.early_sync(self.post, 0x300, 2)
            self.ffn()
            self.early_sync(self.post, 0x500, 3)
        else:
            n2 = self.o.get("post2", 42)
            self.cluster_sync((S_W3, 61440, lds3(6), n2) if n2 else None, (lambda: self.rnd3(S_W3, 61440 + n2*1024, lds3(6) + n2*1024, -(-(40 - n2) // 3))) if n2 < 40 else None,
                              0x200, self.wreg_load if self.o.get('nreg5', 7) else None); stop("p2")
            self.p3()
            self.cluster_sync(self.post, self.pre, 0x300); stop("p3")
            self.ffn()
            self.cluster_sync(self.post, self.pre, 0x500); stop("p5")
        A(f"s_mov_b32 s{LAY}, 1\ns_add_u32 s{SL}, s{SL}, {LS}\ns_mov_b32 s{S_PB}, {64 if o_big else 32}")
        self.stamp('start')
        self.p1()
        A("s_branch main_layer")
        self.final()
        A.lab("main_done")
        if self.prof:
            A.wait_all()
            if self.stop: A(f"s_mov_b32 s{S_PB}, 32")
            self.stamp('end')
            A(f"s_cmp_lg_u32 s{WV}, 0\ns_cbranch_scc1 main_end\ns_lshl_b32 s3, s2, 8\ns_add_u32 s3, s3, {PROF}\nv_lshlrev_b32 v{VFREE}, 2, v{VL}")
            A(f"buffer_store_dword v{VPROF}, v{VFREE}, {WS}, s3 offen\ns_add_u32 s3, s3, 0x10000\nbuffer_store_dword v{VPROF+1}, v{VFREE}, {WS}, s3 offen")
        if self.o.get("diagpad"):
            A(f"v_readlane_b32 s3, v{VPROF}, 0")
            A.lab("main_pad")
            A(f"s_memrealtime s[96:97]\ns_waitcnt lgkmcnt(0)\ns_sub_u32 s96, s96, s3\ns_cmp_lt_u32 s96, {self.o['diagpad']}\ns_cbranch_scc1 main_pad")
        if self.o.get("dbgprof"):
            t = VFREE; src = VPROF + (self.o["dbgprof"] - 1)
            A(f"s_cmp_lg_u32 s2, {self.o.get('dbgwg', 100)}\ns_cbranch_scc1 main_end\nv_readlane_b32 s3, v{src}, 0\nv_subrev_u32 v{t}, s3, v{src}")
            A(f"v_lshrrev_b32 v{t+1}, 2, v{VL}\nv_and_b32 v{t+1}, 8, v{t+1}\nv_and_b32 v{t+2}, 7, v{VL}\nv_add_u32 v{t+1}, v{t+1}, v{t+2}\nv_lshlrev_b32 v{t+1}, 2, v{t+1}")
            A(f"s_mov_b32 exec_lo, 0xfe\ns_mov_b32 exec_hi, 0xff\nbuffer_store_dword v{t}, v{t+1}, {DS_}, 0 offen")
        A.lab("main_end")
        A("s_endpgm")
        for blk in self.rare: A(blk)
        A.lab("main_last")

def gen_main(A, opts):
    m = Main(A, opts); m.gen()
    assert len(m.names) <= 32, len(m.names)
    if m.names: A.L.insert(0, Ins(f"; stamps {opts.get('mx', 512)} " + " ".join(m.names)))
```
